```python
import torch

def _softmax(x, axis=-1):
    return torch.softmax(x, dim=axis)

def _gelu(x):
    return torch.nn.functional.gelu(x, approximate='tanh')

def _silu(x):
    return torch.nn.functional.silu(x)

def _sigmoid(x):
    return torch.sigmoid(x)

def _layernorm(x, axis=-1, eps=1e-05):
    m = x.mean(dim=axis, keepdim=True)
    v = x.var(dim=axis, keepdim=True, unbiased=False)
    return (x - m) / torch.sqrt(v + eps)

def _scatter_add(tgt, idx, src, axis=0):
    return tgt.clone().index_add_(axis, idx, src)

def _segment_sum(src, seg, n):
    out = torch.zeros((n,) + src.shape[1:], dtype=src.dtype)
    return out.index_add_(0, seg, src)

def _pad(x, pw):
    flat = tuple((v for pair in reversed(pw) for v in pair))
    return torch.nn.functional.pad(x, flat)
kernel_name = 'gated_mix__memory_aug_recurrent_mem_tr__sliding_local_dilated__prompt'

def setup_inputs():

    _w = lambda a: (lambda t: t.to(torch.bfloat16) if t.is_floating_point() else t)(torch.as_tensor(a))

    def _A_setup():
        B, S, Dm = (1, 2048, 512)
        H, Dh = (32, 128)
        M, seg = (8, 32)
        seg = min(seg, S)
        S = S // seg * seg
        return {'x': _w((lambda *s: torch.randn(*s, dtype=torch.bfloat16) * 0.05)(B, S, Dm)), 'mem0': _w((lambda *s: torch.randn(*s, dtype=torch.bfloat16) * 1.6)(B, M, Dm)), 'Wq': _w((lambda *s: torch.randn(*s, dtype=torch.bfloat16) * 0.8)(Dm, H, Dh) * Dm ** (-0.5)), 'Wk': _w((lambda *s: torch.randn(*s, dtype=torch.bfloat16) * 0.8)(Dm, H, Dh) * Dm ** (-0.5)), 'Wv': _w((lambda *s: torch.randn(*s, dtype=torch.bfloat16) * 1.6)(Dm, H, Dh) * Dm ** (-0.5)), 'Wo': _w((lambda *s: torch.randn(*s, dtype=torch.bfloat16) * 1.6)(H, Dh, Dm) * (H * Dh) ** (-0.5)), 'seg_len': seg}
    _A_in = _A_setup()

    def _B_setup():
        B, S, D = (1, 2048, 512)
        return {'x': _w((lambda *s: torch.randn(*s, dtype=torch.bfloat16) * 0.05)(B, S, D)), 'wqkv': _w((lambda *s: torch.randn(*s, dtype=torch.bfloat16) * 0.8)(D, 3 * D)), 'wo': _w((lambda *s: torch.randn(*s, dtype=torch.bfloat16) * 0.05)(D, D))}
    _B_in = _B_setup()
    return {'A_x': _A_in['x'], 'A_mem0': _A_in['mem0'], 'A_Wq': _A_in['Wq'], 'A_Wk': _A_in['Wk'], 'A_Wv': _A_in['Wv'], 'A_Wo': _A_in['Wo'], 'A_seg_len': _A_in['seg_len'], 'B_x': _B_in['x'], 'B_wqkv': _B_in['wqkv'], 'B_wo': _B_in['wo'], 'gate_w': _w((lambda *s: torch.randn(*s, dtype=torch.bfloat16) * 0.05)(512) * 16.0)}

def reference(A_x, A_mem0, A_Wq, A_Wk, A_Wv, A_Wo, A_seg_len, B_x, B_wqkv, B_wo, gate_w):

    def _A_ref(x, mem0, Wq, Wk, Wv, Wo, seg_len):
        B, S, Dm = x.shape
        H, Dh = (Wq.shape[1], Wq.shape[2])
        M = mem0.shape[1]
        scale = Dh ** (-0.5)
        n_seg = S // seg_len
        L = M + seg_len
        idx = torch.arange(L)
        mask = (idx[:, None] < M) | (idx[:, None] >= idx[None, :])
        mem = mem0
        outs = []
        for s in range(n_seg):
            xs = x[:, s * seg_len:(s + 1) * seg_len, :].clone()
            h = torch.concatenate([mem, xs], axis=1)
            q = torch.einsum('btd,dhe->bhte', h, Wq)
            k = torch.einsum('btd,dhe->bhte', h, Wk)
            v = torch.einsum('btd,dhe->bhte', h, Wv)
            scores = torch.einsum('bhqe,bhke->bhqk', q, k) * scale
            scores = torch.where(mask[None, None], scores, -1000000000.0)
            p = _softmax(scores, axis=-1)
            o = torch.einsum('bhqk,bhke->bhqe', p, v)
            o = torch.einsum('bhte,hed->btd', o, Wo)
            mem = o[:, :M, :].clone()
            outs.append(o[:, M:, :])
        return torch.concatenate(outs, axis=1)

    def _B_ref(x, wqkv, wo):
        B, S, D = x.shape
        H = 32
        Dh = D // H
        W, dil = (8, 2)
        qkv = (lambda x, *d: x.permute(*d))((x @ wqkv).reshape(B, S, 3, H, Dh), 2, 0, 3, 1, 4)
        q, k, v = (qkv[0], qkv[1], qkv[2])
        scale = Dh ** (-0.5)
        pos = torch.arange(S)
        off = torch.arange(W) * dil
        idx = pos[:, None] - off[None, :]
        mask = idx >= 0
        idx_c = torch.where(mask, idx, 0).reshape(-1)
        kg = k[:, :, idx_c, :].reshape(B, H, S, W, Dh)
        vg = v[:, :, idx_c, :].reshape(B, H, S, W, Dh)
        logits = torch.einsum('bhsd,bhswd->bhsw', q, kg) * scale
        logits = torch.where(mask[None, None, :, :], logits, -1000000000.0)
        attn = _softmax(logits, axis=-1)
        o = torch.einsum('bhsw,bhswd->bhsd', attn, vg)
        return (lambda x, *d: x.permute(*d))(o, 0, 2, 1, 3).reshape(B, S, D) @ wo
    x = A_x
    g = _sigmoid((x * gate_w).sum(-1, keepdims=True))
    a = _A_ref(x, A_mem0, A_Wq, A_Wk, A_Wv, A_Wo, A_seg_len)
    b = _B_ref(x, B_wqkv, B_wo)
    return g * a + (1 - g) * b
```

```python
import re

REG_RE = re.compile(r'^(-|\|)?([vas])(?:(\d+)|\[(\d+):(\d+)\])\|?$')

def parse_reg(tok):
    tok = tok.strip()
    if tok.startswith('abs(') and tok.endswith(')'):
        tok = tok[4:-1]
    if tok in ('vcc',):
        return {('s', 106), ('s', 107)}
    if tok == 'vcc_lo': return {('s', 106)}
    if tok == 'vcc_hi': return {('s', 107)}
    if tok == 'exec': return {('s', 126), ('s', 127)}
    if tok == 'exec_lo': return {('s', 126)}
    if tok == 'exec_hi': return {('s', 127)}
    if tok == 'm0': return {('s', 124)}
    m = REG_RE.match(tok)
    if not m:
        return set()
    k = m.group(2)
    if m.group(3) is not None:
        return {(k, int(m.group(3)))}
    return {(k, i) for i in range(int(m.group(4)), int(m.group(5)) + 1)}

TRANS = ('v_exp_', 'v_log_', 'v_rcp_', 'v_rsq_', 'v_sqrt_', 'v_sin_', 'v_cos_')
VCC = {('s', 106), ('s', 107)}
EXEC = {('s', 126), ('s', 127)}
M0 = {('s', 124)}

class Ins:
    __slots__ = ('text', 'op', 'kind', 'defs', 'uses', 'srcc', 'srcab', 'passes', 'label', 'target',
                 'dpp', 'states', 'wide_store_data', 'lds_dma', 'store_data', 'note')
    def __init__(self, text):
        self.text = text
        self.label = None; self.target = None
        self.defs = set(); self.uses = set(); self.srcc = set(); self.srcab = set()
        self.passes = 0; self.dpp = False; self.states = 1
        self.wide_store_data = set(); self.lds_dma = False; self.note = None
        t = text.split(';')[0].strip()
        if not t or t.startswith('.') and not t.endswith(':'):
            self.kind = 'dir'; self.op = t; self.states = 0; return
        if t.endswith(':'):
            self.kind = 'label'; self.label = t[:-1]; self.op = ''; self.states = 0; return
        parts = t.split(None, 1)
        op = parts[0]; self.op = op
        rest = parts[1] if len(parts) > 1 else ''
        ops = [o.strip() for o in re.split(r',(?![^\[]*\])', rest)] if rest else []
        mods = []
        if ops:
            last = ops[-1].split()
            if op.startswith('s_waitcnt') or op.startswith('s_getreg') or op.startswith('s_setreg'):
                pass
            else:
                ops[-1] = last[0] if last else ''
                mods = last[1:]
        R = [parse_reg(o) for o in ops]
        allm = ' '.join(mods)
        if op.startswith('v_mfma') or op.startswith('v_smfmac'):
            self.kind = 'mfma'
            self.passes = 8 if '32x32' in op else 4
            if '_f32_16x16x4_f32' in op or '32x32x2_f32' in op: raise ValueError('sgemm not modelled')
            self.defs = set(R[0])
            if op.startswith('v_smfmac'):
                self.srcc = set(R[0]); self.srcab = R[1] | R[2] | R[3]
            else:
                self.srcc = set(R[3]); self.srcab = R[1] | R[2]
            self.uses = self.srcc | self.srcab | EXEC
        elif op.startswith('v_'):
            self.kind = 'valu'
            self.dpp = ('_dpp' in op) or ('row_' in allm) or ('quad_perm' in allm) or ('wave_' in allm)
            if op.startswith('v_permlane') and 'swap' in op:
                self.defs = R[0] | R[1]; self.uses = R[0] | R[1]
            elif op.startswith('v_cmp'):
                self.defs = set(R[0]); self.uses = set().union(*R[1:])
                if op.startswith('v_cmpx'): raise ValueError('cmpx not modelled')
            elif op.startswith(('v_add_co', 'v_sub_co', 'v_addc_co', 'v_subb_co', 'v_subrev_co')):
                self.defs = R[0] | R[1]; self.uses = set().union(*R[2:])
            else:
                self.defs = set(R[0]); self.uses = set().union(*R[1:]) if len(R) > 1 else set()
                if op.startswith(('v_fmac', 'v_dot2c', 'v_pk_fmac', 'v_writelane')) or self.dpp:
                    self.uses |= R[0]
            self.uses |= EXEC
        elif op.startswith('ds_'):
            self.kind = 'ds'
            if op.startswith(('ds_read', 'ds_bpermute', 'ds_permute', 'ds_swizzle')) or '_rtn' in op:
                self.defs = set(R[0]); self.uses = set().union(*R[1:])
            else:
                self.uses = set().union(*R)
            self.uses |= EXEC
        elif op.startswith(('buffer_', 'global_')):
            self.kind = 'vmem'
            if op in ('buffer_inv', 'buffer_wbl2'):
                pass
            elif 'load' in op:
                if 'lds' in mods or '_lds_' in op:
                    self.lds_dma = True; self.uses = set().union(*R) | M0
                else:
                    self.defs = set(R[0]); self.uses = set().union(*R[1:])
            elif 'atomic' in op:
                self.uses = set().union(*R)
                if 'sc0' in mods:
                    self.defs = set(R[0])
            else:
                self.uses = set().union(*R)
                if 'x3' in op or 'x4' in op:
                    self.wide_store_data = set(R[0]) if op.startswith('buffer') else set(R[1])
            self.uses |= EXEC
        elif op.startswith('s_'):
            self.kind = 'salu'
            if op == 's_nop':
                self.states = int(ops[0], 0) + 1
            elif op in ('s_branch',) or op.startswith('s_cbranch'):
                self.kind = 'branch'; self.target = ops[0]
                if 'vcc' in op: self.uses = set(VCC)
                if 'exec' in op: self.uses = set(EXEC)
            elif op in ('s_endpgm',):
                self.kind = 'end'
            elif op.startswith(('s_waitcnt', 's_barrier', 's_sleep', 's_setprio', 's_cmp', 's_bitcmp')):
                self.uses = set().union(*R) if R else set()
            elif op.startswith(('s_load', 's_buffer_load', 's_memtime', 's_memrealtime')):
                self.kind = 'smem'; self.defs = set(R[0]); self.uses = set().union(*R[1:]) if len(R) > 1 else set()
            else:
                self.defs = set(R[0]) if R else set()
                self.uses = set().union(*R[1:]) if len(R) > 1 else set()
                if 'saveexec' in op: self.defs |= EXEC; self.uses |= EXEC
                if op.startswith(('s_addk', 's_mulk', 's_cmov', 's_bitset')): self.uses |= R[0]
        else:
            raise ValueError('unknown op: ' + text)

def vregs(s):
    return {r for r in s if r[0] in 'va'}
def sregs(s):
    return {r for r in s if r[0] == 's'}

def required(p, c):
    need = 0
    if p.kind == 'valu':
        pv = vregs(p.defs); ps = sregs(p.defs)
        if c.kind == 'mfma' and (pv & (c.srcab | c.srcc)): need = max(need, 2)
        if c.kind == 'valu':
            if c.dpp and (pv & c.uses): need = max(need, 2)
            if c.op.startswith('v_permlane') and (pv & c.uses): need = max(need, 2)
            if c.op.startswith(('v_readlane', 'v_readfirstlane')) and (pv & c.uses): need = max(need, 1)
            if p.op.startswith(TRANS) and not c.op.startswith(TRANS) and (pv & c.uses): need = max(need, 1)
            if (ps - EXEC) & c.uses:
                need = max(need, 4 if c.op.startswith(('v_readlane', 'v_writelane')) else 2)
            if ('sdwa' in p.op or 'op_sel' in p.text and not p.op.startswith('v_pk')) and (pv & (c.uses | c.defs)): need = max(need, 1)
        if p.op.startswith(TRANS) and c.kind in ('mfma', 'ds', 'vmem') and (pv & c.uses): need = max(need, 2 if c.kind == 'mfma' else 1)
        if c.kind in ('vmem',) and (ps & c.uses): need = max(need, 5)
        if c.kind in ('salu', 'smem') and (ps & c.uses): need = max(need, 1)
    if p.kind == 'mfma':
        P = p.passes
        if c.kind == 'mfma':
            if p.defs & c.srcab: need = max(need, {4: 8, 8: 12}[P])
            if p.defs & c.srcc:
                if not (p.defs == c.srcc and p.passes == c.passes): need = max(need, {4: 6, 8: 10}[P])
            elif (p.defs & c.defs) and p.passes != c.passes:
                need = max(need, {4: 6, 8: 10}[P])
        elif c.kind in ('valu', 'ds', 'vmem'):
            if p.defs & (c.uses | c.defs): need = max(need, {4: 8, 8: 12}[P])
            if c.kind == 'valu' and (p.srcc & c.defs): need = max(need, {4: 3, 8: 7}[P])
    if p.kind == 'salu' and (p.defs & M0) and c.kind == 'vmem' and c.lds_dma: need = max(need, 1)
    if p.kind == 'vmem' and p.wide_store_data and (p.wide_store_data & c.defs):
        need = max(need, 2 if c.kind in ('valu', 'mfma') else 1)
    return need

class Asm:
    def __init__(self):
        self.ins = []
        self.lq = []
        self.vq = []
        self.auto_vm = True
        self.auto_lgkm = True
        self.uid = 0
        self.hot = False
        self.dummy = 'v_mov_b32 v27, 0'
    def newlabel(self, base):
        self.uid += 1
        return f'L_{base}_{self.uid}'
    def raw(self, text):
        self.ins.append(Ins(text))
    def _autowait(self, I):
        touched = I.uses | I.defs
        need_l = None; need_v = None
        if self.auto_lgkm:
            for i, d in enumerate(self.lq):
                if d and (d & touched): need_l = len(self.lq) - 1 - i
        if self.auto_vm:
            for i, d in enumerate(self.vq):
                if d and (d & touched): need_v = len(self.vq) - 1 - i
        if need_l is not None or need_v is not None:
            self.wait(vm=need_v, lgkm=need_l)
    def wait(self, vm=None, lgkm=None):
        s = []
        if vm is not None:
            vm = min(vm, 63); s.append(f'vmcnt({vm})')
            self.vq = self.vq[len(self.vq) - vm:] if vm < len(self.vq) else self.vq
            if vm == 0: self.vq = []
        if lgkm is not None:
            lgkm = min(lgkm, 15); s.append(f'lgkmcnt({lgkm})')
            self.lq = self.lq[len(self.lq) - lgkm:] if lgkm < len(self.lq) else self.lq
            if lgkm == 0: self.lq = []
        if s: self.raw('    s_waitcnt ' + ' '.join(s))
    def wait_lds_writes(self):
        idx = [i for i, d in enumerate(self.lq) if not d]
        if idx: self.wait(lgkm=len(self.lq) - 1 - idx[-1])
    def __call__(self, text):
        for line in text.split('\n'):
            if not line.strip(): continue
            if self.hot and getattr(self, 'filt', None):
                line = self.filt(line)
                if not line: continue
            I = Ins('    ' + line.strip() if not line.strip().endswith(':') else line.strip())
            if I.kind in ('label', 'branch', 'end'):
                pass
            elif I.kind != 'dir':
                self._autowait(I)
            I.note = 'hot' if self.hot else None
            self.ins.append(I)
            if I.kind == 'ds': self.lq.append(set(I.defs) or None)
            if I.kind == 'vmem' and I.op not in ('buffer_inv', 'buffer_wbl2'): self.vq.append(set(I.defs) or None)
            if I.kind == 'smem': self.smem_pending = True
    def label(self, name):
        self(name + ':')
    def forget(self, vm=True, lgkm=True):
        if vm: self.vq = []
        if lgkm: self.lq = []
    def comment(self, s):
        self.ins.append(Ins('; ' + s))
    def pad_hazards(self, maxdist=14):
        ins = self.ins
        nins = 0
        i = 0
        while i < len(ins):
            c = ins[i]
            if c.kind in ('valu', 'mfma', 'ds', 'vmem', 'salu', 'smem'):
                labels = None
                deficit = self._deficit(i, c, maxdist)
                if deficit > 0:
                    n = deficit
                    pads = []
                    while n > 0:
                        if getattr(c, 'note', None) == 'hot' and n > 2:
                            pads.append(Ins('    s_nop 1')); pads.append(Ins('    ' + self.dummy)); n -= 3
                        else:
                            k = min(n, 16); pads.append(Ins(f'    s_nop {k-1}')); n -= k
                    ins[i:i] = pads
                    self._idx = None
                    i += len(pads); nins += deficit
            i += 1
        return nins
    def _branches_to(self):
        d = {}
        for j, x in enumerate(self.ins):
            if x.kind == 'branch': d.setdefault(x.target, []).append(j)
        return d
    def _deficit(self, i, c, maxdist):
        if getattr(self, '_idx', None) is None: self._idx = self._branches_to()
        br = self._idx
        worst = 0
        stack = [(i - 1, 0)]
        seen = {}
        while stack:
            j, dist = stack.pop()
            while j >= 0 and dist < maxdist:
                if seen.get(j, 99) <= dist: break
                seen[j] = dist
                p = self.ins[j]
                if p.kind == 'label':
                    for b in br.get(p.label, []):
                        stack.append((b, dist))
                    k = j - 1
                    while k >= 0 and self.ins[k].kind in ('dir',): k -= 1
                    if k >= 0 and (self.ins[k].kind == 'end' or self.ins[k].op == 's_branch'): break
                    j -= 1; continue
                if p.kind != 'dir':
                    r = required(p, c)
                    if r > dist: worst = max(worst, r - dist)
                    dist += p.states
                j -= 1
        return worst
    def text(self):
        return '\n'.join(x.text for x in self.ins) + '\n'
```

```python
def vr(b, n=1):
    return f'v{b}' if n == 1 else f'v[{b}:{b+n-1}]'
def ar(b, n=1):
    return f'a{b}' if n == 1 else f'a[{b}:{b+n-1}]'
WS = 's[4:7]'; SA = 's[8:11]'; ST = 's[12:15]'
S_TEAM, S_RANK, S_W = 's16', 's17', 's18'
P_X, P_MEM0, P_WQ, P_WK, P_WV, P_WO = 32, 34, 36, 38, 40, 42
P_WQKV, P_WOB, P_GATE, P_OUT, P_DBG, P_WS = 48, 50, 52, 54, 56, 58
SPIN = 's60'
def set_srd(a, srd0, ptr, nbytes):
    a(f's_mov_b32 s{srd0}, s{ptr}\ns_mov_b32 s{srd0+1}, s{ptr+1}\ns_mov_b32 s{srd0+2}, {hex(nbytes)}\ns_mov_b32 s{srd0+3}, 0x20000')
```

```python
import numpy as np
MB = 1 << 20
REC = 0
KVM = 48 * MB
OB = 64 * MB
GATE = 66 * MB
FLG = 67 * MB
F_KV = FLG
F_M = FLG + 131072
F_P = FLG + 262144
F_OB = FLG + 393216
RIN = 68 * MB
RMEM = RIN + 524288
DBG = 70 * MB
FP = 72 * MB
WS_BYTES = 256 * MB
OOB = 0x40000000

L_MEMX = 131072
L_XR = 139264
L_WOS = 147456
LDS_BYTES = 163840

def bf16_bits(x):
    return int(np.array([x], dtype=np.float32).view(np.uint32)[0] >> 16)
ONE = bf16_bits(1.0)
def pk(lo, hi):
    return (ONE if lo else 0) | ((ONE if hi else 0) << 16)

def rowof(n): return 2 * (n // 4) + n % 2
def r_table():
    T = {}
    def add(name, f):
        T[name] = [f(t >> 6, (t & 63) >> 4, t & 15, t & 63) & 0xFFFFFFFF for t in range(256)]
    add('l16', lambda w, g, c, l: l * 16)
    add('ist', lambda w, g, c, l: ((8 * w + c // 4) * 4 + g) * 2048 + (c % 4) * 16)
    add('pub', lambda w, g, c, l: (w * 64 + (c // 4) * 512 + ((c % 4) // 2) * 16 + g * 4) if (c < 8 and c % 2 == 0) else OOB)
    for x in range(4):
        add(f'x{x}', lambda w, g, c, l, x=x: L_MEMX + l * 16 + (x ^ w) * 2048)
    add('f', lambda w, g, c, l: L_XR + l * 16)
    add('smw', lambda w, g, c, l: L_XR + 1024 + l * 16 + 4 * w)
    add('ow', lambda w, g, c, l: L_XR + 3072 + (w // 2) * 2048 + l * 16 + (w % 2) * 8)
    add('wv', lambda w, g, c, l: w * 32768 + l * 16)
    add('one', lambda w, g, c, l: 0 if l == 0 else OOB)
    add('idx', lambda w, g, c, l: 0x44444444 if c % 4 < 2 else 0xEEEEEEEE)
    add('mm', lambda w, g, c, l: 0x0000FFFF if c % 4 < 2 else 0xFFFF0000)
    add('trq', lambda w, g, c, l: w * 32768 + (8 * (g // 2) + 2 * (g % 2) + [0, 16, 4, 20][c // 4]) * 64 + (c % 4) * 8)
    add('tro', lambda w, g, c, l: w * 32768 + (32 * (g % 2) + 4 * (g // 2) + [0, 1, 16, 17][c // 4]) * 64 + (c % 4) * 8)
    def jmap(n):
        n %= 8
        return 2 * (2 * (n // 4) + n % 2) + (n % 4) // 2
    for r in range(4):
        add(f'selr{r}', lambda w, g, c, l, r=r: pk(2 * r == jmap(c), 2 * r + 1 == jmap(c)))
    def selv(g, m, i):
        gam, io = m // 4, m % 4
        tile = io // 2; row = gam + (4 if io % 2 else 0)
        return (i // 2 == tile) and (2 * g + i % 2 == row)
    for r in range(2):
        add(f'selv{r}', lambda w, g, c, l, r=r: pk(selv(g, c, 2 * r), selv(g, c, 2 * r + 1)))
    add('selq', lambda w, g, c, l: pk(2 * g == rowof(c), 2 * g + 1 == rowof(c)))
    def sig(n): return n // 4 if n % 4 == 0 else (4 + n // 4 if n % 4 == 1 else -1)
    add('selk', lambda w, g, c, l: pk(2 * g == sig(c), 2 * g + 1 == sig(c)))
    add('m0a', lambda w, g, c, l: ((2 * w + (c % 4) // 2) * 1024 + 2 * (32 * (c // 4) + g)) if (c < 8 and c % 2 == 0) else OOB)
    while len(T) < 28: add(f'pad{len(T)}', lambda w, g, c, l: 0)
    return T

def w_table():
    T = {}
    def add(name, f):
        T[name] = [f(t >> 6, (t & 63) >> 4, t & 15, t & 63) & 0xFFFFFFFF for t in range(256)]
    add('l16', lambda w, g, c, l: l * 16)
    add('one', lambda w, g, c, l: 0 if l == 0 else OOB)
    add('trp', lambda w, g, c, l: 32768 + w * 32768 + (8 * g + c // 4) * 64 + (c % 4) * 8)
    add('xg', lambda w, g, c, l: c * 1024 + g * 16)
    half = lambda c: 0xFFFF0000 if c % 2 else 0x0000FFFF
    for j in range(2):
        add(f'mc{j}', lambda w, g, c, l, j=j: half(c) if 4 * g + c % 2 + 2 * j <= c else 0)
    for j in range(2):
        add(f'mp{j}', lambda w, g, c, l, j=j: 0 if 4 * g + c % 2 + 2 * j <= c else half(c))
    add('c4', lambda w, g, c, l: c * 4)
    add('l8', lambda w, g, c, l: l * 8)
    add('trf', lambda w, g, c, l: w * 36864 + (4 * g + c // 4) * 64 + (c % 4) * 16)
    add('dma1k', lambda w, g, c, l: (l // 4) * 1024 + (l % 4) * 16 + w * 256)
    add('fpst', lambda w, g, c, l: c * 32768 + w * 256 + g * 16)
    add('fpld', lambda w, g, c, l: g * 1024 + w * 256 + c * 16)
    add('outst', lambda w, g, c, l: (w * 256 + c * 16 + g * 8) if g < 2 else OOB)
    add('pfl', lambda w, g, c, l: (l % 32) * 64 + w * 4)
    for r in range(4):
        add(f'self{r}', lambda w, g, c, l, r=r: pk(2 * r == c, 2 * r + 1 == c))
    add('oxw', lambda w, g, c, l: 147456 + (w // 2) * 4096 + (w % 2) * 2048 + l * 16)
    add('oxr', lambda w, g, c, l: 147456 + l * 16)
    add('qrow', lambda w, g, c, l: 16 * (w // 2) + c - 4 * g)
    add('pad', lambda w, g, c, l: 0)
    assert len(T) == 24
    return T

def table_text(label, T):
    names = list(T.keys())
    out = [f'.p2align 8', f'{label}:']
    for t in range(256):
        out.append('.long ' + ','.join(hex(T[n][t]) for n in names))
    return '\n'.join(out) + '\n'
```

```python
import layout as L
from gen_common import *

V_L16, V_IST, V_PUB, V_X0, V_F, V_SMW, V_OW, V_WV = 1, 2, 3, 4, 8, 9, 10, 11
KMH, VMH = 12, 16
V_IDX, V_MM = 18, 19
SELR, SELV, V_ONE, V_DUM, SELQ, SELK = 20, 24, 26, 27, 28, 128
V_Z = 29
VXC, VXN, KX = 32, 40, 48
WVB = 56
AQ, AK, AV = 72, 80, 88
M = 96
T = 132
WO0 = 144
V_FLAG = 0
SC = 128 ** -0.5 * 1.4426950408889634
import struct
def f2u(x): return struct.unpack('<I', struct.pack('<f', x))[0]

WO_SPILL = [(0, 0), (2, 0)]
def wo_frag(t, kb):
    order = [(t_, k_) for t_ in range(8) for k_ in range(2) if (t_, k_) not in WO_SPILL]
    return WO0 + 8 * order.index((t, kb))

LDSF = [('q', 0, 0), ('q', 0, 1), ('q', 1, 0), ('q', 1, 1), ('k', 0, 0)] + [('k', k, 1) for k in range(2, 8)] + [('k', 7, 0)] + [('v', k, p) for k in (6, 7) for p in range(2)]
AGF = [(m, k, p) for m in 'qkv' for k in range(8) for p in range(2) if (m, k, p) not in LDSF]
assert len(LDSF) == 16 and len(AGF) == 32
S_S = 's61'
S_MEMP = 's62'
S_PUBB = 's63'
S_IN0, S_IN1 = 's64', 's65'
S_INP = 's66'
S_REC = 's67'
S_FKV = 's68'
S_KVM, S_FM = 's69', 's70'
S_RST = 's71'
S_LO = 's[72:73]'
S_SC = 's74'
S_T0, S_T1 = 's75', 's76'
S_FAST = 's77'
S_TAG, S_NTAG = 's78', 's79'

class RRole:
    def smf(self, acc, A, B):
        self.a(f'v_smfmac_f32_16x16x64_bf16 {vr(acc,4)}, {vr(A,4)}, {B}, v{V_IDX}')

    def r_role(self):
        a = self.a; o = self.o
        a('L_R:')
        a.vq = list(self.vq_role)
        VD8, VD1, VTQ, VTO = 28, 29, 30, 31
        a(f'''
        v_and_b32 v1, 63, v0
        v_lshrrev_b32 v2, 2, v1
        v_and_b32 v3, 3, v1
        v_lshlrev_b32 v3, 4, v3
        s_lshl_b32 s21, {S_W}, 6
        v_lshl_add_u32 v{VD8}, v2, 13, v3
        v_add_u32 v{VD8}, s21, v{VD8}
        s_lshl_b32 s21, {S_W}, 8
        v_lshl_add_u32 v{VD1}, v2, 10, v3
        v_add_u32 v{VD1}, s21, v{VD1}
        s_lshl_b32 s78, {S_W}, 15
        s_lshl_b32 s79, {S_W}, 1
        ''')
        chunks = [('o', k) for k in range(8)] + [('q', k) for k in range(8)] + [('k', k) for k in range(8)] + [('v', k) for k in range(8)]
        cur = [None]
        def issue(ci):
            mat, k = chunks[ci]
            if cur[0] != mat:
                set_srd(a, 8, {'q': P_WQ, 'k': P_WK, 'v': P_WV, 'o': P_WO}[mat], 4 << 20)
                cur[0] = mat
            a(f's_add_u32 m0, s78, {(ci % 8) * 4096}')
            if mat != 'o':
                a(f's_xor_b32 s21, s79, {k}\ns_lshl_b32 s21, s21, 19\ns_lshl_b32 s22, {S_RANK}, 8\ns_add_u32 s21, s21, s22')
                self.dma_chunk(f'v{VD8}', 's21', 8192)
            else:
                kb, grp = k % 2, k // 2
                a(f's_lshl_b32 s21, {S_RANK}, 17\ns_add_u32 s21, s21, {kb * 65536 + grp * 64}')
                self.dma_chunk(f'v{VD1}', 's21', 1024)
        self.load_table('T_R', 96, 28, 7)
        for ci in range(8): issue(ci)
        self.gate_and_store()
        names = list(L.r_table().keys())
        def tv(n): return 96 + names.index(n)
        a(f'v_mov_b32 v{VTQ}, v{tv("trq")}\nv_mov_b32 v{VTO}, v{tv("tro")}')
        a.auto_vm = False
        TMP = 56
        park = {}
        parkregs = [32, 40, 48, 64, 72, 80, 88, 124, 132, 8]
        for f in LDSF:
            if f[0] == 'k': park[f] = parkregs.pop(0)
        for f in LDSF:
            if f[0] == 'q':
                park[f] = parkregs.pop(0) if parkregs else -8 * AGF.index(('v', 4, f[2])) - 1
            if f[0] == 'v': park[f] = TMP if f[2] == 0 else 32
        freeslot = []
        todo = []
        self.ldsf_off = {}
        def flush_park():
            while todo and freeslot:
                f, r = todo.pop(0); off = freeslot.pop(0)
                self.ldsf_off[f] = off
                for hh in range(2):
                    src = vr(r + 4 * hh, 4) if r >= 0 else ar(-r - 1 + 4 * hh, 4)
                    a(f'ds_write_b128 v{tv("wv")}, {src} offset:{off + 1024 * hh}')
        for ci in range(32):
            mat, k = chunks[ci]
            younger = 4 * (min(ci + 7, 31) - ci)
            if ci < 8: younger += 1
            a.wait(vm=min(younger, 63))
            so = (ci % 8) * 4096
            dsts = []
            if mat == 'o':
                kb, grp = k % 2, k // 2
                for p in range(2):
                    t = 2 * grp + p
                    dsts.append(vr if True else None)
                    dsts[-1] = (vr, TMP if (t, kb) in WO_SPILL else wo_frag(t, kb))
                offs = [0, 128, 512, 640]; ad = VTO
            else:
                offs = [0, 64, 2048, 2112]; ad = VTQ
                for p in range(2):
                    f = (mat, k, p)
                    if f in AGF: dsts.append((ar, 8 * AGF.index(f)))
                    elif park[f] < 0: dsts.append((ar, -park[f] - 1)); todo.insert(0, (f, park[f]))
                    else: dsts.append((vr, park[f])); todo.append((f, park[f]))
            for p in range(2):
                rf, d = dsts[p]
                for r in range(4):
                    a(f'ds_read_b64_tr_b16 {rf(d + 2 * r, 2)}, v{ad} offset:{so + offs[r] + 32 * p}')
            a.wait(lgkm=0)
            if mat == 'o' and (2 * (k // 2), k % 2) in WO_SPILL:
                i = WO_SPILL.index((2 * (k // 2), k % 2))
                for hh in range(2):
                    a(f'ds_write_b128 v{tv("x0")}, {vr(TMP + 4 * hh, 4)} offset:{16384 + 8192 * i + 1024 * hh}')
            if ci + 8 < 32: issue(ci + 8)
            else:
                freeslot += [so, so + 2048]
                flush_park()
            if ci == 9: self.signal_init()
        assert not todo and len(self.ldsf_off) == 16
        a.wait(lgkm=0)
        a.auto_vm = True; a.forget()
        for n, d in [('l16', V_L16), ('ist', V_IST), ('pub', V_PUB), ('x0', V_X0), ('x1', V_X0 + 1), ('x2', V_X0 + 2), ('x3', V_X0 + 3),
                     ('f', V_F), ('smw', V_SMW), ('ow', V_OW), ('wv', V_WV), ('idx', V_IDX), ('mm', V_MM), ('one', V_ONE)] + \
                    [(f'selr{i}', SELR + i) for i in range(4)] + [(f'selv{i}', SELV + i) for i in range(2)] + \
                    [('selq', SELQ), ('selq', SELQ + 3), ('selk', SELK), ('selk', SELK + 3)]:
            a(f'v_mov_b32 v{d}, v{tv(n)}')
        for d in (SELQ + 1, SELQ + 2, SELK + 1, SELK + 2): a(f'v_mov_b32 v{d}, 0')
        a(f'v_mov_b32 v{T}, v{tv("m0a")}')
        self.wait_init(t0=T + 4)
        a(f'''
        s_cmp_ge_u32 s21, 32
        s_cselect_b32 {S_FAST}, 1, 0
        s_mov_b32 s72, 0x33333333
        s_mov_b32 s73, 0x33333333
        s_mov_b32 {S_SC}, {hex(f2u(SC))}
        s_mov_b32 {S_S}, 0
        ''')
        if o.get('force_slow'): a(f's_mov_b32 {S_FAST}, 0')
        set_srd(a, 8, P_MEM0, 8192)
        a(f'''
        s_lshr_b32 s21, {S_RANK}, 2
        s_lshl_b32 {S_PUBB}, s21, 10
        s_lshl_b32 s21, s21, 7
        s_and_b32 s22, {S_RANK}, 3
        s_lshl_b32 s22, s22, 3
        s_add_u32 s21, s21, s22
        buffer_load_ushort v{T+1}, v{T}, {SA}, s21 offen
        buffer_load_ushort v{T+2}, v{T}, {SA}, s21 offen offset:32
        s_and_b32 s22, {S_RANK}, 2
        s_lshl_b32 s22, s22, 7
        s_add_u32 {S_PUBB}, {S_PUBB}, s22
        s_and_b32 s22, {S_RANK}, 1
        s_lshl_b32 s22, s22, 5
        s_add_u32 {S_PUBB}, {S_PUBB}, s22
        s_add_u32 {S_PUBB}, {S_PUBB}, {hex(L.RMEM)}
        v_lshl_or_b32 v{T+1}, v{T+2}, 16, v{T+1}
        buffer_store_dword v{T+1}, v{V_PUB}, {WS}, {S_PUBB} offen sc1
        ''')
        a(f'''
        s_mul_i32 {S_REC}, {S_RANK}, 24576
        s_mul_i32 s21, {S_W}, 6144
        s_add_u32 {S_REC}, {S_REC}, s21
        s_lshl_b32 {S_FKV}, {S_RANK}, 6
        s_lshl_b32 s21, {S_W}, 2
        s_add_u32 {S_FKV}, {S_FKV}, s21
        s_add_u32 {S_FM}, {S_FKV}, {hex(L.F_M - 4096)}
        s_add_u32 {S_FKV}, {S_FKV}, {hex(L.F_KV)}
        s_lshl_b32 {S_KVM}, {S_RANK}, 13
        s_lshl_b32 s21, {S_W}, 11
        s_add_u32 {S_KVM}, {S_KVM}, s21
        s_add_u32 {S_KVM}, {S_KVM}, {hex(L.KVM - 262144)}
        v_mov_b32 v{T+8}, 0
        ''')
        self.spin_flag(V_FLAG, f'v{V_Z}', S_FKV)
        for i in range(2):
            a(f'buffer_load_dwordx4 {vr(KX+4*i,4)}, v{V_L16}, {WS}, {S_REC} offen offset:{1024*i} sc1')
            a(f'buffer_load_dwordx4 {vr(VXN+4*i,4)}, v{V_L16}, {WS}, {S_REC} offen offset:{2048+1024*i} sc1')
        a(f's_add_u32 {S_FKV}, {S_FKV}, 2048')
        self.spin_flag(V_FLAG, f'v{V_Z}', S_FKV)
        for r in range(M, M + 8, 2): a(f'v_mov_b64 {vr(r,2)}, -1')
        a(f'''
        s_lshl_b32 {S_T0}, {S_W}, 11
        s_add_u32 {S_MEMP}, {S_T0}, {hex(L.RMEM)}
        s_lshl_b32 {S_IN0}, {S_RANK}, 6
        s_add_u32 {S_IN0}, {S_IN0}, {hex(L.RIN)}
        s_lshl_b32 {S_INP}, {S_RANK}, 13
        s_add_u32 {S_INP}, {S_INP}, {S_T0}
        s_add_u32 {S_INP}, {S_INP}, {hex(L.RIN)}
        ''')
        if o.get('stamp'):
            a('s_memtime s[80:81]\ns_memrealtime s[28:29]'); a.wait(lgkm=0)
        a(f's_cmp_eq_u32 {S_FAST}, 0\ns_cbranch_scc1 L_R_slow')
        self.r_loop('f', '')
        a('L_R_slow:')
        self.r_loop('s', 'sc1')

    def spin_flag(self, dst, voff, soff):
        a = self.a
        lab = a.newlabel('sf'); ok = a.newlabel('sfok')
        sv = a.auto_vm; a.auto_vm = False
        a(f'''
        s_mov_b32 s23, {SPIN}
        {lab}:
        buffer_load_dword v{dst}, {voff}, {WS}, {soff} offen sc1
        s_waitcnt vmcnt(0)
        v_cmp_ne_u32 vcc, 0, v{dst}
        s_cbranch_vccnz {ok}
        s_sleep 2
        s_sub_u32 s23, s23, 1
        s_cbranch_scc0 {lab}
        s_mov_b32 {SPIN}, 0x400
        {ok}:
        ''')
        a.auto_vm = sv; a.vq = []

    def poll(self, tag, dst, voff, soff, pre, check, shadow, nchk):
        a = self.a
        lab = f'L_poll_{tag}'; ok = f'L_pok_{tag}'
        def issue():
            a(f'buffer_load_dwordx4 {vr(dst,4)}, v{voff}, {WS}, {soff} offen sc1')
            a(f'buffer_load_dwordx4 {vr(dst+4,4)}, v{voff}, {WS}, {soff} offen offset:1024 sc1')
        pre()
        a(f's_mov_b32 s23, {SPIN}')
        a(f'{lab}:')
        issue()
        for r in range(nchk - 1):
            check(); shadow()
            a(f's_cbranch_vccz {ok}')
        a(f's_sub_u32 s23, s23, 1\ns_cbranch_scc1 L_pto_{tag}')
        check(); shadow()
        a(f's_cbranch_vccnz {lab}\n{ok}:')
        self.late.append(f'L_pto_{tag}:\ns_mov_b32 {SPIN}, 0x400\ns_waitcnt vmcnt(0)\n@SH@s_branch {ok}')
        self.late_sh.append(shadow)

    def stamp(self, i):
        if self.o.get('stamp') and (self.o.get('smask', 0x3ff) >> i) & 1: self.a.raw(f'    s_memtime s[{82+2*i}:{83+2*i}]')

    def dump_stamps(self, tg):
        a = self.a
        if not self.o.get('stamp'): return
        lab = f'L_nodump_{tg}'
        a(f's_cmp_lg_u32 {S_S}, 41\ns_cbranch_scc1 {lab}\ns_waitcnt lgkmcnt(0)')
        a(f's_lshl_b32 {S_T0}, {S_RANK}, 8\ns_lshl_b32 {S_T1}, {S_W}, 6\ns_add_u32 {S_T0}, {S_T0}, {S_T1}\ns_add_u32 {S_T0}, {S_T0}, {hex(L.DBG)}')
        a(f'v_mov_b32 v{T+10}, 0')
        for i in range(10):
            a(f'v_mov_b32 v{T+11}, s{82+2*i}\nbuffer_store_dword v{T+11}, v{T+10}, {WS}, {S_T0} offen offset:{4*i}')
        a(f's_waitcnt vmcnt(0)\n{lab}:')

    def r_loop(self, tg, cf):
        a = self.a; o = self.o
        mf16 = 'v_mfma_f32_16x16x16_bf16'; mf32 = 'v_mfma_f32_16x16x32_bf16'
        cvt = 'v_cvt_pk_bf16_f32'
        QP = 'quad_perm:[2,3,0,1] row_mask:0xf bank_mask:0xf'
        dum = lambda n=1: [a(a.dummy) for _ in range(n)]
        self.late = []; self.late_sh = []
        a.auto_vm = False
        B0, B1, B2 = WVB, WVB + 8, M
        ACC = {'q': AQ, 'k': AK, 'v': AV}
        def S(m, k, p, buf=None):
            f = (m, k, p)
            self.smf(ACC[m] + 4 * p, M + 4 * k, ar(8 * AGF.index(f), 8) if buf is None else vr(buf, 8))
        def V(k, p, buf=None): S('v', k, p, buf)
        def RD(buf, m, k, p, hh):
            a(f'ds_read_b128 {vr(buf + 4*hh, 4)}, v{V_WV} offset:{self.ldsf_off[(m, k, p)] + hh*1024}')
        def RD2(buf, m, k, p): RD(buf, m, k, p, 0); RD(buf, m, k, p, 1)
        def pkadd(d, x, y): a(f'v_add_f32 v{d}, v{x}, v{y}\nv_add_f32 v{d+1}, v{x+1}, v{y+1}')
        def PK(d, x, y): a(f'v_pk_add_f32 {vr(d,2)}, {vr(x,2)}, {vr(y,2)}')
        def add(d, x, y): a(f'v_add_f32 v{d}, v{x}, v{y}')
        def dmf(r): a(f'{mf16} {vr(r,4)}, {vr(SELQ,2)}, {vr(SELQ,2)}, {vr(r,4)}')
        def filt(line):
            st = 'buffer_store' in line and ('s75' in line or 's76' in line) and 'sc1' in line
            ld = 'buffer_load' in line and ('s67' in line or 's68' in line)
            if o.get('nost') and st: return None
            if o.get('nofst') and st and 's76' in line: return None
            if o.get('nold') and ld: return None
            if o.get('nofld') and ld and 's68' in line: return None
            if o.get('ldplain') and ld and 's67' in line: return line.replace(' sc1', '')
            if o.get('ldnt') and ld and 's67' in line: return line.replace(' sc1', ' nt')
            if o.get('stplain') and st: return line.replace(' sc1', '')
            if o.get('novm') and 'vmcnt' in line: return None
            return line
        PA = M + 8; R = T + 8
        spin = f'L_kvspin_{tg}'; back = f'L_kvback_{tg}'
        def preload():
            RD2(M + 24, 'q', 0, 0); RD2(M + 16, 'q', 0, 1); RD2(B0, 'q', 1, 0); RD2(B1, 'q', 1, 1); RD2(T, 'k', 0, 0)
        def slackB():
            a(f'v_cmp_eq_u32 vcc, 0, v{V_FLAG}')
            for r in range(0, 8, 2): a(f'v_mov_b64 {vr(VXC+r,2)}, {vr(VXN+r,2)}')
            a(f's_xor_b32 {S_INP}, {S_INP}, 0x40000')
            a(f's_cbranch_vccnz {spin}\n{back}:')
            for i in range(o.get('dB', 3)): dmf(PA + 4 * (i % 2))
        def checkB():
            a(f"""
            v_max3_u32 v{R}, v{M}, v{M+1}, v{M+2}
            v_max3_u32 v{R+1}, v{M+3}, v{M+4}, v{M+5}
            v_max3_u32 v{R}, v{R}, v{M+6}, v{M+7}
            v_max_u32 v{R}, v{R}, v{R+1}
            v_cmp_eq_u32 vcc, -1, v{R}
            """)
        def shadowB():
            dmf(PA); a('s_nop 2')
        preload()
        for r in range(AQ, AQ + 24, 2): a(f'v_mov_b64 {vr(r,2)}, 0')
        a(f's_xor_b32 {S_INP}, {S_INP}, 0x40000')
        a.wait(lgkm=0)
        a(f'L_Rloop_{tg}:')
        a.forget()
        a.hot = True
        a.filt = filt
        self.poll('B' + tg, M, V_L16, S_MEMP, slackB, checkB, shadowB, o.get('nB', 3))
        self.stamp(0)
        a(f'ds_write_b128 v{V_X0}, {vr(M,4)}')
        S('q', 0, 0, M + 24)
        a(f'ds_write_b128 v{V_X0}, {vr(M+4,4)} offset:1024')
        S('q', 0, 1, M + 16)
        a(f's_cmp_lt_u32 {S_S}, 63\ns_cselect_b32 {S_T0}, {0 if o.get("nopf") else 32*24576}, 0')
        S('q', 1, 0, B0)
        a(f's_add_u32 {S_REC}, {S_REC}, {S_T0}\ns_cmp_lt_u32 {S_S}, 62')
        S('q', 1, 1, B1)
        a(f's_cselect_b32 {S_T0}, 2048, 0\ns_add_u32 {S_FKV}, {S_FKV}, {S_T0}')
        S('k', 0, 0, T)
        a(f's_cmp_ge_u32 {S_S}, 2\ns_cselect_b32 {S_T1}, {S_FM}, {hex(L.OOB)}')
        S('k', 0, 1)
        a(f's_cmp_ge_u32 {S_S}, 1\ns_cselect_b32 {S_T0}, {S_KVM}, {hex(L.OOB)}')
        S('k', 1, 0)
        a(f's_add_u32 {S_FM}, {S_FM}, 2048\ns_add_u32 {S_KVM}, {S_KVM}, 262144')
        S('k', 1, 1)
        a.wait_lds_writes()
        a('s_barrier')
        def MR(k): a(f'ds_read_b128 {vr(M+4*k,4)}, v{V_X0 + k//2} offset:{1024*(k%2)}')
        MR(2); MR(3)
        V(0, 0); MR(4)
        V(0, 1); MR(5)
        V(1, 0); MR(6)
        V(1, 1); MR(7)
        VXL = lambda i: a(f'buffer_load_dwordx4 {vr(VXN+4*i,4)}, v{V_L16}, {WS}, {S_REC} offen offset:{2048+1024*i} sc1')
        self.stamp(1)
        S('q', 2, 0); RD(B0, 'k', 2, 1, 0)
        S('q', 3, 0); RD(B0, 'k', 2, 1, 1)
        S('q', 4, 0); RD(B1, 'k', 3, 1, 0)
        S('q', 5, 0); RD(B1, 'k', 3, 1, 1)
        S('q', 6, 0); RD(T, 'k', 4, 1, 0)
        S('q', 7, 0); RD(T, 'k', 4, 1, 1)
        a('s_waitcnt vmcnt(0)')
        S('q', 2, 1); RD(B2, 'k', 5, 1, 0)
        S('q', 3, 1); RD(B2, 'k', 5, 1, 1)
        S('q', 4, 1); a(f'buffer_store_dwordx4 {vr(KMH,4)}, v{V_L16}, {WS}, {S_T0} offen sc1')
        S('q', 5, 1); VXL(0); add(AQ, AQ, AQ + 2)
        S('q', 6, 1); a(f'buffer_store_dwordx2 {vr(VMH,2)}, v{V_L16}, {WS}, {S_T0} offen offset:1024 sc1'); add(AQ + 1, AQ + 1, AQ + 3)
        S('q', 7, 1); VXL(1); a(f'{cvt} v{AQ+2}, v{AQ}, v{AQ+1}')
        S('k', 2, 0); a(f'buffer_store_dword v{V_F}, v{V_ONE}, {WS}, {S_T1} offen sc1')
        S('k', 2, 1, B0); RD(B0, 'k', 6, 1, 0)
        S('k', 3, 0); RD(B0, 'k', 6, 1, 1)
        S('k', 3, 1, B1); RD(B1, 'k', 7, 0, 0); add(AQ + 4, AQ + 4, AQ + 6)
        S('k', 4, 0); RD(B1, 'k', 7, 0, 1); add(AQ + 5, AQ + 5, AQ + 7)
        S('k', 4, 1, T); RD(T, 'k', 7, 1, 0); a(f'{cvt} v{AQ+3}, v{AQ+4}, v{AQ+5}')
        S('k', 5, 0); RD(T, 'k', 7, 1, 1)
        a(f'{mf16} {vr(AQ+4,4)}, {vr(AQ+2,2)}, {vr(SELQ,2)}, 0')
        a(f'buffer_load_dword v{V_FLAG}, v{V_Z}, {WS}, {S_FKV} offen sc1')
        a(f'{mf16} {vr(T+8,4)}, {vr(AQ+2,2)}, {vr(SELQ+2,2)}, 0')
        S('k', 5, 1, B2); RD(B2, 'v', 6, 0, 0)
        S('k', 6, 0); RD(B2, 'v', 6, 0, 1)
        S('k', 7, 0, B1); RD(B1, 'v', 7, 0, 0); a(f'{cvt} v{AQ}, v{AQ+4}, v{AQ+5}')
        S('k', 6, 1, B0); RD(B1, 'v', 7, 0, 1); a(f'{cvt} v{AQ+1}, v{AQ+6}, v{AQ+7}\n{cvt} v{AQ+2}, v{T+8}, v{T+9}')
        S('k', 7, 1, T); RD(B0, 'v', 6, 1, 0); a(f'{cvt} v{AQ+3}, v{T+10}, v{T+11}')
        self.stamp(2)
        RD(B0, 'v', 6, 1, 1)
        add(AK, AK, AK + 2)
        a(f'{mf32} {vr(AQ+4,4)}, {vr(KX,4)}, {vr(AQ,4)}, 0')
        add(AK + 1, AK + 1, AK + 3)
        a(f'{cvt} v{AK+2}, v{AK}, v{AK+1}')
        a(f'{mf32} {vr(T+8,4)}, {vr(KX+4,4)}, {vr(AQ,4)}, 0')
        pkadd(AK + 4, AK + 4, AK + 6)
        a(f'{cvt} v{AK+3}, v{AK+4}, v{AK+5}')
        a(f'{mf16} {vr(AK+4,4)}, {vr(AK+2,2)}, {vr(SELK,2)}, 0')
        a(f'{mf16} {vr(T,4)}, {vr(AK+2,2)}, {vr(SELK+2,2)}, 0')
        for i in range(4): a(f'v_cndmask_b32 v{AK+i}, v{T+8+i}, v{AQ+4+i}, {S_LO}')
        V(2, 0)
        a(f'ds_write_b128 v{V_X0}, {vr(AK,4)} offset:8192')
        a(f'{cvt} v{KMH}, v{AK+4}, v{AK+5}\n{cvt} v{KMH+1}, v{AK+6}, v{AK+7}')
        a(f'{cvt} v{KMH+2}, v{T}, v{T+1}\n{cvt} v{KMH+3}, v{T+2}, v{T+3}')
        a(f'{mf32} {vr(T+4,4)}, {vr(KMH,4)}, {vr(AQ,4)}, 0')
        a(f'buffer_load_dwordx4 {vr(KX,4)}, v{V_L16}, {WS}, {S_REC} offen sc1')
        V(2, 1)
        a(f'v_cndmask_b32 v{T+4}, v{T+5}, v{T+4}, {S_LO}')
        V(3, 0)
        a(f'ds_write_b32 v{V_SMW}, v{T+4}')
        self.stamp(3)
        B3 = M + 8
        V(3, 1); RD(B3, 'v', 7, 1, 0)
        V(6, 0, B2); RD(B3, 'v', 7, 1, 1)
        V(6, 1, B0)
        a.wait_lds_writes()
        a('s_barrier')
        SX = [T + 4, T + 8, AQ + 4]
        for x in range(1, 4): a(f'ds_read_b128 {vr(SX[x-1],4)}, v{V_X0+x} offset:8192')
        a(f'ds_read_b128 {vr(T,4)}, v{V_F} offset:1024')
        V(7, 0, B1)
        V(4, 0)
        V(4, 1)
        V(5, 0)
        V(7, 1, B3)
        V(5, 1)
        WOS = lambda i, hh: a(f'ds_read_b128 {vr(WVB+8*i+4*hh,4)}, v{V_X0} offset:{16384+8192*i+1024*hh}')
        self.stamp(4)
        pkadd(AK, AK, SX[0]); pkadd(AK + 2, AK + 2, SX[0] + 2)
        pkadd(SX[1], SX[1], SX[2])
        PK(SX[1] + 2, SX[1] + 2, SX[2] + 2)
        PK(T, T, T + 2)
        PK(AK, AK, SX[1]); PK(AK + 2, AK + 2, SX[1] + 2)
        add(T, T, T + 1)
        mx, t2 = T + 2, T + 3
        a(f'v_max3_f32 v{mx}, v{AK}, v{AK+1}, v{AK+2}\nv_max3_f32 v{mx}, v{mx}, v{AK+3}, v{T}')
        PK(AV, AV, AV + 2); PK(AV + 4, AV + 4, AV + 6)
        a(f'v_max_f32_dpp v{t2}, v{mx}, v{mx} {QP}\nv_max_f32_dpp v{mx}, v{mx}, v{mx} {QP}')
        a(f'{cvt} v{AV+2}, v{AV}, v{AV+1}\n{cvt} v{AV+3}, v{AV+4}, v{AV+5}')
        a(f'v_permlane16_swap_b32 v{mx}, v{t2}\nv_max_f32 v{T+1}, v{mx}, v{t2}\nv_max_f32 v{mx}, v{mx}, v{t2}')
        a(f'{mf16} {vr(AV+4,4)}, {vr(SELV,2)}, {vr(AV+2,2)}, 0')
        WOS(0, 0)
        zs = list(range(M, M + 32, 2))
        def Z(n):
            for _ in range(n): a(f'v_mov_b64 {vr(zs.pop(0),2)}, 0')
        a(f'v_permlane32_swap_b32 v{mx}, v{T+1}\nv_max_f32 v{mx}, v{mx}, v{T+1}\nv_mul_f32 v{mx}, {S_SC}, v{mx}')
        E = [AK, AK + 1, AK + 2, AK + 3, T]
        for e in E: a(f'v_fma_f32 v{e}, v{e}, {S_SC}, -v{mx}')
        for e in E: a(f'v_exp_f32 v{e}, v{e}')
        BX, PM = AQ, T + 6
        a(f'{cvt} v{T+8}, v{AK}, v{AK+1}\n{cvt} v{T+9}, v{AK+2}, v{AK+3}')
        a(f"""
        v_cndmask_b32 v{BX}, 0, v{T+8}, {S_LO}
        v_cndmask_b32 v{BX+1}, 0, v{T+9}, {S_LO}
        v_cndmask_b32 v{BX+2}, v{T+8}, 0, {S_LO}
        v_cndmask_b32 v{BX+3}, v{T+9}, 0, {S_LO}
        v_mov_b32_dpp v{T+1}, v{T} {QP}
        {cvt} v{VMH}, v{AV+4}, v{AV+5}
        """)
        D, D2 = AQ + 4, AK + 4
        l = T + 11
        a(f'{mf32} {vr(D2,4)}, {vr(VXC+4,4)}, {vr(BX,4)}, 0')
        WOS(0, 1)
        a(f'{cvt} v{T+4}, v{T}, v{T+1}\n{cvt} v{T+5}, v{T+1}, v{T}')
        a(f'{mf32} {vr(D,4)}, {vr(VXC,4)}, {vr(BX,4)}, 0')
        WOS(1, 0)
        a(f'v_cndmask_b32 v{PM}, 0, v{T+4}, {S_LO}\nv_cndmask_b32 v{PM+1}, v{T+5}, 0, {S_LO}')
        a(f'{cvt} v{VMH+1}, v{AV+6}, v{AV+7}')
        add(AK, AK, AK + 1); add(AK + 2, AK + 2, AK + 3)
        a(f'{mf16} {vr(D,4)}, {vr(VMH,2)}, {vr(PM,2)}, {vr(D,4)}')
        WOS(1, 1)
        add(l, AK, T); add(l, l, AK + 2)
        Z(2)
        a(f'v_add_f32_dpp v{t2}, v{l}, v{l} {QP}\nv_add_f32_dpp v{l}, v{l}, v{l} {QP}')
        Z(2)
        a(f'v_permlane16_swap_b32 v{l}, v{t2}\nv_add_f32 v{T+1}, v{l}, v{t2}\nv_add_f32 v{l}, v{l}, v{t2}')
        for i in range(2): a(f'v_add_f32_dpp v{D+i}, v{D2+i}, v{D+i} {QP}')
        a(f'v_permlane32_swap_b32 v{l}, v{T+1}\nv_add_f32 v{l}, v{l}, v{T+1}\nv_rcp_f32 v{l}, v{l}')
        for i in range(2, 4): a(f'v_add_f32_dpp v{D+i}, v{D2+i}, v{D+i} {QP}')
        for i in (0, 2): a(f'v_pk_mul_f32 {vr(D+i,2)}, {vr(D+i,2)}, {vr(l-1,2)} op_sel:[0,1] op_sel_hi:[1,1]')
        a(f'{cvt} v{T}, v{D}, v{D+1}\n{cvt} v{T+1}, v{D+2}, v{D+3}')
        self.stamp(5)
        a(f'ds_write_b64 v{V_OW}, {vr(T,2)}')
        a(f's_cmp_eq_u32 {S_S}, 63\ns_cbranch_scc1 L_Rtail_{tg}')
        Z(2)
        a(f'buffer_load_dwordx4 {vr(KX+4,4)}, v{V_L16}, {WS}, {S_REC} offen offset:1024 sc1')
        Z(4)
        a.wait_lds_writes()
        a('s_barrier')
        OA = AK
        a(f'ds_read_b128 {vr(OA,4)}, v{V_F} offset:3072\nds_read_b128 {vr(OA+4,4)}, v{V_F} offset:5120')
        Z(6)
        self.stamp(6)
        def wo(t, kb):
            fr = WVB + 8 * WO_SPILL.index((t, kb)) if (t, kb) in WO_SPILL else wo_frag(t, kb)
            self.smf(M + 4 * t, OA + 4 * kb, vr(fr, 8))
        def fa(t, i): add(M + 4 * t + i, M + 4 * t + i, M + 4 * t + 2 + i)
        def fc(t): a(f'{cvt} v{AQ+t}, v{M+4*t}, v{M+4*t+1}')
        def tagit(r): a(f'v_and_or_b32 v{r}, v{r}, -2, {S_TAG}')
        wo(0, 0); a(f's_lshr_b32 {S_TAG}, {S_S}, 1\ns_and_b32 {S_TAG}, {S_TAG}, 1')
        wo(1, 0); a(f's_sub_u32 {S_NTAG}, {S_TAG}, 1\ns_add_u32 {S_IN1}, {S_IN0}, 32768')
        wo(0, 1)
        wo(1, 1); wo(2, 0); wo(2, 1); wo(3, 0); wo(3, 1)
        wo(4, 0); fa(0, 0); fa(0, 1)
        wo(4, 1); fa(1, 0); fa(1, 1)
        wo(5, 0); fc(0); fc(1)
        wo(5, 1); fa(2, 0); fa(2, 1)
        wo(6, 0); tagit(AQ); fc(2)
        wo(6, 1); fa(3, 0); fa(3, 1)
        wo(7, 0); fc(3)
        wo(7, 1)
        a(f'buffer_store_dwordx4 {vr(AQ,4)}, v{V_IST}, {WS}, {S_IN0} offen {cf}')
        fa(4, 0); fa(4, 1); fc(4); fa(5, 0); fa(5, 1); tagit(AQ + 4); fc(5)
        fa(6, 0); fa(6, 1); fc(6); fa(7, 0); fa(7, 1); fc(7)
        a(f'buffer_store_dwordx4 {vr(AQ+4,4)}, v{V_IST}, {WS}, {S_IN1} offen {cf}')
        self.stamp(7)
        def slackA():
            preload()
            a(f"""
            v_mov_b32 v{PA}, {S_NTAG}
            v_mov_b32 v{PA+4}, {S_NTAG}
            s_add_u32 {S_S}, {S_S}, 1
            s_xor_b32 {S_IN0}, {S_IN0}, 0x40000
            s_and_b32 {S_T0}, {S_S}, 3
            s_lshl_b32 {S_T0}, {S_T0}, 13
            v_mov_b64 {vr(M,2)}, -1
            s_andn2_b32 {S_PUBB}, {S_PUBB}, 0x6000
            s_andn2_b32 {S_MEMP}, {S_MEMP}, 0x6000
            v_mov_b64 {vr(M+2,2)}, -1
            s_or_b32 {S_MEMP}, {S_MEMP}, {S_T0}
            s_xor_b32 {S_RST}, {S_T0}, 0x4000
            v_mov_b64 {vr(M+4,2)}, -1
            s_or_b32 {S_RST}, {S_RST}, {S_PUBB}
            s_or_b32 {S_PUBB}, {S_PUBB}, {S_T0}
            v_mov_b64 {vr(M+6,2)}, -1
            """)
            for r in range(AQ, AQ + 24, 2): a(f'v_mov_b64 {vr(r,2)}, 0')
            for i in range(o.get('dA', 2)): dmf(R)
            a.wait(lgkm=0)
        def checkA():
            a(f"""
            v_bitop3_b32 v{VXC}, v{PA}, v{PA+4}, {S_NTAG} bitop3:0x42
            v_and_b32 v{VXC}, 1, v{VXC}
            v_cmp_eq_u32 vcc, 0, v{VXC}
            """)
        def shadowA():
            a(f'{mf32} {vr(R,4)}, {vr(PA,4)}, {vr(SELR,4)}, 0\n{mf32} {vr(R,4)}, {vr(PA+4,4)}, {vr(SELR,4)}, {vr(R,4)}')
        self.poll('A' + tg, PA, V_L16, S_INP, slackA, checkA, shadowA, o.get('nA', 3))
        self.stamp(8)
        a(f"""
        v_permlane32_swap_b32 v{R}, v{R+2}
        v_permlane32_swap_b32 v{R+1}, v{R+3}
        v_add_f32 v{R}, v{R}, v{R+2}
        v_add_f32 v{R+1}, v{R+1}, v{R+3}
        v_permlane16_swap_b32 v{R}, v{R+1}
        v_add_f32 v{R}, v{R}, v{R+1}
        v_mov_b32_dpp v{R+1}, v{R} quad_perm:[1,0,3,2] row_mask:0xf bank_mask:0xf
        {cvt} v{R+2}, v{R}, v{R+1}
        buffer_store_dword v{R+2}, v{V_PUB}, {WS}, {S_PUBB} offen {cf}
        """)
        self.stamp(9)
        a(f'buffer_store_dword v{M}, v{V_PUB}, {WS}, {S_RST} offen {cf}')
        self.dump_stamps(tg)
        a(f's_branch L_Rloop_{tg}')
        a.hot = False
        a(f'{spin}:')
        self.spin_flag(V_FLAG, f'v{V_Z}', S_FKV)
        a(f's_branch {back}')
        for txt, sh in zip(self.late, self.late_sh):
            pre, post = txt.split('@SH@')
            a(pre); a('s_nop 7'); sh(); a(post)
        a(f'L_Rtail_{tg}:')
        a.forget()
        a(f'''
        buffer_store_dwordx4 {vr(KMH,4)}, v{V_L16}, {WS}, {S_KVM} offen sc1
        buffer_store_dwordx2 {vr(VMH,2)}, v{V_L16}, {WS}, {S_KVM} offen offset:1024 sc1
        s_waitcnt vmcnt(0) lgkmcnt(0)
        buffer_store_dword v{V_F}, v{V_ONE}, {WS}, {S_FM} offen sc1
        buffer_store_dword v{V_F}, v{V_ONE}, {WS}, {S_FM} offen offset:2048 sc1
        ''')
        if o.get('stamp'):
            set_srd(a, 12, P_DBG, 256)
            a(f'''
            s_memtime s[82:83]
            s_memrealtime s[84:85]
            s_waitcnt lgkmcnt(0)
            s_sub_u32 s82, s82, s80
            s_sub_u32 s84, s84, s30
            s_sub_u32 s28, s28, s30
            v_mov_b32 v{T}, s82
            v_mov_b32 v{T+1}, {S_FAST}
            v_mov_b32 v{T+2}, s28
            v_mov_b32 v{T+3}, s84
            v_mov_b32 v{T+4}, 8
            buffer_store_dwordx4 {vr(T,4)}, v{T+4}, {ST}, 0 offen
            ''')
        a('s_endpgm')
        a.auto_vm = True
```

```python
import layout as L
from gen_common import *
import struct
def f2u(x): return struct.unpack('<I', struct.pack('<f', x))[0]
mf16 = 'v_mfma_f32_16x16x16_bf16'; mf32 = 'v_mfma_f32_16x16x32_bf16'; cvt = 'v_cvt_pk_bf16_f32'

TB = 0
NAMES = list(L.w_table().keys())
def tv(n): return TB + NAMES.index(n)
V_TID = 24
XF = 48
ACC = 64
S_ISB, S_SEG, S_END, S_STEP, S_BASE, S_STR = 's61', 's62', 's63', 's64', 's65', 's66'
S_XB, S_PF, S_PF2, S_A, S_B, S_HEAD = 's67', 's68', 's69', 's70', 's71', 's72'
S_FIRST = 's73'
SX = 's[24:27]'

def wfrag(m, ks, p):
    c = 'qkv'.index(m) * 8 + ks // 2
    r = c * 16 + p * 8 + (ks % 2) * 4
    return ar(r, 4) if r < 256 else vr(128 + r - 256, 4)

class Workers:
    def tables(self):
        return L.table_text('T_R', L.r_table()) + L.table_text('T_W', L.w_table())

    def xlane(self, op, x, t):
        a = self.a
        a(f'v_mov_b32 v{t}, v{x}\nv_permlane16_swap_b32 v{x}, v{t}\n{op} v{x}, v{x}, v{t}')
        a(f'v_mov_b32 v{t}, v{x}\nv_permlane32_swap_b32 v{x}, v{t}\n{op} v{x}, v{x}, v{t}')

    def x_dma(self):
        a = self.a
        a(f's_lshl_b32 s21, {S_A}, 15\ns_lshl_b32 s22, {S_W}, 8\ns_add_u32 s21, s21, s22')
        a(f's_lshl_b32 s22, {S_W}, 13\ns_add_u32 m0, s22, {S_XB}')
        for k in range(4):
            for tt in range(2):
                a(f'buffer_load_dwordx4 v{tv("xg")}, {SX}, s21 offen lds')
                a('s_add_u32 m0, m0, 1024')
                a(f's_add_u32 s21, s21, {16384 if tt == 0 else hex((64 - 16384) & 0xFFFFFFFF)}')

    def worker_role(self):
        a = self.a; o = self.o
        a('L_worker:')
        a.vq = list(self.vq_role)
        if o.get('no_workers'):
            self.gate_and_store(); a.wait(vm=0); self.signal_init(); a('s_endpgm'); return
        a(f'''
        s_sub_u32 s21, {S_TEAM}, 1
        s_lshl_b32 s21, s21, 5
        s_add_u32 s21, s21, {S_RANK}
        s_cmp_ge_u32 s21, 192
        s_cselect_b32 {S_ISB}, 1, 0
        s_cbranch_scc1 L_w_B
        s_mul_i32 {S_HEAD}, s21, 43691
        s_lshr_b32 {S_HEAD}, {S_HEAD}, 18
        s_mul_i32 s22, {S_HEAD}, 6
        s_sub_u32 {S_SEG}, s21, s22
        s_mov_b32 {S_END}, 64
        s_mov_b32 {S_STEP}, 6
        s_mov_b32 {S_FIRST}, 0
        s_movk_i32 {S_STR}, 8192
        s_mov_b32 s75, {4<<20}
        s_branch L_w_dec
        L_w_B:
        s_sub_u32 s21, s21, 192
        s_lshr_b32 {S_HEAD}, s21, 3
        s_and_b32 s21, s21, 7
        s_lshl_b32 {S_FIRST}, s21, 3
        s_add_u32 {S_END}, {S_FIRST}, 8
        s_max_u32 {S_SEG}, {S_FIRST}, 1
        s_sub_u32 {S_SEG}, {S_SEG}, 1
        s_mov_b32 {S_STEP}, 1
        s_movk_i32 {S_STR}, 3072
        s_mov_b32 s75, {512*3072}
        L_w_dec:
        v_and_b32 v1, 63, v0
        v_lshrrev_b32 v2, 2, v1
        v_and_b32 v3, 3, v1
        v_lshlrev_b32 v3, 4, v3
        v_mul_lo_u32 v2, v2, {S_STR}
        s_lshl_b32 s21, {S_W}, 6
        v_add3_u32 v28, v2, v3, s21
        s_lshl_b32 s78, {S_W}, 15
        s_add_u32 s78, s78, 32768
        s_lshl_b32 s79, {S_STR}, 4
        s_lshl_b32 s77, {S_HEAD}, 8
        ''')
        self.load_table('T_W', 96, 24, 7)
        chunks = [(m, k) for m in 'kvq' for k in range(8)]
        cur = [None]
        def issue(ci):
            m, k = chunks[ci]
            if cur[0] != m:
                cur[0] = m
                ptr = {'q': P_WQ, 'k': P_WK, 'v': P_WV}[m]
                a(f'''
                s_cmp_eq_u32 {S_ISB}, 1
                s_cselect_b32 s8, s{P_WQKV}, s{ptr}
                s_cselect_b32 s9, s{P_WQKV+1}, s{ptr+1}
                s_mov_b32 s10, s75
                s_mov_b32 s11, 0x20000
                s_cselect_b32 s76, {'qkv'.index(m) * 1024}, 0
                s_add_u32 s76, s76, s77
                ''')
            a(f's_add_u32 m0, s78, {(ci % 8) * 4096}')
            a(f's_mul_i32 s21, {S_STR}, {64 * k}\ns_add_u32 s21, s21, s76')
            for i in range(4):
                a(f'buffer_load_dwordx4 v28, {SA}, s21 offen lds\ns_add_u32 m0, m0, 1024')
                if i < 3: a('s_add_u32 s21, s21, s79')
        for ci in range(8): issue(ci)
        self.gate_and_store()
        a(f'v_mov_b32 v{V_TID}, v0')
        for i in range(24): a(f'v_mov_b32 v{TB+i}, v{96+i}')
        set_srd(a, 24, P_X, 2048 * 1024)
        a(f's_mov_b32 {S_XB}, 0\ns_mov_b32 {S_A}, {S_SEG}')
        self.x_dma()
        a.auto_vm = False
        for ci in range(24):
            m, k = chunks[ci]
            younger = 4 * (min(ci + 7, 23) - ci)
            if ci < 8: younger += 9
            a.wait(vm=min(younger, 63))
            so = (ci % 8) * 4096
            for p in range(2):
                for h in range(2):
                    f = wfrag(m, 2 * k + h, p)
                    kind, base = f[0], int(f[2:f.index(':')])
                    for r in range(2):
                        a(f'ds_read_b64_tr_b16 {kind}[{base+2*r}:{base+2*r+1}], v{tv("trp")} offset:{so + 2048*h + 256*r + 32*p}')
            a.wait(lgkm=0)
            if ci + 8 < 24: issue(ci + 8)
            if ci == 9: self.signal_init(tid=V_TID, t=40)
        a.forget()
        self.wait_init(t0=40, tid=V_TID)
        KP, VP = 112, 116
        for r in range(KP, KP + 8, 2): a(f'v_mov_b64 {vr(r,2)}, 0')
        a(f's_mov_b32 {S_PF}, {hex(L.OOB)}\ns_mov_b32 {S_PF2}, {hex(L.OOB)}')
        a(f's_mov_b32 s88, {hex(L.OOB)}')
        VX = 25
        a(f'v_mov_b32 v{VX}, v{tv("l16")}')
        a('L_P_loop:')
        a('s_waitcnt vmcnt(6)')
        a(f'buffer_store_dword v{tv("trp")}, v{tv("one")}, {WS}, {S_PF2} offen sc1')
        a(f's_mov_b32 {S_PF2}, {S_PF}')
        a('s_barrier')
        a(f's_add_u32 {S_A}, {S_SEG}, {S_STEP}\ns_min_u32 {S_A}, {S_A}, 63\ns_xor_b32 {S_XB}, {S_XB}, 32768')
        self.x_dma()
        def xr(ks):
            for tt in range(2):
                a(f'ds_read_b128 {vr(XF + 8*(ks%2) + 4*tt, 4)}, v{VX} offset:{(ks*2+tt)*1024}')
        xr(0)
        for ks in range(16):
            if ks < 15: xr(ks + 1)
            for mi, m in enumerate('qkv'):
                for p in range(2):
                    for tt in range(2):
                        d = vr(ACC + 16 * mi + 8 * p + 4 * tt, 4)
                        x = vr(XF + 8 * (ks % 2) + 4 * tt, 4); w = wfrag(m, ks, p)
                        A, B = (w, x) if m != 'v' else (x, w)
                        a(f'{mf32} {d}, {A}, {B}, {d if ks else 0}')
        a(f'v_xor_b32 v{VX}, 32768, v{VX}')
        acc = lambda m, p, tt: ACC + 16 * 'qkv'.index(m) + 8 * p + 4 * tt
        a(f's_cmp_eq_u32 {S_ISB}, 1\ns_cbranch_scc1 L_P_B')
        a(f'''
        s_lshl_b32 s21, {S_SEG}, 5
        s_add_u32 s21, s21, {S_HEAD}
        s_lshl_b32 {S_PF}, s21, 6
        s_mul_i32 s21, s21, 24576
        s_mul_i32 s22, {S_W}, 6144
        s_add_u32 s21, s21, s22
        s_add_u32 s22, s21, 4096
        s_lshl_b32 s23, {S_W}, 2
        s_add_u32 {S_PF}, {S_PF}, s23
        s_add_u32 {S_PF}, {S_PF}, {hex(L.F_KV)}
        ''')
        frs = [[('k', 0, 0), ('k', 1, 0)], [('k', 0, 1), ('k', 1, 1)], [('v', 0, 0), ('v', 1, 1)], [('v', 1, 0), ('v', 0, 1)],
               [('q', 0, 0), ('q', 1, 0)], [('q', 0, 1), ('q', 1, 1)]]
        for f, (t0, t1) in enumerate(frs):
            o4 = [28, 32, 36, 40, XF, XF + 4][f]
            for i, t in enumerate((t0, t1)):
                r = acc(*t)
                a(f'{cvt} v{o4+2*i}, v{r}, v{r+1}\n{cvt} v{o4+2*i+1}, v{r+2}, v{r+3}')
            a(f'buffer_store_dwordx4 {vr(o4,4)}, v{tv("l16")}, {WS}, {"s21" if f < 4 else "s22"} offen offset:{1024*(f%4)} sc1')
        a('s_branch L_P_next')
        a('L_P_B:')
        G1 = 26
        a(f's_lshl_b32 s21, {S_SEG}, 7\ns_add_u32 s21, s21, {hex(L.GATE)}')
        a(f'buffer_load_dword v{G1}, v{tv("c4")}, {WS}, s21 offen sc1\nbuffer_load_dword v{G1+1}, v{tv("c4")}, {WS}, s21 offen offset:64 sc1')
        for m in 'qkv':
            for p in range(2):
                for tt in range(2):
                    r = acc(m, p, tt)
                    a(f'{cvt} v{r}, v{r}, v{r+1}\n{cvt} v{r+1}, v{r+2}, v{r+3}')
        a(f'''
        s_mov_b32 s80, 0xaaaaaaaa
        s_mov_b32 s81, 0xaaaaaaaa
        v_cmp_ne_u32 s[82:83], 0, v{tv("mc0")}
        v_cmp_ne_u32 s[84:85], 0, v{tv("mc1")}
        s_mov_b32 s86, {hex(f2u(0.25 * 1.4426950408889634))}
        s_cmp_eq_u32 {S_SEG}, 0
        s_cselect_b32 s87, 0xf149f2ca, 0
        s_lshl_b32 s21, {S_SEG}, 5
        s_lshl_b32 s22, {S_HEAD}, 3
        s_add_u32 s21, s21, s22
        s_lshl_b32 s22, {S_W}, 1
        s_add_u32 s21, s21, s22
        s_lshl_b32 s21, s21, 10
        s_add_u32 s21, s21, {hex(L.OB)}
        s_cmp_lt_u32 {S_SEG}, {S_FIRST}
        s_cselect_b32 s21, {hex(L.OOB)}, s21
        s_lshl_b32 {S_PF}, {S_SEG}, 2
        s_add_u32 {S_PF}, {S_PF}, {S_HEAD}
        s_lshl_b32 {S_PF}, {S_PF}, 6
        s_lshl_b32 s22, {S_W}, 2
        s_add_u32 {S_PF}, {S_PF}, s22
        s_add_u32 {S_PF}, {S_PF}, {hex(L.F_OB)}
        s_cmp_lt_u32 {S_SEG}, {S_FIRST}
        s_cselect_b32 {S_PF}, {hex(L.OOB)}, {S_PF}
        s_waitcnt vmcnt(0)
        v_sub_f32 v{G1}, 1.0, v{G1}
        v_sub_f32 v{G1+1}, 1.0, v{G1+1}
        ''')
        for p in range(2):
            for tt in range(2):
                q = acc('q', p, tt); kc = acc('k', p, tt); vc = acc('v', p, tt)
                kp = KP + 2 * p if tt == 0 else acc('k', p, 0)
                vp = VP + 2 * p if tt == 0 else acc('v', p, 0)
                SC_, SP_, OD = 28, 32, 36
                a(f'{mf16} {vr(SC_,4)}, {vr(kc,2)}, {vr(q,2)}, 0\n{mf16} {vr(SP_,4)}, {vr(kp,2)}, {vr(q,2)}, 0')
                for j in range(2):
                    a(f'v_cndmask_b32 v{SC_+2*j}, v{SC_+2*j}, v{SC_+2*j+1}, s[80:81]')
                    a(f'v_cndmask_b32 v{SP_+2*j}, v{SP_+2*j}, v{SP_+2*j+1}, s[80:81]')
                    if tt == 0: a(f'v_add_f32 v{SP_+2*j}, s87, v{SP_+2*j}')
                    a(f'v_cndmask_b32 v{40+j}, v{SP_+2*j}, v{SC_+2*j}, s[{82+2*j}:{83+2*j}]')
                a('v_max_f32 v42, v40, v41')
                self.xlane('v_max_f32', 42, 43)
                a('v_mul_f32 v42, s86, v42')
                for j in range(2): a(f'v_fma_f32 v{40+j}, v{40+j}, s86, -v42\nv_exp_f32 v{40+j}, v{40+j}')
                a('v_add_f32 v42, v40, v41')
                self.xlane('v_add_f32', 42, 43)
                a(f'v_rcp_f32 v42, v42')
                for j in range(2):
                    a(f'{cvt} v{40+j}, v{40+j}, v{40+j}')
                    a(f'v_and_b32 v{44+j}, v{40+j}, v{tv(f"mc{j}")}\nv_and_b32 v{46+j}, v{40+j}, v{tv(f"mp{j}")}')
                a(f'v_mul_f32 v42, v42, v{G1+tt}')
                a(f'{mf16} {vr(OD,4)}, {vr(vc,2)}, v[44:45], 0\n{mf16} {vr(OD,4)}, {vr(vp,2)}, v[46:47], {vr(OD,4)}')
                for i in range(4): a(f'v_mul_f32 v{OD+i}, v{OD+i}, v42')
                ob = XF + 2 * (2 * p + tt)
                a(f'{cvt} v{ob}, v{OD}, v{OD+1}\n{cvt} v{ob+1}, v{OD+2}, v{OD+3}')
                a(f'buffer_store_dwordx2 {vr(ob,2)}, v{tv("l8")}, {WS}, s21 offen offset:{1024*p + 512*tt} sc1')
        for p in range(2):
            a(f'v_mov_b64 {vr(KP+2*p,2)}, {vr(acc("k",p,1),2)}\nv_mov_b64 {vr(VP+2*p,2)}, {vr(acc("v",p,1),2)}')
        for i in range(2): a(f'buffer_store_dword v{tv("trp")}, v{tv("one")}, {WS}, s88 offen')
        a('L_P_next:')
        a(f's_add_u32 {S_SEG}, {S_SEG}, {S_STEP}\ns_cmp_lt_u32 {S_SEG}, {S_END}\ns_cbranch_scc1 L_P_loop')
        a('s_waitcnt vmcnt(0)')
        a(f'buffer_store_dword v{tv("trp")}, v{tv("one")}, {WS}, {S_PF2} offen sc1')
        a(f'buffer_store_dword v{tv("trp")}, v{tv("one")}, {WS}, {S_PF} offen sc1')
        a('s_barrier')
        if o.get('no_F'):
            a('s_endpgm'); a.auto_vm = True; return
        self.f_phase()

    def spin4(self, voff, soff, tmp, n=4, sleep=2):
        a = self.a
        lab = a.newlabel('s4'); ok = a.newlabel('s4ok')
        ld = {1: 'buffer_load_dword', 4: 'buffer_load_dwordx4'}[n]
        a(f's_mov_b32 s23, {SPIN}\n{lab}:')
        a(f'{ld} {vr(tmp,n)}, {voff}, {WS}, {soff} offen sc1\ns_waitcnt vmcnt(0)')
        if n == 4: a(f'v_min_u32 v{tmp}, v{tmp}, v{tmp+1}\nv_min3_u32 v{tmp}, v{tmp}, v{tmp+2}, v{tmp+3}')
        a(f'v_cmp_eq_u32 vcc, 0, v{tmp}\ns_cbranch_vccz {ok}\ns_sleep {sleep}\ns_sub_u32 s23, s23, 1\ns_cbranch_scc0 {lab}\ns_mov_b32 {SPIN}, 0x400\n{ok}:')

    def f_phase(self):
        a = self.a; o = self.o
        set_srd(a, 8, P_WO, 4 << 20)
        a(f's_mul_i32 s78, {S_W}, 36864\ns_mov_b32 m0, s78')
        for kb in range(2):
            for T in range(4):
                a(f's_lshl_b32 s21, {S_RANK}, 17\ns_add_u32 s21, s21, {kb*65536 + T*64}')
                self.dma_chunk(f'v{tv("dma1k")}', 's21', 1024)
        set_srd(a, 8, P_WOB, 512 * 1024)
        for T in range(4):
            a(f's_lshl_b32 s21, {S_RANK}, 14\ns_add_u32 s21, s21, {T*64}')
            self.dma_chunk(f'v{tv("dma1k")}', 's21', 1024, n=1)
        set_srd(a, 12, P_OUT, 2048 * 1024)
        V_Z = 26
        a(f'v_mov_b32 v{V_Z}, 0')
        for kt in range(2):
            for i in range(4):
                a(f'v_cmp_le_i32 s[{64+8*kt+2*i}:{65+8*kt+2*i}], {16*kt+i}, v{tv("qrow")}')
        a('s_waitcnt vmcnt(0)')
        wof = lambda T, p, ks: 4 * ((T * 2 + p) * 4 + ks)
        wob = lambda T, p: 128 + 2 * (T * 2 + p)
        for kb in range(2):
            for T in range(4):
                so = (kb * 4 + T) * 4096
                for p in range(2):
                    for h in range(2):
                        for r in range(2):
                            a(f'ds_read_b64_tr_b16 {ar(wof(T,p,2*kb+h)+2*r,2)}, v{tv("trf")} offset:{so + 2048*h + 1024*r + 8*p}')
        for T in range(4):
            for p in range(2):
                a(f'ds_read_b64_tr_b16 {ar(wob(T,p),2)}, v{tv("trf")} offset:{32768 + 1024*T + 8*p}')
        a.wait(lgkm=0)
        S_FS, S_RB, S_FB = 's61', 's62', 's63'
        a(f's_sub_u32 {S_FS}, {S_TEAM}, 1\ns_mov_b32 s80, {hex(f2u(128 ** -0.5 * 1.4426950408889634))}\ns_mov_b32 s81, 0xf149f2ca')
        a(f's_lshr_b32 s82, {S_W}, 1\ns_and_b32 s83, {S_W}, 1')
        Q, K0, K1, V, KM, VM, OBF, G, S0, S1, SM, PX, PM, D, OF, AC = 28, 44, 60, 76, 92, 108, 112, 116, 120, 124, 128, 132, 136, 140, 156, 188
        a('L_F_loop:')
        a.forget(); a.auto_vm = True
        a(f'''
        s_lshl_b32 s21, {S_FS}, 5
        s_add_u32 s21, s21, {S_RANK}
        s_lshl_b32 {S_FB}, s21, 6
        s_mul_i32 {S_RB}, s21, 24576
        s_lshl_b32 s84, s21, 13
        s_add_u32 s84, s84, {hex(L.KVM)}
        s_lshl_b32 s85, s21, 10
        s_add_u32 s85, s85, {hex(L.OB)}
        s_add_u32 s21, {S_FB}, {hex(L.F_KV)}
        ''')
        self.spin4(f'v{V_Z}', 's21', Q)
        a(f'''
        s_lshl_b32 s21, {S_FS}, 2
        s_lshr_b32 s22, {S_RANK}, 3
        s_add_u32 s21, s21, s22
        s_lshl_b32 s21, s21, 6
        s_and_b32 s22, {S_RANK}, 6
        s_lshl_b32 s22, s22, 1
        s_add_u32 s21, s21, s22
        s_add_u32 s21, s21, {hex(L.F_OB)}
        ''')
        self.spin4(f'v{V_Z}', 's21', Q, n=1)
        a.forget()
        l16 = f'v{tv("l16")}'
        for qt in range(2):
            a(f'buffer_load_dwordx2 {vr(OBF+2*qt,2)}, v{tv("l8")}, {WS}, s85 offen offset:{512*qt} sc1')
        a(f's_lshl_b32 s22, s82, 10\ns_add_u32 s22, s22, 4096\ns_add_u32 s22, s22, {S_RB}\ns_mov_b32 s21, {S_RB}')
        for sl in range(4):
            a(f'buffer_load_dwordx4 {vr(Q+4*sl,4)}, {l16}, {WS}, s22 offen sc1')
            a(f'buffer_load_dwordx4 {vr(K0+4*sl,4)}, {l16}, {WS}, s21 offen sc1')
            a(f'buffer_load_dwordx4 {vr(K1+4*sl,4)}, {l16}, {WS}, s21 offen offset:1024 sc1')
            if sl < 3: a('s_add_u32 s21, s21, 6144\ns_add_u32 s22, s22, 6144')
        a(f's_mul_i32 s21, s83, 12288\ns_add_u32 s21, s21, {S_RB}\ns_add_u32 s22, s21, 6144')
        for sl in range(2):
            for f in range(2):
                a(f'buffer_load_dwordx4 {vr(V+8*sl+4*f,4)}, {l16}, {WS}, {"s21" if sl == 0 else "s22"} offen offset:{2048+1024*f} sc1')
        a(f's_lshl_b32 s21, {S_FS}, 7\ns_lshl_b32 s22, s82, 6\ns_add_u32 s21, s21, s22\ns_add_u32 s21, s21, {hex(L.GATE)}')
        a(f'buffer_load_dword v{G}, v{tv("c4")}, {WS}, s21 offen sc1')
        for qt in range(2):
            for T in range(4):
                for p in range(2):
                    a(f'{mf16} {vr(AC+32*qt+8*T+4*p,4)}, {ar(wob(T,p),2)}, {vr(OBF+2*qt,2)}, 0')
        for sl in range(4):
            a(f'{mf32} {vr(S0,4)}, {vr(K0+4*sl,4)}, {vr(Q+4*sl,4)}, {vr(S0,4) if sl else 0}')
            a(f'{mf32} {vr(S1,4)}, {vr(K1+4*sl,4)}, {vr(Q+4*sl,4)}, {vr(S1,4) if sl else 0}')
        NEG = 27
        a(f'v_mov_b32 v{NEG}, s81')
        for kt, Sx in enumerate((S0, S1)):
            for i in range(4): a(f'v_cndmask_b32 v{Sx+i}, v{NEG}, v{Sx+i}, s[{64+8*kt+2*i}:{65+8*kt+2*i}]')
        MX = 117
        a(f'v_max3_f32 v{MX}, v{S0}, v{S0+1}, v{S0+2}\nv_max3_f32 v{MX}, v{MX}, v{S0+3}, v{S1}\nv_max3_f32 v{MX}, v{MX}, v{S1+1}, v{S1+2}\nv_max_f32 v{MX}, v{MX}, v{S1+3}')
        a.wait(vm=0)
        skip = a.newlabel('fw')
        a(f's_cmp_lg_u32 {S_W}, 0\ns_cbranch_scc1 {skip}\ns_add_u32 s21, {S_FB}, {hex(L.F_M)}')
        self.spin4(f'v{V_Z}', 's21', KM)
        a(f'{skip}:\ns_barrier')
        a.forget()
        a('s_add_u32 s22, s84, 4096')
        for sl in range(4):
            a(f'buffer_load_dwordx4 {vr(KM+4*sl,4)}, {l16}, {WS}, {"s84" if sl < 2 else "s22"} offen offset:{2048*(sl%2)} sc1')
        a(f's_lshl_b32 s21, s83, 12\ns_add_u32 s21, s21, s84')
        for sl in range(2):
            a(f'buffer_load_dwordx2 {vr(VM+2*sl,2)}, {l16}, {WS}, s21 offen offset:{1024+2048*sl} sc1')
        for sl in range(4):
            a(f'{mf32} {vr(SM,4)}, {vr(KM+4*sl,4)}, {vr(Q+4*sl,4)}, {vr(SM,4) if sl else 0}')
        a(f'v_max3_f32 v{MX}, v{MX}, v{SM}, v{SM+1}')
        self.xlane('v_max_f32', MX, 118)
        a(f'v_mul_f32 v{MX}, s80, v{MX}')
        E = [S0 + i for i in range(4)] + [S1 + i for i in range(4)] + [SM, SM + 1]
        for e in E: a(f'v_fma_f32 v{e}, v{e}, s80, -v{MX}')
        for e in E: a(f'v_exp_f32 v{e}, v{e}')
        a(f'{cvt} v{PX}, v{S0}, v{S0+1}\n{cvt} v{PX+1}, v{S0+2}, v{S0+3}\n{cvt} v{PX+2}, v{S1}, v{S1+1}\n{cvt} v{PX+3}, v{S1+2}, v{S1+3}')
        a(f'{cvt} v{PM}, v{SM}, v{SM+1}\nv_mov_b32 v{PM+1}, 0\nv_mov_b32 v{PM+2}, 0\n{cvt} v{PM+3}, v{SM}, v{SM+1}')
        for sl in range(2):
            f1, f2 = V + 8 * sl, V + 8 * sl + 4
            for p in range(2):
                d = vr(D + 8 * sl + 4 * p, 4)
                X = f1 if p == 0 else f2; Y = f2 + 2 if p == 0 else f1 + 2
                a(f'{mf16} {d}, {vr(X,2)}, {vr(PX,2)}, 0')
                a(f'{mf16} {d}, {vr(Y,2)}, {vr(PX+2,2)}, {d}')
                a(f'{mf16} {d}, {vr(VM+2*sl,2)}, {vr(PM+2*p,2)}, {d}')
        LS = 119
        a(f'v_add_f32 v{LS}, v{E[0]}, v{E[1]}')
        for e in E[2:]: a(f'v_add_f32 v{LS}, v{LS}, v{e}')
        self.xlane('v_add_f32', LS, 118)
        a(f'v_rcp_f32 v{LS}, v{LS}\nv_mul_f32 v{LS}, v{LS}, v{G}')
        for i in range(16): a(f'v_mul_f32 v{D+i}, v{D+i}, v{LS}')
        for i in range(8): a(f'{cvt} v{D+i}, v{D+2*i}, v{D+2*i+1}')
        for sl in range(2): a(f'ds_write_b128 v{tv("oxw")}, {vr(D+4*sl,4)} offset:{1024*sl}')
        a.wait(lgkm=0)
        a('s_barrier')
        for qt in range(2):
            for sl in range(4):
                a(f'ds_read_b128 {vr(OF+16*qt+4*sl,4)}, v{tv("oxr")} offset:{4096*qt+1024*sl}')
        a(f's_lshl_b32 s86, {S_FS}, 20\ns_add_u32 s86, s86, {hex(L.FP)}\ns_lshl_b32 s21, {S_RANK}, 10\ns_add_u32 s21, s21, s86\ns_add_u32 s22, s21, {16*32768}')
        for qt in range(2):
            for T in range(4):
                for p in range(2):
                    d = vr(AC + 32 * qt + 8 * T + 4 * p, 4)
                    for ks in range(4):
                        a(f'{mf32} {d}, {ar(wof(T,p,ks),4)}, {vr(OF+16*qt+4*ks,4)}, {d}')
        for qt in range(2):
            for T in range(4):
                r = AC + 32 * qt + 8 * T
                for i in range(4): a(f'{cvt} v{r+i}, v{r+2*i}, v{r+2*i+1}')
                a(f'buffer_store_dwordx4 {vr(r,4)}, v{tv("fpst")}, {WS}, {"s21" if qt == 0 else "s22"} offen offset:{64*T} sc1')
        a.wait(vm=0)
        a(f's_lshl_b32 s21, {S_W}, 2\ns_add_u32 s21, s21, {S_FB}\ns_add_u32 s21, s21, {hex(L.F_P)}')
        a(f'buffer_store_dword v{tv("trp")}, v{tv("one")}, {WS}, s21 offen sc1')
        a(f's_lshl_b32 s21, {S_FS}, 11\ns_add_u32 s21, s21, {hex(L.F_P)}')
        self.spin4(f'v{tv("pfl")}', 's21', Q, n=1, sleep=1)
        a.forget()
        a(f's_lshl_b32 s21, {S_RANK}, 15\ns_add_u32 s21, s21, s86')
        for l in range(8):
            a(f'buffer_load_dwordx4 {vr(Q+4*l,4)}, v{tv("fpld")}, {WS}, s21 offen sc1')
            if l < 7: a('s_add_u32 s21, s21, 4096')
        for l in range(8):
            a(f'{mf32} {vr(S0,4)}, {vr(tv("self0"),4)}, {vr(Q+4*l,4)}, {vr(S0,4) if l else 0}')
        a(f's_lshl_b32 s21, {S_FS}, 5\ns_add_u32 s21, s21, {S_RANK}\ns_lshl_b32 s21, s21, 10')
        a(f'{cvt} v{S0}, v{S0}, v{S0+1}\n{cvt} v{S0+1}, v{S0+2}, v{S0+3}')
        a(f'buffer_store_dwordx2 {vr(S0,2)}, v{tv("outst")}, {ST}, s21 offen')
        a(f's_add_u32 {S_FS}, {S_FS}, 7\ns_cmp_lt_u32 {S_FS}, 64\ns_cbranch_scc1 L_F_loop')
        a('s_endpgm')
```

```python
import sys, math
from asmlib import Asm
import layout as L

KNAME = 'gated_mix__memory_aug_recurrent_mem_tr__sliding_local_dilated__prompt_kernel'

from gen_common import *

class Gen:
    def __init__(self, opt):
        self.o = opt
        self.a = Asm()

    def prologue(self):
        a = self.a; o = self.o
        a(f'''
        s_cmp_ge_u32 s2, 256
        s_cbranch_scc1 L_exit
        {'s_memrealtime s[30:31]' if o.get('stamp') else ''}
        s_load_dwordx16 s[32:47], s[0:1], 0
        s_load_dwordx8 s[48:55], s[0:1], 64
        s_load_dwordx4 s[56:59], s[0:1], 96
        s_getreg_b32 s20, hwreg(HW_REG_XCC_ID)
        v_lshrrev_b32 v1, 6, v0
        s_and_b32 s20, s20, 7
        v_readfirstlane_b32 {S_W}, v1
        s_mov_b32 {SPIN}, 0x400000
        ''')
        if o.get('fake_xcc'):
            a('s_and_b32 s20, s2, 1\ns_add_u32 s20, s20, 1')
        a.wait(lgkm=0)
        set_srd(a, 4, P_WS, L.WS_BYTES)
        set_srd(a, 12, P_DBG, 256)
        a(f'''
        s_mul_i32 s21, s20, 24
        s_add_u32 s21, s21, 40
        s_cmp_eq_u32 s20, 0
        s_cselect_b32 s21, 0, s21
        v_mov_b32 v2, s21
        v_mov_b32 v3, 1
        v_cmp_ne_u32 vcc, 0, v0
        v_mov_b32 v4, {hex(L.OOB)}
        v_cndmask_b32 v2, v2, v4, vcc
        ''')
        a(f'buffer_atomic_add v3, v2, {ST}, 0 offen sc0')
        set_srd(a, 8, P_X, 2048 * 1024)
        a(f'''
        v_and_b32 v5, 63, v0
        v_lshlrev_b32 v5, 4, v5
        s_lshl_b32 s22, s2, 13
        s_lshl_b32 s23, {S_W}, 11
        s_add_u32 s22, s22, s23
        buffer_load_dwordx4 v[8:11], v5, {SA}, s22 offen
        buffer_load_dwordx4 v[12:15], v5, {SA}, s22 offen offset:1024
        ''')
        set_srd(a, 24, P_GATE, 1024)
        a(f'buffer_load_dwordx4 v[16:19], v5, s[24:27], 0 offen')
        a(f'''
        v_mov_b32 v20, -1
        v_mov_b32 v21, -1
        v_mov_b32 v22, -1
        v_mov_b32 v23, -1
        v_mov_b32 v24, 0
        v_mov_b32 v25, 0
        v_mov_b32 v26, 0
        v_mov_b32 v27, 0
        v_lshlrev_b32 v6, 4, v0
        s_lshl_b32 s22, s2, 12
        s_add_u32 s22, s22, {hex(L.RIN)}
        buffer_store_dwordx4 v[20:23], v6, {WS}, s22 offen sc1
        v_cmp_le_u32 vcc, 0x80, v0
        s_lshl_b32 s22, s2, 11
        s_add_u32 s22, s22, {hex(L.FLG)}
        v_cndmask_b32 v7, v6, v4, vcc
        ''')
        if o.get('keep_kv_flags'):
            a(f's_cmp_lt_u32 s2, 64\ns_cselect_b32 s22, {hex(L.OOB)}, s22')
        a(f'buffer_store_dwordx4 v[24:27], v7, {WS}, s22 offen sc1')
        a.wait(vm=5)
        a(f'''
        v_mov_b32 v2, {L.L_MEMX}
        s_cmp_lg_u32 {S_W}, 0
        s_cbranch_scc1 L_tk_skip
        v_readfirstlane_b32 s21, v3
        v_mov_b32 v3, s21
        ds_write_b32 v2, v3
        ''')
        a.wait(lgkm=0)
        a('L_tk_skip:\ns_barrier\nds_read_b32 v3, v2')
        a.wait(lgkm=0)
        a(f'''
        v_readfirstlane_b32 {S_RANK}, v3
        s_mov_b32 {S_TEAM}, s20
        s_mov_b32 s19, 0
        s_cmp_lt_u32 {S_RANK}, 32
        s_cbranch_scc1 L_role_ok
        ''')
        self.vq_role = list(a.vq)
        a.auto_vm = False
        a(f'''
        s_mov_b32 s19, 1
        v_and_b32 v2, 7, v0
        v_mul_u32_u24 v28, 24, v2
        v_add_u32 v28, 40, v28
        v_cmp_eq_u32 vcc, 0, v2
        v_cndmask_b32 v28, v28, v2, vcc
        s_mov_b32 s21, {SPIN}
        L_ov_poll:
        buffer_load_dword v29, v28, {ST}, 0 offen sc1
        s_waitcnt vmcnt(0)
        s_mov_b32 s22, 0
        ''')
        for x in range(8):
            a(f'v_readlane_b32 s{64+x}, v29, {x}')
        a('s_nop 1')
        for x in range(8):
            a(f's_add_u32 s22, s22, s{64+x}')
        a(f'''
        s_cmp_ge_u32 s22, 256
        s_cbranch_scc1 L_ov_have
        s_sub_u32 s21, s21, 1
        s_cbranch_scc1 L_exit
        s_sleep 4
        s_branch L_ov_poll
        L_ov_have:
        s_sub_u32 s22, {S_RANK}, 32
        ''')
        for x in range(8):
            a(f'''
            s_max_u32 s23, s{64+x}, 32
            s_sub_u32 s23, s23, 32
            s_cmp_gt_u32 s20, {x}
            s_cselect_b32 s23, s23, 0
            s_add_u32 s22, s22, s23
            ''')
        for x in range(8):
            a(f'''
            s_min_u32 s23, s{64+x}, 32
            s_sub_u32 s21, 32, s23
            s_mov_b32 {S_TEAM}, {x}
            s_add_u32 {S_RANK}, s23, s22
            s_cmp_lt_u32 s22, s21
            s_cbranch_scc1 L_role_ok
            s_sub_u32 s22, s22, s21
            ''')
        a('s_branch L_exit')
        a.auto_vm = True
        a('L_role_ok:')
        a(f's_cmp_eq_u32 {S_TEAM}, 0\ns_cbranch_scc1 L_R')
        a('s_branch L_worker')

    def gate_and_store(self, tmp=28):
        a = self.a
        a('v_mov_b32 v20, 0\nv_mov_b32 v21, 0')
        for i in range(4):
            a(f'v_dot2c_f32_bf16 v20, v{8+i}, v{16+i}\nv_dot2c_f32_bf16 v21, v{12+i}, v{16+i}')
        a('s_nop 2')
        a('v_permlane32_swap_b32 v20, v21\nv_add_f32 v20, v20, v21')
        a('v_mov_b32 v21, v20\nv_permlane16_swap_b32 v20, v21\nv_add_f32 v20, v20, v21')
        for sh in (8, 4, 2, 1):
            a(f'v_add_f32_dpp v20, v20, v20 row_ror:{sh} row_mask:0xf bank_mask:0xf')
        a(f'''
        v_mul_f32 v20, 0xbfb8aa3b, v20
        v_exp_f32 v20, v20
        v_add_f32 v20, 1.0, v20
        v_rcp_f32 v20, v20
        v_and_b32 v21, 63, v0
        v_lshrrev_b32 v22, 5, v21
        v_lshlrev_b32 v22, 2, v22
        v_and_b32 v21, 31, v21
        v_cmp_ne_u32 vcc, 0, v21
        v_mov_b32 v23, {hex(L.OOB)}
        v_cndmask_b32 v22, v22, v23, vcc
        s_lshl_b32 s22, s2, 5
        s_lshl_b32 s23, {S_W}, 3
        s_add_u32 s22, s22, s23
        s_add_u32 s22, s22, {hex(L.GATE)}
        buffer_store_dword v20, v22, {WS}, s22 offen sc1
        ''')

    def signal_init(self, tid=0, t=20):
        a = self.a
        lab = a.newlabel('sig')
        set_srd(a, 12, P_DBG, 256)
        a(f'''
        s_barrier
        s_cmp_lg_u32 {S_W}, 0
        s_cbranch_scc1 {lab}
        s_and_b32 s21, s2, 3
        s_lshl_b32 s21, s21, 6
        s_add_u32 s21, s21, 60
        v_mov_b32 v{t}, s21
        v_mov_b32 v{t+1}, 1
        v_mov_b32 v{t+2}, {hex(L.OOB)}
        v_and_b32 v{t+3}, 63, v{tid}
        v_cmp_ne_u32 vcc, 0, v{t+3}
        v_cndmask_b32 v{t}, v{t}, v{t+2}, vcc
        buffer_atomic_add v{t+1}, v{t}, {ST}, 0 offen
        {lab}:
        ''')

    def wait_init(self, t0=20, tid=0):
        a = self.a
        lab = a.newlabel('wi'); ok = a.newlabel('wiok')
        set_srd(a, 12, P_DBG, 256)
        sv = a.auto_vm; a.auto_vm = False
        a(f'''
        v_and_b32 v{t0}, 3, v{tid}
        v_lshlrev_b32 v{t0}, 6, v{t0}
        v_add_u32 v{t0}, 60, v{t0}
        v_mov_b32 v{t0+2}, 0
        s_mov_b32 s23, {SPIN}
        {lab}:
        buffer_load_dword v{t0+1}, v{t0}, {ST}, 0 offen sc1
        buffer_load_dword v{t0+3}, v{t0+2}, {ST}, 0 offen sc1
        s_waitcnt vmcnt(0)
        v_readlane_b32 s84, v{t0+1}, 0
        v_readlane_b32 s85, v{t0+1}, 1
        v_readlane_b32 s86, v{t0+1}, 2
        v_readlane_b32 s87, v{t0+1}, 3
        v_readlane_b32 s21, v{t0+3}, 0
        s_nop 1
        s_add_u32 s84, s84, s85
        s_add_u32 s86, s86, s87
        s_add_u32 s84, s84, s86
        s_cmp_ge_u32 s84, 256
        s_cbranch_scc1 {ok}
        s_sleep 4
        s_sub_u32 s23, s23, 1
        s_cbranch_scc0 {lab}
        {ok}:
        ''')
        a.auto_vm = sv
        a.forget()

    def dma_chunk(self, voff, soff, stride, n=4):
        a = self.a
        for i in range(n):
            a(f'buffer_load_dwordx4 {voff}, {SA}, {soff} offen lds')
            a(f's_add_u32 m0, m0, 1024')
            if i < n - 1: a(f's_add_u32 {soff}, {soff}, {16*stride}')

    def load_table(self, label, dst, ndw, tmp):
        a = self.a
        pc = a.newlabel('pc')
        a(f'''
        s_getpc_b64 s[12:13]
        {pc}:
        s_add_u32 s12, s12, {label}-{pc}
        s_addc_u32 s13, s13, 0
        s_mov_b32 s14, {256*ndw*4}
        s_mov_b32 s15, 0x20000
        v_mul_u32_u24 v{tmp}, {ndw*4}, v0
        ''')
        for i in range(0, ndw, 4):
            a(f'buffer_load_dwordx4 {vr(dst+i,4)}, v{tmp}, {ST}, 0 offen offset:{i*4}')

from rrole import RRole
from workers import Workers

class Full(Gen, RRole, Workers):
    def build(self):
        a = self.a
        self.prologue()
        self.r_role()
        self.worker_role()
        a('L_exit:\ns_endpgm')
        n = a.pad_hazards()
        hdr = open('cdna_kernels/' + KNAME[:-7] + '.s.ref').read().split('\n')
        hdr = [h for h in hdr if h.startswith(';') and '@launch' not in h and 'Override' not in h and 'grid=ceil' not in h]
        txt = '\n'.join(hdr) + f'\n; @launch grid=(256,1,1) block=(256,1,1) lds={L.LDS_BYTES}\n'
        txt += f'.amdgcn_target "amdgcn-amd-amdhsa--gfx950"\n.text\n.globl {KNAME}\n.p2align 8\n.type {KNAME},@function\n{KNAME}:\n'
        txt += a.text()
        txt += self.tables()
        txt += f'''.section .rodata,"a"
.p2align 6
.amdhsa_kernel {KNAME}
  .amdhsa_next_free_vgpr 512
  .amdhsa_next_free_sgpr 102
  .amdhsa_accum_offset 256
  .amdhsa_group_segment_fixed_size 0
  .amdhsa_kernarg_size 112
  .amdhsa_user_sgpr_count 2
  .amdhsa_user_sgpr_kernarg_segment_ptr 1
  .amdhsa_system_sgpr_workgroup_id_x 1
  .amdhsa_float_denorm_mode_32 3
.end_amdhsa_kernel
'''
        return txt, n

if __name__ == '__main__':
    opt = {}
    out = 'cdna_kernels/' + KNAME[:-7] + '.s'
    for arg in sys.argv[1:]:
        if arg.startswith('-o'): out = arg[2:]
        elif '=' in arg:
            k, v = arg.split('='); opt[k] = int(v)
        else: opt[arg] = 1
    txt, n = Full(opt).build()
    open(out, 'w').write(txt)
    print('written', out, len(txt), 'bytes; hazard pad states', n)
```

```python
import numpy as np
MB = 1 << 20
REC = 0
KVM = 48 * MB
OB = 64 * MB
GATE = 66 * MB
FLG = 67 * MB
F_KV = FLG
F_M = FLG + 131072
F_P = FLG + 262144
F_OB = FLG + 393216
RIN = 68 * MB
RMEM = RIN + 524288
DBG = 70 * MB
FP = 72 * MB
WS_BYTES = 256 * MB
OOB = 0x40000000

L_MEMX = 131072
L_XR = 139264
L_WOS = 147456
LDS_BYTES = 163840
BLK = 16896
GRP = 4 * BLK

def bf16_bits(x):
    return int(np.array([x], dtype=np.float32).view(np.uint32)[0] >> 16)
ONE = bf16_bits(1.0)
def pk(lo, hi):
    return (ONE if lo else 0) | ((ONE if hi else 0) << 16)

def rowof(n): return 2 * (n // 4) + n % 2
def r_table():
    T = {}
    def add(name, f):
        T[name] = [f(t >> 6, (t & 63) >> 4, t & 15, t & 63) & 0xFFFFFFFF for t in range(256)]
    add('l16', lambda w, g, c, l: l * 16)
    add('ist', lambda w, g, c, l: ((8 * w + c // 4) * 4 + g) * 2048 + (c % 4) * 16)
    add('pub', lambda w, g, c, l: ((c // 4) * 512 + ((c % 4) // 2) * 16 + g * 4) if (c < 8 and c % 2 == 0) else OOB)
    for x in range(4):
        add(f'x{x}', lambda w, g, c, l, x=x: L_MEMX + l * 16 + (x ^ w) * 2048)
    add('f', lambda w, g, c, l: L_XR + l * 16)
    add('smw', lambda w, g, c, l: L_XR + 1024 + l * 16 + 4 * w)
    add('ow', lambda w, g, c, l: L_XR + 3072 + (w // 2) * 2048 + l * 16 + (w % 2) * 8)
    add('wv', lambda w, g, c, l: w * 2048 + l * 16)
    add('one', lambda w, g, c, l: 0 if l == 0 else OOB)
    add('idx', lambda w, g, c, l: 0x44444444 if c % 4 < 2 else 0xEEEEEEEE)
    def page(l):
        if l < 24:
            a = l * 2 * MB
            return a + (4096 - a % 6144) % 6144
        if l < 28: return KVM + (l - 24) * 2 * MB
        if l == 28: return F_OB + 65536
        return OOB
    add('mm', lambda w, g, c, l: page(l))
    add('trq', lambda w, g, c, l: (8 * (g // 2) + 2 * (g % 2) + [0, 0, 4, 4][c // 4]) * 1056 + [0, 1, 0, 1][c // 4] * 256 + w * 64 + (c % 4) * 8)
    add('tro', lambda w, g, c, l: w * BLK + (4 * (g // 2) + [0, 1, 0, 1][c // 4]) * 1056 + (2 * (g % 2) + [0, 0, 1, 1][c // 4]) * 256 + (c % 4) * 8)
    def jmap(n):
        n %= 8
        return 2 * (2 * (n // 4) + n % 2) + (n % 4) // 2
    for r in range(4):
        add(f'selr{r}', lambda w, g, c, l, r=r: pk(2 * r == jmap(c), 2 * r + 1 == jmap(c)))
    def selv(g, m, i):
        gam, io = m // 4, m % 4
        tile = io // 2; row = gam + (4 if io % 2 else 0)
        return (i // 2 == tile) and (2 * g + i % 2 == row)
    for r in range(2):
        add(f'selv{r}', lambda w, g, c, l, r=r: pk(selv(g, c, 2 * r), selv(g, c, 2 * r + 1)))
    add('selq', lambda w, g, c, l: pk(2 * g == rowof(c), 2 * g + 1 == rowof(c)))
    def sig(n): return n // 4 if n % 4 == 0 else (4 + n // 4 if n % 4 == 1 else -1)
    add('selk', lambda w, g, c, l: pk(2 * g == sig(c), 2 * g + 1 == sig(c)))
    add('m0a', lambda w, g, c, l: (((c % 4) // 2) * 1024 + 2 * (32 * (c // 4) + g)) if (c < 8 and c % 2 == 0) else OOB)
    while len(T) < 28: add(f'pad{len(T)}', lambda w, g, c, l: 0)
    return T

def w_table():
    T = {}
    def add(name, f):
        T[name] = [f(t >> 6, (t & 63) >> 4, t & 15, t & 63) & 0xFFFFFFFF for t in range(256)]
    add('l16', lambda w, g, c, l: l * 16)
    add('one', lambda w, g, c, l: 0 if l == 0 else OOB)
    add('trp', lambda w, g, c, l: (8 * (g % 2) + c // 4) * 1056 + (g // 2) * 256 + w * 64 + (c % 4) * 8)
    add('xg', lambda w, g, c, l: c * 1024 + g * 16)
    half = lambda c: 0xFFFF0000 if c % 2 else 0x0000FFFF
    for j in range(2):
        add(f'mc{j}', lambda w, g, c, l, j=j: half(c) if 4 * g + c % 2 + 2 * j <= c else 0)
    for j in range(2):
        add(f'mp{j}', lambda w, g, c, l, j=j: 0 if 4 * g + c % 2 + 2 * j <= c else half(c))
    add('c4', lambda w, g, c, l: c * 4)
    add('l8', lambda w, g, c, l: l * 8)
    add('trf', lambda w, g, c, l: w * 36864 + (4 * g + c // 4) * 64 + (c % 4) * 16)
    add('dma1k', lambda w, g, c, l: (l // 4) * 1024 + (l % 4) * 16 + w * 256)
    add('fpst', lambda w, g, c, l: c * 32768 + w * 256 + g * 16)
    add('fpld', lambda w, g, c, l: g * 1024 + w * 256 + c * 16)
    add('outst', lambda w, g, c, l: (w * 256 + c * 16 + g * 8) if g < 2 else OOB)
    add('pfl', lambda w, g, c, l: (l % 32) * 64 + w * 4)
    for r in range(4):
        add(f'self{r}', lambda w, g, c, l, r=r: pk(2 * r == c, 2 * r + 1 == c))
    add('oxw', lambda w, g, c, l: 147456 + (w // 2) * 4096 + (w % 2) * 2048 + l * 16)
    add('oxr', lambda w, g, c, l: 147456 + l * 16)
    add('qrow', lambda w, g, c, l: 16 * (w // 2) + c - 4 * g)
    add('vml', lambda w, g, c, l: (4 * (l // 4) + 2 + (l % 4) // 2) * 16 + (l % 2) * 8)
    assert len(T) == 24
    return T

def table_text(label, T):
    names = list(T.keys())
    out = [f'.p2align 8', f'{label}:']
    for t in range(256):
        out.append('.long ' + ','.join(hex(T[n][t]) for n in names))
    return '\n'.join(out) + '\n'
```

```python
import layout as L
from gen_common import *

V_L16, V_IST, V_PUB, V_X0, V_F, V_SMW, V_OW, V_WV = 1, 2, 3, 4, 8, 9, 10, 11
KMH, VMH = 12, 16
V_IDX, V_WV2 = 18, 19
SELR, SELV, V_ONE, V_DUM, SELQ, SELK = 20, 24, 26, 27, 28, 128
V_Z = 29
VXC, VXN, KX = 32, 40, 48
WVB = 56
AQ, AK, AV = 72, 80, 88
M = 96
T = 132
WO0 = 144
V_FLAG = 0
SC = 128 ** -0.5 * 1.4426950408889634
import struct
def f2u(x): return struct.unpack('<I', struct.pack('<f', x))[0]

WO_SPILL = [(0, 0), (2, 0)]
def wo_frag(t, kb):
    order = [(t_, k_) for t_ in range(8) for k_ in range(2) if (t_, k_) not in WO_SPILL]
    return WO0 + 8 * order.index((t, kb))

LDSF = [('q', 0, 0), ('q', 0, 1), ('q', 1, 0), ('q', 1, 1), ('k', 0, 0)] + [('k', k, 1) for k in range(2, 8)] + [('k', 7, 0)] + [('v', k, p) for k in (6, 7) for p in range(2)]
AGF = [(m, k, p) for m in 'qkv' for k in range(8) for p in range(2) if (m, k, p) not in LDSF]
assert len(LDSF) == 16 and len(AGF) == 32
S_S = 's61'
S_MEMP = 's62'
S_PUBB = 's63'
S_IN0, S_IN1 = 's64', 's65'
S_INP = 's66'
S_REC = 's67'
S_FKV = 's68'
S_KVM, S_FM = 's69', 's70'
S_RST = 's71'
S_LO = 's[72:73]'
S_SC = 's74'
S_T0, S_T1 = 's75', 's76'
S_FAST = 's77'
S_TAG, S_NTAG = 's78', 's79'

class RRole:
    def smf(self, acc, A, B):
        self.a(f'v_smfmac_f32_16x16x64_bf16 {vr(acc,4)}, {vr(A,4)}, {B}, v{V_IDX}')

    def r_role(self):
        a = self.a; o = self.o
        a('L_R:')
        a.vq = list(self.vq_role)
        self.mark(0)
        VD8, VD1, VTQ, VTO, VTA = 28, 29, 30, 31, 7
        a(f"""
        v_and_b32 v1, 63, v0
        v_lshrrev_b32 v2, 4, v1
        v_and_b32 v3, 15, v1
        v_lshlrev_b32 v4, 4, v3
        v_lshl_add_u32 v{VD8}, v2, 17, v4
        v_and_b32 v4, 0x70, v4
        v_lshrrev_b32 v3, 3, v3
        v_lshl_add_u32 v4, v3, 9, v4
        v_lshl_add_u32 v{VD1}, v2, 14, v4
        s_lshl_b32 s21, {S_W}, 7
        v_add_u32 v{VD1}, s21, v{VD1}
        s_mul_i32 s78, {S_W}, {L.BLK}
        """)
        groups = [(m, b) for m in 'oqkv' for b in range(2)]
        def issue(gi):
            mat, b = groups[gi]
            if b == 0: set_srd(a, 8, {'q': P_WQ, 'k': P_WK, 'v': P_WV, 'o': P_WO}[mat], 4 << 20)
            a(f's_add_u32 m0, s78, {(gi % 2) * L.GRP}')
            if mat != 'o':
                a(f's_add_u32 s21, {S_W}, {4 * b}\ns_lshl_b32 s21, s21, 19\ns_lshl_b32 s22, {S_RANK}, 8\ns_add_u32 s21, s21, s22')
                self.dma_block(f'v{VD8}', 's21', 8192)
            else:
                a(f's_lshl_b32 s21, {S_RANK}, 17\ns_add_u32 s21, s21, {b * 65536}')
                self.dma_block(f'v{VD1}', 's21', 1024)
        issue(0)
        self.load_table('T_R', 96, 28, 7)
        issue(1)
        self.mark(1)
        self.gate_and_store()
        names = list(L.r_table().keys())
        def tv(n): return 96 + names.index(n)
        a(f'v_mov_b32 v{VTQ}, v{tv("trq")}\nv_mov_b32 v{VTO}, v{tv("tro")}\nv_add_u32 v6, 65536, v{tv("wv")}')
        a(f'buffer_load_dword v26, v{tv("mm")}, {WS}, 0 offen')
        a.auto_vm = False
        TMP = 56
        park = {}
        parkregs = [32, 64, 72, 80, 88, 124, 132, 8]
        for f in LDSF:
            if f[0] == 'k': park[f] = parkregs.pop(0)
            if f[0] == 'q': park[f] = -8 * AGF.index(('v', 3 + 2 * f[1], f[2])) - 1
        S_RDY = 's76'
        def scalars():
            a(f'''
            s_lshr_b32 s21, {S_RANK}, 2
            s_lshl_b32 {S_PUBB}, s21, 10
            s_and_b32 s22, s21, 1
            s_lshl_b32 s22, s22, 9
            s_lshr_b32 s21, s21, 1
            s_lshl_b32 s21, s21, 7
            s_add_u32 s21, s21, s22
            s_and_b32 s22, {S_RANK}, 3
            s_lshl_b32 s22, s22, 3
            s_add_u32 s75, s21, s22
            s_and_b32 s22, {S_RANK}, 2
            s_lshl_b32 s22, s22, 7
            s_add_u32 {S_PUBB}, {S_PUBB}, s22
            s_and_b32 s22, {S_RANK}, 1
            s_lshl_b32 s22, s22, 5
            s_add_u32 {S_PUBB}, {S_PUBB}, s22
            s_add_u32 {S_PUBB}, {S_PUBB}, {hex(L.RMEM)}
            s_mul_i32 {S_REC}, {S_RANK}, 24576
            s_mul_i32 s21, {S_W}, 6144
            s_add_u32 {S_REC}, {S_REC}, s21
            s_lshl_b32 {S_FKV}, {S_RANK}, 6
            s_lshl_b32 s21, {S_W}, 2
            s_add_u32 {S_FKV}, {S_FKV}, s21
            s_add_u32 {S_FM}, {S_FKV}, {hex(L.F_M - 4096)}
            s_add_u32 {S_FKV}, {S_FKV}, {hex(L.F_KV)}
            s_lshl_b32 {S_KVM}, {S_RANK}, 12
            s_lshl_b32 s21, {S_W}, 10
            s_add_u32 {S_KVM}, {S_KVM}, s21
            s_add_u32 {S_KVM}, {S_KVM}, {hex(L.KVM - 131072)}
            s_lshl_b32 s21, {S_W}, 11
            s_add_u32 {S_MEMP}, s21, {hex(L.RMEM)}
            s_lshl_b32 {S_IN0}, {S_RANK}, 6
            s_add_u32 {S_IN0}, {S_IN0}, {hex(L.RIN)}
            s_lshl_b32 {S_INP}, {S_RANK}, 13
            s_add_u32 {S_INP}, {S_INP}, s21
            s_add_u32 {S_INP}, {S_INP}, {hex(L.RIN)}
            s_mov_b32 s72, 0x33333333
            s_mov_b32 s73, 0x33333333
            s_mov_b32 {S_SC}, {hex(f2u(SC))}
            s_mov_b32 {S_S}, 0
            ''')
        def first_records(l16):
            for i in range(2):
                a(f'buffer_load_dwordx4 {vr(KX+4*i,4)}, v{l16}, {WS}, {S_REC} offen offset:{1024*i} sc1')
                a(f'buffer_load_dwordx4 {vr(VXN+4*i,4)}, v{l16}, {WS}, {S_REC} offen offset:{2048+1024*i} sc1')
        def stage_x():
            set_srd(a, 12, P_DBG, 256)
            a(f'''
            v_and_b32 v1, 3, v0
            v_lshlrev_b32 v1, 6, v1
            v_add_u32 v1, 60, v1
            v_and_b32 v2, 4, v0
            v_cmp_ne_u32 vcc, 0, v2
            v_cndmask_b32 v1, v1, 0, vcc
            v_and_b32 v2, 1, v0
            v_lshlrev_b32 v2, 11, v2
            buffer_load_dword v3, v1, {ST}, 0 offen sc1
            buffer_load_dword v4, v2, {WS}, {S_FKV} offen sc1
            ''')
        def stage_y():
            a(f'''
            v_lshl_or_b32 v140, v141, 16, v140
            v_readlane_b32 s84, v3, 0
            v_readlane_b32 s85, v3, 1
            v_readlane_b32 s86, v3, 2
            v_readlane_b32 s87, v3, 3
            v_readlane_b32 s21, v3, 4
            v_cmp_eq_u32 vcc, 0, v4
            s_mov_b32 {S_RDY}, 0
            s_add_u32 s84, s84, s85
            s_add_u32 s86, s86, s87
            s_add_u32 s84, s84, s86
            s_cmp_ge_u32 s21, 32
            s_cselect_b32 {S_FAST}, 1, 0
            s_cbranch_vccnz L_R_notyet
            s_cmp_lt_u32 s84, 256
            s_cbranch_scc1 L_R_notyet
            s_mov_b32 {S_RDY}, 1
            buffer_store_dword v140, v{tv("pub")}, {WS}, {S_PUBB} offen sc1
            ''')
            first_records(tv('l16'))
            a('L_R_notyet:')
        scalars()
        set_srd(a, 24, P_MEM0, 8192)
        a(f'buffer_load_ushort v140, v{tv("m0a")}, s[24:27], s75 offen\nbuffer_load_ushort v141, v{tv("m0a")}, s[24:27], s75 offen offset:32')
        todo = []
        self.ldsf_off = {}
        def flush(n):
            for _ in range(n):
                f, r = todo.pop(0); off = 8192 * len(self.ldsf_off)
                self.ldsf_off[f] = off
                for hh in range(2):
                    src = vr(r + 4 * hh, 4) if r >= 0 else ar(-r - 1 + 4 * hh, 4)
                    a(f'ds_write_b128 v{tv("wv") if off < 65536 else 6}, {src} offset:{off % 65536 + 1024 * hh}')
                if r >= 0: parkregs.append(r)
        for gi in range(8):
            mat, b = groups[gi]
            if gi == 0: self.mark(2)
            a.wait(vm=[16 + 4, 4 + 16, 16, 16, 16, 16, 16 + 2, 2][gi])
            if gi in (0, 2, 4, 7): self.mark(3 + [0, 2, 4, 7].index(gi))
            a('s_barrier')
            hb = (gi % 2) * L.GRP
            for x in range(4):
                dsts = []
                if mat == 'o':
                    for p in range(2):
                        t = 2 * x + p
                        dsts.append((vr, (TMP if t == 0 else 40) if (t, b) in WO_SPILL else wo_frag(t, b)))
                    offs = [0, 2112, 8448, 10560]; xo = 64 * x
                    if x == 0: a(f'v_add_u32 v{VTA}, {hb}, v{VTO}')
                else:
                    offs = [0, 1056, 512, 1568]; xo = 0
                    a(f's_xor_b32 s21, {S_W}, {x}\ns_mul_i32 s21, s21, {L.BLK}\ns_add_u32 s21, s21, {hb}\nv_add_u32 v{VTA}, s21, v{VTQ}')
                    for p in range(2):
                        f = (mat, 2 * x + b, p)
                        if f in AGF: dsts.append((ar, 8 * AGF.index(f)))
                        else:
                            if f not in park: park[f] = TMP if (f[1], f[2]) == (6, 0) else (16 if (f[1], f[2]) == (6, 1) else parkregs.pop(0))
                            if park[f] < 0: dsts.append((ar, -park[f] - 1)); todo.insert(0, (f, park[f]))
                            else: dsts.append((vr, park[f])); todo.append((f, park[f]))
                for p in range(2):
                    rf, d = dsts[p]
                    for r in range(4):
                        a(f'ds_read_b64_tr_b16 {rf(d + 2 * r, 2)}, v{VTA} offset:{xo + offs[r] + 32 * p}')
            if gi == 7:
                a.wait(vm=0); stage_y()
            a.wait(lgkm=0)
            if gi == 0:
                for i in range(2):
                    for hh in range(2):
                        a(f'ds_write_b128 v{tv("x0")}, {vr((TMP if i == 0 else 40) + 4 * hh, 4)} offset:{16384 + 8192 * i + 1024 * hh}')
            a('s_barrier')
            if gi + 2 < 8: issue(gi + 2)
            if gi == 5: stage_x()
            if gi == 2: self.signal_init(barrier=False)
            if gi == 6: flush(8)
            if gi == 7: flush(8)
        assert not todo and len(self.ldsf_off) == 16
        a.wait(lgkm=0)
        a.auto_vm = True; a.forget()
        a(f'v_mov_b32 v{V_WV2}, v6')
        for n, d in [('l16', V_L16), ('ist', V_IST), ('pub', V_PUB), ('x0', V_X0), ('x1', V_X0 + 1), ('x2', V_X0 + 2), ('x3', V_X0 + 3),
                     ('f', V_F), ('smw', V_SMW), ('ow', V_OW), ('wv', V_WV), ('idx', V_IDX), ('one', V_ONE)] + \
                    [(f'selr{i}', SELR + i) for i in range(4)] + [(f'selv{i}', SELV + i) for i in range(2)] + \
                    [('selq', SELQ), ('selq', SELQ + 3), ('selk', SELK), ('selk', SELK + 3)]:
            a(f'v_mov_b32 v{d}, v{tv(n)}')
        for d in (SELQ + 1, SELQ + 2, SELK + 1, SELK + 2): a(f'v_mov_b32 v{d}, 0')
        self.dump_marks(T + 4)
        self.tstamp(1, T + 4)
        a(f's_cmp_eq_u32 {S_RDY}, 1\ns_cbranch_scc1 L_R_ready')
        self.wait_init(t0=T + 4)
        a(f's_cmp_ge_u32 s21, 32\ns_cselect_b32 {S_FAST}, 1, 0')
        a(f'buffer_store_dword v140, v{V_PUB}, {WS}, {S_PUBB} offen sc1')
        self.spin_flag(V_FLAG, f'v{V_Z}', S_FKV)
        first_records(V_L16)
        a(f's_add_u32 s21, {S_FKV}, 2048')
        self.spin_flag(V_FLAG, f'v{V_Z}', 's21')
        a('L_R_ready:')
        a.wait(vm=0)
        a.forget()
        if o.get('force_slow'): a(f's_mov_b32 {S_FAST}, 0')
        a(f's_add_u32 {S_FKV}, {S_FKV}, 2048\nv_mov_b32 v{V_FLAG}, 1')
        for r in range(M, M + 8, 2): a(f'v_mov_b64 {vr(r,2)}, -1')
        self.tstamp(2, T + 4)
        self.tstamp(3, T + 4)
        if o.get('stamp'):
            a('s_memtime s[80:81]\ns_memrealtime s[28:29]'); a.wait(lgkm=0)
        a(f's_cmp_eq_u32 {S_FAST}, 0\ns_cbranch_scc1 L_R_slow')
        self.r_loop('f', '')
        a('L_R_slow:')
        self.r_loop('s', 'sc1')

    def spin_flag(self, dst, voff, soff):
        a = self.a
        lab = a.newlabel('sf'); ok = a.newlabel('sfok')
        sv = a.auto_vm; a.auto_vm = False
        a(f'''
        s_mov_b32 s23, {SPIN}
        {lab}:
        buffer_load_dword v{dst}, {voff}, {WS}, {soff} offen sc1
        s_waitcnt vmcnt(0)
        v_cmp_ne_u32 vcc, 0, v{dst}
        s_cbranch_vccnz {ok}
        s_sleep 2
        s_sub_u32 s23, s23, 1
        s_cbranch_scc0 {lab}
        s_mov_b32 {SPIN}, 0x400
        {ok}:
        ''')
        a.auto_vm = sv; a.vq = []

    def poll(self, tag, dst, voff, soff, pre, check, shadow, nchk, mid=None, nmid=0):
        a = self.a
        lab = f'L_poll_{tag}'; ok = f'L_pok_{tag}'
        def issue():
            a(f'buffer_load_dwordx4 {vr(dst,4)}, v{voff}, {WS}, {soff} offen sc1')
            a(f'buffer_load_dwordx4 {vr(dst+4,4)}, v{voff}, {WS}, {soff} offen offset:1024 sc1')
        pre()
        if mid:
            issue(); mid()
            for r in range(nmid):
                check(); shadow()
                a(f's_cbranch_vccz {ok}')
        a(f's_mov_b32 s23, {SPIN}')
        a(f'{lab}:')
        issue()
        for r in range(nchk - 1):
            check(); shadow()
            a(f's_cbranch_vccz {ok}')
        a(f's_sub_u32 s23, s23, 1\ns_cbranch_scc1 L_pto_{tag}')
        check(); shadow()
        a(f's_cbranch_vccnz {lab}\n{ok}:')
        self.late.append(f'L_pto_{tag}:\ns_mov_b32 {SPIN}, 0x400\ns_waitcnt vmcnt(0)\n@SH@s_branch {ok}')
        self.late_sh.append(shadow)

    def stamp(self, i):
        if self.o.get('stamp') and (self.o.get('smask', 0x3ff) >> i) & 1: self.a.raw(f'    {"s_memrealtime" if self.o.get("rt") else "s_memtime"} s[{82+2*i}:{83+2*i}]')

    def dump_stamps(self, tg):
        a = self.a
        if not self.o.get('stamp'): return
        lab = f'L_nodump_{tg}'
        a(f's_cmp_lg_u32 {S_S}, {self.o.get("dstep", 41)}\ns_cbranch_scc1 {lab}\ns_waitcnt lgkmcnt(0)')
        a(f's_lshl_b32 {S_T0}, {S_RANK}, 8\ns_lshl_b32 {S_T1}, {S_W}, 6\ns_add_u32 {S_T0}, {S_T0}, {S_T1}\ns_add_u32 {S_T0}, {S_T0}, {hex(L.DBG)}')
        a(f'v_mov_b32 v{T+10}, 0')
        for i in range(10):
            a(f'v_mov_b32 v{T+11}, s{82+2*i}\nbuffer_store_dword v{T+11}, v{T+10}, {WS}, {S_T0} offen offset:{4*i}')
        a(f's_waitcnt vmcnt(0)\n{lab}:')

    def r_loop(self, tg, cf):
        a = self.a; o = self.o
        mf16 = 'v_mfma_f32_16x16x16_bf16'; mf32 = 'v_mfma_f32_16x16x32_bf16'
        cvt = 'v_cvt_pk_bf16_f32'
        QP = 'quad_perm:[2,3,0,1] row_mask:0xf bank_mask:0xf'
        dum = lambda n=1: [a(a.dummy) for _ in range(n)]
        self.late = []; self.late_sh = []
        a.auto_vm = False
        B0, B1, B2 = WVB, WVB + 8, M
        ACC = {'q': AQ, 'k': AK, 'v': AV}
        def S(m, k, p, buf=None):
            f = (m, k, p)
            self.smf(ACC[m] + 4 * p, M + 4 * k, ar(8 * AGF.index(f), 8) if buf is None else vr(buf, 8))
        def V(k, p, buf=None): S('v', k, p, buf)
        def RD(buf, m, k, p, hh):
            off = self.ldsf_off[(m, k, p)]
            a(f'ds_read_b128 {vr(buf + 4*hh, 4)}, v{V_WV if off < 65536 else V_WV2} offset:{off % 65536 + hh*1024}')
        def RD2(buf, m, k, p): RD(buf, m, k, p, 0); RD(buf, m, k, p, 1)
        def pkadd(d, x, y): a(f'v_add_f32 v{d}, v{x}, v{y}\nv_add_f32 v{d+1}, v{x+1}, v{y+1}')
        def PK(d, x, y): a(f'v_pk_add_f32 {vr(d,2)}, {vr(x,2)}, {vr(y,2)}')
        def add(d, x, y): a(f'v_add_f32 v{d}, v{x}, v{y}')
        def dmf(r): a(f'{mf16} {vr(r,4)}, {vr(SELQ,2)}, {vr(SELQ,2)}, {vr(r,4)}')
        def filt(line):
            st = 'buffer_store' in line and ('s75' in line or 's76' in line) and 'sc1' in line
            ld = 'buffer_load' in line and ('s67' in line or 's68' in line)
            if o.get('nost') and st: return None
            if o.get('nofst') and st and 's76' in line: return None
            if o.get('nold') and ld: return None
            if o.get('nofld') and ld and 's68' in line: return None
            if o.get('ldplain') and ld and 's67' in line: return line.replace(' sc1', '')
            if o.get('ldnt') and ld and 's67' in line: return line.replace(' sc1', ' nt')
            if o.get('stplain') and st: return line.replace(' sc1', '')
            if o.get('novm') and 'vmcnt' in line: return None
            if o.get('nowarm') and 'buffer_load_dword v27' in line: return 's_nop 0'
            if o.get('novmh') and 'buffer_store_dwordx2' in line: return None
            return line
        PA = M + 8; R = T + 8
        spin = f'L_kvspin_{tg}'; back = f'L_kvback_{tg}'
        def preload():
            RD2(M + 24, 'q', 0, 0); RD2(M + 16, 'q', 0, 1); RD2(B0, 'q', 1, 0); RD2(B1, 'q', 1, 1); RD2(T, 'k', 0, 0)
        def slackB():
            a(f'v_cmp_eq_u32 vcc, 0, v{V_FLAG}')
            for r in range(0, 8, 2): a(f'v_mov_b64 {vr(VXC+r,2)}, {vr(VXN+r,2)}')
            a(f's_xor_b32 {S_INP}, {S_INP}, 0x40000')
            a(f's_cbranch_vccnz {spin}\n{back}:')
            if o.get('zB'):
                for r in range(AQ, AQ + 24, 2): a(f'v_mov_b64 {vr(r,2)}, 0')
            if o.get('barB'): dmf(PA); a('s_barrier')
            for i in range(o.get('dB', 8)): dmf(PA + 4 * (i % 2))
        def checkB():
            a(f"""
            v_max3_u32 v{R}, v{M}, v{M+1}, v{M+2}
            v_max3_u32 v{R+1}, v{M+3}, v{M+4}, v{M+5}
            v_max3_u32 v{R}, v{R}, v{M+6}, v{M+7}
            v_max_u32 v{R}, v{R}, v{R+1}
            v_cmp_eq_u32 vcc, -1, v{R}
            """)
        def shadowB():
            dmf(PA); a('s_nop 2')
        preload()
        for r in range(AQ, AQ + 24, 2): a(f'v_mov_b64 {vr(r,2)}, 0')
        a(f's_xor_b32 {S_INP}, {S_INP}, 0x40000')
        a.wait(lgkm=0)
        a(f'L_Rloop_{tg}:')
        a.forget()
        a.hot = True
        a.filt = filt
        self.poll('B' + tg, M, V_L16, S_MEMP, slackB, checkB, shadowB, o.get('nB', 3))
        if o.get('rt'): a('s_mov_b32 s84, s82')
        self.stamp(0)
        if o.get('rt'): self.dump_stamps(tg)
        a(f'ds_write_b128 v{V_X0}, {vr(M,4)}')
        S('q', 0, 0, M + 24)
        a(f'ds_write_b128 v{V_X0}, {vr(M+4,4)} offset:1024')
        S('q', 0, 1, M + 16)
        a(f's_cmp_lt_u32 {S_S}, 63\ns_cselect_b32 {S_T0}, {0 if o.get("nopf") else 32*24576}, 0')
        S('q', 1, 0, B0)
        a(f's_add_u32 {S_REC}, {S_REC}, {S_T0}\ns_cmp_lt_u32 {S_S}, 62')
        S('q', 1, 1, B1)
        a(f's_cselect_b32 {S_T0}, 2048, 0\ns_add_u32 {S_FKV}, {S_FKV}, {S_T0}')
        S('k', 0, 0, T)
        a(f's_cmp_ge_u32 {S_S}, 2\ns_cselect_b32 {S_T1}, {S_FM}, {hex(L.OOB)}')
        S('k', 0, 1)
        a(f's_cmp_ge_u32 {S_S}, 1\ns_cselect_b32 {S_T0}, {S_KVM}, {hex(L.OOB)}')
        S('k', 1, 0)
        a(f's_add_u32 {S_FM}, {S_FM}, 2048\ns_add_u32 {S_KVM}, {S_KVM}, 131072')
        S('k', 1, 1)
        a.wait_lds_writes()
        a('s_barrier')
        def MR(k): a(f'ds_read_b128 {vr(M+4*k,4)}, v{V_X0 + k//2} offset:{1024*(k%2)}')
        MR(2); MR(3)
        V(0, 0); MR(4)
        V(0, 1); MR(5)
        V(1, 0); MR(6)
        V(1, 1); MR(7)
        VXL = lambda i: a(f'buffer_load_dwordx4 {vr(VXN+4*i,4)}, v{V_L16}, {WS}, {S_REC} offen offset:{2048+1024*i} sc1')
        self.stamp(1)
        S('q', 2, 0); RD(B0, 'k', 2, 1, 0)
        S('q', 3, 0); RD(B0, 'k', 2, 1, 1)
        S('q', 4, 0); RD(B1, 'k', 3, 1, 0)
        S('q', 5, 0); RD(B1, 'k', 3, 1, 1)
        S('q', 6, 0); RD(T, 'k', 4, 1, 0)
        S('q', 7, 0); RD(T, 'k', 4, 1, 1)
        a('s_waitcnt vmcnt(0)')
        S('q', 2, 1); RD(B2, 'k', 5, 1, 0)
        S('q', 3, 1); RD(B2, 'k', 5, 1, 1)
        S('q', 4, 1); a(f'buffer_store_dwordx4 {vr(KMH,4)}, v{V_L16}, {WS}, {S_T0} offen sc1')
        S('q', 5, 1); add(AQ, AQ, AQ + 2)
        S('q', 6, 1); add(AQ + 1, AQ + 1, AQ + 3)
        S('q', 7, 1); a(f'{cvt} v{AQ+2}, v{AQ}, v{AQ+1}')
        S('k', 2, 0); a(f'buffer_store_dword v{V_F}, v{V_ONE}, {WS}, {S_T1} offen sc1')
        S('k', 2, 1, B0); RD(B0, 'k', 6, 1, 0)
        S('k', 3, 0); RD(B0, 'k', 6, 1, 1)
        S('k', 3, 1, B1); RD(B1, 'k', 7, 0, 0); add(AQ + 4, AQ + 4, AQ + 6)
        S('k', 4, 0); RD(B1, 'k', 7, 0, 1); add(AQ + 5, AQ + 5, AQ + 7)
        S('k', 4, 1, T); RD(T, 'k', 7, 1, 0); a(f'{cvt} v{AQ+3}, v{AQ+4}, v{AQ+5}')
        S('k', 5, 0); RD(T, 'k', 7, 1, 1)
        a(f'{mf16} {vr(AQ+4,4)}, {vr(AQ+2,2)}, {vr(SELQ,2)}, 0')
        a(f'buffer_load_dword v{V_FLAG}, v{V_Z}, {WS}, {S_FKV} offen sc1')
        a(f'{mf16} {vr(T+8,4)}, {vr(AQ+2,2)}, {vr(SELQ+2,2)}, 0')
        S('k', 5, 1, B2); RD(B2, 'v', 6, 0, 0)
        S('k', 6, 0); RD(B2, 'v', 6, 0, 1)
        S('k', 7, 0, B1); RD(B1, 'v', 7, 0, 0); a(f'{cvt} v{AQ}, v{AQ+4}, v{AQ+5}')
        S('k', 6, 1, B0); RD(B1, 'v', 7, 0, 1); a(f'{cvt} v{AQ+1}, v{AQ+6}, v{AQ+7}\n{cvt} v{AQ+2}, v{T+8}, v{T+9}')
        S('k', 7, 1, T); RD(B0, 'v', 6, 1, 0); a(f'{cvt} v{AQ+3}, v{T+10}, v{T+11}')
        self.stamp(2)
        RD(B0, 'v', 6, 1, 1)
        add(AK, AK, AK + 2)
        a(f'{mf32} {vr(AQ+4,4)}, {vr(KX,4)}, {vr(AQ,4)}, 0')
        add(AK + 1, AK + 1, AK + 3)
        a(f'{cvt} v{AK+2}, v{AK}, v{AK+1}')
        a(f'{mf32} {vr(T+8,4)}, {vr(KX+4,4)}, {vr(AQ,4)}, 0')
        pkadd(AK + 4, AK + 4, AK + 6)
        a(f'{cvt} v{AK+3}, v{AK+4}, v{AK+5}')
        a(f'{mf16} {vr(AK+4,4)}, {vr(AK+2,2)}, {vr(SELK,2)}, 0')
        a(f'{mf16} {vr(T,4)}, {vr(AK+2,2)}, {vr(SELK+2,2)}, 0')
        for i in range(4): a(f'v_cndmask_b32 v{AK+i}, v{T+8+i}, v{AQ+4+i}, {S_LO}')
        V(2, 0)
        a(f'ds_write_b128 v{V_X0}, {vr(AK,4)} offset:8192')
        a(f'{cvt} v{KMH}, v{AK+4}, v{AK+5}\n{cvt} v{KMH+1}, v{AK+6}, v{AK+7}')
        a(f'{cvt} v{KMH+2}, v{T}, v{T+1}\n{cvt} v{KMH+3}, v{T+2}, v{T+3}')
        a(f'{mf32} {vr(T+4,4)}, {vr(KMH,4)}, {vr(AQ,4)}, 0')
        a(f'buffer_load_dwordx4 {vr(KX,4)}, v{V_L16}, {WS}, {S_REC} offen sc1')
        V(2, 1)
        V(4, 0)
        a(f'v_cndmask_b32 v{T+4}, v{T+5}, v{T+4}, {S_LO}')
        V(3, 0)
        a(f'ds_write_b32 v{V_SMW}, v{T+4}')
        self.stamp(3)
        B3 = M + 8
        V(3, 1); RD(B3, 'v', 7, 1, 0)
        V(6, 0, B2); RD(B3, 'v', 7, 1, 1)
        V(6, 1, B0); VXL(0)
        V(7, 0, B1)
        a.wait_lds_writes()
        a('s_barrier')
        SX = [T + 4, T + 8, AQ + 4]
        for x in range(1, 4): a(f'ds_read_b128 {vr(SX[x-1],4)}, v{V_X0+x} offset:8192')
        a(f'ds_read_b128 {vr(T,4)}, v{V_F} offset:1024')
        V(4, 1); VXL(1)
        V(5, 0)
        V(7, 1, B3)
        V(5, 1)
        WOS = lambda i, hh: a(f'ds_read_b128 {vr(WVB+8*i+4*hh,4)}, v{V_X0} offset:{16384+8192*i+1024*hh}')
        self.stamp(4)
        pkadd(AK, AK, SX[0]); pkadd(AK + 2, AK + 2, SX[0] + 2)
        pkadd(SX[1], SX[1], SX[2])
        PK(SX[1] + 2, SX[1] + 2, SX[2] + 2)
        PK(T, T, T + 2)
        PK(AK, AK, SX[1]); PK(AK + 2, AK + 2, SX[1] + 2)
        add(T, T, T + 1)
        mx, t2 = T + 2, T + 3
        a(f'v_max3_f32 v{mx}, v{AK}, v{AK+1}, v{AK+2}\nv_max3_f32 v{mx}, v{mx}, v{AK+3}, v{T}')
        PK(AV, AV, AV + 2); PK(AV + 4, AV + 4, AV + 6)
        a(f'v_max_f32_dpp v{t2}, v{mx}, v{mx} {QP}\nv_max_f32_dpp v{mx}, v{mx}, v{mx} {QP}')
        a(f'{cvt} v{AV+2}, v{AV}, v{AV+1}\n{cvt} v{AV+3}, v{AV+4}, v{AV+5}')
        a(f'v_permlane16_swap_b32 v{mx}, v{t2}\nv_max_f32 v{T+1}, v{mx}, v{t2}\nv_max_f32 v{mx}, v{mx}, v{t2}')
        a(f'{mf16} {vr(AV+4,4)}, {vr(SELV,2)}, {vr(AV+2,2)}, 0')
        WOS(0, 0)
        zs = list(range(M, M + 32, 2))
        def Z(n):
            for _ in range(n): a(f'v_mov_b64 {vr(zs.pop(0),2)}, 0')
        a(f'v_permlane32_swap_b32 v{mx}, v{T+1}\nv_max_f32 v{mx}, v{mx}, v{T+1}\nv_mul_f32 v{mx}, {S_SC}, v{mx}')
        E = [AK, AK + 1, AK + 2, AK + 3, T]
        for e in E: a(f'v_fma_f32 v{e}, v{e}, {S_SC}, -v{mx}')
        for e in E: a(f'v_exp_f32 v{e}, v{e}')
        BX, PM = AQ, T + 6
        a(f'{cvt} v{T+8}, v{AK}, v{AK+1}\n{cvt} v{T+9}, v{AK+2}, v{AK+3}')
        a(f"""
        v_cndmask_b32 v{BX}, 0, v{T+8}, {S_LO}
        v_cndmask_b32 v{BX+1}, 0, v{T+9}, {S_LO}
        v_cndmask_b32 v{BX+2}, v{T+8}, 0, {S_LO}
        v_cndmask_b32 v{BX+3}, v{T+9}, 0, {S_LO}
        v_mov_b32_dpp v{T+1}, v{T} {QP}
        {cvt} v{VMH}, v{AV+4}, v{AV+5}
        """)
        D, D2 = AQ + 4, AK + 4
        l = T + 11
        a(f'{mf32} {vr(D2,4)}, {vr(VXC+4,4)}, {vr(BX,4)}, 0')
        WOS(0, 1)
        a(f'{cvt} v{T+4}, v{T}, v{T+1}\n{cvt} v{T+5}, v{T+1}, v{T}')
        a(f'{mf32} {vr(D,4)}, {vr(VXC,4)}, {vr(BX,4)}, 0')
        WOS(1, 0)
        a(f'v_cndmask_b32 v{PM}, 0, v{T+4}, {S_LO}\nv_cndmask_b32 v{PM+1}, v{T+5}, 0, {S_LO}')
        a(f'{cvt} v{VMH+1}, v{AV+6}, v{AV+7}')
        add(AK, AK, AK + 1); add(AK + 2, AK + 2, AK + 3)
        a(f'{mf16} {vr(D,4)}, {vr(VMH,2)}, {vr(PM,2)}, {vr(D,4)}')
        WOS(1, 1)
        add(l, AK, T); add(l, l, AK + 2)
        Z(2)
        a(f'v_add_f32_dpp v{t2}, v{l}, v{l} {QP}\nv_add_f32_dpp v{l}, v{l}, v{l} {QP}')
        Z(2)
        a(f'v_permlane16_swap_b32 v{l}, v{t2}\nv_add_f32 v{T+1}, v{l}, v{t2}\nv_add_f32 v{l}, v{l}, v{t2}')
        for i in range(2): a(f'v_add_f32_dpp v{D+i}, v{D2+i}, v{D+i} {QP}')
        a(f'v_permlane32_swap_b32 v{l}, v{T+1}\nv_add_f32 v{l}, v{l}, v{T+1}\nv_rcp_f32 v{l}, v{l}')
        for i in range(2, 4): a(f'v_add_f32_dpp v{D+i}, v{D2+i}, v{D+i} {QP}')
        for i in (0, 2): a(f'v_pk_mul_f32 {vr(D+i,2)}, {vr(D+i,2)}, {vr(l-1,2)} op_sel:[0,1] op_sel_hi:[1,1]')
        a(f'{cvt} v{T}, v{D}, v{D+1}\n{cvt} v{T+1}, v{D+2}, v{D+3}')
        self.stamp(5)
        a(f'ds_write_b64 v{V_OW}, {vr(T,2)}')
        a(f's_cmp_eq_u32 {S_S}, 63\ns_cbranch_scc1 L_Rtail_{tg}')
        Z(2)
        a(f'buffer_load_dwordx4 {vr(KX+4,4)}, v{V_L16}, {WS}, {S_REC} offen offset:1024 sc1')
        Z(4)
        a.wait_lds_writes()
        a('s_barrier')
        OA = AK
        a(f'ds_read_b128 {vr(OA,4)}, v{V_F} offset:3072\nds_read_b128 {vr(OA+4,4)}, v{V_F} offset:5120')
        Z(6)
        self.stamp(6)
        def wo(t, kb):
            fr = WVB + 8 * WO_SPILL.index((t, kb)) if (t, kb) in WO_SPILL else wo_frag(t, kb)
            self.smf(M + 4 * t, OA + 4 * kb, vr(fr, 8))
        def fa(t, i): add(M + 4 * t + i, M + 4 * t + i, M + 4 * t + 2 + i)
        def fc(t): a(f'{cvt} v{AQ+t}, v{M+4*t}, v{M+4*t+1}')
        def tagit(r): a(f'v_and_or_b32 v{r}, v{r}, -2, {S_TAG}')
        wo(0, 0); a(f's_lshr_b32 {S_TAG}, {S_S}, 1\ns_and_b32 {S_TAG}, {S_TAG}, 1')
        wo(1, 0); a(f's_sub_u32 {S_NTAG}, {S_TAG}, 1\ns_add_u32 {S_IN1}, {S_IN0}, 32768')
        wo(0, 1)
        wo(1, 1); wo(2, 0); wo(2, 1); wo(3, 0); wo(3, 1)
        wo(4, 0); fa(0, 0); fa(0, 1)
        wo(4, 1); fa(1, 0); fa(1, 1)
        wo(5, 0); fc(0); fc(1)
        wo(5, 1); fa(2, 0); fa(2, 1)
        wo(6, 0); tagit(AQ); fc(2)
        wo(6, 1); fa(3, 0); fa(3, 1)
        wo(7, 0); fc(3)
        wo(7, 1)
        a(f'buffer_store_dwordx4 {vr(AQ,4)}, v{V_IST}, {WS}, {S_IN0} offen {cf}')
        fa(4, 0); fa(4, 1); fc(4); fa(5, 0); fa(5, 1); tagit(AQ + 4); fc(5)
        fa(6, 0); fa(6, 1); fc(6); fa(7, 0); fa(7, 1); fc(7)
        a(f'buffer_store_dwordx4 {vr(AQ+4,4)}, v{V_IST}, {WS}, {S_IN1} offen {cf}')
        self.stamp(7)
        def pack_kvm():
            a(f's_mov_b64 vcc, {S_LO}')
            for i in range(4):
                qp = '[0,0,0,2]' if i < 2 else '[0,0,1,3]'
                a(f'v_cndmask_b32_dpp v{KMH+i}, v{VMH+i%2}, v{KMH+i}, vcc quad_perm:{qp} row_mask:0xf bank_mask:0xf')
        self.pack_kvm = pack_kvm
        def preA():
            a(f"""
            v_mov_b32 v{PA}, {S_NTAG}
            v_mov_b32 v{PA+4}, {S_NTAG}
            """)
            for i in range(o.get('dA', 4)): dmf(R)
        def slackA():
            preload()
            pack_kvm()
            a(f"""
            s_add_u32 {S_S}, {S_S}, 1
            s_xor_b32 {S_IN0}, {S_IN0}, 0x40000
            s_and_b32 {S_T0}, {S_S}, 3
            s_lshl_b32 {S_T0}, {S_T0}, 13
            v_mov_b64 {vr(M,2)}, -1
            s_andn2_b32 {S_PUBB}, {S_PUBB}, 0x6000
            s_andn2_b32 {S_MEMP}, {S_MEMP}, 0x6000
            v_mov_b64 {vr(M+2,2)}, -1
            s_or_b32 {S_MEMP}, {S_MEMP}, {S_T0}
            s_xor_b32 {S_RST}, {S_T0}, 0x4000
            v_mov_b64 {vr(M+4,2)}, -1
            s_or_b32 {S_RST}, {S_RST}, {S_PUBB}
            s_or_b32 {S_PUBB}, {S_PUBB}, {S_T0}
            v_mov_b64 {vr(M+6,2)}, -1
            """)
            if not o.get('zB'):
                for r in range(AQ, AQ + 24, 2): a(f'v_mov_b64 {vr(r,2)}, 0')
            a.wait(lgkm=0)
        def checkA():
            a(f"""
            v_bitop3_b32 v{VXC}, v{PA}, v{PA+4}, {S_NTAG} bitop3:0x42
            v_and_b32 v{VXC}, 1, v{VXC}
            v_cmp_eq_u32 vcc, 0, v{VXC}
            """)
        def shadowA():
            a(f'{mf32} {vr(R,4)}, {vr(PA,4)}, {vr(SELR,4)}, 0\n{mf32} {vr(R,4)}, {vr(PA+4,4)}, {vr(SELR,4)}, {vr(R,4)}')
        self.poll('A' + tg, PA, V_L16, S_INP, preA, checkA, shadowA, o.get('nA', 3), mid=slackA, nmid=o.get('mA', 0))
        self.stamp(8)
        a(f"""
        v_permlane32_swap_b32 v{R}, v{R+2}
        v_permlane32_swap_b32 v{R+1}, v{R+3}
        v_add_f32 v{R}, v{R}, v{R+2}
        v_add_f32 v{R+1}, v{R+1}, v{R+3}
        v_permlane16_swap_b32 v{R}, v{R+1}
        v_add_f32 v{R}, v{R}, v{R+1}
        v_mov_b32_dpp v{R+1}, v{R} quad_perm:[1,0,3,2] row_mask:0xf bank_mask:0xf
        {cvt} v{R+2}, v{R}, v{R+1}
        buffer_store_dword v{R+2}, v{V_PUB}, {WS}, {S_PUBB} offen {cf}
        """)
        self.stamp(9)
        a(f'buffer_store_dword v{M}, v{V_PUB}, {WS}, {S_RST} offen {cf}')
        if not o.get('rt'): self.dump_stamps(tg)
        a(f's_branch L_Rloop_{tg}')
        a.hot = False
        a(f'{spin}:')
        self.spin_flag(V_FLAG, f'v{V_Z}', S_FKV)
        a(f's_branch {back}')
        for txt, sh in zip(self.late, self.late_sh):
            pre, post = txt.split('@SH@')
            a(pre); a('s_nop 7'); sh(); a(post)
        a(f'L_Rtail_{tg}:')
        a.forget()
        self.pack_kvm()
        a(f'''
        buffer_store_dwordx4 {vr(KMH,4)}, v{V_L16}, {WS}, {S_KVM} offen sc1
        s_waitcnt vmcnt(0) lgkmcnt(0)
        buffer_store_dword v{V_F}, v{V_ONE}, {WS}, {S_FM} offen sc1
        buffer_store_dword v{V_F}, v{V_ONE}, {WS}, {S_FM} offen offset:2048 sc1
        ''')
        self.tstamp(6, T + 4)
        if o.get('stamp'):
            set_srd(a, 12, P_DBG, 256)
            a(f'''
            s_memtime s[82:83]
            s_memrealtime s[84:85]
            s_waitcnt lgkmcnt(0)
            s_sub_u32 s82, s82, s80
            s_sub_u32 s84, s84, s30
            s_sub_u32 s28, s28, s30
            v_mov_b32 v{T}, s82
            v_mov_b32 v{T+1}, {S_FAST}
            v_mov_b32 v{T+2}, s28
            v_mov_b32 v{T+3}, s84
            v_mov_b32 v{T+4}, 8
            buffer_store_dwordx4 {vr(T,4)}, v{T+4}, {ST}, 0 offen
            ''')
        a('s_endpgm')
        a.auto_vm = True
```

```python
import layout as L
from gen_common import *
import struct
def f2u(x): return struct.unpack('<I', struct.pack('<f', x))[0]
mf16 = 'v_mfma_f32_16x16x16_bf16'; mf32 = 'v_mfma_f32_16x16x32_bf16'; cvt = 'v_cvt_pk_bf16_f32'

TB = 0
NAMES = list(L.w_table().keys())
def tv(n): return TB + NAMES.index(n)
V_TID = 24
XF = 48
ACC = 64
S_ISB, S_SEG, S_END, S_STEP, S_BASE, S_STR = 's61', 's62', 's63', 's64', 's65', 's66'
S_XB, S_PF, S_PF2, S_A, S_B, S_HEAD = 's67', 's68', 's69', 's70', 's71', 's72'
S_FIRST = 's73'
S_TFAST = 's89'
SX = 's[24:27]'

def wfrag(m, ks, p):
    c = 'qkv'.index(m) * 8 + ks // 2
    r = c * 16 + p * 8 + (ks % 2) * 4
    return ar(r, 4) if r < 256 else vr(128 + r - 256, 4)

class Workers:
    def tables(self):
        return L.table_text('T_R', L.r_table()) + L.table_text('T_W', L.w_table())

    def xlane(self, op, x, t):
        a = self.a
        a(f'v_mov_b32 v{t}, v{x}\nv_permlane16_swap_b32 v{x}, v{t}\n{op} v{x}, v{x}, v{t}')
        a(f'v_mov_b32 v{t}, v{x}\nv_permlane32_swap_b32 v{x}, v{t}\n{op} v{x}, v{x}, v{t}')

    def x_dma(self):
        a = self.a
        a(f's_lshl_b32 s21, {S_A}, 15\ns_lshl_b32 s22, {S_W}, 8\ns_add_u32 s21, s21, s22')
        a(f's_lshl_b32 s22, {S_W}, 13\ns_add_u32 m0, s22, {S_XB}')
        for k in range(4):
            for tt in range(2):
                a(f'buffer_load_dwordx4 v{tv("xg")}, {SX}, s21 offen lds')
                a('s_add_u32 m0, m0, 1024')
                a(f's_add_u32 s21, s21, {16384 if tt == 0 else hex((64 - 16384) & 0xFFFFFFFF)}')

    def worker_role(self):
        a = self.a; o = self.o
        a('L_worker:')
        a.vq = list(self.vq_role)
        self.mark(0)
        if o.get('no_workers'):
            self.gate_and_store(); a.wait(vm=0); self.signal_init(); a('s_endpgm'); return
        a(f'''
        s_sub_u32 s21, {S_TEAM}, 1
        s_lshl_b32 s21, s21, 5
        s_add_u32 s21, s21, {S_RANK}
        s_cmp_ge_u32 s21, 192
        s_cselect_b32 {S_ISB}, 1, 0
        s_cbranch_scc1 L_w_B
        s_mul_i32 {S_HEAD}, s21, 43691
        s_lshr_b32 {S_HEAD}, {S_HEAD}, 18
        s_mul_i32 s22, {S_HEAD}, 6
        s_sub_u32 {S_SEG}, s21, s22
        s_mov_b32 {S_END}, 64
        s_mov_b32 {S_STEP}, 6
        s_mov_b32 {S_FIRST}, 0
        s_movk_i32 {S_STR}, 8192
        s_mov_b32 s75, {4<<20}
        s_branch L_w_dec
        L_w_B:
        s_sub_u32 s21, s21, 192
        s_lshr_b32 {S_HEAD}, s21, 3
        s_and_b32 s21, s21, 7
        s_lshl_b32 {S_FIRST}, s21, 3
        s_add_u32 {S_END}, {S_FIRST}, 8
        s_max_u32 {S_SEG}, {S_FIRST}, 1
        s_sub_u32 {S_SEG}, {S_SEG}, 1
        s_mov_b32 {S_STEP}, 1
        s_movk_i32 {S_STR}, 3072
        s_mov_b32 s75, {512*3072}
        L_w_dec:
        v_and_b32 v1, 63, v0
        v_lshrrev_b32 v2, 4, v1
        v_and_b32 v3, 15, v1
        v_lshlrev_b32 v3, 4, v3
        s_lshl_b32 s79, {S_STR}, 4
        v_mul_lo_u32 v2, v2, s79
        v_add_u32 v28, v2, v3
        s_mul_i32 s78, {S_W}, {L.BLK}
        s_lshl_b32 s77, {S_HEAD}, 8
        s_lshl_b32 s79, {S_STR}, 6
        ''')
        nwarm = 0
        if o.get('mall'):
            a(f's_sub_u32 s21, {S_TEAM}, 1\ns_lshl_b32 s21, s21, 5\ns_add_u32 s21, s21, {S_RANK}\ns_lshl_b32 s21, s21, 2\ns_add_u32 s21, s21, {S_W}')
            a('v_lshlrev_b32 v29, 7, v1\ns_mov_b32 s10, 0x400000\ns_mov_b32 s11, 0x20000')
            for i in range(2):
                a(f'''
                s_add_u32 s22, s21, {896 * i}
                s_cmp_ge_u32 s22, 512
                s_cselect_b32 s8, s{P_WV}, s{P_WK}
                s_cselect_b32 s9, s{P_WV+1}, s{P_WK+1}
                s_and_b32 s23, s22, 511
                s_lshl_b32 s23, s23, 13
                s_cmp_ge_u32 s22, 1024
                s_cselect_b32 s23, {hex(L.OOB)}, s23
                buffer_load_dword v{30+i%2}, v29, {SA}, s23 offen
                ''')
        groups = [(m, b) for m in 'kvq' for b in range(2)]
        def issue(gi):
            m, b = groups[gi]
            if b == 0:
                ptr = {'q': P_WQ, 'k': P_WK, 'v': P_WV}[m]
                a(f"""
                s_cmp_eq_u32 {S_ISB}, 1
                s_cselect_b32 s8, s{P_WQKV}, s{ptr}
                s_cselect_b32 s9, s{P_WQKV+1}, s{ptr+1}
                s_mov_b32 s10, s75
                s_mov_b32 s11, 0x20000
                s_cselect_b32 s76, {'qkv'.index(m) * 1024}, 0
                s_add_u32 s76, s76, s77
                """)
            a(f's_add_u32 m0, s78, {(gi % 2) * L.GRP}')
            a(f's_add_u32 s21, {S_W}, {4 * b}\ns_mul_i32 s21, s21, s79\ns_add_u32 s21, s21, s76')
            self.dma_block('v28', 's21', S_STR)
        issue(0)
        self.load_table('T_W', 96, 24, 7)
        issue(1)
        self.mark(1)
        self.gate_and_store()
        a(f'v_mov_b32 v{V_TID}, v0')
        for i in range(24): a(f'v_mov_b32 v{TB+i}, v{96+i}')
        a(f'v_add_u32 v29, {L.GRP}, v{tv("trp")}')
        set_srd(a, 24, P_X, 2048 * 1024)
        a(f's_mov_b32 {S_XB}, 0\ns_mov_b32 {S_A}, {S_SEG}')
        a.auto_vm = False
        def consume(gi):
            m, b = groups[gi]
            a('s_barrier')
            for x in range(4):
                for p in range(2):
                    for h in range(2):
                        f = wfrag(m, 2 * (4 * b + x) + h, p)
                        kind, base = f[0], int(f[2:f.index(':')])
                        for r in range(2):
                            a(f'ds_read_b64_tr_b16 {kind}[{base+2*r}:{base+2*r+1}], v{tv("trp") if gi % 2 == 0 else 29} offset:{x * L.BLK + 512*h + 4224*r + 32*p}')
            a.wait(lgkm=0)
            a('s_barrier')
        VX = 25
        KP, VP = 112, 116
        acc = lambda m, p, tt: ACC + 16 * 'qkv'.index(m) + 8 * p + 4 * tt
        def xr(ks):
            for tt in range(2):
                a(f'ds_read_b128 {vr(XF + 8*(ks%2) + 4*tt, 4)}, v{VX} offset:{(ks*2+tt)*1024}')
        def loop_head(lab, mats, nst):
            a(f'{lab}:')
            a(f's_waitcnt vmcnt({nst + 1})')
            a('s_barrier')
            a(f's_add_u32 {S_A}, {S_SEG}, {S_STEP}\ns_min_u32 {S_A}, {S_A}, 63\ns_xor_b32 {S_XB}, {S_XB}, 32768')
            self.x_dma()
            xr(0)
            for ks in range(16):
                if ks < 15: xr(ks + 1)
                if ks == 9:
                    a('s_waitcnt vmcnt(8)')
                    a(f'buffer_store_dword v{tv("oxr")}, v{tv("one")}, {WS}, {S_PF} offen sc1')
                for m in mats:
                    for p in range(2):
                        for tt in range(2):
                            d = vr(acc(m, p, tt), 4)
                            x = vr(XF + 8 * (ks % 2) + 4 * tt, 4); w = wfrag(m, ks, p)
                            A, B = (w, x) if m != 'v' else (x, w)
                            a(f'{mf32} {d}, {A}, {B}, {d if ks else 0}')
            a(f'v_xor_b32 v{VX}, 32768, v{VX}')
        def loop_tail(lab):
            a(f's_add_u32 {S_SEG}, {S_SEG}, {S_STEP}\ns_cmp_lt_u32 {S_SEG}, {S_END}\ns_cbranch_scc1 {lab}')
            a('s_waitcnt vmcnt(0)')
            a(f'buffer_store_dword v{tv("oxr")}, v{tv("one")}, {WS}, {S_PF} offen sc1')
            a('s_barrier')
        def start_loop():
            a(f's_mov_b32 {S_PF}, {hex(L.OOB)}\nv_mov_b32 v{VX}, v{tv("l16")}')
        def init_sync():
            a.forget()
            self.dump_marks(40)
            self.tstamp(1, 40)
            lab = a.newlabel('wz')
            a(f'v_mov_b32 v44, {L.LDS_BYTES - 16}\ns_cmp_lg_u32 {S_W}, 0\ns_cbranch_scc1 {lab}')
            self.wait_init(t0=40, tid=V_TID)
            a(f'v_mov_b32 v45, s21\nds_write_b32 v44, v45')
            a.wait(lgkm=0)
            a(f'{lab}:\ns_waitcnt vmcnt(0)\ns_barrier\nds_read_b32 v45, v44')
            a(f'v_readfirstlane_b32 s21, v45')
            a(f's_cmp_ge_u32 s21, 32\ns_cselect_b32 {S_TFAST}, 1, 0')
            if o.get('force_slow'): a(f's_mov_b32 {S_TFAST}, 0')
            self.tstamp(2, 40)
        def a_epilogue(frs, foff, flagoff):
            a(f"""
            s_lshl_b32 s21, {S_SEG}, 5
            s_add_u32 s21, s21, {S_HEAD}
            s_lshl_b32 {S_PF}, s21, 6
            s_mul_i32 s21, s21, 24576
            s_mul_i32 s22, {S_W}, 6144
            s_add_u32 s21, s21, s22
            s_add_u32 s21, s21, {foff}
            s_lshl_b32 s23, {S_W}, 2
            s_add_u32 {S_PF}, {S_PF}, s23
            s_add_u32 {S_PF}, {S_PF}, {hex(L.F_KV + flagoff)}
            """)
            for f, (t0, t1) in enumerate(frs):
                o4 = 32 + 4 * f
                for i, t in enumerate((t0, t1)):
                    r = acc(*t)
                    a(f'{cvt} v{o4+2*i}, v{r}, v{r+1}\n{cvt} v{o4+2*i+1}, v{r+2}, v{r+3}')
                a(f'buffer_store_dwordx4 {vr(o4,4)}, v{tv("l16")}, {WS}, s21 offen offset:{1024*f} sc1')
        self.mark(2)
        for gi in range(2):
            a.wait(vm=17)
            if gi == 0: self.mark(3)
            consume(gi); issue(gi + 2)
        a.wait(vm=16); self.mark(4)
        consume(2)
        a(f's_cmp_eq_u32 {S_ISB}, 1\ns_cbranch_scc1 L_w_Bload')
        self.x_dma()
        self.signal_init(tid=V_TID, t=40, barrier=False)
        a.wait(vm=8); self.mark(5); self.mark(6)
        consume(3)
        init_sync()
        a(f's_mov_b32 {S_FIRST}, {S_SEG}')
        start_loop()
        loop_head('L_P_kv', 'kv', 4)
        a_epilogue([[('k', 0, 0), ('k', 1, 0)], [('k', 0, 1), ('k', 1, 1)], [('v', 0, 0), ('v', 1, 1)], [('v', 1, 0), ('v', 0, 1)]], 0, 0)
        lab = a.newlabel('nf')
        a(f's_cmp_lg_u32 {S_SEG}, {S_FIRST}\ns_cbranch_scc1 {lab}\ns_waitcnt vmcnt(0)')
        a(f'buffer_store_dword v{tv("oxr")}, v{tv("one")}, {WS}, {S_PF} offen sc1\n{lab}:')
        loop_tail('L_P_kv')
        issue(4); issue(5)
        a('s_waitcnt vmcnt(16)'); consume(4)
        a(f's_mov_b32 {S_SEG}, {S_FIRST}\ns_mov_b32 {S_XB}, 0\ns_mov_b32 {S_A}, {S_SEG}')
        self.x_dma()
        a('s_waitcnt vmcnt(8)'); consume(5)
        a('s_waitcnt vmcnt(0)')
        start_loop()
        loop_head('L_P_q', 'q', 2)
        a_epilogue([[('q', 0, 0), ('q', 1, 0)], [('q', 0, 1), ('q', 1, 1)]], 4096, 16)
        loop_tail('L_P_q')
        a('s_branch L_P_done')
        a('L_w_Bload:')
        issue(4)
        self.signal_init(tid=V_TID, t=40, barrier=False)
        a('s_waitcnt vmcnt(16)'); consume(3); issue(5)
        a('s_waitcnt vmcnt(16)'); self.mark(5); consume(4)
        self.x_dma()
        a('s_waitcnt vmcnt(8)'); self.mark(6); consume(5)
        init_sync()
        for r in range(KP, KP + 8, 2): a(f'v_mov_b64 {vr(r,2)}, 0')
        start_loop()
        loop_head('L_P_B', 'qkv', 4)
        G1 = 26
        a(f's_lshl_b32 s21, {S_SEG}, 7\ns_add_u32 s21, s21, {hex(L.GATE)}')
        a(f'buffer_load_dword v{G1}, v{tv("c4")}, {WS}, s21 offen sc1\nbuffer_load_dword v{G1+1}, v{tv("c4")}, {WS}, s21 offen offset:64 sc1')
        for m in 'qkv':
            for p in range(2):
                for tt in range(2):
                    r = acc(m, p, tt)
                    a(f'{cvt} v{r}, v{r}, v{r+1}\n{cvt} v{r+1}, v{r+2}, v{r+3}')
        a(f'''
        s_mov_b32 s80, 0xaaaaaaaa
        s_mov_b32 s81, 0xaaaaaaaa
        v_cmp_ne_u32 s[82:83], 0, v{tv("mc0")}
        v_cmp_ne_u32 s[84:85], 0, v{tv("mc1")}
        s_mov_b32 s86, {hex(f2u(0.25 * 1.4426950408889634))}
        s_cmp_eq_u32 {S_SEG}, 0
        s_cselect_b32 s87, 0xf149f2ca, 0
        s_lshl_b32 s21, {S_SEG}, 5
        s_lshl_b32 s22, {S_HEAD}, 3
        s_add_u32 s21, s21, s22
        s_lshl_b32 s22, {S_W}, 1
        s_add_u32 s21, s21, s22
        s_lshl_b32 s21, s21, 10
        s_add_u32 s21, s21, {hex(L.OB)}
        s_cmp_lt_u32 {S_SEG}, {S_FIRST}
        s_cselect_b32 s21, {hex(L.OOB)}, s21
        s_lshl_b32 {S_PF}, {S_SEG}, 2
        s_add_u32 {S_PF}, {S_PF}, {S_HEAD}
        s_lshl_b32 {S_PF}, {S_PF}, 6
        s_lshl_b32 s22, {S_W}, 2
        s_add_u32 {S_PF}, {S_PF}, s22
        s_add_u32 {S_PF}, {S_PF}, {hex(L.F_OB)}
        s_cmp_lt_u32 {S_SEG}, {S_FIRST}
        s_cselect_b32 {S_PF}, {hex(L.OOB)}, {S_PF}
        s_waitcnt vmcnt(0)
        v_sub_f32 v{G1}, 1.0, v{G1}
        v_sub_f32 v{G1+1}, 1.0, v{G1+1}
        ''')
        for p in range(2):
            for tt in range(2):
                q = acc('q', p, tt); kc = acc('k', p, tt); vc = acc('v', p, tt)
                kp = KP + 2 * p if tt == 0 else acc('k', p, 0)
                vp = VP + 2 * p if tt == 0 else acc('v', p, 0)
                SC_, SP_, OD = 28, 32, 36
                a(f'{mf16} {vr(SC_,4)}, {vr(kc,2)}, {vr(q,2)}, 0\n{mf16} {vr(SP_,4)}, {vr(kp,2)}, {vr(q,2)}, 0')
                for j in range(2):
                    a(f'v_cndmask_b32 v{SC_+2*j}, v{SC_+2*j}, v{SC_+2*j+1}, s[80:81]')
                    a(f'v_cndmask_b32 v{SP_+2*j}, v{SP_+2*j}, v{SP_+2*j+1}, s[80:81]')
                    if tt == 0: a(f'v_add_f32 v{SP_+2*j}, s87, v{SP_+2*j}')
                    a(f'v_cndmask_b32 v{40+j}, v{SP_+2*j}, v{SC_+2*j}, s[{82+2*j}:{83+2*j}]')
                a('v_max_f32 v42, v40, v41')
                self.xlane('v_max_f32', 42, 43)
                a('v_mul_f32 v42, s86, v42')
                for j in range(2): a(f'v_fma_f32 v{40+j}, v{40+j}, s86, -v42\nv_exp_f32 v{40+j}, v{40+j}')
                a('v_add_f32 v42, v40, v41')
                self.xlane('v_add_f32', 42, 43)
                a(f'v_rcp_f32 v42, v42')
                for j in range(2):
                    a(f'{cvt} v{40+j}, v{40+j}, v{40+j}')
                    a(f'v_and_b32 v{44+j}, v{40+j}, v{tv(f"mc{j}")}\nv_and_b32 v{46+j}, v{40+j}, v{tv(f"mp{j}")}')
                a(f'v_mul_f32 v42, v42, v{G1+tt}')
                a(f'{mf16} {vr(OD,4)}, {vr(vc,2)}, v[44:45], 0\n{mf16} {vr(OD,4)}, {vr(vp,2)}, v[46:47], {vr(OD,4)}')
                for i in range(4): a(f'v_mul_f32 v{OD+i}, v{OD+i}, v42')
                ob = XF + 2 * (2 * p + tt)
                a(f'{cvt} v{ob}, v{OD}, v{OD+1}\n{cvt} v{ob+1}, v{OD+2}, v{OD+3}')
                a(f'buffer_store_dwordx2 {vr(ob,2)}, v{tv("l8")}, {WS}, s21 offen offset:{1024*p + 512*tt} sc1')
        for p in range(2):
            a(f'v_mov_b64 {vr(KP+2*p,2)}, {vr(acc("k",p,1),2)}\nv_mov_b64 {vr(VP+2*p,2)}, {vr(acc("v",p,1),2)}')
        loop_tail('L_P_B')
        a('L_P_done:')
        self.tstamp(3, 40)
        if o.get('no_F'):
            a('s_endpgm'); a.auto_vm = True; return
        self.f_phase()

    def spin4(self, voff, soff, tmp, n=4, sleep=2):
        a = self.a
        lab = a.newlabel('s4'); ok = a.newlabel('s4ok')
        ld = {1: 'buffer_load_dword', 4: 'buffer_load_dwordx4'}[n]
        a(f's_mov_b32 s23, {SPIN}\n{lab}:')
        a(f'{ld} {vr(tmp,n)}, {voff}, {WS}, {soff} offen sc1\ns_waitcnt vmcnt(0)')
        if n == 4: a(f'v_min_u32 v{tmp}, v{tmp}, v{tmp+1}\nv_min3_u32 v{tmp}, v{tmp}, v{tmp+2}, v{tmp+3}')
        a(f'v_cmp_eq_u32 vcc, 0, v{tmp}\ns_cbranch_vccz {ok}\ns_sleep {sleep}\ns_sub_u32 s23, s23, 1\ns_cbranch_scc0 {lab}\ns_mov_b32 {SPIN}, 0x400\n{ok}:')

    def f_phase(self):
        a = self.a; o = self.o
        set_srd(a, 8, P_WO, 4 << 20)
        a(f's_mul_i32 s78, {S_W}, 36864\ns_mov_b32 m0, s78')
        for kb in range(2):
            for T in range(4):
                a(f's_lshl_b32 s21, {S_RANK}, 17\ns_add_u32 s21, s21, {kb*65536 + T*64}')
                self.dma_chunk(f'v{tv("dma1k")}', 's21', 1024)
        set_srd(a, 8, P_WOB, 512 * 1024)
        for T in range(4):
            a(f's_lshl_b32 s21, {S_RANK}, 14\ns_add_u32 s21, s21, {T*64}')
            self.dma_chunk(f'v{tv("dma1k")}', 's21', 1024, n=1)
        set_srd(a, 12, P_OUT, 2048 * 1024)
        V_Z = 26
        a(f'v_mov_b32 v{V_Z}, 0')
        for kt in range(2):
            for i in range(4):
                a(f'v_cmp_le_i32 s[{64+8*kt+2*i}:{65+8*kt+2*i}], {16*kt+i}, v{tv("qrow")}')
        a('s_waitcnt vmcnt(0)')
        wof = lambda T, p, ks: 4 * ((T * 2 + p) * 4 + ks)
        wob = lambda T, p: 128 + 2 * (T * 2 + p)
        for kb in range(2):
            for T in range(4):
                so = (kb * 4 + T) * 4096
                for p in range(2):
                    for h in range(2):
                        for r in range(2):
                            a(f'ds_read_b64_tr_b16 {ar(wof(T,p,2*kb+h)+2*r,2)}, v{tv("trf")} offset:{so + 2048*h + 1024*r + 8*p}')
        for T in range(4):
            for p in range(2):
                a(f'ds_read_b64_tr_b16 {ar(wob(T,p),2)}, v{tv("trf")} offset:{32768 + 1024*T + 8*p}')
        a.wait(lgkm=0)
        S_FS, S_RB, S_FB = 's61', 's62', 's63'
        a(f's_sub_u32 {S_FS}, {S_TEAM}, 1\ns_mov_b32 s80, {hex(f2u(128 ** -0.5 * 1.4426950408889634))}\ns_mov_b32 s81, 0xf149f2ca')
        a(f's_lshr_b32 s82, {S_W}, 1\ns_and_b32 s83, {S_W}, 1')
        a(f's_lshl_b32 s86, {S_TEAM}, 21\ns_add_u32 s86, s86, {hex(L.FP)}')
        Q, K0, K1, V, KM, VM, OBF, G, S0, S1, SM, PX, PM, D, OF, AC = 28, 44, 60, 76, 92, 108, 112, 116, 120, 124, 128, 132, 136, 140, 156, 188
        a('L_F_loop:')
        a.forget(); a.auto_vm = True
        a(f'''
        s_lshl_b32 s21, {S_FS}, 5
        s_add_u32 s21, s21, {S_RANK}
        s_lshl_b32 {S_FB}, s21, 6
        s_mul_i32 {S_RB}, s21, 24576
        s_lshl_b32 s84, s21, 12
        s_add_u32 s84, s84, {hex(L.KVM)}
        s_lshl_b32 s85, s21, 10
        s_add_u32 s85, s85, {hex(L.OB)}
        s_add_u32 s21, {S_FB}, {hex(L.F_KV + 16)}
        ''')
        self.spin4(f'v{V_Z}', 's21', Q)
        a(f'''
        s_lshl_b32 s21, {S_FS}, 2
        s_lshr_b32 s22, {S_RANK}, 3
        s_add_u32 s21, s21, s22
        s_lshl_b32 s21, s21, 6
        s_and_b32 s22, {S_RANK}, 6
        s_lshl_b32 s22, s22, 1
        s_add_u32 s21, s21, s22
        s_add_u32 s21, s21, {hex(L.F_OB)}
        ''')
        self.spin4(f'v{V_Z}', 's21', Q, n=1)
        a.forget()
        l16 = f'v{tv("l16")}'
        for qt in range(2):
            a(f'buffer_load_dwordx2 {vr(OBF+2*qt,2)}, v{tv("l8")}, {WS}, s85 offen offset:{512*qt} sc1')
        a(f's_lshl_b32 s22, s82, 10\ns_add_u32 s22, s22, 4096\ns_add_u32 s22, s22, {S_RB}\ns_mov_b32 s21, {S_RB}')
        for sl in range(4):
            a(f'buffer_load_dwordx4 {vr(Q+4*sl,4)}, {l16}, {WS}, s22 offen sc1')
            a(f'buffer_load_dwordx4 {vr(K0+4*sl,4)}, {l16}, {WS}, s21 offen sc1')
            a(f'buffer_load_dwordx4 {vr(K1+4*sl,4)}, {l16}, {WS}, s21 offen offset:1024 sc1')
            if sl < 3: a('s_add_u32 s21, s21, 6144\ns_add_u32 s22, s22, 6144')
        a(f's_mul_i32 s21, s83, 12288\ns_add_u32 s21, s21, {S_RB}\ns_add_u32 s22, s21, 6144')
        for sl in range(2):
            for f in range(2):
                a(f'buffer_load_dwordx4 {vr(V+8*sl+4*f,4)}, {l16}, {WS}, {"s21" if sl == 0 else "s22"} offen offset:{2048+1024*f} sc1')
        a(f's_lshl_b32 s21, {S_FS}, 7\ns_lshl_b32 s22, s82, 6\ns_add_u32 s21, s21, s22\ns_add_u32 s21, s21, {hex(L.GATE)}')
        a(f'buffer_load_dword v{G}, v{tv("c4")}, {WS}, s21 offen sc1')
        for qt in range(2):
            for T in range(4):
                for p in range(2):
                    a(f'{mf16} {vr(AC+32*qt+8*T+4*p,4)}, {ar(wob(T,p),2)}, {vr(OBF+2*qt,2)}, 0')
        for sl in range(4):
            a(f'{mf32} {vr(S0,4)}, {vr(K0+4*sl,4)}, {vr(Q+4*sl,4)}, {vr(S0,4) if sl else 0}')
            a(f'{mf32} {vr(S1,4)}, {vr(K1+4*sl,4)}, {vr(Q+4*sl,4)}, {vr(S1,4) if sl else 0}')
        NEG = 27
        a(f'v_mov_b32 v{NEG}, s81')
        for kt, Sx in enumerate((S0, S1)):
            for i in range(4): a(f'v_cndmask_b32 v{Sx+i}, v{NEG}, v{Sx+i}, s[{64+8*kt+2*i}:{65+8*kt+2*i}]')
        MX = 117
        a(f'v_max3_f32 v{MX}, v{S0}, v{S0+1}, v{S0+2}\nv_max3_f32 v{MX}, v{MX}, v{S0+3}, v{S1}\nv_max3_f32 v{MX}, v{MX}, v{S1+1}, v{S1+2}\nv_max_f32 v{MX}, v{MX}, v{S1+3}')
        a.wait(vm=0)
        skip = a.newlabel('fw')
        a(f's_cmp_lg_u32 {S_W}, 0\ns_cbranch_scc1 {skip}\ns_add_u32 s21, {S_FB}, {hex(L.F_M)}')
        self.spin4(f'v{V_Z}', 's21', KM)
        self.tstamp(4, 252)
        a(f'{skip}:\ns_barrier')
        a.forget()
        for sl in range(4):
            a(f'buffer_load_dwordx4 {vr(KM+4*sl,4)}, {l16}, {WS}, s84 offen offset:{1024*sl} sc1')
        a(f's_lshl_b32 s21, s83, 11\ns_add_u32 s21, s21, s84')
        for sl in range(2):
            a(f'buffer_load_dwordx2 {vr(VM+2*sl,2)}, v{tv("vml")}, {WS}, s21 offen offset:{1024*sl} sc1')
        for sl in range(4):
            a(f'{mf32} {vr(SM,4)}, {vr(KM+4*sl,4)}, {vr(Q+4*sl,4)}, {vr(SM,4) if sl else 0}')
        a(f'v_max3_f32 v{MX}, v{MX}, v{SM}, v{SM+1}')
        self.xlane('v_max_f32', MX, 118)
        a(f'v_mul_f32 v{MX}, s80, v{MX}')
        E = [S0 + i for i in range(4)] + [S1 + i for i in range(4)] + [SM, SM + 1]
        for e in E: a(f'v_fma_f32 v{e}, v{e}, s80, -v{MX}')
        for e in E: a(f'v_exp_f32 v{e}, v{e}')
        a(f'{cvt} v{PX}, v{S0}, v{S0+1}\n{cvt} v{PX+1}, v{S0+2}, v{S0+3}\n{cvt} v{PX+2}, v{S1}, v{S1+1}\n{cvt} v{PX+3}, v{S1+2}, v{S1+3}')
        a(f'{cvt} v{PM}, v{SM}, v{SM+1}\nv_mov_b32 v{PM+1}, 0\nv_mov_b32 v{PM+2}, 0\n{cvt} v{PM+3}, v{SM}, v{SM+1}')
        for sl in range(2):
            f1, f2 = V + 8 * sl, V + 8 * sl + 4
            for p in range(2):
                d = vr(D + 8 * sl + 4 * p, 4)
                X = f1 if p == 0 else f2; Y = f2 + 2 if p == 0 else f1 + 2
                a(f'{mf16} {d}, {vr(X,2)}, {vr(PX,2)}, 0')
                a(f'{mf16} {d}, {vr(Y,2)}, {vr(PX+2,2)}, {d}')
                a(f'{mf16} {d}, {vr(VM+2*sl,2)}, {vr(PM+2*p,2)}, {d}')
        LS = 119
        a(f'v_add_f32 v{LS}, v{E[0]}, v{E[1]}')
        for e in E[2:]: a(f'v_add_f32 v{LS}, v{LS}, v{e}')
        self.xlane('v_add_f32', LS, 118)
        a(f'v_rcp_f32 v{LS}, v{LS}\nv_mul_f32 v{LS}, v{LS}, v{G}')
        for i in range(16): a(f'v_mul_f32 v{D+i}, v{D+i}, v{LS}')
        for i in range(8): a(f'{cvt} v{D+i}, v{D+2*i}, v{D+2*i+1}')
        for sl in range(2): a(f'ds_write_b128 v{tv("oxw")}, {vr(D+4*sl,4)} offset:{1024*sl}')
        a.wait(lgkm=0)
        a('s_barrier')
        for qt in range(2):
            for sl in range(4):
                a(f'ds_read_b128 {vr(OF+16*qt+4*sl,4)}, v{tv("oxr")} offset:{4096*qt+1024*sl}')
        a(f's_xor_b32 s86, s86, {1<<20}\ns_lshl_b32 s21, {S_RANK}, 10\ns_add_u32 s21, s21, s86\ns_add_u32 s22, s21, {16*32768}')
        for qt in range(2):
            for T in range(4):
                for p in range(2):
                    d = vr(AC + 32 * qt + 8 * T + 4 * p, 4)
                    for ks in range(4):
                        a(f'{mf32} {d}, {ar(wof(T,p,ks),4)}, {vr(OF+16*qt+4*ks,4)}, {d}')
        for qt in range(2):
            for T in range(4):
                r = AC + 32 * qt + 8 * T
                for i in range(4): a(f'{cvt} v{r+i}, v{r+2*i}, v{r+2*i+1}')
        a(f's_lshl_b32 s23, {S_W}, 2\ns_add_u32 s23, s23, {S_FB}\ns_add_u32 s87, s23, {hex(L.F_P)}')
        a(f's_cmp_eq_u32 {S_TFAST}, 0\ns_cbranch_scc1 L_F_slowst')
        for cf in ('', 'sc1'):
            if cf: a('L_F_slowst:')
            for qt in range(2):
                for T in range(4):
                    r = AC + 32 * qt + 8 * T
                    a(f'buffer_store_dwordx4 {vr(r,4)}, v{tv("fpst")}, {WS}, {"s21" if qt == 0 else "s22"} offen offset:{64*T} {cf}')
            a.wait(vm=0)
            a(f'buffer_store_dword v{tv("oxr")}, v{tv("one")}, {WS}, s87 offen {cf}')
            if not cf: a('s_branch L_F_stdone')
        a('L_F_stdone:')
        self.tstamp(5, 252)
        a(f's_lshl_b32 s21, {S_FS}, 11\ns_add_u32 s21, s21, {hex(L.F_P)}')
        self.spin4(f'v{tv("pfl")}', 's21', Q, n=1, sleep=1)
        a.forget()
        a(f's_lshl_b32 s21, {S_RANK}, 15\ns_add_u32 s21, s21, s86')
        for l in range(8):
            a(f'buffer_load_dwordx4 {vr(Q+4*l,4)}, v{tv("fpld")}, {WS}, s21 offen sc1')
            if l < 7: a('s_add_u32 s21, s21, 4096')
        for l in range(8):
            a(f'{mf32} {vr(S0,4)}, {vr(tv("self0"),4)}, {vr(Q+4*l,4)}, {vr(S0,4) if l else 0}')
        a(f's_lshl_b32 s21, {S_FS}, 5\ns_add_u32 s21, s21, {S_RANK}\ns_lshl_b32 s21, s21, 10')
        a(f'{cvt} v{S0}, v{S0}, v{S0+1}\n{cvt} v{S0+1}, v{S0+2}, v{S0+3}')
        a(f'buffer_store_dwordx2 {vr(S0,2)}, v{tv("outst")}, {ST}, s21 offen')
        a(f's_add_u32 {S_FS}, {S_FS}, 7\ns_cmp_lt_u32 {S_FS}, 64\ns_cbranch_scc1 L_F_loop')
        a.wait(vm=0)
        self.tstamp(6, 40)
        a('s_endpgm')
```

```python
import sys, math
from asmlib import Asm
import layout as L

KNAME = 'gated_mix__memory_aug_recurrent_mem_tr__sliding_local_dilated__prompt_kernel'

from gen_common import *

class Gen:
    def __init__(self, opt):
        self.o = opt
        self.a = Asm()

    def prologue(self):
        a = self.a; o = self.o
        a(f'''
        s_cmp_ge_u32 s2, 256
        s_cbranch_scc1 L_exit
        {'s_memrealtime s[30:31]' if o.get('stamp') else ''}
        s_load_dwordx16 s[32:47], s[0:1], 0
        s_load_dwordx8 s[48:55], s[0:1], 64
        s_load_dwordx4 s[56:59], s[0:1], 96
        s_getreg_b32 s20, hwreg(HW_REG_XCC_ID)
        v_lshrrev_b32 v1, 6, v0
        s_and_b32 s20, s20, 7
        v_readfirstlane_b32 {S_W}, v1
        s_mov_b32 {SPIN}, 0x400000
        ''')
        if o.get('fake_xcc'):
            a('s_and_b32 s20, s2, 1\ns_add_u32 s20, s20, 1')
        a.wait(lgkm=0)
        if o.get('touch'):
            MBy = 1 << 20
            touch = [(p, off) for p in (P_WO, P_WQ, P_WK, P_WV) for off in (0, 2 * MBy, 4 * MBy - 128)]
            touch += [(P_X, 2 * MBy - 128), (P_GATE, 0), (P_MEM0, 0), (P_WQKV, 0), (P_WQKV, 512 * 3072 - 128), (P_WOB, 0), (P_DBG, 0)]
            touch += [(P_WS, L.GATE + 16384), (P_WS, L.RIN + MBy), (None, 0)]
            a(f'v_mov_b32 v30, s{P_X}\nv_mov_b32 v31, s{P_X+1}')
            for i, (p, off) in enumerate(touch):
                if p is None: a('s_getpc_b64 s[22:23]\ns_add_u32 s22, s22, 0x8000\ns_addc_u32 s23, s23, 0')
                elif off: a(f's_add_u32 s22, s{p}, {hex(off)}\ns_addc_u32 s23, s{p+1}, 0')
                lo, hi = ('s22', 's23') if (off or p is None) else (f's{p}', f's{p+1}')
                a(f'v_writelane_b32 v30, {lo}, {i+1}\nv_writelane_b32 v31, {hi}, {i+1}')
            a('global_load_dword v29, v[30:31], off')
        set_srd(a, 4, P_WS, L.WS_BYTES)
        set_srd(a, 12, P_DBG, 256)
        a(f'''
        s_mul_i32 s21, s20, 24
        s_add_u32 s21, s21, 40
        s_cmp_eq_u32 s20, 0
        s_cselect_b32 s21, 0, s21
        v_mov_b32 v2, s21
        v_mov_b32 v3, 1
        v_cmp_ne_u32 vcc, 0, v0
        v_mov_b32 v4, {hex(L.OOB)}
        v_cndmask_b32 v2, v2, v4, vcc
        ''')
        a(f'buffer_atomic_add v3, v2, {ST}, 0 offen sc0')
        set_srd(a, 8, P_X, 2048 * 1024)
        a(f'''
        v_and_b32 v5, 63, v0
        v_lshlrev_b32 v5, 4, v5
        s_lshl_b32 s22, s2, 13
        s_lshl_b32 s23, {S_W}, 11
        s_add_u32 s22, s22, s23
        buffer_load_dwordx4 v[8:11], v5, {SA}, s22 offen
        buffer_load_dwordx4 v[12:15], v5, {SA}, s22 offen offset:1024
        ''')
        set_srd(a, 24, P_GATE, 1024)
        a(f'buffer_load_dwordx4 v[16:19], v5, s[24:27], 0 offen')
        a(f'''
        v_mov_b32 v20, -1
        v_mov_b32 v21, -1
        v_mov_b32 v22, -1
        v_mov_b32 v23, -1
        v_mov_b32 v24, 0
        v_mov_b32 v25, 0
        v_mov_b32 v26, 0
        v_mov_b32 v27, 0
        v_lshlrev_b32 v6, 4, v0
        s_lshl_b32 s22, s2, 12
        s_add_u32 s22, s22, {hex(L.RIN)}
        buffer_store_dwordx4 v[20:23], v6, {WS}, s22 offen sc1
        v_cmp_le_u32 vcc, 0x80, v0
        s_lshl_b32 s22, s2, 11
        s_add_u32 s22, s22, {hex(L.FLG)}
        v_cndmask_b32 v7, v6, v4, vcc
        ''')
        if o.get('keep_kv_flags'):
            a(f's_cmp_lt_u32 s2, 64\ns_cselect_b32 s22, {hex(L.OOB)}, s22')
        a(f'buffer_store_dwordx4 v[24:27], v7, {WS}, s22 offen sc1')
        a.wait(vm=5)
        a(f'''
        v_mov_b32 v2, {L.L_MEMX}
        s_cmp_lg_u32 {S_W}, 0
        s_cbranch_scc1 L_tk_skip
        v_readfirstlane_b32 s21, v3
        v_mov_b32 v3, s21
        ds_write_b32 v2, v3
        ''')
        a.wait(lgkm=0)
        a('L_tk_skip:\ns_barrier\nds_read_b32 v3, v2')
        a.wait(lgkm=0)
        a(f'''
        v_readfirstlane_b32 {S_RANK}, v3
        s_mov_b32 {S_TEAM}, s20
        s_mov_b32 s19, 0
        s_cmp_lt_u32 {S_RANK}, 32
        s_cbranch_scc1 L_role_ok
        ''')
        self.vq_role = list(a.vq)
        a.auto_vm = False
        a(f'''
        s_mov_b32 s19, 1
        v_and_b32 v2, 7, v0
        v_mul_u32_u24 v28, 24, v2
        v_add_u32 v28, 40, v28
        v_cmp_eq_u32 vcc, 0, v2
        v_cndmask_b32 v28, v28, v2, vcc
        s_mov_b32 s21, {SPIN}
        L_ov_poll:
        buffer_load_dword v29, v28, {ST}, 0 offen sc1
        s_waitcnt vmcnt(0)
        s_mov_b32 s22, 0
        ''')
        for x in range(8):
            a(f'v_readlane_b32 s{64+x}, v29, {x}')
        a('s_nop 1')
        for x in range(8):
            a(f's_add_u32 s22, s22, s{64+x}')
        a(f'''
        s_cmp_ge_u32 s22, 256
        s_cbranch_scc1 L_ov_have
        s_sub_u32 s21, s21, 1
        s_cbranch_scc1 L_exit
        s_sleep 4
        s_branch L_ov_poll
        L_ov_have:
        s_sub_u32 s22, {S_RANK}, 32
        ''')
        for x in range(8):
            a(f'''
            s_max_u32 s23, s{64+x}, 32
            s_sub_u32 s23, s23, 32
            s_cmp_gt_u32 s20, {x}
            s_cselect_b32 s23, s23, 0
            s_add_u32 s22, s22, s23
            ''')
        for x in range(8):
            a(f'''
            s_min_u32 s23, s{64+x}, 32
            s_sub_u32 s21, 32, s23
            s_mov_b32 {S_TEAM}, {x}
            s_add_u32 {S_RANK}, s23, s22
            s_cmp_lt_u32 s22, s21
            s_cbranch_scc1 L_role_ok
            s_sub_u32 s22, s22, s21
            ''')
        a('s_branch L_exit')
        a.auto_vm = True
        a('L_role_ok:')
        a(f's_cmp_eq_u32 {S_TEAM}, 0\ns_cbranch_scc1 L_R')
        a('s_branch L_worker')

    def gate_and_store(self, tmp=28):
        a = self.a
        a('v_mov_b32 v20, 0\nv_mov_b32 v21, 0')
        for i in range(4):
            a(f'v_dot2c_f32_bf16 v20, v{8+i}, v{16+i}\nv_dot2c_f32_bf16 v21, v{12+i}, v{16+i}')
        a('s_nop 2')
        a('v_permlane32_swap_b32 v20, v21\nv_add_f32 v20, v20, v21')
        a('v_mov_b32 v21, v20\nv_permlane16_swap_b32 v20, v21\nv_add_f32 v20, v20, v21')
        for sh in (8, 4, 2, 1):
            a(f'v_add_f32_dpp v20, v20, v20 row_ror:{sh} row_mask:0xf bank_mask:0xf')
        a(f'''
        v_mul_f32 v20, 0xbfb8aa3b, v20
        v_exp_f32 v20, v20
        v_add_f32 v20, 1.0, v20
        v_rcp_f32 v20, v20
        v_and_b32 v21, 63, v0
        v_lshrrev_b32 v22, 5, v21
        v_lshlrev_b32 v22, 2, v22
        v_and_b32 v21, 31, v21
        v_cmp_ne_u32 vcc, 0, v21
        v_mov_b32 v23, {hex(L.OOB)}
        v_cndmask_b32 v22, v22, v23, vcc
        s_lshl_b32 s22, s2, 5
        s_lshl_b32 s23, {S_W}, 3
        s_add_u32 s22, s22, s23
        s_add_u32 s22, s22, {hex(L.GATE)}
        buffer_store_dword v20, v22, {WS}, s22 offen sc1
        ''')

    def signal_init(self, tid=0, t=20, barrier=True):
        a = self.a
        lab = a.newlabel('sig')
        set_srd(a, 12, P_DBG, 256)
        if barrier: a('s_barrier')
        a(f'''
        s_cmp_lg_u32 {S_W}, 0
        s_cbranch_scc1 {lab}
        s_and_b32 s21, s2, 3
        s_lshl_b32 s21, s21, 6
        s_add_u32 s21, s21, 60
        v_mov_b32 v{t}, s21
        v_mov_b32 v{t+1}, 1
        v_mov_b32 v{t+2}, {hex(L.OOB)}
        v_and_b32 v{t+3}, 63, v{tid}
        v_cmp_ne_u32 vcc, 0, v{t+3}
        v_cndmask_b32 v{t}, v{t}, v{t+2}, vcc
        buffer_atomic_add v{t+1}, v{t}, {ST}, 0 offen
        {lab}:
        ''')

    def wait_init(self, t0=20, tid=0, sleep=16):
        a = self.a
        lab = a.newlabel('wi'); ok = a.newlabel('wiok')
        set_srd(a, 12, P_DBG, 256)
        sv = a.auto_vm; a.auto_vm = False
        a(f'''
        v_and_b32 v{t0}, 3, v{tid}
        v_lshlrev_b32 v{t0}, 6, v{t0}
        v_add_u32 v{t0}, 60, v{t0}
        s_mul_i32 s21, {S_TEAM}, 24
        s_add_u32 s21, s21, 40
        s_cmp_eq_u32 {S_TEAM}, 0
        s_cselect_b32 s21, 0, s21
        v_mov_b32 v{t0+2}, s21
        s_mov_b32 s23, {SPIN}
        {lab}:
        buffer_load_dword v{t0+1}, v{t0}, {ST}, 0 offen sc1
        buffer_load_dword v{t0+3}, v{t0+2}, {ST}, 0 offen sc1
        s_waitcnt vmcnt(0)
        v_readlane_b32 s84, v{t0+1}, 0
        v_readlane_b32 s85, v{t0+1}, 1
        v_readlane_b32 s86, v{t0+1}, 2
        v_readlane_b32 s87, v{t0+1}, 3
        v_readlane_b32 s21, v{t0+3}, 0
        s_nop 1
        s_add_u32 s84, s84, s85
        s_add_u32 s86, s86, s87
        s_add_u32 s84, s84, s86
        s_cmp_ge_u32 s84, 256
        s_cbranch_scc1 {ok}
        s_sleep {sleep}
        s_sub_u32 s23, s23, 1
        s_cbranch_scc0 {lab}
        {ok}:
        ''')
        a.auto_vm = sv
        a.forget()

    def tstamp(self, i, t):
        if not self.o.get('stamp'): return
        a = self.a
        lab = a.newlabel('ts')
        a(f'''
        s_cmp_lg_u32 {S_W}, 0
        s_cbranch_scc1 {lab}
        s_memrealtime s[90:91]
        s_lshl_b32 s92, {S_TEAM}, 5
        s_add_u32 s92, s92, {S_RANK}
        s_lshl_b32 s92, s92, 7
        s_add_u32 s92, s92, {hex(L.DBG + 65536 + 4 * i)}
        s_waitcnt lgkmcnt(0)
        v_mov_b32 v{t}, s90
        v_mov_b32 v{t+1}, 0
        buffer_store_dword v{t}, v{t+1}, {WS}, s92 offen
        {'v_mov_b32 v%d, s30' % t if i == 1 else ''}
        {'buffer_store_dword v%d, v%d, %s, s92 offen offset:124' % (t, t+1, WS) if i == 1 else ''}
        s_waitcnt vmcnt(0)
        {lab}:
        ''')

    def mark(self, i):
        if self.o.get('stamp'): self.a.raw(f'    s_memrealtime s[{82+2*i if i < 4 else 86+2*i}:{83+2*i if i < 4 else 87+2*i}]')
    def dump_marks(self, t):
        if not self.o.get('stamp'): return
        a = self.a
        a(f's_lshl_b32 s92, {S_TEAM}, 5\ns_add_u32 s92, s92, {S_RANK}\ns_lshl_b32 s92, s92, 7\ns_add_u32 s92, s92, {hex(L.DBG + 65536)}\ns_waitcnt lgkmcnt(0)\nv_mov_b32 v{t+1}, 0')
        for i in range(7):
            a(f'v_mov_b32 v{t}, s{82+2*i if i < 4 else 86+2*i}\nbuffer_store_dword v{t}, v{t+1}, {WS}, s92 offen offset:{4*(8+i)}')

    def dma_chunk(self, voff, soff, stride, n=4):
        a = self.a
        for i in range(n):
            a(f'buffer_load_dwordx4 {voff}, {SA}, {soff} offen lds')
            a(f's_add_u32 m0, m0, 1024')
            if i < n - 1: a(f's_add_u32 {soff}, {soff}, {16*stride}')

    def dma_block(self, voff, soff, stride):
        a = self.a
        for i in range(16):
            a(f'buffer_load_dwordx4 {voff}, {SA}, {soff} offen lds')
            if i < 15: a(f's_add_u32 m0, m0, 1056\ns_add_u32 {soff}, {soff}, {stride}')

    def load_table(self, label, dst, ndw, tmp):
        a = self.a
        pc = a.newlabel('pc')
        a(f'''
        s_getpc_b64 s[12:13]
        {pc}:
        s_add_u32 s12, s12, {label}-{pc}
        s_addc_u32 s13, s13, 0
        s_mov_b32 s14, {256*ndw*4}
        s_mov_b32 s15, 0x20000
        v_mul_u32_u24 v{tmp}, {ndw*4}, v0
        ''')
        for i in range(0, ndw, 4):
            a(f'buffer_load_dwordx4 {vr(dst+i,4)}, v{tmp}, {ST}, 0 offen offset:{i*4}')

from rrole import RRole
from workers import Workers

class Full(Gen, RRole, Workers):
    def build(self):
        a = self.a
        self.prologue()
        self.r_role()
        self.worker_role()
        a('L_exit:\ns_endpgm')
        a.timed = not self.o.get('untimed')
        n = a.pad_hazards()
        hdr = open('cdna_kernels/' + KNAME[:-7] + '.s.ref').read().split('\n')
        hdr = [h for h in hdr if h.startswith(';') and '@launch' not in h and 'Override' not in h and 'grid=ceil' not in h]
        txt = '\n'.join(hdr) + f'\n; @launch grid=(256,1,1) block=(256,1,1) lds={L.LDS_BYTES}\n'
        txt += f'.amdgcn_target "amdgcn-amd-amdhsa--gfx950"\n.text\n.globl {KNAME}\n.p2align 8\n.type {KNAME},@function\n{KNAME}:\n'
        txt += a.text()
        txt += self.tables()
        txt += f'''.section .rodata,"a"
.p2align 6
.amdhsa_kernel {KNAME}
  .amdhsa_next_free_vgpr 512
  .amdhsa_next_free_sgpr 102
  .amdhsa_accum_offset 256
  .amdhsa_group_segment_fixed_size 0
  .amdhsa_kernarg_size 112
  .amdhsa_user_sgpr_count 2
  .amdhsa_user_sgpr_kernarg_segment_ptr 1
  .amdhsa_system_sgpr_workgroup_id_x 1
  .amdhsa_float_denorm_mode_32 3
.end_amdhsa_kernel
'''
        return txt, n

if __name__ == '__main__':
    opt = {}
    out = 'cdna_kernels/' + KNAME[:-7] + '.s'
    for arg in sys.argv[1:]:
        if arg.startswith('-o'): out = arg[2:]
        elif '=' in arg:
            k, v = arg.split('='); opt[k] = int(v)
        else: opt[arg] = 1
    txt, n = Full(opt).build()
    open(out, 'w').write(txt)
    print('written', out, len(txt), 'bytes; hazard pad states', n)
```

```python
import re

REG_RE = re.compile(r'^(-|\|)?([vas])(?:(\d+)|\[(\d+):(\d+)\])\|?$')

def parse_reg(tok):
    tok = tok.strip()
    if tok.startswith('abs(') and tok.endswith(')'):
        tok = tok[4:-1]
    if tok in ('vcc',):
        return {('s', 106), ('s', 107)}
    if tok == 'vcc_lo': return {('s', 106)}
    if tok == 'vcc_hi': return {('s', 107)}
    if tok == 'exec': return {('s', 126), ('s', 127)}
    if tok == 'exec_lo': return {('s', 126)}
    if tok == 'exec_hi': return {('s', 127)}
    if tok == 'm0': return {('s', 124)}
    m = REG_RE.match(tok)
    if not m:
        return set()
    k = m.group(2)
    if m.group(3) is not None:
        return {(k, int(m.group(3)))}
    return {(k, i) for i in range(int(m.group(4)), int(m.group(5)) + 1)}

TRANS = ('v_exp_', 'v_log_', 'v_rcp_', 'v_rsq_', 'v_sqrt_', 'v_sin_', 'v_cos_')
VCC = {('s', 106), ('s', 107)}
EXEC = {('s', 126), ('s', 127)}
M0 = {('s', 124)}

class Ins:
    __slots__ = ('text', 'op', 'kind', 'defs', 'uses', 'srcc', 'srcab', 'passes', 'label', 'target',
                 'dpp', 'states', 'wide_store_data', 'lds_dma', 'store_data', 'note')
    def __init__(self, text):
        self.text = text
        self.label = None; self.target = None
        self.defs = set(); self.uses = set(); self.srcc = set(); self.srcab = set()
        self.passes = 0; self.dpp = False; self.states = 1
        self.wide_store_data = set(); self.lds_dma = False; self.note = None
        t = text.split(';')[0].strip()
        if not t or t.startswith('.') and not t.endswith(':'):
            self.kind = 'dir'; self.op = t; self.states = 0; return
        if t.endswith(':'):
            self.kind = 'label'; self.label = t[:-1]; self.op = ''; self.states = 0; return
        parts = t.split(None, 1)
        op = parts[0]; self.op = op
        rest = parts[1] if len(parts) > 1 else ''
        ops = [o.strip() for o in re.split(r',(?![^\[]*\])', rest)] if rest else []
        mods = []
        if ops:
            last = ops[-1].split()
            if op.startswith('s_waitcnt') or op.startswith('s_getreg') or op.startswith('s_setreg'):
                pass
            else:
                ops[-1] = last[0] if last else ''
                mods = last[1:]
        R = [parse_reg(o) for o in ops]
        allm = ' '.join(mods)
        if op.startswith('v_mfma') or op.startswith('v_smfmac'):
            self.kind = 'mfma'
            self.passes = 8 if '32x32' in op else 4
            if '_f32_16x16x4_f32' in op or '32x32x2_f32' in op: raise ValueError('sgemm not modelled')
            self.defs = set(R[0])
            if op.startswith('v_smfmac'):
                self.srcc = set(R[0]); self.srcab = R[1] | R[2] | R[3]
            else:
                self.srcc = set(R[3]); self.srcab = R[1] | R[2]
            self.uses = self.srcc | self.srcab | EXEC
        elif op.startswith('v_'):
            self.kind = 'valu'
            self.dpp = ('_dpp' in op) or ('row_' in allm) or ('quad_perm' in allm) or ('wave_' in allm)
            if op.startswith('v_permlane') and 'swap' in op:
                self.defs = R[0] | R[1]; self.uses = R[0] | R[1]
            elif op.startswith('v_cmp'):
                self.defs = set(R[0]); self.uses = set().union(*R[1:])
                if op.startswith('v_cmpx'): raise ValueError('cmpx not modelled')
            elif op.startswith(('v_add_co', 'v_sub_co', 'v_addc_co', 'v_subb_co', 'v_subrev_co')):
                self.defs = R[0] | R[1]; self.uses = set().union(*R[2:])
            else:
                self.defs = set(R[0]); self.uses = set().union(*R[1:]) if len(R) > 1 else set()
                if op.startswith(('v_fmac', 'v_dot2c', 'v_pk_fmac', 'v_writelane')):
                    self.uses |= R[0]
            self.uses |= EXEC
        elif op.startswith('ds_'):
            self.kind = 'ds'
            if op.startswith(('ds_read', 'ds_bpermute', 'ds_permute', 'ds_swizzle')) or '_rtn' in op:
                self.defs = set(R[0]); self.uses = set().union(*R[1:])
            else:
                self.uses = set().union(*R)
            self.uses |= EXEC
        elif op.startswith(('buffer_', 'global_')):
            self.kind = 'vmem'
            if op in ('buffer_inv', 'buffer_wbl2'):
                pass
            elif 'load' in op:
                if 'lds' in mods or '_lds_' in op:
                    self.lds_dma = True; self.uses = set().union(*R) | M0
                else:
                    self.defs = set(R[0]); self.uses = set().union(*R[1:])
            elif 'atomic' in op:
                self.uses = set().union(*R)
                if 'sc0' in mods:
                    self.defs = set(R[0])
            else:
                self.uses = set().union(*R)
                if 'x3' in op or 'x4' in op:
                    self.wide_store_data = set(R[0]) if op.startswith('buffer') else set(R[1])
            self.uses |= EXEC
        elif op.startswith('s_'):
            self.kind = 'salu'
            if op == 's_nop':
                self.states = int(ops[0], 0) + 1
            elif op in ('s_branch',) or op.startswith('s_cbranch'):
                self.kind = 'branch'; self.target = ops[0]
                if 'vcc' in op: self.uses = set(VCC)
                if 'exec' in op: self.uses = set(EXEC)
            elif op in ('s_endpgm',):
                self.kind = 'end'
            elif op.startswith(('s_waitcnt', 's_barrier', 's_sleep', 's_setprio', 's_cmp', 's_bitcmp')):
                self.uses = set().union(*R) if R else set()
            elif op.startswith(('s_load', 's_buffer_load', 's_memtime', 's_memrealtime')):
                self.kind = 'smem'; self.defs = set(R[0]); self.uses = set().union(*R[1:]) if len(R) > 1 else set()
            else:
                self.defs = set(R[0]) if R else set()
                self.uses = set().union(*R[1:]) if len(R) > 1 else set()
                if 'saveexec' in op: self.defs |= EXEC; self.uses |= EXEC
                if op.startswith(('s_addk', 's_mulk', 's_cmov', 's_bitset')): self.uses |= R[0]
        else:
            raise ValueError('unknown op: ' + text)

def vregs(s):
    return {r for r in s if r[0] in 'va'}
def sregs(s):
    return {r for r in s if r[0] == 's'}

def required(p, c):
    need = 0
    if p.kind == 'valu':
        pv = vregs(p.defs); ps = sregs(p.defs)
        if c.kind == 'mfma' and (pv & (c.srcab | c.srcc)): need = max(need, 2)
        if c.kind == 'valu':
            if c.dpp and (pv & c.uses): need = max(need, 2)
            if c.op.startswith('v_permlane') and (pv & c.uses): need = max(need, 2)
            if c.op.startswith(('v_readlane', 'v_readfirstlane')) and (pv & c.uses): need = max(need, 1)
            if p.op.startswith(TRANS) and not c.op.startswith(TRANS) and (pv & c.uses): need = max(need, 1)
            if (ps - EXEC) & c.uses:
                need = max(need, 4 if c.op.startswith(('v_readlane', 'v_writelane')) else 2)
            if ('sdwa' in p.op or 'op_sel' in p.text and not p.op.startswith('v_pk')) and (pv & (c.uses | c.defs)): need = max(need, 1)
        if p.op.startswith(TRANS) and c.kind in ('mfma', 'ds', 'vmem') and (pv & c.uses): need = max(need, 2 if c.kind == 'mfma' else 1)
        if c.kind in ('vmem',) and (ps & c.uses): need = max(need, 5)
        if c.kind in ('salu', 'smem') and (ps & c.uses): need = max(need, 1)
    if p.kind == 'mfma':
        P = p.passes
        if c.kind == 'mfma':
            if p.defs & c.srcab: need = max(need, {4: 8, 8: 12}[P])
            if p.defs & c.srcc:
                if not (p.defs == c.srcc and p.passes == c.passes): need = max(need, {4: 6, 8: 10}[P])
            elif (p.defs & c.defs) and p.passes != c.passes:
                need = max(need, {4: 6, 8: 10}[P])
        elif c.kind in ('valu', 'ds', 'vmem'):
            if p.defs & (c.uses | c.defs): need = max(need, {4: 8, 8: 12}[P])
            if c.kind == 'valu' and (p.srcc & c.defs): need = max(need, {4: 3, 8: 7}[P])
    if p.kind == 'salu' and (p.defs & M0) and c.kind == 'vmem' and c.lds_dma: need = max(need, 1)
    if p.kind == 'vmem' and p.wide_store_data and (p.wide_store_data & c.defs):
        need = max(need, 2 if c.kind in ('valu', 'mfma') else 1)
    return need

class Asm:
    def __init__(self):
        self.ins = []
        self.lq = []
        self.vq = []
        self.auto_vm = True
        self.auto_lgkm = True
        self.uid = 0
        self.hot = False
        self.timed = True
        self.dummy = 'v_mov_b32 v1, v1'
    def newlabel(self, base):
        self.uid += 1
        return f'L_{base}_{self.uid}'
    def raw(self, text):
        self.ins.append(Ins(text))
    def _autowait(self, I):
        touched = I.uses | I.defs
        need_l = None; need_v = None
        if self.auto_lgkm:
            for i, d in enumerate(self.lq):
                if d and (d & touched): need_l = len(self.lq) - 1 - i
        if self.auto_vm:
            for i, d in enumerate(self.vq):
                if d and (d & touched): need_v = len(self.vq) - 1 - i
        if need_l is not None or need_v is not None:
            self.wait(vm=need_v, lgkm=need_l)
    def wait(self, vm=None, lgkm=None):
        s = []
        if vm is not None:
            vm = min(vm, 63); s.append(f'vmcnt({vm})')
            self.vq = self.vq[len(self.vq) - vm:] if vm < len(self.vq) else self.vq
            if vm == 0: self.vq = []
        if lgkm is not None:
            lgkm = min(lgkm, 15); s.append(f'lgkmcnt({lgkm})')
            self.lq = self.lq[len(self.lq) - lgkm:] if lgkm < len(self.lq) else self.lq
            if lgkm == 0: self.lq = []
        if s: self.raw('    s_waitcnt ' + ' '.join(s))
    def wait_lds_writes(self):
        idx = [i for i, d in enumerate(self.lq) if not d]
        if idx: self.wait(lgkm=len(self.lq) - 1 - idx[-1])
    def __call__(self, text):
        for line in text.split('\n'):
            if not line.strip(): continue
            if self.hot and getattr(self, 'filt', None):
                line = self.filt(line)
                if not line: continue
            I = Ins('    ' + line.strip() if not line.strip().endswith(':') else line.strip())
            if I.kind in ('label', 'branch', 'end'):
                pass
            elif I.kind != 'dir':
                self._autowait(I)
            I.note = 'hot' if self.hot else None
            self.ins.append(I)
            if I.kind == 'ds': self.lq.append(set(I.defs) or None)
            if I.kind == 'vmem' and I.op not in ('buffer_inv', 'buffer_wbl2'): self.vq.append(set(I.defs) or None)
            if I.kind == 'smem': self.smem_pending = True
    def label(self, name):
        self(name + ':')
    def forget(self, vm=True, lgkm=True):
        if vm: self.vq = []
        if lgkm: self.lq = []
    def comment(self, s):
        self.ins.append(Ins('; ' + s))
    def pad_hazards(self, maxdist=14):
        ins = self.ins
        nins = 0
        i = 0
        while i < len(ins):
            c = ins[i]
            if c.kind in ('valu', 'mfma', 'ds', 'vmem', 'salu', 'smem') and 'padded by hand' not in c.text:
                labels = None
                deficit = self._deficit(i, c, maxdist)
                if deficit > 0:
                    n = deficit
                    pads = []
                    while n > 0:
                        if getattr(c, 'note', None) == 'hot' and n > 2:
                            pads.append(Ins('    s_nop 1')); pads.append(Ins('    ' + self.dummy)); n -= 3
                        else:
                            k = min(n, 16); pads.append(Ins(f'    s_nop {k-1}')); n -= k
                    ins[i:i] = pads
                    self._idx = None
                    i += len(pads); nins += deficit
                    continue
            i += 1
        return nins
    def _branches_to(self):
        d = {}
        for j, x in enumerate(self.ins):
            if x.kind == 'branch': d.setdefault(x.target, []).append(j)
        return d
    def _deficit(self, i, c, maxdist):
        if getattr(self, '_idx', None) is None: self._idx = self._branches_to()
        br = self._idx
        worst = 0
        stack = [(i - 1, 0)]
        seen = {}
        while stack:
            j, dist = stack.pop()
            while j >= 0 and dist < maxdist:
                if seen.get(j, 99) <= dist: break
                seen[j] = dist
                p = self.ins[j]
                if p.kind == 'label':
                    for b in br.get(p.label, []):
                        stack.append((b, dist))
                    k = j - 1
                    while k >= 0 and self.ins[k].kind in ('dir',): k -= 1
                    if k >= 0 and (self.ins[k].kind == 'end' or self.ins[k].op == 's_branch'): break
                    j -= 1; continue
                if p.kind != 'dir':
                    r = required(p, c)
                    if r > dist:
                        d = r - dist
                        if self.timed and p.kind == 'mfma' and j < i and getattr(c, 'note', None) == 'hot':
                            d = min(d, self._timed_deficit(j, i, r))
                        worst = max(worst, d)
                    dist += p.states
                j -= 1
        return worst
    def _timed_deficit(self, j, i, r):
        seq = self.ins[j:i + 1]
        if any(x.kind in ('label', 'branch') for x in seq): return 99
        seq = [x for x in seq if x.kind != 'dir']
        if any(x.kind == 'mfma' and x.passes != 4 for x in seq): return 99
        t = 0; last = 0; hold = 12 if seq[0].op.startswith('v_smfmac') else 8
        for k in range(1, len(seq)):
            t += 4 * seq[k - 1].states
            x = seq[k]
            if x.kind == 'mfma':
                t = max(t, last + 16); last = t; hold = 12 if x.op.startswith('v_smfmac') else 8
            elif x.kind == 'valu':
                t = max(t, last + hold)
        need = 4 * (r + 1)
        return max(0, -(-(need - t) // 4))
    def text(self):
        return '\n'.join(x.text for x in self.ins) + '\n'
```

```python
import layout as L
from gen_common import *

V_L16, V_IST, V_PUB, V_X0, V_F, V_SMW, V_OW, V_WV = 1, 2, 3, 4, 8, 9, 10, 11
KMH, VMH = 12, 16
V_IDX, V_WV2 = 18, 19
SELR, SELV, V_ONE, V_DUM, SELQ, SELK = 20, 24, 26, 27, 28, 128
V_Z = 29
VXC, VXN, KX = 32, 40, 48
WVB = 56
AQ, AK, AV = 72, 80, 88
M = 96
T = 132
WO0 = 144
V_FLAG = 0
SC = 128 ** -0.5 * 1.4426950408889634
import struct
def f2u(x): return struct.unpack('<I', struct.pack('<f', x))[0]

WO_SPILL = [(0, 0), (2, 0)]
def wo_frag(t, kb):
    order = [(t_, k_) for t_ in range(8) for k_ in range(2) if (t_, k_) not in WO_SPILL]
    return WO0 + 8 * order.index((t, kb))

LDSF = [('q', 0, 0), ('q', 0, 1), ('q', 1, 0), ('q', 1, 1), ('k', 0, 0)] + [('k', k, 1) for k in range(2, 8)] + [('k', 7, 0)] + [('v', k, p) for k in (6, 7) for p in range(2)]
AGF = [(m, k, p) for m in 'qkv' for k in range(8) for p in range(2) if (m, k, p) not in LDSF]
assert len(LDSF) == 16 and len(AGF) == 32
S_S = 's61'
S_MEMP = 's62'
S_PUBB = 's63'
S_IN0, S_IN1 = 's64', 's65'
S_INP = 's66'
S_REC = 's67'
S_FKV = 's68'
S_KVM, S_FM = 's69', 's70'
S_RST = 's71'
S_LO = 's[72:73]'
S_SC = 's74'
S_T0, S_T1 = 's75', 's76'
S_FAST = 's77'
S_TAG, S_NTAG = 's78', 's79'
S_OTAG, S_NOTAG = 's24', 's25'

class RRole:
    def smf(self, acc, A, B):
        self.a(f'v_smfmac_f32_16x16x64_bf16 {vr(acc,4)}, {vr(A,4)}, {B}, v{V_IDX}')

    def r_role(self):
        a = self.a; o = self.o
        a('L_R:')
        a.vq = list(self.vq_role)
        self.mark(0)
        VD8, VD1, VTQ, VTO, VTA = 28, 29, 30, 31, 7
        a(f"""
        v_and_b32 v1, 63, v0
        v_lshrrev_b32 v2, 4, v1
        v_and_b32 v3, 15, v1
        v_lshlrev_b32 v4, 4, v3
        v_lshl_add_u32 v{VD8}, v2, 17, v4
        v_and_b32 v4, 0x70, v4
        v_lshrrev_b32 v3, 3, v3
        v_lshl_add_u32 v4, v3, 9, v4
        v_lshl_add_u32 v{VD1}, v2, 14, v4
        s_lshl_b32 s21, {S_W}, 7
        v_add_u32 v{VD1}, s21, v{VD1}
        s_mul_i32 s78, {S_W}, {L.BLK}
        """)
        groups = [(m, b) for m in 'oqkv' for b in range(2)]
        def issue(gi):
            mat, b = groups[gi]
            if b == 0: set_srd(a, 8, {'q': P_WQ, 'k': P_WK, 'v': P_WV, 'o': P_WO}[mat], 4 << 20)
            a(f's_add_u32 m0, s78, {(gi % 2) * L.GRP}')
            if mat != 'o':
                a(f's_add_u32 s21, {S_W}, {4 * b}\ns_lshl_b32 s21, s21, 19\ns_lshl_b32 s22, {S_RANK}, 8\ns_add_u32 s21, s21, s22')
                self.dma_block(f'v{VD8}', 's21', 8192)
            else:
                a(f's_lshl_b32 s21, {S_RANK}, 17\ns_add_u32 s21, s21, {b * 65536}')
                self.dma_block(f'v{VD1}', 's21', 1024)
        issue(0)
        self.load_table('T_R', 96, 28, 7)
        issue(1)
        self.mark(1)
        self.gate_and_store()
        names = list(L.r_table().keys())
        def tv(n): return 96 + names.index(n)
        a(f'v_mov_b32 v{VTQ}, v{tv("trq")}\nv_mov_b32 v{VTO}, v{tv("tro")}\nv_add_u32 v6, 65536, v{tv("wv")}')
        a(f'buffer_load_dword v26, v{tv("mm")}, {WS}, 0 offen')
        a.auto_vm = False
        TMP = 56
        park = {}
        parkregs = [32, 64, 72, 80, 88, 124, 132, 8]
        for f in LDSF:
            if f[0] == 'k': park[f] = parkregs.pop(0)
            if f[0] == 'q': park[f] = -8 * AGF.index(('v', 3 + 2 * f[1], f[2])) - 1
        S_RDY = 's76'
        def scalars():
            a(f'''
            s_lshr_b32 s21, {S_RANK}, 2
            s_lshl_b32 {S_PUBB}, s21, 10
            s_and_b32 s22, s21, 1
            s_lshl_b32 s22, s22, 9
            s_lshr_b32 s21, s21, 1
            s_lshl_b32 s21, s21, 7
            s_add_u32 s21, s21, s22
            s_and_b32 s22, {S_RANK}, 3
            s_lshl_b32 s22, s22, 3
            s_add_u32 s75, s21, s22
            s_and_b32 s22, {S_RANK}, 2
            s_lshl_b32 s22, s22, 7
            s_add_u32 {S_PUBB}, {S_PUBB}, s22
            s_and_b32 s22, {S_RANK}, 1
            s_lshl_b32 s22, s22, 5
            s_add_u32 {S_PUBB}, {S_PUBB}, s22
            s_add_u32 {S_PUBB}, {S_PUBB}, {hex(L.RMEM)}
            s_mul_i32 {S_REC}, {S_RANK}, 24576
            s_mul_i32 s21, {S_W}, 6144
            s_add_u32 {S_REC}, {S_REC}, s21
            s_lshl_b32 {S_FKV}, {S_RANK}, 6
            s_lshl_b32 s21, {S_W}, 2
            s_add_u32 {S_FKV}, {S_FKV}, s21
            s_add_u32 {S_FM}, {S_FKV}, {hex(L.F_M - 4096)}
            s_add_u32 {S_FKV}, {S_FKV}, {hex(L.F_KV)}
            s_lshl_b32 {S_KVM}, {S_RANK}, 12
            s_lshl_b32 s21, {S_W}, 10
            s_add_u32 {S_KVM}, {S_KVM}, s21
            s_add_u32 {S_KVM}, {S_KVM}, {hex(L.KVM - 131072)}
            s_lshl_b32 s21, {S_W}, 11
            s_add_u32 {S_MEMP}, s21, {hex(L.RMEM)}
            s_lshl_b32 {S_IN0}, {S_RANK}, 6
            s_add_u32 {S_IN0}, {S_IN0}, {hex(L.RIN)}
            s_lshl_b32 {S_INP}, {S_RANK}, 13
            s_add_u32 {S_INP}, {S_INP}, s21
            s_add_u32 {S_INP}, {S_INP}, {hex(L.RIN)}
            s_mov_b32 s72, 0x33333333
            s_mov_b32 s73, 0x33333333
            s_mov_b32 {S_SC}, {hex(f2u(SC))}
            s_mov_b32 {S_S}, 0
            ''')
        def first_records(l16):
            for i in range(2):
                a(f'buffer_load_dwordx4 {vr(KX+4*i,4)}, v{l16}, {WS}, {S_REC} offen offset:{1024*i} sc1')
                a(f'buffer_load_dwordx4 {vr(VXN+4*i,4)}, v{l16}, {WS}, {S_REC} offen offset:{2048+1024*i} sc1')
        def stage_x():
            set_srd(a, 12, P_DBG, 256)
            a(f'''
            v_and_b32 v1, 3, v0
            v_lshlrev_b32 v1, 6, v1
            v_add_u32 v1, 60, v1
            v_and_b32 v2, 4, v0
            v_cmp_ne_u32 vcc, 0, v2
            v_cndmask_b32 v1, v1, 0, vcc
            v_and_b32 v2, 1, v0
            v_lshlrev_b32 v2, 11, v2
            buffer_load_dword v3, v1, {ST}, 0 offen sc1
            buffer_load_dword v4, v2, {WS}, {S_FKV} offen sc1
            ''')
        def stage_y():
            a(f'''
            v_lshl_or_b32 v140, v141, 16, v140
            v_readlane_b32 s84, v3, 0
            v_readlane_b32 s85, v3, 1
            v_readlane_b32 s86, v3, 2
            v_readlane_b32 s87, v3, 3
            v_readlane_b32 s21, v3, 4
            v_cmp_eq_u32 vcc, 0, v4
            s_mov_b32 {S_RDY}, 0
            s_add_u32 s84, s84, s85
            s_add_u32 s86, s86, s87
            s_add_u32 s84, s84, s86
            s_cmp_ge_u32 s21, 32
            s_cselect_b32 {S_FAST}, 1, 0
            s_cbranch_vccnz L_R_notyet
            s_cmp_lt_u32 s84, 256
            s_cbranch_scc1 L_R_notyet
            s_mov_b32 {S_RDY}, 1
            buffer_store_dword v140, v{tv("pub")}, {WS}, {S_PUBB} offen sc1
            ''')
            first_records(tv('l16'))
            a('L_R_notyet:')
        scalars()
        set_srd(a, 24, P_MEM0, 8192)
        a(f'buffer_load_ushort v140, v{tv("m0a")}, s[24:27], s75 offen\nbuffer_load_ushort v141, v{tv("m0a")}, s[24:27], s75 offen offset:32')
        todo = []
        self.ldsf_off = {}
        def flush(n):
            for _ in range(n):
                f, r = todo.pop(0); off = 8192 * len(self.ldsf_off)
                self.ldsf_off[f] = off
                for hh in range(2):
                    src = vr(r + 4 * hh, 4) if r >= 0 else ar(-r - 1 + 4 * hh, 4)
                    a(f'ds_write_b128 v{tv("wv") if off < 65536 else 6}, {src} offset:{off % 65536 + 1024 * hh}')
                if r >= 0: parkregs.append(r)
        for gi in range(8):
            mat, b = groups[gi]
            if gi == 0: self.mark(2)
            a.wait(vm=[16 + 4, 4 + 16, 16, 16, 16, 16, 16 + 2, 2][gi])
            if gi in (0, 2, 4, 7): self.mark(3 + [0, 2, 4, 7].index(gi))
            a('s_barrier')
            hb = (gi % 2) * L.GRP
            for x in range(4):
                dsts = []
                if mat == 'o':
                    for p in range(2):
                        t = 2 * x + p
                        dsts.append((vr, (TMP if t == 0 else 40) if (t, b) in WO_SPILL else wo_frag(t, b)))
                    offs = [0, 2112, 8448, 10560]; xo = 64 * x
                    if x == 0: a(f'v_add_u32 v{VTA}, {hb}, v{VTO}')
                else:
                    offs = [0, 1056, 512, 1568]; xo = 0
                    a(f's_xor_b32 s21, {S_W}, {x}\ns_mul_i32 s21, s21, {L.BLK}\ns_add_u32 s21, s21, {hb}\nv_add_u32 v{VTA}, s21, v{VTQ}')
                    for p in range(2):
                        f = (mat, 2 * x + b, p)
                        if f in AGF: dsts.append((ar, 8 * AGF.index(f)))
                        else:
                            if f not in park: park[f] = TMP if (f[1], f[2]) == (6, 0) else (16 if (f[1], f[2]) == (6, 1) else parkregs.pop(0))
                            if park[f] < 0: dsts.append((ar, -park[f] - 1)); todo.insert(0, (f, park[f]))
                            else: dsts.append((vr, park[f])); todo.append((f, park[f]))
                for p in range(2):
                    rf, d = dsts[p]
                    for r in range(4):
                        a(f'ds_read_b64_tr_b16 {rf(d + 2 * r, 2)}, v{VTA} offset:{xo + offs[r] + 32 * p}')
            if gi == 7:
                a.wait(vm=0); stage_y()
            a.wait(lgkm=0)
            if gi == 0:
                for i in range(2):
                    for hh in range(2):
                        a(f'ds_write_b128 v{tv("x0")}, {vr((TMP if i == 0 else 40) + 4 * hh, 4)} offset:{16384 + 8192 * i + 1024 * hh}')
            a('s_barrier')
            if gi + 2 < 8: issue(gi + 2)
            if gi == 5: stage_x()
            if gi == 2: self.signal_init(barrier=False)
            if gi == 6: flush(8)
            if gi == 7: flush(8)
        assert not todo and len(self.ldsf_off) == 16
        a.wait(lgkm=0)
        a.auto_vm = True; a.forget()
        a(f'v_mov_b32 v{V_WV2}, v6')
        for n, d in [('l16', V_L16), ('ist', V_IST), ('pub', V_PUB), ('x0', V_X0), ('x1', V_X0 + 1), ('x2', V_X0 + 2), ('x3', V_X0 + 3),
                     ('f', V_F), ('smw', V_SMW), ('ow', V_OW), ('wv', V_WV), ('idx', V_IDX), ('one', V_ONE)] + \
                    [(f'selr{i}', SELR + i) for i in range(4)] + [(f'selv{i}', SELV + i) for i in range(2)] + \
                    [('selq', SELQ), ('selq', SELQ + 3), ('selk', SELK), ('selk', SELK + 3)]:
            a(f'v_mov_b32 v{d}, v{tv(n)}')
        for d in (SELQ + 1, SELQ + 2, SELK + 1, SELK + 2): a(f'v_mov_b32 v{d}, 0')
        self.dump_marks(T + 4)
        self.tstamp(1, T + 4)
        a(f's_cmp_eq_u32 {S_RDY}, 1\ns_cbranch_scc1 L_R_ready')
        self.wait_init(t0=T + 4)
        a(f's_cmp_ge_u32 s21, 32\ns_cselect_b32 {S_FAST}, 1, 0')
        a(f'buffer_store_dword v140, v{V_PUB}, {WS}, {S_PUBB} offen sc1')
        self.spin_flag(V_FLAG, f'v{V_Z}', S_FKV)
        first_records(V_L16)
        a(f's_add_u32 s21, {S_FKV}, 2048')
        self.spin_flag(V_FLAG, f'v{V_Z}', 's21')
        a('L_R_ready:')
        a.wait(vm=0)
        a.forget()
        if o.get('force_slow'): a(f's_mov_b32 {S_FAST}, 0')
        a(f's_add_u32 {S_FKV}, {S_FKV}, 2048\nv_mov_b32 v{V_FLAG}, 1')
        for r in range(M, M + 8, 2): a(f'v_mov_b64 {vr(r,2)}, -1')
        self.tstamp(2, T + 4)
        self.tstamp(3, T + 4)
        if o.get('stamp'):
            a('s_memtime s[80:81]\ns_memrealtime s[28:29]'); a.wait(lgkm=0)
        a('s_mov_b32 s26, 0x3f803f80\ns_mov_b32 s27, 0x3f803f80\ns_mov_b32 s8, 0x3f003f00\ns_mov_b32 s9, 0x3f003f00')
        a(f'ds_write_b64 v{V_OW}, {vr(M,2)}')
        a.wait(lgkm=0)
        a(f's_cmp_eq_u32 {S_FAST}, 0\ns_cbranch_scc1 L_R_slow')
        if o.get('nostag'):
            self.r_loop('f', '')
        else:
            for w in range(1, 4): a(f's_cmp_eq_u32 {S_W}, {w}\ns_cbranch_scc1 L_R_w{w}')
            for w in range(4):
                if w: a(f'L_R_w{w}:')
                self.r_loop('f' + (str(w) if w else ''), '', wv=w)
        a('L_R_slow:')
        self.r_loop('s', 'sc1')

    def spin_flag(self, dst, voff, soff):
        a = self.a
        lab = a.newlabel('sf'); ok = a.newlabel('sfok')
        sv = a.auto_vm; a.auto_vm = False
        a(f'''
        s_mov_b32 s23, {SPIN}
        {lab}:
        buffer_load_dword v{dst}, {voff}, {WS}, {soff} offen sc1
        s_waitcnt vmcnt(0)
        v_cmp_ne_u32 vcc, 0, v{dst}
        s_cbranch_vccnz {ok}
        s_sleep 2
        s_sub_u32 s23, s23, 1
        s_cbranch_scc0 {lab}
        s_mov_b32 {SPIN}, 0x400
        {ok}:
        ''')
        a.auto_vm = sv; a.vq = []

    def poll(self, tag, dst, voff, soff, pre, check, shadow, nchk, mid=None, nmid=0):
        a = self.a
        lab = f'L_poll_{tag}'; ok = f'L_pok_{tag}'
        def issue():
            a(f'buffer_load_dwordx4 {vr(dst,4)}, v{voff}, {WS}, {soff} offen sc1')
            a(f'buffer_load_dwordx4 {vr(dst+4,4)}, v{voff}, {WS}, {soff} offen offset:1024 sc1')
        pre()
        if mid:
            issue(); mid()
            for r in range(nmid):
                check(); shadow()
                a(f's_cbranch_vccz {ok}')
        a(f's_mov_b32 s23, {SPIN}')
        a(f'{lab}:')
        issue()
        for r in range(nchk - 1):
            check(); shadow()
            a(f's_cbranch_vccz {ok}')
        a(f's_sub_u32 s23, s23, 1\ns_cbranch_scc1 L_pto_{tag}')
        check(); shadow()
        a(f's_cbranch_vccnz {lab}\n{ok}:')
        self.late.append(f'L_pto_{tag}:\ns_mov_b32 {SPIN}, 0x400\ns_waitcnt vmcnt(0)\n@SH@s_branch {ok}')
        self.late_sh.append(shadow)

    def stamp(self, i):
        if self.o.get('stamp') and (self.o.get('smask', 0x3ff) >> i) & 1: self.a.raw(f'    {"s_memrealtime" if self.o.get("rt") else "s_memtime"} s[{82+2*i}:{83+2*i}]')

    def dump_stamps(self, tg):
        a = self.a
        if not self.o.get('stamp'): return
        lab = f'L_nodump_{tg}'
        a(f's_cmp_lg_u32 {S_S}, {self.o.get("dstep", 41)}\ns_cbranch_scc1 {lab}\ns_waitcnt lgkmcnt(0)')
        a(f's_lshl_b32 {S_T0}, {S_RANK}, 8\ns_lshl_b32 {S_T1}, {S_W}, 6\ns_add_u32 {S_T0}, {S_T0}, {S_T1}\ns_add_u32 {S_T0}, {S_T0}, {hex(L.DBG)}')
        a(f'v_mov_b32 v{T+10}, 0')
        for i in range(10):
            a(f'v_mov_b32 v{T+11}, s{82+2*i}\nbuffer_store_dword v{T+11}, v{T+10}, {WS}, {S_T0} offen offset:{4*i}')
        a(f's_waitcnt vmcnt(0)\n{lab}:')

    def r_loop(self, tg, cf, wv=0):
        a = self.a; o = self.o
        mf16 = 'v_mfma_f32_16x16x16_bf16'; mf32 = 'v_mfma_f32_16x16x32_bf16'
        cvt = 'v_cvt_pk_bf16_f32'
        QP = 'quad_perm:[2,3,0,1] row_mask:0xf bank_mask:0xf'
        dum = lambda n=1: [a(a.dummy) for _ in range(n)]
        self.late = []; self.late_sh = []; self.fixups = []
        a.auto_vm = False
        B0, B1, B2 = WVB, WVB + 8, M
        ACC = {'q': AQ, 'k': AK, 'v': AV}
        def S(m, k, p, buf=None):
            f = (m, k, p)
            self.smf(ACC[m] + 4 * p, M + 4 * k, ar(8 * AGF.index(f), 8) if buf is None else vr(buf, 8))
        def V(k, p, buf=None): S('v', k, p, buf)
        def RD(buf, m, k, p, hh):
            off = self.ldsf_off[(m, k, p)]
            a(f'ds_read_b128 {vr(buf + 4*hh, 4)}, v{V_WV if off < 65536 else V_WV2} offset:{off % 65536 + hh*1024}')
        def RD2(buf, m, k, p): RD(buf, m, k, p, 0); RD(buf, m, k, p, 1)
        def pkadd(d, x, y): a(f'v_add_f32 v{d}, v{x}, v{y}\nv_add_f32 v{d+1}, v{x+1}, v{y+1}')
        def PK(d, x, y): a(f'v_pk_add_f32 {vr(d,2)}, {vr(x,2)}, {vr(y,2)}')
        def add(d, x, y): a(f'v_add_f32 v{d}, v{x}, v{y}')
        def dmf(r): a(f'{mf16} {vr(r,4)}, {vr(SELQ,2)}, {vr(SELQ,2)}, {vr(r,4)}')
        def filt(line):
            st = 'buffer_store' in line and ('s75' in line or 's76' in line) and 'sc1' in line
            ld = 'buffer_load' in line and ('s67' in line or 's68' in line)
            if o.get('nost') and st: return None
            if o.get('nofst') and st and 's76' in line: return None
            if o.get('nold') and ld: return None
            if o.get('nofld') and ld and 's68' in line: return None
            if o.get('ldplain') and ld and 's67' in line: return line.replace(' sc1', '')
            if o.get('ldnt') and ld and 's67' in line: return line.replace(' sc1', ' nt')
            if o.get('stplain') and st: return line.replace(' sc1', '')
            if o.get('novm') and 'vmcnt' in line: return None
            if o.get('nowarm') and 'buffer_load_dword v27' in line: return 's_nop 0'
            if o.get('novmh') and 'buffer_store_dwordx2' in line: return None
            return line
        PA = M + 8; R = T + 8
        spin = f'L_kvspin_{tg}'; back = f'L_kvback_{tg}'
        def preload():
            RD2(M + 24, 'q', 0, 0); RD2(M + 16, 'q', 0, 1); RD2(B0, 'q', 1, 0); RD2(B1, 'q', 1, 1); RD2(T, 'k', 0, 0)
        def slackB():
            a(f'v_cmp_eq_u32 vcc, 0, v{V_FLAG}')
            for r in range(0, 8, 2): a(f'v_mov_b64 {vr(VXC+r,2)}, {vr(VXN+r,2)}')
            a(f's_xor_b32 {S_INP}, {S_INP}, 0x40000')
            a(f's_cbranch_vccnz {spin}\n{back}:')
            a(f"""
            s_cmp_lt_u32 {S_S}, 63
            s_cselect_b32 {S_T0}, {0 if o.get("nopf") else 32*24576}, 0
            s_add_u32 {S_REC}, {S_REC}, {S_T0}
            s_cmp_lt_u32 {S_S}, 62
            s_cselect_b32 {S_T0}, 2048, 0
            s_add_u32 {S_FKV}, {S_FKV}, {S_T0}
            s_cmp_ge_u32 {S_S}, 2
            s_cselect_b32 {S_T1}, {S_FM}, {hex(L.OOB)}
            s_cmp_ge_u32 {S_S}, 1
            s_cselect_b32 {S_T0}, {S_KVM}, {hex(L.OOB)}
            s_add_u32 {S_FM}, {S_FM}, 2048
            s_add_u32 {S_KVM}, {S_KVM}, 131072
            s_lshr_b32 {S_TAG}, {S_S}, 1
            s_and_b32 {S_TAG}, {S_TAG}, 1
            s_sub_u32 {S_NTAG}, {S_TAG}, 1
            s_add_u32 {S_IN1}, {S_IN0}, 32768
            s_and_b32 {S_OTAG}, {S_S}, 1
            s_sub_u32 {S_NOTAG}, {S_OTAG}, 1
            """)
            if o.get('zB'):
                for r in range(AQ, AQ + 24, 2): a(f'v_mov_b64 {vr(r,2)}, 0')
            if o.get('barB'): dmf(PA); a('s_barrier')
            for i in range(o.get('dB', 8)): dmf(PA + 4 * (i % 2))
        def checkB():
            a(f"""
            v_max3_u32 v{R}, v{M}, v{M+1}, v{M+2}
            v_max3_u32 v{R+1}, v{M+3}, v{M+4}, v{M+5}
            v_max3_u32 v{R}, v{R}, v{M+6}, v{M+7}
            v_max_u32 v{R}, v{R}, v{R+1}
            v_cmp_eq_u32 vcc, -1, v{R}
            """)
        def shadowB():
            dmf(PA); a('s_nop 2')
        preload()
        for r in range(AQ, AQ + 24, 2): a(f'v_mov_b64 {vr(r,2)}, 0')
        a(f's_xor_b32 {S_INP}, {S_INP}, 0x40000')
        a.wait(lgkm=0)
        a(f'L_Rloop_{tg}:')
        a.forget()
        a.hot = True
        a.filt = filt
        self.poll('B' + tg, M, V_L16, S_MEMP, slackB, checkB, shadowB, o.get('nB', 3))
        if o.get('rt'): a('s_mov_b32 s84, s82')
        self.stamp(0)
        if o.get('rt'): self.dump_stamps(tg)
        wp = o.get('wpat', 3)
        ws = {0: (0, 1), 1: (1 + wv, 5 + wv), 2: (1 + 2 * (wv % 2), 2 + 2 * (wv % 2)), 3: (1 + wv % 2, 3 + wv % 2), 4: (1 + wv // 2, 3 + wv // 2),
              5: (1, 2), 6: (wv, 4 + wv), 7: (wv % 2, 2 + wv % 2), 8: (wv // 2, 2 + wv // 2)}[wp]
        wslot = [0]
        def MW():
            for i in range(2):
                if ws[i] == wslot[0]: a(f'ds_write_b128 v{V_X0}, {vr(M+4*i,4)} offset:{1024*i}')
            wslot[0] += 1
        MW()
        S('q', 0, 0, M + 24); MW()
        S('q', 0, 1, M + 16); MW()
        S('q', 1, 0, B0); MW()
        S('q', 1, 1, B1); MW()
        S('k', 0, 0, T); MW()
        S('k', 0, 1); MW()
        S('k', 1, 0); MW()
        S('k', 1, 1); MW()
        a.wait_lds_writes()
        a('s_barrier')
        def MR(k): a(f'ds_read_b128 {vr(M+4*k,4)}, v{V_X0 + k//2} offset:{1024*(k%2)}')
        MR(2); MR(3)
        V(0, 0); MR(4)
        V(0, 1); MR(5)
        V(1, 0); MR(6)
        V(1, 1); MR(7)
        VXL = lambda i: a(f'buffer_load_dwordx4 {vr(VXN+4*i,4)}, v{V_L16}, {WS}, {S_REC} offen offset:{2048+1024*i} sc1')
        self.stamp(1)
        vm_ops = [
            lambda: a(f'buffer_store_dwordx4 {vr(KMH,4)}, v{V_L16}, {WS}, {S_T0} offen sc1'),
            lambda: VXL(0),
            lambda: VXL(1),
            lambda: (a(f'buffer_store_dword v{V_F}, v{V_ONE}, {WS}, {S_T1} offen sc1'),
                     a(f'buffer_load_dword v{V_FLAG}, v{V_Z}, {WS}, {S_FKV} offen sc1')),
        ]
        slot = [0]
        first = o.get('vm0', 5)
        def X():
            i = slot[0] - first - wv
            if i == 0: a('s_waitcnt vmcnt(0)')
            if i >= 0 and i % 4 == 0 and i // 4 < len(vm_ops): vm_ops[i // 4]()
            slot[0] += 1
        S('q', 2, 0); RD(B0, 'k', 2, 1, 0); X()
        S('q', 3, 0); RD(B0, 'k', 2, 1, 1); X()
        S('q', 4, 0); RD(B1, 'k', 3, 1, 0); X()
        S('q', 5, 0); RD(B1, 'k', 3, 1, 1); X()
        S('q', 6, 0); RD(T, 'k', 4, 1, 0); X()
        S('q', 7, 0); RD(T, 'k', 4, 1, 1); X()
        S('q', 2, 1); X()
        S('q', 3, 1); X()
        S('q', 4, 1); X()
        assert slot[0] > first + wv
        S('q', 5, 1); RD(B2, 'k', 5, 1, 0); X(); add(AQ, AQ, AQ + 2)
        S('q', 6, 1); RD(B2, 'k', 5, 1, 1); X(); add(AQ + 1, AQ + 1, AQ + 3)
        S('q', 7, 1); X(); a(f'{cvt} v{AQ+2}, v{AQ}, v{AQ+1}')
        S('k', 2, 0); X()
        S('k', 2, 1, B0); RD(B0, 'k', 6, 1, 0); X()
        S('k', 3, 0); RD(B0, 'k', 6, 1, 1); X()
        S('k', 3, 1, B1); RD(B1, 'k', 7, 0, 0); X(); add(AQ + 4, AQ + 4, AQ + 6)
        S('k', 4, 0); RD(B1, 'k', 7, 0, 1); X(); add(AQ + 5, AQ + 5, AQ + 7)
        S('k', 4, 1, T); RD(T, 'k', 7, 1, 0); X(); a(f'{cvt} v{AQ+3}, v{AQ+4}, v{AQ+5}')
        S('k', 5, 0); RD(T, 'k', 7, 1, 1); X()
        a(f'{mf16} {vr(AQ+4,4)}, {vr(AQ+2,2)}, {vr(SELQ,2)}, 0'); X()
        a(f'{mf16} {vr(T+8,4)}, {vr(AQ+2,2)}, {vr(SELQ+2,2)}, 0'); X()
        S('k', 5, 1, B2); RD(B2, 'v', 6, 0, 0); X()
        S('k', 6, 0); RD(B2, 'v', 6, 0, 1)
        S('k', 7, 0, B1); RD(B1, 'v', 7, 0, 0); a(f'{cvt} v{AQ}, v{AQ+4}, v{AQ+5}')
        S('k', 6, 1, B0); RD(B1, 'v', 7, 0, 1); a(f'{cvt} v{AQ+1}, v{AQ+6}, v{AQ+7}\n{cvt} v{AQ+2}, v{T+8}, v{T+9}')
        S('k', 7, 1, T); RD(B0, 'v', 6, 1, 0); a(f'{cvt} v{AQ+3}, v{T+10}, v{T+11}')
        assert slot[0] > first + wv + 4 * (len(vm_ops) - 1)
        self.stamp(2)
        RD(B0, 'v', 6, 1, 1)
        add(AK, AK, AK + 2)
        a(f'{mf32} {vr(AQ+4,4)}, {vr(KX,4)}, {vr(AQ,4)}, 0')
        add(AK + 1, AK + 1, AK + 3)
        a(f'{cvt} v{AK+2}, v{AK}, v{AK+1}')
        a(f'{mf32} {vr(T+8,4)}, {vr(KX+4,4)}, {vr(AQ,4)}, 0')
        pkadd(AK + 4, AK + 4, AK + 6)
        a(f'{cvt} v{AK+3}, v{AK+4}, v{AK+5}')
        a(f'{mf16} {vr(AK+4,4)}, {vr(AK+2,2)}, {vr(SELK,2)}, 0')
        a(f'{mf16} {vr(T,4)}, {vr(AK+2,2)}, {vr(SELK+2,2)}, 0')
        kslot = [0]
        def KL():
            i = kslot[0] - wv
            if i in (0, 4): a(f'buffer_load_dwordx4 {vr(KX+i,4)}, v{V_L16}, {WS}, {S_REC} offen offset:{256*i} sc1')
            kslot[0] += 1
        for i in range(4): a(f'v_cndmask_b32 v{AK+i}, v{T+8+i}, v{AQ+4+i}, {S_LO}')
        a(f'{cvt} v{KMH}, v{AK+4}, v{AK+5}\n{cvt} v{KMH+1}, v{AK+6}, v{AK+7}')
        a(f'{cvt} v{KMH+2}, v{T}, v{T+1}\n{cvt} v{KMH+3}, v{T+2}, v{T+3}')
        a(f'{mf32} {vr(T+4,4)}, {vr(KMH,4)}, {vr(AQ,4)}, 0')
        V(2, 0)
        a(f'ds_write_b128 v{V_X0}, {vr(AK,4)} offset:8192')
        a(f'v_cndmask_b32 v{T+4}, v{T+5}, v{T+4}, {S_LO}')
        V(2, 1)
        a(f'ds_write_b32 v{V_SMW}, v{T+4}')
        self.stamp(3)
        B3 = M + 8
        ONES, HALF = B2, B2 + 4
        V(3, 0); KL()
        V(3, 1); RD(B3, 'v', 7, 1, 0); KL()
        V(6, 0, B2); RD(B3, 'v', 7, 1, 1); KL()
        V(6, 1, B0); KL()
        if o.get('vb', 4) > 4: V(7, 0, B1)
        a.wait_lds_writes()
        a('s_barrier')
        SX = [T + 4, T + 8, AQ + 4]
        SR = lambda x: a(f'ds_read_b128 {vr(SX[x-1],4)}, v{V_X0+x} offset:8192')
        SR(1)
        if o.get('vb', 4) <= 4: V(7, 0, B1)
        SR(2); SR(3)
        V(4, 0); a(f'ds_read_b128 {vr(T,4)}, v{V_F} offset:1024'); a(f'v_mov_b64 {vr(ONES,2)}, s[26:27]')
        V(4, 1); KL(); a(f'v_mov_b64 {vr(ONES+2,2)}, s[26:27]')
        V(5, 0); KL(); a(f'v_mov_b64 {vr(HALF,2)}, s[8:9]')
        V(7, 1, B3); KL()
        V(5, 1); KL()
        WOS = lambda i, hh: a(f'ds_read_b128 {vr(WVB+8*i+4*hh,4)}, v{V_X0} offset:{16384+8192*i+1024*hh}')
        zs = list(range(M + 8, M + 32, 2)) + list(range(M, M + 8, 2))
        def Z(n):
            for _ in range(n): a(f'v_mov_b64 {vr(zs.pop(0),2)}, 0')
        self.stamp(4)
        pkadd(AK, AK, SX[0]); pkadd(AK + 2, AK + 2, SX[0] + 2)
        PK(SX[1], SX[1], SX[2]); PK(SX[1] + 2, SX[1] + 2, SX[2] + 2)
        PK(T, T, T + 2)
        PK(AK, AK, SX[1]); PK(AK + 2, AK + 2, SX[1] + 2)
        add(T, T, T + 1)
        mx, t2 = T + 2, T + 3
        a(f'v_max3_f32 v{mx}, v{AK}, v{AK+1}, v{AK+2}\nv_max3_f32 v{mx}, v{mx}, v{AK+3}, v{T}')
        PK(AV, AV, AV + 2); PK(AV + 4, AV + 4, AV + 6)
        a(f'v_max_f32_dpp v{t2}, v{mx}, v{mx} {QP}\nv_max_f32_dpp v{mx}, v{mx}, v{mx} {QP}')
        a(f'{cvt} v{AV+2}, v{AV}, v{AV+1}\n{cvt} v{AV+3}, v{AV+4}, v{AV+5}')
        a(f'v_permlane16_swap_b32 v{mx}, v{t2}\nv_max_f32 v{T+1}, v{mx}, v{t2}\nv_max_f32 v{mx}, v{mx}, v{t2}')
        a(f'{mf16} {vr(AV+4,4)}, {vr(SELV,2)}, {vr(AV+2,2)}, 0')
        WOS(0, 0)
        a(f'v_permlane32_swap_b32 v{mx}, v{T+1}\nv_max_f32 v{mx}, v{mx}, v{T+1}\nv_mul_f32 v{mx}, {S_SC}, v{mx}')
        E = [AK, AK + 1, AK + 2, AK + 3, T]
        for e in E: a(f'v_fma_f32 v{e}, v{e}, {S_SC}, -v{mx}')
        for e in E: a(f'v_exp_f32 v{e}, v{e}')
        BX, PM = AQ, T + 6
        a(f'{cvt} v{T+8}, v{AK}, v{AK+1}\n{cvt} v{T+9}, v{AK+2}, v{AK+3}')
        a(f"""
        v_cndmask_b32 v{BX}, 0, v{T+8}, {S_LO}
        v_cndmask_b32 v{BX+1}, 0, v{T+9}, {S_LO}
        v_cndmask_b32 v{BX+2}, v{T+8}, 0, {S_LO}
        v_cndmask_b32 v{BX+3}, v{T+9}, 0, {S_LO}
        v_mov_b32_dpp v{T+1}, v{T} {QP}
        {cvt} v{VMH}, v{AV+4}, v{AV+5}
        """)
        D, D2, DL = AQ + 4, AK + 4, T + 8
        a(f'{mf32} {vr(DL,4)}, {vr(ONES,4)}, {vr(BX,4)}, 0')
        WOS(0, 1)
        a(f'{cvt} v{T+4}, v{T}, v{T+1}\n{cvt} v{T+5}, v{T+1}, v{T}')
        a(f'{mf32} {vr(D2,4)}, {vr(VXC+4,4)}, {vr(BX,4)}, 0')
        WOS(1, 0)
        a(f'v_cndmask_b32 v{PM}, 0, v{T+4}, {S_LO}\nv_cndmask_b32 v{PM+1}, v{T+5}, 0, {S_LO}')
        a(f'{mf32} {vr(D,4)}, {vr(VXC,4)}, {vr(BX,4)}, 0')
        WOS(1, 1)
        a(f'{cvt} v{VMH+1}, v{AV+6}, v{AV+7}')
        a(f'{mf16} {vr(DL,4)}, {vr(HALF,2)}, {vr(PM,2)}, {vr(DL,4)}')
        Z(1)
        a(f'{mf16} {vr(D,4)}, {vr(VMH,2)}, {vr(PM,2)}, {vr(D,4)}')
        Z(o.get('zpv', 5))
        l = DL + 1
        a(f'v_add_f32_dpp v{l}, v{DL}, v{DL} {QP}\nv_rcp_f32 v{l}, v{l}')
        for i in range(4): a(f'v_add_f32_dpp v{D+i}, v{D2+i}, v{D+i} {QP}')
        for i in (0, 2): a(f'v_pk_mul_f32 {vr(D+i,2)}, {vr(D+i,2)}, {vr(l-1,2)} op_sel:[0,1] op_sel_hi:[1,1]')
        tagx = not o.get('bar3')
        a(f'{cvt} v{T}, v{D}, v{D+1}\n{cvt} v{T+1}, v{D+2}, v{D+3}')
        if tagx: a(f'v_and_or_b32 v{T}, v{T}, -2, {S_OTAG}')
        self.stamp(5)
        a(f'ds_write_b64 v{V_OW}, {vr(T,2)}')
        a(f's_cmp_eq_u32 {S_S}, 63\ns_cbranch_scc1 L_Rtail_{tg}')
        OA = AK
        def oread(): a(f'ds_read_b128 {vr(OA,4)}, v{V_F} offset:3072\nds_read_b128 {vr(OA+4,4)}, v{V_F} offset:5120')
        def ocheck():
            a(f'v_bitop3_b32 v{T+2}, v{OA}, v{OA+2}, {S_NOTAG} bitop3:0x42')
            a(f'v_bitop3_b32 v{T+3}, v{OA+4}, v{OA+6}, {S_NOTAG} bitop3:0x42')
            a(f'v_bitop3_b32 v{T+2}, v{T+2}, v{T+3}, 1 bitop3:0x80')
            a(f'v_cmp_eq_u32 vcc, 0, v{T+2}')
        if tagx:
            n1 = min(o.get('z3', 7), len(zs))
            Z(n1)
            for _ in range(o.get('z3', 7) - n1): a('s_nop 1')
            oread(); Z(len(zs))
        else:
            Z(min(6, len(zs)))
            a.wait_lds_writes()
            a('s_barrier')
            oread()
            Z(len(zs))
        self.stamp(6)
        def wo(t, kb):
            fr = WVB + 8 * WO_SPILL.index((t, kb)) if (t, kb) in WO_SPILL else wo_frag(t, kb)
            self.smf(M + 4 * t, OA + 4 * kb, vr(fr, 8))
        def fa(t, i): add(M + 4 * t + i, M + 4 * t + i, M + 4 * t + 2 + i)
        def fc(t): a(f'{cvt} v{AQ+t}, v{M+4*t}, v{M+4*t+1}')
        def tagit(r): a(f'v_and_or_b32 v{r}, v{r}, -2, {S_TAG}')
        a(f'L_wo_{tg}:')
        if tagx:
            wo(0, 0); a(f'v_bitop3_b32 v{T+2}, v{OA}, v{OA+2}, {S_NOTAG} bitop3:0x42')
            wo(1, 0); a(f'v_bitop3_b32 v{T+3}, v{OA+4}, v{OA+6}, {S_NOTAG} bitop3:0x42')
            wo(0, 1); a(f'v_bitop3_b32 v{T+2}, v{T+2}, v{T+3}, 1 bitop3:0x80')
            wo(1, 1); a(f'v_cmp_eq_u32 vcc, 0, v{T+2}')
            wo(2, 0); wo(2, 1); wo(3, 0)
            a(f's_cbranch_vccnz L_ofix_{tg}')
            wo(3, 1)
            def fix():
                a(f'L_ofix_{tg}:\ns_mov_b32 s23, {SPIN}\nL_ofix2_{tg}:')
                a.forget(vm=False)
                oread(); a.wait(lgkm=0); ocheck()
                a(f's_cbranch_vccz L_ofix3_{tg}\ns_sub_u32 s23, s23, 1\ns_cbranch_scc0 L_ofix2_{tg}\ns_xor_b32 {S_NOTAG}, {S_NOTAG}, v_never' if False else
                  f's_cbranch_vccz L_ofix3_{tg}\ns_sub_u32 s23, s23, 1\ns_cbranch_scc0 L_ofix2_{tg}\ns_endpgm\nL_ofix3_{tg}:')
                for r in range(M, M + 16, 2): a(f'v_mov_b64 {vr(r,2)}, 0')
                a(f's_branch L_wo_{tg}')
            self.fixups.append(fix)
        else:
            wo(0, 0); wo(1, 0); wo(0, 1); wo(1, 1); wo(2, 0); wo(2, 1); wo(3, 0); wo(3, 1)
        wo(4, 0); fa(0, 0); fa(0, 1); fa(1, 0)
        wo(4, 1); fa(1, 1); fc(0); fc(1)
        wo(5, 0); fa(2, 0); fa(2, 1); tagit(AQ)
        wo(5, 1); fa(3, 0); fa(3, 1); fc(2)
        wo(6, 0); fc(3)
        wo(6, 1)
        a(f'buffer_store_dwordx4 {vr(AQ,4)}, v{V_IST}, {WS}, {S_IN0} offen {cf}')
        wo(7, 0); fa(4, 0)
        wo(7, 1); fa(4, 1); fc(4); fa(5, 0); fa(5, 1); tagit(AQ + 4); fc(5)
        fa(6, 0); fa(6, 1); fc(6); fa(7, 0); fa(7, 1); fc(7)
        a(f'buffer_store_dwordx4 {vr(AQ+4,4)}, v{V_IST}, {WS}, {S_IN1} offen {cf}')
        self.stamp(7)
        def pack_kvm():
            a(f's_mov_b64 vcc, {S_LO}')
            for i in range(4):
                qp = '[0,0,0,2]' if i < 2 else '[0,0,1,3]'
                a(f'v_cndmask_b32_dpp v{KMH+i}, v{VMH+i%2}, v{KMH+i}, vcc quad_perm:{qp} row_mask:0xf bank_mask:0xf')
        self.pack_kvm = pack_kvm
        def preA():
            a(f"""
            v_mov_b32 v{PA}, {S_NTAG}
            v_mov_b32 v{PA+4}, {S_NTAG}
            """)
            for i in range(o.get('dA', 4)): dmf(R)
        def slackA():
            preload()
            pack_kvm()
            a(f"""
            s_add_u32 {S_S}, {S_S}, 1
            s_xor_b32 {S_IN0}, {S_IN0}, 0x40000
            s_and_b32 {S_T0}, {S_S}, 3
            s_lshl_b32 {S_T0}, {S_T0}, 13
            v_mov_b64 {vr(M,2)}, -1
            s_andn2_b32 {S_PUBB}, {S_PUBB}, 0x6000
            s_andn2_b32 {S_MEMP}, {S_MEMP}, 0x6000
            v_mov_b64 {vr(M+2,2)}, -1
            s_or_b32 {S_MEMP}, {S_MEMP}, {S_T0}
            s_xor_b32 {S_RST}, {S_T0}, 0x4000
            v_mov_b64 {vr(M+4,2)}, -1
            s_or_b32 {S_RST}, {S_RST}, {S_PUBB}
            s_or_b32 {S_PUBB}, {S_PUBB}, {S_T0}
            v_mov_b64 {vr(M+6,2)}, -1
            """)
            if not o.get('zB'):
                for r in range(AQ, AQ + 24, 2): a(f'v_mov_b64 {vr(r,2)}, 0')
            a.wait(lgkm=0)
        def checkA():
            a(f"""
            v_bitop3_b32 v{VXC}, v{PA}, v{PA+4}, {S_NTAG} bitop3:0x42
            v_and_b32 v{VXC}, 1, v{VXC}
            v_cmp_eq_u32 vcc, 0, v{VXC}
            """)
        def shadowA():
            a(f'{mf32} {vr(R,4)}, {vr(PA,4)}, {vr(SELR,4)}, 0\n{mf32} {vr(R,4)}, {vr(PA+4,4)}, {vr(SELR,4)}, {vr(R,4)}')
        self.poll('A' + tg, PA, V_L16, S_INP, preA, checkA, shadowA, o.get('nA', 3), mid=slackA, nmid=o.get('mA', 0))
        self.stamp(8)
        a(f"""
        v_permlane32_swap_b32 v{R}, v{R+2}
        v_permlane32_swap_b32 v{R+1}, v{R+3}
        v_add_f32 v{R}, v{R}, v{R+2}
        v_add_f32 v{R+1}, v{R+1}, v{R+3}
        v_permlane16_swap_b32 v{R}, v{R+1}
        v_add_f32 v{R}, v{R}, v{R+1}
        v_mov_b32_dpp v{R+1}, v{R} quad_perm:[1,0,3,2] row_mask:0xf bank_mask:0xf
        {cvt} v{R+2}, v{R}, v{R+1}
        buffer_store_dword v{R+2}, v{V_PUB}, {WS}, {S_PUBB} offen {cf}
        """)
        self.stamp(9)
        a(f'buffer_store_dword v{M}, v{V_PUB}, {WS}, {S_RST} offen {cf}')
        if not o.get('rt'): self.dump_stamps(tg)
        a(f's_branch L_Rloop_{tg}')
        a.hot = False
        a(f'{spin}:')
        self.spin_flag(V_FLAG, f'v{V_Z}', S_FKV)
        a(f's_branch {back}')
        for txt, sh in zip(self.late, self.late_sh):
            pre, post = txt.split('@SH@')
            a(pre); a('s_nop 7'); sh(); a(post)
        for f in self.fixups: f()
        a(f'L_Rtail_{tg}:')
        a.forget()
        self.pack_kvm()
        a(f'''
        buffer_store_dwordx4 {vr(KMH,4)}, v{V_L16}, {WS}, {S_KVM} offen sc1
        s_waitcnt vmcnt(0) lgkmcnt(0)
        buffer_store_dword v{V_F}, v{V_ONE}, {WS}, {S_FM} offen sc1
        buffer_store_dword v{V_F}, v{V_ONE}, {WS}, {S_FM} offen offset:2048 sc1
        ''')
        self.tstamp(6, T + 4)
        if o.get('stamp'):
            set_srd(a, 12, P_DBG, 256)
            a(f'''
            s_memtime s[82:83]
            s_memrealtime s[84:85]
            s_waitcnt lgkmcnt(0)
            s_sub_u32 s82, s82, s80
            s_sub_u32 s84, s84, s30
            s_sub_u32 s28, s28, s30
            v_mov_b32 v{T}, s82
            v_mov_b32 v{T+1}, {S_FAST}
            v_mov_b32 v{T+2}, s28
            v_mov_b32 v{T+3}, s84
            v_mov_b32 v{T+4}, 8
            buffer_store_dwordx4 {vr(T,4)}, v{T+4}, {ST}, 0 offen
            ''')
        a('s_endpgm')
        a.auto_vm = True
```

```python
import layout as L
from gen_common import *

V_L16, V_IST, V_PUB, V_X0, V_F, V_SMW, V_OW, V_WV = 1, 2, 3, 4, 8, 9, 10, 11
KMH, VMH = 12, 16
V_IDX, V_WV2 = 18, 19
SELR, SELV, V_ONE, V_DUM, SELQ, SELK = 20, 24, 26, 27, 28, 128
V_Z = 29
VXC, VXN, KX = 32, 40, 48
WVB = 56
AQ, AK, AV = 72, 80, 88
M = 96
T = 132
WO0 = 144
V_FLAG = 0
SC = 128 ** -0.5 * 1.4426950408889634
import struct
def f2u(x): return struct.unpack('<I', struct.pack('<f', x))[0]

WO_SPILL = [(0, 0), (2, 0)]
def wo_frag(t, kb):
    order = [(t_, k_) for t_ in range(8) for k_ in range(2) if (t_, k_) not in WO_SPILL]
    return WO0 + 8 * order.index((t, kb))

LDSF = [('q', 0, 0), ('q', 0, 1), ('q', 1, 0), ('q', 1, 1), ('k', 0, 0)] + [('k', k, 1) for k in range(2, 8)] + [('k', 7, 0)] + [('v', k, p) for k in (6, 7) for p in range(2)]
AGF = [(m, k, p) for m in 'qkv' for k in range(8) for p in range(2) if (m, k, p) not in LDSF]
assert len(LDSF) == 16 and len(AGF) == 32
S_S = 's61'
S_MEMP = 's62'
S_PUBB = 's63'
S_IN0, S_IN1 = 's64', 's65'
S_INP = 's66'
S_REC = 's67'
S_FKV = 's68'
S_KVM, S_FM = 's69', 's70'
S_RST = 's71'
S_LO = 's[72:73]'
S_SC = 's74'
S_T0, S_T1 = 's75', 's76'
S_FAST = 's77'
S_TAG, S_NTAG = 's78', 's79'
S_OTAG, S_NOTAG = 's24', 's25'

class RRole:
    def smf(self, acc, A, B):
        self.a(f'v_smfmac_f32_16x16x64_bf16 {vr(acc,4)}, {vr(A,4)}, {B}, v{V_IDX}')

    def r_role(self):
        a = self.a; o = self.o
        a('L_R:')
        a.vq = list(self.vq_role)
        self.mark(0)
        VD8, VD1, VTQ, VTO, VTA = 28, 29, 30, 31, 7
        a(f"""
        v_and_b32 v1, 63, v0
        v_lshrrev_b32 v2, 4, v1
        v_and_b32 v3, 15, v1
        v_lshlrev_b32 v4, 4, v3
        v_lshl_add_u32 v{VD8}, v2, 17, v4
        v_and_b32 v4, 0x70, v4
        v_lshrrev_b32 v3, 3, v3
        v_lshl_add_u32 v4, v3, 9, v4
        v_lshl_add_u32 v{VD1}, v2, 14, v4
        s_lshl_b32 s21, {S_W}, 7
        v_add_u32 v{VD1}, s21, v{VD1}
        s_mul_i32 s78, {S_W}, {L.BLK}
        """)
        groups = [(m, b) for m in 'oqkv' for b in range(2)]
        def issue(gi):
            mat, b = groups[gi]
            if b == 0: set_srd(a, 8, {'q': P_WQ, 'k': P_WK, 'v': P_WV, 'o': P_WO}[mat], 4 << 20)
            a(f's_add_u32 m0, s78, {(gi % 2) * L.GRP}')
            if mat != 'o':
                a(f's_add_u32 s21, {S_W}, {4 * b}\ns_lshl_b32 s21, s21, 19\ns_lshl_b32 s22, {S_RANK}, 8\ns_add_u32 s21, s21, s22')
                self.dma_block(f'v{VD8}', 's21', 8192)
            else:
                a(f's_lshl_b32 s21, {S_RANK}, 17\ns_add_u32 s21, s21, {b * 65536}')
                self.dma_block(f'v{VD1}', 's21', 1024)
        issue(0)
        self.load_table('T_R', 96, 28, 7)
        issue(1)
        self.mark(1)
        self.gate_and_store()
        names = list(L.r_table().keys())
        def tv(n): return 96 + names.index(n)
        a(f'v_mov_b32 v{VTQ}, v{tv("trq")}\nv_mov_b32 v{VTO}, v{tv("tro")}\nv_add_u32 v6, 65536, v{tv("wv")}')
        if not o.get('nocode'):
            pc = a.newlabel('pc')
            a(f's_getpc_b64 s[12:13]\n{pc}:\ns_add_u32 s12, s12, L_R_ready-{pc}\ns_addc_u32 s13, s13, 0\ns_mov_b32 s14, L_R_slow-L_R_ready\ns_mov_b32 s15, 0x20000')
            a(f'v_lshlrev_b32 v1, 7, v0\nbuffer_load_dword v27, v1, {ST}, 0 offen')
        else:
            a(f'buffer_load_dword v27, v{tv("one")}, {WS}, 0 offen')
        a(f'buffer_load_dword v26, v{tv("mm")}, {WS}, 0 offen')
        a.auto_vm = False
        TMP = 56
        park = {}
        parkregs = [32, 64, 72, 80, 88, 124, 132, 8]
        for f in LDSF:
            if f[0] == 'k': park[f] = parkregs.pop(0)
            if f[0] == 'q': park[f] = -8 * AGF.index(('v', 3 + 2 * f[1], f[2])) - 1
        S_RDY = 's76'
        def scalars():
            if o.get('pa2', 0):
                dec = f's_lshr_b32 s84, {S_RANK}, 3\ns_lshl_b32 s84, s84, 1\ns_lshr_b32 s21, {S_W}, 1\ns_add_u32 s84, s84, s21\n' \
                      f's_lshr_b32 s85, {S_RANK}, 1\ns_and_b32 s85, s85, 3\n' \
                      f's_and_b32 s86, {S_RANK}, 1\ns_lshl_b32 s86, s86, 1\ns_and_b32 s21, {S_W}, 1\ns_add_u32 s86, s86, s21'
            else:
                dec = f's_lshr_b32 s84, {S_RANK}, 2\ns_and_b32 s85, {S_RANK}, 3\ns_mov_b32 s86, {S_W}'
            a(f'''
            {dec}
            s_lshl_b32 {S_INP}, s84, 2
            s_add_u32 {S_INP}, {S_INP}, s85
            s_lshl_b32 {S_INP}, {S_INP}, 2
            s_add_u32 {S_INP}, {S_INP}, s86
            s_lshl_b32 {S_INP}, {S_INP}, 11
            s_add_u32 {S_INP}, {S_INP}, {hex(L.RIN)}
            s_lshl_b32 {S_PUBB}, s84, 10
            s_and_b32 s22, s85, 2
            s_lshl_b32 s22, s22, 7
            s_add_u32 {S_PUBB}, {S_PUBB}, s22
            s_and_b32 s22, s85, 1
            s_lshl_b32 s22, s22, 5
            s_add_u32 {S_PUBB}, {S_PUBB}, s22
            s_lshl_b32 s22, s86, 6
            s_add_u32 {S_PUBB}, {S_PUBB}, s22
            s_add_u32 {S_PUBB}, {S_PUBB}, {hex(L.RMEM)}
            s_and_b32 s22, s84, 1
            s_lshl_b32 s22, s22, 9
            s_lshr_b32 s21, s84, 1
            s_lshl_b32 s21, s21, 7
            s_add_u32 s21, s21, s22
            s_lshl_b32 s22, s85, 3
            s_add_u32 s21, s21, s22
            s_lshl_b32 s22, s86, 11
            s_add_u32 s75, s21, s22
            s_mul_i32 {S_REC}, {S_RANK}, 24576
            s_mul_i32 s21, {S_W}, 6144
            s_add_u32 {S_REC}, {S_REC}, s21
            s_lshl_b32 {S_FKV}, {S_RANK}, 6
            s_lshl_b32 s21, {S_W}, 2
            s_add_u32 {S_FKV}, {S_FKV}, s21
            s_add_u32 {S_FM}, {S_FKV}, {hex(L.F_M - 4096)}
            s_add_u32 {S_FKV}, {S_FKV}, {hex(L.F_KV)}
            s_lshl_b32 {S_KVM}, {S_RANK}, 12
            s_lshl_b32 s21, {S_W}, 10
            s_add_u32 {S_KVM}, {S_KVM}, s21
            s_add_u32 {S_KVM}, {S_KVM}, {hex(L.KVM - 131072)}
            s_lshl_b32 s21, {S_W}, 11
            s_add_u32 {S_MEMP}, s21, {hex(L.RMEM)}
            s_lshl_b32 {S_IN0}, {S_RANK}, 6
            s_add_u32 {S_IN0}, {S_IN0}, {hex(L.RIN)}
            s_mov_b32 s72, 0x33333333
            s_mov_b32 s73, 0x33333333
            s_mov_b32 {S_SC}, {hex(f2u(SC))}
            s_mov_b32 {S_S}, 0
            ''')
        def first_records(l16):
            for i in range(2):
                a(f'buffer_load_dwordx4 {vr(KX+4*i,4)}, v{l16}, {WS}, {S_REC} offen offset:{1024*i} sc1')
                a(f'buffer_load_dwordx4 {vr(VXN+4*i,4)}, v{l16}, {WS}, {S_REC} offen offset:{2048+1024*i} sc1')
        def stage_x():
            set_srd(a, 12, P_DBG, 256)
            a(f'''
            v_and_b32 v1, 3, v0
            v_lshlrev_b32 v1, 6, v1
            v_add_u32 v1, 60, v1
            v_and_b32 v2, 4, v0
            v_cmp_ne_u32 vcc, 0, v2
            v_cndmask_b32 v1, v1, 0, vcc
            v_and_b32 v2, 1, v0
            v_lshlrev_b32 v2, 11, v2
            buffer_load_dword v3, v1, {ST}, 0 offen sc1
            buffer_load_dword v4, v2, {WS}, {S_FKV} offen sc1
            ''')
        def stage_y():
            a(f'''
            v_lshl_or_b32 v140, v141, 16, v140
            v_readlane_b32 s84, v3, 0
            v_readlane_b32 s85, v3, 1
            v_readlane_b32 s86, v3, 2
            v_readlane_b32 s87, v3, 3
            v_readlane_b32 s21, v3, 4
            v_cmp_eq_u32 vcc, 0, v4
            s_mov_b32 {S_RDY}, 0
            s_add_u32 s84, s84, s85
            s_add_u32 s86, s86, s87
            s_add_u32 s84, s84, s86
            s_cmp_ge_u32 s21, 32
            s_cselect_b32 {S_FAST}, 1, 0
            s_cbranch_vccnz L_R_notyet
            s_cmp_lt_u32 s84, 256
            s_cbranch_scc1 L_R_notyet
            s_mov_b32 {S_RDY}, 1
            buffer_store_dword v140, v{tv("pub")}, {WS}, {S_PUBB} offen sc1
            ''')
            first_records(tv('l16'))
            a('L_R_notyet:')
        scalars()
        set_srd(a, 24, P_MEM0, 8192)
        a(f'buffer_load_ushort v140, v{tv("m0a")}, s[24:27], s75 offen\nbuffer_load_ushort v141, v{tv("m0a")}, s[24:27], s75 offen offset:32')
        todo = []
        self.ldsf_off = {}
        def flush(n):
            for _ in range(n):
                f, r = todo.pop(0); off = 8192 * len(self.ldsf_off)
                self.ldsf_off[f] = off
                for hh in range(2):
                    src = vr(r + 4 * hh, 4) if r >= 0 else ar(-r - 1 + 4 * hh, 4)
                    a(f'ds_write_b128 v{tv("wv") if off < 65536 else 6}, {src} offset:{off % 65536 + 1024 * hh}')
                if r >= 0: parkregs.append(r)
        for gi in range(8):
            mat, b = groups[gi]
            if gi == 0: self.mark(2)
            a.wait(vm=[16 + 5, 5 + 16, 16, 16, 16, 16, 16, 0][gi] if o.get('xearly', 1) else [16 + 5, 5 + 16, 16, 16, 16, 16, 16 + 2, 2][gi])
            if gi == 6 and o.get('xearly', 1): stage_y()
            if gi in (0, 2, 4, 7): self.mark(3 + [0, 2, 4, 7].index(gi))
            a('s_barrier')
            hb = (gi % 2) * L.GRP
            for x in range(4):
                dsts = []
                if mat == 'o':
                    for p in range(2):
                        t = 2 * x + p
                        dsts.append((vr, (TMP if t == 0 else 40) if (t, b) in WO_SPILL else wo_frag(t, b)))
                    offs = [0, 2112, 8448, 10560]; xo = 64 * x
                    if x == 0: a(f'v_add_u32 v{VTA}, {hb}, v{VTO}')
                else:
                    offs = [0, 1056, 512, 1568]; xo = 0
                    a(f's_xor_b32 s21, {S_W}, {x}\ns_mul_i32 s21, s21, {L.BLK}\ns_add_u32 s21, s21, {hb}\nv_add_u32 v{VTA}, s21, v{VTQ}')
                    for p in range(2):
                        f = (mat, 2 * x + b, p)
                        if f in AGF: dsts.append((ar, 8 * AGF.index(f)))
                        else:
                            if f not in park: park[f] = TMP if (f[1], f[2]) == (6, 0) else (16 if (f[1], f[2]) == (6, 1) else parkregs.pop(0))
                            if park[f] < 0: dsts.append((ar, -park[f] - 1)); todo.insert(0, (f, park[f]))
                            else: dsts.append((vr, park[f])); todo.append((f, park[f]))
                for p in range(2):
                    rf, d = dsts[p]
                    for r in range(4):
                        a(f'ds_read_b64_tr_b16 {rf(d + 2 * r, 2)}, v{VTA} offset:{xo + offs[r] + 32 * p}')
            if gi == 7 and not o.get('xearly', 1):
                a.wait(vm=0); stage_y()
            a.wait(lgkm=0)
            if gi == 0:
                for i in range(2):
                    for hh in range(2):
                        a(f'ds_write_b128 v{tv("x0")}, {vr((TMP if i == 0 else 40) + 4 * hh, 4)} offset:{16384 + 8192 * i + 1024 * hh}')
            a('s_barrier')
            if gi == 5 and o.get('xearly', 1): stage_x()
            if gi + 2 < 8: issue(gi + 2)
            if gi == 5 and not o.get('xearly', 1): stage_x()
            if gi == 2: self.signal_init(barrier=False)
            if gi == 6: flush(8)
            if gi == 7: flush(8)
        assert not todo and len(self.ldsf_off) == 16
        a.wait(lgkm=0)
        a.auto_vm = True; a.forget()
        a(f'v_mov_b32 v{V_WV2}, v6')
        for n, d in [('l16', V_L16), ('ist', V_IST), ('pub', V_PUB), ('x0', V_X0), ('x1', V_X0 + 1), ('x2', V_X0 + 2), ('x3', V_X0 + 3),
                     ('f', V_F), ('smw', V_SMW), ('ow', V_OW), ('wv', V_WV), ('idx', V_IDX), ('one', V_ONE)] + \
                    [(f'selr{i}', SELR + i) for i in range(4)] + [(f'selv{i}', SELV + i) for i in range(2)] + \
                    [('selq', SELQ), ('selq', SELQ + 3), ('selk', SELK), ('selk', SELK + 3)]:
            a(f'v_mov_b32 v{d}, v{tv(n)}')
        for d in (SELQ + 1, SELQ + 2, SELK + 1, SELK + 2): a(f'v_mov_b32 v{d}, 0')
        self.dump_marks(T + 4)
        self.tstamp(1, T + 4)
        a(f's_cmp_eq_u32 {S_RDY}, 1\ns_cbranch_scc1 L_R_ready')
        self.wait_init(t0=T + 4)
        a(f's_cmp_ge_u32 s21, 32\ns_cselect_b32 {S_FAST}, 1, 0')
        a(f'buffer_store_dword v140, v{V_PUB}, {WS}, {S_PUBB} offen sc1')
        self.spin_flag(V_FLAG, f'v{V_Z}', S_FKV)
        first_records(V_L16)
        a(f's_add_u32 s21, {S_FKV}, 2048')
        self.spin_flag(V_FLAG, f'v{V_Z}', 's21')
        a('L_R_ready:')
        a.wait(vm=0)
        a.forget()
        if o.get('force_slow'): a(f's_mov_b32 {S_FAST}, 0')
        a(f's_add_u32 {S_FKV}, {S_FKV}, 2048\nv_mov_b32 v{V_FLAG}, 1')
        for r in range(M, M + 8, 2): a(f'v_mov_b64 {vr(r,2)}, -1')
        self.tstamp(2, T + 4)
        self.tstamp(3, T + 4)
        if o.get('stamp'):
            a('s_memtime s[80:81]\ns_memrealtime s[28:29]'); a.wait(lgkm=0)
        a('s_mov_b32 s26, 0x3f803f80\ns_mov_b32 s27, 0x3f803f80\ns_mov_b32 s8, 0x3f003f00\ns_mov_b32 s9, 0x3f003f00')
        a(f'ds_write_b64 v{V_OW}, {vr(M,2)}')
        a.wait(lgkm=0)
        a(f's_cmp_eq_u32 {S_FAST}, 0\ns_cbranch_scc1 L_R_slow')
        if o.get('nostag'):
            self.r_loop('f', '')
        else:
            for w in range(1, 4): a(f's_cmp_eq_u32 {S_W}, {w}\ns_cbranch_scc1 L_R_w{w}')
            for w in range(4):
                if w: a(f'L_R_w{w}:')
                self.r_loop('f' + (str(w) if w else ''), '', wv=w)
        a('L_R_slow:')
        self.r_loop('s', 'sc1')

    def spin_flag(self, dst, voff, soff):
        a = self.a
        lab = a.newlabel('sf'); ok = a.newlabel('sfok')
        sv = a.auto_vm; a.auto_vm = False
        a(f'''
        s_mov_b32 s23, {SPIN}
        {lab}:
        buffer_load_dword v{dst}, {voff}, {WS}, {soff} offen sc1
        s_waitcnt vmcnt(0)
        v_cmp_ne_u32 vcc, 0, v{dst}
        s_cbranch_vccnz {ok}
        s_sleep 2
        s_sub_u32 s23, s23, 1
        s_cbranch_scc0 {lab}
        s_mov_b32 {SPIN}, 0x400
        {ok}:
        ''')
        a.auto_vm = sv; a.vq = []

    def poll(self, tag, dst, voff, soff, pre, check, shadow, nchk, mid=None, nmid=0):
        a = self.a
        lab = f'L_poll_{tag}'; ok = f'L_pok_{tag}'
        def issue():
            a(f'buffer_load_dwordx4 {vr(dst,4)}, v{voff}, {WS}, {soff} offen sc1')
            a(f'buffer_load_dwordx4 {vr(dst+4,4)}, v{voff}, {WS}, {soff} offen offset:1024 sc1')
        pre()
        if mid:
            issue(); mid()
            for r in range(nmid):
                check(); shadow()
                a(f's_cbranch_vccz {ok}')
        a(f's_mov_b32 s23, {SPIN}')
        a(f'{lab}:')
        issue()
        for r in range(nchk - 1):
            check(); shadow()
            a(f's_cbranch_vccz {ok}')
        a(f's_sub_u32 s23, s23, 1\ns_cbranch_scc1 L_pto_{tag}')
        check(); shadow()
        a(f's_cbranch_vccnz {lab}\n{ok}:')
        self.late.append(f'L_pto_{tag}:\ns_mov_b32 {SPIN}, 0x400\ns_waitcnt vmcnt(0)\n@SH@s_branch {ok}')
        self.late_sh.append(shadow)

    def stamp(self, i):
        if self.o.get('stamp') and (self.o.get('smask', 0x3ff) >> i) & 1: self.a.raw(f'    {"s_memrealtime" if self.o.get("rt") else "s_memtime"} s[{82+2*i}:{83+2*i}]')

    def dump_stamps(self, tg):
        a = self.a
        if not self.o.get('stamp'): return
        lab = f'L_nodump_{tg}'
        a(f's_cmp_lg_u32 {S_S}, {self.o.get("dstep", 41)}\ns_cbranch_scc1 {lab}\ns_waitcnt lgkmcnt(0)')
        a(f's_lshl_b32 {S_T0}, {S_RANK}, 8\ns_lshl_b32 {S_T1}, {S_W}, 6\ns_add_u32 {S_T0}, {S_T0}, {S_T1}\ns_add_u32 {S_T0}, {S_T0}, {hex(L.DBG)}')
        a(f'v_mov_b32 v{T+10}, 0')
        for i in range(10):
            a(f'v_mov_b32 v{T+11}, s{82+2*i}\nbuffer_store_dword v{T+11}, v{T+10}, {WS}, {S_T0} offen offset:{4*i}')
        a(f's_waitcnt vmcnt(0)\n{lab}:')

    def r_loop(self, tg, cf, wv=0):
        a = self.a; o = self.o
        mf16 = 'v_mfma_f32_16x16x16_bf16'; mf32 = 'v_mfma_f32_16x16x32_bf16'
        cvt = 'v_cvt_pk_bf16_f32'
        QP = 'quad_perm:[2,3,0,1] row_mask:0xf bank_mask:0xf'
        dum = lambda n=1: [a(a.dummy) for _ in range(n)]
        self.late = []; self.late_sh = []; self.fixups = []
        a.auto_vm = False
        B0, B1, B2 = WVB, WVB + 8, M
        ACC = {'q': AQ, 'k': AK, 'v': AV}
        def S(m, k, p, buf=None):
            f = (m, k, p)
            self.smf(ACC[m] + 4 * p, M + 4 * k, ar(8 * AGF.index(f), 8) if buf is None else vr(buf, 8))
        def V(k, p, buf=None): S('v', k, p, buf)
        def RD(buf, m, k, p, hh):
            off = self.ldsf_off[(m, k, p)]
            a(f'ds_read_b128 {vr(buf + 4*hh, 4)}, v{V_WV if off < 65536 else V_WV2} offset:{off % 65536 + hh*1024}')
        def RD2(buf, m, k, p): RD(buf, m, k, p, 0); RD(buf, m, k, p, 1)
        def pkadd(d, x, y): a(f'v_add_f32 v{d}, v{x}, v{y}\nv_add_f32 v{d+1}, v{x+1}, v{y+1}')
        def PK(d, x, y): a(f'v_pk_add_f32 {vr(d,2)}, {vr(x,2)}, {vr(y,2)}')
        def add(d, x, y): a(f'v_add_f32 v{d}, v{x}, v{y}')
        def dmf(r): a(f'{mf16} {vr(r,4)}, {vr(SELQ,2)}, {vr(SELQ,2)}, {vr(r,4)}')
        def filt(line):
            st = 'buffer_store' in line and ('s75' in line or 's76' in line) and 'sc1' in line
            ld = 'buffer_load' in line and ('s67' in line or 's68' in line)
            if o.get('nost') and st: return None
            if o.get('nofst') and st and 's76' in line: return None
            if o.get('nold') and ld: return None
            if o.get('nofld') and ld and 's68' in line: return None
            if o.get('ldplain') and ld and 's67' in line: return line.replace(' sc1', '')
            if o.get('ldnt') and ld and 's67' in line: return line.replace(' sc1', ' nt')
            if o.get('stplain') and st: return line.replace(' sc1', '')
            if o.get('novm') and 'vmcnt' in line: return None
            if o.get('nowarm') and 'buffer_load_dword v27' in line: return 's_nop 0'
            if o.get('novmh') and 'buffer_store_dwordx2' in line: return None
            return line
        PA = M + 8; R = T + 8
        spin = f'L_kvspin_{tg}'; back = f'L_kvback_{tg}'
        def preload():
            RD2(M + 24, 'q', 0, 0); RD2(M + 16, 'q', 0, 1); RD2(B0, 'q', 1, 0); RD2(B1, 'q', 1, 1); RD2(T, 'k', 0, 0)
        def slackB():
            a(f'v_cmp_eq_u32 vcc, 0, v{V_FLAG}')
            for r in range(0, 8, 2): a(f'v_mov_b64 {vr(VXC+r,2)}, {vr(VXN+r,2)}')
            a(f's_xor_b32 {S_INP}, {S_INP}, 0x40000')
            a(f's_cbranch_vccnz {spin}\n{back}:')
            a(f"""
            s_cmp_lt_u32 {S_S}, 63
            s_cselect_b32 {S_T0}, {0 if o.get("nopf") else 32*24576}, 0
            s_add_u32 {S_REC}, {S_REC}, {S_T0}
            s_cmp_lt_u32 {S_S}, 62
            s_cselect_b32 {S_T0}, 2048, 0
            s_add_u32 {S_FKV}, {S_FKV}, {S_T0}
            s_cmp_ge_u32 {S_S}, 2
            s_cselect_b32 {S_T1}, {S_FM}, {hex(L.OOB)}
            s_cmp_ge_u32 {S_S}, 1
            s_cselect_b32 {S_T0}, {S_KVM}, {hex(L.OOB)}
            s_add_u32 {S_FM}, {S_FM}, 2048
            s_add_u32 {S_KVM}, {S_KVM}, 131072
            s_lshr_b32 {S_TAG}, {S_S}, 1
            s_and_b32 {S_TAG}, {S_TAG}, 1
            s_sub_u32 {S_NTAG}, {S_TAG}, 1
            s_add_u32 {S_IN1}, {S_IN0}, 32768
            s_and_b32 {S_OTAG}, {S_S}, 1
            s_sub_u32 {S_NOTAG}, {S_OTAG}, 1
            """)
            if o.get('steplog') and wv == 0 and tg != 's':
                a(f's_memrealtime s[82:83]\ns_lshl_b32 s84, {S_S}, 2\ns_lshl_b32 s85, {S_RANK}, 8\ns_add_u32 s84, s84, s85\ns_add_u32 s84, s84, {hex(L.DBG + 131072)}')
                a(f's_waitcnt lgkmcnt(0)\nv_mov_b32 v{V_DUM}, s82\nbuffer_store_dword v{V_DUM}, v{V_ONE}, {WS}, s84 offen')
            if o.get('zB'):
                for r in range(AQ, AQ + 24, 2): a(f'v_mov_b64 {vr(r,2)}, 0')
            if o.get('barB'): dmf(PA); a('s_barrier')
            for i in range(o.get('dB', 8) if wv >= 2 else o.get('dB0', o.get('dB', 8))): dmf(PA + 4 * (i % 2))
        def checkB():
            a(f"""
            v_max3_u32 v{R}, v{M}, v{M+1}, v{M+2}
            v_max3_u32 v{R+1}, v{M+3}, v{M+4}, v{M+5}
            v_max3_u32 v{R}, v{R}, v{M+6}, v{M+7}
            v_max_u32 v{R}, v{R}, v{R+1}
            v_cmp_eq_u32 vcc, -1, v{R}
            """)
        def shadowB():
            dmf(PA); a('s_nop 2')
        preload()
        for r in range(AQ, AQ + 24, 2): a(f'v_mov_b64 {vr(r,2)}, 0')
        a(f's_xor_b32 {S_INP}, {S_INP}, 0x40000')
        a.wait(lgkm=0)
        a(f'L_Rloop_{tg}:')
        a.forget()
        a.hot = True
        a.filt = filt
        self.poll('B' + tg, M, V_L16, S_MEMP, slackB, checkB, shadowB, o.get('nB', 3))
        if o.get('rt'): a('s_mov_b32 s84, s82')
        self.stamp(0)
        if o.get('rt'): self.dump_stamps(tg)
        wp = o.get('wpat', 3)
        ws = {0: (0, 1), 1: (1 + wv, 5 + wv), 2: (1 + 2 * (wv % 2), 2 + 2 * (wv % 2)), 3: (1 + wv % 2, 3 + wv % 2), 4: (1 + wv // 2, 3 + wv // 2),
              5: (1, 2), 6: (wv, 4 + wv), 7: (wv % 2, 2 + wv % 2), 8: (wv // 2, 2 + wv // 2)}[wp]
        wslot = [0]
        def MW():
            for i in range(2):
                if ws[i] == wslot[0]: a(f'ds_write_b128 v{V_X0}, {vr(M+4*i,4)} offset:{1024*i}')
            wslot[0] += 1
        MW()
        S('q', 0, 0, M + 24); MW()
        S('q', 0, 1, M + 16); MW()
        S('q', 1, 0, B0); MW()
        S('q', 1, 1, B1); MW()
        S('k', 0, 0, T); MW()
        S('k', 0, 1); MW()
        S('k', 1, 0); MW()
        S('k', 1, 1); MW()
        a.wait_lds_writes()
        a('s_barrier')
        def MR(k): a(f'ds_read_b128 {vr(M+4*k,4)}, v{V_X0 + k//2} offset:{1024*(k%2)}')
        MR(2); MR(3)
        V(0, 0); MR(4)
        V(0, 1); MR(5)
        V(1, 0); MR(6)
        V(1, 1); MR(7)
        VXL = lambda i: a(f'buffer_load_dwordx4 {vr(VXN+4*i,4)}, v{V_L16}, {WS}, {S_REC} offen offset:{2048+1024*i} sc1')
        self.stamp(1)
        vm_ops = [
            lambda: a(f'buffer_store_dwordx4 {vr(KMH,4)}, v{V_L16}, {WS}, {S_T0} offen sc1'),
            lambda: VXL(0),
            lambda: VXL(1),
            lambda: (a(f'buffer_store_dword v{V_F}, v{V_ONE}, {WS}, {S_T1} offen sc1'),
                     a(f'buffer_load_dword v{V_FLAG}, v{V_Z}, {WS}, {S_FKV} offen sc1')),
        ]
        slot = [0]
        first = o.get('vm0', 5)
        def X():
            i = slot[0] - first - wv
            if i == 0: a('s_waitcnt vmcnt(0)')
            if i >= 0 and i % 4 == 0 and i // 4 < len(vm_ops): vm_ops[i // 4]()
            slot[0] += 1
        S('q', 2, 0); RD(B0, 'k', 2, 1, 0); X()
        S('q', 3, 0); RD(B0, 'k', 2, 1, 1); X()
        S('q', 4, 0); RD(B1, 'k', 3, 1, 0); X()
        S('q', 5, 0); RD(B1, 'k', 3, 1, 1); X()
        S('q', 6, 0); RD(T, 'k', 4, 1, 0); X()
        S('q', 7, 0); RD(T, 'k', 4, 1, 1); X()
        S('q', 2, 1); X()
        S('q', 3, 1); X()
        S('q', 4, 1); X()
        assert slot[0] > first + wv
        S('q', 5, 1); RD(B2, 'k', 5, 1, 0); X(); add(AQ, AQ, AQ + 2)
        S('q', 6, 1); RD(B2, 'k', 5, 1, 1); X(); add(AQ + 1, AQ + 1, AQ + 3)
        S('q', 7, 1); X(); a(f'{cvt} v{AQ+2}, v{AQ}, v{AQ+1}')
        S('k', 2, 0); X()
        S('k', 2, 1, B0); RD(B0, 'k', 6, 1, 0); X()
        S('k', 3, 0); RD(B0, 'k', 6, 1, 1); X()
        S('k', 3, 1, B1); RD(B1, 'k', 7, 0, 0); X(); add(AQ + 4, AQ + 4, AQ + 6)
        S('k', 4, 0); RD(B1, 'k', 7, 0, 1); X(); add(AQ + 5, AQ + 5, AQ + 7)
        S('k', 4, 1, T); RD(T, 'k', 7, 1, 0); X(); a(f'{cvt} v{AQ+3}, v{AQ+4}, v{AQ+5}')
        S('k', 5, 0); RD(T, 'k', 7, 1, 1); X()
        a(f'{mf16} {vr(AQ+4,4)}, {vr(AQ+2,2)}, {vr(SELQ,2)}, 0'); X()
        a(f'{mf16} {vr(T+8,4)}, {vr(AQ+2,2)}, {vr(SELQ+2,2)}, 0'); X()
        S('k', 5, 1, B2); RD(B2, 'v', 6, 0, 0); X()
        S('k', 6, 0); RD(B2, 'v', 6, 0, 1)
        S('k', 7, 0, B1); RD(B1, 'v', 7, 0, 0); a(f'{cvt} v{AQ}, v{AQ+4}, v{AQ+5}')
        S('k', 6, 1, B0); RD(B1, 'v', 7, 0, 1); a(f'{cvt} v{AQ+1}, v{AQ+6}, v{AQ+7}\n{cvt} v{AQ+2}, v{T+8}, v{T+9}')
        S('k', 7, 1, T); RD(B0, 'v', 6, 1, 0); a(f'{cvt} v{AQ+3}, v{T+10}, v{T+11}')
        assert slot[0] > first + wv + 4 * (len(vm_ops) - 1)
        self.stamp(2)
        RD(B0, 'v', 6, 1, 1)
        add(AK, AK, AK + 2)
        a(f'{mf32} {vr(AQ+4,4)}, {vr(KX,4)}, {vr(AQ,4)}, 0')
        add(AK + 1, AK + 1, AK + 3)
        a(f'{cvt} v{AK+2}, v{AK}, v{AK+1}')
        a(f'{mf32} {vr(T+8,4)}, {vr(KX+4,4)}, {vr(AQ,4)}, 0')
        pkadd(AK + 4, AK + 4, AK + 6)
        a(f'{cvt} v{AK+3}, v{AK+4}, v{AK+5}')
        a(f'{mf16} {vr(AK+4,4)}, {vr(AK+2,2)}, {vr(SELK,2)}, 0')
        a(f'{mf16} {vr(T,4)}, {vr(AK+2,2)}, {vr(SELK+2,2)}, 0')
        kslot = [0]
        def KL():
            i = kslot[0] - wv
            if i in (0, 4): a(f'buffer_load_dwordx4 {vr(KX+i,4)}, v{V_L16}, {WS}, {S_REC} offen offset:{256*i} sc1')
            kslot[0] += 1
        for i in range(4): a(f'v_cndmask_b32 v{AK+i}, v{T+8+i}, v{AQ+4+i}, {S_LO}')
        a(f'{cvt} v{KMH}, v{AK+4}, v{AK+5}\n{cvt} v{KMH+1}, v{AK+6}, v{AK+7}')
        a(f'{cvt} v{KMH+2}, v{T}, v{T+1}\n{cvt} v{KMH+3}, v{T+2}, v{T+3}')
        a(f'{mf32} {vr(T+4,4)}, {vr(KMH,4)}, {vr(AQ,4)}, 0')
        V(2, 0)
        a(f'ds_write_b128 v{V_X0}, {vr(AK,4)} offset:8192')
        a(f'v_cndmask_b32 v{T+4}, v{T+5}, v{T+4}, {S_LO}')
        V(2, 1)
        a(f'ds_write_b32 v{V_SMW}, v{T+4}')
        self.stamp(3)
        B3 = M + 8
        ONES, HALF = B2, B2 + 4
        V(3, 0); KL()
        V(3, 1); RD(B3, 'v', 7, 1, 0); KL()
        V(6, 0, B2); RD(B3, 'v', 7, 1, 1); KL()
        V(6, 1, B0); KL()
        if o.get('vb', 4) > 4: V(7, 0, B1)
        a.wait_lds_writes()
        a('s_barrier')
        SX = [T + 4, T + 8, AQ + 4]
        SR = lambda x: a(f'ds_read_b128 {vr(SX[x-1],4)}, v{V_X0+x} offset:8192')
        SR(1)
        if o.get('vb', 4) <= 4: V(7, 0, B1)
        SR(2); SR(3)
        V(4, 0); a(f'ds_read_b128 {vr(T,4)}, v{V_F} offset:1024'); a(f'v_mov_b64 {vr(ONES,2)}, s[26:27]')
        V(4, 1); KL(); a(f'v_mov_b64 {vr(ONES+2,2)}, s[26:27]')
        V(5, 0); KL(); a(f'v_mov_b64 {vr(HALF,2)}, s[8:9]')
        V(7, 1, B3); KL()
        V(5, 1); KL()
        WOS = lambda i, hh: a(f'ds_read_b128 {vr(WVB+8*i+4*hh,4)}, v{V_X0} offset:{16384+8192*i+1024*hh}')
        zs = list(range(M + 8, M + 32, 2)) + list(range(M, M + 8, 2))
        def Z(n):
            for _ in range(n): a(f'v_mov_b64 {vr(zs.pop(0),2)}, 0')
        self.stamp(4)
        pkadd(AK, AK, SX[0]); pkadd(AK + 2, AK + 2, SX[0] + 2)
        PK(SX[1], SX[1], SX[2]); PK(SX[1] + 2, SX[1] + 2, SX[2] + 2)
        PK(T, T, T + 2)
        PK(AK, AK, SX[1]); PK(AK + 2, AK + 2, SX[1] + 2)
        add(T, T, T + 1)
        mx, t2 = T + 2, T + 3
        a(f'v_max3_f32 v{mx}, v{AK}, v{AK+1}, v{AK+2}\nv_max3_f32 v{mx}, v{mx}, v{AK+3}, v{T}')
        PK(AV, AV, AV + 2); PK(AV + 4, AV + 4, AV + 6)
        a(f'v_max_f32_dpp v{t2}, v{mx}, v{mx} {QP}\nv_max_f32_dpp v{mx}, v{mx}, v{mx} {QP}')
        a(f'{cvt} v{AV+2}, v{AV}, v{AV+1}\n{cvt} v{AV+3}, v{AV+4}, v{AV+5}')
        a(f'v_permlane16_swap_b32 v{mx}, v{t2}\nv_max_f32 v{T+1}, v{mx}, v{t2}\nv_max_f32 v{mx}, v{mx}, v{t2}')
        a(f'{mf16} {vr(AV+4,4)}, {vr(SELV,2)}, {vr(AV+2,2)}, 0')
        WOS(0, 0)
        a(f'v_permlane32_swap_b32 v{mx}, v{T+1}\nv_max_f32 v{mx}, v{mx}, v{T+1}\nv_mul_f32 v{mx}, {S_SC}, v{mx}')
        E = [AK, AK + 1, AK + 2, AK + 3, T]
        for e in E: a(f'v_fma_f32 v{e}, v{e}, {S_SC}, -v{mx}')
        for e in E: a(f'v_exp_f32 v{e}, v{e}')
        BX, PM = AQ, T + 6
        a(f'{cvt} v{T+8}, v{AK}, v{AK+1}\n{cvt} v{T+9}, v{AK+2}, v{AK+3}')
        a(f"""
        v_cndmask_b32 v{BX}, 0, v{T+8}, {S_LO}
        v_cndmask_b32 v{BX+1}, 0, v{T+9}, {S_LO}
        v_cndmask_b32 v{BX+2}, v{T+8}, 0, {S_LO}
        v_cndmask_b32 v{BX+3}, v{T+9}, 0, {S_LO}
        v_mov_b32_dpp v{T+1}, v{T} {QP}
        {cvt} v{VMH}, v{AV+4}, v{AV+5}
        """)
        D, D2, DL = AQ + 4, AK + 4, T + 8
        a(f'{mf32} {vr(DL,4)}, {vr(ONES,4)}, {vr(BX,4)}, 0')
        WOS(0, 1)
        a(f'{cvt} v{T+4}, v{T}, v{T+1}\n{cvt} v{T+5}, v{T+1}, v{T}')
        a(f'{mf32} {vr(D2,4)}, {vr(VXC+4,4)}, {vr(BX,4)}, 0')
        WOS(1, 0)
        a(f'v_cndmask_b32 v{PM}, 0, v{T+4}, {S_LO}\nv_cndmask_b32 v{PM+1}, v{T+5}, 0, {S_LO}')
        a(f'{mf32} {vr(D,4)}, {vr(VXC,4)}, {vr(BX,4)}, 0')
        WOS(1, 1)
        a(f'{cvt} v{VMH+1}, v{AV+6}, v{AV+7}')
        a(f'{mf16} {vr(DL,4)}, {vr(HALF,2)}, {vr(PM,2)}, {vr(DL,4)}')
        Z(1)
        a(f'{mf16} {vr(D,4)}, {vr(VMH,2)}, {vr(PM,2)}, {vr(D,4)}')
        Z(o.get('zpv', 5))
        l = DL + 1
        a(f'v_add_f32_dpp v{l}, v{DL}, v{DL} {QP}\nv_rcp_f32 v{l}, v{l}')
        for i in range(4): a(f'v_add_f32_dpp v{D+i}, v{D2+i}, v{D+i} {QP}')
        for i in (0, 2): a(f'v_pk_mul_f32 {vr(D+i,2)}, {vr(D+i,2)}, {vr(l-1,2)} op_sel:[0,1] op_sel_hi:[1,1]')
        tagx = not o.get('bar3')
        a(f'{cvt} v{T}, v{D}, v{D+1}\n{cvt} v{T+1}, v{D+2}, v{D+3}')
        if tagx: a(f'v_and_or_b32 v{T}, v{T}, -2, {S_OTAG}')
        self.stamp(5)
        a(f'ds_write_b64 v{V_OW}, {vr(T,2)}')
        a(f's_cmp_eq_u32 {S_S}, 63\ns_cbranch_scc1 L_Rtail_{tg}')
        OA = AK
        def oread(): a(f'ds_read_b128 {vr(OA,4)}, v{V_F} offset:3072\nds_read_b128 {vr(OA+4,4)}, v{V_F} offset:5120')
        def ocheck():
            a(f'v_bitop3_b32 v{T+2}, v{OA}, v{OA+2}, {S_NOTAG} bitop3:0x42')
            a(f'v_bitop3_b32 v{T+3}, v{OA+4}, v{OA+6}, {S_NOTAG} bitop3:0x42')
            a(f'v_bitop3_b32 v{T+2}, v{T+2}, v{T+3}, 1 bitop3:0x80')
            a(f'v_cmp_eq_u32 vcc, 0, v{T+2}')
        if tagx:
            n1 = min(o.get('z3', 7), len(zs))
            Z(n1)
            for _ in range(o.get('z3', 7) - n1): a('s_nop 1')
            oread(); Z(len(zs))
        else:
            Z(min(6, len(zs)))
            a.wait_lds_writes()
            a('s_barrier')
            oread()
            Z(len(zs))
        self.stamp(6)
        def wo(t, kb):
            fr = WVB + 8 * WO_SPILL.index((t, kb)) if (t, kb) in WO_SPILL else wo_frag(t, kb)
            self.smf(M + 4 * t, OA + 4 * kb, vr(fr, 8))
        def fa(t, i): add(M + 4 * t + i, M + 4 * t + i, M + 4 * t + 2 + i)
        def fc(t): a(f'{cvt} v{AQ+t}, v{M+4*t}, v{M+4*t+1}')
        def tagit(r): a(f'v_and_or_b32 v{r}, v{r}, -2, {S_TAG}')
        a(f'L_wo_{tg}:')
        if tagx:
            wo(0, 0); a(f'v_bitop3_b32 v{T+2}, v{OA}, v{OA+2}, {S_NOTAG} bitop3:0x42')
            wo(1, 0); a(f'v_bitop3_b32 v{T+3}, v{OA+4}, v{OA+6}, {S_NOTAG} bitop3:0x42')
            wo(0, 1); a(f'v_bitop3_b32 v{T+2}, v{T+2}, v{T+3}, 1 bitop3:0x80')
            wo(1, 1); a(f'v_cmp_eq_u32 vcc, 0, v{T+2}')
            wo(2, 0); wo(2, 1); wo(3, 0)
            a(f's_cbranch_vccnz L_ofix_{tg}')
            wo(3, 1)
            def fix():
                a(f'L_ofix_{tg}:\ns_mov_b32 s23, {SPIN}\nL_ofix2_{tg}:')
                a.forget(vm=False)
                oread(); a.wait(lgkm=0); ocheck()
                a(f's_cbranch_vccz L_ofix3_{tg}\ns_sub_u32 s23, s23, 1\ns_cbranch_scc0 L_ofix2_{tg}\ns_xor_b32 {S_NOTAG}, {S_NOTAG}, v_never' if False else
                  f's_cbranch_vccz L_ofix3_{tg}\ns_sub_u32 s23, s23, 1\ns_cbranch_scc0 L_ofix2_{tg}\ns_endpgm\nL_ofix3_{tg}:')
                for r in range(M, M + 16, 2): a(f'v_mov_b64 {vr(r,2)}, 0')
                a(f's_branch L_wo_{tg}')
            self.fixups.append(fix)
        else:
            wo(0, 0); wo(1, 0); wo(0, 1); wo(1, 1); wo(2, 0); wo(2, 1); wo(3, 0); wo(3, 1)
        wo(4, 0); fa(0, 0); fa(0, 1); fa(1, 0)
        wo(4, 1); fa(1, 1); fc(0); fc(1)
        wo(5, 0); fa(2, 0); fa(2, 1); tagit(AQ)
        wo(5, 1); fa(3, 0); fa(3, 1); fc(2)
        wo(6, 0); fc(3)
        wo(6, 1)
        a(f'buffer_store_dwordx4 {vr(AQ,4)}, v{V_IST}, {WS}, {S_IN0} offen {cf}')
        wo(7, 0); fa(4, 0)
        wo(7, 1); fa(4, 1); fc(4); fa(5, 0); fa(5, 1); tagit(AQ + 4); fc(5)
        fa(6, 0); fa(6, 1); fc(6); fa(7, 0); fa(7, 1); fc(7)
        a(f'buffer_store_dwordx4 {vr(AQ+4,4)}, v{V_IST}, {WS}, {S_IN1} offen {cf}')
        self.stamp(7)
        def pack_kvm():
            a(f's_mov_b64 vcc, {S_LO}')
            for i in range(4):
                qp = '[0,0,0,2]' if i < 2 else '[0,0,1,3]'
                a(f'v_cndmask_b32_dpp v{KMH+i}, v{VMH+i%2}, v{KMH+i}, vcc quad_perm:{qp} row_mask:0xf bank_mask:0xf')
        self.pack_kvm = pack_kvm
        def preA():
            a(f"""
            v_mov_b32 v{PA}, {S_NTAG}
            v_mov_b32 v{PA+4}, {S_NTAG}
            """)
            for i in range(o.get('dA', 4) if wv >= 2 else o.get('dA0', o.get('dA', 4))): dmf(R)
        def slackA():
            preload()
            pack_kvm()
            a(f"""
            s_add_u32 {S_S}, {S_S}, 1
            s_xor_b32 {S_IN0}, {S_IN0}, 0x40000
            s_and_b32 {S_T0}, {S_S}, 3
            s_lshl_b32 {S_T0}, {S_T0}, 13
            v_mov_b64 {vr(M,2)}, -1
            s_andn2_b32 {S_PUBB}, {S_PUBB}, 0x6000
            s_andn2_b32 {S_MEMP}, {S_MEMP}, 0x6000
            v_mov_b64 {vr(M+2,2)}, -1
            s_or_b32 {S_MEMP}, {S_MEMP}, {S_T0}
            s_xor_b32 {S_RST}, {S_T0}, 0x4000
            v_mov_b64 {vr(M+4,2)}, -1
            s_or_b32 {S_RST}, {S_RST}, {S_PUBB}
            s_or_b32 {S_PUBB}, {S_PUBB}, {S_T0}
            v_mov_b64 {vr(M+6,2)}, -1
            """)
            if not o.get('zB'):
                for r in range(AQ, AQ + 24, 2): a(f'v_mov_b64 {vr(r,2)}, 0')
            a.wait(lgkm=0)
        def checkA():
            a(f"""
            v_bitop3_b32 v{VXC}, v{PA}, v{PA+4}, {S_NTAG} bitop3:0x42
            v_and_b32 v{VXC}, 1, v{VXC}
            v_cmp_eq_u32 vcc, 0, v{VXC}
            """)
        def shadowA():
            a(f'{mf32} {vr(R,4)}, {vr(PA,4)}, {vr(SELR,4)}, 0\n{mf32} {vr(R,4)}, {vr(PA+4,4)}, {vr(SELR,4)}, {vr(R,4)}')
        self.poll('A' + tg, PA, V_L16, S_INP, preA, checkA, shadowA, o.get('nA', 3) if wv >= 2 else o.get('nA0', o.get('nA', 3)), mid=slackA, nmid=o.get('mA', 0))
        self.stamp(8)
        a(f"""
        v_permlane32_swap_b32 v{R}, v{R+2}
        v_permlane32_swap_b32 v{R+1}, v{R+3}
        v_add_f32 v{R}, v{R}, v{R+2}
        v_add_f32 v{R+1}, v{R+1}, v{R+3}
        v_permlane16_swap_b32 v{R}, v{R+1}
        v_add_f32 v{R}, v{R}, v{R+1}
        v_mov_b32_dpp v{R+1}, v{R} quad_perm:[1,0,3,2] row_mask:0xf bank_mask:0xf
        {cvt} v{R+2}, v{R}, v{R+1}
        buffer_store_dword v{R+2}, v{V_PUB}, {WS}, {S_PUBB} offen {cf}
        """)
        self.stamp(9)
        a(f'buffer_store_dword v{M}, v{V_PUB}, {WS}, {S_RST} offen {cf}')
        if not o.get('rt'): self.dump_stamps(tg)
        a(f's_branch L_Rloop_{tg}')
        a.hot = False
        a(f'{spin}:')
        self.spin_flag(V_FLAG, f'v{V_Z}', S_FKV)
        a(f's_branch {back}')
        for txt, sh in zip(self.late, self.late_sh):
            pre, post = txt.split('@SH@')
            a(pre); a('s_nop 7'); sh(); a(post)
        for f in self.fixups: f()
        a(f'L_Rtail_{tg}:')
        a.forget()
        self.pack_kvm()
        a(f'''
        buffer_store_dwordx4 {vr(KMH,4)}, v{V_L16}, {WS}, {S_KVM} offen sc1
        s_waitcnt vmcnt(0) lgkmcnt(0)
        buffer_store_dword v{V_F}, v{V_ONE}, {WS}, {S_FM} offen sc1
        buffer_store_dword v{V_F}, v{V_ONE}, {WS}, {S_FM} offen offset:2048 sc1
        ''')
        self.tstamp(6, T + 4)
        if o.get('stamp'):
            set_srd(a, 12, P_DBG, 256)
            a(f'''
            s_memtime s[82:83]
            s_memrealtime s[84:85]
            s_waitcnt lgkmcnt(0)
            s_sub_u32 s82, s82, s80
            s_sub_u32 s84, s84, s30
            s_sub_u32 s28, s28, s30
            v_mov_b32 v{T}, s82
            v_mov_b32 v{T+1}, {S_FAST}
            v_mov_b32 v{T+2}, s28
            v_mov_b32 v{T+3}, s84
            v_mov_b32 v{T+4}, 8
            buffer_store_dwordx4 {vr(T,4)}, v{T+4}, {ST}, 0 offen
            ''')
        a('s_endpgm')
        a.auto_vm = True
```

```python
import layout as L
from gen_common import *
import struct
def f2u(x): return struct.unpack('<I', struct.pack('<f', x))[0]
mf16 = 'v_mfma_f32_16x16x16_bf16'; mf32 = 'v_mfma_f32_16x16x32_bf16'; cvt = 'v_cvt_pk_bf16_f32'

TB = 0
NAMES = list(L.w_table().keys())
def tv(n): return TB + NAMES.index(n)
V_TID = 24
XF = 48
ACC = 64
S_ISB, S_SEG, S_END, S_STEP, S_BASE, S_STR = 's61', 's62', 's63', 's64', 's65', 's66'
S_XB, S_PF, S_PF2, S_A, S_B, S_HEAD = 's67', 's68', 's69', 's70', 's71', 's72'
S_FIRST = 's73'
S_TFAST = 's89'
SX = 's[24:27]'

def wfrag(m, ks, p):
    c = 'qkv'.index(m) * 8 + ks // 2
    r = c * 16 + p * 8 + (ks % 2) * 4
    return ar(r, 4) if r < 256 else vr(128 + r - 256, 4)

class Workers:
    def tables(self):
        return L.table_text('T_R', L.r_table()) + L.table_text('T_W', L.w_table())

    def xlane(self, op, x, t):
        a = self.a
        a(f'v_mov_b32 v{t}, v{x}\nv_permlane16_swap_b32 v{x}, v{t}\n{op} v{x}, v{x}, v{t}')
        a(f'v_mov_b32 v{t}, v{x}\nv_permlane32_swap_b32 v{x}, v{t}\n{op} v{x}, v{x}, v{t}')

    def x_dma(self):
        a = self.a
        a(f's_lshl_b32 s21, {S_A}, 15\ns_lshl_b32 s22, {S_W}, 8\ns_add_u32 s21, s21, s22')
        a(f's_lshl_b32 s22, {S_W}, 13\ns_add_u32 m0, s22, {S_XB}')
        for k in range(4):
            for tt in range(2):
                a(f'buffer_load_dwordx4 v{tv("xg")}, {SX}, s21 offen lds')
                a('s_add_u32 m0, m0, 1024')
                a(f's_add_u32 s21, s21, {16384 if tt == 0 else hex((64 - 16384) & 0xFFFFFFFF)}')

    def worker_role(self):
        a = self.a; o = self.o
        a('L_worker:')
        a.vq = list(self.vq_role)
        self.mark(0)
        if o.get('no_workers'):
            self.gate_and_store(); a.wait(vm=0); self.signal_init(); a('s_endpgm'); return
        a(f'''
        s_sub_u32 s21, {S_TEAM}, 1
        s_lshl_b32 s21, s21, 5
        s_add_u32 s21, s21, {S_RANK}
        s_cmp_ge_u32 s21, 192
        s_cselect_b32 {S_ISB}, 1, 0
        s_cbranch_scc1 L_w_B
        s_mul_i32 {S_HEAD}, s21, 43691
        s_lshr_b32 {S_HEAD}, {S_HEAD}, 18
        s_mul_i32 s22, {S_HEAD}, 6
        s_sub_u32 {S_SEG}, s21, s22
        s_mov_b32 {S_END}, 64
        s_mov_b32 {S_STEP}, 6
        s_mov_b32 {S_FIRST}, 0
        s_movk_i32 {S_STR}, 8192
        s_mov_b32 s75, {4<<20}
        s_branch L_w_dec
        L_w_B:
        s_sub_u32 s21, s21, 192
        s_lshr_b32 {S_HEAD}, s21, 3
        s_and_b32 s21, s21, 7
        s_lshl_b32 {S_FIRST}, s21, 3
        s_add_u32 {S_END}, {S_FIRST}, 8
        s_max_u32 {S_SEG}, {S_FIRST}, 1
        s_sub_u32 {S_SEG}, {S_SEG}, 1
        s_mov_b32 {S_STEP}, 1
        s_movk_i32 {S_STR}, 3072
        s_mov_b32 s75, {512*3072}
        L_w_dec:
        v_and_b32 v1, 63, v0
        v_lshrrev_b32 v2, 4, v1
        v_and_b32 v3, 15, v1
        v_lshlrev_b32 v3, 4, v3
        s_lshl_b32 s79, {S_STR}, 4
        v_mul_lo_u32 v2, v2, s79
        v_add_u32 v28, v2, v3
        s_mul_i32 s78, {S_W}, {L.BLK}
        s_lshl_b32 s77, {S_HEAD}, 8
        s_lshl_b32 s79, {S_STR}, 6
        ''')
        nwarm = 0
        if o.get('mall'):
            a(f's_sub_u32 s21, {S_TEAM}, 1\ns_lshl_b32 s21, s21, 5\ns_add_u32 s21, s21, {S_RANK}\ns_lshl_b32 s21, s21, 2\ns_add_u32 s21, s21, {S_W}')
            a('v_lshlrev_b32 v29, 7, v1\ns_mov_b32 s10, 0x400000\ns_mov_b32 s11, 0x20000')
            for i in range(2):
                a(f'''
                s_add_u32 s22, s21, {896 * i}
                s_cmp_ge_u32 s22, 512
                s_cselect_b32 s8, s{P_WV}, s{P_WK}
                s_cselect_b32 s9, s{P_WV+1}, s{P_WK+1}
                s_and_b32 s23, s22, 511
                s_lshl_b32 s23, s23, 13
                s_cmp_ge_u32 s22, 1024
                s_cselect_b32 s23, {hex(L.OOB)}, s23
                buffer_load_dword v{30+i%2}, v29, {SA}, s23 offen
                ''')
        groups = [(m, b) for m in 'kvq' for b in range(2)]
        def issue(gi):
            m, b = groups[gi]
            if b == 0:
                ptr = {'q': P_WQ, 'k': P_WK, 'v': P_WV}[m]
                a(f"""
                s_cmp_eq_u32 {S_ISB}, 1
                s_cselect_b32 s8, s{P_WQKV}, s{ptr}
                s_cselect_b32 s9, s{P_WQKV+1}, s{ptr+1}
                s_mov_b32 s10, s75
                s_mov_b32 s11, 0x20000
                s_cselect_b32 s76, {'qkv'.index(m) * 1024}, 0
                s_add_u32 s76, s76, s77
                """)
            a(f's_add_u32 m0, s78, {(gi % 2) * L.GRP}')
            a(f's_add_u32 s21, {S_W}, {4 * b}\ns_mul_i32 s21, s21, s79\ns_add_u32 s21, s21, s76')
            self.dma_block('v28', 's21', S_STR)
        issue(0)
        self.load_table('T_W', 96, 24, 7)
        issue(1)
        self.mark(1)
        self.gate_and_store()
        a(f'v_mov_b32 v{V_TID}, v0')
        for i in range(24): a(f'v_mov_b32 v{TB+i}, v{96+i}')
        a(f'v_add_u32 v29, {L.GRP}, v{tv("trp")}')
        set_srd(a, 24, P_X, 2048 * 1024)
        a(f's_mov_b32 {S_XB}, 0\ns_mov_b32 {S_A}, {S_SEG}')
        a.auto_vm = False
        def consume(gi):
            m, b = groups[gi]
            a('s_barrier')
            for x in range(4):
                for p in range(2):
                    for h in range(2):
                        f = wfrag(m, 2 * (4 * b + x) + h, p)
                        kind, base = f[0], int(f[2:f.index(':')])
                        for r in range(2):
                            a(f'ds_read_b64_tr_b16 {kind}[{base+2*r}:{base+2*r+1}], v{tv("trp") if gi % 2 == 0 else 29} offset:{x * L.BLK + 512*h + 4224*r + 32*p}')
            a.wait(lgkm=0)
            a('s_barrier')
        VX = 25
        KP, VP = 112, 116
        acc = lambda m, p, tt: ACC + 16 * 'qkv'.index(m) + 8 * p + 4 * tt
        def xr(ks):
            for tt in range(2):
                a(f'ds_read_b128 {vr(XF + 8*(ks%2) + 4*tt, 4)}, v{VX} offset:{(ks*2+tt)*1024}')
        def loop_head(lab, mats, nst):
            a(f'{lab}:')
            a(f's_waitcnt vmcnt({nst + 1})')
            a('s_barrier')
            a(f's_add_u32 {S_A}, {S_SEG}, {S_STEP}\ns_min_u32 {S_A}, {S_A}, 63\ns_xor_b32 {S_XB}, {S_XB}, 32768')
            self.x_dma()
            xr(0)
            for ks in range(16):
                if ks < 15: xr(ks + 1)
                if ks == 9:
                    a('s_waitcnt vmcnt(8)')
                    a(f'buffer_store_dword v{tv("oxr")}, v{tv("one")}, {WS}, {S_PF} offen sc1')
                for m in mats:
                    for p in range(2):
                        for tt in range(2):
                            d = vr(acc(m, p, tt), 4)
                            x = vr(XF + 8 * (ks % 2) + 4 * tt, 4); w = wfrag(m, ks, p)
                            A, B = (w, x) if m != 'v' else (x, w)
                            a(f'{mf32} {d}, {A}, {B}, {d if ks else 0}')
            a(f'v_xor_b32 v{VX}, 32768, v{VX}')
        def loop_tail(lab):
            a(f's_add_u32 {S_SEG}, {S_SEG}, {S_STEP}\ns_cmp_lt_u32 {S_SEG}, {S_END}\ns_cbranch_scc1 {lab}')
            a('s_waitcnt vmcnt(0)')
            a(f'buffer_store_dword v{tv("oxr")}, v{tv("one")}, {WS}, {S_PF} offen sc1')
            a('s_barrier')
        def start_loop():
            a(f's_mov_b32 {S_PF}, {hex(L.OOB)}\nv_mov_b32 v{VX}, v{tv("l16")}')
        def init_sync(marks=True, t=40):
            a.forget()
            if marks:
                self.dump_marks(t)
                self.tstamp(1, t)
            lab = a.newlabel('wz')
            a(f'v_mov_b32 v{t+4}, {L.LDS_BYTES - 16}\ns_cmp_lg_u32 {S_W}, 0\ns_cbranch_scc1 {lab}')
            self.wait_init(t0=t, tid=V_TID)
            a(f'v_mov_b32 v{t+5}, s21\nds_write_b32 v{t+4}, v{t+5}')
            a.wait(lgkm=0)
            a(f'{lab}:\ns_waitcnt vmcnt(0)\ns_barrier\nds_read_b32 v{t+5}, v{t+4}')
            a(f'v_readfirstlane_b32 s21, v{t+5}')
            a(f's_cmp_ge_u32 s21, 32\ns_cselect_b32 {S_TFAST}, 1, 0')
            if o.get('force_slow'): a(f's_mov_b32 {S_TFAST}, 0')
            self.tstamp(2, t)
        def a_epilogue(frs, foff, flagoff):
            a(f"""
            s_lshl_b32 s21, {S_SEG}, 5
            s_add_u32 s21, s21, {S_HEAD}
            s_lshl_b32 {S_PF}, s21, 6
            s_mul_i32 s21, s21, 24576
            s_mul_i32 s22, {S_W}, 6144
            s_add_u32 s21, s21, s22
            s_add_u32 s21, s21, {foff}
            s_lshl_b32 s23, {S_W}, 2
            s_add_u32 {S_PF}, {S_PF}, s23
            s_add_u32 {S_PF}, {S_PF}, {hex(L.F_KV + flagoff)}
            """)
            for f, (t0, t1) in enumerate(frs):
                o4 = 32 + 4 * f
                for i, t in enumerate((t0, t1)):
                    r = acc(*t)
                    a(f'{cvt} v{o4+2*i}, v{r}, v{r+1}\n{cvt} v{o4+2*i+1}, v{r+2}, v{r+3}')
                a(f'buffer_store_dwordx4 {vr(o4,4)}, v{tv("l16")}, {WS}, s21 offen offset:{1024*f} sc1')
        self.mark(2)
        for gi in range(2):
            a.wait(vm=17)
            if gi == 0: self.mark(3)
            consume(gi); issue(gi + 2)
        a.wait(vm=16); self.mark(4)
        consume(2)
        a(f's_cmp_eq_u32 {S_ISB}, 1\ns_cbranch_scc1 L_w_Bload')
        self.x_dma()
        self.signal_init(tid=V_TID, t=40, barrier=False)
        a.wait(vm=8); self.mark(5); self.mark(6)
        consume(3)
        a.forget(); self.dump_marks(40); self.tstamp(1, 40)
        a('s_waitcnt vmcnt(0)')
        a(f's_mov_b32 {S_FIRST}, {S_SEG}')
        start_loop()
        loop_head('L_P_kv', 'kv', 4)
        a_epilogue([[('k', 0, 0), ('k', 1, 0)], [('k', 0, 1), ('k', 1, 1)], [('v', 0, 0), ('v', 1, 1)], [('v', 1, 0), ('v', 0, 1)]], 0, 0)
        lab = a.newlabel('nf')
        a(f's_cmp_lg_u32 {S_SEG}, {S_FIRST}\ns_cbranch_scc1 {lab}')
        init_sync(marks=False, t=48)
        a(f'buffer_store_dword v{tv("oxr")}, v{tv("one")}, {WS}, {S_PF} offen sc1\n{lab}:')
        loop_tail('L_P_kv')
        issue(4); issue(5)
        a('s_waitcnt vmcnt(16)'); consume(4)
        a(f's_mov_b32 {S_SEG}, {S_FIRST}\ns_mov_b32 {S_XB}, 0\ns_mov_b32 {S_A}, {S_SEG}')
        self.x_dma()
        a('s_waitcnt vmcnt(8)'); consume(5)
        a('s_waitcnt vmcnt(0)')
        start_loop()
        loop_head('L_P_q', 'q', 2)
        a_epilogue([[('q', 0, 0), ('q', 1, 0)], [('q', 0, 1), ('q', 1, 1)]], 4096, 16)
        loop_tail('L_P_q')
        a('s_branch L_P_done')
        a('L_w_Bload:')
        issue(4)
        self.signal_init(tid=V_TID, t=40, barrier=False)
        a('s_waitcnt vmcnt(16)'); consume(3); issue(5)
        a('s_waitcnt vmcnt(16)'); self.mark(5); consume(4)
        self.x_dma()
        a('s_waitcnt vmcnt(8)'); self.mark(6); consume(5)
        init_sync()
        for r in range(KP, KP + 8, 2): a(f'v_mov_b64 {vr(r,2)}, 0')
        start_loop()
        loop_head('L_P_B', 'qkv', 4)
        G1 = 26
        a(f's_lshl_b32 s21, {S_SEG}, 7\ns_add_u32 s21, s21, {hex(L.GATE)}')
        a(f'buffer_load_dword v{G1}, v{tv("c4")}, {WS}, s21 offen sc1\nbuffer_load_dword v{G1+1}, v{tv("c4")}, {WS}, s21 offen offset:64 sc1')
        for m in 'qkv':
            for p in range(2):
                for tt in range(2):
                    r = acc(m, p, tt)
                    a(f'{cvt} v{r}, v{r}, v{r+1}\n{cvt} v{r+1}, v{r+2}, v{r+3}')
        a(f'''
        s_mov_b32 s80, 0xaaaaaaaa
        s_mov_b32 s81, 0xaaaaaaaa
        v_cmp_ne_u32 s[82:83], 0, v{tv("mc0")}
        v_cmp_ne_u32 s[84:85], 0, v{tv("mc1")}
        s_mov_b32 s86, {hex(f2u(0.25 * 1.4426950408889634))}
        s_cmp_eq_u32 {S_SEG}, 0
        s_cselect_b32 s87, 0xf149f2ca, 0
        s_lshl_b32 s21, {S_SEG}, 5
        s_lshl_b32 s22, {S_HEAD}, 3
        s_add_u32 s21, s21, s22
        s_lshl_b32 s22, {S_W}, 1
        s_add_u32 s21, s21, s22
        s_lshl_b32 s21, s21, 10
        s_add_u32 s21, s21, {hex(L.OB)}
        s_cmp_lt_u32 {S_SEG}, {S_FIRST}
        s_cselect_b32 s21, {hex(L.OOB)}, s21
        s_lshl_b32 {S_PF}, {S_SEG}, 2
        s_add_u32 {S_PF}, {S_PF}, {S_HEAD}
        s_lshl_b32 {S_PF}, {S_PF}, 6
        s_lshl_b32 s22, {S_W}, 2
        s_add_u32 {S_PF}, {S_PF}, s22
        s_add_u32 {S_PF}, {S_PF}, {hex(L.F_OB)}
        s_cmp_lt_u32 {S_SEG}, {S_FIRST}
        s_cselect_b32 {S_PF}, {hex(L.OOB)}, {S_PF}
        s_waitcnt vmcnt(0)
        v_sub_f32 v{G1}, 1.0, v{G1}
        v_sub_f32 v{G1+1}, 1.0, v{G1+1}
        ''')
        for p in range(2):
            for tt in range(2):
                q = acc('q', p, tt); kc = acc('k', p, tt); vc = acc('v', p, tt)
                kp = KP + 2 * p if tt == 0 else acc('k', p, 0)
                vp = VP + 2 * p if tt == 0 else acc('v', p, 0)
                SC_, SP_, OD = 28, 32, 36
                a(f'{mf16} {vr(SC_,4)}, {vr(kc,2)}, {vr(q,2)}, 0\n{mf16} {vr(SP_,4)}, {vr(kp,2)}, {vr(q,2)}, 0')
                for j in range(2):
                    a(f'v_cndmask_b32 v{SC_+2*j}, v{SC_+2*j}, v{SC_+2*j+1}, s[80:81]')
                    a(f'v_cndmask_b32 v{SP_+2*j}, v{SP_+2*j}, v{SP_+2*j+1}, s[80:81]')
                    if tt == 0: a(f'v_add_f32 v{SP_+2*j}, s87, v{SP_+2*j}')
                    a(f'v_cndmask_b32 v{40+j}, v{SP_+2*j}, v{SC_+2*j}, s[{82+2*j}:{83+2*j}]')
                a('v_max_f32 v42, v40, v41')
                self.xlane('v_max_f32', 42, 43)
                a('v_mul_f32 v42, s86, v42')
                for j in range(2): a(f'v_fma_f32 v{40+j}, v{40+j}, s86, -v42\nv_exp_f32 v{40+j}, v{40+j}')
                a('v_add_f32 v42, v40, v41')
                self.xlane('v_add_f32', 42, 43)
                a(f'v_rcp_f32 v42, v42')
                for j in range(2):
                    a(f'{cvt} v{40+j}, v{40+j}, v{40+j}')
                    a(f'v_and_b32 v{44+j}, v{40+j}, v{tv(f"mc{j}")}\nv_and_b32 v{46+j}, v{40+j}, v{tv(f"mp{j}")}')
                a(f'v_mul_f32 v42, v42, v{G1+tt}')
                a(f'{mf16} {vr(OD,4)}, {vr(vc,2)}, v[44:45], 0\n{mf16} {vr(OD,4)}, {vr(vp,2)}, v[46:47], {vr(OD,4)}')
                for i in range(4): a(f'v_mul_f32 v{OD+i}, v{OD+i}, v42')
                ob = XF + 2 * (2 * p + tt)
                a(f'{cvt} v{ob}, v{OD}, v{OD+1}\n{cvt} v{ob+1}, v{OD+2}, v{OD+3}')
                a(f'buffer_store_dwordx2 {vr(ob,2)}, v{tv("l8")}, {WS}, s21 offen offset:{1024*p + 512*tt} sc1')
        for p in range(2):
            a(f'v_mov_b64 {vr(KP+2*p,2)}, {vr(acc("k",p,1),2)}\nv_mov_b64 {vr(VP+2*p,2)}, {vr(acc("v",p,1),2)}')
        loop_tail('L_P_B')
        a('L_P_done:')
        self.tstamp(3, 40)
        if o.get('no_F'):
            a('s_endpgm'); a.auto_vm = True; return
        self.f_phase()

    def spin4(self, voff, soff, tmp, n=4, sleep=2):
        a = self.a
        lab = a.newlabel('s4'); ok = a.newlabel('s4ok')
        ld = {1: 'buffer_load_dword', 4: 'buffer_load_dwordx4'}[n]
        a(f's_mov_b32 s23, {SPIN}\n{lab}:')
        a(f'{ld} {vr(tmp,n)}, {voff}, {WS}, {soff} offen sc1\ns_waitcnt vmcnt(0)')
        if n == 4: a(f'v_min_u32 v{tmp}, v{tmp}, v{tmp+1}\nv_min3_u32 v{tmp}, v{tmp}, v{tmp+2}, v{tmp+3}')
        a(f'v_cmp_eq_u32 vcc, 0, v{tmp}\ns_cbranch_vccz {ok}\ns_sleep {sleep}\ns_sub_u32 s23, s23, 1\ns_cbranch_scc0 {lab}\ns_mov_b32 {SPIN}, 0x400\n{ok}:')

    def f_phase(self):
        a = self.a; o = self.o
        set_srd(a, 8, P_WO, 4 << 20)
        a(f's_mul_i32 s78, {S_W}, 36864\ns_mov_b32 m0, s78')
        for kb in range(2):
            for T in range(4):
                a(f's_lshl_b32 s21, {S_RANK}, 17\ns_add_u32 s21, s21, {kb*65536 + T*64}')
                self.dma_chunk(f'v{tv("dma1k")}', 's21', 1024)
        set_srd(a, 8, P_WOB, 512 * 1024)
        for T in range(4):
            a(f's_lshl_b32 s21, {S_RANK}, 14\ns_add_u32 s21, s21, {T*64}')
            self.dma_chunk(f'v{tv("dma1k")}', 's21', 1024, n=1)
        set_srd(a, 12, P_OUT, 2048 * 1024)
        V_Z = 26
        a(f'v_mov_b32 v{V_Z}, 0')
        for kt in range(2):
            for i in range(4):
                a(f'v_cmp_le_i32 s[{64+8*kt+2*i}:{65+8*kt+2*i}], {16*kt+i}, v{tv("qrow")}')
        a('s_waitcnt vmcnt(0)')
        wof = lambda T, p, ks: 4 * ((T * 2 + p) * 4 + ks)
        wob = lambda T, p: 128 + 2 * (T * 2 + p)
        for kb in range(2):
            for T in range(4):
                so = (kb * 4 + T) * 4096
                for p in range(2):
                    for h in range(2):
                        for r in range(2):
                            a(f'ds_read_b64_tr_b16 {ar(wof(T,p,2*kb+h)+2*r,2)}, v{tv("trf")} offset:{so + 2048*h + 1024*r + 8*p}')
        for T in range(4):
            for p in range(2):
                a(f'ds_read_b64_tr_b16 {ar(wob(T,p),2)}, v{tv("trf")} offset:{32768 + 1024*T + 8*p}')
        a.wait(lgkm=0)
        S_FS, S_RB, S_FB = 's61', 's62', 's63'
        a(f's_sub_u32 {S_FS}, {S_TEAM}, 1\ns_mov_b32 s80, {hex(f2u(128 ** -0.5 * 1.4426950408889634))}\ns_mov_b32 s81, 0xf149f2ca')
        a(f's_lshr_b32 s82, {S_W}, 1\ns_and_b32 s83, {S_W}, 1')
        a(f's_lshl_b32 s86, {S_TEAM}, 21\ns_add_u32 s86, s86, {hex(L.FP)}')
        Q, K0, K1, V, KM, VM, OBF, G, S0, S1, SM, PX, PM, D, OF, AC = 28, 44, 60, 76, 92, 108, 112, 116, 120, 124, 128, 132, 136, 140, 156, 188
        a('L_F_loop:')
        a.forget(); a.auto_vm = True
        a(f'''
        s_lshl_b32 s21, {S_FS}, 5
        s_add_u32 s21, s21, {S_RANK}
        s_lshl_b32 {S_FB}, s21, 6
        s_mul_i32 {S_RB}, s21, 24576
        s_lshl_b32 s84, s21, 12
        s_add_u32 s84, s84, {hex(L.KVM)}
        s_lshl_b32 s85, s21, 10
        s_add_u32 s85, s85, {hex(L.OB)}
        s_add_u32 s21, {S_FB}, {hex(L.F_KV + 16)}
        ''')
        self.spin4(f'v{V_Z}', 's21', Q)
        a(f'''
        s_lshl_b32 s21, {S_FS}, 2
        s_lshr_b32 s22, {S_RANK}, 3
        s_add_u32 s21, s21, s22
        s_lshl_b32 s21, s21, 6
        s_and_b32 s22, {S_RANK}, 6
        s_lshl_b32 s22, s22, 1
        s_add_u32 s21, s21, s22
        s_add_u32 s21, s21, {hex(L.F_OB)}
        ''')
        self.spin4(f'v{V_Z}', 's21', Q, n=1)
        a.forget()
        l16 = f'v{tv("l16")}'
        for qt in range(2):
            a(f'buffer_load_dwordx2 {vr(OBF+2*qt,2)}, v{tv("l8")}, {WS}, s85 offen offset:{512*qt} sc1')
        a(f's_lshl_b32 s22, s82, 10\ns_add_u32 s22, s22, 4096\ns_add_u32 s22, s22, {S_RB}\ns_mov_b32 s21, {S_RB}')
        for sl in range(4):
            a(f'buffer_load_dwordx4 {vr(Q+4*sl,4)}, {l16}, {WS}, s22 offen sc1')
            a(f'buffer_load_dwordx4 {vr(K0+4*sl,4)}, {l16}, {WS}, s21 offen sc1')
            a(f'buffer_load_dwordx4 {vr(K1+4*sl,4)}, {l16}, {WS}, s21 offen offset:1024 sc1')
            if sl < 3: a('s_add_u32 s21, s21, 6144\ns_add_u32 s22, s22, 6144')
        a(f's_mul_i32 s21, s83, 12288\ns_add_u32 s21, s21, {S_RB}\ns_add_u32 s22, s21, 6144')
        for sl in range(2):
            for f in range(2):
                a(f'buffer_load_dwordx4 {vr(V+8*sl+4*f,4)}, {l16}, {WS}, {"s21" if sl == 0 else "s22"} offen offset:{2048+1024*f} sc1')
        a(f's_lshl_b32 s21, {S_FS}, 7\ns_lshl_b32 s22, s82, 6\ns_add_u32 s21, s21, s22\ns_add_u32 s21, s21, {hex(L.GATE)}')
        a(f'buffer_load_dword v{G}, v{tv("c4")}, {WS}, s21 offen sc1')
        for qt in range(2):
            for T in range(4):
                for p in range(2):
                    a(f'{mf16} {vr(AC+32*qt+8*T+4*p,4)}, {ar(wob(T,p),2)}, {vr(OBF+2*qt,2)}, 0')
        for sl in range(4):
            a(f'{mf32} {vr(S0,4)}, {vr(K0+4*sl,4)}, {vr(Q+4*sl,4)}, {vr(S0,4) if sl else 0}')
            a(f'{mf32} {vr(S1,4)}, {vr(K1+4*sl,4)}, {vr(Q+4*sl,4)}, {vr(S1,4) if sl else 0}')
        NEG = 27
        a(f'v_mov_b32 v{NEG}, s81')
        for kt, Sx in enumerate((S0, S1)):
            for i in range(4): a(f'v_cndmask_b32 v{Sx+i}, v{NEG}, v{Sx+i}, s[{64+8*kt+2*i}:{65+8*kt+2*i}]')
        MX = 117
        a(f'v_max3_f32 v{MX}, v{S0}, v{S0+1}, v{S0+2}\nv_max3_f32 v{MX}, v{MX}, v{S0+3}, v{S1}\nv_max3_f32 v{MX}, v{MX}, v{S1+1}, v{S1+2}\nv_max_f32 v{MX}, v{MX}, v{S1+3}')
        a.wait(vm=0)
        skip = a.newlabel('fw')
        a(f's_cmp_lg_u32 {S_W}, 0\ns_cbranch_scc1 {skip}\ns_add_u32 s21, {S_FB}, {hex(L.F_M)}')
        self.spin4(f'v{V_Z}', 's21', KM)
        self.tstamp(4, 252)
        a(f'{skip}:\ns_barrier')
        a.forget()
        for sl in range(4):
            a(f'buffer_load_dwordx4 {vr(KM+4*sl,4)}, {l16}, {WS}, s84 offen offset:{1024*sl} sc1')
        a(f's_lshl_b32 s21, s83, 11\ns_add_u32 s21, s21, s84')
        for sl in range(2):
            a(f'buffer_load_dwordx2 {vr(VM+2*sl,2)}, v{tv("vml")}, {WS}, s21 offen offset:{1024*sl} sc1')
        for sl in range(4):
            a(f'{mf32} {vr(SM,4)}, {vr(KM+4*sl,4)}, {vr(Q+4*sl,4)}, {vr(SM,4) if sl else 0}')
        a(f'v_max3_f32 v{MX}, v{MX}, v{SM}, v{SM+1}')
        self.xlane('v_max_f32', MX, 118)
        a(f'v_mul_f32 v{MX}, s80, v{MX}')
        E = [S0 + i for i in range(4)] + [S1 + i for i in range(4)] + [SM, SM + 1]
        for e in E: a(f'v_fma_f32 v{e}, v{e}, s80, -v{MX}')
        for e in E: a(f'v_exp_f32 v{e}, v{e}')
        a(f'{cvt} v{PX}, v{S0}, v{S0+1}\n{cvt} v{PX+1}, v{S0+2}, v{S0+3}\n{cvt} v{PX+2}, v{S1}, v{S1+1}\n{cvt} v{PX+3}, v{S1+2}, v{S1+3}')
        a(f'{cvt} v{PM}, v{SM}, v{SM+1}\nv_mov_b32 v{PM+1}, 0\nv_mov_b32 v{PM+2}, 0\n{cvt} v{PM+3}, v{SM}, v{SM+1}')
        for sl in range(2):
            f1, f2 = V + 8 * sl, V + 8 * sl + 4
            for p in range(2):
                d = vr(D + 8 * sl + 4 * p, 4)
                X = f1 if p == 0 else f2; Y = f2 + 2 if p == 0 else f1 + 2
                a(f'{mf16} {d}, {vr(X,2)}, {vr(PX,2)}, 0')
                a(f'{mf16} {d}, {vr(Y,2)}, {vr(PX+2,2)}, {d}')
                a(f'{mf16} {d}, {vr(VM+2*sl,2)}, {vr(PM+2*p,2)}, {d}')
        LS = 119
        a(f'v_add_f32 v{LS}, v{E[0]}, v{E[1]}')
        for e in E[2:]: a(f'v_add_f32 v{LS}, v{LS}, v{e}')
        self.xlane('v_add_f32', LS, 118)
        a(f'v_rcp_f32 v{LS}, v{LS}\nv_mul_f32 v{LS}, v{LS}, v{G}')
        for i in range(16): a(f'v_mul_f32 v{D+i}, v{D+i}, v{LS}')
        for i in range(8): a(f'{cvt} v{D+i}, v{D+2*i}, v{D+2*i+1}')
        for sl in range(2): a(f'ds_write_b128 v{tv("oxw")}, {vr(D+4*sl,4)} offset:{1024*sl}')
        a.wait(lgkm=0)
        a('s_barrier')
        for qt in range(2):
            for sl in range(4):
                a(f'ds_read_b128 {vr(OF+16*qt+4*sl,4)}, v{tv("oxr")} offset:{4096*qt+1024*sl}')
        a(f's_xor_b32 s86, s86, {1<<20}\ns_lshl_b32 s21, {S_RANK}, 10\ns_add_u32 s21, s21, s86\ns_add_u32 s22, s21, {16*32768}')
        a(f's_lshl_b32 s23, {S_W}, 2\ns_add_u32 s23, s23, {S_FB}\ns_add_u32 s87, s23, {hex(L.F_P)}')
        a(f's_cmp_eq_u32 {S_TFAST}, 0\ns_cbranch_scc1 L_F_slowst')
        lq0 = list(a.lq)
        for cf in ('', 'sc1'):
            if cf: a('L_F_slowst:'); a.lq = list(lq0)
            def fin(k):
                qt, T = divmod(k, 4)
                r = AC + 32 * qt + 8 * T
                for i in range(4): a(f'{cvt} v{r+i}, v{r+2*i}, v{r+2*i+1}')
                a(f'buffer_store_dwordx4 {vr(r,4)}, v{tv("fpst")}, {WS}, {"s21" if qt == 0 else "s22"} offen offset:{64*T} {cf}')
            for k in range(8):
                qt, T = divmod(k, 4)
                for ks in range(4):
                    for p in range(2):
                        d = vr(AC + 32 * qt + 8 * T + 4 * p, 4)
                        a(f'{mf32} {d}, {ar(wof(T,p,ks),4)}, {vr(OF+16*qt+4*ks,4)}, {d}')
                if k: fin(k - 1)
            fin(7)
            a.wait(vm=0)
            a(f'buffer_store_dword v{tv("oxr")}, v{tv("one")}, {WS}, s87 offen {cf}')
            if not cf: a('s_branch L_F_stdone')
        a('L_F_stdone:')
        self.tstamp(5, 252)
        a(f's_lshl_b32 s21, {S_FS}, 11\ns_add_u32 s21, s21, {hex(L.F_P)}')
        self.spin4(f'v{tv("pfl")}', 's21', Q, n=1, sleep=1)
        a.forget()
        a(f's_lshl_b32 s21, {S_RANK}, 15\ns_add_u32 s21, s21, s86')
        for l in range(8):
            a(f'buffer_load_dwordx4 {vr(Q+4*l,4)}, v{tv("fpld")}, {WS}, s21 offen sc1')
            if l < 7: a('s_add_u32 s21, s21, 4096')
        for l in range(8):
            a(f'{mf32} {vr(S0,4)}, {vr(tv("self0"),4)}, {vr(Q+4*l,4)}, {vr(S0,4) if l else 0}')
        a(f's_lshl_b32 s21, {S_FS}, 5\ns_add_u32 s21, s21, {S_RANK}\ns_lshl_b32 s21, s21, 10')
        a(f'{cvt} v{S0}, v{S0}, v{S0+1}\n{cvt} v{S0+1}, v{S0+2}, v{S0+3}')
        a(f'buffer_store_dwordx2 {vr(S0,2)}, v{tv("outst")}, {ST}, s21 offen')
        if o.get('wb'):
            lab = a.newlabel('wb')
            a(f's_cmp_lt_u32 {S_FS}, 50\ns_cbranch_scc1 {lab}\ns_cmp_ge_u32 {S_FS}, 61\ns_cbranch_scc1 {lab}')
            a(f's_or_b32 s21, {S_RANK}, {S_W}\ns_cmp_lg_u32 s21, 0\ns_cbranch_scc1 {lab}\nbuffer_wbl2 sc1\n{lab}:')
        a(f's_add_u32 {S_FS}, {S_FS}, 7\ns_cmp_lt_u32 {S_FS}, 64\ns_cbranch_scc1 L_F_loop')
        a.wait(vm=0)
        self.tstamp(6, 40)
        a('s_endpgm')
```

```python
import layout as L
from gen_common import *

V_L16, V_IST, V_PUB, V_X0, V_F, V_SMW, V_OW, V_WV = 1, 2, 3, 4, 8, 9, 10, 11
KMH, VMH = 12, 16
V_IDX, V_WV2 = 18, 19
SELR, SELV, V_ONE, V_DUM, SELQ, SELK = 20, 24, 26, 27, 28, 128
V_Z = 29
VXC, VXN, KX = 32, 40, 48
WVB = 56
AQ, AK, AV = 72, 80, 88
M = 96
T = 132
WO0 = 144
V_FLAG = 0
SC = 128 ** -0.5 * 1.4426950408889634
import struct
def f2u(x): return struct.unpack('<I', struct.pack('<f', x))[0]

WO_SPILL = [(0, 0), (2, 0)]
def wo_frag(t, kb):
    order = [(t_, k_) for t_ in range(8) for k_ in range(2) if (t_, k_) not in WO_SPILL]
    return WO0 + 8 * order.index((t, kb))

LDSF = [('q', 0, 0), ('q', 0, 1), ('q', 1, 0), ('q', 1, 1), ('k', 0, 0)] + [('k', k, 1) for k in range(2, 8)] + [('k', 7, 0)] + [('v', k, p) for k in (6, 7) for p in range(2)]
AGF = [(m, k, p) for m in 'qkv' for k in range(8) for p in range(2) if (m, k, p) not in LDSF]
assert len(LDSF) == 16 and len(AGF) == 32
S_S = 's61'
S_MEMP = 's62'
S_PUBB = 's63'
S_IN0, S_IN1 = 's64', 's65'
S_INP = 's66'
S_REC = 's67'
S_FKV = 's68'
S_KVM, S_FM = 's69', 's70'
S_RST = 's71'
S_LO = 's[72:73]'
S_SC = 's74'
S_T0, S_T1 = 's75', 's76'
S_FAST = 's77'
S_TAG, S_NTAG = 's78', 's79'
S_OTAG, S_NOTAG = 's24', 's25'

class RRole:
    def smf(self, acc, A, B):
        self.a(f'v_smfmac_f32_16x16x64_bf16 {vr(acc,4)}, {vr(A,4)}, {B}, v{V_IDX}')

    def r_role(self):
        a = self.a; o = self.o
        a('L_R:')
        a.vq = list(self.vq_role)
        self.mark(0)
        VD8, VD1, VTQ, VTO, VTA = 28, 29, 30, 31, 7
        a(f"""
        v_and_b32 v1, 63, v0
        v_lshrrev_b32 v2, 4, v1
        v_and_b32 v3, 15, v1
        v_lshlrev_b32 v4, 4, v3
        v_lshl_add_u32 v{VD8}, v2, 17, v4
        v_and_b32 v4, 0x70, v4
        v_lshrrev_b32 v3, 3, v3
        v_lshl_add_u32 v4, v3, 9, v4
        v_lshl_add_u32 v{VD1}, v2, 14, v4
        s_lshl_b32 s21, {S_W}, 7
        v_add_u32 v{VD1}, s21, v{VD1}
        s_mul_i32 s78, {S_W}, {L.BLK}
        """)
        groups = [(m, b) for m in 'oqkv' for b in range(2)]
        def issue(gi):
            mat, b = groups[gi]
            if b == 0: set_srd(a, 8, {'q': P_WQ, 'k': P_WK, 'v': P_WV, 'o': P_WO}[mat], 4 << 20)
            a(f's_add_u32 m0, s78, {(gi % 2) * L.GRP}')
            if mat != 'o':
                a(f's_add_u32 s21, {S_W}, {4 * b}\ns_lshl_b32 s21, s21, 19\ns_lshl_b32 s22, {S_RANK}, 8\ns_add_u32 s21, s21, s22')
                self.dma_block(f'v{VD8}', 's21', 8192)
            else:
                a(f's_lshl_b32 s21, {S_RANK}, 17\ns_add_u32 s21, s21, {b * 65536}')
                self.dma_block(f'v{VD1}', 's21', 1024)
        issue(0)
        self.load_table('T_R', 96, 28, 7)
        issue(1)
        self.mark(1)
        self.gate_and_store()
        names = list(L.r_table().keys())
        def tv(n): return 96 + names.index(n)
        a(f'v_mov_b32 v{VTQ}, v{tv("trq")}\nv_mov_b32 v{VTO}, v{tv("tro")}\nv_add_u32 v6, 65536, v{tv("wv")}')
        if o.get('code'):
            pc = a.newlabel('pc')
            a(f's_getpc_b64 s[12:13]\n{pc}:\ns_add_u32 s12, s12, L_R_ready-{pc}\ns_addc_u32 s13, s13, 0\ns_mov_b32 s14, L_R_slow-L_R_ready\ns_mov_b32 s15, 0x20000')
            a(f'v_lshlrev_b32 v1, 7, v0\nbuffer_load_dword v27, v1, {ST}, 0 offen')
        else:
            a(f'buffer_load_dword v27, v{tv("one")}, {WS}, 0 offen')
        a(f'buffer_load_dword v26, v{tv("mm")}, {WS}, 0 offen')
        a.auto_vm = False
        TMP = 56
        park = {}
        parkregs = [32, 64, 72, 80, 88, 124, 132, 8]
        for f in LDSF:
            if f[0] == 'k': park[f] = parkregs.pop(0)
            if f[0] == 'q': park[f] = -8 * AGF.index(('v', 3 + 2 * f[1], f[2])) - 1
        S_RDY = 's76'
        def scalars():
            if o.get('pa2', 0):
                dec = f's_lshr_b32 s84, {S_RANK}, 3\ns_lshl_b32 s84, s84, 1\ns_lshr_b32 s21, {S_W}, 1\ns_add_u32 s84, s84, s21\n' \
                      f's_lshr_b32 s85, {S_RANK}, 1\ns_and_b32 s85, s85, 3\n' \
                      f's_and_b32 s86, {S_RANK}, 1\ns_lshl_b32 s86, s86, 1\ns_and_b32 s21, {S_W}, 1\ns_add_u32 s86, s86, s21'
            else:
                dec = f's_lshr_b32 s84, {S_RANK}, 2\ns_and_b32 s85, {S_RANK}, 3\ns_mov_b32 s86, {S_W}'
            a(f'''
            {dec}
            s_lshl_b32 {S_INP}, s84, 2
            s_add_u32 {S_INP}, {S_INP}, s85
            s_lshl_b32 {S_INP}, {S_INP}, 2
            s_add_u32 {S_INP}, {S_INP}, s86
            s_lshl_b32 {S_INP}, {S_INP}, 11
            s_add_u32 {S_INP}, {S_INP}, {hex(L.RIN)}
            s_lshl_b32 {S_PUBB}, s84, 10
            s_and_b32 s22, s85, 2
            s_lshl_b32 s22, s22, 7
            s_add_u32 {S_PUBB}, {S_PUBB}, s22
            s_and_b32 s22, s85, 1
            s_lshl_b32 s22, s22, 5
            s_add_u32 {S_PUBB}, {S_PUBB}, s22
            s_lshl_b32 s22, s86, 6
            s_add_u32 {S_PUBB}, {S_PUBB}, s22
            s_add_u32 {S_PUBB}, {S_PUBB}, {hex(L.RMEM)}
            s_and_b32 s22, s84, 1
            s_lshl_b32 s22, s22, 9
            s_lshr_b32 s21, s84, 1
            s_lshl_b32 s21, s21, 7
            s_add_u32 s21, s21, s22
            s_lshl_b32 s22, s85, 3
            s_add_u32 s21, s21, s22
            s_lshl_b32 s22, s86, 11
            s_add_u32 s75, s21, s22
            s_mul_i32 {S_REC}, {S_RANK}, 24576
            s_mul_i32 s21, {S_W}, 6144
            s_add_u32 {S_REC}, {S_REC}, s21
            s_lshl_b32 {S_FKV}, {S_RANK}, 6
            s_lshl_b32 s21, {S_W}, 2
            s_add_u32 {S_FKV}, {S_FKV}, s21
            s_add_u32 {S_FM}, {S_FKV}, {hex(L.F_M - 4096)}
            s_add_u32 {S_FKV}, {S_FKV}, {hex(L.F_KV)}
            s_lshl_b32 {S_KVM}, {S_RANK}, 12
            s_lshl_b32 s21, {S_W}, 10
            s_add_u32 {S_KVM}, {S_KVM}, s21
            s_add_u32 {S_KVM}, {S_KVM}, {hex(L.KVM - 131072)}
            s_lshl_b32 s21, {S_W}, 11
            s_add_u32 {S_MEMP}, s21, {hex(L.RMEM)}
            s_lshl_b32 {S_IN0}, {S_RANK}, 6
            s_add_u32 {S_IN0}, {S_IN0}, {hex(L.RIN)}
            s_mov_b32 s72, 0x33333333
            s_mov_b32 s73, 0x33333333
            s_mov_b32 {S_SC}, {hex(f2u(SC))}
            s_mov_b32 {S_S}, 0
            ''')
        def first_records(l16):
            for i in range(2):
                a(f'buffer_load_dwordx4 {vr(KX+4*i,4)}, v{l16}, {WS}, {S_REC} offen offset:{1024*i} sc1')
                a(f'buffer_load_dwordx4 {vr(VXN+4*i,4)}, v{l16}, {WS}, {S_REC} offen offset:{2048+1024*i} sc1')
        def stage_x():
            set_srd(a, 12, P_DBG, 256)
            a(f'''
            v_and_b32 v1, 3, v0
            v_lshlrev_b32 v1, 6, v1
            v_add_u32 v1, 60, v1
            v_and_b32 v2, 4, v0
            v_cmp_ne_u32 vcc, 0, v2
            v_cndmask_b32 v1, v1, 0, vcc
            v_and_b32 v2, 1, v0
            v_lshlrev_b32 v2, 11, v2
            buffer_load_dword v3, v1, {ST}, 0 offen sc1
            buffer_load_dword v4, v2, {WS}, {S_FKV} offen sc1
            ''')
        def stage_y():
            a(f'''
            v_lshl_or_b32 v140, v141, 16, v140
            v_readlane_b32 s84, v3, 0
            v_readlane_b32 s85, v3, 1
            v_readlane_b32 s86, v3, 2
            v_readlane_b32 s87, v3, 3
            v_readlane_b32 s21, v3, 4
            v_cmp_eq_u32 vcc, 0, v4
            s_mov_b32 {S_RDY}, 0
            s_add_u32 s84, s84, s85
            s_add_u32 s86, s86, s87
            s_add_u32 s84, s84, s86
            s_cmp_ge_u32 s21, 32
            s_cselect_b32 {S_FAST}, 1, 0
            s_cbranch_vccnz L_R_notyet
            s_cmp_lt_u32 s84, 256
            s_cbranch_scc1 L_R_notyet
            s_mov_b32 {S_RDY}, 1
            buffer_store_dword v140, v{tv("pub")}, {WS}, {S_PUBB} offen sc1
            ''')
            first_records(tv('l16'))
            a('L_R_notyet:')
        scalars()
        set_srd(a, 24, P_MEM0, 8192)
        a(f'buffer_load_ushort v140, v{tv("m0a")}, s[24:27], s75 offen\nbuffer_load_ushort v141, v{tv("m0a")}, s[24:27], s75 offen offset:32')
        todo = []
        self.ldsf_off = {}
        def flush(n):
            for _ in range(n):
                f, r = todo.pop(0); off = 8192 * len(self.ldsf_off)
                self.ldsf_off[f] = off
                for hh in range(2):
                    src = vr(r + 4 * hh, 4) if r >= 0 else ar(-r - 1 + 4 * hh, 4)
                    a(f'ds_write_b128 v{tv("wv") if off < 65536 else 6}, {src} offset:{off % 65536 + 1024 * hh}')
                if r >= 0: parkregs.append(r)
        for gi in range(8):
            mat, b = groups[gi]
            if gi == 0: self.mark(2)
            a.wait(vm=[16 + 5, 5 + 16, 16, 16, 16, 16, 16, 0][gi] if o.get('xearly', 1) else [16 + 5, 5 + 16, 16, 16, 16, 16, 16 + 2, 2][gi])
            if gi == 6 and o.get('xearly', 1): stage_y()
            if gi in (0, 2, 4, 7): self.mark(3 + [0, 2, 4, 7].index(gi))
            a('s_barrier')
            hb = (gi % 2) * L.GRP
            for x in range(4):
                dsts = []
                if mat == 'o':
                    for p in range(2):
                        t = 2 * x + p
                        dsts.append((vr, (TMP if t == 0 else 40) if (t, b) in WO_SPILL else wo_frag(t, b)))
                    offs = [0, 2112, 8448, 10560]; xo = 64 * x
                    if x == 0: a(f'v_add_u32 v{VTA}, {hb}, v{VTO}')
                else:
                    offs = [0, 1056, 512, 1568]; xo = 0
                    a(f's_xor_b32 s21, {S_W}, {x}\ns_mul_i32 s21, s21, {L.BLK}\ns_add_u32 s21, s21, {hb}\nv_add_u32 v{VTA}, s21, v{VTQ}')
                    for p in range(2):
                        f = (mat, 2 * x + b, p)
                        if f in AGF: dsts.append((ar, 8 * AGF.index(f)))
                        else:
                            if f not in park: park[f] = TMP if (f[1], f[2]) == (6, 0) else (16 if (f[1], f[2]) == (6, 1) else parkregs.pop(0))
                            if park[f] < 0: dsts.append((ar, -park[f] - 1)); todo.insert(0, (f, park[f]))
                            else: dsts.append((vr, park[f])); todo.append((f, park[f]))
                for p in range(2):
                    rf, d = dsts[p]
                    for r in range(4):
                        a(f'ds_read_b64_tr_b16 {rf(d + 2 * r, 2)}, v{VTA} offset:{xo + offs[r] + 32 * p}')
            if gi == 7 and not o.get('xearly', 1):
                a.wait(vm=0); stage_y()
            a.wait(lgkm=0)
            if gi == 0:
                for i in range(2):
                    for hh in range(2):
                        a(f'ds_write_b128 v{tv("x0")}, {vr((TMP if i == 0 else 40) + 4 * hh, 4)} offset:{16384 + 8192 * i + 1024 * hh}')
            a('s_barrier')
            if gi == 5 and o.get('xearly', 1): stage_x()
            if gi + 2 < 8: issue(gi + 2)
            if gi == 5 and not o.get('xearly', 1): stage_x()
            if gi == 2: self.signal_init(barrier=False)
            if gi == 6: flush(8)
            if gi == 7: flush(8)
        assert not todo and len(self.ldsf_off) == 16
        a.wait(lgkm=0)
        a.auto_vm = True; a.forget()
        a(f'v_mov_b32 v{V_WV2}, v6')
        for n, d in [('l16', V_L16), ('ist', V_IST), ('pub', V_PUB), ('x0', V_X0), ('x1', V_X0 + 1), ('x2', V_X0 + 2), ('x3', V_X0 + 3),
                     ('f', V_F), ('smw', V_SMW), ('ow', V_OW), ('wv', V_WV), ('idx', V_IDX), ('one', V_ONE)] + \
                    [(f'selr{i}', SELR + i) for i in range(4)] + [(f'selv{i}', SELV + i) for i in range(2)] + \
                    [('selq', SELQ), ('selq', SELQ + 3), ('selk', SELK), ('selk', SELK + 3)]:
            a(f'v_mov_b32 v{d}, v{tv(n)}')
        for d in (SELQ + 1, SELQ + 2, SELK + 1, SELK + 2): a(f'v_mov_b32 v{d}, 0')
        self.dump_marks(T + 4)
        self.tstamp(1, T + 4)
        a(f's_cmp_eq_u32 {S_RDY}, 1\ns_cbranch_scc1 L_R_ready')
        self.wait_init(t0=T + 4)
        a(f's_cmp_ge_u32 s21, 32\ns_cselect_b32 {S_FAST}, 1, 0')
        a(f'buffer_store_dword v140, v{V_PUB}, {WS}, {S_PUBB} offen sc1')
        self.spin_flag(V_FLAG, f'v{V_Z}', S_FKV)
        first_records(V_L16)
        a(f's_add_u32 s21, {S_FKV}, 2048')
        self.spin_flag(V_FLAG, f'v{V_Z}', 's21')
        a('L_R_ready:')
        a.wait(vm=0)
        a.forget()
        if o.get('force_slow'): a(f's_mov_b32 {S_FAST}, 0')
        a(f's_add_u32 {S_FKV}, {S_FKV}, 2048\nv_mov_b32 v{V_FLAG}, 1')
        for r in range(M, M + 8, 2): a(f'v_mov_b64 {vr(r,2)}, -1')
        self.tstamp(2, T + 4)
        self.tstamp(3, T + 4)
        if o.get('stamp'):
            a('s_memtime s[80:81]\ns_memrealtime s[28:29]'); a.wait(lgkm=0)
        a('s_mov_b32 s26, 0x3f803f80\ns_mov_b32 s27, 0x3f803f80\ns_mov_b32 s8, 0x3f003f00\ns_mov_b32 s9, 0x3f003f00')
        a(f'ds_write_b64 v{V_OW}, {vr(M,2)}')
        a.wait(lgkm=0)
        a(f's_cmp_eq_u32 {S_FAST}, 0\ns_cbranch_scc1 L_R_slow')
        if o.get('nostag'):
            self.r_loop('f', '')
        else:
            for w in range(1, 4): a(f's_cmp_eq_u32 {S_W}, {w}\ns_cbranch_scc1 L_R_w{w}')
            for w in range(4):
                if w: a(f'L_R_w{w}:')
                self.r_loop('f' + (str(w) if w else ''), '', wv=w)
        a('L_R_slow:')
        self.r_loop('s', 'sc1')

    def spin_flag(self, dst, voff, soff):
        a = self.a
        lab = a.newlabel('sf'); ok = a.newlabel('sfok')
        sv = a.auto_vm; a.auto_vm = False
        a(f'''
        s_mov_b32 s23, {SPIN}
        {lab}:
        buffer_load_dword v{dst}, {voff}, {WS}, {soff} offen sc1
        s_waitcnt vmcnt(0)
        v_cmp_ne_u32 vcc, 0, v{dst}
        s_cbranch_vccnz {ok}
        s_sleep 2
        s_sub_u32 s23, s23, 1
        s_cbranch_scc0 {lab}
        s_mov_b32 {SPIN}, 0x400
        {ok}:
        ''')
        a.auto_vm = sv; a.vq = []

    def poll(self, tag, dst, voff, soff, pre, check, shadow, nchk, mid=None, nmid=0, blk=None):
        a = self.a
        lab = f'L_poll_{tag}'; ok = f'L_pok_{tag}'
        def issue():
            a(f'buffer_load_dwordx4 {vr(dst,4)}, v{voff}, {WS}, {soff} offen {self.pf}')
            a(f'buffer_load_dwordx4 {vr(dst+4,4)}, v{voff}, {WS}, {soff} offen offset:1024 {self.pf}')
        pre()
        if blk:
            gap, cover, fill = blk
            issue()
            if mid: mid()
            for i in range(gap): fill()
            a(f's_mov_b32 s23, {SPIN}')
            issue()
            for i in range(cover): fill()
            a(f's_branch L_pw_{tag}\n{lab}:')
            a(f's_sub_u32 s23, s23, 1\ns_cbranch_scc1 L_pto_{tag}')
            issue()
            a(f'L_pw_{tag}:\ns_waitcnt vmcnt(2)')
            check(); shadow()
            a(f's_cbranch_vccnz {lab}\n{ok}:')
            self.late.append(f'L_pto_{tag}:\ns_mov_b32 {SPIN}, 0x400\ns_waitcnt vmcnt(0)\n@SH@s_branch {ok}')
            self.late_sh.append(shadow)
            return
        if mid:
            issue(); mid()
            for r in range(nmid):
                check(); shadow()
                a(f's_cbranch_vccz {ok}')
        a(f's_mov_b32 s23, {SPIN}')
        a(f'{lab}:')
        issue()
        for r in range(nchk - 1):
            check(); shadow()
            a(f's_cbranch_vccz {ok}')
        a(f's_sub_u32 s23, s23, 1\ns_cbranch_scc1 L_pto_{tag}')
        check(); shadow()
        a(f's_cbranch_vccnz {lab}\n{ok}:')
        self.late.append(f'L_pto_{tag}:\ns_mov_b32 {SPIN}, 0x400\ns_waitcnt vmcnt(0)\n@SH@s_branch {ok}')
        self.late_sh.append(shadow)

    def poll2(self, tag, dst, soff, chores, t0, t1, t2, fill, check, shadow):
        a = self.a
        lab = f'L_poll_{tag}'; ok = f'L_pok_{tag}'
        def issue():
            a(f'buffer_load_dwordx4 {vr(dst,4)}, v{V_L16}, {WS}, {soff} offen {self.pf}')
            a(f'buffer_load_dwordx4 {vr(dst+4,4)}, v{V_L16}, {WS}, {soff} offen offset:1024 {self.pf}')
        def spend(t, flush=False):
            while chores and (flush or chores[0][0] <= t + 4):
                c, f = chores.pop(0); f(); t -= c
            while t >= 12: fill(); t -= 16
        spend(t0); issue()
        spend(t1 - 40); issue()
        spend(t2 - 40, flush=True)
        a(f's_mov_b32 s23, {SPIN}\ns_branch L_pw_{tag}\n{lab}:')
        a(f's_sub_u32 s23, s23, 1\ns_cbranch_scc1 L_pto_{tag}')
        issue()
        a(f'L_pw_{tag}:\ns_waitcnt vmcnt(2)')
        check(); shadow()
        a(f's_cbranch_vccnz {lab}\n{ok}:')
        self.late.append(f'L_pto_{tag}:\ns_mov_b32 {SPIN}, 0x400\ns_waitcnt vmcnt(0)\n@SH@s_branch {ok}')
        self.late_sh.append(shadow)

    def stamp(self, i):
        if self.o.get('stamp') and (self.o.get('smask', 0x3ff) >> i) & 1: self.a.raw(f'    {"s_memrealtime" if self.o.get("rt") else "s_memtime"} s[{82+2*i}:{83+2*i}]')

    def dump_stamps(self, tg):
        a = self.a
        if not self.o.get('stamp'): return
        lab = f'L_nodump_{tg}'
        a(f's_cmp_lg_u32 {S_S}, {self.o.get("dstep", 41)}\ns_cbranch_scc1 {lab}\ns_waitcnt lgkmcnt(0)')
        a(f's_lshl_b32 s21, {S_RANK}, 8\ns_lshl_b32 s22, {S_W}, 6\ns_add_u32 s21, s21, s22\ns_add_u32 s21, s21, {hex(L.DBG)}')
        a(f'v_mov_b32 v{T+10}, 0')
        for i in range(10):
            a(f'v_mov_b32 v{T+11}, s{82+2*i}\nbuffer_store_dword v{T+11}, v{T+10}, {WS}, s21 offen offset:{4*i}')
        a(f's_waitcnt vmcnt(0)\n{lab}:')

    def r_loop(self, tg, cf, wv=0):
        a = self.a; o = self.o
        mf16 = 'v_mfma_f32_16x16x16_bf16'; mf32 = 'v_mfma_f32_16x16x32_bf16'
        cvt = 'v_cvt_pk_bf16_f32'
        QP = 'quad_perm:[2,3,0,1] row_mask:0xf bank_mask:0xf'
        dum = lambda n=1: [a(a.dummy) for _ in range(n)]
        self.late = []; self.late_sh = []; self.fixups = []
        self.pf = 'nt' if (not cf and o.get('pollnt')) else 'sc1'
        a.auto_vm = False
        B0, B1, B2 = WVB, WVB + 8, M
        ACC = {'q': AQ, 'k': AK, 'v': AV}
        def S(m, k, p, buf=None):
            f = (m, k, p)
            self.smf(ACC[m] + 4 * p, M + 4 * k, ar(8 * AGF.index(f), 8) if buf is None else vr(buf, 8))
        def V(k, p, buf=None): S('v', k, p, buf)
        def RD(buf, m, k, p, hh):
            off = self.ldsf_off[(m, k, p)]
            a(f'ds_read_b128 {vr(buf + 4*hh, 4)}, v{V_WV if off < 65536 else V_WV2} offset:{off % 65536 + hh*1024}')
        def RD2(buf, m, k, p): RD(buf, m, k, p, 0); RD(buf, m, k, p, 1)
        def pkadd(d, x, y): a(f'v_add_f32 v{d}, v{x}, v{y}\nv_add_f32 v{d+1}, v{x+1}, v{y+1}')
        def PK(d, x, y): a(f'v_pk_add_f32 {vr(d,2)}, {vr(x,2)}, {vr(y,2)}')
        def add(d, x, y): a(f'v_add_f32 v{d}, v{x}, v{y}')
        def dmf(r): a(f'{mf16} {vr(r,4)}, {vr(SELQ,2)}, {vr(SELQ,2)}, {vr(r,4)}')
        def filt(line):
            st = 'buffer_store' in line and ('s75' in line or 's76' in line) and 'sc1' in line
            ld = 'buffer_load' in line and ('s67' in line or 's68' in line)
            if o.get('nost') and st: return None
            if o.get('nofst') and st and 's76' in line: return None
            if o.get('nold') and ld: return None
            if o.get('nofld') and ld and 's68' in line: return None
            if o.get('ldplain') and ld and 's67' in line: return line.replace(' sc1', '')
            if o.get('ldnt') and ld and 's67' in line: return line.replace(' sc1', ' nt')
            if o.get('stplain') and st: return line.replace(' sc1', '')
            if o.get('novm') and 'vmcnt' in line: return None
            if o.get('nowarm') and 'buffer_load_dword v27' in line: return 's_nop 0'
            if o.get('novmh') and 'buffer_store_dwordx2' in line: return None
            return line
        PA = M + 8; R = T + 8
        spin = f'L_kvspin_{tg}'; back = f'L_kvback_{tg}'
        def preload():
            RD2(M + 24, 'q', 0, 0); RD2(M + 16, 'q', 0, 1); RD2(B0, 'q', 1, 0); RD2(B1, 'q', 1, 1); RD2(T, 'k', 0, 0)
        def slackB():
            a(f'v_cmp_eq_u32 vcc, 0, v{V_FLAG}')
            for r in range(0, 8, 2): a(f'v_mov_b64 {vr(VXC+r,2)}, {vr(VXN+r,2)}')
            a(f's_xor_b32 {S_INP}, {S_INP}, 0x40000')
            a(f's_cbranch_vccnz {spin}\n{back}:')
            a(f"""
            s_cmp_lt_u32 {S_S}, 63
            s_cselect_b32 {S_T0}, {0 if o.get("nopf") else 32*24576}, 0
            s_add_u32 {S_REC}, {S_REC}, {S_T0}
            s_cmp_lt_u32 {S_S}, 62
            s_cselect_b32 {S_T0}, 2048, 0
            s_add_u32 {S_FKV}, {S_FKV}, {S_T0}
            s_cmp_ge_u32 {S_S}, 2
            s_cselect_b32 {S_T1}, {S_FM}, {hex(L.OOB)}
            s_cmp_ge_u32 {S_S}, 1
            s_cselect_b32 {S_T0}, {S_KVM}, {hex(L.OOB)}
            s_add_u32 {S_FM}, {S_FM}, 2048
            s_add_u32 {S_KVM}, {S_KVM}, 131072
            s_lshr_b32 {S_TAG}, {S_S}, 1
            s_and_b32 {S_TAG}, {S_TAG}, 1
            s_sub_u32 {S_NTAG}, {S_TAG}, 1
            s_add_u32 {S_IN1}, {S_IN0}, 32768
            s_and_b32 {S_OTAG}, {S_S}, 1
            s_sub_u32 {S_NOTAG}, {S_OTAG}, 1
            """)
            if o.get('steplog') and wv == 0 and tg != 's':
                a(f's_memrealtime s[82:83]\ns_lshl_b32 s84, {S_S}, 2\ns_lshl_b32 s85, {S_RANK}, 8\ns_add_u32 s84, s84, s85\ns_add_u32 s84, s84, {hex(L.DBG + 131072)}')
                a(f's_waitcnt lgkmcnt(0)\nv_mov_b32 v{V_DUM}, s82\nbuffer_store_dword v{V_DUM}, v{V_ONE}, {WS}, s84 offen')
            if o.get('zB'):
                for r in range(AQ, AQ + 24, 2): a(f'v_mov_b64 {vr(r,2)}, 0')
            if o.get('barB'): dmf(PA); a('s_barrier')
            for i in range(o.get('dB', 8) if wv >= 2 else o.get('dB0', o.get('dB', 8))): dmf(PA + 4 * (i % 2))
        def checkB():
            a(f"""
            v_max3_u32 v{R}, v{M}, v{M+1}, v{M+2}
            v_max3_u32 v{R+1}, v{M+3}, v{M+4}, v{M+5}
            v_max3_u32 v{R}, v{R}, v{M+6}, v{M+7}
            v_max_u32 v{R}, v{R}, v{R+1}
            v_cmp_eq_u32 vcc, -1, v{R}
            """)
        def shadowB():
            dmf(PA); a('s_nop 2')
        preload()
        for r in range(AQ, AQ + 24, 2): a(f'v_mov_b64 {vr(r,2)}, 0')
        a(f's_xor_b32 {S_INP}, {S_INP}, 0x40000')
        a.wait(lgkm=0)
        a(f'L_Rloop_{tg}:')
        a.forget()
        a.hot = True
        a.filt = filt
        sa = lambda txt: [(4, lambda l=l: a(l)) for l in txt.strip().split('\n')]
        va = lambda lines: [(8, lambda l=l: a(l)) for l in lines]
        if o.get('p2old'):
            self.poll('B' + tg, M, V_L16, S_MEMP, slackB, checkB, shadowB, o.get('nB', 3),
                      blk=(o.get('gB', 8), o.get('cB', 5), lambda: dmf(PA)) if o.get('blkB') else None)
        else:
            chB = [(44, lambda: a(f'v_cmp_eq_u32 vcc, 0, v{V_FLAG}\ns_cbranch_vccnz {spin}\n{back}:'))]
            chB += va([f'v_mov_b64 {vr(VXC+r,2)}, {vr(VXN+r,2)}' for r in range(0, 8, 2)])
            chB += sa(f"""
            s_xor_b32 {S_INP}, {S_INP}, 0x40000
            s_cmp_lt_u32 {S_S}, 63
            s_cselect_b32 {S_T0}, {0 if o.get("nopf") else 32*24576}, 0
            s_add_u32 {S_REC}, {S_REC}, {S_T0}
            s_cmp_lt_u32 {S_S}, 62
            s_cselect_b32 {S_T0}, 2048, 0
            s_add_u32 {S_FKV}, {S_FKV}, {S_T0}
            s_cmp_ge_u32 {S_S}, 2
            s_cselect_b32 {S_T1}, {S_FM}, {hex(L.OOB)}
            s_cmp_ge_u32 {S_S}, 1
            s_cselect_b32 {S_T0}, {S_KVM}, {hex(L.OOB)}
            s_add_u32 {S_FM}, {S_FM}, 2048
            s_add_u32 {S_KVM}, {S_KVM}, 131072
            s_lshr_b32 {S_TAG}, {S_S}, 1
            s_and_b32 {S_TAG}, {S_TAG}, 1
            s_sub_u32 {S_NTAG}, {S_TAG}, 1
            s_add_u32 {S_IN1}, {S_IN0}, 32768
            s_and_b32 {S_OTAG}, {S_S}, 1
            s_sub_u32 {S_NOTAG}, {S_OTAG}, 1
            """)
            if o.get('steplog') and wv == 0 and tg != 's':
                chB.append((60, lambda: (a(f's_memrealtime s[82:83]\ns_lshl_b32 s84, {S_S}, 2\ns_lshl_b32 s85, {S_RANK}, 8\ns_add_u32 s84, s84, s85\ns_add_u32 s84, s84, {hex(L.DBG + 131072)}'),
                    a(f's_waitcnt lgkmcnt(0)\nv_writelane_b32 v{V_DUM}, s82, 0\nglobal_store_dword v{V_ONE}, v{V_DUM}, s[4:5]' if False else f's_waitcnt lgkmcnt(0)'))))
            self.poll2('B' + tg, M, S_MEMP, chB, o.get('tB0', 200), o.get('tB1', 180), o.get('tB2', 100), lambda: dmf(PA), checkB, shadowB)
        if o.get('rt'): a('s_mov_b32 s84, s82')
        self.stamp(0)
        if o.get('rt'): self.dump_stamps(tg)
        wp = o.get('wpat', 3)
        ws = {0: (0, 1), 1: (1 + wv, 5 + wv), 2: (1 + 2 * (wv % 2), 2 + 2 * (wv % 2)), 3: (1 + wv % 2, 3 + wv % 2), 4: (1 + wv // 2, 3 + wv // 2),
              5: (1, 2), 6: (wv, 4 + wv), 7: (wv % 2, 2 + wv % 2), 8: (wv // 2, 2 + wv // 2)}[wp]
        wslot = [0]
        def MW():
            for i in range(2):
                if ws[i] == wslot[0]: a(f'ds_write_b128 v{V_X0}, {vr(M+4*i,4)} offset:{1024*i}')
            wslot[0] += 1
        MW()
        S('q', 0, 0, M + 24); MW()
        S('q', 0, 1, M + 16); MW()
        S('q', 1, 0, B0); MW()
        S('q', 1, 1, B1); MW()
        S('k', 0, 0, T); MW()
        S('k', 0, 1); MW()
        S('k', 1, 0); MW()
        S('k', 1, 1); MW()
        a.wait_lds_writes()
        a('s_barrier')
        def MR(k): a(f'ds_read_b128 {vr(M+4*k,4)}, v{V_X0 + k//2} offset:{1024*(k%2)}')
        MR(2); MR(3)
        V(0, 0); MR(4)
        V(0, 1); MR(5)
        V(1, 0); MR(6)
        V(1, 1); MR(7)
        VXL = lambda i: a(f'buffer_load_dwordx4 {vr(VXN+4*i,4)}, v{V_L16}, {WS}, {S_REC} offen offset:{2048+1024*i} sc1')
        self.stamp(1)
        vm_ops = [
            lambda: a(f'buffer_store_dwordx4 {vr(KMH,4)}, v{V_L16}, {WS}, {S_T0} offen sc1'),
            lambda: VXL(0),
            lambda: VXL(1),
            lambda: (a(f'buffer_store_dword v{V_F}, v{V_ONE}, {WS}, {S_T1} offen sc1'),
                     a(f'buffer_load_dword v{V_FLAG}, v{V_Z}, {WS}, {S_FKV} offen sc1')),
        ]
        slot = [0]
        first = o.get('vm0', 5)
        def X():
            i = slot[0] - first - wv
            if i == 0: a('s_waitcnt vmcnt(0)')
            if i >= 0 and i % 4 == 0 and i // 4 < len(vm_ops): vm_ops[i // 4]()
            slot[0] += 1
        S('q', 2, 0); RD(B0, 'k', 2, 1, 0); X()
        S('q', 3, 0); RD(B0, 'k', 2, 1, 1); X()
        S('q', 4, 0); RD(B1, 'k', 3, 1, 0); X()
        S('q', 5, 0); RD(B1, 'k', 3, 1, 1); X()
        S('q', 6, 0); RD(T, 'k', 4, 1, 0); X()
        S('q', 7, 0); RD(T, 'k', 4, 1, 1); X()
        S('q', 2, 1); X()
        S('q', 3, 1); X()
        S('q', 4, 1); X()
        assert slot[0] > first + wv
        S('q', 5, 1); RD(B2, 'k', 5, 1, 0); X(); add(AQ, AQ, AQ + 2)
        S('q', 6, 1); RD(B2, 'k', 5, 1, 1); X(); add(AQ + 1, AQ + 1, AQ + 3)
        S('q', 7, 1); X(); a(f'{cvt} v{AQ+2}, v{AQ}, v{AQ+1}')
        S('k', 2, 0); X()
        S('k', 2, 1, B0); RD(B0, 'k', 6, 1, 0); X()
        S('k', 3, 0); RD(B0, 'k', 6, 1, 1); X()
        S('k', 3, 1, B1); RD(B1, 'k', 7, 0, 0); X(); add(AQ + 4, AQ + 4, AQ + 6)
        S('k', 4, 0); RD(B1, 'k', 7, 0, 1); X(); add(AQ + 5, AQ + 5, AQ + 7)
        S('k', 4, 1, T); RD(T, 'k', 7, 1, 0); X(); a(f'{cvt} v{AQ+3}, v{AQ+4}, v{AQ+5}')
        S('k', 5, 0); RD(T, 'k', 7, 1, 1); X()
        a(f'{mf16} {vr(AQ+4,4)}, {vr(AQ+2,2)}, {vr(SELQ,2)}, 0'); X()
        a(f'{mf16} {vr(T+8,4)}, {vr(AQ+2,2)}, {vr(SELQ+2,2)}, 0'); X()
        S('k', 5, 1, B2); RD(B2, 'v', 6, 0, 0); X()
        S('k', 6, 0); RD(B2, 'v', 6, 0, 1)
        S('k', 7, 0, B1); RD(B1, 'v', 7, 0, 0); a(f'{cvt} v{AQ}, v{AQ+4}, v{AQ+5}')
        S('k', 6, 1, B0); RD(B1, 'v', 7, 0, 1); a(f'{cvt} v{AQ+1}, v{AQ+6}, v{AQ+7}\n{cvt} v{AQ+2}, v{T+8}, v{T+9}')
        S('k', 7, 1, T); RD(B0, 'v', 6, 1, 0); a(f'{cvt} v{AQ+3}, v{T+10}, v{T+11}')
        assert slot[0] > first + wv + 4 * (len(vm_ops) - 1)
        self.stamp(2)
        RD(B0, 'v', 6, 1, 1)
        add(AK, AK, AK + 2)
        a(f'{mf32} {vr(AQ+4,4)}, {vr(KX,4)}, {vr(AQ,4)}, 0')
        add(AK + 1, AK + 1, AK + 3)
        a(f'{cvt} v{AK+2}, v{AK}, v{AK+1}')
        a(f'{mf32} {vr(T+8,4)}, {vr(KX+4,4)}, {vr(AQ,4)}, 0')
        pkadd(AK + 4, AK + 4, AK + 6)
        a(f'{cvt} v{AK+3}, v{AK+4}, v{AK+5}')
        a(f'{mf16} {vr(AK+4,4)}, {vr(AK+2,2)}, {vr(SELK,2)}, 0')
        a(f'{mf16} {vr(T,4)}, {vr(AK+2,2)}, {vr(SELK+2,2)}, 0')
        kslot = [0]
        def KL():
            i = kslot[0] - wv
            if i in (0, 4): a(f'buffer_load_dwordx4 {vr(KX+i,4)}, v{V_L16}, {WS}, {S_REC} offen offset:{256*i} sc1')
            kslot[0] += 1
        for i in range(4): a(f'v_cndmask_b32 v{AK+i}, v{T+8+i}, v{AQ+4+i}, {S_LO}')
        a(f'{cvt} v{KMH}, v{AK+4}, v{AK+5}\n{cvt} v{KMH+1}, v{AK+6}, v{AK+7}')
        a(f'{cvt} v{KMH+2}, v{T}, v{T+1}\n{cvt} v{KMH+3}, v{T+2}, v{T+3}')
        a(f'{mf32} {vr(T+4,4)}, {vr(KMH,4)}, {vr(AQ,4)}, 0')
        V(2, 0)
        a(f'ds_write_b128 v{V_X0}, {vr(AK,4)} offset:8192')
        a(f'v_cndmask_b32 v{T+4}, v{T+5}, v{T+4}, {S_LO}')
        V(2, 1)
        a(f'ds_write_b32 v{V_SMW}, v{T+4}')
        self.stamp(3)
        B3 = M + 8
        ONES, HALF = B2, B2 + 4
        V(3, 0); KL()
        V(3, 1); RD(B3, 'v', 7, 1, 0); KL()
        V(6, 0, B2); RD(B3, 'v', 7, 1, 1); KL()
        V(6, 1, B0); KL()
        if o.get('vb', 4) > 4: V(7, 0, B1)
        a.wait_lds_writes()
        a('s_barrier')
        SX = [T + 4, T + 8, AQ + 4]
        SR = lambda x: a(f'ds_read_b128 {vr(SX[x-1],4)}, v{V_X0+x} offset:8192')
        SR(1)
        if o.get('vb', 4) <= 4: V(7, 0, B1)
        SR(2); SR(3)
        V(4, 0); a(f'ds_read_b128 {vr(T,4)}, v{V_F} offset:1024'); a(f'v_mov_b64 {vr(ONES,2)}, s[26:27]')
        V(4, 1); KL(); a(f'v_mov_b64 {vr(ONES+2,2)}, s[26:27]')
        V(5, 0); KL(); a(f'v_mov_b64 {vr(HALF,2)}, s[8:9]')
        V(7, 1, B3); KL()
        V(5, 1); KL()
        WOS = lambda i, hh: a(f'ds_read_b128 {vr(WVB+8*i+4*hh,4)}, v{V_X0} offset:{16384+8192*i+1024*hh}')
        zs = list(range(M + 8, M + 32, 2)) + list(range(M, M + 8, 2))
        def Z(n):
            for _ in range(n): a(f'v_mov_b64 {vr(zs.pop(0),2)}, 0')
        self.stamp(4)
        pkadd(AK, AK, SX[0]); pkadd(AK + 2, AK + 2, SX[0] + 2)
        PK(SX[1], SX[1], SX[2]); PK(SX[1] + 2, SX[1] + 2, SX[2] + 2)
        PK(T, T, T + 2)
        PK(AK, AK, SX[1]); PK(AK + 2, AK + 2, SX[1] + 2)
        add(T, T, T + 1)
        mx, t2 = T + 2, T + 3
        a(f'v_max3_f32 v{mx}, v{AK}, v{AK+1}, v{AK+2}\nv_max3_f32 v{mx}, v{mx}, v{AK+3}, v{T}')
        PK(AV, AV, AV + 2); PK(AV + 4, AV + 4, AV + 6)
        a(f'v_max_f32_dpp v{t2}, v{mx}, v{mx} {QP}\nv_max_f32_dpp v{mx}, v{mx}, v{mx} {QP}')
        a(f'{cvt} v{AV+2}, v{AV}, v{AV+1}\n{cvt} v{AV+3}, v{AV+4}, v{AV+5}')
        a(f'v_permlane16_swap_b32 v{mx}, v{t2}\nv_max_f32 v{T+1}, v{mx}, v{t2}\nv_max_f32 v{mx}, v{mx}, v{t2}')
        a(f'{mf16} {vr(AV+4,4)}, {vr(SELV,2)}, {vr(AV+2,2)}, 0')
        WOS(0, 0)
        a(f'v_permlane32_swap_b32 v{mx}, v{T+1}\nv_max_f32 v{mx}, v{mx}, v{T+1}\nv_mul_f32 v{mx}, {S_SC}, v{mx}')
        E = [AK, AK + 1, AK + 2, AK + 3, T]
        for e in E: a(f'v_fma_f32 v{e}, v{e}, {S_SC}, -v{mx}')
        for e in E: a(f'v_exp_f32 v{e}, v{e}')
        BX, PM = AQ, T + 6
        a(f'{cvt} v{T+8}, v{AK}, v{AK+1}\n{cvt} v{T+9}, v{AK+2}, v{AK+3}')
        a(f"""
        v_cndmask_b32 v{BX}, 0, v{T+8}, {S_LO}
        v_cndmask_b32 v{BX+1}, 0, v{T+9}, {S_LO}
        v_cndmask_b32 v{BX+2}, v{T+8}, 0, {S_LO}
        v_cndmask_b32 v{BX+3}, v{T+9}, 0, {S_LO}
        v_mov_b32_dpp v{T+1}, v{T} {QP}
        {cvt} v{VMH}, v{AV+4}, v{AV+5}
        """)
        D, D2, DL = AQ + 4, AK + 4, T + 8
        a(f'{mf32} {vr(DL,4)}, {vr(ONES,4)}, {vr(BX,4)}, 0')
        WOS(0, 1)
        a(f'{cvt} v{T+4}, v{T}, v{T+1}\n{cvt} v{T+5}, v{T+1}, v{T}')
        a(f'{mf32} {vr(D2,4)}, {vr(VXC+4,4)}, {vr(BX,4)}, 0')
        WOS(1, 0)
        a(f'v_cndmask_b32 v{PM}, 0, v{T+4}, {S_LO}\nv_cndmask_b32 v{PM+1}, v{T+5}, 0, {S_LO}')
        a(f'{mf32} {vr(D,4)}, {vr(VXC,4)}, {vr(BX,4)}, 0')
        WOS(1, 1)
        a(f'{cvt} v{VMH+1}, v{AV+6}, v{AV+7}')
        a(f'{mf16} {vr(DL,4)}, {vr(HALF,2)}, {vr(PM,2)}, {vr(DL,4)}')
        Z(1)
        a(f'{mf16} {vr(D,4)}, {vr(VMH,2)}, {vr(PM,2)}, {vr(D,4)}')
        Z(o.get('zpv', 5))
        l = DL + 1
        a(f'v_add_f32_dpp v{l}, v{DL}, v{DL} {QP}\nv_rcp_f32 v{l}, v{l}')
        for i in range(4): a(f'v_add_f32_dpp v{D+i}, v{D2+i}, v{D+i} {QP}')
        for i in (0, 2): a(f'v_pk_mul_f32 {vr(D+i,2)}, {vr(D+i,2)}, {vr(l-1,2)} op_sel:[0,1] op_sel_hi:[1,1]')
        tagx = not o.get('bar3')
        a(f'{cvt} v{T}, v{D}, v{D+1}\n{cvt} v{T+1}, v{D+2}, v{D+3}')
        if tagx: a(f'v_and_or_b32 v{T}, v{T}, -2, {S_OTAG}')
        self.stamp(5)
        a(f'ds_write_b64 v{V_OW}, {vr(T,2)}')
        a(f's_cmp_eq_u32 {S_S}, 63\ns_cbranch_scc1 L_Rtail_{tg}')
        OA = AK
        def oread(): a(f'ds_read_b128 {vr(OA,4)}, v{V_F} offset:3072\nds_read_b128 {vr(OA+4,4)}, v{V_F} offset:5120')
        def ocheck():
            a(f'v_bitop3_b32 v{T+2}, v{OA}, v{OA+2}, {S_NOTAG} bitop3:0x42')
            a(f'v_bitop3_b32 v{T+3}, v{OA+4}, v{OA+6}, {S_NOTAG} bitop3:0x42')
            a(f'v_bitop3_b32 v{T+2}, v{T+2}, v{T+3}, 1 bitop3:0x80')
            a(f'v_cmp_eq_u32 vcc, 0, v{T+2}')
        if tagx:
            n1 = min(o.get('z3', 7), len(zs))
            Z(n1)
            for _ in range(o.get('z3', 7) - n1): a('s_nop 1')
            oread(); Z(len(zs))
        else:
            Z(min(6, len(zs)))
            a.wait_lds_writes()
            a('s_barrier')
            oread()
            Z(len(zs))
        self.stamp(6)
        def wo(t, kb):
            fr = WVB + 8 * WO_SPILL.index((t, kb)) if (t, kb) in WO_SPILL else wo_frag(t, kb)
            self.smf(M + 4 * t, OA + 4 * kb, vr(fr, 8))
        def fa(t, i): add(M + 4 * t + i, M + 4 * t + i, M + 4 * t + 2 + i)
        def fc(t): a(f'{cvt} v{AQ+t}, v{M+4*t}, v{M+4*t+1}')
        def tagit(r): a(f'v_and_or_b32 v{r}, v{r}, -2, {S_TAG}')
        a(f'L_wo_{tg}:')
        if tagx:
            wo(0, 0); a(f'v_bitop3_b32 v{T+2}, v{OA}, v{OA+2}, {S_NOTAG} bitop3:0x42')
            wo(1, 0); a(f'v_bitop3_b32 v{T+3}, v{OA+4}, v{OA+6}, {S_NOTAG} bitop3:0x42')
            wo(0, 1); a(f'v_bitop3_b32 v{T+2}, v{T+2}, v{T+3}, 1 bitop3:0x80')
            wo(1, 1); a(f'v_cmp_eq_u32 vcc, 0, v{T+2}')
            wo(2, 0); wo(2, 1); wo(3, 0)
            a(f's_cbranch_vccnz L_ofix_{tg}')
            wo(3, 1)
            def fix():
                a(f'L_ofix_{tg}:\ns_mov_b32 s23, {SPIN}\nL_ofix2_{tg}:')
                a.forget(vm=False)
                oread(); a.wait(lgkm=0); ocheck()
                a(f's_cbranch_vccz L_ofix3_{tg}\ns_sub_u32 s23, s23, 1\ns_cbranch_scc0 L_ofix2_{tg}\ns_xor_b32 {S_NOTAG}, {S_NOTAG}, v_never' if False else
                  f's_cbranch_vccz L_ofix3_{tg}\ns_sub_u32 s23, s23, 1\ns_cbranch_scc0 L_ofix2_{tg}\ns_endpgm\nL_ofix3_{tg}:')
                for r in range(M, M + 16, 2): a(f'v_mov_b64 {vr(r,2)}, 0')
                a(f's_branch L_wo_{tg}')
            self.fixups.append(fix)
        else:
            wo(0, 0); wo(1, 0); wo(0, 1); wo(1, 1); wo(2, 0); wo(2, 1); wo(3, 0); wo(3, 1)
        wo(4, 0); fa(0, 0); fa(0, 1); fa(1, 0)
        wo(4, 1); fa(1, 1); fc(0); fc(1)
        wo(5, 0); fa(2, 0); fa(2, 1); tagit(AQ)
        wo(5, 1); fa(3, 0); fa(3, 1); fc(2)
        wo(6, 0); fc(3)
        wo(6, 1)
        a(f'buffer_store_dwordx4 {vr(AQ,4)}, v{V_IST}, {WS}, {S_IN0} offen {cf}')
        wo(7, 0); fa(4, 0)
        wo(7, 1); fa(4, 1); fc(4); fa(5, 0); fa(5, 1); tagit(AQ + 4); fc(5)
        fa(6, 0); fa(6, 1); fc(6); fa(7, 0); fa(7, 1); fc(7)
        a(f'buffer_store_dwordx4 {vr(AQ+4,4)}, v{V_IST}, {WS}, {S_IN1} offen {cf}')
        self.stamp(7)
        def pack_kvm():
            a(f's_mov_b64 vcc, {S_LO}')
            for i in range(4):
                qp = '[0,0,0,2]' if i < 2 else '[0,0,1,3]'
                a(f'v_cndmask_b32_dpp v{KMH+i}, v{VMH+i%2}, v{KMH+i}, vcc quad_perm:{qp} row_mask:0xf bank_mask:0xf')
        self.pack_kvm = pack_kvm
        def preA():
            a(f"""
            v_mov_b32 v{PA}, {S_NTAG}
            v_mov_b32 v{PA+4}, {S_NTAG}
            """)
            for i in range(o.get('dA', 4) if wv >= 2 else o.get('dA0', o.get('dA', 4))): dmf(R)
        def slackA():
            preload()
            pack_kvm()
            a(f"""
            s_add_u32 {S_S}, {S_S}, 1
            s_xor_b32 {S_IN0}, {S_IN0}, 0x40000
            s_and_b32 {S_T0}, {S_S}, 3
            s_lshl_b32 {S_T0}, {S_T0}, 13
            v_mov_b64 {vr(M,2)}, -1
            s_andn2_b32 {S_PUBB}, {S_PUBB}, 0x6000
            s_andn2_b32 {S_MEMP}, {S_MEMP}, 0x6000
            v_mov_b64 {vr(M+2,2)}, -1
            s_or_b32 {S_MEMP}, {S_MEMP}, {S_T0}
            s_xor_b32 {S_RST}, {S_T0}, 0x4000
            v_mov_b64 {vr(M+4,2)}, -1
            s_or_b32 {S_RST}, {S_RST}, {S_PUBB}
            s_or_b32 {S_PUBB}, {S_PUBB}, {S_T0}
            v_mov_b64 {vr(M+6,2)}, -1
            """)
            if not o.get('zB'):
                for r in range(AQ, AQ + 24, 2): a(f'v_mov_b64 {vr(r,2)}, 0')
            a.wait(lgkm=0)
        def checkA():
            a(f"""
            v_bitop3_b32 v{VXC}, v{PA}, v{PA+4}, {S_NTAG} bitop3:0x42
            v_and_b32 v{VXC}, 1, v{VXC}
            v_cmp_eq_u32 vcc, 0, v{VXC}
            """)
        def shadowA():
            a(f'{mf32} {vr(R,4)}, {vr(PA,4)}, {vr(SELR,4)}, 0\n{mf32} {vr(R,4)}, {vr(PA+4,4)}, {vr(SELR,4)}, {vr(R,4)}')
        if o.get('p2old'):
            if o.get('blkA'):
                if o.get('blkA') == 3 and wv < 2:
                    self.poll('A' + tg, PA, V_L16, S_INP, preA, checkA, shadowA, 0, mid=slackA, blk=(o.get('gA0', 0), o.get('cA0', 0), lambda: dmf(R)))
                elif o.get('blkA') >= 2:
                    self.poll('A' + tg, PA, V_L16, S_INP, lambda: (slackA(), preA()), checkA, shadowA, 0, blk=(o.get('gA', 8), o.get('cA', 5), lambda: dmf(R)))
                else:
                    self.poll('A' + tg, PA, V_L16, S_INP, preA, checkA, shadowA, 0, mid=slackA, blk=(o.get('gA', 0), o.get('cA', 2), lambda: dmf(R)))
            elif o.get('latepre') and wv >= 2:
                self.poll('A' + tg, PA, V_L16, S_INP, lambda: (slackA(), preA()), checkA, shadowA, o.get('nA', 3))
            else:
                self.poll('A' + tg, PA, V_L16, S_INP, preA, checkA, shadowA, o.get('nA', 3) if wv >= 2 else o.get('nA0', o.get('nA', 3)), mid=slackA, nmid=o.get('mA', 0))
        else:
            pl = [(M + 24, 'q', 0, 0), (M + 16, 'q', 0, 1), (B0, 'q', 1, 0), (B1, 'q', 1, 1), (T, 'k', 0, 0)]
            chA = [(40, pack_kvm)]
            chA += sa(f"""
            s_add_u32 {S_S}, {S_S}, 1
            s_xor_b32 {S_IN0}, {S_IN0}, 0x40000
            s_and_b32 {S_T0}, {S_S}, 3
            s_lshl_b32 {S_T0}, {S_T0}, 13
            s_andn2_b32 {S_PUBB}, {S_PUBB}, 0x6000
            s_andn2_b32 {S_MEMP}, {S_MEMP}, 0x6000
            s_or_b32 {S_MEMP}, {S_MEMP}, {S_T0}
            s_xor_b32 {S_RST}, {S_T0}, 0x4000
            s_or_b32 {S_RST}, {S_RST}, {S_PUBB}
            s_or_b32 {S_PUBB}, {S_PUBB}, {S_T0}
            """)
            zz = [f'v_mov_b64 {vr(r,2)}, 0' for r in range(AQ, AQ + 24, 2)] + [f'v_mov_b32 v{M}, -1']
            for k in range(10):
                chA.append((16, lambda k=k: (RD(*pl[k // 2], k % 2), a(zz[k]))))
            chA += va(zz[10:])
            chA.append((4, lambda: a.wait(lgkm=0)))
            self.poll2('A' + tg, PA, S_INP, chA, o.get('tA0', 240), o.get('tA1', 180), o.get('tA2', 100), lambda: dmf(R), checkA, shadowA)
        self.stamp(8)
        a(f"""
        v_permlane32_swap_b32 v{R}, v{R+2}
        v_permlane32_swap_b32 v{R+1}, v{R+3}
        v_add_f32 v{R}, v{R}, v{R+2}
        v_add_f32 v{R+1}, v{R+1}, v{R+3}
        v_permlane16_swap_b32 v{R}, v{R+1}
        v_add_f32 v{R}, v{R}, v{R+1}
        v_mov_b32_dpp v{R+1}, v{R} quad_perm:[1,0,3,2] row_mask:0xf bank_mask:0xf
        {cvt} v{R+2}, v{R}, v{R+1}
        buffer_store_dword v{R+2}, v{V_PUB}, {WS}, {S_PUBB} offen {cf}
        """)
        self.stamp(9)
        a(f'buffer_store_dword v{M}, v{V_PUB}, {WS}, {S_RST} offen {cf}')
        if not o.get('rt'): self.dump_stamps(tg)
        a(f's_branch L_Rloop_{tg}')
        a.hot = False
        a(f'{spin}:')
        self.spin_flag(V_FLAG, f'v{V_Z}', S_FKV)
        a(f's_branch {back}')
        for txt, sh in zip(self.late, self.late_sh):
            pre, post = txt.split('@SH@')
            a(pre); a('s_nop 7'); sh(); a(post)
        for f in self.fixups: f()
        a(f'L_Rtail_{tg}:')
        a.forget()
        self.pack_kvm()
        a(f'''
        buffer_store_dwordx4 {vr(KMH,4)}, v{V_L16}, {WS}, {S_KVM} offen sc1
        s_waitcnt vmcnt(0) lgkmcnt(0)
        buffer_store_dword v{V_F}, v{V_ONE}, {WS}, {S_FM} offen sc1
        buffer_store_dword v{V_F}, v{V_ONE}, {WS}, {S_FM} offen offset:2048 sc1
        ''')
        self.tstamp(6, T + 4)
        if o.get('stamp'):
            set_srd(a, 12, P_DBG, 256)
            a(f'''
            s_memtime s[82:83]
            s_memrealtime s[84:85]
            s_waitcnt lgkmcnt(0)
            s_sub_u32 s82, s82, s80
            s_sub_u32 s84, s84, s30
            s_sub_u32 s28, s28, s30
            v_mov_b32 v{T}, s82
            v_mov_b32 v{T+1}, {S_FAST}
            v_mov_b32 v{T+2}, s28
            v_mov_b32 v{T+3}, s84
            v_mov_b32 v{T+4}, 8
            buffer_store_dwordx4 {vr(T,4)}, v{T+4}, {ST}, 0 offen
            ''')
        a('s_endpgm')
        a.auto_vm = True
```

```python
import numpy as np
MB = 1 << 20
REC = 0
KVM = 48 * MB
OB = 64 * MB
GATE = 66 * MB
FLG = 67 * MB
F_KV = FLG
F_M = FLG + 131072
F_P = FLG + 262144
F_OB = FLG + 393216
F_RS = FLG + 425984
R_HINT = FLG + 442368
RIN = 68 * MB
RMEM = RIN + 524288
KVL = RIN + 655360
F_S = GATE + 65536
DBG = 70 * MB
FP = 72 * MB
WS_BYTES = 256 * MB
OOB = 0x40000000

L_MEMX = 131072
L_XR = 139264
L_WOS = 147456
LDS_BYTES = 163840
BLK = 16896
GRP = 4 * BLK

def bf16_bits(x):
    return int(np.array([x], dtype=np.float32).view(np.uint32)[0] >> 16)
ONE = bf16_bits(1.0)
def pk(lo, hi):
    return (ONE if lo else 0) | ((ONE if hi else 0) << 16)

def rowof(n): return 2 * (n // 4) + n % 2
def r_table():
    T = {}
    def add(name, f):
        T[name] = [f(t >> 6, (t & 63) >> 4, t & 15, t & 63) & 0xFFFFFFFF for t in range(256)]
    add('l16', lambda w, g, c, l: l * 16)
    add('ist', lambda w, g, c, l: ((8 * w + c // 4) * 4 + g) * 2048 + (c % 4) * 16)
    add('pub', lambda w, g, c, l: (g * 512 + (c // 8) * 16 + (c % 4) * 4) if (g < 2 and c % 8 < 4) else OOB)
    for x in range(4):
        add(f'x{x}', lambda w, g, c, l, x=x: L_MEMX + l * 16 + (x ^ w) * 2048)
    add('f', lambda w, g, c, l: L_XR + l * 16)
    add('smw', lambda w, g, c, l: L_XR + 1024 + l * 16 + 4 * w)
    add('ow', lambda w, g, c, l: L_XR + 3072 + (w // 2) * 2048 + (w % 2) * 512 + g * 128 + rowof(c) * 16 + ((c % 4) // 2) * 8)
    add('wv', lambda w, g, c, l: w * 2048 + l * 16)
    add('one', lambda w, g, c, l: 0 if l == 0 else OOB)
    add('idx', lambda w, g, c, l: 0x44444444 if c % 4 < 2 else 0xEEEEEEEE)
    def page(l):
        if l < 24:
            a = l * 2 * MB
            return a + (4096 - a % 6144) % 6144
        if l < 28: return KVM + (l - 24) * 2 * MB
        if l == 28: return F_OB + 98304
        return OOB
    add('mm', lambda w, g, c, l: page(l))
    add('trq', lambda w, g, c, l: (8 * (g // 2) + 2 * (g % 2) + [0, 0, 4, 4][c // 4]) * 1056 + [0, 1, 0, 1][c // 4] * 256 + w * 64 + (c % 4) * 8)
    add('tro', lambda w, g, c, l: w * BLK + (4 * (g // 2) + (c // 4) % 2) * 1056 + (g % 2) * 256 + (c // 8) * 32 + (c % 4) * 8)
    def jrow(r):
        r %= 8
        return 2 * (2 * (r // 4) + r % 2) + (r % 4) // 2
    def rslots(c):
        j = jrow(c); vals = [0] * 8; idx = [0, 1] * 4
        for grp in (j // 4, 2 + j // 4):
            if j % 4 == 3: idx[2 * grp:2 * grp + 2] = [2, 3]; vals[2 * grp + 1] = 1
            else: idx[2 * grp:2 * grp + 2] = [j % 4, 3]; vals[2 * grp] = 1
        return vals, sum(x << (2 * k) for k, x in enumerate(idx))
    for r in range(4):
        add(f'selr{r}', lambda w, g, c, l, r=r: pk(rslots(c)[0][2 * r], rslots(c)[0][2 * r + 1]))
    T['idx'] = [(T['idx'][t] & 0xFFFF) | (rslots(t & 15)[1] << 16) for t in range(256)]
    def selv(g, m, i):
        gam, io = m // 4, m % 4
        tile = io // 2; row = gam + (4 if io % 2 else 0)
        return (i // 2 == tile) and (2 * g + i % 2 == row)
    for r in range(2):
        add(f'selv{r}', lambda w, g, c, l, r=r: pk(selv(g, c, 2 * r), selv(g, c, 2 * r + 1)))
    add('selq', lambda w, g, c, l: pk(2 * g == rowof(c), 2 * g + 1 == rowof(c)))
    def sig(n): return n // 4 if n % 4 == 0 else (4 + n // 4 if n % 4 == 1 else -1)
    add('selk', lambda w, g, c, l: pk(2 * g == sig(c), 2 * g + 1 == sig(c)))
    add('m0a', lambda w, g, c, l: ((c // 8) * 1024 + 2 * (32 * g + c % 4)) if (g < 2 and c % 8 < 4) else OOB)
    add('or', lambda w, g, c, l: L_XR + 3072 + g * 128 + rowof(c) * 16)
    while len(T) < 28: add(f'pad{len(T)}', lambda w, g, c, l: 0)
    return T

def w_table():
    T = {}
    def add(name, f):
        T[name] = [f(t >> 6, (t & 63) >> 4, t & 15, t & 63) & 0xFFFFFFFF for t in range(256)]
    add('l16', lambda w, g, c, l: l * 16)
    add('one', lambda w, g, c, l: 0 if l == 0 else OOB)
    add('trp', lambda w, g, c, l: (8 * (g % 2) + c // 4) * 1056 + (g // 2) * 256 + w * 64 + (c % 4) * 8)
    add('xg', lambda w, g, c, l: (l // 4) * 1024 + ((l % 4) ^ g) * 16)
    half = lambda c: 0xFFFF0000 if c % 2 else 0x0000FFFF
    for j in range(2):
        add(f'mc{j}', lambda w, g, c, l, j=j: half(c) if 4 * g + c % 2 + 2 * j <= c else 0)
    for j in range(2):
        add(f'mp{j}', lambda w, g, c, l, j=j: 0 if 4 * g + c % 2 + 2 * j <= c else half(c))
    add('c4', lambda w, g, c, l: c * 4)
    add('l8', lambda w, g, c, l: l * 8)
    add('trf', lambda w, g, c, l: w * 36864 + (4 * g + c // 4) * 64 + (c % 4) * 16)
    add('dma1k', lambda w, g, c, l: (l // 4) * 1024 + (l % 4) * 16 + w * 256)
    add('xr', lambda w, g, c, l: c * 64 + (g ^ (c // 4)) * 16)
    add('fpld', lambda w, g, c, l: g * 1024 + w * 256 + c * 16)
    add('outst', lambda w, g, c, l: (c * 1024 + w * 16 + g * 8) if g < 2 else OOB)
    add('pfl', lambda w, g, c, l: (l % 32) * 4)
    for r in range(4):
        add(f'self{r}', lambda w, g, c, l, r=r: pk(2 * r == c, 2 * r + 1 == c))
    add('oxw', lambda w, g, c, l: 147456 + (w // 2) * 4096 + (w % 2) * 2048 + l * 16)
    add('oxr', lambda w, g, c, l: 147456 + l * 16)
    add('qrow', lambda w, g, c, l: 16 * (w // 2) + c - 4 * g)
    add('vml', lambda w, g, c, l: (4 * (l // 4) + 2 + (l % 4) // 2) * 16 + (l % 2) * 8)
    assert len(T) == 24
    return T

def table_text(label, T):
    names = list(T.keys())
    out = [f'.p2align 8', f'{label}:']
    for t in range(256):
        out.append('.long ' + ','.join(hex(T[n][t]) for n in names))
    return '\n'.join(out) + '\n'
```

```python
import layout as L
from gen_common import *

V_L16, V_IST, V_PUB, V_X0, V_F, V_SMW, V_OW, V_WV = 1, 2, 3, 4, 8, 9, 10, 11
KMH, VMH = 12, 16
V_IDX, V_WV2 = 18, 19
SELR, SELV, V_ONE, V_DUM, SELQ, SELK = 20, 24, 26, 27, 28, 128
V_Z = 29
VXC, VXN, KX = 32, 40, 48
WVB = 56
AQ, AK, AV = 72, 80, 88
M = 96
T = 132
WO0 = 144
V_FLAG = 0
SC = 128 ** -0.5 * 1.4426950408889634
import struct
def f2u(x): return struct.unpack('<I', struct.pack('<f', x))[0]

WO_SPILL = [(0, 0), (2, 0)]
def wo_frag(t, kb):
    order = [(t_, k_) for t_ in range(8) for k_ in range(2) if (t_, k_) not in WO_SPILL]
    return WO0 + 8 * order.index((t, kb))

LDSF = [('q', 0, 0), ('q', 0, 1), ('q', 1, 0), ('q', 1, 1), ('k', 0, 0)] + [('k', k, 1) for k in range(2, 8)] + [('k', 7, 0)] + [('v', k, p) for k in (6, 7) for p in range(2)]
AGF = [(m, k, p) for m in 'qkv' for k in range(8) for p in range(2) if (m, k, p) not in LDSF]
assert len(LDSF) == 16 and len(AGF) == 32
S_S = 's61'
S_MEMP = 's62'
S_PUBB = 's63'
S_IN0, S_IN1 = 's64', 's65'
S_INP = 's66'
S_REC = 's67'
S_FKV = 's68'
S_KVM, S_FM = 's69', 's70'
S_RST = 's71'
S_LO = 's[72:73]'
S_SC = 's74'
S_T0, S_T1 = 's75', 's76'
S_FAST = 's77'
S_TAG, S_NTAG = 's78', 's79'
S_OTAG, S_NOTAG = 's24', 's25'

class RRole:
    def smf(self, acc, A, B):
        self.a(f'v_smfmac_f32_16x16x64_bf16 {vr(acc,4)}, {vr(A,4)}, {B}, v{V_IDX}')

    def r_role(self):
        a = self.a; o = self.o
        a('L_R:')
        a.vq = list(self.vq_role)
        self.mark(0)
        self.note(2, 40)
        VD8, VD1, VTQ, VTO, VTA = 28, 29, 30, 31, 7
        a(f"""
        v_and_b32 v1, 63, v0
        v_lshrrev_b32 v2, 4, v1
        v_and_b32 v3, 15, v1
        v_lshlrev_b32 v4, 4, v3
        v_lshl_add_u32 v{VD8}, v2, 17, v4
        v_and_b32 v4, 0x70, v4
        v_lshrrev_b32 v3, 3, v3
        v_lshl_add_u32 v4, v3, 9, v4
        v_lshl_add_u32 v{VD1}, v2, 14, v4
        s_lshl_b32 s21, {S_W}, 7
        v_add_u32 v{VD1}, s21, v{VD1}
        s_mul_i32 s78, {S_W}, {L.BLK}
        """)
        groups = [(m, b) for m in 'oqkv' for b in range(2)]
        def issue(gi):
            mat, b = groups[gi]
            if b == 0: set_srd(a, 8, {'q': P_WQ, 'k': P_WK, 'v': P_WV, 'o': P_WO}[mat], 4 << 20)
            a(f's_add_u32 m0, s78, {(gi % 2) * L.GRP}')
            if mat != 'o':
                a(f's_add_u32 s21, {S_W}, {4 * b}\ns_lshl_b32 s21, s21, 19\ns_lshl_b32 s22, {S_RANK}, 8\ns_add_u32 s21, s21, s22')
                self.dma_block(f'v{VD8}', 's21', 8192)
            else:
                a(f's_lshl_b32 s21, {S_RANK}, 17\ns_add_u32 s21, s21, {b * 65536}')
                self.dma_block(f'v{VD1}', 's21', 1024)
        issue(0)
        self.load_table('T_R', 96, 28, 7)
        issue(1)
        self.mark(1)
        self.gate_and_store()
        names = list(L.r_table().keys())
        def tv(n): return 96 + names.index(n)
        a(f'v_mov_b32 v{VTQ}, v{tv("trq")}\nv_mov_b32 v{VTO}, v{tv("tro")}\nv_add_u32 v6, 65536, v{tv("wv")}')
        if o.get('code'):
            pc = a.newlabel('pc')
            a(f's_getpc_b64 s[12:13]\n{pc}:\ns_add_u32 s12, s12, L_R_ready-{pc}\ns_addc_u32 s13, s13, 0\ns_mov_b32 s14, L_R_slow-L_R_ready\ns_mov_b32 s15, 0x20000')
            a(f'v_lshlrev_b32 v1, 7, v0\nbuffer_load_dword v27, v1, {ST}, 0 offen')
        else:
            a(f'buffer_load_dword v27, v{tv("one")}, {WS}, 0 offen')
        a(f'buffer_load_dword v26, v{tv("mm")}, {WS}, 0 offen')
        a.auto_vm = False
        TMP = 56
        park = {}
        parkregs = [32, 64, 72, 80, 88, 124, 132, 8]
        for f in LDSF:
            if f[0] == 'k': park[f] = parkregs.pop(0)
            if f[0] == 'q': park[f] = -8 * AGF.index(('v', 3 + 2 * f[1], f[2])) - 1
        S_RDY = 's76'
        def scalars():
            if o.get('pa2', 0):
                dec = f's_lshr_b32 s84, {S_RANK}, 3\ns_lshl_b32 s84, s84, 1\ns_lshr_b32 s21, {S_W}, 1\ns_add_u32 s84, s84, s21\n' \
                      f's_lshr_b32 s85, {S_RANK}, 1\ns_and_b32 s85, s85, 3\n' \
                      f's_and_b32 s86, {S_RANK}, 1\ns_lshl_b32 s86, s86, 1\ns_and_b32 s21, {S_W}, 1\ns_add_u32 s86, s86, s21'
            else:
                dec = f's_lshr_b32 s84, {S_RANK}, 2\ns_and_b32 s85, {S_RANK}, 3\ns_mov_b32 s86, {S_W}'
            a(f'''
            {dec}
            s_lshl_b32 {S_INP}, s84, 2
            s_add_u32 {S_INP}, {S_INP}, s85
            s_lshl_b32 {S_INP}, {S_INP}, 2
            s_add_u32 {S_INP}, {S_INP}, s86
            s_lshl_b32 {S_INP}, {S_INP}, 11
            s_add_u32 {S_INP}, {S_INP}, {hex(L.RIN)}
            s_lshl_b32 {S_PUBB}, s84, 10
            s_and_b32 s22, s85, 2
            s_lshl_b32 s22, s22, 7
            s_add_u32 {S_PUBB}, {S_PUBB}, s22
            s_and_b32 s22, s85, 1
            s_lshl_b32 s22, s22, 5
            s_add_u32 {S_PUBB}, {S_PUBB}, s22
            s_lshl_b32 s22, s86, 6
            s_add_u32 {S_PUBB}, {S_PUBB}, s22
            s_add_u32 {S_PUBB}, {S_PUBB}, {hex(L.RMEM)}
            s_and_b32 s22, s84, 1
            s_lshl_b32 s22, s22, 9
            s_lshr_b32 s21, s84, 1
            s_lshl_b32 s21, s21, 7
            s_add_u32 s21, s21, s22
            s_lshl_b32 s22, s85, 3
            s_add_u32 s21, s21, s22
            s_lshl_b32 s22, s86, 11
            s_add_u32 s75, s21, s22
            s_mul_i32 {S_REC}, {S_RANK}, 24576
            s_mul_i32 s21, {S_W}, 6144
            s_add_u32 {S_REC}, {S_REC}, s21
            s_lshl_b32 {S_FKV}, {S_RANK}, 6
            s_lshl_b32 s21, {S_W}, 2
            s_add_u32 {S_FKV}, {S_FKV}, s21
            s_add_u32 {S_FM}, {S_FKV}, {hex(L.F_M - 4096)}
            s_add_u32 {S_FKV}, {S_FKV}, {hex(L.F_KV)}
            s_lshl_b32 {S_KVM}, {S_RANK}, 12
            s_lshl_b32 s21, {S_W}, 10
            s_add_u32 {S_KVM}, {S_KVM}, s21
            s_add_u32 {S_KVM}, {S_KVM}, {hex(L.KVM - 131072)}
            s_lshl_b32 s21, {S_W}, 11
            s_add_u32 {S_MEMP}, s21, {hex(L.RMEM)}
            s_lshl_b32 {S_IN0}, {S_RANK}, 6
            s_add_u32 {S_IN0}, {S_IN0}, {hex(L.RIN)}
            s_mov_b32 s72, 0x33333333
            s_mov_b32 s73, 0x33333333
            s_mov_b32 {S_SC}, {hex(f2u(SC))}
            s_mov_b32 {S_S}, 0
            ''')
        def first_records(l16):
            for i in range(2):
                a(f'buffer_load_dwordx4 {vr(KX+4*i,4)}, v{l16}, {WS}, {S_REC} offen offset:{1024*i} sc1')
                a(f'buffer_load_dwordx4 {vr(VXN+4*i,4)}, v{l16}, {WS}, {S_REC} offen offset:{2048+1024*i} sc1')
        def stage_x():
            set_srd(a, 12, P_DBG, 256)
            a(f'''
            v_and_b32 v1, 3, v0
            v_lshlrev_b32 v1, 6, v1
            v_add_u32 v1, 60, v1
            v_and_b32 v2, 4, v0
            v_cmp_ne_u32 vcc, 0, v2
            v_cndmask_b32 v1, v1, 0, vcc
            v_and_b32 v2, 1, v0
            v_lshlrev_b32 v2, 11, v2
            buffer_load_dword v3, v1, {ST}, 0 offen sc1
            buffer_load_dword v4, v2, {WS}, {S_FKV} offen sc1
            ''')
        def stage_y():
            a(f'''
            v_lshl_or_b32 v140, v141, 16, v140
            v_readlane_b32 s84, v3, 0
            v_readlane_b32 s85, v3, 1
            v_readlane_b32 s86, v3, 2
            v_readlane_b32 s87, v3, 3
            v_readlane_b32 s21, v3, 4
            v_cmp_eq_u32 vcc, 0, v4
            s_mov_b32 {S_RDY}, 0
            s_add_u32 s84, s84, s85
            s_add_u32 s86, s86, s87
            s_add_u32 s84, s84, s86
            s_cmp_ge_u32 s21, 32
            s_cselect_b32 {S_FAST}, 1, 0
            s_cbranch_vccnz L_R_notyet
            s_cmp_lt_u32 s84, 256
            s_cbranch_scc1 L_R_notyet
            s_mov_b32 {S_RDY}, 1
            buffer_store_dword v140, v{tv("pub")}, {WS}, {S_PUBB} offen sc1
            ''')
            first_records(tv('l16'))
            a('L_R_notyet:')
        scalars()
        set_srd(a, 24, P_MEM0, 8192)
        a(f'buffer_load_ushort v140, v{tv("m0a")}, s[24:27], s75 offen\nbuffer_load_ushort v141, v{tv("m0a")}, s[24:27], s75 offen offset:32')
        todo = []
        self.ldsf_off = {}
        def flush(n):
            for _ in range(n):
                f, r = todo.pop(0); off = 8192 * len(self.ldsf_off)
                self.ldsf_off[f] = off
                for hh in range(2):
                    src = vr(r + 4 * hh, 4) if r >= 0 else ar(-r - 1 + 4 * hh, 4)
                    a(f'ds_write_b128 v{tv("wv") if off < 65536 else 6}, {src} offset:{off % 65536 + 1024 * hh}')
                if r >= 0: parkregs.append(r)
        for gi in range(8):
            mat, b = groups[gi]
            if gi == 0: self.mark(2)
            a.wait(vm=[16 + 5, 5 + 16, 16, 16, 16, 16, 16, 0][gi] if o.get('xearly', 1) else [16 + 5, 5 + 16, 16, 16, 16, 16, 16 + 2, 2][gi])
            if gi == 6 and o.get('xearly', 1): stage_y()
            if gi in (0, 2, 4, 7): self.mark(3 + [0, 2, 4, 7].index(gi))
            a('s_barrier')
            hb = (gi % 2) * L.GRP
            for x in range(4):
                dsts = []
                if mat == 'o':
                    for p in range(2):
                        t = 2 * x + p
                        dsts.append((vr, (TMP if t == 0 else 40) if (t, b) in WO_SPILL else wo_frag(t, b)))
                    offs = [0, 2112, 8448, 10560]; xo = 64 * x
                    if x == 0: a(f'v_add_u32 v{VTA}, {hb}, v{VTO}')
                else:
                    offs = [0, 1056, 512, 1568]; xo = 0
                    a(f's_xor_b32 s21, {S_W}, {x}\ns_mul_i32 s21, s21, {L.BLK}\ns_add_u32 s21, s21, {hb}\nv_add_u32 v{VTA}, s21, v{VTQ}')
                    for p in range(2):
                        f = (mat, 2 * x + b, p)
                        if f in AGF: dsts.append((ar, 8 * AGF.index(f)))
                        else:
                            if f not in park: park[f] = TMP if (f[1], f[2]) == (6, 0) else (16 if (f[1], f[2]) == (6, 1) else parkregs.pop(0))
                            if park[f] < 0: dsts.append((ar, -park[f] - 1)); todo.insert(0, (f, park[f]))
                            else: dsts.append((vr, park[f])); todo.append((f, park[f]))
                for p in range(2):
                    rf, d = dsts[p]
                    for r in range(4):
                        a(f'ds_read_b64_tr_b16 {rf(d + 2 * r, 2)}, v{VTA} offset:{xo + offs[r] + 32 * p}')
            if gi == 7 and not o.get('xearly', 1):
                a.wait(vm=0); stage_y()
            a.wait(lgkm=0)
            if gi == 0:
                for i in range(2):
                    for hh in range(2):
                        a(f'ds_write_b128 v{tv("x0")}, {vr((TMP if i == 0 else 40) + 4 * hh, 4)} offset:{16384 + 8192 * i + 1024 * hh}')
            a('s_barrier')
            if gi == 5 and o.get('xearly', 1): stage_x()
            if gi + 2 < 8: issue(gi + 2)
            if gi == 5 and not o.get('xearly', 1): stage_x()
            if gi == 2: self.signal_init(barrier=False)
            if gi == 6: flush(8)
            if gi == 7: flush(8)
        assert not todo and len(self.ldsf_off) == 16
        a.wait(lgkm=0)
        a.auto_vm = True; a.forget()
        a(f'v_mov_b32 v{V_WV2}, v6')
        for n, d in [('l16', V_L16), ('ist', V_IST), ('pub', V_PUB), ('x0', V_X0), ('x1', V_X0 + 1), ('x2', V_X0 + 2), ('x3', V_X0 + 3),
                     ('f', V_F), ('smw', V_SMW), ('ow', V_OW), ('wv', V_WV), ('idx', V_IDX), ('one', V_ONE)] + \
                    [(f'selr{i}', SELR + i) for i in range(4)] + [(f'selv{i}', SELV + i) for i in range(2)] + \
                    [('selq', SELQ), ('selq', SELQ + 3), ('selk', SELK), ('selk', SELK + 3)]:
            a(f'v_mov_b32 v{d}, v{tv(n)}')
        for d in (SELQ + 1, SELQ + 2, SELK + 1, SELK + 2): a(f'v_mov_b32 v{d}, 0')
        self.dump_marks(T + 4)
        self.tstamp(1, T + 4)
        self.note(3, T + 4)
        a(f's_cmp_eq_u32 {S_RDY}, 1\ns_cbranch_scc1 L_R_ready')
        self.wait_init(t0=T + 4)
        a(f's_cmp_ge_u32 s21, 32\ns_cselect_b32 {S_FAST}, 1, 0')
        a(f'buffer_store_dword v140, v{V_PUB}, {WS}, {S_PUBB} offen sc1')
        self.spin_flag(V_FLAG, f'v{V_Z}', S_FKV)
        first_records(V_L16)
        a(f's_add_u32 s21, {S_FKV}, 2048')
        self.spin_flag(V_FLAG, f'v{V_Z}', 's21')
        a('L_R_ready:')
        a.wait(vm=0)
        a.forget()
        if o.get('force_slow'): a(f's_mov_b32 {S_FAST}, 0')
        a(f's_add_u32 {S_FKV}, {S_FKV}, 2048\nv_mov_b32 v{V_FLAG}, 1')
        for r in range(M, M + 8, 2): a(f'v_mov_b64 {vr(r,2)}, -1')
        a(f's_lshl_b32 s21, {S_RANK}, 6\ns_add_u32 s21, s21, {hex(L.F_RS)}\ns_cmp_eq_u32 {S_W}, 0\ns_cselect_b32 s21, s21, {hex(L.OOB)}')
        a(f'buffer_store_dword v{V_F}, v{V_ONE}, {WS}, s21 offen sc1')
        self.tstamp(2, T + 4)
        self.tstamp(3, T + 4)
        self.note(4, T + 4)
        if o.get('stamp'):
            a('s_memtime s[80:81]\ns_memrealtime s[28:29]'); a.wait(lgkm=0)
        a('s_mov_b32 s26, 0x3f803f80\ns_mov_b32 s27, 0x3f803f80\ns_mov_b32 s8, 0x3f003f00\ns_mov_b32 s9, 0x3f003f00')
        a(f'ds_write_b64 v{V_OW}, {vr(M,2)}')
        a.wait(lgkm=0)
        a(f's_cmp_eq_u32 {S_FAST}, 0\ns_cbranch_scc1 L_R_slow')
        if o.get('nostag'):
            self.r_loop('f', '')
        else:
            for w in range(1, 4): a(f's_cmp_eq_u32 {S_W}, {w}\ns_cbranch_scc1 L_R_w{w}')
            for w in range(4):
                if w: a(f'L_R_w{w}:')
                self.r_loop('f' + (str(w) if w else ''), '', wv=w)
        a('L_R_slow:')
        self.r_loop('s', 'sc1')

    def spin_flag(self, dst, voff, soff):
        a = self.a
        lab = a.newlabel('sf'); ok = a.newlabel('sfok')
        sv = a.auto_vm; a.auto_vm = False
        a(f'''
        s_mov_b32 s23, {SPIN}
        {lab}:
        buffer_load_dword v{dst}, {voff}, {WS}, {soff} offen sc1
        s_waitcnt vmcnt(0)
        v_cmp_ne_u32 vcc, 0, v{dst}
        s_cbranch_vccnz {ok}
        s_sleep 2
        s_sub_u32 s23, s23, 1
        s_cbranch_scc0 {lab}
        s_mov_b32 {SPIN}, 0x400
        {ok}:
        ''')
        a.auto_vm = sv; a.vq = []

    def poll(self, tag, dst, voff, soff, pre, check, shadow, nchk, mid=None, nmid=0, blk=None):
        a = self.a
        lab = f'L_poll_{tag}'; ok = f'L_pok_{tag}'
        def issue():
            a(f'buffer_load_dwordx4 {vr(dst,4)}, v{voff}, {WS}, {soff} offen {self.pf}')
            a(f'buffer_load_dwordx4 {vr(dst+4,4)}, v{voff}, {WS}, {soff} offen offset:1024 {self.pf}')
        pre()
        if blk:
            gap, cover, fill = blk
            issue()
            if mid: mid()
            for i in range(gap): fill()
            a(f's_mov_b32 s23, {SPIN}')
            issue()
            for i in range(cover): fill()
            a(f's_branch L_pw_{tag}\n{lab}:')
            a(f's_sub_u32 s23, s23, 1\ns_cbranch_scc1 L_pto_{tag}')
            issue()
            a(f'L_pw_{tag}:\ns_waitcnt vmcnt(2)')
            check(); shadow()
            a(f's_cbranch_vccnz {lab}\n{ok}:')
            self.late.append(f'L_pto_{tag}:\ns_mov_b32 {SPIN}, 0x400\ns_waitcnt vmcnt(0)\n@SH@s_branch {ok}')
            self.late_sh.append(shadow)
            return
        if mid:
            issue(); mid()
            for r in range(nmid):
                check(); shadow()
                a(f's_cbranch_vccz {ok}')
        a(f's_mov_b32 s23, {SPIN}')
        a(f'{lab}:')
        issue()
        for r in range(nchk - 1):
            check(); shadow()
            a(f's_cbranch_vccz {ok}')
        a(f's_sub_u32 s23, s23, 1\ns_cbranch_scc1 L_pto_{tag}')
        check(); shadow()
        a(f's_cbranch_vccnz {lab}\n{ok}:')
        self.late.append(f'L_pto_{tag}:\ns_mov_b32 {SPIN}, 0x400\ns_waitcnt vmcnt(0)\n@SH@s_branch {ok}')
        self.late_sh.append(shadow)

    def poll2(self, tag, dst, soff, chores, t0, t1, t2, fill, check, shadow, retry=None):
        a = self.a
        lab = f'L_poll_{tag}'; ok = f'L_pok_{tag}'
        def issue():
            a(f'buffer_load_dwordx4 {vr(dst,4)}, v{V_L16}, {WS}, {soff} offen {self.pf}')
            a(f'buffer_load_dwordx4 {vr(dst+4,4)}, v{V_L16}, {WS}, {soff} offen offset:1024 {self.pf}')
        def spend(t, flush=False):
            while chores and (flush or chores[0][0] <= t + 4):
                c, f = chores.pop(0); f(); t -= c
            while t >= 12: fill(); t -= 16
        spend(t0); issue()
        spend(t1 - 40); issue()
        spend(t2 - 40, flush=True)
        a(f's_mov_b32 s23, {SPIN}\ns_branch L_pw_{tag}\n{lab}:')
        a(f's_sub_u32 s23, s23, 1\ns_cbranch_scc1 L_pto_{tag}')
        issue()
        if retry: retry()
        a(f'L_pw_{tag}:\ns_waitcnt vmcnt(2)')
        check(); shadow()
        a(f's_cbranch_vccnz {lab}\n{ok}:')
        self.late.append(f'L_pto_{tag}:\ns_mov_b32 {SPIN}, 0x400\ns_waitcnt vmcnt(0)\n@SH@s_branch {ok}')
        self.late_sh.append((lambda: (retry(), shadow())) if retry else shadow)

    def stamp(self, i):
        if self.o.get('stamp') and (self.o.get('smask', 0x3ff) >> i) & 1: self.a.raw(f'    {"s_memrealtime" if self.o.get("rt") else "s_memtime"} s[{82+2*i}:{83+2*i}]')

    def dump_stamps(self, tg):
        a = self.a
        if not self.o.get('stamp'): return
        lab = f'L_nodump_{tg}'
        a(f's_cmp_lg_u32 {S_S}, {self.o.get("dstep", 41)}\ns_cbranch_scc1 {lab}\ns_waitcnt lgkmcnt(0)')
        a(f's_lshl_b32 s21, {S_RANK}, 8\ns_lshl_b32 s22, {S_W}, 6\ns_add_u32 s21, s21, s22\ns_add_u32 s21, s21, {hex(L.DBG)}')
        a(f'v_mov_b32 v{T+10}, 0')
        for i in range(10):
            a(f'v_mov_b32 v{T+11}, s{82+2*i}\nbuffer_store_dword v{T+11}, v{T+10}, {WS}, s21 offen offset:{4*i}')
        a(f's_waitcnt vmcnt(0)\n{lab}:')

    def r_loop(self, tg, cf, wv=0):
        a = self.a; o = self.o
        mf16 = 'v_mfma_f32_16x16x16_bf16'; mf32 = 'v_mfma_f32_16x16x32_bf16'
        cvt = 'v_cvt_pk_bf16_f32'
        QP = 'quad_perm:[2,3,0,1] row_mask:0xf bank_mask:0xf'
        dum = lambda n=1: [a(a.dummy) for _ in range(n)]
        self.late = []; self.late_sh = []; self.fixups = []
        self.pf = 'nt' if (not cf and o.get('pollnt')) else 'sc1'
        a.auto_vm = False
        B0, B1, B2 = WVB, WVB + 8, M
        ACC = {'q': AQ, 'k': AK, 'v': AV}
        def S(m, k, p, buf=None):
            f = (m, k, p)
            self.smf(ACC[m] + 4 * p, M + 4 * k, ar(8 * AGF.index(f), 8) if buf is None else vr(buf, 8))
        def V(k, p, buf=None): S('v', k, p, buf)
        def RD(buf, m, k, p, hh):
            off = self.ldsf_off[(m, k, p)]
            a(f'ds_read_b128 {vr(buf + 4*hh, 4)}, v{V_WV if off < 65536 else V_WV2} offset:{off % 65536 + hh*1024}')
        def RD2(buf, m, k, p): RD(buf, m, k, p, 0); RD(buf, m, k, p, 1)
        def pkadd(d, x, y): a(f'v_add_f32 v{d}, v{x}, v{y}\nv_add_f32 v{d+1}, v{x+1}, v{y+1}')
        def PK(d, x, y): a(f'v_pk_add_f32 {vr(d,2)}, {vr(x,2)}, {vr(y,2)}')
        def add(d, x, y): a(f'v_add_f32 v{d}, v{x}, v{y}')
        def dmf(r): a(f'{mf16} {vr(r,4)}, {vr(SELQ,2)}, {vr(SELQ,2)}, {vr(r,4)}')
        def filt(line):
            st = 'buffer_store' in line and ('s75' in line or 's76' in line) and 'sc1' in line
            ld = 'buffer_load' in line and ('s67' in line or 's68' in line)
            if o.get('nost') and st: return None
            if o.get('nofst') and st and 's76' in line: return None
            if o.get('nold') and ld: return None
            if o.get('nofld') and ld and 's68' in line: return None
            if o.get('ldplain') and ld and 's67' in line: return line.replace(' sc1', '')
            if o.get('ldnt') and ld and 's67' in line: return line.replace(' sc1', ' nt')
            if o.get('stplain') and st: return line.replace(' sc1', '')
            if o.get('novm') and 'vmcnt' in line: return None
            if o.get('nowarm') and 'buffer_load_dword v27' in line: return 's_nop 0'
            if o.get('novmh') and 'buffer_store_dwordx2' in line: return None
            return line
        PA = M + 8; R = T + 8
        spin = f'L_kvspin_{tg}'; back = f'L_kvback_{tg}'
        def preload():
            RD2(M + 24, 'q', 0, 0); RD2(M + 16, 'q', 0, 1); RD2(B0, 'q', 1, 0); RD2(B1, 'q', 1, 1); RD2(T, 'k', 0, 0)
        def slackB():
            a(f'v_cmp_eq_u32 vcc, 0, v{V_FLAG}')
            for r in range(0, 8, 2): a(f'v_mov_b64 {vr(VXC+r,2)}, {vr(VXN+r,2)}')
            a(f's_xor_b32 {S_INP}, {S_INP}, 0x40000')
            a(f's_cbranch_vccnz {spin}\n{back}:')
            a(f"""
            s_cmp_lt_u32 {S_S}, 63
            s_cselect_b32 {S_T0}, {0 if o.get("nopf") else 32*24576}, 0
            s_add_u32 {S_REC}, {S_REC}, {S_T0}
            s_cmp_lt_u32 {S_S}, 62
            s_cselect_b32 {S_T0}, 2048, 0
            s_add_u32 {S_FKV}, {S_FKV}, {S_T0}
            s_cmp_ge_u32 {S_S}, 2
            s_cselect_b32 {S_T1}, {S_FM}, {hex(L.OOB)}
            s_cmp_ge_u32 {S_S}, 1
            s_cselect_b32 {S_T0}, {S_KVM}, {hex(L.OOB)}
            s_add_u32 {S_FM}, {S_FM}, 2048
            s_add_u32 {S_KVM}, {S_KVM}, 131072
            s_lshr_b32 {S_TAG}, {S_S}, 1
            s_and_b32 {S_TAG}, {S_TAG}, 1
            s_sub_u32 {S_NTAG}, {S_TAG}, 1
            s_add_u32 {S_IN1}, {S_IN0}, 32768
            s_and_b32 {S_OTAG}, {S_S}, 1
            s_sub_u32 {S_NOTAG}, {S_OTAG}, 1
            """)
            if o.get('steplog') and wv == 0 and tg != 's':
                a(f's_memrealtime s[82:83]\ns_lshl_b32 s84, {S_S}, 2\ns_lshl_b32 s85, {S_RANK}, 8\ns_add_u32 s84, s84, s85\ns_add_u32 s84, s84, {hex(L.DBG + 131072)}')
                a(f's_waitcnt lgkmcnt(0)\nv_mov_b32 v{V_DUM}, s82\nbuffer_store_dword v{V_DUM}, v{V_ONE}, {WS}, s84 offen')
            if o.get('zB'):
                for r in range(AQ, AQ + 24, 2): a(f'v_mov_b64 {vr(r,2)}, 0')
            if o.get('barB'): dmf(PA); a('s_barrier')
            for i in range(o.get('dB', 8) if wv >= 2 else o.get('dB0', o.get('dB', 8))): dmf(PA + 4 * (i % 2))
        def checkB():
            if not o.get('shortchk'):
                a(f"""
                v_max3_u32 v{R}, v{M}, v{M+1}, v{M+2}
                v_max3_u32 v{R+1}, v{M+3}, v{M+4}, v{M+5}
                v_max3_u32 v{R}, v{R}, v{M+6}, v{M+7}
                v_max_u32 v{R}, v{R}, v{R+1}
                """)
            else:
                a(f'v_max_u32 v{R}, v{M}, v{M+7}')
            a(f'v_cmp_eq_u32 vcc, -1, v{R}')
        def shadowB():
            if o.get('specw', 1): a(f'ds_write_b128 v{V_X0}, {vr(M,4)}')
            else: dmf(PA); a('s_nop 2')
        preload()
        for r in range(AQ, AQ + 24, 2): a(f'v_mov_b64 {vr(r,2)}, 0')
        a(f's_xor_b32 {S_INP}, {S_INP}, 0x40000')
        a.wait(lgkm=0)
        a(f'L_Rloop_{tg}:')
        a.forget()
        a.hot = True
        a.filt = filt
        sa = lambda txt: [(4, lambda l=l: a(l)) for l in txt.strip().split('\n')]
        va = lambda lines: [(8, lambda l=l: a(l)) for l in lines]
        if True:
            chB = [(44, lambda: a(f'v_cmp_eq_u32 vcc, 0, v{V_FLAG}\ns_cbranch_vccnz {spin}\n{back}:'))]
            chB += va([f'v_mov_b64 {vr(VXC+r,2)}, {vr(VXN+r,2)}' for r in range(0, 8, 2)])
            chB += sa(f"""
            s_xor_b32 {S_INP}, {S_INP}, 0x40000
            s_cmp_lt_u32 {S_S}, 63
            s_cselect_b32 {S_T0}, {0 if o.get("nopf") else 32*24576}, 0
            s_add_u32 {S_REC}, {S_REC}, {S_T0}
            s_cmp_lt_u32 {S_S}, 62
            s_cselect_b32 {S_T0}, 2048, 0
            s_add_u32 {S_FKV}, {S_FKV}, {S_T0}
            s_cmp_ge_u32 {S_S}, 2
            s_cselect_b32 {S_T1}, {S_FM}, {hex(L.OOB)}
            s_cmp_ge_u32 {S_S}, 1
            s_cselect_b32 {S_T0}, {S_KVM}, {hex(L.OOB)}
            s_add_u32 {S_FM}, {S_FM}, 2048
            s_add_u32 {S_KVM}, {S_KVM}, 131072
            s_lshr_b32 {S_TAG}, {S_S}, 1
            s_and_b32 {S_TAG}, {S_TAG}, 1
            s_sub_u32 {S_NTAG}, {S_TAG}, 1
            s_add_u32 {S_IN1}, {S_IN0}, 32768
            s_and_b32 {S_OTAG}, {S_S}, 1
            s_sub_u32 {S_NOTAG}, {S_OTAG}, 1
            """)
            if o.get('steplog') and wv == 0 and tg != 's':
                chB.append((60, lambda: (a(f's_memrealtime s[82:83]\ns_lshl_b32 s84, {S_S}, 2\ns_lshl_b32 s85, {S_RANK}, 8\ns_add_u32 s84, s84, s85\ns_add_u32 s84, s84, {hex(L.DBG + 131072)}'),
                    a(f's_waitcnt lgkmcnt(0)\nv_writelane_b32 v{V_DUM}, s82, 0\nglobal_store_dword v{V_ONE}, v{V_DUM}, s[4:5]' if False else f's_waitcnt lgkmcnt(0)'))))
            self.poll2('B' + tg, M, S_MEMP, chB, o.get('tB0', 200), o.get('tB1', 180), o.get('tB2', 100), lambda: dmf(PA), checkB, shadowB)
        if o.get('rt'): a('s_mov_b32 s84, s82')
        self.stamp(0)
        if o.get('rt'): self.dump_stamps(tg)
        wp = o.get('wpat', 5)
        ws = {0: (0, 1), 1: (1 + wv, 5 + wv), 2: (1 + 2 * (wv % 2), 2 + 2 * (wv % 2)), 3: (1 + wv % 2, 3 + wv % 2), 4: (1 + wv // 2, 3 + wv // 2),
              5: (1, 2), 6: (wv, 4 + wv), 7: (wv % 2, 2 + wv % 2), 8: (wv // 2, 2 + wv // 2)}[wp]
        wslot = [0]
        def MW():
            for i in range(2):
                if ws[i] == wslot[0] and not (i == 0 and o.get('specw', 1)): a(f'ds_write_b128 v{V_X0}, {vr(M+4*i,4)} offset:{1024*i}')
            wslot[0] += 1
        MW()
        S('q', 0, 0, M + 24); MW()
        S('q', 0, 1, M + 16); MW()
        S('q', 1, 0, B0); MW()
        S('q', 1, 1, B1); MW()
        S('k', 0, 0, T); MW()
        S('k', 0, 1); MW()
        S('k', 1, 0); MW()
        S('k', 1, 1); MW()
        a.wait_lds_writes()
        a('s_barrier')
        def MR(k): a(f'ds_read_b128 {vr(M+4*k,4)}, v{V_X0 + k//2} offset:{1024*(k%2)}')
        MR(2); MR(3)
        V(0, 0); MR(4)
        V(0, 1); MR(5)
        V(1, 0); MR(6)
        V(1, 1); MR(7)
        VXL = lambda i: a(f'buffer_load_dwordx4 {vr(VXN+4*i,4)}, v{V_L16}, {WS}, {S_REC} offen offset:{2048+1024*i} sc1')
        self.stamp(1)
        vm_ops = [
            lambda: a(f'buffer_store_dwordx4 {vr(KMH,4)}, v{V_L16}, {WS}, {S_T0} offen sc1'),
            lambda: VXL(0),
            lambda: VXL(1),
            lambda: (a(f'buffer_store_dword v{V_F}, v{V_ONE}, {WS}, {S_T1} offen sc1'),
                     a(f'buffer_load_dword v{V_FLAG}, v{V_Z}, {WS}, {S_FKV} offen sc1')),
        ]
        slot = [0]
        first = o.get('vm0', 5)
        def X():
            i = slot[0] - first - wv
            if i == 0: a('s_waitcnt vmcnt(0)')
            if i >= 0 and i % 4 == 0 and i // 4 < len(vm_ops): vm_ops[i // 4]()
            slot[0] += 1
        S('q', 2, 0); RD(B0, 'k', 2, 1, 0); X()
        S('q', 3, 0); RD(B0, 'k', 2, 1, 1); X()
        S('q', 4, 0); RD(B1, 'k', 3, 1, 0); X()
        S('q', 5, 0); RD(B1, 'k', 3, 1, 1); X()
        S('q', 6, 0); RD(T, 'k', 4, 1, 0); X()
        S('q', 7, 0); RD(T, 'k', 4, 1, 1); X()
        S('q', 2, 1); X()
        S('q', 3, 1); X()
        S('q', 4, 1); X()
        assert slot[0] > first + wv
        S('q', 5, 1); RD(B2, 'k', 5, 1, 0); X(); add(AQ, AQ, AQ + 2)
        S('q', 6, 1); RD(B2, 'k', 5, 1, 1); X(); add(AQ + 1, AQ + 1, AQ + 3)
        S('q', 7, 1); X(); a(f'{cvt} v{AQ+2}, v{AQ}, v{AQ+1}')
        S('k', 2, 0); X()
        S('k', 2, 1, B0); RD(B0, 'k', 6, 1, 0); X()
        S('k', 3, 0); RD(B0, 'k', 6, 1, 1); X()
        S('k', 3, 1, B1); RD(B1, 'k', 7, 0, 0); X(); add(AQ + 4, AQ + 4, AQ + 6)
        S('k', 4, 0); RD(B1, 'k', 7, 0, 1); X(); add(AQ + 5, AQ + 5, AQ + 7)
        S('k', 4, 1, T); RD(T, 'k', 7, 1, 0); X(); a(f'{cvt} v{AQ+3}, v{AQ+4}, v{AQ+5}')
        S('k', 5, 0); RD(T, 'k', 7, 1, 1); X()
        a(f'{mf16} {vr(AQ+4,4)}, {vr(AQ+2,2)}, {vr(SELQ,2)}, 0'); X()
        a(f'{mf16} {vr(T+8,4)}, {vr(AQ+2,2)}, {vr(SELQ+2,2)}, 0'); X()
        S('k', 5, 1, B2); RD(B2, 'v', 6, 0, 0); X()
        S('k', 6, 0); RD(B2, 'v', 6, 0, 1)
        S('k', 7, 0, B1); RD(B1, 'v', 7, 0, 0); a(f'{cvt} v{AQ}, v{AQ+4}, v{AQ+5}')
        S('k', 6, 1, B0); RD(B1, 'v', 7, 0, 1); a(f'{cvt} v{AQ+1}, v{AQ+6}, v{AQ+7}\n{cvt} v{AQ+2}, v{T+8}, v{T+9}')
        S('k', 7, 1, T); RD(B0, 'v', 6, 1, 0); a(f'{cvt} v{AQ+3}, v{T+10}, v{T+11}')
        assert slot[0] > first + wv + 4 * (len(vm_ops) - 1)
        self.stamp(2)
        RD(B0, 'v', 6, 1, 1)
        add(AK, AK, AK + 2)
        a(f'{mf32} {vr(AQ+4,4)}, {vr(KX,4)}, {vr(AQ,4)}, 0')
        add(AK + 1, AK + 1, AK + 3)
        a(f'{cvt} v{AK+2}, v{AK}, v{AK+1}')
        a(f'{mf32} {vr(T+8,4)}, {vr(KX+4,4)}, {vr(AQ,4)}, 0')
        pkadd(AK + 4, AK + 4, AK + 6)
        a(f'{cvt} v{AK+3}, v{AK+4}, v{AK+5}')
        a(f'{mf16} {vr(AK+4,4)}, {vr(AK+2,2)}, {vr(SELK,2)}, 0')
        a(f'{mf16} {vr(T,4)}, {vr(AK+2,2)}, {vr(SELK+2,2)}, 0')
        kslot = [0]
        def KL():
            i = kslot[0] - wv
            if i in (0, 4): a(f'buffer_load_dwordx4 {vr(KX+i,4)}, v{V_L16}, {WS}, {S_REC} offen offset:{256*i} sc1')
            kslot[0] += 1
        for i in range(4): a(f'v_cndmask_b32 v{AK+i}, v{T+8+i}, v{AQ+4+i}, {S_LO}')
        a(f'{cvt} v{KMH}, v{AK+4}, v{AK+5}\n{cvt} v{KMH+1}, v{AK+6}, v{AK+7}')
        a(f'{cvt} v{KMH+2}, v{T}, v{T+1}\n{cvt} v{KMH+3}, v{T+2}, v{T+3}')
        a(f'{mf32} {vr(T+4,4)}, {vr(KMH,4)}, {vr(AQ,4)}, 0')
        V(2, 0)
        a(f'ds_write_b128 v{V_X0}, {vr(AK,4)} offset:8192')
        a(f'v_cndmask_b32 v{T+4}, v{T+5}, v{T+4}, {S_LO}')
        V(2, 1)
        a(f'ds_write_b32 v{V_SMW}, v{T+4}')
        self.stamp(3)
        B3 = M + 8
        ONES, HALF = B2, B2 + 4
        V(3, 0); KL()
        V(3, 1); RD(B3, 'v', 7, 1, 0); KL()
        V(6, 0, B2); RD(B3, 'v', 7, 1, 1); KL()
        V(6, 1, B0); KL()
        if o.get('vb', 4) > 4: V(7, 0, B1)
        a.wait_lds_writes()
        a('s_barrier')
        SX = [T + 4, T + 8, AQ + 4]
        SR = lambda x: a(f'ds_read_b128 {vr(SX[x-1],4)}, v{V_X0+x} offset:8192')
        SR(1)
        if o.get('vb', 4) <= 4: V(7, 0, B1)
        SR(2); SR(3)
        V(4, 0); a(f'ds_read_b128 {vr(T,4)}, v{V_F} offset:1024'); a(f'v_mov_b64 {vr(ONES,2)}, s[26:27]')
        V(4, 1); KL(); a(f'v_mov_b64 {vr(ONES+2,2)}, s[26:27]')
        V(5, 0); KL(); a(f'v_mov_b64 {vr(HALF,2)}, s[8:9]')
        V(7, 1, B3); KL()
        V(5, 1); KL()
        WOS = lambda i, hh: a(f'ds_read_b128 {vr(WVB+8*i+4*hh,4)}, v{V_X0} offset:{16384+8192*i+1024*hh}')
        zs = list(range(M + 8, M + 32, 2)) + list(range(M, M + 8, 2))
        def Z(n):
            for _ in range(n): a(f'v_mov_b64 {vr(zs.pop(0),2)}, 0')
        self.stamp(4)
        pkadd(AK, AK, SX[0]); pkadd(AK + 2, AK + 2, SX[0] + 2)
        PK(SX[1], SX[1], SX[2]); PK(SX[1] + 2, SX[1] + 2, SX[2] + 2)
        PK(T, T, T + 2)
        PK(AK, AK, SX[1]); PK(AK + 2, AK + 2, SX[1] + 2)
        add(T, T, T + 1)
        mx, t2 = T + 2, T + 3
        a(f'v_max3_f32 v{mx}, v{AK}, v{AK+1}, v{AK+2}\nv_max3_f32 v{mx}, v{mx}, v{AK+3}, v{T}')
        PK(AV, AV, AV + 2); PK(AV + 4, AV + 4, AV + 6)
        a(f'v_max_f32_dpp v{t2}, v{mx}, v{mx} {QP}\nv_max_f32_dpp v{mx}, v{mx}, v{mx} {QP}')
        a(f'{cvt} v{AV+2}, v{AV}, v{AV+1}\n{cvt} v{AV+3}, v{AV+4}, v{AV+5}')
        a(f'v_permlane16_swap_b32 v{mx}, v{t2}\nv_max_f32 v{T+1}, v{mx}, v{t2}\nv_max_f32 v{mx}, v{mx}, v{t2}')
        a(f'{mf16} {vr(AV+4,4)}, {vr(SELV,2)}, {vr(AV+2,2)}, 0')
        WOS(0, 0)
        a(f'v_permlane32_swap_b32 v{mx}, v{T+1}\nv_max_f32 v{mx}, v{mx}, v{T+1}\nv_mul_f32 v{mx}, {S_SC}, v{mx}')
        E = [AK, AK + 1, AK + 2, AK + 3, T]
        for e in E: a(f'v_fma_f32 v{e}, v{e}, {S_SC}, -v{mx}')
        for e in E: a(f'v_exp_f32 v{e}, v{e}')
        BX, PM = AQ, T + 6
        a(f'{cvt} v{T+8}, v{AK}, v{AK+1}\n{cvt} v{T+9}, v{AK+2}, v{AK+3}')
        a(f"""
        v_cndmask_b32 v{BX}, 0, v{T+8}, {S_LO}
        v_cndmask_b32 v{BX+1}, 0, v{T+9}, {S_LO}
        v_cndmask_b32 v{BX+2}, v{T+8}, 0, {S_LO}
        v_cndmask_b32 v{BX+3}, v{T+9}, 0, {S_LO}
        v_mov_b32_dpp v{T+1}, v{T} {QP}
        {cvt} v{VMH}, v{AV+4}, v{AV+5}
        """)
        D, D2, DL = AQ + 4, AK + 4, T + 8
        a(f'{mf32} {vr(DL,4)}, {vr(ONES,4)}, {vr(BX,4)}, 0')
        WOS(0, 1)
        a(f'{cvt} v{T+4}, v{T}, v{T+1}\n{cvt} v{T+5}, v{T+1}, v{T}')
        a(f'{mf32} {vr(D2,4)}, {vr(VXC+4,4)}, {vr(BX,4)}, 0')
        WOS(1, 0)
        a(f'v_cndmask_b32 v{PM}, 0, v{T+4}, {S_LO}\nv_cndmask_b32 v{PM+1}, v{T+5}, 0, {S_LO}')
        a(f'{mf32} {vr(D,4)}, {vr(VXC,4)}, {vr(BX,4)}, 0')
        WOS(1, 1)
        a(f'{cvt} v{VMH+1}, v{AV+6}, v{AV+7}')
        a(f'{mf16} {vr(DL,4)}, {vr(HALF,2)}, {vr(PM,2)}, {vr(DL,4)}')
        Z(1)
        a(f'{mf16} {vr(D,4)}, {vr(VMH,2)}, {vr(PM,2)}, {vr(D,4)}')
        Z(o.get('zpv', 5))
        l = DL + 1
        a(f'v_add_f32_dpp v{l}, v{DL}, v{DL} {QP}\nv_rcp_f32 v{l}, v{l}')
        for i in range(4): a(f'v_add_f32_dpp v{D+i}, v{D2+i}, v{D+i} {QP}')
        for i in (0, 2): a(f'v_pk_mul_f32 {vr(D+i,2)}, {vr(D+i,2)}, {vr(l-1,2)} op_sel:[0,1] op_sel_hi:[1,1]')
        tagx = not o.get('bar3')
        a(f'{cvt} v{T}, v{D}, v{D+1}\n{cvt} v{T+1}, v{D+2}, v{D+3}')
        if tagx: a(f'v_and_or_b32 v{T}, v{T}, -2, {S_OTAG}')
        self.stamp(5)
        a(f'ds_write_b64 v{V_OW}, {vr(T,2)}')
        a(f's_cmp_eq_u32 {S_S}, 63\ns_cbranch_scc1 L_Rtail_{tg}')
        OA = AK
        def oread(): a(f'ds_read_b128 {vr(OA,4)}, v{V_F} offset:3072\nds_read_b128 {vr(OA+4,4)}, v{V_F} offset:5120')
        def ocheck():
            a(f'v_bitop3_b32 v{T+2}, v{OA}, v{OA+2}, {S_NOTAG} bitop3:0x42')
            a(f'v_bitop3_b32 v{T+3}, v{OA+4}, v{OA+6}, {S_NOTAG} bitop3:0x42')
            a(f'v_bitop3_b32 v{T+2}, v{T+2}, v{T+3}, 1 bitop3:0x80')
            a(f'v_cmp_eq_u32 vcc, 0, v{T+2}')
        if tagx:
            n1 = min(o.get('z3', 7), len(zs))
            Z(n1)
            for _ in range(o.get('z3', 7) - n1): a('s_nop 1')
            oread(); Z(len(zs))
        else:
            Z(min(6, len(zs)))
            a.wait_lds_writes()
            a('s_barrier')
            oread()
            Z(len(zs))
        self.stamp(6)
        def wo(t, kb):
            fr = WVB + 8 * WO_SPILL.index((t, kb)) if (t, kb) in WO_SPILL else wo_frag(t, kb)
            self.smf(M + 4 * t, OA + 4 * kb, vr(fr, 8))
        def fa(t, i): add(M + 4 * t + i, M + 4 * t + i, M + 4 * t + 2 + i)
        def fc(t): a(f'{cvt} v{AQ+t}, v{M+4*t}, v{M+4*t+1}')
        def tagit(r): a(f'v_and_or_b32 v{r}, v{r}, -2, {S_TAG}')
        a(f'L_wo_{tg}:')
        if tagx:
            wo(0, 0); a(f'v_bitop3_b32 v{T+2}, v{OA}, v{OA+2}, {S_NOTAG} bitop3:0x42')
            wo(1, 0); a(f'v_bitop3_b32 v{T+3}, v{OA+4}, v{OA+6}, {S_NOTAG} bitop3:0x42')
            wo(0, 1); a(f'v_bitop3_b32 v{T+2}, v{T+2}, v{T+3}, 1 bitop3:0x80')
            wo(1, 1); a(f'v_cmp_eq_u32 vcc, 0, v{T+2}')
            wo(2, 0); wo(2, 1); wo(3, 0)
            a(f's_cbranch_vccnz L_ofix_{tg}')
            wo(3, 1)
            def fix():
                a(f'L_ofix_{tg}:\ns_mov_b32 s23, {SPIN}\nL_ofix2_{tg}:')
                a.forget(vm=False)
                oread(); a.wait(lgkm=0); ocheck()
                a(f's_cbranch_vccz L_ofix3_{tg}\ns_sub_u32 s23, s23, 1\ns_cbranch_scc0 L_ofix2_{tg}\ns_xor_b32 {S_NOTAG}, {S_NOTAG}, v_never' if False else
                  f's_cbranch_vccz L_ofix3_{tg}\ns_sub_u32 s23, s23, 1\ns_cbranch_scc0 L_ofix2_{tg}\ns_endpgm\nL_ofix3_{tg}:')
                for r in range(M, M + 16, 2): a(f'v_mov_b64 {vr(r,2)}, 0')
                a(f's_branch L_wo_{tg}')
            self.fixups.append(fix)
        else:
            wo(0, 0); wo(1, 0); wo(0, 1); wo(1, 1); wo(2, 0); wo(2, 1); wo(3, 0); wo(3, 1)
        wo(4, 0); fa(0, 0); fa(0, 1); fa(1, 0)
        wo(4, 1); fa(1, 1); fc(0); fc(1)
        wo(5, 0); fa(2, 0); fa(2, 1); tagit(AQ)
        wo(5, 1); fa(3, 0); fa(3, 1); fc(2)
        wo(6, 0); fc(3)
        wo(6, 1)
        a(f'buffer_store_dwordx4 {vr(AQ,4)}, v{V_IST}, {WS}, {S_IN0} offen {cf}')
        wo(7, 0); fa(4, 0)
        wo(7, 1); fa(4, 1); fc(4); fa(5, 0); fa(5, 1); tagit(AQ + 4); fc(5)
        PK(M + 24, M + 24, M + 26); fc(6); PK(M + 28, M + 28, M + 30); fc(7)
        a(f'buffer_store_dwordx4 {vr(AQ+4,4)}, v{V_IST}, {WS}, {S_IN1} offen {cf}')
        self.stamp(7)
        def pack_kvm():
            a(f's_mov_b64 vcc, {S_LO}')
            for i in range(4):
                qp = '[0,0,0,2]' if i < 2 else '[0,0,1,3]'
                a(f'v_cndmask_b32_dpp v{KMH+i}, v{VMH+i%2}, v{KMH+i}, vcc quad_perm:{qp} row_mask:0xf bank_mask:0xf')
        self.pack_kvm = pack_kvm
        def preA():
            a(f"""
            v_mov_b32 v{PA}, {S_NTAG}
            v_mov_b32 v{PA+4}, {S_NTAG}
            """)
            for i in range(o.get('dA', 4) if wv >= 2 else o.get('dA0', o.get('dA', 4))): dmf(R)
        def slackA():
            preload()
            pack_kvm()
            a(f"""
            s_add_u32 {S_S}, {S_S}, 1
            s_xor_b32 {S_IN0}, {S_IN0}, 0x40000
            s_and_b32 {S_T0}, {S_S}, 3
            s_lshl_b32 {S_T0}, {S_T0}, 13
            v_mov_b64 {vr(M,2)}, -1
            s_andn2_b32 {S_PUBB}, {S_PUBB}, 0x6000
            s_andn2_b32 {S_MEMP}, {S_MEMP}, 0x6000
            v_mov_b64 {vr(M+2,2)}, -1
            s_or_b32 {S_MEMP}, {S_MEMP}, {S_T0}
            s_xor_b32 {S_RST}, {S_T0}, 0x4000
            v_mov_b64 {vr(M+4,2)}, -1
            s_or_b32 {S_RST}, {S_RST}, {S_PUBB}
            s_or_b32 {S_PUBB}, {S_PUBB}, {S_T0}
            v_mov_b64 {vr(M+6,2)}, -1
            """)
            if not o.get('zB'):
                for r in range(AQ, AQ + 24, 2): a(f'v_mov_b64 {vr(r,2)}, 0')
            a.wait(lgkm=0)
        def checkA():
            a(f"""
            v_bitop3_b32 v{VXC}, v{PA}, v{PA+4}, {S_NTAG} bitop3:0x42
            v_and_b32 v{VXC}, 1, v{VXC}
            v_cmp_eq_u32 vcc, 0, v{VXC}
            """)
        def shadowA():
            a(f'v_smfmac_f32_16x16x64_bf16 {vr(R,4)}, {vr(SELR,4)}, {vr(PA,8)}, v{V_IDX} abid:1')
        if True:
            pl = [(M + 24, 'q', 0, 0), (M + 16, 'q', 0, 1), (B0, 'q', 1, 0), (B1, 'q', 1, 1), (T, 'k', 0, 0)]
            chA = [(40, pack_kvm)]
            chA += sa(f"""
            s_add_u32 {S_S}, {S_S}, 1
            s_xor_b32 {S_IN0}, {S_IN0}, 0x40000
            s_and_b32 {S_T0}, {S_S}, 3
            s_lshl_b32 {S_T0}, {S_T0}, 13
            s_andn2_b32 {S_PUBB}, {S_PUBB}, 0x6000
            s_andn2_b32 {S_MEMP}, {S_MEMP}, 0x6000
            s_or_b32 {S_MEMP}, {S_MEMP}, {S_T0}
            s_xor_b32 {S_RST}, {S_T0}, 0x4000
            s_or_b32 {S_RST}, {S_RST}, {S_PUBB}
            s_or_b32 {S_PUBB}, {S_PUBB}, {S_T0}
            """)
            zz = [f'v_mov_b64 {vr(r,2)}, 0' for r in range(AQ, AQ + 24, 2)] + [f'v_mov_b32 v{M}, -1']
            for k in range(10):
                chA.append((16, lambda k=k: (RD(*pl[k // 2], k % 2), a(zz[k]))))
            chA += va(zz[10:])
            chA.append((4, lambda: a.wait(lgkm=0)))
            zr = lambda: a(f'v_mov_b64 {vr(R,2)}, 0\nv_mov_b64 {vr(R+2,2)}, 0')
            chA.append((16, zr))
            self.poll2('A' + tg, PA, S_INP, chA, o.get('tA0', 240), o.get('tA1', 180), o.get('tA2', 100), lambda: dmf(VXC + 4), checkA, shadowA, retry=zr)
        self.stamp(8)
        hp = ''
        a(f"""
        {'s_nop 1' + chr(10) + a.dummy + chr(10) + 's_nop 0' if hp else ''}
        v_add_f32_dpp v{R}, v{R}, v{R} row_ror:8 row_mask:0xf bank_mask:0x3 {hp}
        v_add_f32_dpp v{R+1}, v{R+1}, v{R+1} row_ror:8 row_mask:0xf bank_mask:0x3 {hp}
        v_add_f32_dpp v{R}, v{R+2}, v{R+2} row_ror:8 row_mask:0xf bank_mask:0xc {hp}
        v_add_f32_dpp v{R+1}, v{R+3}, v{R+3} row_ror:8 row_mask:0xf bank_mask:0xc {hp}
        v_add_f32_dpp v{R}, v{R}, v{R} row_ror:12 row_mask:0xf bank_mask:0xf
        v_add_f32_dpp v{R+1}, v{R+1}, v{R+1} row_ror:12 row_mask:0xf bank_mask:0xf
        {cvt} v{R+2}, v{R}, v{R+1}
        buffer_store_dword v{R+2}, v{V_PUB}, {WS}, {S_PUBB} offen {cf}
        """)
        self.stamp(9)
        a(f'buffer_store_dword v{M}, v{V_PUB}, {WS}, {S_RST} offen {cf}')
        if o.get('span2') and wv == 0:
            lab = a.newlabel('n8')
            a(f's_cmp_lg_u32 {S_S}, 8\ns_cbranch_scc1 {lab}')
            self.note(5, T + 10)
            a(f'{lab}:')
        if not o.get('rt'): self.dump_stamps(tg)
        a(f's_branch L_Rloop_{tg}')
        a.hot = False
        a(f'{spin}:')
        self.spin_flag(V_FLAG, f'v{V_Z}', S_FKV)
        a(f's_branch {back}')
        for txt, sh in zip(self.late, self.late_sh):
            pre, post = txt.split('@SH@')
            a(pre); a('s_nop 7'); sh(); a('s_nop 7'); a(post)
        for f in self.fixups: f()
        a(f'L_Rtail_{tg}:')
        a.forget()
        self.pack_kvm()
        a(f'''
        buffer_store_dwordx4 {vr(KMH,4)}, v{V_L16}, {WS}, {S_KVM} offen sc1
        s_waitcnt vmcnt(0) lgkmcnt(0)
        buffer_store_dword v{V_F}, v{V_ONE}, {WS}, {S_FM} offen sc1
        buffer_store_dword v{V_F}, v{V_ONE}, {WS}, {S_FM} offen offset:2048 sc1
        ''')
        self.tstamp(6, T + 4)
        self.note(6, T + 4)
        if o.get('stamp'):
            set_srd(a, 12, P_DBG, 256)
            a(f'''
            s_memtime s[82:83]
            s_memrealtime s[84:85]
            s_waitcnt lgkmcnt(0)
            s_sub_u32 s82, s82, s80
            s_sub_u32 s84, s84, s30
            s_sub_u32 s28, s28, s30
            v_mov_b32 v{T}, s82
            v_mov_b32 v{T+1}, {S_FAST}
            v_mov_b32 v{T+2}, s28
            v_mov_b32 v{T+3}, s84
            v_mov_b32 v{T+4}, 8
            buffer_store_dwordx4 {vr(T,4)}, v{T+4}, {ST}, 0 offen
            ''')
        a('s_endpgm')
        a.auto_vm = True
```

```python
import layout as L
from gen_common import *
import struct
def f2u(x): return struct.unpack('<I', struct.pack('<f', x))[0]
mf16 = 'v_mfma_f32_16x16x16_bf16'; mf32 = 'v_mfma_f32_16x16x32_bf16'; cvt = 'v_cvt_pk_bf16_f32'

TB = 0
NAMES = list(L.w_table().keys())
def tv(n): return TB + NAMES.index(n)
V_TID = 24
XF = 48
ACC = 64
S_ISB, S_SEG, S_END, S_STEP, S_BASE, S_STR = 's61', 's62', 's63', 's64', 's65', 's66'
S_XB, S_PF, S_PF2, S_A, S_B, S_HEAD = 's67', 's68', 's69', 's70', 's71', 's72'
S_FIRST = 's73'
S_TFAST = 's89'
SX = 's[24:27]'

def wfrag(m, ks, p):
    c = 'qkv'.index(m) * 8 + ks // 2
    r = c * 16 + p * 8 + (ks % 2) * 4
    return ar(r, 4) if r < 256 else vr(128 + r - 256, 4)

class Workers:
    def tables(self):
        return L.table_text('T_R', L.r_table()) + L.table_text('T_W', L.w_table())

    def xlane(self, op, x, t):
        a = self.a
        a(f'v_mov_b32 v{t}, v{x}\nv_permlane16_swap_b32 v{x}, v{t}\n{op} v{x}, v{x}, v{t}')
        a(f'v_mov_b32 v{t}, v{x}\nv_permlane32_swap_b32 v{x}, v{t}\n{op} v{x}, v{x}, v{t}')

    def x_dma(self, piece=None):
        a = self.a
        if piece is not None and piece >= 0:
            a(f'buffer_load_dwordx4 v{tv("xg")}, {SX}, s21 offen lds')
            a('s_add_u32 m0, m0, 1024')
            a(f's_add_u32 s21, s21, {16384 if piece % 2 == 0 else hex((64 - 16384) & 0xFFFFFFFF)}')
            return
        a(f's_lshl_b32 s21, {S_A}, 15\ns_lshl_b32 s22, {S_W}, 8\ns_add_u32 s21, s21, s22')
        a(f's_lshl_b32 s22, {S_W}, 13\ns_add_u32 m0, s22, {S_XB}')
        if piece is not None: return
        for k in range(4):
            for tt in range(2):
                a(f'buffer_load_dwordx4 v{tv("xg")}, {SX}, s21 offen lds')
                a('s_add_u32 m0, m0, 1024')
                a(f's_add_u32 s21, s21, {16384 if tt == 0 else hex((64 - 16384) & 0xFFFFFFFF)}')

    def worker_role(self):
        a = self.a; o = self.o
        a('L_worker:')
        a.vq = list(self.vq_role)
        self.mark(0)
        if o.get('no_workers'):
            self.gate_and_store(); a.wait(vm=0); self.signal_init(); a('s_endpgm'); return
        a(f'''
        s_sub_u32 s21, {S_TEAM}, 1
        s_lshl_b32 s21, s21, 5
        s_add_u32 s21, s21, {S_RANK}
        s_cmp_ge_u32 s21, 192
        s_cselect_b32 {S_ISB}, 1, 0
        s_cbranch_scc1 L_w_B
        s_mul_i32 {S_HEAD}, s21, 43691
        s_lshr_b32 {S_HEAD}, {S_HEAD}, 18
        s_mul_i32 s22, {S_HEAD}, 6
        s_sub_u32 {S_SEG}, s21, s22
        s_mov_b32 {S_END}, 64
        s_mov_b32 {S_STEP}, 6
        s_mov_b32 {S_FIRST}, 0
        s_movk_i32 {S_STR}, 8192
        s_mov_b32 s75, {4<<20}
        s_branch L_w_dec
        L_w_B:
        s_sub_u32 s21, s21, 192
        s_lshr_b32 {S_HEAD}, s21, 3
        s_and_b32 s21, s21, 7
        s_lshl_b32 {S_FIRST}, s21, 3
        s_add_u32 {S_END}, {S_FIRST}, 8
        s_max_u32 {S_SEG}, {S_FIRST}, 1
        s_sub_u32 {S_SEG}, {S_SEG}, 1
        s_mov_b32 {S_STEP}, 1
        s_movk_i32 {S_STR}, 3072
        s_mov_b32 s75, {512*3072}
        L_w_dec:
        v_and_b32 v1, 63, v0
        v_lshrrev_b32 v2, 4, v1
        v_and_b32 v3, 15, v1
        v_lshlrev_b32 v3, 4, v3
        s_lshl_b32 s79, {S_STR}, 4
        v_mul_lo_u32 v2, v2, s79
        v_add_u32 v28, v2, v3
        s_mul_i32 s78, {S_W}, {L.BLK}
        s_lshl_b32 s77, {S_HEAD}, 8
        s_lshl_b32 s79, {S_STR}, 6
        ''')
        nwarm = 0
        if o.get('mall'):
            a(f's_sub_u32 s21, {S_TEAM}, 1\ns_lshl_b32 s21, s21, 5\ns_add_u32 s21, s21, {S_RANK}\ns_lshl_b32 s21, s21, 2\ns_add_u32 s21, s21, {S_W}')
            a('v_lshlrev_b32 v29, 7, v1\ns_mov_b32 s10, 0x400000\ns_mov_b32 s11, 0x20000')
            for i in range(2):
                a(f'''
                s_add_u32 s22, s21, {896 * i}
                s_cmp_ge_u32 s22, 512
                s_cselect_b32 s8, s{P_WV}, s{P_WK}
                s_cselect_b32 s9, s{P_WV+1}, s{P_WK+1}
                s_and_b32 s23, s22, 511
                s_lshl_b32 s23, s23, 13
                s_cmp_ge_u32 s22, 1024
                s_cselect_b32 s23, {hex(L.OOB)}, s23
                buffer_load_dword v{30+i%2}, v29, {SA}, s23 offen
                ''')
        groups = [(m, b) for m in 'kvq' for b in range(2)]
        def issue(gi):
            m, b = groups[gi]
            if b == 0:
                ptr = {'q': P_WQ, 'k': P_WK, 'v': P_WV}[m]
                a(f"""
                s_cmp_eq_u32 {S_ISB}, 1
                s_cselect_b32 s8, s{P_WQKV}, s{ptr}
                s_cselect_b32 s9, s{P_WQKV+1}, s{ptr+1}
                s_mov_b32 s10, s75
                s_mov_b32 s11, 0x20000
                s_cselect_b32 s76, {'qkv'.index(m) * 1024}, 0
                s_add_u32 s76, s76, s77
                """)
            a(f's_add_u32 m0, s78, {(gi % 2) * L.GRP}')
            a(f's_add_u32 s21, {S_W}, {4 * b}\ns_mul_i32 s21, s21, s79\ns_add_u32 s21, s21, s76')
            self.dma_block('v28', 's21', S_STR)
        issue(0)
        self.load_table('T_W', 96, 24, 7)
        issue(1)
        self.mark(1)
        self.gate_and_store()
        a(f'v_mov_b32 v{V_TID}, v0')
        for i in range(24): a(f'v_mov_b32 v{TB+i}, v{96+i}')
        a(f'v_add_u32 v29, {L.GRP}, v{tv("trp")}')
        set_srd(a, 24, P_X, 2048 * 1024)
        a(f's_mov_b32 {S_XB}, 0\ns_mov_b32 {S_A}, {S_SEG}')
        a.auto_vm = False
        def consume(gi):
            m, b = groups[gi]
            a('s_barrier')
            for x in range(4):
                for p in range(2):
                    for h in range(2):
                        f = wfrag(m, 2 * (4 * b + x) + h, p)
                        kind, base = f[0], int(f[2:f.index(':')])
                        for r in range(2):
                            a(f'ds_read_b64_tr_b16 {kind}[{base+2*r}:{base+2*r+1}], v{tv("trp") if gi % 2 == 0 else 29} offset:{x * L.BLK + 512*h + 4224*r + 32*p}')
            a.wait(lgkm=0)
            a('s_barrier')
        VX = 25
        KP, VP = 112, 116
        acc = lambda m, p, tt: ACC + 16 * 'qkv'.index(m) + 8 * p + 4 * tt
        def xr(ks):
            for tt in range(2):
                a(f'ds_read_b128 {vr(XF + 8*(ks%2) + 4*tt, 4)}, v{VX} offset:{(ks*2+tt)*1024}')
        def loop_head(lab, mats, nst):
            a(f'{lab}:')
            pm = o.get('pmark') and lab == 'L_P_kv'
            if pm: a.raw('    s_memtime s[82:83]')
            a(f's_waitcnt vmcnt({nst + 1})')
            a('s_barrier')
            if pm: a.raw('    s_memtime s[84:85]')
            a(f's_add_u32 {S_A}, {S_SEG}, {S_STEP}\ns_min_u32 {S_A}, {S_A}, 63\ns_xor_b32 {S_XB}, {S_XB}, 32768')
            self.x_dma(-1)
            if pm: a.raw('    s_memtime s[86:87]')
            xr(0)
            for ks in range(16):
                if ks < 15: xr(ks + 1)
                if ks == 9:
                    if pm: a.raw('    s_memtime s[94:95]')
                    a('s_waitcnt vmcnt(8)')
                    if pm: a.raw('    s_memtime s[96:97]')
                    a(f'buffer_store_dword v{tv("oxr")}, v{tv("one")}, {WS}, {S_PF} offen sc1')
                for m in mats:
                    for p in range(2):
                        for tt in range(2):
                            d = vr(acc(m, p, tt), 4)
                            x = vr(XF + 8 * (ks % 2) + 4 * tt, 4); w = wfrag(m, ks, p)
                            A, B = (w, x) if m != 'v' else (x, w)
                            a(f'{mf32} {d}, {A}, {B}, {d if ks else 0}')
                            if ks < 8 and m == mats[0] and p == 0 and tt == 0: self.x_dma(ks)
            if pm: a.raw('    s_memtime s[98:99]')
            a(f'v_xor_b32 v{VX}, 32768, v{VX}')
        def loop_tail(lab):
            a(f's_add_u32 {S_SEG}, {S_SEG}, {S_STEP}\ns_cmp_lt_u32 {S_SEG}, {S_END}\ns_cbranch_scc1 {lab}')
            a('s_waitcnt vmcnt(0)')
            a(f'buffer_store_dword v{tv("oxr")}, v{tv("one")}, {WS}, {S_PF} offen sc1')
            a('s_barrier')
        def start_loop():
            a(f's_mov_b32 {S_PF}, {hex(L.OOB)}\nv_mov_b32 v{VX}, v{tv("l16")}')
        def init_sync(marks=True, t=40):
            a.forget()
            if marks:
                self.dump_marks(t)
                self.tstamp(1, t)
            lab = a.newlabel('wz')
            a(f'v_mov_b32 v{t+4}, {L.LDS_BYTES - 16}\ns_cmp_lg_u32 {S_W}, 0\ns_cbranch_scc1 {lab}')
            self.wait_init(t0=t, tid=V_TID)
            a(f'v_mov_b32 v{t+5}, s21\nds_write_b32 v{t+4}, v{t+5}')
            a.wait(lgkm=0)
            a(f'{lab}:\ns_waitcnt vmcnt(0)\ns_barrier\nds_read_b32 v{t+5}, v{t+4}')
            a(f'v_readfirstlane_b32 s21, v{t+5}')
            a(f's_cmp_ge_u32 s21, 32\ns_cselect_b32 {S_TFAST}, 1, 0')
            if o.get('force_slow'): a(f's_mov_b32 {S_TFAST}, 0')
            self.tstamp(2, t)
        def a_epilogue(frs, foff, flagoff):
            a(f"""
            s_lshl_b32 s21, {S_SEG}, 5
            s_add_u32 s21, s21, {S_HEAD}
            s_lshl_b32 {S_PF}, s21, 6
            s_mul_i32 s21, s21, 24576
            s_mul_i32 s22, {S_W}, 6144
            s_add_u32 s21, s21, s22
            s_add_u32 s21, s21, {foff}
            s_lshl_b32 s23, {S_W}, 2
            s_add_u32 {S_PF}, {S_PF}, s23
            s_add_u32 {S_PF}, {S_PF}, {hex(L.F_KV + flagoff)}
            """)
            for f, (t0, t1) in enumerate(frs):
                o4 = 32 + 4 * f
                for i, t in enumerate((t0, t1)):
                    r = acc(*t)
                    a(f'{cvt} v{o4+2*i}, v{r}, v{r+1}\n{cvt} v{o4+2*i+1}, v{r+2}, v{r+3}')
                a(f'buffer_store_dwordx4 {vr(o4,4)}, v{tv("l16")}, {WS}, s21 offen offset:{1024*f} sc1')
        self.mark(2)
        for gi in range(2):
            a.wait(vm=17)
            if gi == 0: self.mark(3)
            consume(gi); issue(gi + 2)
        a.wait(vm=16); self.mark(4)
        consume(2)
        a(f's_cmp_eq_u32 {S_ISB}, 1\ns_cbranch_scc1 L_w_Bload')
        self.x_dma()
        self.signal_init(tid=V_TID, t=40, barrier=False)
        a.wait(vm=8); self.mark(5); self.mark(6)
        consume(3)
        a.forget()
        if not o.get('pmark'): self.dump_marks(40)
        self.tstamp(1, 40); self.note(7, 40)
        a('s_waitcnt vmcnt(0)')
        a(f's_mov_b32 {S_FIRST}, {S_SEG}')
        start_loop()
        loop_head('L_P_kv', 'kv', 4)
        a_epilogue([[('k', 0, 0), ('k', 1, 0)], [('k', 0, 1), ('k', 1, 1)], [('v', 0, 0), ('v', 1, 1)], [('v', 1, 0), ('v', 0, 1)]], 0, 0)
        lab = a.newlabel('nf')
        a(f's_cmp_lg_u32 {S_SEG}, {S_FIRST}\ns_cbranch_scc1 {lab}')
        init_sync(marks=False, t=48)
        a(f'buffer_store_dword v{tv("oxr")}, v{tv("one")}, {WS}, {S_PF} offen sc1\n{lab}:')
        if o.get('pmark'):
            a.raw('    s_memtime s[100:101]')
            lab = a.newlabel('pm')
            a(f's_cmp_lt_u32 {S_SEG}, 30\ns_cbranch_scc1 {lab}\ns_cmp_ge_u32 {S_SEG}, 36\ns_cbranch_scc1 {lab}')
            self.dump_marks(48)
            a(f's_waitcnt vmcnt(0)\n{lab}:')
        loop_tail('L_P_kv')
        issue(4); issue(5)
        a('s_waitcnt vmcnt(16)'); consume(4)
        a(f's_mov_b32 {S_SEG}, {S_FIRST}\ns_mov_b32 {S_XB}, 0\ns_mov_b32 {S_A}, {S_SEG}')
        self.x_dma()
        a('s_waitcnt vmcnt(8)'); consume(5)
        a('s_waitcnt vmcnt(0)')
        start_loop()
        loop_head('L_P_q', 'q', 2)
        a_epilogue([[('q', 0, 0), ('q', 1, 0)], [('q', 0, 1), ('q', 1, 1)]], 4096, 16)
        loop_tail('L_P_q')
        a('s_branch L_P_done')
        a('L_w_Bload:')
        issue(4)
        self.signal_init(tid=V_TID, t=40, barrier=False)
        a('s_waitcnt vmcnt(16)'); consume(3); issue(5)
        a('s_waitcnt vmcnt(16)'); self.mark(5); consume(4)
        self.x_dma()
        a('s_waitcnt vmcnt(8)'); self.mark(6); consume(5)
        init_sync()
        for r in range(KP, KP + 8, 2): a(f'v_mov_b64 {vr(r,2)}, 0')
        start_loop()
        loop_head('L_P_B', 'qkv', 4)
        G1 = 26
        a(f's_lshl_b32 s21, {S_SEG}, 7\ns_add_u32 s21, s21, {hex(L.GATE)}')
        a(f'buffer_load_dword v{G1}, v{tv("c4")}, {WS}, s21 offen sc1\nbuffer_load_dword v{G1+1}, v{tv("c4")}, {WS}, s21 offen offset:64 sc1')
        for m in 'qkv':
            for p in range(2):
                for tt in range(2):
                    r = acc(m, p, tt)
                    a(f'{cvt} v{r}, v{r}, v{r+1}\n{cvt} v{r+1}, v{r+2}, v{r+3}')
        a(f'''
        s_mov_b32 s80, 0xaaaaaaaa
        s_mov_b32 s81, 0xaaaaaaaa
        v_cmp_ne_u32 s[82:83], 0, v{tv("mc0")}
        v_cmp_ne_u32 s[84:85], 0, v{tv("mc1")}
        s_mov_b32 s86, {hex(f2u(0.25 * 1.4426950408889634))}
        s_cmp_eq_u32 {S_SEG}, 0
        s_cselect_b32 s87, 0xf149f2ca, 0
        s_lshl_b32 s21, {S_SEG}, 5
        s_lshl_b32 s22, {S_HEAD}, 3
        s_add_u32 s21, s21, s22
        s_lshl_b32 s22, {S_W}, 1
        s_add_u32 s21, s21, s22
        s_lshl_b32 s21, s21, 10
        s_add_u32 s21, s21, {hex(L.OB)}
        s_cmp_lt_u32 {S_SEG}, {S_FIRST}
        s_cselect_b32 s21, {hex(L.OOB)}, s21
        s_lshl_b32 {S_PF}, {S_SEG}, 2
        s_add_u32 {S_PF}, {S_PF}, {S_HEAD}
        s_lshl_b32 {S_PF}, {S_PF}, 6
        s_lshl_b32 s22, {S_W}, 2
        s_add_u32 {S_PF}, {S_PF}, s22
        s_add_u32 {S_PF}, {S_PF}, {hex(L.F_OB)}
        s_cmp_lt_u32 {S_SEG}, {S_FIRST}
        s_cselect_b32 {S_PF}, {hex(L.OOB)}, {S_PF}
        s_waitcnt vmcnt(0)
        v_sub_f32 v{G1}, 1.0, v{G1}
        v_sub_f32 v{G1+1}, 1.0, v{G1+1}
        ''')
        for p in range(2):
            for tt in range(2):
                q = acc('q', p, tt); kc = acc('k', p, tt); vc = acc('v', p, tt)
                kp = KP + 2 * p if tt == 0 else acc('k', p, 0)
                vp = VP + 2 * p if tt == 0 else acc('v', p, 0)
                SC_, SP_, OD = 28, 32, 36
                a(f'{mf16} {vr(SC_,4)}, {vr(kc,2)}, {vr(q,2)}, 0\n{mf16} {vr(SP_,4)}, {vr(kp,2)}, {vr(q,2)}, 0')
                for j in range(2):
                    a(f'v_cndmask_b32 v{SC_+2*j}, v{SC_+2*j}, v{SC_+2*j+1}, s[80:81]')
                    a(f'v_cndmask_b32 v{SP_+2*j}, v{SP_+2*j}, v{SP_+2*j+1}, s[80:81]')
                    if tt == 0: a(f'v_add_f32 v{SP_+2*j}, s87, v{SP_+2*j}')
                    a(f'v_cndmask_b32 v{40+j}, v{SP_+2*j}, v{SC_+2*j}, s[{82+2*j}:{83+2*j}]')
                a('v_max_f32 v42, v40, v41')
                self.xlane('v_max_f32', 42, 43)
                a('v_mul_f32 v42, s86, v42')
                for j in range(2): a(f'v_fma_f32 v{40+j}, v{40+j}, s86, -v42\nv_exp_f32 v{40+j}, v{40+j}')
                a('v_add_f32 v42, v40, v41')
                self.xlane('v_add_f32', 42, 43)
                a(f'v_rcp_f32 v42, v42')
                for j in range(2):
                    a(f'{cvt} v{40+j}, v{40+j}, v{40+j}')
                    a(f'v_and_b32 v{44+j}, v{40+j}, v{tv(f"mc{j}")}\nv_and_b32 v{46+j}, v{40+j}, v{tv(f"mp{j}")}')
                a(f'v_mul_f32 v42, v42, v{G1+tt}')
                a(f'{mf16} {vr(OD,4)}, {vr(vc,2)}, v[44:45], 0\n{mf16} {vr(OD,4)}, {vr(vp,2)}, v[46:47], {vr(OD,4)}')
                for i in range(4): a(f'v_mul_f32 v{OD+i}, v{OD+i}, v42')
                ob = XF + 2 * (2 * p + tt)
                a(f'{cvt} v{ob}, v{OD}, v{OD+1}\n{cvt} v{ob+1}, v{OD+2}, v{OD+3}')
                a(f'buffer_store_dwordx2 {vr(ob,2)}, v{tv("l8")}, {WS}, s21 offen offset:{1024*p + 512*tt} sc1')
        for p in range(2):
            a(f'v_mov_b64 {vr(KP+2*p,2)}, {vr(acc("k",p,1),2)}\nv_mov_b64 {vr(VP+2*p,2)}, {vr(acc("v",p,1),2)}')
        loop_tail('L_P_B')
        a('L_P_done:')
        self.tstamp(3, 40)
        self.note(8, 40)
        if o.get('no_F'):
            a('s_endpgm'); a.auto_vm = True; return
        self.f_phase()

    def spin4(self, voff, soff, tmp, n=4, sleep=2):
        a = self.a
        lab = a.newlabel('s4'); ok = a.newlabel('s4ok')
        ld = {1: 'buffer_load_dword', 4: 'buffer_load_dwordx4'}[n]
        a(f's_mov_b32 s23, {SPIN}\n{lab}:')
        a(f'{ld} {vr(tmp,n)}, {voff}, {WS}, {soff} offen sc1\ns_waitcnt vmcnt(0)')
        if n == 4: a(f'v_min_u32 v{tmp}, v{tmp}, v{tmp+1}\nv_min3_u32 v{tmp}, v{tmp}, v{tmp+2}, v{tmp+3}')
        a(f'v_cmp_eq_u32 vcc, 0, v{tmp}\ns_cbranch_vccz {ok}\ns_sleep {sleep}\ns_sub_u32 s23, s23, 1\ns_cbranch_scc0 {lab}\ns_mov_b32 {SPIN}, 0x400\n{ok}:')

    def f_phase(self):
        a = self.a; o = self.o
        set_srd(a, 8, P_WO, 4 << 20)
        a(f's_mul_i32 s78, {S_W}, 36864\ns_mov_b32 m0, s78')
        for kb in range(2):
            for T in range(4):
                a(f's_lshl_b32 s21, {S_RANK}, 17\ns_add_u32 s21, s21, {kb*65536 + T*64}')
                self.dma_chunk(f'v{tv("dma1k")}', 's21', 1024)
        set_srd(a, 8, P_WOB, 512 * 1024)
        for T in range(4):
            a(f's_lshl_b32 s21, {S_RANK}, 14\ns_add_u32 s21, s21, {T*64}')
            self.dma_chunk(f'v{tv("dma1k")}', 's21', 1024, n=1)
        set_srd(a, 12, P_OUT, 2048 * 1024)
        V_Z = 26
        a(f'v_mov_b32 v{V_Z}, 0')
        for kt in range(2):
            for i in range(4):
                a(f'v_cmp_le_i32 s[{64+8*kt+2*i}:{65+8*kt+2*i}], {16*kt+i}, v{tv("qrow")}')
        a('s_waitcnt vmcnt(0)')
        wof = lambda T, p, ks: 4 * ((T * 2 + p) * 4 + ks)
        wob = lambda T, p: 128 + 2 * (T * 2 + p)
        for kb in range(2):
            for T in range(4):
                so = (kb * 4 + T) * 4096
                for p in range(2):
                    for h in range(2):
                        for r in range(2):
                            a(f'ds_read_b64_tr_b16 {ar(wof(T,p,2*kb+h)+2*r,2)}, v{tv("trf")} offset:{so + 2048*h + 1024*r + 8*p}')
        for T in range(4):
            for p in range(2):
                a(f'ds_read_b64_tr_b16 {ar(wob(T,p),2)}, v{tv("trf")} offset:{32768 + 1024*T + 8*p}')
        a.wait(lgkm=0)
        S_FS, S_RB, S_FB = 's61', 's62', 's63'
        a(f's_sub_u32 {S_FS}, {S_TEAM}, 1\ns_mov_b32 s80, {hex(f2u(128 ** -0.5 * 1.4426950408889634))}\ns_mov_b32 s81, 0xf149f2ca')
        a(f's_lshr_b32 s82, {S_W}, 1\ns_and_b32 s83, {S_W}, 1')
        a(f's_lshl_b32 s86, {S_TEAM}, 21\ns_add_u32 s86, s86, {hex(L.FP)}')
        Q, K0, K1, V, KM, VM, OBF, G, S0, S1, SM, PX, PM, D, OF, AC = 28, 44, 60, 76, 92, 108, 112, 116, 120, 124, 128, 132, 136, 140, 156, 188
        a('L_F_loop:')
        a.forget(); a.auto_vm = True
        a(f'''
        s_lshl_b32 s21, {S_FS}, 5
        s_add_u32 s21, s21, {S_RANK}
        s_lshl_b32 {S_FB}, s21, 6
        s_mul_i32 {S_RB}, s21, 24576
        s_lshl_b32 s84, s21, 12
        s_add_u32 s84, s84, {hex(L.KVM)}
        s_lshl_b32 s85, s21, 10
        s_add_u32 s85, s85, {hex(L.OB)}
        s_add_u32 s21, {S_FB}, {hex(L.F_KV + 16)}
        ''')
        self.spin4(f'v{V_Z}', 's21', Q)
        a(f'''
        s_lshl_b32 s21, {S_FS}, 2
        s_lshr_b32 s22, {S_RANK}, 3
        s_add_u32 s21, s21, s22
        s_lshl_b32 s21, s21, 6
        s_and_b32 s22, {S_RANK}, 6
        s_lshl_b32 s22, s22, 1
        s_add_u32 s21, s21, s22
        s_add_u32 s21, s21, {hex(L.F_OB)}
        ''')
        self.spin4(f'v{V_Z}', 's21', Q, n=1)
        a.forget()
        l16 = f'v{tv("l16")}'
        for qt in range(2):
            a(f'buffer_load_dwordx2 {vr(OBF+2*qt,2)}, v{tv("l8")}, {WS}, s85 offen offset:{512*qt} sc1')
        a(f's_lshl_b32 s22, s82, 10\ns_add_u32 s22, s22, 4096\ns_add_u32 s22, s22, {S_RB}\ns_mov_b32 s21, {S_RB}')
        for sl in range(4):
            a(f'buffer_load_dwordx4 {vr(Q+4*sl,4)}, {l16}, {WS}, s22 offen sc1')
            a(f'buffer_load_dwordx4 {vr(K0+4*sl,4)}, {l16}, {WS}, s21 offen sc1')
            a(f'buffer_load_dwordx4 {vr(K1+4*sl,4)}, {l16}, {WS}, s21 offen offset:1024 sc1')
            if sl < 3: a('s_add_u32 s21, s21, 6144\ns_add_u32 s22, s22, 6144')
        a(f's_mul_i32 s21, s83, 12288\ns_add_u32 s21, s21, {S_RB}\ns_add_u32 s22, s21, 6144')
        for sl in range(2):
            for f in range(2):
                a(f'buffer_load_dwordx4 {vr(V+8*sl+4*f,4)}, {l16}, {WS}, {"s21" if sl == 0 else "s22"} offen offset:{2048+1024*f} sc1')
        a(f's_lshl_b32 s21, {S_FS}, 7\ns_lshl_b32 s22, s82, 6\ns_add_u32 s21, s21, s22\ns_add_u32 s21, s21, {hex(L.GATE)}')
        a(f'buffer_load_dword v{G}, v{tv("c4")}, {WS}, s21 offen sc1')
        for qt in range(2):
            for T in range(4):
                for p in range(2):
                    a(f'{mf16} {vr(AC+32*qt+8*T+4*p,4)}, {ar(wob(T,p),2)}, {vr(OBF+2*qt,2)}, 0')
        for sl in range(4):
            a(f'{mf32} {vr(S0,4)}, {vr(K0+4*sl,4)}, {vr(Q+4*sl,4)}, {vr(S0,4) if sl else 0}')
            a(f'{mf32} {vr(S1,4)}, {vr(K1+4*sl,4)}, {vr(Q+4*sl,4)}, {vr(S1,4) if sl else 0}')
        NEG = 27
        a(f'v_mov_b32 v{NEG}, s81')
        for kt, Sx in enumerate((S0, S1)):
            for i in range(4): a(f'v_cndmask_b32 v{Sx+i}, v{NEG}, v{Sx+i}, s[{64+8*kt+2*i}:{65+8*kt+2*i}]')
        MX = 117
        a(f'v_max3_f32 v{MX}, v{S0}, v{S0+1}, v{S0+2}\nv_max3_f32 v{MX}, v{MX}, v{S0+3}, v{S1}\nv_max3_f32 v{MX}, v{MX}, v{S1+1}, v{S1+2}\nv_max_f32 v{MX}, v{MX}, v{S1+3}')
        a.wait(vm=0)
        skip = a.newlabel('fw')
        a(f's_cmp_lg_u32 {S_W}, 0\ns_cbranch_scc1 {skip}\ns_add_u32 s21, {S_FB}, {hex(L.F_M)}')
        self.spin4(f'v{V_Z}', 's21', KM)
        self.tstamp(4, 252)
        a(f'{skip}:\ns_barrier')
        a.forget()
        for sl in range(4):
            a(f'buffer_load_dwordx4 {vr(KM+4*sl,4)}, {l16}, {WS}, s84 offen offset:{1024*sl} sc1')
        a(f's_lshl_b32 s21, s83, 11\ns_add_u32 s21, s21, s84')
        for sl in range(2):
            a(f'buffer_load_dwordx2 {vr(VM+2*sl,2)}, v{tv("vml")}, {WS}, s21 offen offset:{1024*sl} sc1')
        for sl in range(4):
            a(f'{mf32} {vr(SM,4)}, {vr(KM+4*sl,4)}, {vr(Q+4*sl,4)}, {vr(SM,4) if sl else 0}')
        a(f'v_max3_f32 v{MX}, v{MX}, v{SM}, v{SM+1}')
        self.xlane('v_max_f32', MX, 118)
        a(f'v_mul_f32 v{MX}, s80, v{MX}')
        E = [S0 + i for i in range(4)] + [S1 + i for i in range(4)] + [SM, SM + 1]
        for e in E: a(f'v_fma_f32 v{e}, v{e}, s80, -v{MX}')
        for e in E: a(f'v_exp_f32 v{e}, v{e}')
        a(f'{cvt} v{PX}, v{S0}, v{S0+1}\n{cvt} v{PX+1}, v{S0+2}, v{S0+3}\n{cvt} v{PX+2}, v{S1}, v{S1+1}\n{cvt} v{PX+3}, v{S1+2}, v{S1+3}')
        a(f'{cvt} v{PM}, v{SM}, v{SM+1}\nv_mov_b32 v{PM+1}, 0\nv_mov_b32 v{PM+2}, 0\n{cvt} v{PM+3}, v{SM}, v{SM+1}')
        for sl in range(2):
            f1, f2 = V + 8 * sl, V + 8 * sl + 4
            for p in range(2):
                d = vr(D + 8 * sl + 4 * p, 4)
                X = f1 if p == 0 else f2; Y = f2 + 2 if p == 0 else f1 + 2
                a(f'{mf16} {d}, {vr(X,2)}, {vr(PX,2)}, 0')
                a(f'{mf16} {d}, {vr(Y,2)}, {vr(PX+2,2)}, {d}')
                a(f'{mf16} {d}, {vr(VM+2*sl,2)}, {vr(PM+2*p,2)}, {d}')
        LS = 119
        a(f'v_add_f32 v{LS}, v{E[0]}, v{E[1]}')
        for e in E[2:]: a(f'v_add_f32 v{LS}, v{LS}, v{e}')
        self.xlane('v_add_f32', LS, 118)
        a(f'v_rcp_f32 v{LS}, v{LS}\nv_mul_f32 v{LS}, v{LS}, v{G}')
        for i in range(16): a(f'v_mul_f32 v{D+i}, v{D+i}, v{LS}')
        for i in range(8): a(f'{cvt} v{D+i}, v{D+2*i}, v{D+2*i+1}')
        for sl in range(2): a(f'ds_write_b128 v{tv("oxw")}, {vr(D+4*sl,4)} offset:{1024*sl}')
        a.wait(lgkm=0)
        a('s_barrier')
        for qt in range(2):
            for sl in range(4):
                a(f'ds_read_b128 {vr(OF+16*qt+4*sl,4)}, v{tv("oxr")} offset:{4096*qt+1024*sl}')
        a(f's_xor_b32 s86, s86, {1<<20}\ns_lshl_b32 s21, {S_RANK}, 10\ns_add_u32 s21, s21, s86\ns_add_u32 s22, s21, {16*32768}')
        a(f's_lshl_b32 s23, {S_W}, 2\ns_add_u32 s23, s23, {S_FB}\ns_add_u32 s87, s23, {hex(L.F_P)}')
        a(f's_cmp_eq_u32 {S_TFAST}, 0\ns_cbranch_scc1 L_F_slowst')
        lq0 = list(a.lq)
        for cf in ('', 'sc1'):
            if cf: a('L_F_slowst:'); a.lq = list(lq0)
            def fin(k):
                qt, T = divmod(k, 4)
                r = AC + 32 * qt + 8 * T
                for i in range(4): a(f'{cvt} v{r+i}, v{r+2*i}, v{r+2*i+1}')
                a(f'buffer_store_dwordx4 {vr(r,4)}, v{tv("fpst")}, {WS}, {"s21" if qt == 0 else "s22"} offen offset:{64*T} {cf}')
            for k in range(8):
                qt, T = divmod(k, 4)
                for ks in range(4):
                    for p in range(2):
                        d = vr(AC + 32 * qt + 8 * T + 4 * p, 4)
                        a(f'{mf32} {d}, {ar(wof(T,p,ks),4)}, {vr(OF+16*qt+4*ks,4)}, {d}')
                if k: fin(k - 1)
            fin(7)
            a.wait(vm=0)
            a(f'buffer_store_dword v{tv("oxr")}, v{tv("one")}, {WS}, s87 offen {cf}')
            if not cf: a('s_branch L_F_stdone')
        a('L_F_stdone:')
        self.tstamp(5, 252)
        a(f's_lshl_b32 s21, {S_FS}, 11\ns_add_u32 s21, s21, {hex(L.F_P)}')
        self.spin4(f'v{tv("pfl")}', 's21', Q, n=1, sleep=1)
        a.forget()
        a(f's_lshl_b32 s21, {S_RANK}, 15\ns_add_u32 s21, s21, s86')
        for l in range(8):
            a(f'buffer_load_dwordx4 {vr(Q+4*l,4)}, v{tv("fpld")}, {WS}, s21 offen sc1')
            if l < 7: a('s_add_u32 s21, s21, 4096')
        for l in range(8):
            a(f'{mf32} {vr(S0,4)}, {vr(tv("self0"),4)}, {vr(Q+4*l,4)}, {vr(S0,4) if l else 0}')
        a(f's_lshl_b32 s21, {S_FS}, 5\ns_add_u32 s21, s21, {S_RANK}\ns_lshl_b32 s21, s21, 10')
        a(f'{cvt} v{S0}, v{S0}, v{S0+1}\n{cvt} v{S0+1}, v{S0+2}, v{S0+3}')
        a(f'buffer_store_dwordx2 {vr(S0,2)}, v{tv("outst")}, {ST}, s21 offen')
        if o.get('wb'):
            lab = a.newlabel('wb')
            a(f's_cmp_lt_u32 {S_FS}, 50\ns_cbranch_scc1 {lab}\ns_cmp_ge_u32 {S_FS}, 61\ns_cbranch_scc1 {lab}')
            a(f's_or_b32 s21, {S_RANK}, {S_W}\ns_cmp_lg_u32 s21, 0\ns_cbranch_scc1 {lab}\nbuffer_wbl2 sc1\n{lab}:')
        a(f's_add_u32 {S_FS}, {S_FS}, 7\ns_cmp_lt_u32 {S_FS}, 64\ns_cbranch_scc1 L_F_loop')
        a.wait(vm=0)
        self.tstamp(6, 40)
        self.span(40)
        self.note(9, 40)
        a('s_endpgm')
```

```python
import sys, math
from asmlib import Asm
import layout as L

KNAME = 'gated_mix__memory_aug_recurrent_mem_tr__sliding_local_dilated__prompt_kernel'

from gen_common import *

class Gen:
    def __init__(self, opt):
        self.o = opt
        self.a = Asm()

    def prologue(self):
        a = self.a; o = self.o
        a(f'''
        s_cmp_ge_u32 s2, 256
        s_cbranch_scc1 L_exit
        {'s_memrealtime s[30:31]' if (o.get('stamp') or o.get('span') or o.get('span2')) else ''}
        s_load_dwordx16 s[32:47], s[0:1], 0
        s_load_dwordx8 s[48:55], s[0:1], 64
        s_load_dwordx4 s[56:59], s[0:1], 96
        s_getreg_b32 s20, hwreg(HW_REG_XCC_ID)
        v_lshrrev_b32 v1, 6, v0
        s_and_b32 s20, s20, 7
        v_readfirstlane_b32 {S_W}, v1
        s_mov_b32 {SPIN}, 0x400000
        ''')
        if o.get('fake_xcc'):
            a('s_and_b32 s20, s2, 1\ns_add_u32 s20, s20, 1')
        a.wait(lgkm=0)
        if o.get('touch'):
            MBy = 1 << 20
            touch = [(p, off) for p in (P_WO, P_WQ, P_WK, P_WV) for off in (0, 2 * MBy, 4 * MBy - 128)]
            touch += [(P_X, 2 * MBy - 128), (P_GATE, 0), (P_MEM0, 0), (P_WQKV, 0), (P_WQKV, 512 * 3072 - 128), (P_WOB, 0), (P_DBG, 0)]
            touch += [(P_WS, L.GATE + 16384), (P_WS, L.RIN + MBy), (None, 0)]
            a(f'v_mov_b32 v30, s{P_X}\nv_mov_b32 v31, s{P_X+1}')
            for i, (p, off) in enumerate(touch):
                if p is None: a('s_getpc_b64 s[22:23]\ns_add_u32 s22, s22, 0x8000\ns_addc_u32 s23, s23, 0')
                elif off: a(f's_add_u32 s22, s{p}, {hex(off)}\ns_addc_u32 s23, s{p+1}, 0')
                lo, hi = ('s22', 's23') if (off or p is None) else (f's{p}', f's{p+1}')
                a(f'v_writelane_b32 v30, {lo}, {i+1}\nv_writelane_b32 v31, {hi}, {i+1}')
            a('global_load_dword v29, v[30:31], off')
        set_srd(a, 4, P_WS, L.WS_BYTES)
        set_srd(a, 12, P_DBG, 256)
        a(f'''
        s_mul_i32 s21, s20, 24
        s_add_u32 s21, s21, 40
        s_cmp_eq_u32 s20, 0
        s_cselect_b32 s21, 0, s21
        v_mov_b32 v2, s21
        v_mov_b32 v3, 1
        v_cmp_ne_u32 vcc, 0, v0
        v_mov_b32 v4, {hex(L.OOB)}
        v_cndmask_b32 v2, v2, v4, vcc
        ''')
        a(f'buffer_atomic_add v3, v2, {ST}, 0 offen sc0')
        set_srd(a, 8, P_X, 2048 * 1024)
        a(f'''
        v_and_b32 v5, 63, v0
        v_lshlrev_b32 v5, 4, v5
        s_lshl_b32 s22, s2, 13
        s_lshl_b32 s23, {S_W}, 11
        s_add_u32 s22, s22, s23
        buffer_load_dwordx4 v[8:11], v5, {SA}, s22 offen
        buffer_load_dwordx4 v[12:15], v5, {SA}, s22 offen offset:1024
        ''')
        set_srd(a, 24, P_GATE, 1024)
        a(f'buffer_load_dwordx4 v[16:19], v5, s[24:27], 0 offen')
        a(f'''
        v_mov_b32 v20, -1
        v_mov_b32 v21, -1
        v_mov_b32 v22, -1
        v_mov_b32 v23, -1
        v_mov_b32 v24, 0
        v_mov_b32 v25, 0
        v_mov_b32 v26, 0
        v_mov_b32 v27, 0
        v_lshlrev_b32 v6, 4, v0
        s_lshl_b32 s22, s2, 12
        s_add_u32 s22, s22, {hex(L.RIN)}
        buffer_store_dwordx4 v[20:23], v6, {WS}, s22 offen sc1
        v_cmp_le_u32 vcc, 0x80, v0
        s_lshl_b32 s22, s2, 11
        s_add_u32 s22, s22, {hex(L.FLG)}
        v_cndmask_b32 v7, v6, v4, vcc
        ''')
        if o.get('keep_kv_flags'):
            a(f's_cmp_lt_u32 s2, 64\ns_cselect_b32 s22, {hex(L.OOB)}, s22')
        a(f'buffer_store_dwordx4 v[24:27], v7, {WS}, s22 offen sc1')
        a.wait(vm=5)
        a(f'''
        v_mov_b32 v2, {L.L_MEMX}
        s_cmp_lg_u32 {S_W}, 0
        s_cbranch_scc1 L_tk_skip
        v_readfirstlane_b32 s21, v3
        v_mov_b32 v3, s21
        ds_write_b32 v2, v3
        ''')
        a.wait(lgkm=0)
        a('L_tk_skip:\ns_barrier\nds_read_b32 v3, v2')
        a.wait(lgkm=0)
        a(f'''
        v_readfirstlane_b32 {S_RANK}, v3
        s_mov_b32 {S_TEAM}, s20
        s_mov_b32 s19, 0
        s_cmp_lt_u32 {S_RANK}, 32
        s_cbranch_scc1 L_role_ok
        ''')
        self.vq_role = list(a.vq)
        a.auto_vm = False
        a(f'''
        s_mov_b32 s19, 1
        v_and_b32 v2, 7, v0
        v_mul_u32_u24 v28, 24, v2
        v_add_u32 v28, 40, v28
        v_cmp_eq_u32 vcc, 0, v2
        v_cndmask_b32 v28, v28, v2, vcc
        s_mov_b32 s21, {SPIN}
        L_ov_poll:
        buffer_load_dword v29, v28, {ST}, 0 offen sc1
        s_waitcnt vmcnt(0)
        s_mov_b32 s22, 0
        ''')
        for x in range(8):
            a(f'v_readlane_b32 s{64+x}, v29, {x}')
        a('s_nop 1')
        for x in range(8):
            a(f's_add_u32 s22, s22, s{64+x}')
        a(f'''
        s_cmp_ge_u32 s22, 256
        s_cbranch_scc1 L_ov_have
        s_sub_u32 s21, s21, 1
        s_cbranch_scc1 L_exit
        s_sleep 4
        s_branch L_ov_poll
        L_ov_have:
        s_sub_u32 s22, {S_RANK}, 32
        ''')
        for x in range(8):
            a(f'''
            s_max_u32 s23, s{64+x}, 32
            s_sub_u32 s23, s23, 32
            s_cmp_gt_u32 s20, {x}
            s_cselect_b32 s23, s23, 0
            s_add_u32 s22, s22, s23
            ''')
        for x in range(8):
            a(f'''
            s_min_u32 s23, s{64+x}, 32
            s_sub_u32 s21, 32, s23
            s_mov_b32 {S_TEAM}, {x}
            s_add_u32 {S_RANK}, s23, s22
            s_cmp_lt_u32 s22, s21
            s_cbranch_scc1 L_role_ok
            s_sub_u32 s22, s22, s21
            ''')
        a('s_branch L_exit')
        a.auto_vm = True
        a('L_role_ok:')
        a(f's_cmp_eq_u32 {S_TEAM}, 0\ns_cbranch_scc1 L_R')
        a('s_branch L_worker')

    def gate_and_store(self, tmp=28):
        a = self.a
        a('v_mov_b32 v20, 0\nv_mov_b32 v21, 0')
        for i in range(4):
            a(f'v_dot2c_f32_bf16 v20, v{8+i}, v{16+i}\nv_dot2c_f32_bf16 v21, v{12+i}, v{16+i}')
        a('s_nop 2')
        a('v_permlane32_swap_b32 v20, v21\nv_add_f32 v20, v20, v21')
        a('v_mov_b32 v21, v20\nv_permlane16_swap_b32 v20, v21\nv_add_f32 v20, v20, v21')
        for sh in (8, 4, 2, 1):
            a(f'v_add_f32_dpp v20, v20, v20 row_ror:{sh} row_mask:0xf bank_mask:0xf')
        a(f'''
        v_mul_f32 v20, 0xbfb8aa3b, v20
        v_exp_f32 v20, v20
        v_add_f32 v20, 1.0, v20
        v_rcp_f32 v20, v20
        v_and_b32 v21, 63, v0
        v_lshrrev_b32 v22, 5, v21
        v_lshlrev_b32 v22, 2, v22
        v_and_b32 v21, 31, v21
        v_cmp_ne_u32 vcc, 0, v21
        v_mov_b32 v23, {hex(L.OOB)}
        v_cndmask_b32 v22, v22, v23, vcc
        s_lshl_b32 s22, s2, 5
        s_lshl_b32 s23, {S_W}, 3
        s_add_u32 s22, s22, s23
        s_add_u32 s22, s22, {hex(L.GATE)}
        buffer_store_dword v20, v22, {WS}, s22 offen sc1
        ''')

    def signal_init(self, tid=0, t=20, barrier=True):
        a = self.a
        lab = a.newlabel('sig')
        set_srd(a, 12, P_DBG, 256)
        if barrier: a('s_barrier')
        a(f'''
        s_cmp_lg_u32 {S_W}, 0
        s_cbranch_scc1 {lab}
        s_and_b32 s21, s2, 3
        s_lshl_b32 s21, s21, 6
        s_add_u32 s21, s21, 60
        v_mov_b32 v{t}, s21
        v_mov_b32 v{t+1}, 1
        v_mov_b32 v{t+2}, {hex(L.OOB)}
        v_and_b32 v{t+3}, 63, v{tid}
        v_cmp_ne_u32 vcc, 0, v{t+3}
        v_cndmask_b32 v{t}, v{t}, v{t+2}, vcc
        buffer_atomic_add v{t+1}, v{t}, {ST}, 0 offen
        {lab}:
        ''')

    def wait_init(self, t0=20, tid=0, sleep=16):
        a = self.a
        lab = a.newlabel('wi'); ok = a.newlabel('wiok')
        set_srd(a, 12, P_DBG, 256)
        sv = a.auto_vm; a.auto_vm = False
        a(f'''
        v_and_b32 v{t0}, 3, v{tid}
        v_lshlrev_b32 v{t0}, 6, v{t0}
        v_add_u32 v{t0}, 60, v{t0}
        s_mul_i32 s21, {S_TEAM}, 24
        s_add_u32 s21, s21, 40
        s_cmp_eq_u32 {S_TEAM}, 0
        s_cselect_b32 s21, 0, s21
        v_mov_b32 v{t0+2}, s21
        s_mov_b32 s23, {SPIN}
        {lab}:
        buffer_load_dword v{t0+1}, v{t0}, {ST}, 0 offen sc1
        buffer_load_dword v{t0+3}, v{t0+2}, {ST}, 0 offen sc1
        s_waitcnt vmcnt(0)
        v_readlane_b32 s84, v{t0+1}, 0
        v_readlane_b32 s85, v{t0+1}, 1
        v_readlane_b32 s86, v{t0+1}, 2
        v_readlane_b32 s87, v{t0+1}, 3
        v_readlane_b32 s21, v{t0+3}, 0
        s_nop 1
        s_add_u32 s84, s84, s85
        s_add_u32 s86, s86, s87
        s_add_u32 s84, s84, s86
        s_cmp_ge_u32 s84, 256
        s_cbranch_scc1 {ok}
        s_sleep {sleep}
        s_sub_u32 s23, s23, 1
        s_cbranch_scc0 {lab}
        {ok}:
        ''')
        a.auto_vm = sv
        a.forget()

    def tstamp(self, i, t):
        if not self.o.get('stamp'): return
        a = self.a
        lab = a.newlabel('ts')
        a(f'''
        s_cmp_lg_u32 {S_W}, 0
        s_cbranch_scc1 {lab}
        s_memrealtime s[90:91]
        s_lshl_b32 s92, {S_TEAM}, 5
        s_add_u32 s92, s92, {S_RANK}
        s_lshl_b32 s92, s92, 7
        s_add_u32 s92, s92, {hex(L.DBG + 65536 + 4 * i)}
        s_waitcnt lgkmcnt(0)
        v_mov_b32 v{t}, s90
        v_mov_b32 v{t+1}, 0
        buffer_store_dword v{t}, v{t+1}, {WS}, s92 offen
        {'v_mov_b32 v%d, s30' % t if i == 1 else ''}
        {'buffer_store_dword v%d, v%d, %s, s92 offen offset:124' % (t, t+1, WS) if i == 1 else ''}
        s_waitcnt vmcnt(0)
        {lab}:
        ''')

    def span(self, t):
        if not self.o.get('span'): return
        a = self.a
        set_srd(a, 12, P_DBG, 256)
        a(f'''
        s_waitcnt vmcnt(0)
        s_memrealtime s[90:91]
        s_not_b32 s30, s30
        v_mov_b32 v{t}, 16
        v_mov_b32 v{t+1}, s30
        s_waitcnt lgkmcnt(0)
        v_mov_b32 v{t+2}, s90
        s_mov_b64 exec, 1
        buffer_atomic_umax v{t+1}, v{t}, {ST}, 0 offen
        buffer_atomic_umax v{t+2}, v{t}, {ST}, 0 offen offset:4
        ''')
    def note(self, slot, t, rank=0):
        if not self.o.get('span2'): return
        a = self.a
        lab = a.newlabel('nt')
        a(f's_cmp_lg_u32 {S_W}, 0\ns_cbranch_scc1 {lab}\ns_cmp_lg_u32 {S_RANK}, {rank}\ns_cbranch_scc1 {lab}\ns_cmp_gt_u32 {S_TEAM}, 1\ns_cbranch_scc1 {lab}')
        set_srd(a, 92, P_DBG, 256)
        a(f'''
        s_memrealtime s[90:91]
        v_mov_b32 v{t}, {4*slot}
        s_waitcnt lgkmcnt(0)
        s_sub_u32 s90, s90, s30
        v_mov_b32 v{t+1}, s90
        buffer_store_dword v{t+1}, v{t}, s[92:95], 0 offen
        {lab}:
        ''')
    def mark(self, i):
        if self.o.get('stamp'): self.a.raw(f'    s_memrealtime s[{82+2*i if i < 4 else 86+2*i}:{83+2*i if i < 4 else 87+2*i}]')
    def dump_marks(self, t):
        if not self.o.get('stamp'): return
        a = self.a
        a(f's_lshl_b32 s92, {S_TEAM}, 5\ns_add_u32 s92, s92, {S_RANK}\ns_lshl_b32 s92, s92, 7\ns_add_u32 s92, s92, {hex(L.DBG + 65536)}\ns_waitcnt lgkmcnt(0)\nv_mov_b32 v{t+1}, 0')
        for i in range(7):
            a(f'v_mov_b32 v{t}, s{82+2*i if i < 4 else 86+2*i}\nbuffer_store_dword v{t}, v{t+1}, {WS}, s92 offen offset:{4*(8+i)}')

    def dma_chunk(self, voff, soff, stride, n=4):
        a = self.a
        for i in range(n):
            a(f'buffer_load_dwordx4 {voff}, {SA}, {soff} offen lds')
            a(f's_add_u32 m0, m0, 1024')
            if i < n - 1: a(f's_add_u32 {soff}, {soff}, {16*stride}')

    def dma_block(self, voff, soff, stride):
        a = self.a
        for i in range(16):
            a(f'buffer_load_dwordx4 {voff}, {SA}, {soff} offen lds')
            if i < 15: a(f's_add_u32 m0, m0, 1056\ns_add_u32 {soff}, {soff}, {stride}')

    def load_table(self, label, dst, ndw, tmp):
        a = self.a
        pc = a.newlabel('pc')
        a(f'''
        s_getpc_b64 s[12:13]
        {pc}:
        s_add_u32 s12, s12, {label}-{pc}
        s_addc_u32 s13, s13, 0
        s_mov_b32 s14, {256*ndw*4}
        s_mov_b32 s15, 0x20000
        v_mul_u32_u24 v{tmp}, {ndw*4}, v0
        ''')
        for i in range(0, ndw, 4):
            a(f'buffer_load_dwordx4 {vr(dst+i,4)}, v{tmp}, {ST}, 0 offen offset:{i*4}')

from rrole import RRole
from workers import Workers

class Full(Gen, RRole, Workers):
    def build(self):
        a = self.a
        self.prologue()
        self.r_role()
        self.worker_role()
        a('L_exit:\ns_endpgm')
        a.timed = not self.o.get('untimed')
        n = a.pad_hazards()
        hdr = open('cdna_kernels/' + KNAME[:-7] + '.s.ref').read().split('\n')
        hdr = [h for h in hdr if h.startswith(';') and '@launch' not in h and 'Override' not in h and 'grid=ceil' not in h]
        txt = '\n'.join(hdr) + f'\n; @launch grid=(256,1,1) block=(256,1,1) lds={L.LDS_BYTES}\n'
        txt += f'.amdgcn_target "amdgcn-amd-amdhsa--gfx950"\n.text\n.globl {KNAME}\n.p2align 8\n.type {KNAME},@function\n{KNAME}:\n'
        txt += a.text()
        txt += self.tables()
        txt += f'''.section .rodata,"a"
.p2align 6
.amdhsa_kernel {KNAME}
  .amdhsa_next_free_vgpr 512
  .amdhsa_next_free_sgpr 102
  .amdhsa_accum_offset 256
  .amdhsa_group_segment_fixed_size 0
  .amdhsa_kernarg_size 112
  .amdhsa_user_sgpr_count 2
  .amdhsa_user_sgpr_kernarg_segment_ptr 1
  .amdhsa_system_sgpr_workgroup_id_x 1
  .amdhsa_float_denorm_mode_32 3
.end_amdhsa_kernel
'''
        return txt, n

if __name__ == '__main__':
    opt = {}
    out = 'cdna_kernels/' + KNAME[:-7] + '.s'
    for arg in sys.argv[1:]:
        if arg.startswith('-o'): out = arg[2:]
        elif '=' in arg:
            k, v = arg.split('='); opt[k] = int(v)
        else: opt[arg] = 1
    txt, n = Full(opt).build()
    open(out, 'w').write(txt)
    print('written', out, len(txt), 'bytes; hazard pad states', n)
```

```python
import layout as L
from gen_common import *
import struct
def f2u(x): return struct.unpack('<I', struct.pack('<f', x))[0]
mf16 = 'v_mfma_f32_16x16x16_bf16'; mf32 = 'v_mfma_f32_16x16x32_bf16'; cvt = 'v_cvt_pk_bf16_f32'

TB = 0
NAMES = list(L.w_table().keys())
def tv(n): return TB + NAMES.index(n)
V_TID = 24
XF = 48
ACC = 64
S_ISB, S_SEG, S_END, S_STEP, S_BASE, S_STR = 's61', 's62', 's63', 's64', 's65', 's66'
S_XB, S_PF, S_PF2, S_A, S_B, S_HEAD = 's67', 's68', 's69', 's70', 's71', 's72'
S_FIRST = 's73'
S_TFAST = 's89'
SX = 's[24:27]'

def wfrag(m, ks, p):
    c = 'qkv'.index(m) * 8 + ks // 2
    r = c * 16 + p * 8 + (ks % 2) * 4
    return ar(r, 4) if r < 256 else vr(128 + r - 256, 4)

class Workers:
    def tables(self):
        return L.table_text('T_R', L.r_table()) + L.table_text('T_W', L.w_table())

    def xlane(self, op, x, t):
        a = self.a
        a(f'v_mov_b32 v{t}, v{x}\nv_permlane16_swap_b32 v{x}, v{t}\n{op} v{x}, v{x}, v{t}')
        a(f'v_mov_b32 v{t}, v{x}\nv_permlane32_swap_b32 v{x}, v{t}\n{op} v{x}, v{x}, v{t}')

    def x_dma(self, piece=None):
        a = self.a
        if piece is not None and piece >= 0:
            a(f'buffer_load_dwordx4 v{tv("xg")}, {SX}, s21 offen lds')
            a('s_add_u32 m0, m0, 1024')
            a(f's_add_u32 s21, s21, {16384 if piece % 2 == 0 else hex((64 - 16384) & 0xFFFFFFFF)}')
            return
        a(f's_lshl_b32 s21, {S_A}, 15\ns_lshl_b32 s22, {S_W}, 8\ns_add_u32 s21, s21, s22')
        a(f's_lshl_b32 s22, {S_W}, 13\ns_add_u32 m0, s22, {S_XB}')
        if piece is not None: return
        for k in range(4):
            for tt in range(2):
                a(f'buffer_load_dwordx4 v{tv("xg")}, {SX}, s21 offen lds')
                a('s_add_u32 m0, m0, 1024')
                a(f's_add_u32 s21, s21, {16384 if tt == 0 else hex((64 - 16384) & 0xFFFFFFFF)}')

    def worker_role(self):
        a = self.a; o = self.o
        a('L_worker:')
        a.vq = list(self.vq_role)
        self.mark(0)
        if o.get('no_workers'):
            self.gate_and_store(); a.wait(vm=0); self.signal_init(); a('s_endpgm'); return
        a(f'''
        s_sub_u32 s21, {S_TEAM}, 1
        s_lshl_b32 s21, s21, 5
        s_add_u32 s21, s21, {S_RANK}
        s_cmp_ge_u32 s21, 192
        s_cselect_b32 {S_ISB}, 1, 0
        s_cbranch_scc1 L_w_B
        s_mul_i32 {S_HEAD}, s21, 43691
        s_lshr_b32 {S_HEAD}, {S_HEAD}, 18
        s_mul_i32 s22, {S_HEAD}, 6
        s_sub_u32 {S_SEG}, s21, s22
        s_mov_b32 {S_END}, 64
        s_mov_b32 {S_STEP}, 6
        s_mov_b32 {S_FIRST}, 0
        s_movk_i32 {S_STR}, 8192
        s_mov_b32 s75, {4<<20}
        s_branch L_w_dec
        L_w_B:
        s_sub_u32 s21, s21, 192
        s_lshr_b32 {S_HEAD}, s21, 3
        s_and_b32 s21, s21, 7
        s_lshl_b32 {S_FIRST}, s21, 3
        s_add_u32 {S_END}, {S_FIRST}, 8
        s_max_u32 {S_SEG}, {S_FIRST}, 1
        s_sub_u32 {S_SEG}, {S_SEG}, 1
        s_mov_b32 {S_STEP}, 1
        s_movk_i32 {S_STR}, 3072
        s_mov_b32 s75, {512*3072}
        L_w_dec:
        v_and_b32 v1, 63, v0
        v_lshrrev_b32 v2, 4, v1
        v_and_b32 v3, 15, v1
        v_lshlrev_b32 v3, 4, v3
        s_lshl_b32 s79, {S_STR}, 4
        v_mul_lo_u32 v2, v2, s79
        v_add_u32 v28, v2, v3
        s_mul_i32 s78, {S_W}, {L.BLK}
        s_lshl_b32 s77, {S_HEAD}, 8
        s_lshl_b32 s79, {S_STR}, 6
        ''')
        nwarm = 0
        if o.get('mall'):
            a(f's_sub_u32 s21, {S_TEAM}, 1\ns_lshl_b32 s21, s21, 5\ns_add_u32 s21, s21, {S_RANK}\ns_lshl_b32 s21, s21, 2\ns_add_u32 s21, s21, {S_W}')
            a('v_lshlrev_b32 v29, 7, v1\ns_mov_b32 s10, 0x400000\ns_mov_b32 s11, 0x20000')
            for i in range(2):
                a(f'''
                s_add_u32 s22, s21, {896 * i}
                s_cmp_ge_u32 s22, 512
                s_cselect_b32 s8, s{P_WV}, s{P_WK}
                s_cselect_b32 s9, s{P_WV+1}, s{P_WK+1}
                s_and_b32 s23, s22, 511
                s_lshl_b32 s23, s23, 13
                s_cmp_ge_u32 s22, 1024
                s_cselect_b32 s23, {hex(L.OOB)}, s23
                buffer_load_dword v{30+i%2}, v29, {SA}, s23 offen
                ''')
        groups = [(m, b) for m in 'kvq' for b in range(2)]
        def issue(gi):
            m, b = groups[gi]
            if b == 0:
                ptr = {'q': P_WQ, 'k': P_WK, 'v': P_WV}[m]
                a(f"""
                s_cmp_eq_u32 {S_ISB}, 1
                s_cselect_b32 s8, s{P_WQKV}, s{ptr}
                s_cselect_b32 s9, s{P_WQKV+1}, s{ptr+1}
                s_mov_b32 s10, s75
                s_mov_b32 s11, 0x20000
                s_cselect_b32 s76, {'qkv'.index(m) * 1024}, 0
                s_add_u32 s76, s76, s77
                """)
            a(f's_add_u32 m0, s78, {(gi % 2) * L.GRP}')
            a(f's_add_u32 s21, {S_W}, {4 * b}\ns_mul_i32 s21, s21, s79\ns_add_u32 s21, s21, s76')
            self.dma_block('v28', 's21', S_STR)
        issue(0)
        self.load_table('T_W', 96, 24, 7)
        self.confirm_role()
        issue(1)
        self.mark(1)
        self.gate_and_store()
        a(f'v_mov_b32 v{V_TID}, v0')
        for i in range(24): a(f'v_mov_b32 v{TB+i}, v{96+i}')
        a(f'v_add_u32 v29, {L.GRP}, v{tv("trp")}')
        set_srd(a, 24, P_X, 2048 * 1024)
        a(f's_mov_b32 {S_XB}, 0\ns_mov_b32 {S_A}, {S_SEG}')
        a.auto_vm = False
        def consume(gi):
            m, b = groups[gi]
            a('s_barrier')
            for x in range(4):
                for p in range(2):
                    for h in range(2):
                        f = wfrag(m, 2 * (4 * b + x) + h, p)
                        kind, base = f[0], int(f[2:f.index(':')])
                        for r in range(2):
                            a(f'ds_read_b64_tr_b16 {kind}[{base+2*r}:{base+2*r+1}], v{tv("trp") if gi % 2 == 0 else 29} offset:{x * L.BLK + 512*h + 4224*r + 32*p}')
            a.wait(lgkm=0)
            a('s_barrier')
        VX = 25
        KP, VP = 112, 116
        acc = lambda m, p, tt: ACC + 16 * 'qkv'.index(m) + 8 * p + 4 * tt
        def xr(ks):
            for tt in range(2):
                a(f'ds_read_b128 {vr(XF + 8*(ks%2) + 4*tt, 4)}, v{VX} offset:{(ks*2+tt)*1024}')
        def loop_head(lab, mats, nst):
            a(f'{lab}:')
            pm = o.get('pmark') and lab == 'L_P_kv'
            if pm: a.raw('    s_memtime s[82:83]')
            a(f's_waitcnt vmcnt({nst + 1})')
            a('s_barrier')
            if pm: a.raw('    s_memtime s[84:85]')
            a(f's_add_u32 {S_A}, {S_SEG}, {S_STEP}\ns_min_u32 {S_A}, {S_A}, 63\ns_xor_b32 {S_XB}, {S_XB}, 32768')
            self.x_dma(-1)
            if pm: a.raw('    s_memtime s[86:87]')
            xr(0)
            for ks in range(16):
                if ks < 15: xr(ks + 1)
                if ks == 9:
                    if pm: a.raw('    s_memtime s[94:95]')
                    a('s_waitcnt vmcnt(8)')
                    if pm: a.raw('    s_memtime s[96:97]')
                    a(f'buffer_store_dword v{tv("oxr")}, v{tv("one")}, {WS}, {S_PF} offen sc1')
                for m in mats:
                    for p in range(2):
                        for tt in range(2):
                            d = vr(acc(m, p, tt), 4)
                            x = vr(XF + 8 * (ks % 2) + 4 * tt, 4); w = wfrag(m, ks, p)
                            A, B = (w, x) if m != 'v' else (x, w)
                            a(f'{mf32} {d}, {A}, {B}, {d if ks else 0}')
                            if ks < 8 and m == mats[0] and p == 0 and tt == 0: self.x_dma(ks)
            if pm: a.raw('    s_memtime s[98:99]')
            a(f'v_xor_b32 v{VX}, 32768, v{VX}')
        def loop_tail(lab):
            a(f's_add_u32 {S_SEG}, {S_SEG}, {S_STEP}\ns_cmp_lt_u32 {S_SEG}, {S_END}\ns_cbranch_scc1 {lab}')
            a('s_waitcnt vmcnt(0)')
            a(f'buffer_store_dword v{tv("oxr")}, v{tv("one")}, {WS}, {S_PF} offen sc1')
            a('s_barrier')
        def start_loop():
            a(f's_mov_b32 {S_PF}, {hex(L.OOB)}\nv_mov_b32 v{VX}, v{tv("l16")}')
        def init_sync(marks=True, t=40):
            a.forget()
            if marks:
                self.dump_marks(t)
                self.tstamp(1, t)
            lab = a.newlabel('wz')
            a(f'v_mov_b32 v{t+4}, {L.LDS_BYTES - 16}\ns_cmp_lg_u32 {S_W}, 0\ns_cbranch_scc1 {lab}')
            self.wait_init(t0=t, tid=V_TID)
            a(f'v_mov_b32 v{t+5}, s21\nds_write_b32 v{t+4}, v{t+5}')
            a.wait(lgkm=0)
            a(f'{lab}:\ns_waitcnt vmcnt(0)\ns_barrier\nds_read_b32 v{t+5}, v{t+4}')
            a(f'v_readfirstlane_b32 s21, v{t+5}')
            a(f's_cmp_ge_u32 s21, 32\ns_cselect_b32 {S_TFAST}, 1, 0')
            if o.get('force_slow'): a(f's_mov_b32 {S_TFAST}, 0')
            self.tstamp(2, t)
        def a_epilogue(frs, foff, flagoff):
            a(f"""
            s_lshl_b32 s21, {S_SEG}, 5
            s_add_u32 s21, s21, {S_HEAD}
            s_lshl_b32 {S_PF}, s21, 6
            s_mul_i32 s21, s21, 24576
            s_mul_i32 s22, {S_W}, 6144
            s_add_u32 s21, s21, s22
            s_add_u32 s21, s21, {foff}
            s_lshl_b32 s23, {S_W}, 2
            s_add_u32 {S_PF}, {S_PF}, s23
            s_add_u32 {S_PF}, {S_PF}, {hex(L.F_KV + flagoff)}
            """)
            for f, (t0, t1) in enumerate(frs):
                o4 = 32 + 4 * f
                for i, t in enumerate((t0, t1)):
                    r = acc(*t)
                    a(f'{cvt} v{o4+2*i}, v{r}, v{r+1}\n{cvt} v{o4+2*i+1}, v{r+2}, v{r+3}')
                a(f'buffer_store_dwordx4 {vr(o4,4)}, v{tv("l16")}, {WS}, s21 offen offset:{1024*f} sc1')
        self.mark(2)
        for gi in range(2):
            a.wait(vm=17)
            if gi == 0: self.mark(3)
            consume(gi); issue(gi + 2)
        a.wait(vm=16); self.mark(4)
        consume(2)
        a(f's_cmp_eq_u32 {S_ISB}, 1\ns_cbranch_scc1 L_w_Bload')
        self.x_dma()
        self.signal_init(tid=V_TID, t=40, barrier=False)
        a.wait(vm=8); self.mark(5); self.mark(6)
        consume(3)
        a.forget()
        if not o.get('pmark'): self.dump_marks(40)
        self.tstamp(1, 40); self.note(7, 40)
        a('s_waitcnt vmcnt(0)')
        a(f's_mov_b32 {S_FIRST}, {S_SEG}')
        start_loop()
        loop_head('L_P_kv', 'kv', 4)
        a_epilogue([[('k', 0, 0), ('k', 1, 0)], [('k', 0, 1), ('k', 1, 1)], [('v', 0, 0), ('v', 1, 1)], [('v', 1, 0), ('v', 0, 1)]], 0, 0)
        lab = a.newlabel('nf')
        a(f's_cmp_lg_u32 {S_SEG}, {S_FIRST}\ns_cbranch_scc1 {lab}')
        init_sync(marks=False, t=48)
        a(f'buffer_store_dword v{tv("oxr")}, v{tv("one")}, {WS}, {S_PF} offen sc1')
        if o.get('hold', 0):
            l2 = a.newlabel('hold')
            a(f's_cmp_lg_u32 {S_W}, 0\ns_cbranch_scc1 {l2}\ns_lshl_b32 s21, {S_HEAD}, 6\ns_add_u32 s21, s21, {hex(L.F_RS)}\nv_mov_b32 v48, 0')
            self.spin4('v48', 's21', 49, n=1, sleep=8)
            a(f'{l2}:')
        a(f'{lab}:')
        if o.get('pmark'):
            a.raw('    s_memtime s[100:101]')
            lab = a.newlabel('pm')
            a(f's_cmp_lt_u32 {S_SEG}, 30\ns_cbranch_scc1 {lab}\ns_cmp_ge_u32 {S_SEG}, 36\ns_cbranch_scc1 {lab}')
            self.dump_marks(48)
            a(f's_waitcnt vmcnt(0)\n{lab}:')
        loop_tail('L_P_kv')
        issue(4); issue(5)
        a('s_waitcnt vmcnt(16)'); consume(4)
        a(f's_mov_b32 {S_SEG}, {S_FIRST}\ns_mov_b32 {S_XB}, 0\ns_mov_b32 {S_A}, {S_SEG}')
        self.x_dma()
        a('s_waitcnt vmcnt(8)'); consume(5)
        a('s_waitcnt vmcnt(0)')
        start_loop()
        loop_head('L_P_q', 'q', 2)
        a_epilogue([[('q', 0, 0), ('q', 1, 0)], [('q', 0, 1), ('q', 1, 1)]], 4096, 16)
        loop_tail('L_P_q')
        a('s_branch L_P_done')
        a('L_w_Bload:')
        issue(4)
        self.signal_init(tid=V_TID, t=40, barrier=False)
        a('s_waitcnt vmcnt(16)'); consume(3); issue(5)
        a('s_waitcnt vmcnt(16)'); self.mark(5); consume(4)
        self.x_dma()
        a('s_waitcnt vmcnt(8)'); self.mark(6); consume(5)
        init_sync()
        for r in range(KP, KP + 8, 2): a(f'v_mov_b64 {vr(r,2)}, 0')
        start_loop()
        loop_head('L_P_B', 'qkv', 4)
        G1 = 26
        a(f's_lshl_b32 s21, {S_SEG}, 7\ns_add_u32 s21, s21, {hex(L.GATE)}')
        a(f'buffer_load_dword v{G1}, v{tv("c4")}, {WS}, s21 offen sc1\nbuffer_load_dword v{G1+1}, v{tv("c4")}, {WS}, s21 offen offset:64 sc1')
        for m in 'qkv':
            for p in range(2):
                for tt in range(2):
                    r = acc(m, p, tt)
                    a(f'{cvt} v{r}, v{r}, v{r+1}\n{cvt} v{r+1}, v{r+2}, v{r+3}')
        a(f'''
        s_mov_b32 s80, 0xaaaaaaaa
        s_mov_b32 s81, 0xaaaaaaaa
        v_cmp_ne_u32 s[82:83], 0, v{tv("mc0")}
        v_cmp_ne_u32 s[84:85], 0, v{tv("mc1")}
        s_mov_b32 s86, {hex(f2u(0.25 * 1.4426950408889634))}
        s_cmp_eq_u32 {S_SEG}, 0
        s_cselect_b32 s87, 0xf149f2ca, 0
        s_lshl_b32 s21, {S_SEG}, 5
        s_lshl_b32 s22, {S_HEAD}, 3
        s_add_u32 s21, s21, s22
        s_lshl_b32 s22, {S_W}, 1
        s_add_u32 s21, s21, s22
        s_lshl_b32 s21, s21, 10
        s_add_u32 s21, s21, {hex(L.OB)}
        s_cmp_lt_u32 {S_SEG}, {S_FIRST}
        s_cselect_b32 s21, {hex(L.OOB)}, s21
        s_lshl_b32 {S_PF}, {S_SEG}, 2
        s_add_u32 {S_PF}, {S_PF}, {S_HEAD}
        s_lshl_b32 {S_PF}, {S_PF}, 6
        s_lshl_b32 s22, {S_W}, 2
        s_add_u32 {S_PF}, {S_PF}, s22
        s_add_u32 {S_PF}, {S_PF}, {hex(L.F_OB)}
        s_cmp_lt_u32 {S_SEG}, {S_FIRST}
        s_cselect_b32 {S_PF}, {hex(L.OOB)}, {S_PF}
        s_waitcnt vmcnt(0)
        v_sub_f32 v{G1}, 1.0, v{G1}
        v_sub_f32 v{G1+1}, 1.0, v{G1+1}
        ''')
        for p in range(2):
            for tt in range(2):
                q = acc('q', p, tt); kc = acc('k', p, tt); vc = acc('v', p, tt)
                kp = KP + 2 * p if tt == 0 else acc('k', p, 0)
                vp = VP + 2 * p if tt == 0 else acc('v', p, 0)
                SC_, SP_, OD = 28, 32, 36
                a(f'{mf16} {vr(SC_,4)}, {vr(kc,2)}, {vr(q,2)}, 0\n{mf16} {vr(SP_,4)}, {vr(kp,2)}, {vr(q,2)}, 0')
                for j in range(2):
                    a(f'v_cndmask_b32 v{SC_+2*j}, v{SC_+2*j}, v{SC_+2*j+1}, s[80:81]')
                    a(f'v_cndmask_b32 v{SP_+2*j}, v{SP_+2*j}, v{SP_+2*j+1}, s[80:81]')
                    if tt == 0: a(f'v_add_f32 v{SP_+2*j}, s87, v{SP_+2*j}')
                    a(f'v_cndmask_b32 v{40+j}, v{SP_+2*j}, v{SC_+2*j}, s[{82+2*j}:{83+2*j}]')
                a('v_max_f32 v42, v40, v41')
                self.xlane('v_max_f32', 42, 43)
                a('v_mul_f32 v42, s86, v42')
                for j in range(2): a(f'v_fma_f32 v{40+j}, v{40+j}, s86, -v42\nv_exp_f32 v{40+j}, v{40+j}')
                a('v_add_f32 v42, v40, v41')
                self.xlane('v_add_f32', 42, 43)
                a(f'v_rcp_f32 v42, v42')
                for j in range(2):
                    a(f'{cvt} v{40+j}, v{40+j}, v{40+j}')
                    a(f'v_and_b32 v{44+j}, v{40+j}, v{tv(f"mc{j}")}\nv_and_b32 v{46+j}, v{40+j}, v{tv(f"mp{j}")}')
                a(f'v_mul_f32 v42, v42, v{G1+tt}')
                a(f'{mf16} {vr(OD,4)}, {vr(vc,2)}, v[44:45], 0\n{mf16} {vr(OD,4)}, {vr(vp,2)}, v[46:47], {vr(OD,4)}')
                for i in range(4): a(f'v_mul_f32 v{OD+i}, v{OD+i}, v42')
                ob = XF + 2 * (2 * p + tt)
                a(f'{cvt} v{ob}, v{OD}, v{OD+1}\n{cvt} v{ob+1}, v{OD+2}, v{OD+3}')
                a(f'buffer_store_dwordx2 {vr(ob,2)}, v{tv("l8")}, {WS}, s21 offen offset:{1024*p + 512*tt} sc1')
        for p in range(2):
            a(f'v_mov_b64 {vr(KP+2*p,2)}, {vr(acc("k",p,1),2)}\nv_mov_b64 {vr(VP+2*p,2)}, {vr(acc("v",p,1),2)}')
        loop_tail('L_P_B')
        a('L_P_done:')
        self.tstamp(3, 40)
        self.note(8, 40)
        if o.get('no_F'):
            a('s_endpgm'); a.auto_vm = True; return
        self.f_phase()

    def spin4(self, voff, soff, tmp, n=4, sleep=2):
        a = self.a
        lab = a.newlabel('s4'); ok = a.newlabel('s4ok')
        ld = {1: 'buffer_load_dword', 4: 'buffer_load_dwordx4'}[n]
        a(f's_mov_b32 s23, {SPIN}\n{lab}:')
        a(f'{ld} {vr(tmp,n)}, {voff}, {WS}, {soff} offen sc1\ns_waitcnt vmcnt(0)')
        if n == 4: a(f'v_min_u32 v{tmp}, v{tmp}, v{tmp+1}\nv_min3_u32 v{tmp}, v{tmp}, v{tmp+2}, v{tmp+3}')
        a(f'v_cmp_eq_u32 vcc, 0, v{tmp}\ns_cbranch_vccz {ok}\ns_sleep {sleep}\ns_sub_u32 s23, s23, 1\ns_cbranch_scc0 {lab}\ns_mov_b32 {SPIN}, 0x400\n{ok}:')

    def f_phase(self):
        a = self.a; o = self.o
        set_srd(a, 8, P_WO, 4 << 20)
        a(f's_mul_i32 s78, {S_W}, 36864\ns_mov_b32 m0, s78')
        for kb in range(2):
            for T in range(4):
                a(f's_lshl_b32 s21, {S_RANK}, 17\ns_add_u32 s21, s21, {kb*65536 + T*64}')
                self.dma_chunk(f'v{tv("dma1k")}', 's21', 1024)
        set_srd(a, 8, P_WOB, 512 * 1024)
        for T in range(4):
            a(f's_lshl_b32 s21, {S_RANK}, 14\ns_add_u32 s21, s21, {T*64}')
            self.dma_chunk(f'v{tv("dma1k")}', 's21', 1024, n=1)
        set_srd(a, 12, P_OUT, 2048 * 1024)
        V_Z = 26
        a(f'v_mov_b32 v{V_Z}, 0')
        for kt in range(2):
            for i in range(4):
                a(f'v_cmp_le_i32 s[{64+8*kt+2*i}:{65+8*kt+2*i}], {16*kt+i}, v{tv("qrow")}')
        a('s_waitcnt vmcnt(0)')
        wof = lambda T, p, ks: 4 * ((T * 2 + p) * 4 + ks)
        wob = lambda T, p: 128 + 2 * (T * 2 + p)
        for kb in range(2):
            for T in range(4):
                so = (kb * 4 + T) * 4096
                for p in range(2):
                    for h in range(2):
                        for r in range(2):
                            a(f'ds_read_b64_tr_b16 {ar(wof(T,p,2*kb+h)+2*r,2)}, v{tv("trf")} offset:{so + 2048*h + 1024*r + 8*p}')
        for T in range(4):
            for p in range(2):
                a(f'ds_read_b64_tr_b16 {ar(wob(T,p),2)}, v{tv("trf")} offset:{32768 + 1024*T + 8*p}')
        a.wait(lgkm=0)
        S_FS, S_RB, S_FB = 's61', 's62', 's63'
        a(f's_sub_u32 {S_FS}, {S_TEAM}, 1\ns_mov_b32 s80, {hex(f2u(128 ** -0.5 * 1.4426950408889634))}\ns_mov_b32 s81, 0xf149f2ca')
        a(f's_lshr_b32 s82, {S_W}, 1\ns_and_b32 s83, {S_W}, 1')
        a(f's_lshl_b32 s86, {S_TEAM}, 21\ns_add_u32 s86, s86, {hex(L.FP)}')
        Q, K0, K1, V, KM, VM, OBF, G, S0, S1, SM, PX, PM, D, OF, AC = 28, 44, 60, 76, 92, 108, 112, 116, 120, 124, 128, 132, 136, 140, 156, 188
        a('L_F_loop:')
        a.forget(); a.auto_vm = True
        a(f'''
        s_lshl_b32 s21, {S_FS}, 5
        s_add_u32 s21, s21, {S_RANK}
        s_lshl_b32 {S_FB}, s21, 6
        s_mul_i32 {S_RB}, s21, 24576
        s_lshl_b32 s84, s21, 12
        s_add_u32 s84, s84, {hex(L.KVM)}
        s_lshl_b32 s85, s21, 10
        s_add_u32 s85, s85, {hex(L.OB)}
        s_add_u32 s21, {S_FB}, {hex(L.F_KV + 16)}
        ''')
        self.spin4(f'v{V_Z}', 's21', Q)
        a(f'''
        s_lshl_b32 s21, {S_FS}, 2
        s_lshr_b32 s22, {S_RANK}, 3
        s_add_u32 s21, s21, s22
        s_lshl_b32 s21, s21, 6
        s_and_b32 s22, {S_RANK}, 6
        s_lshl_b32 s22, s22, 1
        s_add_u32 s21, s21, s22
        s_add_u32 s21, s21, {hex(L.F_OB)}
        ''')
        self.spin4(f'v{V_Z}', 's21', Q, n=1)
        a.forget()
        l16 = f'v{tv("l16")}'
        for qt in range(2):
            a(f'buffer_load_dwordx2 {vr(OBF+2*qt,2)}, v{tv("l8")}, {WS}, s85 offen offset:{512*qt} sc1')
        a(f's_lshl_b32 s22, s82, 10\ns_add_u32 s22, s22, 4096\ns_add_u32 s22, s22, {S_RB}\ns_mov_b32 s21, {S_RB}')
        for sl in range(4):
            a(f'buffer_load_dwordx4 {vr(Q+4*sl,4)}, {l16}, {WS}, s22 offen sc1')
            a(f'buffer_load_dwordx4 {vr(K0+4*sl,4)}, {l16}, {WS}, s21 offen sc1')
            a(f'buffer_load_dwordx4 {vr(K1+4*sl,4)}, {l16}, {WS}, s21 offen offset:1024 sc1')
            if sl < 3: a('s_add_u32 s21, s21, 6144\ns_add_u32 s22, s22, 6144')
        a(f's_mul_i32 s21, s83, 12288\ns_add_u32 s21, s21, {S_RB}\ns_add_u32 s22, s21, 6144')
        for sl in range(2):
            for f in range(2):
                a(f'buffer_load_dwordx4 {vr(V+8*sl+4*f,4)}, {l16}, {WS}, {"s21" if sl == 0 else "s22"} offen offset:{2048+1024*f} sc1')
        a(f's_lshl_b32 s21, {S_FS}, 7\ns_lshl_b32 s22, s82, 6\ns_add_u32 s21, s21, s22\ns_add_u32 s21, s21, {hex(L.GATE)}')
        a(f'buffer_load_dword v{G}, v{tv("c4")}, {WS}, s21 offen sc1')
        for qt in range(2):
            for T in range(4):
                for p in range(2):
                    a(f'{mf16} {vr(AC+32*qt+8*T+4*p,4)}, {ar(wob(T,p),2)}, {vr(OBF+2*qt,2)}, 0')
        for sl in range(4):
            a(f'{mf32} {vr(S0,4)}, {vr(K0+4*sl,4)}, {vr(Q+4*sl,4)}, {vr(S0,4) if sl else 0}')
            a(f'{mf32} {vr(S1,4)}, {vr(K1+4*sl,4)}, {vr(Q+4*sl,4)}, {vr(S1,4) if sl else 0}')
        NEG = 27
        a(f'v_mov_b32 v{NEG}, s81')
        for kt, Sx in enumerate((S0, S1)):
            for i in range(4): a(f'v_cndmask_b32 v{Sx+i}, v{NEG}, v{Sx+i}, s[{64+8*kt+2*i}:{65+8*kt+2*i}]')
        MX = 117
        a(f'v_max3_f32 v{MX}, v{S0}, v{S0+1}, v{S0+2}\nv_max3_f32 v{MX}, v{MX}, v{S0+3}, v{S1}\nv_max3_f32 v{MX}, v{MX}, v{S1+1}, v{S1+2}\nv_max_f32 v{MX}, v{MX}, v{S1+3}')
        a.wait(vm=0)
        skip = a.newlabel('fw')
        a(f's_cmp_lg_u32 {S_W}, 0\ns_cbranch_scc1 {skip}\ns_add_u32 s21, {S_FB}, {hex(L.F_M)}')
        self.spin4(f'v{V_Z}', 's21', KM)
        self.tstamp(4, 252)
        a(f'{skip}:\ns_barrier')
        a.forget()
        for sl in range(4):
            a(f'buffer_load_dwordx4 {vr(KM+4*sl,4)}, {l16}, {WS}, s84 offen offset:{1024*sl} sc1')
        a(f's_lshl_b32 s21, s83, 11\ns_add_u32 s21, s21, s84')
        for sl in range(2):
            a(f'buffer_load_dwordx2 {vr(VM+2*sl,2)}, v{tv("vml")}, {WS}, s21 offen offset:{1024*sl} sc1')
        for sl in range(4):
            a(f'{mf32} {vr(SM,4)}, {vr(KM+4*sl,4)}, {vr(Q+4*sl,4)}, {vr(SM,4) if sl else 0}')
        a(f'v_max3_f32 v{MX}, v{MX}, v{SM}, v{SM+1}')
        self.xlane('v_max_f32', MX, 118)
        a(f'v_mul_f32 v{MX}, s80, v{MX}')
        E = [S0 + i for i in range(4)] + [S1 + i for i in range(4)] + [SM, SM + 1]
        for e in E: a(f'v_fma_f32 v{e}, v{e}, s80, -v{MX}')
        for e in E: a(f'v_exp_f32 v{e}, v{e}')
        a(f'{cvt} v{PX}, v{S0}, v{S0+1}\n{cvt} v{PX+1}, v{S0+2}, v{S0+3}\n{cvt} v{PX+2}, v{S1}, v{S1+1}\n{cvt} v{PX+3}, v{S1+2}, v{S1+3}')
        a(f'{cvt} v{PM}, v{SM}, v{SM+1}\nv_mov_b32 v{PM+1}, 0\nv_mov_b32 v{PM+2}, 0\n{cvt} v{PM+3}, v{SM}, v{SM+1}')
        for sl in range(2):
            f1, f2 = V + 8 * sl, V + 8 * sl + 4
            for p in range(2):
                d = vr(D + 8 * sl + 4 * p, 4)
                X = f1 if p == 0 else f2; Y = f2 + 2 if p == 0 else f1 + 2
                a(f'{mf16} {d}, {vr(X,2)}, {vr(PX,2)}, 0')
                a(f'{mf16} {d}, {vr(Y,2)}, {vr(PX+2,2)}, {d}')
                a(f'{mf16} {d}, {vr(VM+2*sl,2)}, {vr(PM+2*p,2)}, {d}')
        LS = 119
        a(f'v_add_f32 v{LS}, v{E[0]}, v{E[1]}')
        for e in E[2:]: a(f'v_add_f32 v{LS}, v{LS}, v{e}')
        self.xlane('v_add_f32', LS, 118)
        a(f'v_rcp_f32 v{LS}, v{LS}\nv_mul_f32 v{LS}, v{LS}, v{G}')
        for i in range(16): a(f'v_mul_f32 v{D+i}, v{D+i}, v{LS}')
        for i in range(8): a(f'{cvt} v{D+i}, v{D+2*i}, v{D+2*i+1}')
        for sl in range(2): a(f'ds_write_b128 v{tv("oxw")}, {vr(D+4*sl,4)} offset:{1024*sl}')
        a.wait(lgkm=0)
        a('s_barrier')
        for qt in range(2):
            for sl in range(4):
                a(f'ds_read_b128 {vr(OF+16*qt+4*sl,4)}, v{tv("oxr")} offset:{4096*qt+1024*sl}')
        a(f's_xor_b32 s86, s86, {1<<20}\ns_lshl_b32 s21, {S_RANK}, 10\ns_add_u32 s21, s21, s86\ns_add_u32 s22, s21, {16*32768}')
        a(f's_lshl_b32 s23, {S_W}, 2\ns_add_u32 s23, s23, {S_FB}\ns_add_u32 s87, s23, {hex(L.F_P)}')
        a(f's_cmp_eq_u32 {S_TFAST}, 0\ns_cbranch_scc1 L_F_slowst')
        lq0 = list(a.lq)
        for cf in ('', 'sc1'):
            if cf: a('L_F_slowst:'); a.lq = list(lq0)
            def fin(k):
                qt, T = divmod(k, 4)
                r = AC + 32 * qt + 8 * T
                for i in range(4): a(f'{cvt} v{r+i}, v{r+2*i}, v{r+2*i+1}')
                a(f'buffer_store_dwordx4 {vr(r,4)}, v{tv("fpst")}, {WS}, {"s21" if qt == 0 else "s22"} offen offset:{64*T} {cf}')
            for k in range(8):
                qt, T = divmod(k, 4)
                for ks in range(4):
                    for p in range(2):
                        d = vr(AC + 32 * qt + 8 * T + 4 * p, 4)
                        a(f'{mf32} {d}, {ar(wof(T,p,ks),4)}, {vr(OF+16*qt+4*ks,4)}, {d}')
                if k: fin(k - 1)
            fin(7)
            a.wait(vm=0)
            a(f'buffer_store_dword v{tv("oxr")}, v{tv("one")}, {WS}, s87 offen {cf}')
            if not cf: a('s_branch L_F_stdone')
        a('L_F_stdone:')
        self.tstamp(5, 252)
        a(f's_lshl_b32 s21, {S_FS}, 11\ns_add_u32 s21, s21, {hex(L.F_P)}')
        self.spin4(f'v{tv("pfl")}', 's21', Q, n=1, sleep=1)
        a.forget()
        a(f's_lshl_b32 s21, {S_RANK}, 15\ns_add_u32 s21, s21, s86')
        for l in range(8):
            a(f'buffer_load_dwordx4 {vr(Q+4*l,4)}, v{tv("fpld")}, {WS}, s21 offen sc1')
            if l < 7: a('s_add_u32 s21, s21, 4096')
        for l in range(8):
            a(f'{mf32} {vr(S0,4)}, {vr(tv("self0"),4)}, {vr(Q+4*l,4)}, {vr(S0,4) if l else 0}')
        a(f's_lshl_b32 s21, {S_FS}, 5\ns_add_u32 s21, s21, {S_RANK}\ns_lshl_b32 s21, s21, 10')
        a(f'{cvt} v{S0}, v{S0}, v{S0+1}\n{cvt} v{S0+1}, v{S0+2}, v{S0+3}')
        a(f'buffer_store_dwordx2 {vr(S0,2)}, v{tv("outst")}, {ST}, s21 offen')
        if o.get('wb'):
            lab = a.newlabel('wb')
            a(f's_cmp_lt_u32 {S_FS}, 50\ns_cbranch_scc1 {lab}\ns_cmp_ge_u32 {S_FS}, 61\ns_cbranch_scc1 {lab}')
            a(f's_or_b32 s21, {S_RANK}, {S_W}\ns_cmp_lg_u32 s21, 0\ns_cbranch_scc1 {lab}\nbuffer_wbl2 sc1\n{lab}:')
        a(f's_add_u32 {S_FS}, {S_FS}, 7\ns_cmp_lt_u32 {S_FS}, 64\ns_cbranch_scc1 L_F_loop')
        a.wait(vm=0)
        self.tstamp(6, 40)
        self.span(40)
        self.note(9, 40)
        a('s_endpgm')
```

```python
import layout as L
from gen_common import *

V_L16, V_IST, V_PUB, V_X0, V_F, V_SMW, V_OW, V_WV = 1, 2, 3, 4, 8, 9, 10, 11
KMH, VMH = 12, 16
V_IDX, V_WV2 = 18, 19
SELR, SELV, V_ONE, V_DUM, SELQ, SELK = 20, 24, 26, 27, 28, 128
V_Z = 29
VXC, VXN, KX = 32, 40, 48
WVB = 56
AQ, AK, AV = 72, 80, 88
M = 96
T = 132
WO0 = 144
V_FLAG = 0
SC = 128 ** -0.5 * 1.4426950408889634
import struct
def f2u(x): return struct.unpack('<I', struct.pack('<f', x))[0]

WO_SPILL = [(0, 0), (2, 0)]
def wo_frag(t, kb):
    order = [(t_, k_) for t_ in range(8) for k_ in range(2) if (t_, k_) not in WO_SPILL]
    return WO0 + 8 * order.index((t, kb))

LDSF = [('q', 0, 0), ('q', 0, 1), ('q', 1, 0), ('q', 1, 1), ('k', 0, 0)] + [('k', k, 1) for k in range(2, 8)] + [('k', 7, 0)] + [('v', k, p) for k in (6, 7) for p in range(2)]
AGF = [(m, k, p) for m in 'qkv' for k in range(8) for p in range(2) if (m, k, p) not in LDSF]
assert len(LDSF) == 16 and len(AGF) == 32
S_S = 's61'
S_MEMP = 's62'
S_PUBB = 's63'
S_IN0, S_IN1 = 's64', 's65'
S_INP = 's66'
S_REC = 's67'
S_FKV = 's68'
S_KVM, S_FM = 's69', 's70'
S_RST = 's71'
S_LO = 's[72:73]'
S_SC = 's74'
S_T0, S_T1 = 's75', 's76'
S_FAST = 's77'
S_TAG, S_NTAG = 's78', 's79'
S_OTAG, S_NOTAG = 's24', 's25'

class RRole:
    def smf(self, acc, A, B):
        self.a(f'v_smfmac_f32_16x16x64_bf16 {vr(acc,4)}, {vr(A,4)}, {B}, v{V_IDX}')

    def r_role(self):
        a = self.a; o = self.o
        a('L_R:')
        a.vq = list(self.vq_role)
        self.mark(0)
        self.note(2, 40)
        VD8, VD1, VTQ, VTO, VTA = 28, 29, 30, 31, 7
        a(f"""
        v_and_b32 v1, 63, v0
        v_lshrrev_b32 v2, 4, v1
        v_and_b32 v3, 15, v1
        v_lshlrev_b32 v4, 4, v3
        v_lshl_add_u32 v{VD8}, v2, 17, v4
        v_and_b32 v4, 0x70, v4
        v_lshrrev_b32 v3, 3, v3
        v_lshl_add_u32 v4, v3, 9, v4
        v_lshl_add_u32 v{VD1}, v2, 14, v4
        s_lshl_b32 s21, {S_W}, 7
        v_add_u32 v{VD1}, s21, v{VD1}
        s_mul_i32 s78, {S_W}, {L.BLK}
        """)
        groups = [(m, b) for m in 'oqkv' for b in range(2)]
        def issue(gi):
            mat, b = groups[gi]
            if b == 0: set_srd(a, 8, {'q': P_WQ, 'k': P_WK, 'v': P_WV, 'o': P_WO}[mat], 4 << 20)
            a(f's_add_u32 m0, s78, {(gi % 2) * L.GRP}')
            if mat != 'o':
                a(f's_add_u32 s21, {S_W}, {4 * b}\ns_lshl_b32 s21, s21, 19\ns_lshl_b32 s22, {S_RANK}, 8\ns_add_u32 s21, s21, s22')
                self.dma_block(f'v{VD8}', 's21', 8192)
            else:
                a(f's_lshl_b32 s21, {S_RANK}, 17\ns_add_u32 s21, s21, {b * 65536}')
                self.dma_block(f'v{VD1}', 's21', 1024)
        issue(0)
        self.load_table('T_R', 96, 28, 7)
        self.confirm_role()
        issue(1)
        self.mark(1)
        self.gate_and_store()
        names = list(L.r_table().keys())
        def tv(n): return 96 + names.index(n)
        a(f'v_mov_b32 v{VTQ}, v{tv("trq")}\nv_mov_b32 v{VTO}, v{tv("tro")}\nv_add_u32 v6, 65536, v{tv("wv")}')
        if o.get('code'):
            pc = a.newlabel('pc')
            a(f's_getpc_b64 s[12:13]\n{pc}:\ns_add_u32 s12, s12, L_R_ready-{pc}\ns_addc_u32 s13, s13, 0\ns_mov_b32 s14, L_R_slow-L_R_ready\ns_mov_b32 s15, 0x20000')
            a(f'v_lshlrev_b32 v1, 7, v0\nbuffer_load_dword v27, v1, {ST}, 0 offen')
        else:
            a(f'buffer_load_dword v27, v{tv("one")}, {WS}, 0 offen')
        a(f'buffer_load_dword v26, v{tv("mm")}, {WS}, 0 offen')
        a.auto_vm = False
        TMP = 56
        park = {}
        parkregs = [32, 64, 72, 80, 88, 124, 132, 8]
        for f in LDSF:
            if f[0] == 'k': park[f] = parkregs.pop(0)
            if f[0] == 'q': park[f] = -8 * AGF.index(('v', 3 + 2 * f[1], f[2])) - 1
        S_RDY = 's76'
        def scalars():
            if o.get('pa2', 0):
                dec = f's_lshr_b32 s84, {S_RANK}, 3\ns_lshl_b32 s84, s84, 1\ns_lshr_b32 s21, {S_W}, 1\ns_add_u32 s84, s84, s21\n' \
                      f's_lshr_b32 s85, {S_RANK}, 1\ns_and_b32 s85, s85, 3\n' \
                      f's_and_b32 s86, {S_RANK}, 1\ns_lshl_b32 s86, s86, 1\ns_and_b32 s21, {S_W}, 1\ns_add_u32 s86, s86, s21'
            else:
                dec = f's_lshr_b32 s84, {S_RANK}, 2\ns_and_b32 s85, {S_RANK}, 3\ns_mov_b32 s86, {S_W}'
            a(f'''
            {dec}
            s_lshl_b32 {S_INP}, s84, 2
            s_add_u32 {S_INP}, {S_INP}, s85
            s_lshl_b32 {S_INP}, {S_INP}, 2
            s_add_u32 {S_INP}, {S_INP}, s86
            s_lshl_b32 {S_INP}, {S_INP}, 11
            s_add_u32 {S_INP}, {S_INP}, {hex(L.RIN)}
            s_lshl_b32 {S_PUBB}, s84, 10
            s_and_b32 s22, s85, 2
            s_lshl_b32 s22, s22, 7
            s_add_u32 {S_PUBB}, {S_PUBB}, s22
            s_and_b32 s22, s85, 1
            s_lshl_b32 s22, s22, 5
            s_add_u32 {S_PUBB}, {S_PUBB}, s22
            s_lshl_b32 s22, s86, 6
            s_add_u32 {S_PUBB}, {S_PUBB}, s22
            s_add_u32 {S_PUBB}, {S_PUBB}, {hex(L.RMEM)}
            s_and_b32 s22, s84, 1
            s_lshl_b32 s22, s22, 9
            s_lshr_b32 s21, s84, 1
            s_lshl_b32 s21, s21, 7
            s_add_u32 s21, s21, s22
            s_lshl_b32 s22, s85, 3
            s_add_u32 s21, s21, s22
            s_lshl_b32 s22, s86, 11
            s_add_u32 s75, s21, s22
            s_mul_i32 {S_REC}, {S_RANK}, 24576
            s_mul_i32 s21, {S_W}, 6144
            s_add_u32 {S_REC}, {S_REC}, s21
            s_lshl_b32 {S_FKV}, {S_RANK}, 6
            s_lshl_b32 s21, {S_W}, 2
            s_add_u32 {S_FKV}, {S_FKV}, s21
            s_add_u32 {S_FM}, {S_FKV}, {hex(L.F_M - 4096)}
            s_add_u32 {S_FKV}, {S_FKV}, {hex(L.F_KV)}
            s_lshl_b32 {S_KVM}, {S_RANK}, 12
            s_lshl_b32 s21, {S_W}, 10
            s_add_u32 {S_KVM}, {S_KVM}, s21
            s_add_u32 {S_KVM}, {S_KVM}, {hex(L.KVM - 131072)}
            s_lshl_b32 s21, {S_W}, 11
            s_add_u32 {S_MEMP}, s21, {hex(L.RMEM)}
            s_lshl_b32 {S_IN0}, {S_RANK}, 6
            s_add_u32 {S_IN0}, {S_IN0}, {hex(L.RIN)}
            s_mov_b32 s72, 0x33333333
            s_mov_b32 s73, 0x33333333
            s_mov_b32 {S_SC}, {hex(f2u(SC))}
            s_mov_b32 {S_S}, 0
            ''')
        def first_records(l16):
            for i in range(2):
                a(f'buffer_load_dwordx4 {vr(KX+4*i,4)}, v{l16}, {WS}, {S_REC} offen offset:{1024*i} sc1')
                a(f'buffer_load_dwordx4 {vr(VXN+4*i,4)}, v{l16}, {WS}, {S_REC} offen offset:{2048+1024*i} sc1')
        def stage_x():
            set_srd(a, 12, P_DBG, 256)
            a(f'''
            v_and_b32 v1, 3, v0
            v_lshlrev_b32 v1, 6, v1
            v_add_u32 v1, 60, v1
            v_and_b32 v2, 4, v0
            v_cmp_ne_u32 vcc, 0, v2
            v_cndmask_b32 v1, v1, 0, vcc
            v_and_b32 v2, 1, v0
            v_lshlrev_b32 v2, 11, v2
            buffer_load_dword v3, v1, {ST}, 0 offen sc1
            buffer_load_dword v4, v2, {WS}, {S_FKV} offen sc1
            ''')
        def stage_y():
            a(f'''
            v_lshl_or_b32 v140, v141, 16, v140
            v_readlane_b32 s84, v3, 0
            v_readlane_b32 s85, v3, 1
            v_readlane_b32 s86, v3, 2
            v_readlane_b32 s87, v3, 3
            v_readlane_b32 s21, v3, 4
            v_cmp_eq_u32 vcc, 0, v4
            s_mov_b32 {S_RDY}, 0
            s_add_u32 s84, s84, s85
            s_add_u32 s86, s86, s87
            s_add_u32 s84, s84, s86
            s_cmp_eq_u32 s21, -1
            s_cselect_b32 {S_FAST}, 1, 0
            s_cbranch_vccnz L_R_notyet
            s_cmp_lt_u32 s84, 256
            s_cbranch_scc1 L_R_notyet
            s_mov_b32 {S_RDY}, 1
            buffer_store_dword v140, v{tv("pub")}, {WS}, {S_PUBB} offen sc1
            ''')
            first_records(tv('l16'))
            a('L_R_notyet:')
        scalars()
        set_srd(a, 24, P_MEM0, 8192)
        a(f'buffer_load_ushort v140, v{tv("m0a")}, s[24:27], s75 offen\nbuffer_load_ushort v141, v{tv("m0a")}, s[24:27], s75 offen offset:32')
        todo = []
        self.ldsf_off = {}
        def flush(n):
            for _ in range(n):
                f, r = todo.pop(0); off = 8192 * len(self.ldsf_off)
                self.ldsf_off[f] = off
                for hh in range(2):
                    src = vr(r + 4 * hh, 4) if r >= 0 else ar(-r - 1 + 4 * hh, 4)
                    a(f'ds_write_b128 v{tv("wv") if off < 65536 else 6}, {src} offset:{off % 65536 + 1024 * hh}')
                if r >= 0: parkregs.append(r)
        for gi in range(8):
            mat, b = groups[gi]
            if gi == 0: self.mark(2)
            a.wait(vm=[16 + 5, 5 + 16, 16, 16, 16, 16, 16, 0][gi] if o.get('xearly', 1) else [16 + 5, 5 + 16, 16, 16, 16, 16, 16 + 2, 2][gi])
            if gi == 6 and o.get('xearly', 1): stage_y()
            if gi in (0, 2, 4, 7): self.mark(3 + [0, 2, 4, 7].index(gi))
            a('s_barrier')
            hb = (gi % 2) * L.GRP
            for x in range(4):
                dsts = []
                if mat == 'o':
                    for p in range(2):
                        t = 2 * x + p
                        dsts.append((vr, (TMP if t == 0 else 40) if (t, b) in WO_SPILL else wo_frag(t, b)))
                    offs = [0, 2112, 8448, 10560]; xo = 64 * x
                    if x == 0: a(f'v_add_u32 v{VTA}, {hb}, v{VTO}')
                else:
                    offs = [0, 1056, 512, 1568]; xo = 0
                    a(f's_xor_b32 s21, {S_W}, {x}\ns_mul_i32 s21, s21, {L.BLK}\ns_add_u32 s21, s21, {hb}\nv_add_u32 v{VTA}, s21, v{VTQ}')
                    for p in range(2):
                        f = (mat, 2 * x + b, p)
                        if f in AGF: dsts.append((ar, 8 * AGF.index(f)))
                        else:
                            if f not in park: park[f] = TMP if (f[1], f[2]) == (6, 0) else (16 if (f[1], f[2]) == (6, 1) else parkregs.pop(0))
                            if park[f] < 0: dsts.append((ar, -park[f] - 1)); todo.insert(0, (f, park[f]))
                            else: dsts.append((vr, park[f])); todo.append((f, park[f]))
                for p in range(2):
                    rf, d = dsts[p]
                    for r in range(4):
                        a(f'ds_read_b64_tr_b16 {rf(d + 2 * r, 2)}, v{VTA} offset:{xo + offs[r] + 32 * p}')
            if gi == 7 and not o.get('xearly', 1):
                a.wait(vm=0); stage_y()
            a.wait(lgkm=0)
            if gi == 0:
                for i in range(2):
                    for hh in range(2):
                        a(f'ds_write_b128 v{tv("x0")}, {vr((TMP if i == 0 else 40) + 4 * hh, 4)} offset:{16384 + 8192 * i + 1024 * hh}')
            a('s_barrier')
            if gi == 5 and o.get('xearly', 1): stage_x()
            if gi + 2 < 8: issue(gi + 2)
            if gi == 5 and not o.get('xearly', 1): stage_x()
            if gi == 2: self.signal_init(barrier=False)
            if gi == 6: flush(8)
            if gi == 7: flush(8)
        assert not todo and len(self.ldsf_off) == 16
        a.wait(lgkm=0)
        a.auto_vm = True; a.forget()
        a(f'v_mov_b32 v{V_WV2}, v6')
        for n, d in [('l16', V_L16), ('ist', V_IST), ('pub', V_PUB), ('x0', V_X0), ('x1', V_X0 + 1), ('x2', V_X0 + 2), ('x3', V_X0 + 3),
                     ('f', V_F), ('smw', V_SMW), ('ow', V_OW), ('wv', V_WV), ('idx', V_IDX), ('one', V_ONE)] + \
                    [(f'selr{i}', SELR + i) for i in range(4)] + [(f'selv{i}', SELV + i) for i in range(2)] + \
                    [('selq', SELQ), ('selq', SELQ + 3), ('selk', SELK), ('selk', SELK + 3)]:
            a(f'v_mov_b32 v{d}, v{tv(n)}')
        for d in (SELQ + 1, SELQ + 2, SELK + 1, SELK + 2): a(f'v_mov_b32 v{d}, 0')
        self.dump_marks(T + 4)
        self.tstamp(1, T + 4)
        self.note(3, T + 4)
        a(f's_cmp_eq_u32 {S_RDY}, 1\ns_cbranch_scc1 L_R_ready')
        self.wait_init(t0=T + 4)
        a(f's_cmp_ge_u32 s21, 32\ns_cselect_b32 {S_FAST}, 1, 0')
        a(f'buffer_store_dword v140, v{V_PUB}, {WS}, {S_PUBB} offen sc1')
        self.spin_flag(V_FLAG, f'v{V_Z}', S_FKV)
        first_records(V_L16)
        a(f's_add_u32 s21, {S_FKV}, 2048')
        self.spin_flag(V_FLAG, f'v{V_Z}', 's21')
        a('L_R_ready:')
        a.wait(vm=0)
        a.forget()
        if o.get('force_slow'): a(f's_mov_b32 {S_FAST}, 0')
        a(f's_add_u32 {S_FKV}, {S_FKV}, 2048\nv_mov_b32 v{V_FLAG}, 1')
        for r in range(M, M + 8, 2): a(f'v_mov_b64 {vr(r,2)}, -1')
        a(f's_lshl_b32 s21, {S_RANK}, 6\ns_add_u32 s21, s21, {hex(L.F_RS)}\ns_cmp_eq_u32 {S_W}, 0\ns_cselect_b32 s21, s21, {hex(L.OOB)}')
        a(f'buffer_store_dword v{V_F}, v{V_ONE}, {WS}, s21 offen sc1')
        self.tstamp(2, T + 4)
        self.tstamp(3, T + 4)
        self.note(4, T + 4)
        if o.get('stamp'):
            a('s_memtime s[80:81]\ns_memrealtime s[28:29]'); a.wait(lgkm=0)
        a('s_mov_b32 s26, 0x3f803f80\ns_mov_b32 s27, 0x3f803f80\ns_mov_b32 s8, 0x3f003f00\ns_mov_b32 s9, 0x3f003f00')
        a(f'ds_write_b64 v{V_OW}, {vr(M,2)}')
        a.wait(lgkm=0)
        a(f's_cmp_eq_u32 {S_FAST}, 0\ns_cbranch_scc1 L_R_slow')
        if o.get('nostag'):
            self.r_loop('f', '')
        else:
            for w in range(1, 4): a(f's_cmp_eq_u32 {S_W}, {w}\ns_cbranch_scc1 L_R_w{w}')
            for w in range(4):
                if w: a(f'L_R_w{w}:')
                self.r_loop('f' + (str(w) if w else ''), '', wv=w)
        a('L_R_slow:')
        self.r_loop('s', 'sc1')

    def spin_flag(self, dst, voff, soff):
        a = self.a
        lab = a.newlabel('sf'); ok = a.newlabel('sfok')
        sv = a.auto_vm; a.auto_vm = False
        a(f'''
        s_mov_b32 s23, {SPIN}
        {lab}:
        buffer_load_dword v{dst}, {voff}, {WS}, {soff} offen sc1
        s_waitcnt vmcnt(0)
        v_cmp_ne_u32 vcc, 0, v{dst}
        s_cbranch_vccnz {ok}
        s_sleep 2
        s_sub_u32 s23, s23, 1
        s_cbranch_scc0 {lab}
        s_mov_b32 {SPIN}, 0x400
        {ok}:
        ''')
        a.auto_vm = sv; a.vq = []

    def poll(self, tag, dst, voff, soff, pre, check, shadow, nchk, mid=None, nmid=0, blk=None):
        a = self.a
        lab = f'L_poll_{tag}'; ok = f'L_pok_{tag}'
        def issue():
            a(f'buffer_load_dwordx4 {vr(dst,4)}, v{voff}, {WS}, {soff} offen {self.pf}')
            a(f'buffer_load_dwordx4 {vr(dst+4,4)}, v{voff}, {WS}, {soff} offen offset:1024 {self.pf}')
        pre()
        if blk:
            gap, cover, fill = blk
            issue()
            if mid: mid()
            for i in range(gap): fill()
            a(f's_mov_b32 s23, {SPIN}')
            issue()
            for i in range(cover): fill()
            a(f's_branch L_pw_{tag}\n{lab}:')
            a(f's_sub_u32 s23, s23, 1\ns_cbranch_scc1 L_pto_{tag}')
            issue()
            a(f'L_pw_{tag}:\ns_waitcnt vmcnt(2)')
            check(); shadow()
            a(f's_cbranch_vccnz {lab}\n{ok}:')
            self.late.append(f'L_pto_{tag}:\ns_mov_b32 {SPIN}, 0x400\ns_waitcnt vmcnt(0)\n@SH@s_branch {ok}')
            self.late_sh.append(shadow)
            return
        if mid:
            issue(); mid()
            for r in range(nmid):
                check(); shadow()
                a(f's_cbranch_vccz {ok}')
        a(f's_mov_b32 s23, {SPIN}')
        a(f'{lab}:')
        issue()
        for r in range(nchk - 1):
            check(); shadow()
            a(f's_cbranch_vccz {ok}')
        a(f's_sub_u32 s23, s23, 1\ns_cbranch_scc1 L_pto_{tag}')
        check(); shadow()
        a(f's_cbranch_vccnz {lab}\n{ok}:')
        self.late.append(f'L_pto_{tag}:\ns_mov_b32 {SPIN}, 0x400\ns_waitcnt vmcnt(0)\n@SH@s_branch {ok}')
        self.late_sh.append(shadow)

    def poll2(self, tag, dst, soff, chores, t0, t1, t2, fill, check, shadow, retry=None):
        a = self.a
        lab = f'L_poll_{tag}'; ok = f'L_pok_{tag}'
        def issue():
            a(f'buffer_load_dwordx4 {vr(dst,4)}, v{V_L16}, {WS}, {soff} offen {self.pf}')
            a(f'buffer_load_dwordx4 {vr(dst+4,4)}, v{V_L16}, {WS}, {soff} offen offset:1024 {self.pf}')
        def spend(t, flush=False):
            while chores and (flush or chores[0][0] <= t + 4):
                c, f = chores.pop(0); f(); t -= c
            while t >= 12: fill(); t -= 16
        spend(t0); issue()
        spend(t1 - 40); issue()
        spend(t2 - 40, flush=True)
        a(f's_mov_b32 s23, {SPIN}\ns_branch L_pw_{tag}\n{lab}:')
        a(f's_sub_u32 s23, s23, 1\ns_cbranch_scc1 L_pto_{tag}')
        issue()
        if retry: retry()
        a(f'L_pw_{tag}:\ns_waitcnt vmcnt(2)')
        check(); shadow()
        a(f's_cbranch_vccnz {lab}\n{ok}:')
        self.late.append(f'L_pto_{tag}:\ns_mov_b32 {SPIN}, 0x400\ns_waitcnt vmcnt(0)\n@SH@s_branch {ok}')
        self.late_sh.append((lambda: (retry(), shadow())) if retry else shadow)

    def stamp(self, i):
        if self.o.get('stamp') and (self.o.get('smask', 0x3ff) >> i) & 1: self.a.raw(f'    {"s_memrealtime" if self.o.get("rt") else "s_memtime"} s[{82+2*i}:{83+2*i}]')

    def dump_stamps(self, tg):
        a = self.a
        if not self.o.get('stamp'): return
        lab = f'L_nodump_{tg}'
        a(f's_cmp_lg_u32 {S_S}, {self.o.get("dstep", 41)}\ns_cbranch_scc1 {lab}\ns_waitcnt lgkmcnt(0)')
        a(f's_lshl_b32 s21, {S_RANK}, 8\ns_lshl_b32 s22, {S_W}, 6\ns_add_u32 s21, s21, s22\ns_add_u32 s21, s21, {hex(L.DBG)}')
        a(f'v_mov_b32 v{T+10}, 0')
        for i in range(10):
            a(f'v_mov_b32 v{T+11}, s{82+2*i}\nbuffer_store_dword v{T+11}, v{T+10}, {WS}, s21 offen offset:{4*i}')
        a(f's_waitcnt vmcnt(0)\n{lab}:')

    def r_loop(self, tg, cf, wv=0):
        a = self.a; o = self.o
        mf16 = 'v_mfma_f32_16x16x16_bf16'; mf32 = 'v_mfma_f32_16x16x32_bf16'
        cvt = 'v_cvt_pk_bf16_f32'
        QP = 'quad_perm:[2,3,0,1] row_mask:0xf bank_mask:0xf'
        dum = lambda n=1: [a(a.dummy) for _ in range(n)]
        self.late = []; self.late_sh = []; self.fixups = []
        self.pf = 'nt' if (not cf and o.get('pollnt')) else 'sc1'
        a.auto_vm = False
        B0, B1, B2 = WVB, WVB + 8, M
        ACC = {'q': AQ, 'k': AK, 'v': AV}
        def S(m, k, p, buf=None):
            f = (m, k, p)
            self.smf(ACC[m] + 4 * p, M + 4 * k, ar(8 * AGF.index(f), 8) if buf is None else vr(buf, 8))
        def V(k, p, buf=None): S('v', k, p, buf)
        def RD(buf, m, k, p, hh):
            off = self.ldsf_off[(m, k, p)]
            a(f'ds_read_b128 {vr(buf + 4*hh, 4)}, v{V_WV if off < 65536 else V_WV2} offset:{off % 65536 + hh*1024}')
        def RD2(buf, m, k, p): RD(buf, m, k, p, 0); RD(buf, m, k, p, 1)
        def pkadd(d, x, y): a(f'v_add_f32 v{d}, v{x}, v{y}\nv_add_f32 v{d+1}, v{x+1}, v{y+1}')
        def PK(d, x, y): a(f'v_pk_add_f32 {vr(d,2)}, {vr(x,2)}, {vr(y,2)}')
        def add(d, x, y): a(f'v_add_f32 v{d}, v{x}, v{y}')
        def dmf(r):
            m = o.get('fillm', 2)
            if m == 1 or (m == 2 and r == M + 8): a('s_nop 3')
            elif m == 3: a(f's_nop 2\n{a.dummy}')
            elif m == 4: a(f'{mf16} {vr(r,4)}, s[26:27], s[26:27], 0' if False else f'{mf16} {vr(r,4)}, {vr(SELQ+2,2)}, {vr(SELQ,2)}, 0')
            else: a(f'{mf16} {vr(r,4)}, {vr(SELQ,2)}, {vr(SELQ,2)}, {vr(r,4)}')
        def filt(line):
            st = 'buffer_store' in line and ('s75' in line or 's76' in line) and 'sc1' in line
            ld = 'buffer_load' in line and ('s67' in line or 's68' in line)
            if o.get('nost') and st: return None
            if o.get('nofst') and st and 's76' in line: return None
            if o.get('nold') and ld: return None
            if o.get('nofld') and ld and 's68' in line: return None
            if o.get('ldplain') and ld and 's67' in line: return line.replace(' sc1', '')
            if o.get('ldnt') and ld and 's67' in line: return line.replace(' sc1', ' nt')
            if o.get('stplain') and st: return line.replace(' sc1', '')
            if o.get('novm') and 'vmcnt' in line: return None
            if o.get('nowarm') and 'buffer_load_dword v27' in line: return 's_nop 0'
            if o.get('novmh') and 'buffer_store_dwordx2' in line: return None
            return line
        PA = M + 8; R = T + 8
        spin = f'L_kvspin_{tg}'; back = f'L_kvback_{tg}'
        def preload():
            RD2(M + 24, 'q', 0, 0); RD2(M + 16, 'q', 0, 1); RD2(B0, 'q', 1, 0); RD2(B1, 'q', 1, 1); RD2(T, 'k', 0, 0)
        def slackB():
            a(f'v_cmp_eq_u32 vcc, 0, v{V_FLAG}')
            for r in range(0, 8, 2): a(f'v_mov_b64 {vr(VXC+r,2)}, {vr(VXN+r,2)}')
            a(f's_xor_b32 {S_INP}, {S_INP}, 0x40000')
            a(f's_cbranch_vccnz {spin}\n{back}:')
            a(f"""
            s_cmp_lt_u32 {S_S}, 63
            s_cselect_b32 {S_T0}, {0 if o.get("nopf") else 32*24576}, 0
            s_add_u32 {S_REC}, {S_REC}, {S_T0}
            s_cmp_lt_u32 {S_S}, 62
            s_cselect_b32 {S_T0}, 2048, 0
            s_add_u32 {S_FKV}, {S_FKV}, {S_T0}
            s_cmp_ge_u32 {S_S}, 2
            s_cselect_b32 {S_T1}, {S_FM}, {hex(L.OOB)}
            s_cmp_ge_u32 {S_S}, 1
            s_cselect_b32 {S_T0}, {S_KVM}, {hex(L.OOB)}
            s_add_u32 {S_FM}, {S_FM}, 2048
            s_add_u32 {S_KVM}, {S_KVM}, 131072
            s_lshr_b32 {S_TAG}, {S_S}, 1
            s_and_b32 {S_TAG}, {S_TAG}, 1
            s_sub_u32 {S_NTAG}, {S_TAG}, 1
            s_add_u32 {S_IN1}, {S_IN0}, 32768
            s_and_b32 {S_OTAG}, {S_S}, 1
            s_sub_u32 {S_NOTAG}, {S_OTAG}, 1
            """)
            if o.get('steplog') and wv == 0 and tg != 's':
                a(f's_memrealtime s[82:83]\ns_lshl_b32 s84, {S_S}, 2\ns_lshl_b32 s85, {S_RANK}, 8\ns_add_u32 s84, s84, s85\ns_add_u32 s84, s84, {hex(L.DBG + 131072)}')
                a(f's_waitcnt lgkmcnt(0)\nv_mov_b32 v{V_DUM}, s82\nbuffer_store_dword v{V_DUM}, v{V_ONE}, {WS}, s84 offen')
            if o.get('zB'):
                for r in range(AQ, AQ + 24, 2): a(f'v_mov_b64 {vr(r,2)}, 0')
            if o.get('barB'): dmf(PA); a('s_barrier')
            for i in range(o.get('dB', 8) if wv >= 2 else o.get('dB0', o.get('dB', 8))): dmf(PA + 4 * (i % 2))
        def checkB():
            if not o.get('shortchk'):
                a(f"""
                v_max3_u32 v{R}, v{M}, v{M+1}, v{M+2}
                v_max3_u32 v{R+1}, v{M+3}, v{M+4}, v{M+5}
                v_max3_u32 v{R}, v{R}, v{M+6}, v{M+7}
                v_max_u32 v{R}, v{R}, v{R+1}
                """)
            else:
                a(f'v_max_u32 v{R}, v{M}, v{M+7}')
            a(f'v_cmp_eq_u32 vcc, -1, v{R}')
        def shadowB():
            if o.get('specw', 1): a(f'ds_write_b128 v{V_X0}, {vr(M,4)}')
            else: dmf(PA); a('s_nop 2')
        preload()
        for r in range(AQ, AQ + 24, 2): a(f'v_mov_b64 {vr(r,2)}, 0')
        a(f's_xor_b32 {S_INP}, {S_INP}, 0x40000')
        a.wait(lgkm=0)
        a(f'L_Rloop_{tg}:')
        a.forget()
        a.hot = True
        a.filt = filt
        sa = lambda txt: [(4, lambda l=l: a(l)) for l in txt.strip().split('\n')]
        va = lambda lines: [(8, lambda l=l: a(l)) for l in lines]
        if True:
            chB = [(44, lambda: a(f'v_cmp_eq_u32 vcc, 0, v{V_FLAG}\ns_cbranch_vccnz {spin}\n{back}:'))]
            chB += va([f'v_mov_b64 {vr(VXC+r,2)}, {vr(VXN+r,2)}' for r in range(0, 8, 2)])
            chB += sa(f"""
            s_xor_b32 {S_INP}, {S_INP}, 0x40000
            s_cmp_lt_u32 {S_S}, 63
            s_cselect_b32 {S_T0}, {0 if o.get("nopf") else 32*24576}, 0
            s_add_u32 {S_REC}, {S_REC}, {S_T0}
            s_cmp_lt_u32 {S_S}, 62
            s_cselect_b32 {S_T0}, 2048, 0
            s_add_u32 {S_FKV}, {S_FKV}, {S_T0}
            s_cmp_ge_u32 {S_S}, 2
            s_cselect_b32 {S_T1}, {S_FM}, {hex(L.OOB)}
            s_cmp_ge_u32 {S_S}, 1
            s_cselect_b32 {S_T0}, {S_KVM}, {hex(L.OOB)}
            s_add_u32 {S_FM}, {S_FM}, 2048
            s_add_u32 {S_KVM}, {S_KVM}, 131072
            s_lshr_b32 {S_TAG}, {S_S}, 1
            s_and_b32 {S_TAG}, {S_TAG}, 1
            s_sub_u32 {S_NTAG}, {S_TAG}, 1
            s_add_u32 {S_IN1}, {S_IN0}, 32768
            s_and_b32 {S_OTAG}, {S_S}, 1
            s_sub_u32 {S_NOTAG}, {S_OTAG}, 1
            """)
            if o.get('steplog') and wv == 0 and tg != 's':
                chB.append((60, lambda: (a(f's_memrealtime s[82:83]\ns_lshl_b32 s84, {S_S}, 2\ns_lshl_b32 s85, {S_RANK}, 8\ns_add_u32 s84, s84, s85\ns_add_u32 s84, s84, {hex(L.DBG + 131072)}'),
                    a(f's_waitcnt lgkmcnt(0)\nv_writelane_b32 v{V_DUM}, s82, 0\nglobal_store_dword v{V_ONE}, v{V_DUM}, s[4:5]' if False else f's_waitcnt lgkmcnt(0)'))))
            if not o.get('split', 1):
                self.poll2('B' + tg, M, S_MEMP, chB, o.get('tB0', 200), o.get('tB1', 180), o.get('tB2', 100), lambda: dmf(PA), checkB, shadowB)
            else:
                ld = lambda i: a(f'buffer_load_dwordx4 {vr(M+4*i,4)}, v{V_L16}, {WS}, {S_MEMP} offen offset:{1024*i} {self.pf}')
                def spend(t, flush=False):
                    while chB and (flush or chB[0][0] <= t + 4):
                        c, f = chB.pop(0); f(); t -= c
                    while t >= 12: dmf(PA); t -= 16
                def chk(i):
                    a(f'v_max3_u32 v{R}, v{M+4*i}, v{M+4*i+1}, v{M+4*i+2}\nv_max_u32 v{R}, v{R}, v{M+4*i+3}\nv_cmp_eq_u32 vcc, -1, v{R}')
                g = o.get('tBg', 32)
                spend(o.get('tB0', 170)); ld(0); spend(g); ld(1)
                spend(o.get('tB1', 180) - 40 - g); ld(0); spend(g); ld(1)
                spend(o.get('tB2', 100) - 40 - g, flush=True)
                a(f's_mov_b32 s23, {SPIN}\nL_pw_B{tg}:\ns_waitcnt vmcnt(3)')
                chk(0)
                a(f'ds_write_b128 v{V_X0}, {vr(M,4)}')
                S('q', 0, 0, M + 24)
                a(f's_cbranch_vccnz L_poll_B{tg}\nL_pok_B{tg}:')
                def fixB():
                    a(f'L_poll_B{tg}:\ns_sub_u32 s23, s23, 1\ns_cbranch_scc1 L_pto_B{tg}')
                    ld(0); ld(1)
                    a(f'v_mov_b64 {vr(AQ,2)}, 0\nv_mov_b64 {vr(AQ+2,2)}, 0\ns_branch L_pw_B{tg}')
                    a(f'L_pto_B{tg}:\ns_mov_b32 {SPIN}, 0x400\ns_branch L_pok_B{tg}')
                    a(f'L_pol1_B{tg}:\ns_waitcnt vmcnt(0)')
                    chk(1)
                    a(f's_cbranch_vccz L_pk1_B{tg}\ns_sub_u32 s23, s23, 1\ns_cbranch_scc1 L_pt1_B{tg}')
                    ld(1)
                    a(f's_branch L_pol1_B{tg}\nL_pt1_B{tg}:\ns_mov_b32 {SPIN}, 0x400\ns_branch L_pk1_B{tg}')
                self.fixups.append(fixB)
        if o.get('rt'): a('s_mov_b32 s84, s82')
        self.stamp(0)
        if o.get('rt'): self.dump_stamps(tg)
        wp = o.get('wpat', 5)
        ws = {0: (0, 1), 1: (1 + wv, 5 + wv), 2: (1 + 2 * (wv % 2), 2 + 2 * (wv % 2)), 3: (1 + wv % 2, 3 + wv % 2), 4: (1 + wv // 2, 3 + wv // 2),
              5: (1, 2), 6: (wv, 4 + wv), 7: (wv % 2, 2 + wv % 2), 8: (wv // 2, 2 + wv // 2)}[wp]
        wslot = [0]
        def MW():
            for i in range(2):
                if ws[i] == wslot[0] and not (i == 0 and o.get('specw', 1)): a(f'ds_write_b128 v{V_X0}, {vr(M+4*i,4)} offset:{1024*i}')
            wslot[0] += 1
        if not o.get('split', 1):
            MW()
            S('q', 0, 0, M + 24); MW()
            S('q', 0, 1, M + 16); MW()
            S('q', 1, 0, B0); MW()
            S('q', 1, 1, B1); MW()
            S('k', 0, 0, T); MW()
            S('k', 0, 1); MW()
            S('k', 1, 0); MW()
            S('k', 1, 1); MW()
        else:
            S('q', 0, 1, M + 16)
            a('s_waitcnt vmcnt(2)')
            a(f'v_max3_u32 v{R}, v{M+4}, v{M+5}, v{M+6}')
            S('k', 0, 0, T); a(f'v_max_u32 v{R}, v{R}, v{M+7}')
            S('k', 0, 1); a(f'v_cmp_eq_u32 vcc, -1, v{R}')
            V(0, 0)
            a(f's_cbranch_vccnz L_pol1_B{tg}\nL_pk1_B{tg}:')
            a(f'ds_write_b128 v{V_X0}, {vr(M+4,4)} offset:1024')
            S('q', 1, 0, B0); S('q', 1, 1, B1); S('k', 1, 0); S('k', 1, 1)
        a.wait_lds_writes()
        a('s_barrier')
        def MR(k): a(f'ds_read_b128 {vr(M+4*k,4)}, v{V_X0 + k//2} offset:{1024*(k%2)}')
        MR(2); MR(3)
        if not o.get('split', 1): V(0, 0)
        MR(4)
        V(0, 1); MR(5)
        V(1, 0); MR(6)
        V(1, 1); MR(7)
        VXL = lambda i: a(f'buffer_load_dwordx4 {vr(VXN+4*i,4)}, v{V_L16}, {WS}, {S_REC} offen offset:{2048+1024*i} sc1')
        self.stamp(1)
        vm_ops = [
            lambda: a(f'buffer_store_dwordx4 {vr(KMH,4)}, v{V_L16}, {WS}, {S_T0} offen sc1'),
            lambda: VXL(0),
            lambda: VXL(1),
            lambda: (a(f'buffer_store_dword v{V_F}, v{V_ONE}, {WS}, {S_T1} offen sc1'),
                     a(f'buffer_load_dword v{V_FLAG}, v{V_Z}, {WS}, {S_FKV} offen sc1')),
        ]
        slot = [0]
        first = o.get('vm0', 5)
        def X():
            i = slot[0] - first - wv
            if i == 0: a('s_waitcnt vmcnt(0)')
            if i >= 0 and i % 4 == 0 and i // 4 < len(vm_ops): vm_ops[i // 4]()
            slot[0] += 1
        S('q', 2, 0); RD(B0, 'k', 2, 1, 0); X()
        S('q', 3, 0); RD(B0, 'k', 2, 1, 1); X()
        S('q', 4, 0); RD(B1, 'k', 3, 1, 0); X()
        S('q', 5, 0); RD(B1, 'k', 3, 1, 1); X()
        S('q', 6, 0); RD(T, 'k', 4, 1, 0); X()
        S('q', 7, 0); RD(T, 'k', 4, 1, 1); X()
        S('q', 2, 1); X()
        S('q', 3, 1); X()
        S('q', 4, 1); X()
        assert slot[0] > first + wv
        S('q', 5, 1); RD(B2, 'k', 5, 1, 0); X(); add(AQ, AQ, AQ + 2)
        S('q', 6, 1); RD(B2, 'k', 5, 1, 1); X(); add(AQ + 1, AQ + 1, AQ + 3)
        S('q', 7, 1); X(); a(f'{cvt} v{AQ+2}, v{AQ}, v{AQ+1}')
        S('k', 2, 0); X()
        S('k', 2, 1, B0); RD(B0, 'k', 6, 1, 0); X()
        S('k', 3, 0); RD(B0, 'k', 6, 1, 1); X()
        S('k', 3, 1, B1); RD(B1, 'k', 7, 0, 0); X(); add(AQ + 4, AQ + 4, AQ + 6)
        S('k', 4, 0); RD(B1, 'k', 7, 0, 1); X(); add(AQ + 5, AQ + 5, AQ + 7)
        S('k', 4, 1, T); RD(T, 'k', 7, 1, 0); X(); a(f'{cvt} v{AQ+3}, v{AQ+4}, v{AQ+5}')
        S('k', 5, 0); RD(T, 'k', 7, 1, 1); X()
        a(f'{mf16} {vr(AQ+4,4)}, {vr(AQ+2,2)}, {vr(SELQ,2)}, 0'); X()
        a(f'{mf16} {vr(T+8,4)}, {vr(AQ+2,2)}, {vr(SELQ+2,2)}, 0'); X()
        S('k', 5, 1, B2); RD(B2, 'v', 6, 0, 0); X()
        S('k', 6, 0); RD(B2, 'v', 6, 0, 1)
        S('k', 7, 0, B1); RD(B1, 'v', 7, 0, 0); a(f'{cvt} v{AQ}, v{AQ+4}, v{AQ+5}')
        S('k', 6, 1, B0); RD(B1, 'v', 7, 0, 1); a(f'{cvt} v{AQ+1}, v{AQ+6}, v{AQ+7}\n{cvt} v{AQ+2}, v{T+8}, v{T+9}')
        S('k', 7, 1, T); RD(B0, 'v', 6, 1, 0); a(f'{cvt} v{AQ+3}, v{T+10}, v{T+11}')
        assert slot[0] > first + wv + 4 * (len(vm_ops) - 1)
        self.stamp(2)
        RD(B0, 'v', 6, 1, 1)
        add(AK, AK, AK + 2)
        a(f'{mf32} {vr(AQ+4,4)}, {vr(KX,4)}, {vr(AQ,4)}, 0')
        add(AK + 1, AK + 1, AK + 3)
        a(f'{cvt} v{AK+2}, v{AK}, v{AK+1}')
        a(f'{mf32} {vr(T+8,4)}, {vr(KX+4,4)}, {vr(AQ,4)}, 0')
        pkadd(AK + 4, AK + 4, AK + 6)
        a(f'{cvt} v{AK+3}, v{AK+4}, v{AK+5}')
        a(f'{mf16} {vr(AK+4,4)}, {vr(AK+2,2)}, {vr(SELK,2)}, 0')
        a(f'{mf16} {vr(T,4)}, {vr(AK+2,2)}, {vr(SELK+2,2)}, 0')
        kslot = [0]
        def KL():
            i = kslot[0] - wv
            if i in (0, 4): a(f'buffer_load_dwordx4 {vr(KX+i,4)}, v{V_L16}, {WS}, {S_REC} offen offset:{256*i} sc1')
            kslot[0] += 1
        for i in range(4): a(f'v_cndmask_b32 v{AK+i}, v{T+8+i}, v{AQ+4+i}, {S_LO}')
        a(f'{cvt} v{KMH}, v{AK+4}, v{AK+5}\n{cvt} v{KMH+1}, v{AK+6}, v{AK+7}')
        a(f'{cvt} v{KMH+2}, v{T}, v{T+1}\n{cvt} v{KMH+3}, v{T+2}, v{T+3}')
        a(f'{mf32} {vr(T+4,4)}, {vr(KMH,4)}, {vr(AQ,4)}, 0')
        V(2, 0)
        a(f'ds_write_b128 v{V_X0}, {vr(AK,4)} offset:8192')
        a(f'v_cndmask_b32 v{T+4}, v{T+5}, v{T+4}, {S_LO}')
        V(2, 1)
        a(f'ds_write_b32 v{V_SMW}, v{T+4}')
        self.stamp(3)
        B3 = M + 8
        ONES, HALF = B2, B2 + 4
        V(3, 0); KL()
        V(3, 1); RD(B3, 'v', 7, 1, 0); KL()
        V(6, 0, B2); RD(B3, 'v', 7, 1, 1); KL()
        V(6, 1, B0); KL()
        if o.get('vb', 4) > 4: V(7, 0, B1)
        a.wait_lds_writes()
        a('s_barrier')
        SX = [T + 4, T + 8, AQ + 4]
        SR = lambda x: a(f'ds_read_b128 {vr(SX[x-1],4)}, v{V_X0+x} offset:8192')
        SR(1)
        if o.get('vb', 4) <= 4: V(7, 0, B1)
        SR(2); SR(3)
        V(4, 0); a(f'ds_read_b128 {vr(T,4)}, v{V_F} offset:1024'); a(f'v_mov_b64 {vr(ONES,2)}, s[26:27]')
        V(4, 1); KL(); a(f'v_mov_b64 {vr(ONES+2,2)}, s[26:27]')
        V(5, 0); KL(); a(f'v_mov_b64 {vr(HALF,2)}, s[8:9]')
        V(7, 1, B3); KL()
        V(5, 1); KL()
        WOS = lambda i, hh: a(f'ds_read_b128 {vr(WVB+8*i+4*hh,4)}, v{V_X0} offset:{16384+8192*i+1024*hh}')
        zs = list(range(M + 8, M + 32, 2)) + list(range(M, M + 8, 2))
        def Z(n):
            for _ in range(n): a(f'v_mov_b64 {vr(zs.pop(0),2)}, 0')
        self.stamp(4)
        pkadd(AK, AK, SX[0]); pkadd(AK + 2, AK + 2, SX[0] + 2)
        PK(SX[1], SX[1], SX[2]); PK(SX[1] + 2, SX[1] + 2, SX[2] + 2)
        PK(T, T, T + 2)
        PK(AK, AK, SX[1]); PK(AK + 2, AK + 2, SX[1] + 2)
        add(T, T, T + 1)
        mx, t2 = T + 2, T + 3
        a(f'v_max3_f32 v{mx}, v{AK}, v{AK+1}, v{AK+2}\nv_max3_f32 v{mx}, v{mx}, v{AK+3}, v{T}')
        PK(AV, AV, AV + 2); PK(AV + 4, AV + 4, AV + 6)
        a(f'v_max_f32_dpp v{t2}, v{mx}, v{mx} {QP}\nv_max_f32_dpp v{mx}, v{mx}, v{mx} {QP}')
        a(f'{cvt} v{AV+2}, v{AV}, v{AV+1}\n{cvt} v{AV+3}, v{AV+4}, v{AV+5}')
        a(f'v_permlane16_swap_b32 v{mx}, v{t2}\nv_max_f32 v{T+1}, v{mx}, v{t2}\nv_max_f32 v{mx}, v{mx}, v{t2}')
        a(f'{mf16} {vr(AV+4,4)}, {vr(SELV,2)}, {vr(AV+2,2)}, 0')
        WOS(0, 0)
        a(f'v_permlane32_swap_b32 v{mx}, v{T+1}\nv_max_f32 v{mx}, v{mx}, v{T+1}\nv_mul_f32 v{mx}, {S_SC}, v{mx}')
        E = [AK, AK + 1, AK + 2, AK + 3, T]
        for e in E: a(f'v_fma_f32 v{e}, v{e}, {S_SC}, -v{mx}')
        for e in E: a(f'v_exp_f32 v{e}, v{e}')
        BX, PM = AQ, T + 6
        a(f'{cvt} v{T+8}, v{AK}, v{AK+1}\n{cvt} v{T+9}, v{AK+2}, v{AK+3}')
        a(f"""
        v_cndmask_b32 v{BX}, 0, v{T+8}, {S_LO}
        v_cndmask_b32 v{BX+1}, 0, v{T+9}, {S_LO}
        v_cndmask_b32 v{BX+2}, v{T+8}, 0, {S_LO}
        v_cndmask_b32 v{BX+3}, v{T+9}, 0, {S_LO}
        v_mov_b32_dpp v{T+1}, v{T} {QP}
        {cvt} v{VMH}, v{AV+4}, v{AV+5}
        """)
        D, D2, DL = AQ + 4, AK + 4, T + 8
        a(f'{mf32} {vr(DL,4)}, {vr(ONES,4)}, {vr(BX,4)}, 0')
        WOS(0, 1)
        a(f'{cvt} v{T+4}, v{T}, v{T+1}\n{cvt} v{T+5}, v{T+1}, v{T}')
        a(f'{mf32} {vr(D2,4)}, {vr(VXC+4,4)}, {vr(BX,4)}, 0')
        WOS(1, 0)
        a(f'v_cndmask_b32 v{PM}, 0, v{T+4}, {S_LO}\nv_cndmask_b32 v{PM+1}, v{T+5}, 0, {S_LO}')
        a(f'{mf32} {vr(D,4)}, {vr(VXC,4)}, {vr(BX,4)}, 0')
        WOS(1, 1)
        a(f'{cvt} v{VMH+1}, v{AV+6}, v{AV+7}')
        a(f'{mf16} {vr(DL,4)}, {vr(HALF,2)}, {vr(PM,2)}, {vr(DL,4)}')
        Z(1)
        a(f'{mf16} {vr(D,4)}, {vr(VMH,2)}, {vr(PM,2)}, {vr(D,4)}')
        Z(o.get('zpv', 5))
        l = DL + 1
        a(f'v_add_f32_dpp v{l}, v{DL}, v{DL} {QP}\nv_rcp_f32 v{l}, v{l}')
        for i in range(4): a(f'v_add_f32_dpp v{D+i}, v{D2+i}, v{D+i} {QP}')
        for i in (0, 2): a(f'v_pk_mul_f32 {vr(D+i,2)}, {vr(D+i,2)}, {vr(l-1,2)} op_sel:[0,1] op_sel_hi:[1,1]')
        tagx = not o.get('bar3')
        a(f'{cvt} v{T}, v{D}, v{D+1}\n{cvt} v{T+1}, v{D+2}, v{D+3}')
        if tagx: a(f'v_and_or_b32 v{T}, v{T}, -2, {S_OTAG}')
        self.stamp(5)
        a(f'ds_write_b64 v{V_OW}, {vr(T,2)}')
        a(f's_cmp_eq_u32 {S_S}, 63\ns_cbranch_scc1 L_Rtail_{tg}')
        OA = AK
        def oread(): a(f'ds_read_b128 {vr(OA,4)}, v{V_F} offset:3072\nds_read_b128 {vr(OA+4,4)}, v{V_F} offset:5120')
        def ocheck():
            a(f'v_bitop3_b32 v{T+2}, v{OA}, v{OA+2}, {S_NOTAG} bitop3:0x42')
            a(f'v_bitop3_b32 v{T+3}, v{OA+4}, v{OA+6}, {S_NOTAG} bitop3:0x42')
            a(f'v_bitop3_b32 v{T+2}, v{T+2}, v{T+3}, 1 bitop3:0x80')
            a(f'v_cmp_eq_u32 vcc, 0, v{T+2}')
        if tagx:
            n1 = min(o.get('z3', 7), len(zs))
            Z(n1)
            for _ in range(o.get('z3', 7) - n1): a('s_nop 1')
            oread(); Z(len(zs))
        else:
            Z(min(6, len(zs)))
            a.wait_lds_writes()
            a('s_barrier')
            oread()
            Z(len(zs))
        self.stamp(6)
        def wo(t, kb):
            fr = WVB + 8 * WO_SPILL.index((t, kb)) if (t, kb) in WO_SPILL else wo_frag(t, kb)
            self.smf(M + 4 * t, OA + 4 * kb, vr(fr, 8))
        def fa(t, i): add(M + 4 * t + i, M + 4 * t + i, M + 4 * t + 2 + i)
        def fc(t): a(f'{cvt} v{AQ+t}, v{M+4*t}, v{M+4*t+1}')
        def tagit(r): a(f'v_and_or_b32 v{r}, v{r}, -2, {S_TAG}')
        a(f'L_wo_{tg}:')
        if tagx:
            wo(0, 0); a(f'v_bitop3_b32 v{T+2}, v{OA}, v{OA+2}, {S_NOTAG} bitop3:0x42')
            wo(1, 0); a(f'v_bitop3_b32 v{T+3}, v{OA+4}, v{OA+6}, {S_NOTAG} bitop3:0x42')
            wo(0, 1); a(f'v_bitop3_b32 v{T+2}, v{T+2}, v{T+3}, 1 bitop3:0x80')
            wo(1, 1); a(f'v_cmp_eq_u32 vcc, 0, v{T+2}')
            wo(2, 0); wo(2, 1); wo(3, 0)
            a(f's_cbranch_vccnz L_ofix_{tg}')
            wo(3, 1)
            def fix():
                a(f'L_ofix_{tg}:\ns_mov_b32 s23, {SPIN}\nL_ofix2_{tg}:')
                a.forget(vm=False)
                oread(); a.wait(lgkm=0); ocheck()
                a(f's_cbranch_vccz L_ofix3_{tg}\ns_sub_u32 s23, s23, 1\ns_cbranch_scc0 L_ofix2_{tg}\ns_xor_b32 {S_NOTAG}, {S_NOTAG}, v_never' if False else
                  f's_cbranch_vccz L_ofix3_{tg}\ns_sub_u32 s23, s23, 1\ns_cbranch_scc0 L_ofix2_{tg}\ns_endpgm\nL_ofix3_{tg}:')
                for r in range(M, M + 16, 2): a(f'v_mov_b64 {vr(r,2)}, 0')
                a(f's_branch L_wo_{tg}')
            self.fixups.append(fix)
        else:
            wo(0, 0); wo(1, 0); wo(0, 1); wo(1, 1); wo(2, 0); wo(2, 1); wo(3, 0); wo(3, 1)
        wo(4, 0); fa(0, 0); fa(0, 1); fa(1, 0)
        wo(4, 1); fa(1, 1); fc(0); fc(1)
        wo(5, 0); fa(2, 0); fa(2, 1); tagit(AQ)
        wo(5, 1); fa(3, 0); fa(3, 1); fc(2)
        wo(6, 0); fc(3)
        wo(6, 1)
        a(f'buffer_store_dwordx4 {vr(AQ,4)}, v{V_IST}, {WS}, {S_IN0} offen {cf}')
        wo(7, 0); fa(4, 0)
        wo(7, 1); fa(4, 1); fc(4); fa(5, 0); fa(5, 1); tagit(AQ + 4); fc(5)
        PK(M + 24, M + 24, M + 26); fc(6); PK(M + 28, M + 28, M + 30); fc(7)
        a(f'buffer_store_dwordx4 {vr(AQ+4,4)}, v{V_IST}, {WS}, {S_IN1} offen {cf}')
        self.stamp(7)
        def pack_kvm():
            a(f's_mov_b64 vcc, {S_LO}')
            for i in range(4):
                qp = '[0,0,0,2]' if i < 2 else '[0,0,1,3]'
                a(f'v_cndmask_b32_dpp v{KMH+i}, v{VMH+i%2}, v{KMH+i}, vcc quad_perm:{qp} row_mask:0xf bank_mask:0xf')
        self.pack_kvm = pack_kvm
        def preA():
            a(f"""
            v_mov_b32 v{PA}, {S_NTAG}
            v_mov_b32 v{PA+4}, {S_NTAG}
            """)
            for i in range(o.get('dA', 4) if wv >= 2 else o.get('dA0', o.get('dA', 4))): dmf(R)
        def slackA():
            preload()
            pack_kvm()
            a(f"""
            s_add_u32 {S_S}, {S_S}, 1
            s_xor_b32 {S_IN0}, {S_IN0}, 0x40000
            s_and_b32 {S_T0}, {S_S}, 3
            s_lshl_b32 {S_T0}, {S_T0}, 13
            v_mov_b64 {vr(M,2)}, -1
            s_andn2_b32 {S_PUBB}, {S_PUBB}, 0x6000
            s_andn2_b32 {S_MEMP}, {S_MEMP}, 0x6000
            v_mov_b64 {vr(M+2,2)}, -1
            s_or_b32 {S_MEMP}, {S_MEMP}, {S_T0}
            s_xor_b32 {S_RST}, {S_T0}, 0x4000
            v_mov_b64 {vr(M+4,2)}, -1
            s_or_b32 {S_RST}, {S_RST}, {S_PUBB}
            s_or_b32 {S_PUBB}, {S_PUBB}, {S_T0}
            v_mov_b64 {vr(M+6,2)}, -1
            """)
            if not o.get('zB'):
                for r in range(AQ, AQ + 24, 2): a(f'v_mov_b64 {vr(r,2)}, 0')
            a.wait(lgkm=0)
        def checkA():
            a(f"""
            v_bitop3_b32 v{VXC}, v{PA}, v{PA+4}, {S_NTAG} bitop3:0x42
            v_and_b32 v{VXC}, 1, v{VXC}
            v_cmp_eq_u32 vcc, 0, v{VXC}
            """)
        def shadowA():
            a(f'v_smfmac_f32_16x16x64_bf16 {vr(R,4)}, {vr(SELR,4)}, {vr(PA,8)}, v{V_IDX} abid:1')
        if True:
            pl = [(M + 24, 'q', 0, 0), (M + 16, 'q', 0, 1), (B0, 'q', 1, 0), (B1, 'q', 1, 1), (T, 'k', 0, 0)]
            chA = [(40, pack_kvm)]
            chA += sa(f"""
            s_add_u32 {S_S}, {S_S}, 1
            s_xor_b32 {S_IN0}, {S_IN0}, 0x40000
            s_and_b32 {S_T0}, {S_S}, 3
            s_lshl_b32 {S_T0}, {S_T0}, 13
            s_andn2_b32 {S_PUBB}, {S_PUBB}, 0x6000
            s_andn2_b32 {S_MEMP}, {S_MEMP}, 0x6000
            s_or_b32 {S_MEMP}, {S_MEMP}, {S_T0}
            s_xor_b32 {S_RST}, {S_T0}, 0x4000
            s_or_b32 {S_RST}, {S_RST}, {S_PUBB}
            s_or_b32 {S_PUBB}, {S_PUBB}, {S_T0}
            """)
            zz = [f'v_mov_b64 {vr(r,2)}, 0' for r in range(AQ, AQ + 24, 2)] + [f'v_mov_b32 v{M}, -1']
            for k in range(10):
                chA.append((16, lambda k=k: (RD(*pl[k // 2], k % 2), a(zz[k]))))
            chA += va(zz[10:])
            chA.append((4, lambda: a.wait(lgkm=0)))
            zr = lambda: a(f'v_mov_b64 {vr(R,2)}, 0\nv_mov_b64 {vr(R+2,2)}, 0')
            chA.append((16, zr))
            self.poll2('A' + tg, PA, S_INP, chA, o.get('tA0', 260), o.get('tA1', 180), o.get('tA2', 100), lambda: dmf(VXC + 4), checkA, shadowA, retry=zr)
        self.stamp(8)
        hp = ''
        a(f"""
        {'s_nop 1' + chr(10) + a.dummy + chr(10) + 's_nop 0' if hp else ''}
        v_add_f32_dpp v{R}, v{R}, v{R} row_ror:8 row_mask:0xf bank_mask:0x3 {hp}
        v_add_f32_dpp v{R+1}, v{R+1}, v{R+1} row_ror:8 row_mask:0xf bank_mask:0x3 {hp}
        v_add_f32_dpp v{R}, v{R+2}, v{R+2} row_ror:8 row_mask:0xf bank_mask:0xc {hp}
        v_add_f32_dpp v{R+1}, v{R+3}, v{R+3} row_ror:8 row_mask:0xf bank_mask:0xc {hp}
        v_add_f32_dpp v{R}, v{R}, v{R} row_ror:12 row_mask:0xf bank_mask:0xf
        v_add_f32_dpp v{R+1}, v{R+1}, v{R+1} row_ror:12 row_mask:0xf bank_mask:0xf
        {cvt} v{R+2}, v{R}, v{R+1}
        buffer_store_dword v{R+2}, v{V_PUB}, {WS}, {S_PUBB} offen {cf}
        """)
        self.stamp(9)
        a(f'buffer_store_dword v{M}, v{V_PUB}, {WS}, {S_RST} offen {cf}')
        if o.get('span2') and wv == 0:
            lab = a.newlabel('n8')
            a(f's_cmp_lg_u32 {S_S}, 8\ns_cbranch_scc1 {lab}')
            self.note(5, T + 10)
            a(f'{lab}:')
        if not o.get('rt'): self.dump_stamps(tg)
        a(f's_branch L_Rloop_{tg}')
        a.hot = False
        a(f'{spin}:')
        self.spin_flag(V_FLAG, f'v{V_Z}', S_FKV)
        a(f's_branch {back}')
        for txt, sh in zip(self.late, self.late_sh):
            pre, post = txt.split('@SH@')
            a(pre); a('s_nop 7'); sh(); a('s_nop 7'); a(post)
        for f in self.fixups: f()
        a(f'L_Rtail_{tg}:')
        a.forget()
        self.pack_kvm()
        a(f'''
        buffer_store_dwordx4 {vr(KMH,4)}, v{V_L16}, {WS}, {S_KVM} offen sc1
        s_waitcnt vmcnt(0) lgkmcnt(0)
        buffer_store_dword v{V_F}, v{V_ONE}, {WS}, {S_FM} offen sc1
        buffer_store_dword v{V_F}, v{V_ONE}, {WS}, {S_FM} offen offset:2048 sc1
        ''')
        self.tstamp(6, T + 4)
        self.note(6, T + 4)
        if o.get('stamp'):
            set_srd(a, 12, P_DBG, 256)
            a(f'''
            s_memtime s[82:83]
            s_memrealtime s[84:85]
            s_waitcnt lgkmcnt(0)
            s_sub_u32 s82, s82, s80
            s_sub_u32 s84, s84, s30
            s_sub_u32 s28, s28, s30
            v_mov_b32 v{T}, s82
            v_mov_b32 v{T+1}, {S_FAST}
            v_mov_b32 v{T+2}, s28
            v_mov_b32 v{T+3}, s84
            v_mov_b32 v{T+4}, 8
            buffer_store_dwordx4 {vr(T,4)}, v{T+4}, {ST}, 0 offen
            ''')
        a('s_endpgm')
        a.auto_vm = True
```

```python
import sys, math
from asmlib import Asm
import layout as L

KNAME = 'gated_mix__memory_aug_recurrent_mem_tr__sliding_local_dilated__prompt_kernel'

from gen_common import *

class Gen:
    def __init__(self, opt):
        self.o = opt
        self.a = Asm()

    def prologue(self):
        a = self.a; o = self.o
        a(f'''
        s_cmp_ge_u32 s2, 256
        s_cbranch_scc1 L_exit
        {'s_memrealtime s[30:31]' if (o.get('stamp') or o.get('span') or o.get('span2')) else ''}
        s_load_dwordx16 s[32:47], s[0:1], 0
        s_load_dwordx8 s[48:55], s[0:1], 64
        s_load_dwordx4 s[56:59], s[0:1], 96
        s_getreg_b32 s20, hwreg(HW_REG_XCC_ID)
        v_lshrrev_b32 v1, 6, v0
        s_and_b32 s20, s20, 7
        v_readfirstlane_b32 {S_W}, v1
        s_mov_b32 {SPIN}, 0x400000
        ''')
        if o.get('fake_xcc'):
            a('s_and_b32 s20, s2, 1\ns_add_u32 s20, s20, 1')
        if o.get('fake_perm'):
            a('s_xor_b32 s2, s2, 0x55\ns_lshl_b32 s21, s2, 3\ns_lshr_b32 s2, s2, 5\ns_or_b32 s2, s2, s21\ns_and_b32 s2, s2, 255')
        a.wait(lgkm=0)
        if o.get('touch'):
            MBy = 1 << 20
            touch = [(p, off) for p in (P_WO, P_WQ, P_WK, P_WV) for off in (0, 2 * MBy, 4 * MBy - 128)]
            touch += [(P_X, 2 * MBy - 128), (P_GATE, 0), (P_MEM0, 0), (P_WQKV, 0), (P_WQKV, 512 * 3072 - 128), (P_WOB, 0), (P_DBG, 0)]
            touch += [(P_WS, L.GATE + 16384), (P_WS, L.RIN + MBy), (None, 0)]
            a(f'v_mov_b32 v30, s{P_X}\nv_mov_b32 v31, s{P_X+1}')
            for i, (p, off) in enumerate(touch):
                if p is None: a('s_getpc_b64 s[22:23]\ns_add_u32 s22, s22, 0x8000\ns_addc_u32 s23, s23, 0')
                elif off: a(f's_add_u32 s22, s{p}, {hex(off)}\ns_addc_u32 s23, s{p+1}, 0')
                lo, hi = ('s22', 's23') if (off or p is None) else (f's{p}', f's{p+1}')
                a(f'v_writelane_b32 v30, {lo}, {i+1}\nv_writelane_b32 v31, {hi}, {i+1}')
            a('global_load_dword v29, v[30:31], off')
        set_srd(a, 4, P_WS, L.WS_BYTES)
        set_srd(a, 12, P_DBG, 256)
        a(f'''
        s_mul_i32 s21, s20, 24
        s_add_u32 s21, s21, 40
        s_cmp_eq_u32 s20, 0
        s_cselect_b32 s21, 0, s21
        s_mov_b32 s29, s21
        s_lshr_b32 {S_RANK}, s2, 3
        s_lshl_b32 s28, 1, {S_RANK}
        s_mov_b32 {S_TEAM}, s20
        s_mov_b32 s19, 0
        v_mov_b32 v2, s21
        v_mov_b32 v63, s28
        v_cmp_ne_u32 vcc, 0, v0
        v_mov_b32 v4, {hex(L.OOB)}
        v_cndmask_b32 v2, v2, v4, vcc
        ''')
        a(f'buffer_atomic_or v63, v2, {ST}, 0 offen sc0')
        set_srd(a, 8, P_X, 2048 * 1024)
        a(f'''
        v_and_b32 v5, 63, v0
        v_lshlrev_b32 v5, 4, v5
        s_lshl_b32 s22, s2, 13
        s_lshl_b32 s23, {S_W}, 11
        s_add_u32 s22, s22, s23
        buffer_load_dwordx4 v[8:11], v5, {SA}, s22 offen
        buffer_load_dwordx4 v[12:15], v5, {SA}, s22 offen offset:1024
        ''')
        set_srd(a, 24, P_GATE, 1024)
        a(f'buffer_load_dwordx4 v[16:19], v5, s[24:27], 0 offen')
        a(f'''
        v_mov_b32 v20, -1
        v_mov_b32 v21, -1
        v_mov_b32 v22, -1
        v_mov_b32 v23, -1
        v_mov_b32 v24, 0
        v_mov_b32 v25, 0
        v_mov_b32 v26, 0
        v_mov_b32 v27, 0
        v_lshlrev_b32 v6, 4, v0
        s_lshl_b32 s22, s2, 12
        s_add_u32 s22, s22, {hex(L.RIN)}
        buffer_store_dwordx4 v[20:23], v6, {WS}, s22 offen sc1
        v_cmp_le_u32 vcc, 0x80, v0
        s_lshl_b32 s22, s2, 11
        s_add_u32 s22, s22, {hex(L.FLG)}
        v_cndmask_b32 v7, v6, v4, vcc
        ''')
        if o.get('keep_kv_flags'):
            a(f's_cmp_lt_u32 s2, 64\ns_cselect_b32 s22, {hex(L.OOB)}, s22')
        a(f'buffer_store_dwordx4 v[24:27], v7, {WS}, s22 offen sc1')
        self.vq_role = list(a.vq)
        a('L_role_ok:')
        a(f's_cmp_eq_u32 {S_TEAM}, 0\ns_cbranch_scc1 L_R')
        a('s_branch L_worker')

    def confirm_role(self):
        a = self.a
        ok = a.newlabel('cf'); sk = a.newlabel('cfs')
        a(f's_cmp_eq_u32 s19, 1\ns_cbranch_scc1 {ok}')
        a(f'v_mov_b32 v62, {L.LDS_BYTES - 32}\ns_cmp_lg_u32 {S_W}, 0\ns_cbranch_scc1 {sk}')
        sv = list(a.vq)
        a('v_readfirstlane_b32 s21, v63\nv_mov_b32 v63, s21\nds_write_b32 v62, v63')
        a.wait(lgkm=0)
        a.vq = sv
        a(f'{sk}:\ns_barrier\nds_read_b32 v61, v62')
        a(f'v_readfirstlane_b32 s21, v61\ns_mov_b32 s19, 1\ns_and_b32 s22, s21, s28\ns_cbranch_scc1 L_reclaim\n{ok}:')

    def reclaim(self):
        a = self.a
        a.auto_vm = False
        set_srd(a, 12, P_DBG, 256)
        a(f"""
        L_reclaim:
        s_waitcnt vmcnt(0)
        s_barrier
        s_mov_b32 s12, s{P_DBG}
        s_mov_b32 s13, s{P_DBG+1}
        s_mov_b32 s14, 256
        s_mov_b32 s15, 0x20000
        v_mov_b32 v4, {hex(L.OOB)}
        v_cmp_ne_u32 vcc, 0, v0
        s_cmp_lg_u32 {S_W}, 0
        s_cbranch_scc1 L_rc_done
        v_mov_b32 v2, s29
        v_cndmask_b32 v2, v2, v4, vcc
        L_rc_try:
        s_ff0_i32_b32 {S_RANK}, s21
        s_cmp_lt_i32 {S_RANK}, 0
        s_cbranch_scc1 L_rc_full
        s_lshl_b32 s28, 1, {S_RANK}
        v_mov_b32 v63, s28
        buffer_atomic_or v63, v2, {ST}, 0 offen sc0
        s_waitcnt vmcnt(0)
        v_readfirstlane_b32 s21, v63
        s_nop 0
        s_and_b32 s22, s21, s28
        s_cbranch_scc1 L_rc_try
        s_branch L_rc_have
        L_rc_full:
        v_mov_b32 v2, 4
        v_cndmask_b32 v2, v2, v4, vcc
        v_mov_b32 v63, 1
        buffer_atomic_add v63, v2, {ST}, 0 offen sc0
        v_and_b32 v2, 7, v0
        v_mul_u32_u24 v61, 24, v2
        v_add_u32 v61, 40, v61
        v_cmp_eq_u32 vcc, 0, v2
        v_cndmask_b32 v61, v61, v2, vcc
        v_mov_b32 v2, 4
        s_waitcnt vmcnt(0)
        v_readfirstlane_b32 s28, v63
        s_mov_b32 s21, {SPIN}
        L_ov_poll:
        buffer_load_dword v60, v61, {ST}, 0 offen sc1
        buffer_load_dword v63, v2, {ST}, 0 offen sc1
        s_waitcnt vmcnt(0)
        v_readfirstlane_b32 s22, v63
        """)
        for x in range(8): a(f'v_readlane_b32 s{64+x}, v60, {x}')
        a('s_nop 1')
        for x in range(8): a(f's_bcnt1_i32_b32 s23, s{64+x}\ns_add_u32 s22, s22, s23')
        a(f"""
        s_cmp_ge_u32 s22, 256
        s_cbranch_scc1 L_ov_have
        s_sub_u32 s21, s21, 1
        s_cbranch_scc1 L_ov_have
        s_sleep 4
        s_branch L_ov_poll
        L_ov_have:
        """)
        for x in range(8):
            a(f"""
            s_bcnt0_i32_b32 s23, s{64+x}
            s_mov_b32 {S_TEAM}, {x}
            s_mov_b32 s21, s{64+x}
            s_cmp_lt_u32 s28, s23
            s_cbranch_scc1 L_ov_bit
            s_sub_u32 s28, s28, s23
            """)
        a(f"""
        L_ov_bit:
        s_ff0_i32_b32 {S_RANK}, s21
        s_and_b32 {S_RANK}, {S_RANK}, 31
        s_bitset1_b32 s21, {S_RANK}
        s_sub_u32 s28, s28, 1
        s_cbranch_scc0 L_ov_bit
        L_rc_have:
        s_lshl_b32 s21, {S_TEAM}, 5
        s_add_u32 s21, s21, {S_RANK}
        v_mov_b32 v63, s21
        ds_write_b32 v62, v63
        s_waitcnt lgkmcnt(0)
        L_rc_done:
        s_barrier
        ds_read_b32 v63, v62
        s_waitcnt lgkmcnt(0)
        v_readfirstlane_b32 s21, v63
        s_nop 0
        s_lshr_b32 {S_TEAM}, s21, 5
        s_and_b32 {S_TEAM}, {S_TEAM}, 7
        s_and_b32 {S_RANK}, s21, 31
        s_branch L_role_ok
        """)
        a.forget(); a.auto_vm = True

    def gate_and_store(self, tmp=28):
        a = self.a
        a('v_mov_b32 v20, 0\nv_mov_b32 v21, 0')
        for i in range(4):
            a(f'v_dot2c_f32_bf16 v20, v{8+i}, v{16+i}\nv_dot2c_f32_bf16 v21, v{12+i}, v{16+i}')
        a('s_nop 2')
        a('v_permlane32_swap_b32 v20, v21\nv_add_f32 v20, v20, v21')
        a('v_mov_b32 v21, v20\nv_permlane16_swap_b32 v20, v21\nv_add_f32 v20, v20, v21')
        for sh in (8, 4, 2, 1):
            a(f'v_add_f32_dpp v20, v20, v20 row_ror:{sh} row_mask:0xf bank_mask:0xf')
        a(f'''
        v_mul_f32 v20, 0xbfb8aa3b, v20
        v_exp_f32 v20, v20
        v_add_f32 v20, 1.0, v20
        v_rcp_f32 v20, v20
        v_and_b32 v21, 63, v0
        v_lshrrev_b32 v22, 5, v21
        v_lshlrev_b32 v22, 2, v22
        v_and_b32 v21, 31, v21
        v_cmp_ne_u32 vcc, 0, v21
        v_mov_b32 v23, {hex(L.OOB)}
        v_cndmask_b32 v22, v22, v23, vcc
        s_lshl_b32 s22, s2, 5
        s_lshl_b32 s23, {S_W}, 3
        s_add_u32 s22, s22, s23
        s_add_u32 s22, s22, {hex(L.GATE)}
        buffer_store_dword v20, v22, {WS}, s22 offen sc1
        ''')

    def signal_init(self, tid=0, t=20, barrier=True):
        a = self.a
        lab = a.newlabel('sig')
        set_srd(a, 12, P_DBG, 256)
        if barrier: a('s_barrier')
        a(f'''
        s_cmp_lg_u32 {S_W}, 0
        s_cbranch_scc1 {lab}
        s_and_b32 s21, s2, 3
        s_lshl_b32 s21, s21, 6
        s_add_u32 s21, s21, 60
        v_mov_b32 v{t}, s21
        v_mov_b32 v{t+1}, 1
        v_mov_b32 v{t+2}, {hex(L.OOB)}
        v_and_b32 v{t+3}, 63, v{tid}
        v_cmp_ne_u32 vcc, 0, v{t+3}
        v_cndmask_b32 v{t}, v{t}, v{t+2}, vcc
        buffer_atomic_add v{t+1}, v{t}, {ST}, 0 offen
        {lab}:
        ''')

    def wait_init(self, t0=20, tid=0, sleep=16):
        a = self.a
        lab = a.newlabel('wi'); ok = a.newlabel('wiok')
        set_srd(a, 12, P_DBG, 256)
        sv = a.auto_vm; a.auto_vm = False
        a(f'''
        v_and_b32 v{t0}, 3, v{tid}
        v_lshlrev_b32 v{t0}, 6, v{t0}
        v_add_u32 v{t0}, 60, v{t0}
        s_mul_i32 s21, {S_TEAM}, 24
        s_add_u32 s21, s21, 40
        s_cmp_eq_u32 {S_TEAM}, 0
        s_cselect_b32 s21, 0, s21
        v_mov_b32 v{t0+2}, s21
        s_mov_b32 s23, {SPIN}
        {lab}:
        buffer_load_dword v{t0+1}, v{t0}, {ST}, 0 offen sc1
        buffer_load_dword v{t0+3}, v{t0+2}, {ST}, 0 offen sc1
        s_waitcnt vmcnt(0)
        v_readlane_b32 s84, v{t0+1}, 0
        v_readlane_b32 s85, v{t0+1}, 1
        v_readlane_b32 s86, v{t0+1}, 2
        v_readlane_b32 s87, v{t0+1}, 3
        v_readlane_b32 s21, v{t0+3}, 0
        s_nop 1
        s_bcnt1_i32_b32 s21, s21
        s_add_u32 s84, s84, s85
        s_add_u32 s86, s86, s87
        s_add_u32 s84, s84, s86
        s_cmp_ge_u32 s84, 256
        s_cbranch_scc1 {ok}
        s_sleep {sleep}
        s_sub_u32 s23, s23, 1
        s_cbranch_scc0 {lab}
        {ok}:
        ''')
        a.auto_vm = sv
        a.forget()

    def tstamp(self, i, t):
        if not self.o.get('stamp'): return
        a = self.a
        lab = a.newlabel('ts')
        a(f'''
        s_cmp_lg_u32 {S_W}, 0
        s_cbranch_scc1 {lab}
        s_memrealtime s[90:91]
        s_lshl_b32 s92, {S_TEAM}, 5
        s_add_u32 s92, s92, {S_RANK}
        s_lshl_b32 s92, s92, 7
        s_add_u32 s92, s92, {hex(L.DBG + 65536 + 4 * i)}
        s_waitcnt lgkmcnt(0)
        v_mov_b32 v{t}, s90
        v_mov_b32 v{t+1}, 0
        buffer_store_dword v{t}, v{t+1}, {WS}, s92 offen
        {'v_mov_b32 v%d, s30' % t if i == 1 else ''}
        {'buffer_store_dword v%d, v%d, %s, s92 offen offset:124' % (t, t+1, WS) if i == 1 else ''}
        s_waitcnt vmcnt(0)
        {lab}:
        ''')

    def span(self, t):
        if not self.o.get('span'): return
        a = self.a
        set_srd(a, 12, P_DBG, 256)
        a(f'''
        s_waitcnt vmcnt(0)
        s_memrealtime s[90:91]
        s_not_b32 s30, s30
        v_mov_b32 v{t}, 16
        v_mov_b32 v{t+1}, s30
        s_waitcnt lgkmcnt(0)
        v_mov_b32 v{t+2}, s90
        s_mov_b64 exec, 1
        buffer_atomic_umax v{t+1}, v{t}, {ST}, 0 offen
        buffer_atomic_umax v{t+2}, v{t}, {ST}, 0 offen offset:4
        ''')
    def note(self, slot, t, rank=0):
        if not self.o.get('span2'): return
        a = self.a
        lab = a.newlabel('nt')
        a(f's_cmp_lg_u32 {S_W}, 0\ns_cbranch_scc1 {lab}\ns_cmp_lg_u32 {S_RANK}, {rank}\ns_cbranch_scc1 {lab}\ns_cmp_gt_u32 {S_TEAM}, 1\ns_cbranch_scc1 {lab}')
        set_srd(a, 92, P_DBG, 256)
        a(f'''
        s_memrealtime s[90:91]
        v_mov_b32 v{t}, {4*slot}
        s_waitcnt lgkmcnt(0)
        s_sub_u32 s90, s90, s30
        v_mov_b32 v{t+1}, s90
        buffer_store_dword v{t+1}, v{t}, s[92:95], 0 offen
        {lab}:
        ''')
    def mark(self, i):
        if self.o.get('stamp'): self.a.raw(f'    s_memrealtime s[{82+2*i if i < 4 else 86+2*i}:{83+2*i if i < 4 else 87+2*i}]')
    def dump_marks(self, t):
        if not self.o.get('stamp'): return
        a = self.a
        a(f's_lshl_b32 s92, {S_TEAM}, 5\ns_add_u32 s92, s92, {S_RANK}\ns_lshl_b32 s92, s92, 7\ns_add_u32 s92, s92, {hex(L.DBG + 65536)}\ns_waitcnt lgkmcnt(0)\nv_mov_b32 v{t+1}, 0')
        for i in range(7):
            a(f'v_mov_b32 v{t}, s{82+2*i if i < 4 else 86+2*i}\nbuffer_store_dword v{t}, v{t+1}, {WS}, s92 offen offset:{4*(8+i)}')

    def dma_chunk(self, voff, soff, stride, n=4):
        a = self.a
        for i in range(n):
            a(f'buffer_load_dwordx4 {voff}, {SA}, {soff} offen lds')
            a(f's_add_u32 m0, m0, 1024')
            if i < n - 1: a(f's_add_u32 {soff}, {soff}, {16*stride}')

    def dma_block(self, voff, soff, stride):
        a = self.a
        for i in range(16):
            a(f'buffer_load_dwordx4 {voff}, {SA}, {soff} offen lds')
            if i < 15: a(f's_add_u32 m0, m0, 1056\ns_add_u32 {soff}, {soff}, {stride}')

    def load_table(self, label, dst, ndw, tmp):
        a = self.a
        pc = a.newlabel('pc')
        a(f'''
        s_getpc_b64 s[12:13]
        {pc}:
        s_add_u32 s12, s12, {label}-{pc}
        s_addc_u32 s13, s13, 0
        s_mov_b32 s14, {256*ndw*4}
        s_mov_b32 s15, 0x20000
        v_mul_u32_u24 v{tmp}, {ndw*4}, v0
        ''')
        for i in range(0, ndw, 4):
            a(f'buffer_load_dwordx4 {vr(dst+i,4)}, v{tmp}, {ST}, 0 offen offset:{i*4}')

from rrole import RRole
from workers import Workers

class Full(Gen, RRole, Workers):
    def build(self):
        a = self.a
        self.prologue()
        self.r_role()
        self.worker_role()
        self.reclaim()
        a('L_exit:\ns_endpgm')
        a.timed = not self.o.get('untimed')
        n = a.pad_hazards()
        hdr = open('cdna_kernels/' + KNAME[:-7] + '.s.ref').read().split('\n')
        hdr = [h for h in hdr if h.startswith(';') and '@launch' not in h and 'Override' not in h and 'grid=ceil' not in h]
        txt = '\n'.join(hdr) + f'\n; @launch grid=(256,1,1) block=(256,1,1) lds={L.LDS_BYTES}\n'
        txt += f'.amdgcn_target "amdgcn-amd-amdhsa--gfx950"\n.text\n.globl {KNAME}\n.p2align 8\n.type {KNAME},@function\n{KNAME}:\n'
        txt += a.text()
        txt += self.tables()
        txt += f'''.section .rodata,"a"
.p2align 6
.amdhsa_kernel {KNAME}
  .amdhsa_next_free_vgpr 512
  .amdhsa_next_free_sgpr 102
  .amdhsa_accum_offset 256
  .amdhsa_group_segment_fixed_size 0
  .amdhsa_kernarg_size 112
  .amdhsa_user_sgpr_count 2
  .amdhsa_user_sgpr_kernarg_segment_ptr 1
  .amdhsa_system_sgpr_workgroup_id_x 1
  .amdhsa_float_denorm_mode_32 3
.end_amdhsa_kernel
'''
        return txt, n

if __name__ == '__main__':
    opt = {}
    out = 'cdna_kernels/' + KNAME[:-7] + '.s'
    for arg in sys.argv[1:]:
        if arg.startswith('-o'): out = arg[2:]
        elif '=' in arg:
            k, v = arg.split('='); opt[k] = int(v)
        else: opt[arg] = 1
    txt, n = Full(opt).build()
    open(out, 'w').write(txt)
    print('written', out, len(txt), 'bytes; hazard pad states', n)
```

```python
import layout as L
from gen_common import *

V_L16, V_IST, V_PUB, V_X0, V_F, V_SMW, V_OW, V_WV = 1, 2, 3, 4, 8, 9, 10, 11
KMH, VMH = 12, 16
V_IDX, V_WV2 = 18, 19
SELR, SELV, V_ONE, V_DUM, SELQ, SELK = 20, 24, 26, 27, 28, 128
V_Z = 29
VXC, VXN, KX = 32, 40, 48
WVB = 56
AQ, AK, AV = 72, 80, 88
M = 96
T = 132
WO0 = 144
V_FLAG = 0
SC = 128 ** -0.5 * 1.4426950408889634
import struct
def f2u(x): return struct.unpack('<I', struct.pack('<f', x))[0]

WO_SPILL = [(0, 0), (2, 0)]
def wo_frag(t, kb):
    order = [(t_, k_) for t_ in range(8) for k_ in range(2) if (t_, k_) not in WO_SPILL]
    return WO0 + 8 * order.index((t, kb))

LDSF = [('q', 0, 0), ('q', 0, 1), ('q', 1, 0), ('q', 1, 1), ('k', 0, 0)] + [('k', k, 1) for k in range(2, 8)] + [('k', 7, 0)] + [('v', k, p) for k in (6, 7) for p in range(2)]
AGF = [(m, k, p) for m in 'qkv' for k in range(8) for p in range(2) if (m, k, p) not in LDSF]
assert len(LDSF) == 16 and len(AGF) == 32
S_S = 's61'
S_MEMP = 's62'
S_PUBB = 's63'
S_IN0, S_IN1 = 's64', 's65'
S_INP = 's66'
S_REC = 's67'
S_FKV = 's68'
S_KVM, S_FM = 's69', 's70'
S_RST = 's71'
S_LO = 's[72:73]'
S_SC = 's74'
S_T0, S_T1 = 's75', 's76'
S_FAST = 's77'
S_TAG, S_NTAG = 's78', 's79'
S_OTAG, S_NOTAG = 's24', 's25'

class RRole:
    def smf(self, acc, A, B):
        self.a(f'v_smfmac_f32_16x16x64_bf16 {vr(acc,4)}, {vr(A,4)}, {B}, v{V_IDX}')

    def r_role(self):
        a = self.a; o = self.o
        a('L_R:')
        a.vq = list(self.vq_role)
        self.mark(0)
        self.note(2, 40)
        VD8, VD1, VTQ, VTO, VTA = 28, 29, 30, 31, 7
        a(f"""
        v_and_b32 v1, 63, v0
        v_lshrrev_b32 v2, 4, v1
        v_and_b32 v3, 15, v1
        v_lshlrev_b32 v4, 4, v3
        v_lshl_add_u32 v{VD8}, v2, 17, v4
        v_and_b32 v4, 0x70, v4
        v_lshrrev_b32 v3, 3, v3
        v_lshl_add_u32 v4, v3, 9, v4
        v_lshl_add_u32 v{VD1}, v2, 14, v4
        s_lshl_b32 s21, {S_W}, 7
        v_add_u32 v{VD1}, s21, v{VD1}
        s_mul_i32 s78, {S_W}, {L.BLK}
        """)
        groups = [(m, b) for m in 'oqkv' for b in range(2)]
        def issue(gi):
            mat, b = groups[gi]
            if b == 0: set_srd(a, 8, {'q': P_WQ, 'k': P_WK, 'v': P_WV, 'o': P_WO}[mat], 4 << 20)
            a(f's_add_u32 m0, s78, {(gi % 2) * L.GRP}')
            if mat != 'o':
                a(f's_add_u32 s21, {S_W}, {4 * b}\ns_lshl_b32 s21, s21, 19\ns_lshl_b32 s22, {S_RANK}, 8\ns_add_u32 s21, s21, s22')
                self.dma_block(f'v{VD8}', 's21', 8192)
            else:
                a(f's_lshl_b32 s21, {S_RANK}, 17\ns_add_u32 s21, s21, {b * 65536}')
                self.dma_block(f'v{VD1}', 's21', 1024)
        issue(0)
        self.load_table('T_R', 96, 28, 7)
        self.confirm_role()
        issue(1)
        self.mark(1)
        self.gate_and_store()
        names = list(L.r_table().keys())
        def tv(n): return 96 + names.index(n)
        a(f'v_mov_b32 v{VTQ}, v{tv("trq")}\nv_mov_b32 v{VTO}, v{tv("tro")}\nv_add_u32 v6, 65536, v{tv("wv")}')
        if o.get('code'):
            pc = a.newlabel('pc')
            a(f's_getpc_b64 s[12:13]\n{pc}:\ns_add_u32 s12, s12, L_R_ready-{pc}\ns_addc_u32 s13, s13, 0\ns_mov_b32 s14, L_R_slow-L_R_ready\ns_mov_b32 s15, 0x20000')
            a(f'v_lshlrev_b32 v1, 7, v0\nbuffer_load_dword v27, v1, {ST}, 0 offen')
        else:
            a(f'buffer_load_dword v27, v{tv("one")}, {WS}, 0 offen')
        a(f'buffer_load_dword v26, v{tv("mm")}, {WS}, 0 offen')
        a.auto_vm = False
        TMP = 56
        park = {}
        parkregs = [32, 64, 72, 80, 88, 124, 132, 8]
        for f in LDSF:
            if f[0] == 'k': park[f] = parkregs.pop(0)
            if f[0] == 'q': park[f] = -8 * AGF.index(('v', 3 + 2 * f[1], f[2])) - 1
        S_RDY = 's76'
        def scalars():
            if o.get('pa2', 0):
                dec = f's_lshr_b32 s84, {S_RANK}, 3\ns_lshl_b32 s84, s84, 1\ns_lshr_b32 s21, {S_W}, 1\ns_add_u32 s84, s84, s21\n' \
                      f's_lshr_b32 s85, {S_RANK}, 1\ns_and_b32 s85, s85, 3\n' \
                      f's_and_b32 s86, {S_RANK}, 1\ns_lshl_b32 s86, s86, 1\ns_and_b32 s21, {S_W}, 1\ns_add_u32 s86, s86, s21'
            else:
                dec = f's_lshr_b32 s84, {S_RANK}, 2\ns_and_b32 s85, {S_RANK}, 3\ns_mov_b32 s86, {S_W}'
            a(f'''
            {dec}
            s_lshl_b32 {S_INP}, s84, 2
            s_add_u32 {S_INP}, {S_INP}, s85
            s_lshl_b32 {S_INP}, {S_INP}, 2
            s_add_u32 {S_INP}, {S_INP}, s86
            s_lshl_b32 {S_INP}, {S_INP}, 11
            s_add_u32 {S_INP}, {S_INP}, {hex(L.RIN)}
            s_lshl_b32 {S_PUBB}, s84, 10
            s_and_b32 s22, s85, 2
            s_lshl_b32 s22, s22, 7
            s_add_u32 {S_PUBB}, {S_PUBB}, s22
            s_and_b32 s22, s85, 1
            s_lshl_b32 s22, s22, 5
            s_add_u32 {S_PUBB}, {S_PUBB}, s22
            s_lshl_b32 s22, s86, 6
            s_add_u32 {S_PUBB}, {S_PUBB}, s22
            s_add_u32 {S_PUBB}, {S_PUBB}, {hex(L.RMEM)}
            s_and_b32 s22, s84, 1
            s_lshl_b32 s22, s22, 9
            s_lshr_b32 s21, s84, 1
            s_lshl_b32 s21, s21, 7
            s_add_u32 s21, s21, s22
            s_lshl_b32 s22, s85, 3
            s_add_u32 s21, s21, s22
            s_lshl_b32 s22, s86, 11
            s_add_u32 s75, s21, s22
            s_mul_i32 {S_REC}, {S_RANK}, 24576
            s_mul_i32 s21, {S_W}, 6144
            s_add_u32 {S_REC}, {S_REC}, s21
            s_lshl_b32 {S_FKV}, {S_RANK}, 6
            s_lshl_b32 s21, {S_W}, 2
            s_add_u32 {S_FKV}, {S_FKV}, s21
            s_add_u32 {S_FM}, {S_FKV}, {hex(L.F_M - 4096)}
            s_add_u32 {S_FKV}, {S_FKV}, {hex(L.F_KV)}
            s_lshl_b32 {S_KVM}, {S_RANK}, 12
            s_lshl_b32 s21, {S_W}, 10
            s_add_u32 {S_KVM}, {S_KVM}, s21
            s_add_u32 {S_KVM}, {S_KVM}, {hex(L.KVM - 131072)}
            s_lshl_b32 s21, {S_W}, 11
            s_add_u32 {S_MEMP}, s21, {hex(L.RMEM)}
            s_lshl_b32 {S_IN0}, {S_RANK}, 6
            s_add_u32 {S_IN0}, {S_IN0}, {hex(L.RIN)}
            s_mov_b32 s72, 0x33333333
            s_mov_b32 s73, 0x33333333
            s_mov_b32 {S_SC}, {hex(f2u(SC))}
            s_mov_b32 {S_S}, 0
            ''')
        def first_records(l16):
            for i in range(2):
                a(f'buffer_load_dwordx4 {vr(KX+4*i,4)}, v{l16}, {WS}, {S_REC} offen offset:{1024*i} sc1')
                a(f'buffer_load_dwordx4 {vr(VXN+4*i,4)}, v{l16}, {WS}, {S_REC} offen offset:{2048+1024*i} sc1')
        def stage_x():
            set_srd(a, 12, P_DBG, 256)
            a(f'''
            v_and_b32 v1, 3, v0
            v_lshlrev_b32 v1, 6, v1
            v_add_u32 v1, 60, v1
            v_and_b32 v2, 4, v0
            v_cmp_ne_u32 vcc, 0, v2
            v_and_b32 v2, 1, v0
            v_lshlrev_b32 v5, 3, v2
            v_cndmask_b32 v1, v1, v5, vcc
            v_lshlrev_b32 v2, 11, v2
            buffer_load_dword v3, v1, {ST}, 0 offen sc1
            buffer_load_dword v4, v2, {WS}, {S_FKV} offen sc1
            ''')
        def stage_y():
            a(f'''
            v_lshl_or_b32 v140, v141, 16, v140
            v_readlane_b32 s84, v3, 0
            v_readlane_b32 s85, v3, 1
            v_readlane_b32 s86, v3, 2
            v_readlane_b32 s87, v3, 3
            v_readlane_b32 s21, v3, 4
            v_readlane_b32 s22, v3, 5
            v_cmp_eq_u32 vcc, 0, v4
            s_mov_b32 {S_RDY}, 0
            s_add_u32 s84, s84, s85
            s_add_u32 s86, s86, s87
            s_add_u32 s84, s84, s86
            s_bcnt1_i32_b32 s21, s21
            s_add_u32 s21, s21, s22
            s_cmp_ge_u32 s21, 32
            s_cselect_b32 {S_FAST}, 1, 0
            s_cbranch_vccnz L_R_notyet
            s_cmp_lt_u32 s84, 256
            s_cbranch_scc1 L_R_notyet
            s_mov_b32 {S_RDY}, 1
            buffer_store_dword v140, v{tv("pub")}, {WS}, {S_PUBB} offen sc1
            ''')
            first_records(tv('l16'))
            a('L_R_notyet:')
        scalars()
        set_srd(a, 24, P_MEM0, 8192)
        a(f'buffer_load_ushort v140, v{tv("m0a")}, s[24:27], s75 offen\nbuffer_load_ushort v141, v{tv("m0a")}, s[24:27], s75 offen offset:32')
        todo = []
        self.ldsf_off = {}
        def flush(n):
            for _ in range(n):
                f, r = todo.pop(0); off = 8192 * len(self.ldsf_off)
                self.ldsf_off[f] = off
                for hh in range(2):
                    src = vr(r + 4 * hh, 4) if r >= 0 else ar(-r - 1 + 4 * hh, 4)
                    a(f'ds_write_b128 v{tv("wv") if off < 65536 else 6}, {src} offset:{off % 65536 + 1024 * hh}')
                if r >= 0: parkregs.append(r)
        for gi in range(8):
            mat, b = groups[gi]
            if gi == 0: self.mark(2)
            a.wait(vm=[16 + 5, 5 + 16, 16, 16, 16, 16, 16, 0][gi] if o.get('xearly', 1) else [16 + 5, 5 + 16, 16, 16, 16, 16, 16 + 2, 2][gi])
            if gi == 6 and o.get('xearly', 1): stage_y()
            if gi in (0, 2, 4, 7): self.mark(3 + [0, 2, 4, 7].index(gi))
            a('s_barrier')
            hb = (gi % 2) * L.GRP
            for x in range(4):
                dsts = []
                if mat == 'o':
                    for p in range(2):
                        t = 2 * x + p
                        dsts.append((vr, (TMP if t == 0 else 40) if (t, b) in WO_SPILL else wo_frag(t, b)))
                    offs = [0, 2112, 8448, 10560]; xo = 64 * x
                    if x == 0: a(f'v_add_u32 v{VTA}, {hb}, v{VTO}')
                else:
                    offs = [0, 1056, 512, 1568]; xo = 0
                    a(f's_xor_b32 s21, {S_W}, {x}\ns_mul_i32 s21, s21, {L.BLK}\ns_add_u32 s21, s21, {hb}\nv_add_u32 v{VTA}, s21, v{VTQ}')
                    for p in range(2):
                        f = (mat, 2 * x + b, p)
                        if f in AGF: dsts.append((ar, 8 * AGF.index(f)))
                        else:
                            if f not in park: park[f] = TMP if (f[1], f[2]) == (6, 0) else (16 if (f[1], f[2]) == (6, 1) else parkregs.pop(0))
                            if park[f] < 0: dsts.append((ar, -park[f] - 1)); todo.insert(0, (f, park[f]))
                            else: dsts.append((vr, park[f])); todo.append((f, park[f]))
                for p in range(2):
                    rf, d = dsts[p]
                    for r in range(4):
                        a(f'ds_read_b64_tr_b16 {rf(d + 2 * r, 2)}, v{VTA} offset:{xo + offs[r] + 32 * p}')
            if gi == 7 and not o.get('xearly', 1):
                a.wait(vm=0); stage_y()
            a.wait(lgkm=0)
            if gi == 0:
                for i in range(2):
                    for hh in range(2):
                        a(f'ds_write_b128 v{tv("x0")}, {vr((TMP if i == 0 else 40) + 4 * hh, 4)} offset:{16384 + 8192 * i + 1024 * hh}')
            a('s_barrier')
            if gi == 5 and o.get('xearly', 1): stage_x()
            if gi + 2 < 8: issue(gi + 2)
            if gi == 5 and not o.get('xearly', 1): stage_x()
            if gi == 2: self.signal_init(barrier=False)
            if gi == 6: flush(8)
            if gi == 7: flush(8)
        assert not todo and len(self.ldsf_off) == 16
        a.wait(lgkm=0)
        a.auto_vm = True; a.forget()
        a(f'v_mov_b32 v{V_WV2}, v6')
        for n, d in [('l16', V_L16), ('ist', V_IST), ('pub', V_PUB), ('x0', V_X0), ('x1', V_X0 + 1), ('x2', V_X0 + 2), ('x3', V_X0 + 3),
                     ('f', V_F), ('smw', V_SMW), ('ow', V_OW), ('wv', V_WV), ('idx', V_IDX), ('one', V_ONE)] + \
                    [(f'selr{i}', SELR + i) for i in range(4)] + [(f'selv{i}', SELV + i) for i in range(2)] + \
                    [('selq', SELQ), ('selq', SELQ + 3), ('selk', SELK), ('selk', SELK + 3)]:
            a(f'v_mov_b32 v{d}, v{tv(n)}')
        for d in (SELQ + 1, SELQ + 2, SELK + 1, SELK + 2): a(f'v_mov_b32 v{d}, 0')
        self.dump_marks(T + 4)
        self.tstamp(1, T + 4)
        self.note(3, T + 4)
        a(f's_cmp_eq_u32 {S_RDY}, 1\ns_cbranch_scc1 L_R_ready')
        self.wait_init(t0=T + 4)
        a(f's_cmp_ge_u32 s21, 32\ns_cselect_b32 {S_FAST}, 1, 0')
        a(f'buffer_store_dword v140, v{V_PUB}, {WS}, {S_PUBB} offen sc1')
        self.spin_flag(V_FLAG, f'v{V_Z}', S_FKV)
        first_records(V_L16)
        a(f's_add_u32 s21, {S_FKV}, 2048')
        self.spin_flag(V_FLAG, f'v{V_Z}', 's21')
        a('L_R_ready:')
        a.wait(vm=0)
        a.forget()
        if o.get('force_slow'): a(f's_mov_b32 {S_FAST}, 0')
        a(f's_add_u32 {S_FKV}, {S_FKV}, 2048\nv_mov_b32 v{V_FLAG}, 1')
        for r in range(M, M + 8, 2): a(f'v_mov_b64 {vr(r,2)}, -1')
        a(f's_lshl_b32 s21, {S_RANK}, 6\ns_add_u32 s21, s21, {hex(L.F_RS)}\ns_cmp_eq_u32 {S_W}, 0\ns_cselect_b32 s21, s21, {hex(L.OOB)}')
        a(f'buffer_store_dword v{V_F}, v{V_ONE}, {WS}, s21 offen sc1')
        self.tstamp(2, T + 4)
        self.tstamp(3, T + 4)
        self.note(4, T + 4)
        if o.get('stamp'):
            a('s_memtime s[80:81]\ns_memrealtime s[28:29]'); a.wait(lgkm=0)
        a('s_mov_b32 s26, 0x3f803f80\ns_mov_b32 s27, 0x3f803f80\ns_mov_b32 s8, 0x3f003f00\ns_mov_b32 s9, 0x3f003f00')
        a(f'ds_write_b64 v{V_OW}, {vr(M,2)}')
        a.wait(lgkm=0)
        a(f's_cmp_eq_u32 {S_FAST}, 0\ns_cbranch_scc1 L_R_slow')
        if o.get('nostag'):
            self.r_loop('f', '')
        else:
            for w in range(1, 4): a(f's_cmp_eq_u32 {S_W}, {w}\ns_cbranch_scc1 L_R_w{w}')
            for w in range(4):
                if w: a(f'L_R_w{w}:')
                self.r_loop('f' + (str(w) if w else ''), '', wv=w)
        a('L_R_slow:')
        self.r_loop('s', 'sc1')

    def spin_flag(self, dst, voff, soff):
        a = self.a
        lab = a.newlabel('sf'); ok = a.newlabel('sfok')
        sv = a.auto_vm; a.auto_vm = False
        a(f'''
        s_mov_b32 s23, {SPIN}
        {lab}:
        buffer_load_dword v{dst}, {voff}, {WS}, {soff} offen sc1
        s_waitcnt vmcnt(0)
        v_cmp_ne_u32 vcc, 0, v{dst}
        s_cbranch_vccnz {ok}
        s_sleep 2
        s_sub_u32 s23, s23, 1
        s_cbranch_scc0 {lab}
        s_mov_b32 {SPIN}, 0x400
        {ok}:
        ''')
        a.auto_vm = sv; a.vq = []

    def poll(self, tag, dst, voff, soff, pre, check, shadow, nchk, mid=None, nmid=0, blk=None):
        a = self.a
        lab = f'L_poll_{tag}'; ok = f'L_pok_{tag}'
        def issue():
            a(f'buffer_load_dwordx4 {vr(dst,4)}, v{voff}, {WS}, {soff} offen {self.pf}')
            a(f'buffer_load_dwordx4 {vr(dst+4,4)}, v{voff}, {WS}, {soff} offen offset:1024 {self.pf}')
        pre()
        if blk:
            gap, cover, fill = blk
            issue()
            if mid: mid()
            for i in range(gap): fill()
            a(f's_mov_b32 s23, {SPIN}')
            issue()
            for i in range(cover): fill()
            a(f's_branch L_pw_{tag}\n{lab}:')
            a(f's_sub_u32 s23, s23, 1\ns_cbranch_scc1 L_pto_{tag}')
            issue()
            a(f'L_pw_{tag}:\ns_waitcnt vmcnt(2)')
            check(); shadow()
            a(f's_cbranch_vccnz {lab}\n{ok}:')
            self.late.append(f'L_pto_{tag}:\ns_mov_b32 {SPIN}, 0x400\ns_waitcnt vmcnt(0)\n@SH@s_branch {ok}')
            self.late_sh.append(shadow)
            return
        if mid:
            issue(); mid()
            for r in range(nmid):
                check(); shadow()
                a(f's_cbranch_vccz {ok}')
        a(f's_mov_b32 s23, {SPIN}')
        a(f'{lab}:')
        issue()
        for r in range(nchk - 1):
            check(); shadow()
            a(f's_cbranch_vccz {ok}')
        a(f's_sub_u32 s23, s23, 1\ns_cbranch_scc1 L_pto_{tag}')
        check(); shadow()
        a(f's_cbranch_vccnz {lab}\n{ok}:')
        self.late.append(f'L_pto_{tag}:\ns_mov_b32 {SPIN}, 0x400\ns_waitcnt vmcnt(0)\n@SH@s_branch {ok}')
        self.late_sh.append(shadow)

    def poll2(self, tag, dst, soff, chores, t0, t1, t2, fill, check, shadow, retry=None):
        a = self.a
        lab = f'L_poll_{tag}'; ok = f'L_pok_{tag}'
        def issue():
            a(f'buffer_load_dwordx4 {vr(dst,4)}, v{V_L16}, {WS}, {soff} offen {self.pf}')
            a(f'buffer_load_dwordx4 {vr(dst+4,4)}, v{V_L16}, {WS}, {soff} offen offset:1024 {self.pf}')
        def spend(t, flush=False):
            while chores and (flush or chores[0][0] <= t + 4):
                c, f = chores.pop(0); f(); t -= c
            while t >= 12: fill(); t -= 16
        spend(t0); issue()
        spend(t1 - 40); issue()
        spend(t2 - 40, flush=True)
        a(f's_mov_b32 s23, {SPIN}\ns_branch L_pw_{tag}\n{lab}:')
        a(f's_sub_u32 s23, s23, 1\ns_cbranch_scc1 L_pto_{tag}')
        issue()
        if retry: retry()
        a(f'L_pw_{tag}:\ns_waitcnt vmcnt(2)')
        check(); shadow()
        a(f's_cbranch_vccnz {lab}\n{ok}:')
        self.late.append(f'L_pto_{tag}:\ns_mov_b32 {SPIN}, 0x400\ns_waitcnt vmcnt(0)\n@SH@s_branch {ok}')
        self.late_sh.append((lambda: (retry(), shadow())) if retry else shadow)

    def stamp(self, i):
        if self.o.get('stamp') and (self.o.get('smask', 0x3ff) >> i) & 1: self.a.raw(f'    {"s_memrealtime" if self.o.get("rt") else "s_memtime"} s[{82+2*i}:{83+2*i}]')

    def dump_stamps(self, tg):
        a = self.a
        if not self.o.get('stamp'): return
        lab = f'L_nodump_{tg}'
        a(f's_cmp_lg_u32 {S_S}, {self.o.get("dstep", 41)}\ns_cbranch_scc1 {lab}\ns_waitcnt lgkmcnt(0)')
        a(f's_lshl_b32 s21, {S_RANK}, 8\ns_lshl_b32 s22, {S_W}, 6\ns_add_u32 s21, s21, s22\ns_add_u32 s21, s21, {hex(L.DBG)}')
        a(f'v_mov_b32 v{T+10}, 0')
        for i in range(10):
            a(f'v_mov_b32 v{T+11}, s{82+2*i}\nbuffer_store_dword v{T+11}, v{T+10}, {WS}, s21 offen offset:{4*i}')
        a(f's_waitcnt vmcnt(0)\n{lab}:')

    def r_loop(self, tg, cf, wv=0):
        a = self.a; o = self.o
        mf16 = 'v_mfma_f32_16x16x16_bf16'; mf32 = 'v_mfma_f32_16x16x32_bf16'
        cvt = 'v_cvt_pk_bf16_f32'
        QP = 'quad_perm:[2,3,0,1] row_mask:0xf bank_mask:0xf'
        dum = lambda n=1: [a(a.dummy) for _ in range(n)]
        self.late = []; self.late_sh = []; self.fixups = []
        self.pf = 'nt' if (not cf and o.get('pollnt')) else 'sc1'
        a.auto_vm = False
        B0, B1, B2 = WVB, WVB + 8, M
        ACC = {'q': AQ, 'k': AK, 'v': AV}
        def S(m, k, p, buf=None):
            f = (m, k, p)
            self.smf(ACC[m] + 4 * p, M + 4 * k, ar(8 * AGF.index(f), 8) if buf is None else vr(buf, 8))
        def V(k, p, buf=None): S('v', k, p, buf)
        def RD(buf, m, k, p, hh):
            off = self.ldsf_off[(m, k, p)]
            a(f'ds_read_b128 {vr(buf + 4*hh, 4)}, v{V_WV if off < 65536 else V_WV2} offset:{off % 65536 + hh*1024}')
        def RD2(buf, m, k, p): RD(buf, m, k, p, 0); RD(buf, m, k, p, 1)
        def pkadd(d, x, y): a(f'v_add_f32 v{d}, v{x}, v{y}\nv_add_f32 v{d+1}, v{x+1}, v{y+1}')
        def PK(d, x, y): a(f'v_pk_add_f32 {vr(d,2)}, {vr(x,2)}, {vr(y,2)}')
        def add(d, x, y): a(f'v_add_f32 v{d}, v{x}, v{y}')
        def dmf(r):
            m = o.get('fillm', 2)
            if m == 1 or (m == 2 and r == M + 8): a('s_nop 3')
            elif m == 3: a(f's_nop 2\n{a.dummy}')
            elif m == 4: a(f'{mf16} {vr(r,4)}, s[26:27], s[26:27], 0' if False else f'{mf16} {vr(r,4)}, {vr(SELQ+2,2)}, {vr(SELQ,2)}, 0')
            else: a(f'{mf16} {vr(r,4)}, {vr(SELQ,2)}, {vr(SELQ,2)}, {vr(r,4)}')
        def filt(line):
            st = 'buffer_store' in line and ('s75' in line or 's76' in line) and 'sc1' in line
            ld = 'buffer_load' in line and ('s67' in line or 's68' in line)
            if o.get('nost') and st: return None
            if o.get('nofst') and st and 's76' in line: return None
            if o.get('nold') and ld: return None
            if o.get('nofld') and ld and 's68' in line: return None
            if o.get('ldplain') and ld and 's67' in line: return line.replace(' sc1', '')
            if o.get('ldnt') and ld and 's67' in line: return line.replace(' sc1', ' nt')
            if o.get('stplain') and st: return line.replace(' sc1', '')
            if o.get('novm') and 'vmcnt' in line: return None
            if o.get('nowarm') and 'buffer_load_dword v27' in line: return 's_nop 0'
            if o.get('novmh') and 'buffer_store_dwordx2' in line: return None
            return line
        PA = M + 8; R = T + 8
        spin = f'L_kvspin_{tg}'; back = f'L_kvback_{tg}'
        def preload():
            RD2(M + 24, 'q', 0, 0); RD2(M + 16, 'q', 0, 1); RD2(B0, 'q', 1, 0); RD2(B1, 'q', 1, 1); RD2(T, 'k', 0, 0)
        def slackB():
            a(f'v_cmp_eq_u32 vcc, 0, v{V_FLAG}')
            for r in range(0, 8, 2): a(f'v_mov_b64 {vr(VXC+r,2)}, {vr(VXN+r,2)}')
            a(f's_xor_b32 {S_INP}, {S_INP}, 0x40000')
            a(f's_cbranch_vccnz {spin}\n{back}:')
            a(f"""
            s_cmp_lt_u32 {S_S}, 63
            s_cselect_b32 {S_T0}, {0 if o.get("nopf") else 32*24576}, 0
            s_add_u32 {S_REC}, {S_REC}, {S_T0}
            s_cmp_lt_u32 {S_S}, 62
            s_cselect_b32 {S_T0}, 2048, 0
            s_add_u32 {S_FKV}, {S_FKV}, {S_T0}
            s_cmp_ge_u32 {S_S}, 2
            s_cselect_b32 {S_T1}, {S_FM}, {hex(L.OOB)}
            s_cmp_ge_u32 {S_S}, 1
            s_cselect_b32 {S_T0}, {S_KVM}, {hex(L.OOB)}
            s_add_u32 {S_FM}, {S_FM}, 2048
            s_add_u32 {S_KVM}, {S_KVM}, 131072
            s_lshr_b32 {S_TAG}, {S_S}, 1
            s_and_b32 {S_TAG}, {S_TAG}, 1
            s_sub_u32 {S_NTAG}, {S_TAG}, 1
            s_add_u32 {S_IN1}, {S_IN0}, 32768
            s_and_b32 {S_OTAG}, {S_S}, 1
            s_sub_u32 {S_NOTAG}, {S_OTAG}, 1
            """)
            if o.get('steplog') and wv == 0 and tg != 's':
                a(f's_memrealtime s[82:83]\ns_lshl_b32 s84, {S_S}, 2\ns_lshl_b32 s85, {S_RANK}, 8\ns_add_u32 s84, s84, s85\ns_add_u32 s84, s84, {hex(L.DBG + 131072)}')
                a(f's_waitcnt lgkmcnt(0)\nv_mov_b32 v{V_DUM}, s82\nbuffer_store_dword v{V_DUM}, v{V_ONE}, {WS}, s84 offen')
            if o.get('zB'):
                for r in range(AQ, AQ + 24, 2): a(f'v_mov_b64 {vr(r,2)}, 0')
            if o.get('barB'): dmf(PA); a('s_barrier')
            for i in range(o.get('dB', 8) if wv >= 2 else o.get('dB0', o.get('dB', 8))): dmf(PA + 4 * (i % 2))
        def checkB():
            if not o.get('shortchk'):
                a(f"""
                v_max3_u32 v{R}, v{M}, v{M+1}, v{M+2}
                v_max3_u32 v{R+1}, v{M+3}, v{M+4}, v{M+5}
                v_max3_u32 v{R}, v{R}, v{M+6}, v{M+7}
                v_max_u32 v{R}, v{R}, v{R+1}
                """)
            else:
                a(f'v_max_u32 v{R}, v{M}, v{M+7}')
            a(f'v_cmp_eq_u32 vcc, -1, v{R}')
        def shadowB():
            if o.get('specw', 1): a(f'ds_write_b128 v{V_X0}, {vr(M,4)}')
            else: dmf(PA); a('s_nop 2')
        preload()
        for r in range(AQ, AQ + 24, 2): a(f'v_mov_b64 {vr(r,2)}, 0')
        a(f's_xor_b32 {S_INP}, {S_INP}, 0x40000')
        a.wait(lgkm=0)
        a(f'L_Rloop_{tg}:')
        a.forget()
        a.hot = True
        a.filt = filt
        sa = lambda txt: [(4, lambda l=l: a(l)) for l in txt.strip().split('\n')]
        va = lambda lines: [(8, lambda l=l: a(l)) for l in lines]
        if True:
            chB = [(44, lambda: a(f'v_cmp_eq_u32 vcc, 0, v{V_FLAG}\ns_cbranch_vccnz {spin}\n{back}:'))]
            chB += va([f'v_mov_b64 {vr(VXC+r,2)}, {vr(VXN+r,2)}' for r in range(0, 8, 2)])
            chB += sa(f"""
            s_xor_b32 {S_INP}, {S_INP}, 0x40000
            s_cmp_lt_u32 {S_S}, 63
            s_cselect_b32 {S_T0}, {0 if o.get("nopf") else 32*24576}, 0
            s_add_u32 {S_REC}, {S_REC}, {S_T0}
            s_cmp_lt_u32 {S_S}, 62
            s_cselect_b32 {S_T0}, 2048, 0
            s_add_u32 {S_FKV}, {S_FKV}, {S_T0}
            s_cmp_ge_u32 {S_S}, 2
            s_cselect_b32 {S_T1}, {S_FM}, {hex(L.OOB)}
            s_cmp_ge_u32 {S_S}, 1
            s_cselect_b32 {S_T0}, {S_KVM}, {hex(L.OOB)}
            s_add_u32 {S_FM}, {S_FM}, 2048
            s_add_u32 {S_KVM}, {S_KVM}, 131072
            s_lshr_b32 {S_TAG}, {S_S}, 1
            s_and_b32 {S_TAG}, {S_TAG}, 1
            s_sub_u32 {S_NTAG}, {S_TAG}, 1
            s_add_u32 {S_IN1}, {S_IN0}, 32768
            s_and_b32 {S_OTAG}, {S_S}, 1
            s_sub_u32 {S_NOTAG}, {S_OTAG}, 1
            """)
            if o.get('steplog') and wv == 0 and tg != 's':
                chB.append((60, lambda: (a(f's_memrealtime s[82:83]\ns_lshl_b32 s84, {S_S}, 2\ns_lshl_b32 s85, {S_RANK}, 8\ns_add_u32 s84, s84, s85\ns_add_u32 s84, s84, {hex(L.DBG + 131072)}'),
                    a(f's_waitcnt lgkmcnt(0)\nv_writelane_b32 v{V_DUM}, s82, 0\nglobal_store_dword v{V_ONE}, v{V_DUM}, s[4:5]' if False else f's_waitcnt lgkmcnt(0)'))))
            if not o.get('split', 1):
                self.poll2('B' + tg, M, S_MEMP, chB, o.get('tB0', 200), o.get('tB1', 180), o.get('tB2', 100), lambda: dmf(PA), checkB, shadowB)
            else:
                ld = lambda i: a(f'buffer_load_dwordx4 {vr(M+4*i,4)}, v{V_L16}, {WS}, {S_MEMP} offen offset:{1024*i} {self.pf}')
                def spend(t, flush=False):
                    while chB and (flush or chB[0][0] <= t + 4):
                        c, f = chB.pop(0); f(); t -= c
                    while t >= 12: dmf(PA); t -= 16
                def chk(i):
                    a(f'v_max3_u32 v{R}, v{M+4*i}, v{M+4*i+1}, v{M+4*i+2}\nv_max_u32 v{R}, v{R}, v{M+4*i+3}\nv_cmp_eq_u32 vcc, -1, v{R}')
                g = o.get('tBg', 32)
                spend(o.get('tB0', 170)); ld(0); spend(g); ld(1)
                spend(o.get('tB1', 180) - 40 - g); ld(0); spend(g); ld(1)
                spend(o.get('tB2', 100) - 40 - g, flush=True)
                a(f's_mov_b32 s23, {SPIN}\nL_pw_B{tg}:\ns_waitcnt vmcnt(3)')
                chk(0)
                a(f'ds_write_b128 v{V_X0}, {vr(M,4)}')
                S('q', 0, 0, M + 24)
                a(f's_cbranch_vccnz L_poll_B{tg}\nL_pok_B{tg}:')
                def fixB():
                    a(f'L_poll_B{tg}:\ns_sub_u32 s23, s23, 1\ns_cbranch_scc1 L_pto_B{tg}')
                    ld(0); ld(1)
                    a(f'v_mov_b64 {vr(AQ,2)}, 0\nv_mov_b64 {vr(AQ+2,2)}, 0\ns_branch L_pw_B{tg}')
                    a(f'L_pto_B{tg}:\ns_mov_b32 {SPIN}, 0x400\ns_branch L_pok_B{tg}')
                    a(f'L_pol1_B{tg}:\ns_waitcnt vmcnt(0)')
                    chk(1)
                    a(f's_cbranch_vccz L_pk1_B{tg}\ns_sub_u32 s23, s23, 1\ns_cbranch_scc1 L_pt1_B{tg}')
                    ld(1)
                    a(f's_branch L_pol1_B{tg}\nL_pt1_B{tg}:\ns_mov_b32 {SPIN}, 0x400\ns_branch L_pk1_B{tg}')
                self.fixups.append(fixB)
        if o.get('rt'): a('s_mov_b32 s84, s82')
        self.stamp(0)
        if o.get('rt'): self.dump_stamps(tg)
        wp = o.get('wpat', 5)
        ws = {0: (0, 1), 1: (1 + wv, 5 + wv), 2: (1 + 2 * (wv % 2), 2 + 2 * (wv % 2)), 3: (1 + wv % 2, 3 + wv % 2), 4: (1 + wv // 2, 3 + wv // 2),
              5: (1, 2), 6: (wv, 4 + wv), 7: (wv % 2, 2 + wv % 2), 8: (wv // 2, 2 + wv // 2)}[wp]
        wslot = [0]
        def MW():
            for i in range(2):
                if ws[i] == wslot[0] and not (i == 0 and o.get('specw', 1)): a(f'ds_write_b128 v{V_X0}, {vr(M+4*i,4)} offset:{1024*i}')
            wslot[0] += 1
        if not o.get('split', 1):
            MW()
            S('q', 0, 0, M + 24); MW()
            S('q', 0, 1, M + 16); MW()
            S('q', 1, 0, B0); MW()
            S('q', 1, 1, B1); MW()
            S('k', 0, 0, T); MW()
            S('k', 0, 1); MW()
            S('k', 1, 0); MW()
            S('k', 1, 1); MW()
        else:
            S('q', 0, 1, M + 16)
            a('s_waitcnt vmcnt(2)')
            a(f'v_max3_u32 v{R}, v{M+4}, v{M+5}, v{M+6}')
            S('k', 0, 0, T); a(f'v_max_u32 v{R}, v{R}, v{M+7}')
            S('k', 0, 1); a(f'v_cmp_eq_u32 vcc, -1, v{R}')
            V(0, 0)
            a(f's_cbranch_vccnz L_pol1_B{tg}\nL_pk1_B{tg}:')
            a(f'ds_write_b128 v{V_X0}, {vr(M+4,4)} offset:1024')
            S('q', 1, 0, B0); S('q', 1, 1, B1); S('k', 1, 0); S('k', 1, 1)
        a.wait_lds_writes()
        a('s_barrier')
        def MR(k): a(f'ds_read_b128 {vr(M+4*k,4)}, v{V_X0 + k//2} offset:{1024*(k%2)}')
        MR(2); MR(3)
        if not o.get('split', 1): V(0, 0)
        MR(4)
        V(0, 1); MR(5)
        V(1, 0); MR(6)
        V(1, 1); MR(7)
        VXL = lambda i: a(f'buffer_load_dwordx4 {vr(VXN+4*i,4)}, v{V_L16}, {WS}, {S_REC} offen offset:{2048+1024*i} sc1')
        self.stamp(1)
        vm_ops = [
            lambda: a(f'buffer_store_dwordx4 {vr(KMH,4)}, v{V_L16}, {WS}, {S_T0} offen sc1'),
            lambda: VXL(0),
            lambda: VXL(1),
            lambda: (a(f'buffer_store_dword v{V_F}, v{V_ONE}, {WS}, {S_T1} offen sc1'),
                     a(f'buffer_load_dword v{V_FLAG}, v{V_Z}, {WS}, {S_FKV} offen sc1')),
        ]
        slot = [0]
        first = o.get('vm0', 5)
        def X():
            i = slot[0] - first - wv
            if i == 0: a('s_waitcnt vmcnt(0)')
            if i >= 0 and i % 4 == 0 and i // 4 < len(vm_ops): vm_ops[i // 4]()
            slot[0] += 1
        S('q', 2, 0); RD(B0, 'k', 2, 1, 0); X()
        S('q', 3, 0); RD(B0, 'k', 2, 1, 1); X()
        S('q', 4, 0); RD(B1, 'k', 3, 1, 0); X()
        S('q', 5, 0); RD(B1, 'k', 3, 1, 1); X()
        S('q', 6, 0); RD(T, 'k', 4, 1, 0); X()
        S('q', 7, 0); RD(T, 'k', 4, 1, 1); X()
        S('q', 2, 1); X()
        S('q', 3, 1); X()
        S('q', 4, 1); X()
        assert slot[0] > first + wv
        S('q', 5, 1); RD(B2, 'k', 5, 1, 0); X(); add(AQ, AQ, AQ + 2)
        S('q', 6, 1); RD(B2, 'k', 5, 1, 1); X(); add(AQ + 1, AQ + 1, AQ + 3)
        S('q', 7, 1); X(); a(f'{cvt} v{AQ+2}, v{AQ}, v{AQ+1}')
        S('k', 2, 0); X()
        S('k', 2, 1, B0); RD(B0, 'k', 6, 1, 0); X()
        S('k', 3, 0); RD(B0, 'k', 6, 1, 1); X()
        S('k', 3, 1, B1); RD(B1, 'k', 7, 0, 0); X(); add(AQ + 4, AQ + 4, AQ + 6)
        S('k', 4, 0); RD(B1, 'k', 7, 0, 1); X(); add(AQ + 5, AQ + 5, AQ + 7)
        S('k', 4, 1, T); RD(T, 'k', 7, 1, 0); X(); a(f'{cvt} v{AQ+3}, v{AQ+4}, v{AQ+5}')
        S('k', 5, 0); RD(T, 'k', 7, 1, 1); X()
        a(f'{mf16} {vr(AQ+4,4)}, {vr(AQ+2,2)}, {vr(SELQ,2)}, 0'); X()
        a(f'{mf16} {vr(T+8,4)}, {vr(AQ+2,2)}, {vr(SELQ+2,2)}, 0'); X()
        S('k', 5, 1, B2); RD(B2, 'v', 6, 0, 0); X()
        S('k', 6, 0); RD(B2, 'v', 6, 0, 1)
        S('k', 7, 0, B1); RD(B1, 'v', 7, 0, 0); a(f'{cvt} v{AQ}, v{AQ+4}, v{AQ+5}')
        S('k', 6, 1, B0); RD(B1, 'v', 7, 0, 1); a(f'{cvt} v{AQ+1}, v{AQ+6}, v{AQ+7}\n{cvt} v{AQ+2}, v{T+8}, v{T+9}')
        S('k', 7, 1, T); RD(B0, 'v', 6, 1, 0); a(f'{cvt} v{AQ+3}, v{T+10}, v{T+11}')
        assert slot[0] > first + wv + 4 * (len(vm_ops) - 1)
        self.stamp(2)
        RD(B0, 'v', 6, 1, 1)
        add(AK, AK, AK + 2)
        a(f'{mf32} {vr(AQ+4,4)}, {vr(KX,4)}, {vr(AQ,4)}, 0')
        add(AK + 1, AK + 1, AK + 3)
        a(f'{cvt} v{AK+2}, v{AK}, v{AK+1}')
        a(f'{mf32} {vr(T+8,4)}, {vr(KX+4,4)}, {vr(AQ,4)}, 0')
        pkadd(AK + 4, AK + 4, AK + 6)
        a(f'{cvt} v{AK+3}, v{AK+4}, v{AK+5}')
        a(f'{mf16} {vr(AK+4,4)}, {vr(AK+2,2)}, {vr(SELK,2)}, 0')
        a(f'{mf16} {vr(T,4)}, {vr(AK+2,2)}, {vr(SELK+2,2)}, 0')
        kslot = [0]
        def KL():
            i = kslot[0] - wv
            if i in (0, 4): a(f'buffer_load_dwordx4 {vr(KX+i,4)}, v{V_L16}, {WS}, {S_REC} offen offset:{256*i} sc1')
            kslot[0] += 1
        for i in range(4): a(f'v_cndmask_b32 v{AK+i}, v{T+8+i}, v{AQ+4+i}, {S_LO}')
        a(f'{cvt} v{KMH}, v{AK+4}, v{AK+5}\n{cvt} v{KMH+1}, v{AK+6}, v{AK+7}')
        a(f'{cvt} v{KMH+2}, v{T}, v{T+1}\n{cvt} v{KMH+3}, v{T+2}, v{T+3}')
        a(f'{mf32} {vr(T+4,4)}, {vr(KMH,4)}, {vr(AQ,4)}, 0')
        V(2, 0)
        a(f'ds_write_b128 v{V_X0}, {vr(AK,4)} offset:8192')
        a(f'v_cndmask_b32 v{T+4}, v{T+5}, v{T+4}, {S_LO}')
        V(2, 1)
        a(f'ds_write_b32 v{V_SMW}, v{T+4}')
        self.stamp(3)
        B3 = M + 8
        ONES, HALF = B2, B2 + 4
        V(3, 0); KL()
        V(3, 1); RD(B3, 'v', 7, 1, 0); KL()
        V(6, 0, B2); RD(B3, 'v', 7, 1, 1); KL()
        V(6, 1, B0); KL()
        if o.get('vb', 4) > 4: V(7, 0, B1)
        a.wait_lds_writes()
        a('s_barrier')
        SX = [T + 4, T + 8, AQ + 4]
        SR = lambda x: a(f'ds_read_b128 {vr(SX[x-1],4)}, v{V_X0+x} offset:8192')
        SR(1)
        if o.get('vb', 4) <= 4: V(7, 0, B1)
        SR(2); SR(3)
        V(4, 0); a(f'ds_read_b128 {vr(T,4)}, v{V_F} offset:1024'); a(f'v_mov_b64 {vr(ONES,2)}, s[26:27]')
        V(4, 1); KL(); a(f'v_mov_b64 {vr(ONES+2,2)}, s[26:27]')
        V(5, 0); KL(); a(f'v_mov_b64 {vr(HALF,2)}, s[8:9]')
        V(7, 1, B3); KL()
        V(5, 1); KL()
        WOS = lambda i, hh: a(f'ds_read_b128 {vr(WVB+8*i+4*hh,4)}, v{V_X0} offset:{16384+8192*i+1024*hh}')
        zs = list(range(M + 8, M + 32, 2)) + list(range(M, M + 8, 2))
        def Z(n):
            for _ in range(n): a(f'v_mov_b64 {vr(zs.pop(0),2)}, 0')
        self.stamp(4)
        pkadd(AK, AK, SX[0]); pkadd(AK + 2, AK + 2, SX[0] + 2)
        PK(SX[1], SX[1], SX[2]); PK(SX[1] + 2, SX[1] + 2, SX[2] + 2)
        PK(T, T, T + 2)
        PK(AK, AK, SX[1]); PK(AK + 2, AK + 2, SX[1] + 2)
        add(T, T, T + 1)
        mx, t2 = T + 2, T + 3
        a(f'v_max3_f32 v{mx}, v{AK}, v{AK+1}, v{AK+2}\nv_max3_f32 v{mx}, v{mx}, v{AK+3}, v{T}')
        PK(AV, AV, AV + 2); PK(AV + 4, AV + 4, AV + 6)
        a(f'v_max_f32_dpp v{t2}, v{mx}, v{mx} {QP}\nv_max_f32_dpp v{mx}, v{mx}, v{mx} {QP}')
        a(f'{cvt} v{AV+2}, v{AV}, v{AV+1}\n{cvt} v{AV+3}, v{AV+4}, v{AV+5}')
        a(f'v_permlane16_swap_b32 v{mx}, v{t2}\nv_max_f32 v{T+1}, v{mx}, v{t2}\nv_max_f32 v{mx}, v{mx}, v{t2}')
        a(f'{mf16} {vr(AV+4,4)}, {vr(SELV,2)}, {vr(AV+2,2)}, 0')
        WOS(0, 0)
        a(f'v_permlane32_swap_b32 v{mx}, v{T+1}\nv_max_f32 v{mx}, v{mx}, v{T+1}\nv_mul_f32 v{mx}, {S_SC}, v{mx}')
        E = [AK, AK + 1, AK + 2, AK + 3, T]
        for e in E: a(f'v_fma_f32 v{e}, v{e}, {S_SC}, -v{mx}')
        for e in E: a(f'v_exp_f32 v{e}, v{e}')
        BX, PM = AQ, T + 6
        a(f'{cvt} v{T+8}, v{AK}, v{AK+1}\n{cvt} v{T+9}, v{AK+2}, v{AK+3}')
        a(f"""
        v_cndmask_b32 v{BX}, 0, v{T+8}, {S_LO}
        v_cndmask_b32 v{BX+1}, 0, v{T+9}, {S_LO}
        v_cndmask_b32 v{BX+2}, v{T+8}, 0, {S_LO}
        v_cndmask_b32 v{BX+3}, v{T+9}, 0, {S_LO}
        v_mov_b32_dpp v{T+1}, v{T} {QP}
        {cvt} v{VMH}, v{AV+4}, v{AV+5}
        """)
        D, D2, DL = AQ + 4, AK + 4, T + 8
        a(f'{mf32} {vr(DL,4)}, {vr(ONES,4)}, {vr(BX,4)}, 0')
        WOS(0, 1)
        a(f'{cvt} v{T+4}, v{T}, v{T+1}\n{cvt} v{T+5}, v{T+1}, v{T}')
        a(f'{mf32} {vr(D2,4)}, {vr(VXC+4,4)}, {vr(BX,4)}, 0')
        WOS(1, 0)
        a(f'v_cndmask_b32 v{PM}, 0, v{T+4}, {S_LO}\nv_cndmask_b32 v{PM+1}, v{T+5}, 0, {S_LO}')
        a(f'{mf32} {vr(D,4)}, {vr(VXC,4)}, {vr(BX,4)}, 0')
        WOS(1, 1)
        a(f'{cvt} v{VMH+1}, v{AV+6}, v{AV+7}')
        a(f'{mf16} {vr(DL,4)}, {vr(HALF,2)}, {vr(PM,2)}, {vr(DL,4)}')
        Z(1)
        a(f'{mf16} {vr(D,4)}, {vr(VMH,2)}, {vr(PM,2)}, {vr(D,4)}')
        Z(o.get('zpv', 5))
        l = DL + 1
        a(f'v_add_f32_dpp v{l}, v{DL}, v{DL} {QP}\nv_rcp_f32 v{l}, v{l}')
        for i in range(4): a(f'v_add_f32_dpp v{D+i}, v{D2+i}, v{D+i} {QP}')
        for i in (0, 2): a(f'v_pk_mul_f32 {vr(D+i,2)}, {vr(D+i,2)}, {vr(l-1,2)} op_sel:[0,1] op_sel_hi:[1,1]')
        tagx = not o.get('bar3')
        a(f'{cvt} v{T}, v{D}, v{D+1}\n{cvt} v{T+1}, v{D+2}, v{D+3}')
        if tagx: a(f'v_and_or_b32 v{T}, v{T}, -2, {S_OTAG}')
        self.stamp(5)
        a(f'ds_write_b64 v{V_OW}, {vr(T,2)}')
        a(f's_cmp_eq_u32 {S_S}, 63\ns_cbranch_scc1 L_Rtail_{tg}')
        OA = AK
        def oread(): a(f'ds_read_b128 {vr(OA,4)}, v{V_F} offset:3072\nds_read_b128 {vr(OA+4,4)}, v{V_F} offset:5120')
        def ocheck():
            a(f'v_bitop3_b32 v{T+2}, v{OA}, v{OA+2}, {S_NOTAG} bitop3:0x42')
            a(f'v_bitop3_b32 v{T+3}, v{OA+4}, v{OA+6}, {S_NOTAG} bitop3:0x42')
            a(f'v_bitop3_b32 v{T+2}, v{T+2}, v{T+3}, 1 bitop3:0x80')
            a(f'v_cmp_eq_u32 vcc, 0, v{T+2}')
        if tagx:
            n1 = min(o.get('z3', 7), len(zs))
            Z(n1)
            for _ in range(o.get('z3', 7) - n1): a('s_nop 1')
            oread(); Z(len(zs))
        else:
            Z(min(6, len(zs)))
            a.wait_lds_writes()
            a('s_barrier')
            oread()
            Z(len(zs))
        self.stamp(6)
        def wo(t, kb):
            fr = WVB + 8 * WO_SPILL.index((t, kb)) if (t, kb) in WO_SPILL else wo_frag(t, kb)
            self.smf(M + 4 * t, OA + 4 * kb, vr(fr, 8))
        def fa(t, i): add(M + 4 * t + i, M + 4 * t + i, M + 4 * t + 2 + i)
        def fc(t): a(f'{cvt} v{AQ+t}, v{M+4*t}, v{M+4*t+1}')
        def tagit(r): a(f'v_and_or_b32 v{r}, v{r}, -2, {S_TAG}')
        a(f'L_wo_{tg}:')
        if tagx:
            wo(0, 0); a(f'v_bitop3_b32 v{T+2}, v{OA}, v{OA+2}, {S_NOTAG} bitop3:0x42')
            wo(1, 0); a(f'v_bitop3_b32 v{T+3}, v{OA+4}, v{OA+6}, {S_NOTAG} bitop3:0x42')
            wo(0, 1); a(f'v_bitop3_b32 v{T+2}, v{T+2}, v{T+3}, 1 bitop3:0x80')
            wo(1, 1); a(f'v_cmp_eq_u32 vcc, 0, v{T+2}')
            wo(2, 0); wo(2, 1); wo(3, 0)
            a(f's_cbranch_vccnz L_ofix_{tg}')
            wo(3, 1)
            def fix():
                a(f'L_ofix_{tg}:\ns_mov_b32 s23, {SPIN}\nL_ofix2_{tg}:')
                a.forget(vm=False)
                oread(); a.wait(lgkm=0); ocheck()
                a(f's_cbranch_vccz L_ofix3_{tg}\ns_sub_u32 s23, s23, 1\ns_cbranch_scc0 L_ofix2_{tg}\ns_xor_b32 {S_NOTAG}, {S_NOTAG}, v_never' if False else
                  f's_cbranch_vccz L_ofix3_{tg}\ns_sub_u32 s23, s23, 1\ns_cbranch_scc0 L_ofix2_{tg}\ns_endpgm\nL_ofix3_{tg}:')
                for r in range(M, M + 16, 2): a(f'v_mov_b64 {vr(r,2)}, 0')
                a(f's_branch L_wo_{tg}')
            self.fixups.append(fix)
        else:
            wo(0, 0); wo(1, 0); wo(0, 1); wo(1, 1); wo(2, 0); wo(2, 1); wo(3, 0); wo(3, 1)
        wo(4, 0); fa(0, 0); fa(0, 1); fa(1, 0)
        wo(4, 1); fa(1, 1); fc(0); fc(1)
        wo(5, 0); fa(2, 0); fa(2, 1); tagit(AQ)
        wo(5, 1); fa(3, 0); fa(3, 1); fc(2)
        wo(6, 0); fc(3)
        wo(6, 1)
        a(f'buffer_store_dwordx4 {vr(AQ,4)}, v{V_IST}, {WS}, {S_IN0} offen {cf}')
        wo(7, 0); fa(4, 0)
        wo(7, 1); fa(4, 1); fc(4); fa(5, 0); fa(5, 1); tagit(AQ + 4); fc(5)
        PK(M + 24, M + 24, M + 26); fc(6); PK(M + 28, M + 28, M + 30); fc(7)
        a(f'buffer_store_dwordx4 {vr(AQ+4,4)}, v{V_IST}, {WS}, {S_IN1} offen {cf}')
        self.stamp(7)
        def pack_kvm():
            a(f's_mov_b64 vcc, {S_LO}')
            for i in range(4):
                qp = '[0,0,0,2]' if i < 2 else '[0,0,1,3]'
                a(f'v_cndmask_b32_dpp v{KMH+i}, v{VMH+i%2}, v{KMH+i}, vcc quad_perm:{qp} row_mask:0xf bank_mask:0xf')
        self.pack_kvm = pack_kvm
        def preA():
            a(f"""
            v_mov_b32 v{PA}, {S_NTAG}
            v_mov_b32 v{PA+4}, {S_NTAG}
            """)
            for i in range(o.get('dA', 4) if wv >= 2 else o.get('dA0', o.get('dA', 4))): dmf(R)
        def slackA():
            preload()
            pack_kvm()
            a(f"""
            s_add_u32 {S_S}, {S_S}, 1
            s_xor_b32 {S_IN0}, {S_IN0}, 0x40000
            s_and_b32 {S_T0}, {S_S}, 3
            s_lshl_b32 {S_T0}, {S_T0}, 13
            v_mov_b64 {vr(M,2)}, -1
            s_andn2_b32 {S_PUBB}, {S_PUBB}, 0x6000
            s_andn2_b32 {S_MEMP}, {S_MEMP}, 0x6000
            v_mov_b64 {vr(M+2,2)}, -1
            s_or_b32 {S_MEMP}, {S_MEMP}, {S_T0}
            s_xor_b32 {S_RST}, {S_T0}, 0x4000
            v_mov_b64 {vr(M+4,2)}, -1
            s_or_b32 {S_RST}, {S_RST}, {S_PUBB}
            s_or_b32 {S_PUBB}, {S_PUBB}, {S_T0}
            v_mov_b64 {vr(M+6,2)}, -1
            """)
            if not o.get('zB'):
                for r in range(AQ, AQ + 24, 2): a(f'v_mov_b64 {vr(r,2)}, 0')
            a.wait(lgkm=0)
        def checkA():
            a(f"""
            v_bitop3_b32 v{VXC}, v{PA}, v{PA+4}, {S_NTAG} bitop3:0x42
            v_and_b32 v{VXC}, 1, v{VXC}
            v_cmp_eq_u32 vcc, 0, v{VXC}
            """)
        def shadowA():
            a(f'v_smfmac_f32_16x16x64_bf16 {vr(R,4)}, {vr(SELR,4)}, {vr(PA,8)}, v{V_IDX} abid:1')
        if True:
            pl = [(M + 24, 'q', 0, 0), (M + 16, 'q', 0, 1), (B0, 'q', 1, 0), (B1, 'q', 1, 1), (T, 'k', 0, 0)]
            chA = [(40, pack_kvm)]
            chA += sa(f"""
            s_add_u32 {S_S}, {S_S}, 1
            s_xor_b32 {S_IN0}, {S_IN0}, 0x40000
            s_and_b32 {S_T0}, {S_S}, 3
            s_lshl_b32 {S_T0}, {S_T0}, 13
            s_andn2_b32 {S_PUBB}, {S_PUBB}, 0x6000
            s_andn2_b32 {S_MEMP}, {S_MEMP}, 0x6000
            s_or_b32 {S_MEMP}, {S_MEMP}, {S_T0}
            s_xor_b32 {S_RST}, {S_T0}, 0x4000
            s_or_b32 {S_RST}, {S_RST}, {S_PUBB}
            s_or_b32 {S_PUBB}, {S_PUBB}, {S_T0}
            """)
            zz = [f'v_mov_b64 {vr(r,2)}, 0' for r in range(AQ, AQ + 24, 2)] + [f'v_mov_b32 v{M}, -1']
            for k in range(10):
                chA.append((16, lambda k=k: (RD(*pl[k // 2], k % 2), a(zz[k]))))
            chA += va(zz[10:])
            chA.append((4, lambda: a.wait(lgkm=0)))
            zr = lambda: a(f'v_mov_b64 {vr(R,2)}, 0\nv_mov_b64 {vr(R+2,2)}, 0')
            chA.append((16, zr))
            self.poll2('A' + tg, PA, S_INP, chA, o.get('tA0', 260), o.get('tA1', 180), o.get('tA2', 100), lambda: dmf(VXC + 4), checkA, shadowA, retry=zr)
        self.stamp(8)
        hp = ''
        a(f"""
        {'s_nop 1' + chr(10) + a.dummy + chr(10) + 's_nop 0' if hp else ''}
        v_add_f32_dpp v{R}, v{R}, v{R} row_ror:8 row_mask:0xf bank_mask:0x3 {hp}
        v_add_f32_dpp v{R+1}, v{R+1}, v{R+1} row_ror:8 row_mask:0xf bank_mask:0x3 {hp}
        v_add_f32_dpp v{R}, v{R+2}, v{R+2} row_ror:8 row_mask:0xf bank_mask:0xc {hp}
        v_add_f32_dpp v{R+1}, v{R+3}, v{R+3} row_ror:8 row_mask:0xf bank_mask:0xc {hp}
        v_add_f32_dpp v{R}, v{R}, v{R} row_ror:12 row_mask:0xf bank_mask:0xf
        v_add_f32_dpp v{R+1}, v{R+1}, v{R+1} row_ror:12 row_mask:0xf bank_mask:0xf
        {cvt} v{R+2}, v{R}, v{R+1}
        buffer_store_dword v{R+2}, v{V_PUB}, {WS}, {S_PUBB} offen {cf}
        """)
        self.stamp(9)
        a(f'buffer_store_dword v{M}, v{V_PUB}, {WS}, {S_RST} offen {cf}')
        if o.get('span2') and wv == 0:
            lab = a.newlabel('n8')
            a(f's_cmp_lg_u32 {S_S}, 8\ns_cbranch_scc1 {lab}')
            self.note(5, T + 10)
            a(f'{lab}:')
        if not o.get('rt'): self.dump_stamps(tg)
        a(f's_branch L_Rloop_{tg}')
        a.hot = False
        a(f'{spin}:')
        self.spin_flag(V_FLAG, f'v{V_Z}', S_FKV)
        a(f's_branch {back}')
        for txt, sh in zip(self.late, self.late_sh):
            pre, post = txt.split('@SH@')
            a(pre); a('s_nop 7'); sh(); a('s_nop 7'); a(post)
        for f in self.fixups: f()
        a(f'L_Rtail_{tg}:')
        a.forget()
        self.pack_kvm()
        a(f'''
        buffer_store_dwordx4 {vr(KMH,4)}, v{V_L16}, {WS}, {S_KVM} offen sc1
        s_waitcnt vmcnt(0) lgkmcnt(0)
        buffer_store_dword v{V_F}, v{V_ONE}, {WS}, {S_FM} offen sc1
        buffer_store_dword v{V_F}, v{V_ONE}, {WS}, {S_FM} offen offset:2048 sc1
        ''')
        self.tstamp(6, T + 4)
        self.note(6, T + 4)
        if o.get('stamp'):
            set_srd(a, 12, P_DBG, 256)
            a(f'''
            s_memtime s[82:83]
            s_memrealtime s[84:85]
            s_waitcnt lgkmcnt(0)
            s_sub_u32 s82, s82, s80
            s_sub_u32 s84, s84, s30
            s_sub_u32 s28, s28, s30
            v_mov_b32 v{T}, s82
            v_mov_b32 v{T+1}, {S_FAST}
            v_mov_b32 v{T+2}, s28
            v_mov_b32 v{T+3}, s84
            v_mov_b32 v{T+4}, 16
            buffer_store_dwordx4 {vr(T,4)}, v{T+4}, {ST}, 0 offen
            ''')
        a('s_endpgm')
        a.auto_vm = True
```

```python
import sys, math
from asmlib import Asm
import layout as L

KNAME = 'gated_mix__memory_aug_recurrent_mem_tr__sliding_local_dilated__prompt_kernel'

from gen_common import *

class Gen:
    def __init__(self, opt):
        self.o = opt
        self.a = Asm()

    def prologue(self):
        a = self.a; o = self.o
        a(f'''
        s_cmp_ge_u32 s2, 256
        s_cbranch_scc1 L_exit
        {'s_memrealtime s[30:31]' if (o.get('stamp') or o.get('span') or o.get('span2')) else ''}
        s_load_dwordx16 s[32:47], s[0:1], 0
        s_load_dwordx8 s[48:55], s[0:1], 64
        s_load_dwordx4 s[56:59], s[0:1], 96
        s_getreg_b32 s20, hwreg(HW_REG_XCC_ID)
        v_lshrrev_b32 v1, 6, v0
        s_and_b32 s20, s20, 7
        v_readfirstlane_b32 {S_W}, v1
        s_mov_b32 {SPIN}, 0x400000
        ''')
        if o.get('fake_xcc'):
            a('s_and_b32 s20, s2, 1\ns_add_u32 s20, s20, 1')
        if o.get('fake_perm'):
            a('s_xor_b32 s2, s2, 0x55\ns_lshl_b32 s21, s2, 3\ns_lshr_b32 s2, s2, 5\ns_or_b32 s2, s2, s21\ns_and_b32 s2, s2, 255')
        a.wait(lgkm=0)
        if o.get('touch'):
            MBy = 1 << 20
            touch = [(p, off) for p in (P_WO, P_WQ, P_WK, P_WV) for off in (0, 2 * MBy, 4 * MBy - 128)]
            touch += [(P_X, 2 * MBy - 128), (P_GATE, 0), (P_MEM0, 0), (P_WQKV, 0), (P_WQKV, 512 * 3072 - 128), (P_WOB, 0), (P_DBG, 0)]
            touch += [(P_WS, L.GATE + 16384), (P_WS, L.RIN + MBy), (None, 0)]
            a(f'v_mov_b32 v30, s{P_X}\nv_mov_b32 v31, s{P_X+1}')
            for i, (p, off) in enumerate(touch):
                if p is None: a('s_getpc_b64 s[22:23]\ns_add_u32 s22, s22, 0x8000\ns_addc_u32 s23, s23, 0')
                elif off: a(f's_add_u32 s22, s{p}, {hex(off)}\ns_addc_u32 s23, s{p+1}, 0')
                lo, hi = ('s22', 's23') if (off or p is None) else (f's{p}', f's{p+1}')
                a(f'v_writelane_b32 v30, {lo}, {i+1}\nv_writelane_b32 v31, {hi}, {i+1}')
            a('global_load_dword v29, v[30:31], off')
        set_srd(a, 4, P_WS, L.WS_BYTES)
        set_srd(a, 12, P_DBG, 256)
        a(f'''
        s_mul_i32 s21, s20, 24
        s_add_u32 s21, s21, 40
        s_cmp_eq_u32 s20, 0
        s_cselect_b32 s21, 0, s21
        s_mov_b32 s29, s21
        s_lshr_b32 {S_RANK}, s2, 3
        s_lshl_b32 s28, 1, {S_RANK}
        s_mov_b32 {S_TEAM}, s20
        s_mov_b32 s19, 0
        v_mov_b32 v2, s21
        v_mov_b32 v63, s28
        v_cmp_ne_u32 vcc, 0, v0
        v_mov_b32 v4, {hex(L.OOB)}
        v_cndmask_b32 v2, v2, v4, vcc
        ''')
        a(f'buffer_atomic_or v63, v2, {ST}, 0 offen sc0')
        set_srd(a, 8, P_X, 2048 * 1024)
        a(f'''
        v_and_b32 v5, 63, v0
        v_lshlrev_b32 v5, 4, v5
        s_lshl_b32 s22, s2, 13
        s_lshl_b32 s23, {S_W}, 11
        s_add_u32 s22, s22, s23
        buffer_load_dwordx4 v[8:11], v5, {SA}, s22 offen
        buffer_load_dwordx4 v[12:15], v5, {SA}, s22 offen offset:1024
        ''')
        set_srd(a, 24, P_GATE, 1024)
        a(f'buffer_load_dwordx4 v[16:19], v5, s[24:27], 0 offen')
        a(f'''
        v_mov_b32 v20, -1
        v_mov_b32 v21, -1
        v_mov_b32 v22, -1
        v_mov_b32 v23, -1
        v_mov_b32 v24, 0
        v_mov_b32 v25, 0
        v_mov_b32 v26, 0
        v_mov_b32 v27, 0
        v_lshlrev_b32 v6, 4, v0
        s_lshl_b32 s22, s2, 12
        s_add_u32 s22, s22, {hex(L.RIN)}
        buffer_store_dwordx4 v[20:23], v6, {WS}, s22 offen sc1
        v_cmp_le_u32 vcc, 0x80, v0
        s_lshl_b32 s22, s2, 11
        s_add_u32 s22, s22, {hex(L.FLG)}
        v_cndmask_b32 v7, v6, v4, vcc
        ''')
        if o.get('keep_kv_flags'):
            a(f's_cmp_lt_u32 s2, 64\ns_cselect_b32 s22, {hex(L.OOB)}, s22')
        a(f'buffer_store_dwordx4 v[24:27], v7, {WS}, s22 offen sc1')
        self.vq_role = list(a.vq)
        a('L_role_ok:')
        a(f's_cmp_eq_u32 {S_TEAM}, 0\ns_cbranch_scc1 L_R')
        a('s_branch L_worker')

    def confirm_role(self):
        a = self.a
        ok = a.newlabel('cf'); sk = a.newlabel('cfs')
        a(f's_cmp_eq_u32 s19, 1\ns_cbranch_scc1 {ok}')
        a(f'v_mov_b32 v62, {L.LDS_BYTES - 32}\ns_cmp_lg_u32 {S_W}, 0\ns_cbranch_scc1 {sk}')
        sv = list(a.vq)
        a('v_readfirstlane_b32 s21, v63\nv_mov_b32 v63, s21\nds_write_b32 v62, v63')
        a.wait(lgkm=0)
        a.vq = sv
        a(f'{sk}:\ns_barrier\nds_read_b32 v61, v62')
        a(f'v_readfirstlane_b32 s21, v61\ns_mov_b32 s19, 1\ns_and_b32 s22, s21, s28\ns_cbranch_scc1 L_reclaim\n{ok}:')

    def reclaim(self):
        a = self.a
        a.auto_vm = False
        set_srd(a, 12, P_DBG, 256)
        a(f"""
        L_reclaim:
        s_waitcnt vmcnt(0)
        s_barrier
        s_mov_b32 s12, s{P_DBG}
        s_mov_b32 s13, s{P_DBG+1}
        s_mov_b32 s14, 256
        s_mov_b32 s15, 0x20000
        v_mov_b32 v4, {hex(L.OOB)}
        v_cmp_ne_u32 vcc, 0, v0
        s_cmp_lg_u32 {S_W}, 0
        s_cbranch_scc1 L_rc_done
        v_mov_b32 v2, s29
        v_cndmask_b32 v2, v2, v4, vcc
        v_mov_b32 v63, 1
        buffer_atomic_add v63, v2, {ST}, 0 offen offset:8 sc0
        v_and_b32 v2, 7, v0
        v_mul_u32_u24 v61, 24, v2
        v_add_u32 v61, 40, v61
        v_cmp_eq_u32 vcc, 0, v2
        v_cndmask_b32 v61, v61, v2, vcc
        s_waitcnt vmcnt(0)
        v_readfirstlane_b32 s28, v63
        s_mov_b32 s21, {SPIN}
        L_ov_poll:
        buffer_load_dword v60, v61, {ST}, 0 offen sc1
        buffer_load_dword v63, v61, {ST}, 0 offen offset:8 sc1
        s_waitcnt vmcnt(0)
        s_mov_b32 s22, 0
        """)
        for x in range(8): a(f'v_readlane_b32 s{64+x}, v60, {x}\nv_readlane_b32 s{72+x}, v63, {x}')
        a('s_nop 1')
        for x in range(8): a(f's_bcnt1_i32_b32 s23, s{64+x}\ns_add_u32 s22, s22, s23\ns_add_u32 s22, s22, s{72+x}')
        a(f"""
        s_cmp_ge_u32 s22, 256
        s_cbranch_scc1 L_ov_have
        s_sub_u32 s21, s21, 1
        s_cbranch_scc1 L_ov_none
        s_sleep 4
        s_branch L_ov_poll
        L_ov_have:
        s_mov_b32 s22, 0
        """)
        for x in range(8):
            a(f"""
            s_bcnt0_i32_b32 s{80+x}, s{64+x}
            s_cmp_eq_u32 s20, {x}
            s_cselect_b32 s21, s{64+x}, s21
            s_cselect_b32 s29, s{80+x}, s29
            s_max_u32 s23, s{72+x}, s{80+x}
            s_sub_u32 s23, s23, s{80+x}
            s_cmp_gt_u32 s20, {x}
            s_cselect_b32 s23, s23, 0
            s_add_u32 s22, s22, s23
            """)
        a(f's_cmp_lt_u32 s28, s29\ns_cbranch_scc1 L_ov_bit\ns_sub_u32 s28, s28, s29\ns_add_u32 s22, s22, s28')
        for x in range(8):
            a(f"""
            s_max_u32 s23, s{80+x}, s{72+x}
            s_sub_u32 s23, s23, s{72+x}
            s_mov_b32 {S_TEAM}, {x}
            s_mov_b32 s21, s{64+x}
            s_add_u32 s28, s{72+x}, s22
            s_cmp_lt_u32 s22, s23
            s_cbranch_scc1 L_ov_bit
            s_sub_u32 s22, s22, s23
            """)
        a(f"""
        L_ov_none:
        s_mov_b32 {S_TEAM}, 8
        s_mov_b32 {S_RANK}, 0
        s_branch L_rc_have
        L_ov_bit:
        s_ff0_i32_b32 {S_RANK}, s21
        s_and_b32 {S_RANK}, {S_RANK}, 31
        s_bitset1_b32 s21, {S_RANK}
        s_sub_u32 s28, s28, 1
        s_cbranch_scc0 L_ov_bit
        L_rc_have:
        s_lshl_b32 s21, {S_TEAM}, 5
        s_add_u32 s21, s21, {S_RANK}
        v_mov_b32 v63, s21
        ds_write_b32 v62, v63
        s_waitcnt lgkmcnt(0)
        L_rc_done:
        s_barrier
        ds_read_b32 v63, v62
        s_waitcnt lgkmcnt(0)
        v_readfirstlane_b32 s21, v63
        s_nop 0
        s_lshr_b32 {S_TEAM}, s21, 5
        s_and_b32 {S_RANK}, s21, 31
        s_cmp_lt_u32 {S_TEAM}, 8
        s_cbranch_scc1 L_role_ok
        """)
        a.forget(); a.auto_vm = True

    def gate_and_store(self, tmp=28):
        a = self.a
        a('v_mov_b32 v20, 0\nv_mov_b32 v21, 0')
        for i in range(4):
            a(f'v_dot2c_f32_bf16 v20, v{8+i}, v{16+i}\nv_dot2c_f32_bf16 v21, v{12+i}, v{16+i}')
        a('s_nop 2')
        a('v_permlane32_swap_b32 v20, v21\nv_add_f32 v20, v20, v21')
        a('v_mov_b32 v21, v20\nv_permlane16_swap_b32 v20, v21\nv_add_f32 v20, v20, v21')
        for sh in (8, 4, 2, 1):
            a(f'v_add_f32_dpp v20, v20, v20 row_ror:{sh} row_mask:0xf bank_mask:0xf')
        a(f'''
        v_mul_f32 v20, 0xbfb8aa3b, v20
        v_exp_f32 v20, v20
        v_add_f32 v20, 1.0, v20
        v_rcp_f32 v20, v20
        v_and_b32 v21, 63, v0
        v_lshrrev_b32 v22, 5, v21
        v_lshlrev_b32 v22, 2, v22
        v_and_b32 v21, 31, v21
        v_cmp_ne_u32 vcc, 0, v21
        v_mov_b32 v23, {hex(L.OOB)}
        v_cndmask_b32 v22, v22, v23, vcc
        s_lshl_b32 s22, s2, 5
        s_lshl_b32 s23, {S_W}, 3
        s_add_u32 s22, s22, s23
        s_add_u32 s22, s22, {hex(L.GATE)}
        buffer_store_dword v20, v22, {WS}, s22 offen sc1
        ''')

    def signal_init(self, tid=0, t=20, barrier=True):
        a = self.a
        lab = a.newlabel('sig')
        set_srd(a, 12, P_DBG, 256)
        if barrier: a('s_barrier')
        a(f'''
        s_cmp_lg_u32 {S_W}, 0
        s_cbranch_scc1 {lab}
        s_and_b32 s21, s2, 3
        s_lshl_b32 s21, s21, 6
        s_add_u32 s21, s21, 60
        v_mov_b32 v{t}, s21
        v_mov_b32 v{t+1}, 1
        v_mov_b32 v{t+2}, {hex(L.OOB)}
        v_and_b32 v{t+3}, 63, v{tid}
        v_cmp_ne_u32 vcc, 0, v{t+3}
        v_cndmask_b32 v{t}, v{t}, v{t+2}, vcc
        buffer_atomic_add v{t+1}, v{t}, {ST}, 0 offen
        {lab}:
        ''')

    def wait_init(self, t0=20, tid=0, sleep=16):
        a = self.a
        lab = a.newlabel('wi'); ok = a.newlabel('wiok')
        set_srd(a, 12, P_DBG, 256)
        sv = a.auto_vm; a.auto_vm = False
        a(f'''
        v_and_b32 v{t0}, 3, v{tid}
        v_lshlrev_b32 v{t0}, 6, v{t0}
        v_add_u32 v{t0}, 60, v{t0}
        s_mul_i32 s21, {S_TEAM}, 24
        s_add_u32 s21, s21, 40
        s_cmp_eq_u32 {S_TEAM}, 0
        s_cselect_b32 s21, 0, s21
        v_and_b32 v{t0+2}, 1, v{tid}
        v_lshl_add_u32 v{t0+2}, v{t0+2}, 3, s21
        s_mov_b32 s23, {SPIN}
        {lab}:
        buffer_load_dword v{t0+1}, v{t0}, {ST}, 0 offen sc1
        buffer_load_dword v{t0+3}, v{t0+2}, {ST}, 0 offen sc1
        s_waitcnt vmcnt(0)
        v_readlane_b32 s22, v{t0+3}, 1
        v_readlane_b32 s84, v{t0+1}, 0
        v_readlane_b32 s85, v{t0+1}, 1
        v_readlane_b32 s86, v{t0+1}, 2
        v_readlane_b32 s87, v{t0+1}, 3
        v_readlane_b32 s21, v{t0+3}, 0
        s_nop 1
        s_bcnt1_i32_b32 s21, s21
        s_add_u32 s21, s21, s22
        s_add_u32 s84, s84, s85
        s_add_u32 s86, s86, s87
        s_add_u32 s84, s84, s86
        s_cmp_ge_u32 s84, 256
        s_cbranch_scc1 {ok}
        s_sleep {sleep}
        s_sub_u32 s23, s23, 1
        s_cbranch_scc0 {lab}
        {ok}:
        ''')
        a.auto_vm = sv
        a.forget()

    def tstamp(self, i, t):
        if not self.o.get('stamp'): return
        a = self.a
        lab = a.newlabel('ts')
        a(f'''
        s_cmp_lg_u32 {S_W}, 0
        s_cbranch_scc1 {lab}
        s_memrealtime s[90:91]
        s_lshl_b32 s92, {S_TEAM}, 5
        s_add_u32 s92, s92, {S_RANK}
        s_lshl_b32 s92, s92, 7
        s_add_u32 s92, s92, {hex(L.DBG + 65536 + 4 * i)}
        s_waitcnt lgkmcnt(0)
        v_mov_b32 v{t}, s90
        v_mov_b32 v{t+1}, 0
        buffer_store_dword v{t}, v{t+1}, {WS}, s92 offen
        {'v_mov_b32 v%d, s30' % t if i == 1 else ''}
        {'buffer_store_dword v%d, v%d, %s, s92 offen offset:124' % (t, t+1, WS) if i == 1 else ''}
        s_waitcnt vmcnt(0)
        {lab}:
        ''')

    def span(self, t):
        if not self.o.get('span'): return
        a = self.a
        set_srd(a, 12, P_DBG, 256)
        a(f'''
        s_waitcnt vmcnt(0)
        s_memrealtime s[90:91]
        s_not_b32 s30, s30
        v_mov_b32 v{t}, 16
        v_mov_b32 v{t+1}, s30
        s_waitcnt lgkmcnt(0)
        v_mov_b32 v{t+2}, s90
        s_mov_b64 exec, 1
        buffer_atomic_umax v{t+1}, v{t}, {ST}, 0 offen
        buffer_atomic_umax v{t+2}, v{t}, {ST}, 0 offen offset:4
        ''')
    def note(self, slot, t, rank=0):
        if not self.o.get('span2'): return
        a = self.a
        lab = a.newlabel('nt')
        a(f's_cmp_lg_u32 {S_W}, 0\ns_cbranch_scc1 {lab}\ns_cmp_lg_u32 {S_RANK}, {rank}\ns_cbranch_scc1 {lab}\ns_cmp_gt_u32 {S_TEAM}, 1\ns_cbranch_scc1 {lab}')
        set_srd(a, 92, P_DBG, 256)
        a(f'''
        s_memrealtime s[90:91]
        v_mov_b32 v{t}, {4*slot}
        s_waitcnt lgkmcnt(0)
        s_sub_u32 s90, s90, s30
        v_mov_b32 v{t+1}, s90
        buffer_store_dword v{t+1}, v{t}, s[92:95], 0 offen
        {lab}:
        ''')
    def mark(self, i):
        if self.o.get('stamp'): self.a.raw(f'    s_memrealtime s[{82+2*i if i < 4 else 86+2*i}:{83+2*i if i < 4 else 87+2*i}]')
    def dump_marks(self, t):
        if not self.o.get('stamp'): return
        a = self.a
        a(f's_lshl_b32 s92, {S_TEAM}, 5\ns_add_u32 s92, s92, {S_RANK}\ns_lshl_b32 s92, s92, 7\ns_add_u32 s92, s92, {hex(L.DBG + 65536)}\ns_waitcnt lgkmcnt(0)\nv_mov_b32 v{t+1}, 0')
        for i in range(7):
            a(f'v_mov_b32 v{t}, s{82+2*i if i < 4 else 86+2*i}\nbuffer_store_dword v{t}, v{t+1}, {WS}, s92 offen offset:{4*(8+i)}')

    def dma_chunk(self, voff, soff, stride, n=4):
        a = self.a
        for i in range(n):
            a(f'buffer_load_dwordx4 {voff}, {SA}, {soff} offen lds')
            a(f's_add_u32 m0, m0, 1024')
            if i < n - 1: a(f's_add_u32 {soff}, {soff}, {16*stride}')

    def dma_block(self, voff, soff, stride):
        a = self.a
        for i in range(16):
            a(f'buffer_load_dwordx4 {voff}, {SA}, {soff} offen lds')
            if i < 15: a(f's_add_u32 m0, m0, 1056\ns_add_u32 {soff}, {soff}, {stride}')

    def load_table(self, label, dst, ndw, tmp):
        a = self.a
        pc = a.newlabel('pc')
        a(f'''
        s_getpc_b64 s[12:13]
        {pc}:
        s_add_u32 s12, s12, {label}-{pc}
        s_addc_u32 s13, s13, 0
        s_mov_b32 s14, {256*ndw*4}
        s_mov_b32 s15, 0x20000
        v_mul_u32_u24 v{tmp}, {ndw*4}, v0
        ''')
        for i in range(0, ndw, 4):
            a(f'buffer_load_dwordx4 {vr(dst+i,4)}, v{tmp}, {ST}, 0 offen offset:{i*4}')

from rrole import RRole
from workers import Workers

class Full(Gen, RRole, Workers):
    def build(self):
        a = self.a
        self.prologue()
        self.r_role()
        self.worker_role()
        self.reclaim()
        a('L_exit:\ns_endpgm')
        a.timed = not self.o.get('untimed')
        n = a.pad_hazards()
        hdr = open('cdna_kernels/' + KNAME[:-7] + '.s.ref').read().split('\n')
        hdr = [h for h in hdr if h.startswith(';') and '@launch' not in h and 'Override' not in h and 'grid=ceil' not in h]
        txt = '\n'.join(hdr) + f'\n; @launch grid=(256,1,1) block=(256,1,1) lds={L.LDS_BYTES}\n'
        txt += f'.amdgcn_target "amdgcn-amd-amdhsa--gfx950"\n.text\n.globl {KNAME}\n.p2align 8\n.type {KNAME},@function\n{KNAME}:\n'
        txt += a.text()
        txt += self.tables()
        txt += f'''.section .rodata,"a"
.p2align 6
.amdhsa_kernel {KNAME}
  .amdhsa_next_free_vgpr 512
  .amdhsa_next_free_sgpr 102
  .amdhsa_accum_offset 256
  .amdhsa_group_segment_fixed_size 0
  .amdhsa_kernarg_size 112
  .amdhsa_user_sgpr_count 2
  .amdhsa_user_sgpr_kernarg_segment_ptr 1
  .amdhsa_system_sgpr_workgroup_id_x 1
  .amdhsa_float_denorm_mode_32 3
.end_amdhsa_kernel
'''
        return txt, n

if __name__ == '__main__':
    opt = {}
    out = 'cdna_kernels/' + KNAME[:-7] + '.s'
    for arg in sys.argv[1:]:
        if arg.startswith('-o'): out = arg[2:]
        elif '=' in arg:
            k, v = arg.split('='); opt[k] = int(v)
        else: opt[arg] = 1
    txt, n = Full(opt).build()
    open(out, 'w').write(txt)
    print('written', out, len(txt), 'bytes; hazard pad states', n)
```

```python
import layout as L
from gen_common import *

V_L16, V_IST, V_PUB, V_X0, V_F, V_SMW, V_OW, V_WV = 1, 2, 3, 4, 8, 9, 10, 11
KMH, VMH = 12, 16
V_IDX, V_WV2 = 18, 19
SELR, SELV, V_ONE, V_DUM, SELQ, SELK = 20, 24, 26, 27, 28, 128
V_Z = 29
VXC, VXN, KX = 32, 40, 48
WVB = 56
AQ, AK, AV = 72, 80, 88
M = 96
T = 132
WO0 = 144
V_FLAG = 0
SC = 128 ** -0.5 * 1.4426950408889634
import struct
def f2u(x): return struct.unpack('<I', struct.pack('<f', x))[0]

WO_SPILL = [(0, 0), (2, 0)]
def wo_frag(t, kb):
    order = [(t_, k_) for t_ in range(8) for k_ in range(2) if (t_, k_) not in WO_SPILL]
    return WO0 + 8 * order.index((t, kb))

LDSF = [('q', 0, 0), ('q', 0, 1), ('q', 1, 0), ('q', 1, 1), ('k', 0, 0)] + [('k', k, 1) for k in range(2, 8)] + [('k', 7, 0)] + [('v', k, p) for k in (6, 7) for p in range(2)]
AGF = [(m, k, p) for m in 'qkv' for k in range(8) for p in range(2) if (m, k, p) not in LDSF]
assert len(LDSF) == 16 and len(AGF) == 32
S_S = 's61'
S_MEMP = 's62'
S_PUBB = 's63'
S_IN0, S_IN1 = 's64', 's65'
S_INP = 's66'
S_REC = 's67'
S_FKV = 's68'
S_KVM, S_FM = 's69', 's70'
S_RST = 's71'
S_LO = 's[72:73]'
S_SC = 's74'
S_T0, S_T1 = 's75', 's76'
S_FAST = 's77'
S_TAG, S_NTAG = 's78', 's79'
S_OTAG, S_NOTAG = 's24', 's25'

class RRole:
    def smf(self, acc, A, B):
        self.a(f'v_smfmac_f32_16x16x64_bf16 {vr(acc,4)}, {vr(A,4)}, {B}, v{V_IDX}')

    def r_role(self):
        a = self.a; o = self.o
        a('L_R:')
        a.vq = list(self.vq_role)
        self.mark(0)
        self.note(2, 40)
        VD8, VD1, VTQ, VTO, VTA = 28, 29, 30, 31, 7
        a(f"""
        v_and_b32 v1, 63, v0
        v_lshrrev_b32 v2, 4, v1
        v_and_b32 v3, 15, v1
        v_lshlrev_b32 v4, 4, v3
        v_lshl_add_u32 v{VD8}, v2, 17, v4
        v_and_b32 v4, 0x70, v4
        v_lshrrev_b32 v3, 3, v3
        v_lshl_add_u32 v4, v3, 9, v4
        v_lshl_add_u32 v{VD1}, v2, 14, v4
        s_lshl_b32 s21, {S_W}, 7
        v_add_u32 v{VD1}, s21, v{VD1}
        s_mul_i32 s78, {S_W}, {L.BLK}
        """)
        groups = [(m, b) for m in 'oqkv' for b in range(2)]
        def issue(gi):
            mat, b = groups[gi]
            if b == 0: set_srd(a, 8, {'q': P_WQ, 'k': P_WK, 'v': P_WV, 'o': P_WO}[mat], 4 << 20)
            a(f's_add_u32 m0, s78, {(gi % 2) * L.GRP}')
            if mat != 'o':
                a(f's_add_u32 s21, {S_W}, {4 * b}\ns_lshl_b32 s21, s21, 19\ns_lshl_b32 s22, {S_RANK}, 8\ns_add_u32 s21, s21, s22')
                self.dma_block(f'v{VD8}', 's21', 8192)
            else:
                a(f's_lshl_b32 s21, {S_RANK}, 17\ns_add_u32 s21, s21, {b * 65536}')
                self.dma_block(f'v{VD1}', 's21', 1024)
        issue(0)
        self.load_table('T_R', 96, 28, 7)
        self.confirm_role()
        issue(1)
        self.mark(1)
        self.gate_and_store()
        names = list(L.r_table().keys())
        def tv(n): return 96 + names.index(n)
        a(f'v_mov_b32 v{VTQ}, v{tv("trq")}\nv_mov_b32 v{VTO}, v{tv("tro")}\nv_add_u32 v6, 65536, v{tv("wv")}')
        if o.get('code'):
            pc = a.newlabel('pc')
            a(f's_getpc_b64 s[12:13]\n{pc}:\ns_add_u32 s12, s12, L_R_ready-{pc}\ns_addc_u32 s13, s13, 0\ns_mov_b32 s14, L_R_slow-L_R_ready\ns_mov_b32 s15, 0x20000')
            a(f'v_lshlrev_b32 v1, 7, v0\nbuffer_load_dword v27, v1, {ST}, 0 offen')
        else:
            a(f'buffer_load_dword v27, v{tv("one")}, {WS}, 0 offen')
        a(f'buffer_load_dword v26, v{tv("mm")}, {WS}, 0 offen')
        a.auto_vm = False
        TMP = 56
        park = {}
        parkregs = [32, 64, 72, 80, 88, 124, 132, 8]
        for f in LDSF:
            if f[0] == 'k': park[f] = parkregs.pop(0)
            if f[0] == 'q': park[f] = -8 * AGF.index(('v', 3 + 2 * f[1], f[2])) - 1
        S_RDY = 's76'
        def scalars():
            if o.get('pa2', 0):
                dec = f's_lshr_b32 s84, {S_RANK}, 3\ns_lshl_b32 s84, s84, 1\ns_lshr_b32 s21, {S_W}, 1\ns_add_u32 s84, s84, s21\n' \
                      f's_lshr_b32 s85, {S_RANK}, 1\ns_and_b32 s85, s85, 3\n' \
                      f's_and_b32 s86, {S_RANK}, 1\ns_lshl_b32 s86, s86, 1\ns_and_b32 s21, {S_W}, 1\ns_add_u32 s86, s86, s21'
            else:
                dec = f's_lshr_b32 s84, {S_RANK}, 2\ns_and_b32 s85, {S_RANK}, 3\ns_mov_b32 s86, {S_W}'
            a(f'''
            {dec}
            s_lshl_b32 {S_INP}, s84, 2
            s_add_u32 {S_INP}, {S_INP}, s85
            s_lshl_b32 {S_INP}, {S_INP}, 2
            s_add_u32 {S_INP}, {S_INP}, s86
            s_lshl_b32 {S_INP}, {S_INP}, 11
            s_add_u32 {S_INP}, {S_INP}, {hex(L.RIN)}
            s_lshl_b32 {S_PUBB}, s84, 10
            s_and_b32 s22, s85, 2
            s_lshl_b32 s22, s22, 7
            s_add_u32 {S_PUBB}, {S_PUBB}, s22
            s_and_b32 s22, s85, 1
            s_lshl_b32 s22, s22, 5
            s_add_u32 {S_PUBB}, {S_PUBB}, s22
            s_lshl_b32 s22, s86, 6
            s_add_u32 {S_PUBB}, {S_PUBB}, s22
            s_add_u32 {S_PUBB}, {S_PUBB}, {hex(L.RMEM)}
            s_and_b32 s22, s84, 1
            s_lshl_b32 s22, s22, 9
            s_lshr_b32 s21, s84, 1
            s_lshl_b32 s21, s21, 7
            s_add_u32 s21, s21, s22
            s_lshl_b32 s22, s85, 3
            s_add_u32 s21, s21, s22
            s_lshl_b32 s22, s86, 11
            s_add_u32 s75, s21, s22
            s_mul_i32 {S_REC}, {S_RANK}, 24576
            s_mul_i32 s21, {S_W}, 6144
            s_add_u32 {S_REC}, {S_REC}, s21
            s_lshl_b32 {S_FKV}, {S_RANK}, 6
            s_lshl_b32 s21, {S_W}, 2
            s_add_u32 {S_FKV}, {S_FKV}, s21
            s_add_u32 {S_FM}, {S_FKV}, {hex(L.F_M - 4096)}
            s_add_u32 {S_FKV}, {S_FKV}, {hex(L.F_KV)}
            s_lshl_b32 {S_KVM}, {S_RANK}, 12
            s_lshl_b32 s21, {S_W}, 10
            s_add_u32 {S_KVM}, {S_KVM}, s21
            s_add_u32 {S_KVM}, {S_KVM}, {hex(L.KVM - 131072)}
            s_lshl_b32 s21, {S_W}, 11
            s_add_u32 {S_MEMP}, s21, {hex(L.RMEM)}
            s_lshl_b32 {S_IN0}, {S_RANK}, 6
            s_add_u32 {S_IN0}, {S_IN0}, {hex(L.RIN)}
            s_mov_b32 s72, 0x33333333
            s_mov_b32 s73, 0x33333333
            s_mov_b32 {S_SC}, {hex(f2u(SC))}
            s_mov_b32 {S_S}, 0
            ''')
        def first_records(l16):
            for i in range(2):
                a(f'buffer_load_dwordx4 {vr(KX+4*i,4)}, v{l16}, {WS}, {S_REC} offen offset:{1024*i} sc1')
                a(f'buffer_load_dwordx4 {vr(VXN+4*i,4)}, v{l16}, {WS}, {S_REC} offen offset:{2048+1024*i} sc1')
        def stage_w():
            set_srd(a, 12, P_DBG, 256)
            a(f"""
            v_and_b32 v2, 1, v0
            v_lshlrev_b32 v5, 3, v2
            v_lshlrev_b32 v2, 11, v2
            buffer_load_dword v3, v5, {ST}, 0 offen sc1
            """)
        def stage_x():
            a(f'buffer_load_dword v4, v2, {WS}, {S_FKV} offen sc1')
        def stage_y():
            a(f"""
            v_lshl_or_b32 v140, v141, 16, v140
            v_readlane_b32 s21, v3, 0
            v_readlane_b32 s22, v3, 1
            v_cmp_eq_u32 vcc, 0, v4
            s_mov_b32 {S_RDY}, 0
            s_bcnt1_i32_b32 s21, s21
            s_add_u32 s21, s21, s22
            s_mov_b32 {S_FAST}, 1
            s_cbranch_vccnz L_R_notyet
            s_cmp_lt_u32 s21, 32
            s_cbranch_scc1 L_R_notyet
            s_mov_b32 {S_RDY}, 1
            buffer_store_dword v140, v{tv("pub")}, {WS}, {S_PUBB} offen sc1
            """)
            first_records(tv('l16'))
            a('L_R_notyet:')
        scalars()
        set_srd(a, 24, P_MEM0, 8192)
        a(f'buffer_load_ushort v140, v{tv("m0a")}, s[24:27], s75 offen\nbuffer_load_ushort v141, v{tv("m0a")}, s[24:27], s75 offen offset:32')
        todo = []
        self.ldsf_off = {}
        def flush(n):
            for _ in range(n):
                f, r = todo.pop(0); off = 8192 * len(self.ldsf_off)
                self.ldsf_off[f] = off
                for hh in range(2):
                    src = vr(r + 4 * hh, 4) if r >= 0 else ar(-r - 1 + 4 * hh, 4)
                    a(f'ds_write_b128 v{tv("wv") if off < 65536 else 6}, {src} offset:{off % 65536 + 1024 * hh}')
                if r >= 0: parkregs.append(r)
        for gi in range(8):
            mat, b = groups[gi]
            if gi == 0: self.mark(2)
            a.wait(vm=[16 + 5, 5 + 16, 16, 16, 16, 16, 16, 0][gi] if o.get('xearly', 1) else [16 + 5, 5 + 16, 16, 16, 16, 16, 16 + 1, 1][gi])
            if gi == 6 and o.get('xearly', 1): stage_y()
            if gi in (0, 2, 4, 7): self.mark(3 + [0, 2, 4, 7].index(gi))
            a('s_barrier')
            hb = (gi % 2) * L.GRP
            for x in range(4):
                dsts = []
                if mat == 'o':
                    for p in range(2):
                        t = 2 * x + p
                        dsts.append((vr, (TMP if t == 0 else 40) if (t, b) in WO_SPILL else wo_frag(t, b)))
                    offs = [0, 2112, 8448, 10560]; xo = 64 * x
                    if x == 0: a(f'v_add_u32 v{VTA}, {hb}, v{VTO}')
                else:
                    offs = [0, 1056, 512, 1568]; xo = 0
                    a(f's_xor_b32 s21, {S_W}, {x}\ns_mul_i32 s21, s21, {L.BLK}\ns_add_u32 s21, s21, {hb}\nv_add_u32 v{VTA}, s21, v{VTQ}')
                    for p in range(2):
                        f = (mat, 2 * x + b, p)
                        if f in AGF: dsts.append((ar, 8 * AGF.index(f)))
                        else:
                            if f not in park: park[f] = TMP if (f[1], f[2]) == (6, 0) else (16 if (f[1], f[2]) == (6, 1) else parkregs.pop(0))
                            if park[f] < 0: dsts.append((ar, -park[f] - 1)); todo.insert(0, (f, park[f]))
                            else: dsts.append((vr, park[f])); todo.append((f, park[f]))
                for p in range(2):
                    rf, d = dsts[p]
                    for r in range(4):
                        a(f'ds_read_b64_tr_b16 {rf(d + 2 * r, 2)}, v{VTA} offset:{xo + offs[r] + 32 * p}')
            if gi == 7 and not o.get('xearly', 1):
                a.wait(vm=0); stage_y()
            a.wait(lgkm=0)
            if gi == 0:
                for i in range(2):
                    for hh in range(2):
                        a(f'ds_write_b128 v{tv("x0")}, {vr((TMP if i == 0 else 40) + 4 * hh, 4)} offset:{16384 + 8192 * i + 1024 * hh}')
            a('s_barrier')
            if gi == 1: stage_w()
            if gi == 5 and o.get('xearly', 1): stage_x()
            if gi + 2 < 8: issue(gi + 2)
            if gi == 5 and not o.get('xearly', 1): stage_x()
            if gi == 2: self.signal_init(barrier=False)
            if gi == 6: flush(8)
            if gi == 7: flush(8)
        assert not todo and len(self.ldsf_off) == 16
        a.wait(lgkm=0)
        a.auto_vm = True; a.forget()
        a(f'v_mov_b32 v{V_WV2}, v6')
        for n, d in [('l16', V_L16), ('ist', V_IST), ('pub', V_PUB), ('x0', V_X0), ('x1', V_X0 + 1), ('x2', V_X0 + 2), ('x3', V_X0 + 3),
                     ('f', V_F), ('smw', V_SMW), ('ow', V_OW), ('wv', V_WV), ('idx', V_IDX), ('one', V_ONE)] + \
                    [(f'selr{i}', SELR + i) for i in range(4)] + [(f'selv{i}', SELV + i) for i in range(2)] + \
                    [('selq', SELQ), ('selq', SELQ + 3), ('selk', SELK), ('selk', SELK + 3)]:
            a(f'v_mov_b32 v{d}, v{tv(n)}')
        for d in (SELQ + 1, SELQ + 2, SELK + 1, SELK + 2): a(f'v_mov_b32 v{d}, 0')
        self.dump_marks(T + 4)
        self.tstamp(1, T + 4)
        self.note(3, T + 4)
        a(f's_cmp_eq_u32 {S_RDY}, 1\ns_cbranch_scc1 L_R_ready')
        self.wait_init(t0=T + 4)
        a(f's_cmp_ge_u32 s21, 32\ns_cselect_b32 {S_FAST}, 1, 0')
        a(f'buffer_store_dword v140, v{V_PUB}, {WS}, {S_PUBB} offen sc1')
        self.spin_flag(V_FLAG, f'v{V_Z}', S_FKV)
        first_records(V_L16)
        a(f's_add_u32 s21, {S_FKV}, 2048')
        self.spin_flag(V_FLAG, f'v{V_Z}', 's21')
        a('L_R_ready:')
        a.wait(vm=0)
        a.forget()
        if o.get('force_slow'): a(f's_mov_b32 {S_FAST}, 0')
        a(f's_add_u32 {S_FKV}, {S_FKV}, 2048\nv_mov_b32 v{V_FLAG}, 1')
        for r in range(M, M + 8, 2): a(f'v_mov_b64 {vr(r,2)}, -1')
        a(f's_lshl_b32 s21, {S_RANK}, 6\ns_add_u32 s21, s21, {hex(L.F_RS)}\ns_cmp_eq_u32 {S_W}, 0\ns_cselect_b32 s21, s21, {hex(L.OOB)}')
        a(f'buffer_store_dword v{V_F}, v{V_ONE}, {WS}, s21 offen sc1')
        self.tstamp(2, T + 4)
        self.tstamp(3, T + 4)
        self.note(4, T + 4)
        if o.get('stamp'):
            a('s_memtime s[80:81]\ns_memrealtime s[28:29]'); a.wait(lgkm=0)
        a('s_mov_b32 s26, 0x3f803f80\ns_mov_b32 s27, 0x3f803f80\ns_mov_b32 s8, 0x3f003f00\ns_mov_b32 s9, 0x3f003f00')
        a(f'ds_write_b64 v{V_OW}, {vr(M,2)}')
        a.wait(lgkm=0)
        a(f's_cmp_eq_u32 {S_FAST}, 0\ns_cbranch_scc1 L_R_slow')
        if o.get('nostag'):
            self.r_loop('f', '')
        else:
            for w in range(1, 4): a(f's_cmp_eq_u32 {S_W}, {w}\ns_cbranch_scc1 L_R_w{w}')
            for w in range(4):
                if w: a(f'L_R_w{w}:')
                self.r_loop('f' + (str(w) if w else ''), '', wv=w)
        a('L_R_slow:')
        self.r_loop('s', 'sc1')

    def spin_flag(self, dst, voff, soff):
        a = self.a
        lab = a.newlabel('sf'); ok = a.newlabel('sfok')
        sv = a.auto_vm; a.auto_vm = False
        a(f'''
        s_mov_b32 s23, {SPIN}
        {lab}:
        buffer_load_dword v{dst}, {voff}, {WS}, {soff} offen sc1
        s_waitcnt vmcnt(0)
        v_cmp_ne_u32 vcc, 0, v{dst}
        s_cbranch_vccnz {ok}
        s_sleep 2
        s_sub_u32 s23, s23, 1
        s_cbranch_scc0 {lab}
        s_mov_b32 {SPIN}, 0x400
        {ok}:
        ''')
        a.auto_vm = sv; a.vq = []

    def poll(self, tag, dst, voff, soff, pre, check, shadow, nchk, mid=None, nmid=0, blk=None):
        a = self.a
        lab = f'L_poll_{tag}'; ok = f'L_pok_{tag}'
        def issue():
            a(f'buffer_load_dwordx4 {vr(dst,4)}, v{voff}, {WS}, {soff} offen {self.pf}')
            a(f'buffer_load_dwordx4 {vr(dst+4,4)}, v{voff}, {WS}, {soff} offen offset:1024 {self.pf}')
        pre()
        if blk:
            gap, cover, fill = blk
            issue()
            if mid: mid()
            for i in range(gap): fill()
            a(f's_mov_b32 s23, {SPIN}')
            issue()
            for i in range(cover): fill()
            a(f's_branch L_pw_{tag}\n{lab}:')
            a(f's_sub_u32 s23, s23, 1\ns_cbranch_scc1 L_pto_{tag}')
            issue()
            a(f'L_pw_{tag}:\ns_waitcnt vmcnt(2)')
            check(); shadow()
            a(f's_cbranch_vccnz {lab}\n{ok}:')
            self.late.append(f'L_pto_{tag}:\ns_mov_b32 {SPIN}, 0x400\ns_waitcnt vmcnt(0)\n@SH@s_branch {ok}')
            self.late_sh.append(shadow)
            return
        if mid:
            issue(); mid()
            for r in range(nmid):
                check(); shadow()
                a(f's_cbranch_vccz {ok}')
        a(f's_mov_b32 s23, {SPIN}')
        a(f'{lab}:')
        issue()
        for r in range(nchk - 1):
            check(); shadow()
            a(f's_cbranch_vccz {ok}')
        a(f's_sub_u32 s23, s23, 1\ns_cbranch_scc1 L_pto_{tag}')
        check(); shadow()
        a(f's_cbranch_vccnz {lab}\n{ok}:')
        self.late.append(f'L_pto_{tag}:\ns_mov_b32 {SPIN}, 0x400\ns_waitcnt vmcnt(0)\n@SH@s_branch {ok}')
        self.late_sh.append(shadow)

    def poll2(self, tag, dst, soff, chores, t0, t1, t2, fill, check, shadow, retry=None):
        a = self.a
        lab = f'L_poll_{tag}'; ok = f'L_pok_{tag}'
        def issue():
            a(f'buffer_load_dwordx4 {vr(dst,4)}, v{V_L16}, {WS}, {soff} offen {self.pf}')
            a(f'buffer_load_dwordx4 {vr(dst+4,4)}, v{V_L16}, {WS}, {soff} offen offset:1024 {self.pf}')
        def spend(t, flush=False):
            while chores and (flush or chores[0][0] <= t + 4):
                c, f = chores.pop(0); f(); t -= c
            while t >= 12: fill(); t -= 16
        spend(t0); issue()
        spend(t1 - 40); issue()
        spend(t2 - 40, flush=True)
        a(f's_mov_b32 s23, {SPIN}\ns_branch L_pw_{tag}\n{lab}:')
        a(f's_sub_u32 s23, s23, 1\ns_cbranch_scc1 L_pto_{tag}')
        issue()
        if retry: retry()
        a(f'L_pw_{tag}:\ns_waitcnt vmcnt(2)')
        check(); shadow()
        a(f's_cbranch_vccnz {lab}\n{ok}:')
        self.late.append(f'L_pto_{tag}:\ns_mov_b32 {SPIN}, 0x400\ns_waitcnt vmcnt(0)\n@SH@s_branch {ok}')
        self.late_sh.append((lambda: (retry(), shadow())) if retry else shadow)

    def stamp(self, i):
        if self.o.get('stamp') and (self.o.get('smask', 0x3ff) >> i) & 1: self.a.raw(f'    {"s_memrealtime" if self.o.get("rt") else "s_memtime"} s[{82+2*i}:{83+2*i}]')

    def dump_stamps(self, tg):
        a = self.a
        if not self.o.get('stamp'): return
        lab = f'L_nodump_{tg}'
        a(f's_cmp_lg_u32 {S_S}, {self.o.get("dstep", 41)}\ns_cbranch_scc1 {lab}\ns_waitcnt lgkmcnt(0)')
        a(f's_lshl_b32 s21, {S_RANK}, 8\ns_lshl_b32 s22, {S_W}, 6\ns_add_u32 s21, s21, s22\ns_add_u32 s21, s21, {hex(L.DBG)}')
        a(f'v_mov_b32 v{T+10}, 0')
        for i in range(10):
            a(f'v_mov_b32 v{T+11}, s{82+2*i}\nbuffer_store_dword v{T+11}, v{T+10}, {WS}, s21 offen offset:{4*i}')
        a(f's_waitcnt vmcnt(0)\n{lab}:')

    def r_loop(self, tg, cf, wv=0):
        a = self.a; o = self.o
        mf16 = 'v_mfma_f32_16x16x16_bf16'; mf32 = 'v_mfma_f32_16x16x32_bf16'
        cvt = 'v_cvt_pk_bf16_f32'
        QP = 'quad_perm:[2,3,0,1] row_mask:0xf bank_mask:0xf'
        dum = lambda n=1: [a(a.dummy) for _ in range(n)]
        self.late = []; self.late_sh = []; self.fixups = []
        self.pf = 'nt' if (not cf and o.get('pollnt')) else 'sc1'
        a.auto_vm = False
        B0, B1, B2 = WVB, WVB + 8, M
        ACC = {'q': AQ, 'k': AK, 'v': AV}
        def S(m, k, p, buf=None):
            f = (m, k, p)
            self.smf(ACC[m] + 4 * p, M + 4 * k, ar(8 * AGF.index(f), 8) if buf is None else vr(buf, 8))
        def V(k, p, buf=None): S('v', k, p, buf)
        def RD(buf, m, k, p, hh):
            off = self.ldsf_off[(m, k, p)]
            a(f'ds_read_b128 {vr(buf + 4*hh, 4)}, v{V_WV if off < 65536 else V_WV2} offset:{off % 65536 + hh*1024}')
        def RD2(buf, m, k, p): RD(buf, m, k, p, 0); RD(buf, m, k, p, 1)
        def pkadd(d, x, y): a(f'v_add_f32 v{d}, v{x}, v{y}\nv_add_f32 v{d+1}, v{x+1}, v{y+1}')
        def PK(d, x, y): a(f'v_pk_add_f32 {vr(d,2)}, {vr(x,2)}, {vr(y,2)}')
        def add(d, x, y): a(f'v_add_f32 v{d}, v{x}, v{y}')
        def dmf(r):
            m = o.get('fillm', 2)
            if m == 1 or (m == 2 and r == M + 8): a('s_nop 3')
            elif m == 3: a(f's_nop 2\n{a.dummy}')
            elif m == 4: a(f'{mf16} {vr(r,4)}, s[26:27], s[26:27], 0' if False else f'{mf16} {vr(r,4)}, {vr(SELQ+2,2)}, {vr(SELQ,2)}, 0')
            else: a(f'{mf16} {vr(r,4)}, {vr(SELQ,2)}, {vr(SELQ,2)}, {vr(r,4)}')
        def filt(line):
            st = 'buffer_store' in line and ('s75' in line or 's76' in line) and 'sc1' in line
            ld = 'buffer_load' in line and ('s67' in line or 's68' in line)
            if o.get('nost') and st: return None
            if o.get('nofst') and st and 's76' in line: return None
            if o.get('nold') and ld: return None
            if o.get('nofld') and ld and 's68' in line: return None
            if o.get('ldplain') and ld and 's67' in line: return line.replace(' sc1', '')
            if o.get('ldnt') and ld and 's67' in line: return line.replace(' sc1', ' nt')
            if o.get('stplain') and st: return line.replace(' sc1', '')
            if o.get('novm') and 'vmcnt' in line: return None
            if o.get('nowarm') and 'buffer_load_dword v27' in line: return 's_nop 0'
            if o.get('novmh') and 'buffer_store_dwordx2' in line: return None
            return line
        PA = M + 8; R = T + 8
        spin = f'L_kvspin_{tg}'; back = f'L_kvback_{tg}'
        def preload():
            RD2(M + 24, 'q', 0, 0); RD2(M + 16, 'q', 0, 1); RD2(B0, 'q', 1, 0); RD2(B1, 'q', 1, 1); RD2(T, 'k', 0, 0)
        def slackB():
            a(f'v_cmp_eq_u32 vcc, 0, v{V_FLAG}')
            for r in range(0, 8, 2): a(f'v_mov_b64 {vr(VXC+r,2)}, {vr(VXN+r,2)}')
            a(f's_xor_b32 {S_INP}, {S_INP}, 0x40000')
            a(f's_cbranch_vccnz {spin}\n{back}:')
            a(f"""
            s_cmp_lt_u32 {S_S}, 63
            s_cselect_b32 {S_T0}, {0 if o.get("nopf") else 32*24576}, 0
            s_add_u32 {S_REC}, {S_REC}, {S_T0}
            s_cmp_lt_u32 {S_S}, 62
            s_cselect_b32 {S_T0}, 2048, 0
            s_add_u32 {S_FKV}, {S_FKV}, {S_T0}
            s_cmp_ge_u32 {S_S}, 2
            s_cselect_b32 {S_T1}, {S_FM}, {hex(L.OOB)}
            s_cmp_ge_u32 {S_S}, 1
            s_cselect_b32 {S_T0}, {S_KVM}, {hex(L.OOB)}
            s_add_u32 {S_FM}, {S_FM}, 2048
            s_add_u32 {S_KVM}, {S_KVM}, 131072
            s_lshr_b32 {S_TAG}, {S_S}, 1
            s_and_b32 {S_TAG}, {S_TAG}, 1
            s_sub_u32 {S_NTAG}, {S_TAG}, 1
            s_add_u32 {S_IN1}, {S_IN0}, 32768
            s_and_b32 {S_OTAG}, {S_S}, 1
            s_sub_u32 {S_NOTAG}, {S_OTAG}, 1
            """)
            if o.get('steplog') and wv == 0 and tg != 's':
                a(f's_memrealtime s[82:83]\ns_lshl_b32 s84, {S_S}, 2\ns_lshl_b32 s85, {S_RANK}, 8\ns_add_u32 s84, s84, s85\ns_add_u32 s84, s84, {hex(L.DBG + 131072)}')
                a(f's_waitcnt lgkmcnt(0)\nv_mov_b32 v{V_DUM}, s82\nbuffer_store_dword v{V_DUM}, v{V_ONE}, {WS}, s84 offen')
            if o.get('zB'):
                for r in range(AQ, AQ + 24, 2): a(f'v_mov_b64 {vr(r,2)}, 0')
            if o.get('barB'): dmf(PA); a('s_barrier')
            for i in range(o.get('dB', 8) if wv >= 2 else o.get('dB0', o.get('dB', 8))): dmf(PA + 4 * (i % 2))
        def checkB():
            if not o.get('shortchk'):
                a(f"""
                v_max3_u32 v{R}, v{M}, v{M+1}, v{M+2}
                v_max3_u32 v{R+1}, v{M+3}, v{M+4}, v{M+5}
                v_max3_u32 v{R}, v{R}, v{M+6}, v{M+7}
                v_max_u32 v{R}, v{R}, v{R+1}
                """)
            else:
                a(f'v_max_u32 v{R}, v{M}, v{M+7}')
            a(f'v_cmp_eq_u32 vcc, -1, v{R}')
        def shadowB():
            if o.get('specw', 1): a(f'ds_write_b128 v{V_X0}, {vr(M,4)}')
            else: dmf(PA); a('s_nop 2')
        preload()
        for r in range(AQ, AQ + 24, 2): a(f'v_mov_b64 {vr(r,2)}, 0')
        a(f's_xor_b32 {S_INP}, {S_INP}, 0x40000')
        a.wait(lgkm=0)
        a(f'L_Rloop_{tg}:')
        a.forget()
        a.hot = True
        a.filt = filt
        sa = lambda txt: [(4, lambda l=l: a(l)) for l in txt.strip().split('\n')]
        va = lambda lines: [(8, lambda l=l: a(l)) for l in lines]
        if True:
            chB = [(44, lambda: a(f'v_cmp_eq_u32 vcc, 0, v{V_FLAG}\ns_cbranch_vccnz {spin}\n{back}:'))]
            chB += va([f'v_mov_b64 {vr(VXC+r,2)}, {vr(VXN+r,2)}' for r in range(0, 8, 2)])
            chB += sa(f"""
            s_xor_b32 {S_INP}, {S_INP}, 0x40000
            s_cmp_lt_u32 {S_S}, 63
            s_cselect_b32 {S_T0}, {0 if o.get("nopf") else 32*24576}, 0
            s_add_u32 {S_REC}, {S_REC}, {S_T0}
            s_cmp_lt_u32 {S_S}, 62
            s_cselect_b32 {S_T0}, 2048, 0
            s_add_u32 {S_FKV}, {S_FKV}, {S_T0}
            s_cmp_ge_u32 {S_S}, 2
            s_cselect_b32 {S_T1}, {S_FM}, {hex(L.OOB)}
            s_cmp_ge_u32 {S_S}, 1
            s_cselect_b32 {S_T0}, {S_KVM}, {hex(L.OOB)}
            s_add_u32 {S_FM}, {S_FM}, 2048
            s_add_u32 {S_KVM}, {S_KVM}, 131072
            s_lshr_b32 {S_TAG}, {S_S}, 1
            s_and_b32 {S_TAG}, {S_TAG}, 1
            s_sub_u32 {S_NTAG}, {S_TAG}, 1
            s_add_u32 {S_IN1}, {S_IN0}, 32768
            s_and_b32 {S_OTAG}, {S_S}, 1
            s_sub_u32 {S_NOTAG}, {S_OTAG}, 1
            """)
            if o.get('steplog') and wv == 0 and tg != 's':
                chB.append((60, lambda: (a(f's_memrealtime s[82:83]\ns_lshl_b32 s84, {S_S}, 2\ns_lshl_b32 s85, {S_RANK}, 8\ns_add_u32 s84, s84, s85\ns_add_u32 s84, s84, {hex(L.DBG + 131072)}'),
                    a(f's_waitcnt lgkmcnt(0)\nv_writelane_b32 v{V_DUM}, s82, 0\nglobal_store_dword v{V_ONE}, v{V_DUM}, s[4:5]' if False else f's_waitcnt lgkmcnt(0)'))))
            if not o.get('split', 1):
                self.poll2('B' + tg, M, S_MEMP, chB, o.get('tB0', 200), o.get('tB1', 180), o.get('tB2', 100), lambda: dmf(PA), checkB, shadowB)
            else:
                ld = lambda i: a(f'buffer_load_dwordx4 {vr(M+4*i,4)}, v{V_L16}, {WS}, {S_MEMP} offen offset:{1024*i} {self.pf}')
                def spend(t, flush=False):
                    while chB and (flush or chB[0][0] <= t + 4):
                        c, f = chB.pop(0); f(); t -= c
                    while t >= 12: dmf(PA); t -= 16
                def chk(i):
                    a(f'v_max3_u32 v{R}, v{M+4*i}, v{M+4*i+1}, v{M+4*i+2}\nv_max_u32 v{R}, v{R}, v{M+4*i+3}\nv_cmp_eq_u32 vcc, -1, v{R}')
                g = o.get('tBg', 32)
                spend(o.get('tB0', 170)); ld(0); spend(g); ld(1)
                spend(o.get('tB1', 180) - 40 - g); ld(0); spend(g); ld(1)
                spend(o.get('tB2', 100) - 40 - g, flush=True)
                a(f's_mov_b32 s23, {SPIN}\nL_pw_B{tg}:\ns_waitcnt vmcnt(3)')
                chk(0)
                a(f'ds_write_b128 v{V_X0}, {vr(M,4)}')
                S('q', 0, 0, M + 24)
                a(f's_cbranch_vccnz L_poll_B{tg}\nL_pok_B{tg}:')
                def fixB():
                    a(f'L_poll_B{tg}:\ns_sub_u32 s23, s23, 1\ns_cbranch_scc1 L_pto_B{tg}')
                    ld(0); ld(1)
                    a(f'v_mov_b64 {vr(AQ,2)}, 0\nv_mov_b64 {vr(AQ+2,2)}, 0\ns_branch L_pw_B{tg}')
                    a(f'L_pto_B{tg}:\ns_mov_b32 {SPIN}, 0x400\ns_branch L_pok_B{tg}')
                    a(f'L_pol1_B{tg}:\ns_waitcnt vmcnt(0)')
                    chk(1)
                    a(f's_cbranch_vccz L_pk1_B{tg}\ns_sub_u32 s23, s23, 1\ns_cbranch_scc1 L_pt1_B{tg}')
                    ld(1)
                    a(f's_branch L_pol1_B{tg}\nL_pt1_B{tg}:\ns_mov_b32 {SPIN}, 0x400\ns_branch L_pk1_B{tg}')
                self.fixups.append(fixB)
        if o.get('rt'): a('s_mov_b32 s84, s82')
        self.stamp(0)
        if o.get('rt'): self.dump_stamps(tg)
        wp = o.get('wpat', 5)
        ws = {0: (0, 1), 1: (1 + wv, 5 + wv), 2: (1 + 2 * (wv % 2), 2 + 2 * (wv % 2)), 3: (1 + wv % 2, 3 + wv % 2), 4: (1 + wv // 2, 3 + wv // 2),
              5: (1, 2), 6: (wv, 4 + wv), 7: (wv % 2, 2 + wv % 2), 8: (wv // 2, 2 + wv // 2)}[wp]
        wslot = [0]
        def MW():
            for i in range(2):
                if ws[i] == wslot[0] and not (i == 0 and o.get('specw', 1)): a(f'ds_write_b128 v{V_X0}, {vr(M+4*i,4)} offset:{1024*i}')
            wslot[0] += 1
        if not o.get('split', 1):
            MW()
            S('q', 0, 0, M + 24); MW()
            S('q', 0, 1, M + 16); MW()
            S('q', 1, 0, B0); MW()
            S('q', 1, 1, B1); MW()
            S('k', 0, 0, T); MW()
            S('k', 0, 1); MW()
            S('k', 1, 0); MW()
            S('k', 1, 1); MW()
        else:
            S('q', 0, 1, M + 16)
            a('s_waitcnt vmcnt(2)')
            a(f'v_max3_u32 v{R}, v{M+4}, v{M+5}, v{M+6}')
            S('k', 0, 0, T); a(f'v_max_u32 v{R}, v{R}, v{M+7}')
            S('k', 0, 1); a(f'v_cmp_eq_u32 vcc, -1, v{R}')
            V(0, 0)
            a(f's_cbranch_vccnz L_pol1_B{tg}\nL_pk1_B{tg}:')
            a(f'ds_write_b128 v{V_X0}, {vr(M+4,4)} offset:1024')
            S('q', 1, 0, B0); S('q', 1, 1, B1); S('k', 1, 0); S('k', 1, 1)
        a.wait_lds_writes()
        a('s_barrier')
        def MR(k): a(f'ds_read_b128 {vr(M+4*k,4)}, v{V_X0 + k//2} offset:{1024*(k%2)}')
        MR(2); MR(3)
        if not o.get('split', 1): V(0, 0)
        MR(4)
        V(0, 1); MR(5)
        V(1, 0); MR(6)
        V(1, 1); MR(7)
        VXL = lambda i: a(f'buffer_load_dwordx4 {vr(VXN+4*i,4)}, v{V_L16}, {WS}, {S_REC} offen offset:{2048+1024*i} sc1')
        self.stamp(1)
        vm_ops = [
            lambda: a(f'buffer_store_dwordx4 {vr(KMH,4)}, v{V_L16}, {WS}, {S_T0} offen sc1'),
            lambda: VXL(0),
            lambda: VXL(1),
            lambda: (a(f'buffer_store_dword v{V_F}, v{V_ONE}, {WS}, {S_T1} offen sc1'),
                     a(f'buffer_load_dword v{V_FLAG}, v{V_Z}, {WS}, {S_FKV} offen sc1')),
        ]
        slot = [0]
        first = o.get('vm0', 5)
        def X():
            i = slot[0] - first - wv
            if i == 0: a('s_waitcnt vmcnt(0)')
            if i >= 0 and i % 4 == 0 and i // 4 < len(vm_ops): vm_ops[i // 4]()
            slot[0] += 1
        S('q', 2, 0); RD(B0, 'k', 2, 1, 0); X()
        S('q', 3, 0); RD(B0, 'k', 2, 1, 1); X()
        S('q', 4, 0); RD(B1, 'k', 3, 1, 0); X()
        S('q', 5, 0); RD(B1, 'k', 3, 1, 1); X()
        S('q', 6, 0); RD(T, 'k', 4, 1, 0); X()
        S('q', 7, 0); RD(T, 'k', 4, 1, 1); X()
        S('q', 2, 1); X()
        S('q', 3, 1); X()
        S('q', 4, 1); X()
        assert slot[0] > first + wv
        S('q', 5, 1); RD(B2, 'k', 5, 1, 0); X(); add(AQ, AQ, AQ + 2)
        S('q', 6, 1); RD(B2, 'k', 5, 1, 1); X(); add(AQ + 1, AQ + 1, AQ + 3)
        S('q', 7, 1); X(); a(f'{cvt} v{AQ+2}, v{AQ}, v{AQ+1}')
        S('k', 2, 0); X()
        S('k', 2, 1, B0); RD(B0, 'k', 6, 1, 0); X()
        S('k', 3, 0); RD(B0, 'k', 6, 1, 1); X()
        S('k', 3, 1, B1); RD(B1, 'k', 7, 0, 0); X(); add(AQ + 4, AQ + 4, AQ + 6)
        S('k', 4, 0); RD(B1, 'k', 7, 0, 1); X(); add(AQ + 5, AQ + 5, AQ + 7)
        S('k', 4, 1, T); RD(T, 'k', 7, 1, 0); X(); a(f'{cvt} v{AQ+3}, v{AQ+4}, v{AQ+5}')
        S('k', 5, 0); RD(T, 'k', 7, 1, 1); X()
        a(f'{mf16} {vr(AQ+4,4)}, {vr(AQ+2,2)}, {vr(SELQ,2)}, 0'); X()
        a(f'{mf16} {vr(T+8,4)}, {vr(AQ+2,2)}, {vr(SELQ+2,2)}, 0'); X()
        S('k', 5, 1, B2); RD(B2, 'v', 6, 0, 0); X()
        S('k', 6, 0); RD(B2, 'v', 6, 0, 1)
        S('k', 7, 0, B1); RD(B1, 'v', 7, 0, 0); a(f'{cvt} v{AQ}, v{AQ+4}, v{AQ+5}')
        S('k', 6, 1, B0); RD(B1, 'v', 7, 0, 1); a(f'{cvt} v{AQ+1}, v{AQ+6}, v{AQ+7}\n{cvt} v{AQ+2}, v{T+8}, v{T+9}')
        S('k', 7, 1, T); RD(B0, 'v', 6, 1, 0); a(f'{cvt} v{AQ+3}, v{T+10}, v{T+11}')
        assert slot[0] > first + wv + 4 * (len(vm_ops) - 1)
        self.stamp(2)
        RD(B0, 'v', 6, 1, 1)
        add(AK, AK, AK + 2)
        a(f'{mf32} {vr(AQ+4,4)}, {vr(KX,4)}, {vr(AQ,4)}, 0')
        add(AK + 1, AK + 1, AK + 3)
        a(f'{cvt} v{AK+2}, v{AK}, v{AK+1}')
        a(f'{mf32} {vr(T+8,4)}, {vr(KX+4,4)}, {vr(AQ,4)}, 0')
        pkadd(AK + 4, AK + 4, AK + 6)
        a(f'{cvt} v{AK+3}, v{AK+4}, v{AK+5}')
        a(f'{mf16} {vr(AK+4,4)}, {vr(AK+2,2)}, {vr(SELK,2)}, 0')
        a(f'{mf16} {vr(T,4)}, {vr(AK+2,2)}, {vr(SELK+2,2)}, 0')
        kslot = [0]
        def KL():
            i = kslot[0] - wv
            if i in (0, 4): a(f'buffer_load_dwordx4 {vr(KX+i,4)}, v{V_L16}, {WS}, {S_REC} offen offset:{256*i} sc1')
            kslot[0] += 1
        for i in range(4): a(f'v_cndmask_b32 v{AK+i}, v{T+8+i}, v{AQ+4+i}, {S_LO}')
        a(f'{cvt} v{KMH}, v{AK+4}, v{AK+5}\n{cvt} v{KMH+1}, v{AK+6}, v{AK+7}')
        a(f'{cvt} v{KMH+2}, v{T}, v{T+1}\n{cvt} v{KMH+3}, v{T+2}, v{T+3}')
        a(f'{mf32} {vr(T+4,4)}, {vr(KMH,4)}, {vr(AQ,4)}, 0')
        V(2, 0)
        a(f'ds_write_b128 v{V_X0}, {vr(AK,4)} offset:8192')
        a(f'v_cndmask_b32 v{T+4}, v{T+5}, v{T+4}, {S_LO}')
        V(2, 1)
        a(f'ds_write_b32 v{V_SMW}, v{T+4}')
        self.stamp(3)
        B3 = M + 8
        ONES, HALF = B2, B2 + 4
        V(3, 0); KL()
        V(3, 1); RD(B3, 'v', 7, 1, 0); KL()
        V(6, 0, B2); RD(B3, 'v', 7, 1, 1); KL()
        V(6, 1, B0); KL()
        if o.get('vb', 4) > 4: V(7, 0, B1)
        a.wait_lds_writes()
        a('s_barrier')
        SX = [T + 4, T + 8, AQ + 4]
        SR = lambda x: a(f'ds_read_b128 {vr(SX[x-1],4)}, v{V_X0+x} offset:8192')
        SR(1)
        if o.get('vb', 4) <= 4: V(7, 0, B1)
        SR(2); SR(3)
        V(4, 0); a(f'ds_read_b128 {vr(T,4)}, v{V_F} offset:1024'); a(f'v_mov_b64 {vr(ONES,2)}, s[26:27]')
        V(4, 1); KL(); a(f'v_mov_b64 {vr(ONES+2,2)}, s[26:27]')
        V(5, 0); KL(); a(f'v_mov_b64 {vr(HALF,2)}, s[8:9]')
        V(7, 1, B3); KL()
        V(5, 1); KL()
        WOS = lambda i, hh: a(f'ds_read_b128 {vr(WVB+8*i+4*hh,4)}, v{V_X0} offset:{16384+8192*i+1024*hh}')
        zs = list(range(M + 8, M + 32, 2)) + list(range(M, M + 8, 2))
        def Z(n):
            for _ in range(n): a(f'v_mov_b64 {vr(zs.pop(0),2)}, 0')
        self.stamp(4)
        pkadd(AK, AK, SX[0]); pkadd(AK + 2, AK + 2, SX[0] + 2)
        PK(SX[1], SX[1], SX[2]); PK(SX[1] + 2, SX[1] + 2, SX[2] + 2)
        PK(T, T, T + 2)
        PK(AK, AK, SX[1]); PK(AK + 2, AK + 2, SX[1] + 2)
        add(T, T, T + 1)
        mx, t2 = T + 2, T + 3
        a(f'v_max3_f32 v{mx}, v{AK}, v{AK+1}, v{AK+2}\nv_max3_f32 v{mx}, v{mx}, v{AK+3}, v{T}')
        PK(AV, AV, AV + 2); PK(AV + 4, AV + 4, AV + 6)
        a(f'v_max_f32_dpp v{t2}, v{mx}, v{mx} {QP}\nv_max_f32_dpp v{mx}, v{mx}, v{mx} {QP}')
        a(f'{cvt} v{AV+2}, v{AV}, v{AV+1}\n{cvt} v{AV+3}, v{AV+4}, v{AV+5}')
        a(f'v_permlane16_swap_b32 v{mx}, v{t2}\nv_max_f32 v{T+1}, v{mx}, v{t2}\nv_max_f32 v{mx}, v{mx}, v{t2}')
        a(f'{mf16} {vr(AV+4,4)}, {vr(SELV,2)}, {vr(AV+2,2)}, 0')
        WOS(0, 0)
        a(f'v_permlane32_swap_b32 v{mx}, v{T+1}\nv_max_f32 v{mx}, v{mx}, v{T+1}\nv_mul_f32 v{mx}, {S_SC}, v{mx}')
        E = [AK, AK + 1, AK + 2, AK + 3, T]
        for e in E: a(f'v_fma_f32 v{e}, v{e}, {S_SC}, -v{mx}')
        for e in E: a(f'v_exp_f32 v{e}, v{e}')
        BX, PM = AQ, T + 6
        a(f'{cvt} v{T+8}, v{AK}, v{AK+1}\n{cvt} v{T+9}, v{AK+2}, v{AK+3}')
        a(f"""
        v_cndmask_b32 v{BX}, 0, v{T+8}, {S_LO}
        v_cndmask_b32 v{BX+1}, 0, v{T+9}, {S_LO}
        v_cndmask_b32 v{BX+2}, v{T+8}, 0, {S_LO}
        v_cndmask_b32 v{BX+3}, v{T+9}, 0, {S_LO}
        v_mov_b32_dpp v{T+1}, v{T} {QP}
        {cvt} v{VMH}, v{AV+4}, v{AV+5}
        """)
        D, D2, DL = AQ + 4, AK + 4, T + 8
        a(f'{mf32} {vr(DL,4)}, {vr(ONES,4)}, {vr(BX,4)}, 0')
        WOS(0, 1)
        a(f'{cvt} v{T+4}, v{T}, v{T+1}\n{cvt} v{T+5}, v{T+1}, v{T}')
        a(f'{mf32} {vr(D2,4)}, {vr(VXC+4,4)}, {vr(BX,4)}, 0')
        WOS(1, 0)
        a(f'v_cndmask_b32 v{PM}, 0, v{T+4}, {S_LO}\nv_cndmask_b32 v{PM+1}, v{T+5}, 0, {S_LO}')
        a(f'{mf32} {vr(D,4)}, {vr(VXC,4)}, {vr(BX,4)}, 0')
        WOS(1, 1)
        a(f'{cvt} v{VMH+1}, v{AV+6}, v{AV+7}')
        a(f'{mf16} {vr(DL,4)}, {vr(HALF,2)}, {vr(PM,2)}, {vr(DL,4)}')
        Z(1)
        a(f'{mf16} {vr(D,4)}, {vr(VMH,2)}, {vr(PM,2)}, {vr(D,4)}')
        Z(o.get('zpv', 5))
        l = DL + 1
        a(f'v_add_f32_dpp v{l}, v{DL}, v{DL} {QP}\nv_rcp_f32 v{l}, v{l}')
        for i in range(4): a(f'v_add_f32_dpp v{D+i}, v{D2+i}, v{D+i} {QP}')
        for i in (0, 2): a(f'v_pk_mul_f32 {vr(D+i,2)}, {vr(D+i,2)}, {vr(l-1,2)} op_sel:[0,1] op_sel_hi:[1,1]')
        tagx = not o.get('bar3')
        a(f'{cvt} v{T}, v{D}, v{D+1}\n{cvt} v{T+1}, v{D+2}, v{D+3}')
        if tagx: a(f'v_and_or_b32 v{T}, v{T}, -2, {S_OTAG}')
        self.stamp(5)
        a(f'ds_write_b64 v{V_OW}, {vr(T,2)}')
        a(f's_cmp_eq_u32 {S_S}, 63\ns_cbranch_scc1 L_Rtail_{tg}')
        OA = AK
        def oread(): a(f'ds_read_b128 {vr(OA,4)}, v{V_F} offset:3072\nds_read_b128 {vr(OA+4,4)}, v{V_F} offset:5120')
        def ocheck():
            a(f'v_bitop3_b32 v{T+2}, v{OA}, v{OA+2}, {S_NOTAG} bitop3:0x42')
            a(f'v_bitop3_b32 v{T+3}, v{OA+4}, v{OA+6}, {S_NOTAG} bitop3:0x42')
            a(f'v_bitop3_b32 v{T+2}, v{T+2}, v{T+3}, 1 bitop3:0x80')
            a(f'v_cmp_eq_u32 vcc, 0, v{T+2}')
        if tagx:
            n1 = min(o.get('z3', 7), len(zs))
            Z(n1)
            for _ in range(o.get('z3', 7) - n1): a('s_nop 1')
            oread(); Z(len(zs))
        else:
            Z(min(6, len(zs)))
            a.wait_lds_writes()
            a('s_barrier')
            oread()
            Z(len(zs))
        self.stamp(6)
        def wo(t, kb):
            fr = WVB + 8 * WO_SPILL.index((t, kb)) if (t, kb) in WO_SPILL else wo_frag(t, kb)
            self.smf(M + 4 * t, OA + 4 * kb, vr(fr, 8))
        def fa(t, i): add(M + 4 * t + i, M + 4 * t + i, M + 4 * t + 2 + i)
        def fc(t): a(f'{cvt} v{AQ+t}, v{M+4*t}, v{M+4*t+1}')
        def tagit(r): a(f'v_and_or_b32 v{r}, v{r}, -2, {S_TAG}')
        a(f'L_wo_{tg}:')
        if tagx:
            wo(0, 0); a(f'v_bitop3_b32 v{T+2}, v{OA}, v{OA+2}, {S_NOTAG} bitop3:0x42')
            wo(1, 0); a(f'v_bitop3_b32 v{T+3}, v{OA+4}, v{OA+6}, {S_NOTAG} bitop3:0x42')
            wo(0, 1); a(f'v_bitop3_b32 v{T+2}, v{T+2}, v{T+3}, 1 bitop3:0x80')
            wo(1, 1); a(f'v_cmp_eq_u32 vcc, 0, v{T+2}')
            wo(2, 0); wo(2, 1); wo(3, 0)
            a(f's_cbranch_vccnz L_ofix_{tg}')
            wo(3, 1)
            def fix():
                a(f'L_ofix_{tg}:\ns_mov_b32 s23, {SPIN}\nL_ofix2_{tg}:')
                a.forget(vm=False)
                oread(); a.wait(lgkm=0); ocheck()
                a(f's_cbranch_vccz L_ofix3_{tg}\ns_sub_u32 s23, s23, 1\ns_cbranch_scc0 L_ofix2_{tg}\ns_xor_b32 {S_NOTAG}, {S_NOTAG}, v_never' if False else
                  f's_cbranch_vccz L_ofix3_{tg}\ns_sub_u32 s23, s23, 1\ns_cbranch_scc0 L_ofix2_{tg}\ns_endpgm\nL_ofix3_{tg}:')
                for r in range(M, M + 16, 2): a(f'v_mov_b64 {vr(r,2)}, 0')
                a(f's_branch L_wo_{tg}')
            self.fixups.append(fix)
        else:
            wo(0, 0); wo(1, 0); wo(0, 1); wo(1, 1); wo(2, 0); wo(2, 1); wo(3, 0); wo(3, 1)
        wo(4, 0); fa(0, 0); fa(0, 1); fa(1, 0)
        wo(4, 1); fa(1, 1); fc(0); fc(1)
        wo(5, 0); fa(2, 0); fa(2, 1); tagit(AQ)
        wo(5, 1); fa(3, 0); fa(3, 1); fc(2)
        wo(6, 0); fc(3)
        wo(6, 1)
        a(f'buffer_store_dwordx4 {vr(AQ,4)}, v{V_IST}, {WS}, {S_IN0} offen {cf}')
        wo(7, 0); fa(4, 0)
        wo(7, 1); fa(4, 1); fc(4); fa(5, 0); fa(5, 1); tagit(AQ + 4); fc(5)
        PK(M + 24, M + 24, M + 26); fc(6); PK(M + 28, M + 28, M + 30); fc(7)
        a(f'buffer_store_dwordx4 {vr(AQ+4,4)}, v{V_IST}, {WS}, {S_IN1} offen {cf}')
        self.stamp(7)
        def pack_kvm():
            a(f's_mov_b64 vcc, {S_LO}')
            for i in range(4):
                qp = '[0,0,0,2]' if i < 2 else '[0,0,1,3]'
                a(f'v_cndmask_b32_dpp v{KMH+i}, v{VMH+i%2}, v{KMH+i}, vcc quad_perm:{qp} row_mask:0xf bank_mask:0xf')
        self.pack_kvm = pack_kvm
        def preA():
            a(f"""
            v_mov_b32 v{PA}, {S_NTAG}
            v_mov_b32 v{PA+4}, {S_NTAG}
            """)
            for i in range(o.get('dA', 4) if wv >= 2 else o.get('dA0', o.get('dA', 4))): dmf(R)
        def slackA():
            preload()
            pack_kvm()
            a(f"""
            s_add_u32 {S_S}, {S_S}, 1
            s_xor_b32 {S_IN0}, {S_IN0}, 0x40000
            s_and_b32 {S_T0}, {S_S}, 3
            s_lshl_b32 {S_T0}, {S_T0}, 13
            v_mov_b64 {vr(M,2)}, -1
            s_andn2_b32 {S_PUBB}, {S_PUBB}, 0x6000
            s_andn2_b32 {S_MEMP}, {S_MEMP}, 0x6000
            v_mov_b64 {vr(M+2,2)}, -1
            s_or_b32 {S_MEMP}, {S_MEMP}, {S_T0}
            s_xor_b32 {S_RST}, {S_T0}, 0x4000
            v_mov_b64 {vr(M+4,2)}, -1
            s_or_b32 {S_RST}, {S_RST}, {S_PUBB}
            s_or_b32 {S_PUBB}, {S_PUBB}, {S_T0}
            v_mov_b64 {vr(M+6,2)}, -1
            """)
            if not o.get('zB'):
                for r in range(AQ, AQ + 24, 2): a(f'v_mov_b64 {vr(r,2)}, 0')
            a.wait(lgkm=0)
        def checkA():
            a(f"""
            v_bitop3_b32 v{VXC}, v{PA}, v{PA+4}, {S_NTAG} bitop3:0x42
            v_and_b32 v{VXC}, 1, v{VXC}
            v_cmp_eq_u32 vcc, 0, v{VXC}
            """)
        def shadowA():
            a(f'v_smfmac_f32_16x16x64_bf16 {vr(R,4)}, {vr(SELR,4)}, {vr(PA,8)}, v{V_IDX} abid:1')
        if True:
            pl = [(M + 24, 'q', 0, 0), (M + 16, 'q', 0, 1), (B0, 'q', 1, 0), (B1, 'q', 1, 1), (T, 'k', 0, 0)]
            chA = [(40, pack_kvm)]
            chA += sa(f"""
            s_add_u32 {S_S}, {S_S}, 1
            s_xor_b32 {S_IN0}, {S_IN0}, 0x40000
            s_and_b32 {S_T0}, {S_S}, 3
            s_lshl_b32 {S_T0}, {S_T0}, 13
            s_andn2_b32 {S_PUBB}, {S_PUBB}, 0x6000
            s_andn2_b32 {S_MEMP}, {S_MEMP}, 0x6000
            s_or_b32 {S_MEMP}, {S_MEMP}, {S_T0}
            s_xor_b32 {S_RST}, {S_T0}, 0x4000
            s_or_b32 {S_RST}, {S_RST}, {S_PUBB}
            s_or_b32 {S_PUBB}, {S_PUBB}, {S_T0}
            """)
            zz = [f'v_mov_b64 {vr(r,2)}, 0' for r in range(AQ, AQ + 24, 2)] + [f'v_mov_b32 v{M}, -1']
            for k in range(10):
                chA.append((16, lambda k=k: (RD(*pl[k // 2], k % 2), a(zz[k]))))
            chA += va(zz[10:])
            chA.append((4, lambda: a.wait(lgkm=0)))
            zr = lambda: a(f'v_mov_b64 {vr(R,2)}, 0\nv_mov_b64 {vr(R+2,2)}, 0')
            chA.append((16, zr))
            self.poll2('A' + tg, PA, S_INP, chA, o.get('tA0', 260), o.get('tA1', 180), o.get('tA2', 100), lambda: dmf(VXC + 4), checkA, shadowA, retry=zr)
        self.stamp(8)
        hp = ''
        a(f"""
        {'s_nop 1' + chr(10) + a.dummy + chr(10) + 's_nop 0' if hp else ''}
        v_add_f32_dpp v{R}, v{R}, v{R} row_ror:8 row_mask:0xf bank_mask:0x3 {hp}
        v_add_f32_dpp v{R+1}, v{R+1}, v{R+1} row_ror:8 row_mask:0xf bank_mask:0x3 {hp}
        v_add_f32_dpp v{R}, v{R+2}, v{R+2} row_ror:8 row_mask:0xf bank_mask:0xc {hp}
        v_add_f32_dpp v{R+1}, v{R+3}, v{R+3} row_ror:8 row_mask:0xf bank_mask:0xc {hp}
        v_add_f32_dpp v{R}, v{R}, v{R} row_ror:12 row_mask:0xf bank_mask:0xf
        v_add_f32_dpp v{R+1}, v{R+1}, v{R+1} row_ror:12 row_mask:0xf bank_mask:0xf
        {cvt} v{R+2}, v{R}, v{R+1}
        buffer_store_dword v{R+2}, v{V_PUB}, {WS}, {S_PUBB} offen {cf}
        """)
        self.stamp(9)
        a(f'buffer_store_dword v{M}, v{V_PUB}, {WS}, {S_RST} offen {cf}')
        if o.get('span2') and wv == 0:
            lab = a.newlabel('n8')
            a(f's_cmp_lg_u32 {S_S}, 8\ns_cbranch_scc1 {lab}')
            self.note(5, T + 10)
            a(f'{lab}:')
        if not o.get('rt'): self.dump_stamps(tg)
        a(f's_branch L_Rloop_{tg}')
        a.hot = False
        a(f'{spin}:')
        self.spin_flag(V_FLAG, f'v{V_Z}', S_FKV)
        a(f's_branch {back}')
        for txt, sh in zip(self.late, self.late_sh):
            pre, post = txt.split('@SH@')
            a(pre); a('s_nop 7'); sh(); a('s_nop 7'); a(post)
        for f in self.fixups: f()
        a(f'L_Rtail_{tg}:')
        a.forget()
        self.pack_kvm()
        a(f'''
        buffer_store_dwordx4 {vr(KMH,4)}, v{V_L16}, {WS}, {S_KVM} offen sc1
        s_waitcnt vmcnt(0) lgkmcnt(0)
        buffer_store_dword v{V_F}, v{V_ONE}, {WS}, {S_FM} offen sc1
        buffer_store_dword v{V_F}, v{V_ONE}, {WS}, {S_FM} offen offset:2048 sc1
        ''')
        self.tstamp(6, T + 4)
        self.note(6, T + 4)
        if o.get('stamp'):
            set_srd(a, 12, P_DBG, 256)
            a(f'''
            s_memtime s[82:83]
            s_memrealtime s[84:85]
            s_waitcnt lgkmcnt(0)
            s_sub_u32 s82, s82, s80
            s_sub_u32 s84, s84, s30
            s_sub_u32 s28, s28, s30
            v_mov_b32 v{T}, s82
            v_mov_b32 v{T+1}, {S_FAST}
            v_mov_b32 v{T+2}, s28
            v_mov_b32 v{T+3}, s84
            v_mov_b32 v{T+4}, 16
            buffer_store_dwordx4 {vr(T,4)}, v{T+4}, {ST}, 0 offen
            ''')
        a('s_endpgm')
        a.auto_vm = True
```

```python
import layout as L
from gen_common import *

V_L16, V_IST, V_PUB, V_X0, V_F, V_SMW, V_OW, V_WV = 1, 2, 3, 4, 8, 9, 10, 11
KMH, VMH = 12, 16
V_IDX, V_WV2 = 18, 19
SELR, SELV, V_ONE, V_OR, SELQ, SELK = 20, 24, 26, 27, 28, 128
V_Z = 29
VXC, VXN, KX = 32, 40, 48
WVB = 56
AQ, AK, AV = 72, 80, 88
M = 96
T = 132
WO0 = 144
V_FLAG = 0
SC = 128 ** -0.5 * 1.4426950408889634
import struct
def f2u(x): return struct.unpack('<I', struct.pack('<f', x))[0]

WO_SPILL = [(0, 0), (1, 0)]
def wo_frag(t, kb):
    order = [(t_, k_) for t_ in range(4) for k_ in range(4) if (t_, k_) not in WO_SPILL]
    return WO0 + 8 * order.index((t, kb))

LDSF = [('q', 0, 0), ('q', 0, 1), ('q', 1, 0), ('q', 1, 1), ('k', 0, 0)] + [('k', k, 1) for k in range(2, 8)] + [('k', 7, 0)] + [('v', k, p) for k in (6, 7) for p in range(2)]
AGF = [(m, k, p) for m in 'qkv' for k in range(8) for p in range(2) if (m, k, p) not in LDSF]
assert len(LDSF) == 16 and len(AGF) == 32
S_S = 's61'
S_MEMP = 's62'
S_PUBB = 's63'
S_IN0, S_IN1 = 's64', 's65'
S_INP = 's66'
S_REC = 's67'
S_FKV = 's68'
S_KVM, S_FM = 's69', 's70'
S_RST = 's71'
S_LO = 's[72:73]'
S_SC = 's74'
S_T0, S_T1 = 's75', 's76'
S_FAST = 's77'
S_TAG, S_NTAG = 's78', 's79'
S_OTAG, S_NOTAG = 's24', 's25'

class RRole:
    def smf(self, acc, A, B):
        self.a(f'v_smfmac_f32_16x16x64_bf16 {vr(acc,4)}, {vr(A,4)}, {B}, v{V_IDX}')

    def r_role(self):
        a = self.a; o = self.o
        a('L_R:')
        a.vq = list(self.vq_role)
        self.mark(0)
        self.note(2, 40)
        VD8, VD1, VTQ, VTO, VTA = 28, 29, 30, 31, 7
        a(f"""
        v_and_b32 v1, 63, v0
        v_lshrrev_b32 v2, 4, v1
        v_and_b32 v3, 15, v1
        v_lshlrev_b32 v4, 4, v3
        v_lshl_add_u32 v{VD8}, v2, 17, v4
        v_and_b32 v4, 0x70, v4
        v_lshrrev_b32 v3, 3, v3
        v_lshl_add_u32 v4, v3, 9, v4
        v_lshl_add_u32 v{VD1}, v2, 14, v4
        s_lshl_b32 s21, {S_W}, 7
        v_add_u32 v{VD1}, s21, v{VD1}
        s_mul_i32 s78, {S_W}, {L.BLK}
        """)
        groups = [(m, b) for m in 'oqkv' for b in range(2)]
        def issue(gi):
            mat, b = groups[gi]
            if b == 0: set_srd(a, 8, {'q': P_WQ, 'k': P_WK, 'v': P_WV, 'o': P_WO}[mat], 4 << 20)
            a(f's_add_u32 m0, s78, {(gi % 2) * L.GRP}')
            if mat != 'o':
                a(f's_add_u32 s21, {S_W}, {4 * b}\ns_lshl_b32 s21, s21, 19\ns_lshl_b32 s22, {S_RANK}, 8\ns_add_u32 s21, s21, s22')
                self.dma_block(f'v{VD8}', 's21', 8192)
            else:
                a(f's_lshl_b32 s21, {S_RANK}, 17\ns_add_u32 s21, s21, {b * 65536}')
                self.dma_block(f'v{VD1}', 's21', 1024)
        issue(0)
        self.load_table('T_R', 96, 28, 7)
        self.confirm_role()
        issue(1)
        self.mark(1)
        self.gate_and_store()
        names = list(L.r_table().keys())
        def tv(n): return 96 + names.index(n)
        a(f'v_mov_b32 v{VTQ}, v{tv("trq")}\nv_mov_b32 v{VTO}, v{tv("tro")}\nv_add_u32 v6, 65536, v{tv("wv")}')
        if o.get('code'):
            pc = a.newlabel('pc')
            a(f's_getpc_b64 s[12:13]\n{pc}:\ns_add_u32 s12, s12, L_R_ready-{pc}\ns_addc_u32 s13, s13, 0\ns_mov_b32 s14, L_R_slow-L_R_ready\ns_mov_b32 s15, 0x20000')
            a(f'v_lshlrev_b32 v1, 7, v0\nbuffer_load_dword v27, v1, {ST}, 0 offen')
        else:
            a(f'buffer_load_dword v27, v{tv("one")}, {WS}, 0 offen')
        a(f'buffer_load_dword v26, v{tv("mm")}, {WS}, 0 offen')
        a.auto_vm = False
        TMP = 56
        park = {}
        parkregs = [32, 64, 72, 80, 88, 124, 132, 8]
        for f in LDSF:
            if f[0] == 'k': park[f] = parkregs.pop(0)
            if f[0] == 'q': park[f] = -8 * AGF.index(('v', 3 + 2 * f[1], f[2])) - 1
        S_RDY = 's76'
        def scalars():
            if o.get('pa2', 0):
                dec = f's_lshr_b32 s84, {S_RANK}, 3\ns_lshl_b32 s84, s84, 1\ns_lshr_b32 s21, {S_W}, 1\ns_add_u32 s84, s84, s21\n' \
                      f's_lshr_b32 s85, {S_RANK}, 1\ns_and_b32 s85, s85, 3\n' \
                      f's_and_b32 s86, {S_RANK}, 1\ns_lshl_b32 s86, s86, 1\ns_and_b32 s21, {S_W}, 1\ns_add_u32 s86, s86, s21'
            else:
                dec = f's_lshr_b32 s84, {S_RANK}, 2\ns_and_b32 s85, {S_RANK}, 3\ns_mov_b32 s86, {S_W}'
            a(f'''
            {dec}
            s_lshl_b32 {S_INP}, s84, 2
            s_add_u32 {S_INP}, {S_INP}, s85
            s_lshl_b32 {S_INP}, {S_INP}, 2
            s_add_u32 {S_INP}, {S_INP}, s86
            s_lshl_b32 {S_INP}, {S_INP}, 11
            s_add_u32 {S_INP}, {S_INP}, {hex(L.RIN)}
            s_lshl_b32 {S_PUBB}, s84, 10
            s_and_b32 s22, s85, 2
            s_lshl_b32 s22, s22, 7
            s_add_u32 {S_PUBB}, {S_PUBB}, s22
            s_and_b32 s22, s85, 1
            s_lshl_b32 s22, s22, 5
            s_add_u32 {S_PUBB}, {S_PUBB}, s22
            s_lshl_b32 s22, s86, 6
            s_add_u32 {S_PUBB}, {S_PUBB}, s22
            s_add_u32 {S_PUBB}, {S_PUBB}, {hex(L.RMEM)}
            s_and_b32 s22, s84, 1
            s_lshl_b32 s22, s22, 9
            s_lshr_b32 s21, s84, 1
            s_lshl_b32 s21, s21, 7
            s_add_u32 s21, s21, s22
            s_lshl_b32 s22, s85, 3
            s_add_u32 s21, s21, s22
            s_lshl_b32 s22, s86, 11
            s_add_u32 s75, s21, s22
            s_mul_i32 {S_REC}, {S_RANK}, 24576
            s_mul_i32 s21, {S_W}, 6144
            s_add_u32 {S_REC}, {S_REC}, s21
            s_lshl_b32 {S_FKV}, {S_RANK}, 6
            s_lshl_b32 s21, {S_W}, 2
            s_add_u32 {S_FKV}, {S_FKV}, s21
            s_add_u32 {S_FM}, {S_FKV}, {hex(L.F_M - 4096)}
            s_add_u32 {S_FKV}, {S_FKV}, {hex(L.F_KV)}
            s_lshl_b32 {S_KVM}, {S_RANK}, 12
            s_lshl_b32 s21, {S_W}, 10
            s_add_u32 {S_KVM}, {S_KVM}, s21
            s_add_u32 {S_KVM}, {S_KVM}, {hex(L.KVM - 131072)}
            s_lshl_b32 s21, {S_W}, 11
            s_add_u32 {S_MEMP}, s21, {hex(L.RMEM)}
            s_lshl_b32 {S_IN0}, {S_RANK}, 6
            s_add_u32 {S_IN0}, {S_IN0}, {hex(L.RIN)}
            s_mov_b32 s72, 0x33333333
            s_mov_b32 s73, 0x33333333
            s_mov_b32 {S_SC}, {hex(f2u(SC))}
            s_mov_b32 {S_S}, 0
            ''')
        def first_records(l16):
            for i in range(2):
                a(f'buffer_load_dwordx4 {vr(KX+4*i,4)}, v{l16}, {WS}, {S_REC} offen offset:{1024*i} sc1')
                a(f'buffer_load_dwordx4 {vr(VXN+4*i,4)}, v{l16}, {WS}, {S_REC} offen offset:{2048+1024*i} sc1')
        def stage_w():
            set_srd(a, 12, P_DBG, 256)
            a(f"""
            v_and_b32 v2, 1, v0
            v_lshlrev_b32 v5, 3, v2
            v_lshlrev_b32 v2, 11, v2
            buffer_load_dword v3, v5, {ST}, 0 offen sc1
            """)
        def stage_x():
            a(f'buffer_load_dword v4, v2, {WS}, {S_FKV} offen sc1')
        def stage_y():
            a(f"""
            v_lshl_or_b32 v140, v141, 16, v140
            v_readlane_b32 s21, v3, 0
            v_readlane_b32 s22, v3, 1
            v_cmp_eq_u32 vcc, 0, v4
            s_mov_b32 {S_RDY}, 0
            s_bcnt1_i32_b32 s21, s21
            s_add_u32 s21, s21, s22
            s_mov_b32 {S_FAST}, 1
            s_cbranch_vccnz L_R_notyet
            s_cmp_lt_u32 s21, 32
            s_cbranch_scc1 L_R_notyet
            s_mov_b32 {S_RDY}, 1
            buffer_store_dword v140, v{tv("pub")}, {WS}, {S_PUBB} offen sc1
            """)
            first_records(tv('l16'))
            a('L_R_notyet:')
        scalars()
        set_srd(a, 24, P_MEM0, 8192)
        a(f'buffer_load_ushort v140, v{tv("m0a")}, s[24:27], s75 offen\nbuffer_load_ushort v141, v{tv("m0a")}, s[24:27], s75 offen offset:32')
        todo = []
        self.ldsf_off = {}
        def flush(n):
            for _ in range(n):
                f, r = todo.pop(0); off = 8192 * len(self.ldsf_off)
                self.ldsf_off[f] = off
                for hh in range(2):
                    src = vr(r + 4 * hh, 4) if r >= 0 else ar(-r - 1 + 4 * hh, 4)
                    a(f'ds_write_b128 v{tv("wv") if off < 65536 else 6}, {src} offset:{off % 65536 + 1024 * hh}')
                if r >= 0: parkregs.append(r)
        for gi in range(8):
            mat, b = groups[gi]
            if gi == 0: self.mark(2)
            a.wait(vm=[16 + 5, 5 + 16, 16, 16, 16, 16, 16, 0][gi] if o.get('xearly', 1) else [16 + 5, 5 + 16, 16, 16, 16, 16, 16 + 1, 1][gi])
            if gi == 6 and o.get('xearly', 1): stage_y()
            if gi in (0, 2, 4, 7): self.mark(3 + [0, 2, 4, 7].index(gi))
            a('s_barrier')
            hb = (gi % 2) * L.GRP
            for x in range(4):
                dsts = []
                if mat == 'o':
                    for p in range(2):
                        f = (x, 2 * b + p)
                        dsts.append((vr, (TMP if x == 0 else 40) if f in WO_SPILL else wo_frag(*f)))
                    offs = [0, 2112, 8448, 10560]; xo = 64 * x
                    if x == 0: a(f'v_add_u32 v{VTA}, {hb}, v{VTO}')
                else:
                    offs = [0, 1056, 512, 1568]; xo = 0
                    a(f's_xor_b32 s21, {S_W}, {x}\ns_mul_i32 s21, s21, {L.BLK}\ns_add_u32 s21, s21, {hb}\nv_add_u32 v{VTA}, s21, v{VTQ}')
                    for p in range(2):
                        f = (mat, 2 * x + b, p)
                        if f in AGF: dsts.append((ar, 8 * AGF.index(f)))
                        else:
                            if f not in park: park[f] = TMP if (f[1], f[2]) == (6, 0) else (16 if (f[1], f[2]) == (6, 1) else parkregs.pop(0))
                            if park[f] < 0: dsts.append((ar, -park[f] - 1)); todo.insert(0, (f, park[f]))
                            else: dsts.append((vr, park[f])); todo.append((f, park[f]))
                for p in range(2):
                    rf, d = dsts[p]
                    for r in range(4):
                        a(f'ds_read_b64_tr_b16 {rf(d + 2 * r, 2)}, v{VTA} offset:{xo + offs[r] + (512 if mat == "o" else 32) * p}')
            if gi == 7 and not o.get('xearly', 1):
                a.wait(vm=0); stage_y()
            a.wait(lgkm=0)
            if gi == 0:
                for i in range(2):
                    for hh in range(2):
                        a(f'ds_write_b128 v{tv("x0")}, {vr((TMP if i == 0 else 40) + 4 * hh, 4)} offset:{16384 + 8192 * i + 1024 * hh}')
            a('s_barrier')
            if gi == 1: stage_w()
            if gi == 5 and o.get('xearly', 1): stage_x()
            if gi + 2 < 8: issue(gi + 2)
            if gi == 5 and not o.get('xearly', 1): stage_x()
            if gi == 2: self.signal_init(barrier=False)
            if gi == 6: flush(8)
            if gi == 7: flush(8)
        assert not todo and len(self.ldsf_off) == 16
        a.wait(lgkm=0)
        a.auto_vm = True; a.forget()
        a(f'v_mov_b32 v{V_WV2}, v6')
        for n, d in [('l16', V_L16), ('ist', V_IST), ('pub', V_PUB), ('x0', V_X0), ('x1', V_X0 + 1), ('x2', V_X0 + 2), ('x3', V_X0 + 3),
                     ('f', V_F), ('smw', V_SMW), ('ow', V_OW), ('wv', V_WV), ('idx', V_IDX), ('one', V_ONE), ('or', V_OR)] + \
                    [(f'selr{i}', SELR + i) for i in range(4)] + [(f'selv{i}', SELV + i) for i in range(2)] + \
                    [('selq', SELQ), ('selq', SELQ + 3), ('selk', SELK), ('selk', SELK + 3)]:
            a(f'v_mov_b32 v{d}, v{tv(n)}')
        for d in (SELQ + 1, SELQ + 2, SELK + 1, SELK + 2): a(f'v_mov_b32 v{d}, 0')
        self.dump_marks(T + 4)
        self.tstamp(1, T + 4)
        self.note(3, T + 4)
        a(f's_cmp_eq_u32 {S_RDY}, 1\ns_cbranch_scc1 L_R_ready')
        self.wait_init(t0=T + 4)
        a(f's_cmp_ge_u32 s21, 32\ns_cselect_b32 {S_FAST}, 1, 0')
        a(f'buffer_store_dword v140, v{V_PUB}, {WS}, {S_PUBB} offen sc1')
        self.spin_flag(V_FLAG, f'v{V_Z}', S_FKV)
        first_records(V_L16)
        a(f's_add_u32 s21, {S_FKV}, 2048')
        self.spin_flag(V_FLAG, f'v{V_Z}', 's21')
        a('L_R_ready:')
        a.wait(vm=0)
        a.forget()
        if o.get('force_slow'): a(f's_mov_b32 {S_FAST}, 0')
        a(f's_add_u32 {S_FKV}, {S_FKV}, 2048\nv_mov_b32 v{V_FLAG}, 1')
        for r in range(M, M + 8, 2): a(f'v_mov_b64 {vr(r,2)}, -1')
        a(f's_lshl_b32 s21, {S_RANK}, 6\ns_add_u32 s21, s21, {hex(L.F_RS)}\ns_cmp_eq_u32 {S_W}, 0\ns_cselect_b32 s21, s21, {hex(L.OOB)}')
        a(f'buffer_store_dword v{V_F}, v{V_ONE}, {WS}, s21 offen sc1')
        self.tstamp(2, T + 4)
        self.tstamp(3, T + 4)
        self.note(4, T + 4)
        if o.get('stamp'):
            a('s_memtime s[80:81]\ns_memrealtime s[28:29]'); a.wait(lgkm=0)
        a('s_mov_b32 s26, 0x3f803f80\ns_mov_b32 s27, 0x3f803f80\ns_mov_b32 s8, 0x3f003f00\ns_mov_b32 s9, 0x3f003f00')
        a(f'ds_write_b64 v{V_OW}, {vr(M,2)}')
        a.wait(lgkm=0)
        a(f's_cmp_eq_u32 {S_FAST}, 0\ns_cbranch_scc1 L_R_slow')
        if o.get('nostag'):
            self.r_loop('f', '')
        else:
            for w in range(1, 4): a(f's_cmp_eq_u32 {S_W}, {w}\ns_cbranch_scc1 L_R_w{w}')
            for w in range(4):
                if w: a(f'L_R_w{w}:')
                self.r_loop('f' + (str(w) if w else ''), '', wv=w)
        a('L_R_slow:')
        self.r_loop('s', 'sc1')

    def spin_flag(self, dst, voff, soff):
        a = self.a
        lab = a.newlabel('sf'); ok = a.newlabel('sfok')
        sv = a.auto_vm; a.auto_vm = False
        a(f'''
        s_mov_b32 s23, {SPIN}
        {lab}:
        buffer_load_dword v{dst}, {voff}, {WS}, {soff} offen sc1
        s_waitcnt vmcnt(0)
        v_cmp_ne_u32 vcc, 0, v{dst}
        s_cbranch_vccnz {ok}
        s_sleep 2
        s_sub_u32 s23, s23, 1
        s_cbranch_scc0 {lab}
        s_mov_b32 {SPIN}, 0x400
        {ok}:
        ''')
        a.auto_vm = sv; a.vq = []

    def poll(self, tag, dst, voff, soff, pre, check, shadow, nchk, mid=None, nmid=0, blk=None):
        a = self.a
        lab = f'L_poll_{tag}'; ok = f'L_pok_{tag}'
        def issue():
            a(f'buffer_load_dwordx4 {vr(dst,4)}, v{voff}, {WS}, {soff} offen {self.pf}')
            a(f'buffer_load_dwordx4 {vr(dst+4,4)}, v{voff}, {WS}, {soff} offen offset:1024 {self.pf}')
        pre()
        if blk:
            gap, cover, fill = blk
            issue()
            if mid: mid()
            for i in range(gap): fill()
            a(f's_mov_b32 s23, {SPIN}')
            issue()
            for i in range(cover): fill()
            a(f's_branch L_pw_{tag}\n{lab}:')
            a(f's_sub_u32 s23, s23, 1\ns_cbranch_scc1 L_pto_{tag}')
            issue()
            a(f'L_pw_{tag}:\ns_waitcnt vmcnt(2)')
            check(); shadow()
            a(f's_cbranch_vccnz {lab}\n{ok}:')
            self.late.append(f'L_pto_{tag}:\ns_mov_b32 {SPIN}, 0x400\ns_waitcnt vmcnt(0)\n@SH@s_branch {ok}')
            self.late_sh.append(shadow)
            return
        if mid:
            issue(); mid()
            for r in range(nmid):
                check(); shadow()
                a(f's_cbranch_vccz {ok}')
        a(f's_mov_b32 s23, {SPIN}')
        a(f'{lab}:')
        issue()
        for r in range(nchk - 1):
            check(); shadow()
            a(f's_cbranch_vccz {ok}')
        a(f's_sub_u32 s23, s23, 1\ns_cbranch_scc1 L_pto_{tag}')
        check(); shadow()
        a(f's_cbranch_vccnz {lab}\n{ok}:')
        self.late.append(f'L_pto_{tag}:\ns_mov_b32 {SPIN}, 0x400\ns_waitcnt vmcnt(0)\n@SH@s_branch {ok}')
        self.late_sh.append(shadow)

    def poll2(self, tag, dst, soff, chores, t0, t1, t2, fill, check, shadow, retry=None):
        a = self.a
        lab = f'L_poll_{tag}'; ok = f'L_pok_{tag}'
        def issue():
            a(f'buffer_load_dwordx4 {vr(dst,4)}, v{V_L16}, {WS}, {soff} offen {self.pf}')
            a(f'buffer_load_dwordx4 {vr(dst+4,4)}, v{V_L16}, {WS}, {soff} offen offset:1024 {self.pf}')
        def spend(t, flush=False):
            while chores and (flush or chores[0][0] <= t + 4):
                c, f = chores.pop(0); f(); t -= c
            while t >= 12: fill(); t -= 16
        spend(t0); issue()
        spend(t1 - 40); issue()
        spend(t2 - 40, flush=True)
        a(f's_mov_b32 s23, {SPIN}\ns_branch L_pw_{tag}\n{lab}:')
        a(f's_sub_u32 s23, s23, 1\ns_cbranch_scc1 L_pto_{tag}')
        issue()
        if retry: retry()
        a(f'L_pw_{tag}:\ns_waitcnt vmcnt(2)')
        check(); shadow()
        a(f's_cbranch_vccnz {lab}\n{ok}:')
        self.late.append(f'L_pto_{tag}:\ns_mov_b32 {SPIN}, 0x400\ns_waitcnt vmcnt(0)\n@SH@s_branch {ok}')
        self.late_sh.append((lambda: (retry(), shadow())) if retry else shadow)

    def stamp(self, i):
        if self.o.get('stamp') and (self.o.get('smask', 0x3ff) >> i) & 1: self.a.raw(f'    {"s_memrealtime" if self.o.get("rt") else "s_memtime"} s[{82+2*i}:{83+2*i}]')

    def dump_stamps(self, tg):
        a = self.a
        if not self.o.get('stamp'): return
        lab = f'L_nodump_{tg}'
        a(f's_cmp_lg_u32 {S_S}, {self.o.get("dstep", 41)}\ns_cbranch_scc1 {lab}\ns_waitcnt lgkmcnt(0)')
        a(f's_lshl_b32 s21, {S_RANK}, 8\ns_lshl_b32 s22, {S_W}, 6\ns_add_u32 s21, s21, s22\ns_add_u32 s21, s21, {hex(L.DBG)}')
        a(f'v_mov_b32 v{T+10}, 0')
        for i in range(10):
            a(f'v_mov_b32 v{T+11}, s{82+2*i}\nbuffer_store_dword v{T+11}, v{T+10}, {WS}, s21 offen offset:{4*i}')
        a(f's_waitcnt vmcnt(0)\n{lab}:')

    def r_loop(self, tg, cf, wv=0):
        a = self.a; o = self.o
        mf16 = 'v_mfma_f32_16x16x16_bf16'; mf32 = 'v_mfma_f32_16x16x32_bf16'
        cvt = 'v_cvt_pk_bf16_f32'
        QP = 'quad_perm:[2,3,0,1] row_mask:0xf bank_mask:0xf'
        dum = lambda n=1: [a(a.dummy) for _ in range(n)]
        self.late = []; self.late_sh = []; self.fixups = []
        self.pf = 'nt' if (not cf and o.get('pollnt')) else 'sc1'
        a.auto_vm = False
        B0, B1, B2 = WVB, WVB + 8, M
        ACC = {'q': AQ, 'k': AK, 'v': AV}
        def S(m, k, p, buf=None):
            f = (m, k, p)
            self.smf(ACC[m] + 4 * p, M + 4 * k, ar(8 * AGF.index(f), 8) if buf is None else vr(buf, 8))
        def V(k, p, buf=None): S('v', k, p, buf)
        def RD(buf, m, k, p, hh):
            off = self.ldsf_off[(m, k, p)]
            a(f'ds_read_b128 {vr(buf + 4*hh, 4)}, v{V_WV if off < 65536 else V_WV2} offset:{off % 65536 + hh*1024}')
        def RD2(buf, m, k, p): RD(buf, m, k, p, 0); RD(buf, m, k, p, 1)
        def pkadd(d, x, y): a(f'v_add_f32 v{d}, v{x}, v{y}\nv_add_f32 v{d+1}, v{x+1}, v{y+1}')
        def PK(d, x, y): a(f'v_pk_add_f32 {vr(d,2)}, {vr(x,2)}, {vr(y,2)}')
        def add(d, x, y): a(f'v_add_f32 v{d}, v{x}, v{y}')
        def dmf(r):
            m = o.get('fillm', 2)
            if m == 1 or (m == 2 and r == M + 8): a('s_nop 3')
            elif m == 3: a(f's_nop 2\n{a.dummy}')
            elif m == 4: a(f'{mf16} {vr(r,4)}, s[26:27], s[26:27], 0' if False else f'{mf16} {vr(r,4)}, {vr(SELQ+2,2)}, {vr(SELQ,2)}, 0')
            else: a(f'{mf16} {vr(r,4)}, {vr(SELQ,2)}, {vr(SELQ,2)}, {vr(r,4)}')
        def filt(line):
            st = 'buffer_store' in line and ('s75' in line or 's76' in line) and 'sc1' in line
            ld = 'buffer_load' in line and ('s67' in line or 's68' in line)
            if o.get('nost') and st: return None
            if o.get('nofst') and st and 's76' in line: return None
            if o.get('nold') and ld: return None
            if o.get('nofld') and ld and 's68' in line: return None
            if o.get('ldplain') and ld and 's67' in line: return line.replace(' sc1', '')
            if o.get('ldnt') and ld and 's67' in line: return line.replace(' sc1', ' nt')
            if o.get('stplain') and st: return line.replace(' sc1', '')
            if o.get('novm') and 'vmcnt' in line: return None
            if o.get('nowarm') and 'buffer_load_dword v27' in line: return 's_nop 0'
            if o.get('novmh') and 'buffer_store_dwordx2' in line: return None
            return line
        PA = M + 8; R = T + 8
        spin = f'L_kvspin_{tg}'; back = f'L_kvback_{tg}'
        def preload():
            RD2(M + 24, 'q', 0, 0); RD2(M + 16, 'q', 0, 1); RD2(B0, 'q', 1, 0); RD2(B1, 'q', 1, 1); RD2(T, 'k', 0, 0)
        def slackB():
            a(f'v_cmp_eq_u32 vcc, 0, v{V_FLAG}')
            for r in range(0, 8, 2): a(f'v_mov_b64 {vr(VXC+r,2)}, {vr(VXN+r,2)}')
            a(f's_xor_b32 {S_INP}, {S_INP}, 0x40000')
            a(f's_cbranch_vccnz {spin}\n{back}:')
            a(f"""
            s_cmp_lt_u32 {S_S}, 63
            s_cselect_b32 {S_T0}, {0 if o.get("nopf") else 32*24576}, 0
            s_add_u32 {S_REC}, {S_REC}, {S_T0}
            s_cmp_lt_u32 {S_S}, 62
            s_cselect_b32 {S_T0}, 2048, 0
            s_add_u32 {S_FKV}, {S_FKV}, {S_T0}
            s_cmp_ge_u32 {S_S}, 2
            s_cselect_b32 {S_T1}, {S_FM}, {hex(L.OOB)}
            s_cmp_ge_u32 {S_S}, 1
            s_cselect_b32 {S_T0}, {S_KVM}, {hex(L.OOB)}
            s_add_u32 {S_FM}, {S_FM}, 2048
            s_add_u32 {S_KVM}, {S_KVM}, 131072
            s_lshr_b32 {S_TAG}, {S_S}, 1
            s_and_b32 {S_TAG}, {S_TAG}, 1
            s_sub_u32 {S_NTAG}, {S_TAG}, 1
            s_add_u32 {S_IN1}, {S_IN0}, 32768
            s_and_b32 {S_OTAG}, {S_S}, 1
            s_sub_u32 {S_NOTAG}, {S_OTAG}, 1
            """)
            if o.get('steplog') and wv == 0 and tg != 's':
                a(f's_memrealtime s[82:83]\ns_lshl_b32 s84, {S_S}, 2\ns_lshl_b32 s85, {S_RANK}, 8\ns_add_u32 s84, s84, s85\ns_add_u32 s84, s84, {hex(L.DBG + 131072)}')
                a(f's_waitcnt lgkmcnt(0)\nv_mov_b32 v{T+10}, s82\nbuffer_store_dword v{T+10}, v{V_ONE}, {WS}, s84 offen')
            if o.get('zB'):
                for r in range(AQ, AQ + 24, 2): a(f'v_mov_b64 {vr(r,2)}, 0')
            if o.get('barB'): dmf(PA); a('s_barrier')
            for i in range(o.get('dB', 8) if wv >= 2 else o.get('dB0', o.get('dB', 8))): dmf(PA + 4 * (i % 2))
        def checkB():
            if not o.get('shortchk'):
                a(f"""
                v_max3_u32 v{R}, v{M}, v{M+1}, v{M+2}
                v_max3_u32 v{R+1}, v{M+3}, v{M+4}, v{M+5}
                v_max3_u32 v{R}, v{R}, v{M+6}, v{M+7}
                v_max_u32 v{R}, v{R}, v{R+1}
                """)
            else:
                a(f'v_max_u32 v{R}, v{M}, v{M+7}')
            a(f'v_cmp_eq_u32 vcc, -1, v{R}')
        def shadowB():
            if o.get('specw', 1): a(f'ds_write_b128 v{V_X0}, {vr(M,4)}')
            else: dmf(PA); a('s_nop 2')
        preload()
        for r in range(AQ, AQ + 24, 2): a(f'v_mov_b64 {vr(r,2)}, 0')
        a(f's_xor_b32 {S_INP}, {S_INP}, 0x40000')
        a.wait(lgkm=0)
        a(f'L_Rloop_{tg}:')
        a.forget()
        a.hot = True
        a.filt = filt
        sa = lambda txt: [(4, lambda l=l: a(l)) for l in txt.strip().split('\n')]
        va = lambda lines: [(8, lambda l=l: a(l)) for l in lines]
        if True:
            chB = [(44, lambda: a(f'v_cmp_eq_u32 vcc, 0, v{V_FLAG}\ns_cbranch_vccnz {spin}\n{back}:'))]
            chB += va([f'v_mov_b64 {vr(VXC+r,2)}, {vr(VXN+r,2)}' for r in range(0, 8, 2)])
            chB += sa(f"""
            s_xor_b32 {S_INP}, {S_INP}, 0x40000
            s_cmp_lt_u32 {S_S}, 63
            s_cselect_b32 {S_T0}, {0 if o.get("nopf") else 32*24576}, 0
            s_add_u32 {S_REC}, {S_REC}, {S_T0}
            s_cmp_lt_u32 {S_S}, 62
            s_cselect_b32 {S_T0}, 2048, 0
            s_add_u32 {S_FKV}, {S_FKV}, {S_T0}
            s_cmp_ge_u32 {S_S}, 2
            s_cselect_b32 {S_T1}, {S_FM}, {hex(L.OOB)}
            s_cmp_ge_u32 {S_S}, 1
            s_cselect_b32 {S_T0}, {S_KVM}, {hex(L.OOB)}
            s_add_u32 {S_FM}, {S_FM}, 2048
            s_add_u32 {S_KVM}, {S_KVM}, 131072
            s_lshr_b32 {S_TAG}, {S_S}, 1
            s_and_b32 {S_TAG}, {S_TAG}, 1
            s_sub_u32 {S_NTAG}, {S_TAG}, 1
            s_add_u32 {S_IN1}, {S_IN0}, 32768
            s_and_b32 {S_OTAG}, {S_S}, 1
            s_sub_u32 {S_NOTAG}, {S_OTAG}, 1
            """)
            if o.get('steplog') and wv == 0 and tg != 's':
                chB.append((60, lambda: (a(f's_memrealtime s[82:83]\ns_lshl_b32 s84, {S_S}, 2\ns_lshl_b32 s85, {S_RANK}, 8\ns_add_u32 s84, s84, s85\ns_add_u32 s84, s84, {hex(L.DBG + 131072)}'),
                    a(f's_waitcnt lgkmcnt(0)\nv_writelane_b32 v{T+10}, s82, 0\nglobal_store_dword v{V_ONE}, v{T+10}, s[4:5]' if False else f's_waitcnt lgkmcnt(0)'))))
            if not o.get('split', 1):
                self.poll2('B' + tg, M, S_MEMP, chB, o.get('tB0', 200), o.get('tB1', 180), o.get('tB2', 100), lambda: dmf(PA), checkB, shadowB)
            else:
                ld = lambda i: a(f'buffer_load_dwordx4 {vr(M+4*i,4)}, v{V_L16}, {WS}, {S_MEMP} offen offset:{1024*i} {self.pf}')
                def spend(t, flush=False):
                    while chB and (flush or chB[0][0] <= t + 4):
                        c, f = chB.pop(0); f(); t -= c
                    while t >= 12: dmf(PA); t -= 16
                def chk(i):
                    a(f'v_max3_u32 v{R}, v{M+4*i}, v{M+4*i+1}, v{M+4*i+2}\nv_max_u32 v{R}, v{R}, v{M+4*i+3}\nv_cmp_eq_u32 vcc, -1, v{R}')
                g = o.get('tBg', 32)
                spend(o.get('tB0', 170)); ld(0); spend(g); ld(1)
                spend(o.get('tB1', 180) - 40 - g); ld(0); spend(g); ld(1)
                spend(o.get('tB2', 100) - 40 - g, flush=True)
                a(f's_mov_b32 s23, {SPIN}\nL_pw_B{tg}:\ns_waitcnt vmcnt(3)')
                chk(0)
                a(f'ds_write_b128 v{V_X0}, {vr(M,4)}')
                S('q', 0, 0, M + 24)
                a(f's_cbranch_vccnz L_poll_B{tg}\nL_pok_B{tg}:')
                def fixB():
                    a(f'L_poll_B{tg}:\ns_sub_u32 s23, s23, 1\ns_cbranch_scc1 L_pto_B{tg}')
                    ld(0); ld(1)
                    a(f'v_mov_b64 {vr(AQ,2)}, 0\nv_mov_b64 {vr(AQ+2,2)}, 0\ns_branch L_pw_B{tg}')
                    a(f'L_pto_B{tg}:\ns_mov_b32 {SPIN}, 0x400\ns_branch L_pok_B{tg}')
                    a(f'L_pol1_B{tg}:\ns_waitcnt vmcnt(0)')
                    chk(1)
                    a(f's_cbranch_vccz L_pk1_B{tg}\ns_sub_u32 s23, s23, 1\ns_cbranch_scc1 L_pt1_B{tg}')
                    ld(1)
                    a(f's_branch L_pol1_B{tg}\nL_pt1_B{tg}:\ns_mov_b32 {SPIN}, 0x400\ns_branch L_pk1_B{tg}')
                self.fixups.append(fixB)
        if o.get('rt'): a('s_mov_b32 s84, s82')
        self.stamp(0)
        if o.get('rt'): self.dump_stamps(tg)
        wp = o.get('wpat', 5)
        ws = {0: (0, 1), 1: (1 + wv, 5 + wv), 2: (1 + 2 * (wv % 2), 2 + 2 * (wv % 2)), 3: (1 + wv % 2, 3 + wv % 2), 4: (1 + wv // 2, 3 + wv // 2),
              5: (1, 2), 6: (wv, 4 + wv), 7: (wv % 2, 2 + wv % 2), 8: (wv // 2, 2 + wv // 2)}[wp]
        wslot = [0]
        def MW():
            for i in range(2):
                if ws[i] == wslot[0] and not (i == 0 and o.get('specw', 1)): a(f'ds_write_b128 v{V_X0}, {vr(M+4*i,4)} offset:{1024*i}')
            wslot[0] += 1
        if not o.get('split', 1):
            MW()
            S('q', 0, 0, M + 24); MW()
            S('q', 0, 1, M + 16); MW()
            S('q', 1, 0, B0); MW()
            S('q', 1, 1, B1); MW()
            S('k', 0, 0, T); MW()
            S('k', 0, 1); MW()
            S('k', 1, 0); MW()
            S('k', 1, 1); MW()
        else:
            S('q', 0, 1, M + 16)
            a('s_waitcnt vmcnt(2)')
            a(f'v_max3_u32 v{R}, v{M+4}, v{M+5}, v{M+6}')
            S('k', 0, 0, T); a(f'v_max_u32 v{R}, v{R}, v{M+7}')
            S('k', 0, 1); a(f'v_cmp_eq_u32 vcc, -1, v{R}')
            V(0, 0)
            a(f's_cbranch_vccnz L_pol1_B{tg}\nL_pk1_B{tg}:')
            a(f'ds_write_b128 v{V_X0}, {vr(M+4,4)} offset:1024')
            S('q', 1, 0, B0); S('q', 1, 1, B1); S('k', 1, 0); S('k', 1, 1)
        a.wait_lds_writes()
        a('s_barrier')
        def MR(k): a(f'ds_read_b128 {vr(M+4*k,4)}, v{V_X0 + k//2} offset:{1024*(k%2)}')
        MR(2); MR(3)
        if not o.get('split', 1): V(0, 0)
        MR(4)
        V(0, 1); MR(5)
        V(1, 0); MR(6)
        V(1, 1); MR(7)
        VXL = lambda i: a(f'buffer_load_dwordx4 {vr(VXN+4*i,4)}, v{V_L16}, {WS}, {S_REC} offen offset:{2048+1024*i} sc1')
        self.stamp(1)
        vm_ops = [
            lambda: a(f'buffer_store_dwordx4 {vr(KMH,4)}, v{V_L16}, {WS}, {S_T0} offen sc1'),
            lambda: VXL(0),
            lambda: VXL(1),
            lambda: (a(f'buffer_store_dword v{V_F}, v{V_ONE}, {WS}, {S_T1} offen sc1'),
                     a(f'buffer_load_dword v{V_FLAG}, v{V_Z}, {WS}, {S_FKV} offen sc1')),
        ]
        slot = [0]
        first = o.get('vm0', 5)
        def X():
            i = slot[0] - first - wv
            if i == 0: a('s_waitcnt vmcnt(0)')
            if i >= 0 and i % 4 == 0 and i // 4 < len(vm_ops): vm_ops[i // 4]()
            slot[0] += 1
        S('q', 2, 0); RD(B0, 'k', 2, 1, 0); X()
        S('q', 3, 0); RD(B0, 'k', 2, 1, 1); X()
        S('q', 4, 0); RD(B1, 'k', 3, 1, 0); X()
        S('q', 5, 0); RD(B1, 'k', 3, 1, 1); X()
        S('q', 6, 0); RD(T, 'k', 4, 1, 0); X()
        S('q', 7, 0); RD(T, 'k', 4, 1, 1); X()
        S('q', 2, 1); X()
        S('q', 3, 1); X()
        S('q', 4, 1); X()
        assert slot[0] > first + wv
        S('q', 5, 1); RD(B2, 'k', 5, 1, 0); X(); add(AQ, AQ, AQ + 2)
        S('q', 6, 1); RD(B2, 'k', 5, 1, 1); X(); add(AQ + 1, AQ + 1, AQ + 3)
        S('q', 7, 1); X(); a(f'{cvt} v{AQ+2}, v{AQ}, v{AQ+1}')
        S('k', 2, 0); X()
        S('k', 2, 1, B0); RD(B0, 'k', 6, 1, 0); X()
        S('k', 3, 0); RD(B0, 'k', 6, 1, 1); X()
        S('k', 3, 1, B1); RD(B1, 'k', 7, 0, 0); X(); add(AQ + 4, AQ + 4, AQ + 6)
        S('k', 4, 0); RD(B1, 'k', 7, 0, 1); X(); add(AQ + 5, AQ + 5, AQ + 7)
        S('k', 4, 1, T); RD(T, 'k', 7, 1, 0); X(); a(f'{cvt} v{AQ+3}, v{AQ+4}, v{AQ+5}')
        S('k', 5, 0); RD(T, 'k', 7, 1, 1); X()
        a(f'{mf16} {vr(AQ+4,4)}, {vr(AQ+2,2)}, {vr(SELQ,2)}, 0'); X()
        a(f'{mf16} {vr(T+8,4)}, {vr(AQ+2,2)}, {vr(SELQ+2,2)}, 0'); X()
        S('k', 5, 1, B2); RD(B2, 'v', 6, 0, 0); X()
        S('k', 6, 0); RD(B2, 'v', 6, 0, 1)
        S('k', 7, 0, B1); RD(B1, 'v', 7, 0, 0); a(f'{cvt} v{AQ}, v{AQ+4}, v{AQ+5}')
        S('k', 6, 1, B0); RD(B1, 'v', 7, 0, 1); a(f'{cvt} v{AQ+1}, v{AQ+6}, v{AQ+7}\n{cvt} v{AQ+2}, v{T+8}, v{T+9}')
        S('k', 7, 1, T); RD(B0, 'v', 6, 1, 0); a(f'{cvt} v{AQ+3}, v{T+10}, v{T+11}')
        assert slot[0] > first + wv + 4 * (len(vm_ops) - 1)
        self.stamp(2)
        RD(B0, 'v', 6, 1, 1)
        add(AK, AK, AK + 2)
        a(f'{mf32} {vr(AQ+4,4)}, {vr(KX,4)}, {vr(AQ,4)}, 0')
        add(AK + 1, AK + 1, AK + 3)
        a(f'{cvt} v{AK+2}, v{AK}, v{AK+1}')
        a(f'{mf32} {vr(T+8,4)}, {vr(KX+4,4)}, {vr(AQ,4)}, 0')
        pkadd(AK + 4, AK + 4, AK + 6)
        a(f'{cvt} v{AK+3}, v{AK+4}, v{AK+5}')
        a(f'{mf16} {vr(AK+4,4)}, {vr(AK+2,2)}, {vr(SELK,2)}, 0')
        a(f'{mf16} {vr(T,4)}, {vr(AK+2,2)}, {vr(SELK+2,2)}, 0')
        kslot = [0]
        def KL():
            i = kslot[0] - wv
            if i in (0, 4): a(f'buffer_load_dwordx4 {vr(KX+i,4)}, v{V_L16}, {WS}, {S_REC} offen offset:{256*i} sc1')
            kslot[0] += 1
        for i in range(4): a(f'v_cndmask_b32 v{AK+i}, v{T+8+i}, v{AQ+4+i}, {S_LO}')
        a(f'{cvt} v{KMH}, v{AK+4}, v{AK+5}\n{cvt} v{KMH+1}, v{AK+6}, v{AK+7}')
        a(f'{cvt} v{KMH+2}, v{T}, v{T+1}\n{cvt} v{KMH+3}, v{T+2}, v{T+3}')
        a(f'{mf32} {vr(T+4,4)}, {vr(KMH,4)}, {vr(AQ,4)}, 0')
        V(2, 0)
        a(f'ds_write_b128 v{V_X0}, {vr(AK,4)} offset:8192')
        a(f'v_cndmask_b32 v{T+4}, v{T+5}, v{T+4}, {S_LO}')
        V(2, 1)
        a(f'ds_write_b32 v{V_SMW}, v{T+4}')
        self.stamp(3)
        B3 = M + 8
        ONES, HALF = B2, B2 + 4
        V(3, 0); KL()
        V(3, 1); RD(B3, 'v', 7, 1, 0); KL()
        V(6, 0, B2); RD(B3, 'v', 7, 1, 1); KL()
        V(6, 1, B0); KL()
        if o.get('vb', 4) > 4: V(7, 0, B1)
        a.wait_lds_writes()
        a('s_barrier')
        SX = [T + 4, T + 8, AQ + 4]
        SR = lambda x: a(f'ds_read_b128 {vr(SX[x-1],4)}, v{V_X0+x} offset:8192')
        SR(1)
        if o.get('vb', 4) <= 4: V(7, 0, B1)
        SR(2); SR(3)
        V(4, 0); a(f'ds_read_b128 {vr(T,4)}, v{V_F} offset:1024'); a(f'v_mov_b64 {vr(ONES,2)}, s[26:27]')
        V(4, 1); KL(); a(f'v_mov_b64 {vr(ONES+2,2)}, s[26:27]')
        V(5, 0); KL(); a(f'v_mov_b64 {vr(HALF,2)}, s[8:9]')
        V(7, 1, B3); KL()
        V(5, 1); KL()
        WOS = lambda i, hh: a(f'ds_read_b128 {vr(WVB+8*i+4*hh,4)}, v{V_X0} offset:{16384+8192*i+1024*hh}')
        zs = list(range(M + 16, M + 32, 2))
        def Z(n):
            for _ in range(n): a(f'v_mov_b64 {vr(zs.pop(0),2)}, 0')
        self.stamp(4)
        pkadd(AK, AK, SX[0]); pkadd(AK + 2, AK + 2, SX[0] + 2)
        PK(SX[1], SX[1], SX[2]); PK(SX[1] + 2, SX[1] + 2, SX[2] + 2)
        PK(T, T, T + 2)
        PK(AK, AK, SX[1]); PK(AK + 2, AK + 2, SX[1] + 2)
        add(T, T, T + 1)
        mx, t2 = T + 2, T + 3
        a(f'v_max3_f32 v{mx}, v{AK}, v{AK+1}, v{AK+2}\nv_max3_f32 v{mx}, v{mx}, v{AK+3}, v{T}')
        PK(AV, AV, AV + 2); PK(AV + 4, AV + 4, AV + 6)
        a(f'v_max_f32_dpp v{t2}, v{mx}, v{mx} {QP}\nv_max_f32_dpp v{mx}, v{mx}, v{mx} {QP}')
        a(f'{cvt} v{AV+2}, v{AV}, v{AV+1}\n{cvt} v{AV+3}, v{AV+4}, v{AV+5}')
        a(f'v_permlane16_swap_b32 v{mx}, v{t2}\nv_max_f32 v{T+1}, v{mx}, v{t2}\nv_max_f32 v{mx}, v{mx}, v{t2}')
        a(f'{mf16} {vr(AV+4,4)}, {vr(SELV,2)}, {vr(AV+2,2)}, 0')
        WOS(0, 0)
        a(f'v_permlane32_swap_b32 v{mx}, v{T+1}\nv_max_f32 v{mx}, v{mx}, v{T+1}\nv_mul_f32 v{mx}, {S_SC}, v{mx}')
        E = [AK, AK + 1, AK + 2, AK + 3, T]
        for e in E: a(f'v_fma_f32 v{e}, v{e}, {S_SC}, -v{mx}')
        for e in E: a(f'v_exp_f32 v{e}, v{e}')
        BX, PM = AQ, T + 6
        a(f'{cvt} v{T+8}, v{AK}, v{AK+1}\n{cvt} v{T+9}, v{AK+2}, v{AK+3}')
        a(f"""
        v_cndmask_b32 v{BX}, 0, v{T+8}, {S_LO}
        v_cndmask_b32 v{BX+1}, 0, v{T+9}, {S_LO}
        v_cndmask_b32 v{BX+2}, v{T+8}, 0, {S_LO}
        v_cndmask_b32 v{BX+3}, v{T+9}, 0, {S_LO}
        v_mov_b32_dpp v{T+1}, v{T} {QP}
        {cvt} v{VMH}, v{AV+4}, v{AV+5}
        """)
        D, D2, DL = AQ + 4, AK + 4, T + 8
        a(f'{mf32} {vr(DL,4)}, {vr(ONES,4)}, {vr(BX,4)}, 0')
        WOS(0, 1)
        a(f'{cvt} v{T+4}, v{T}, v{T+1}\n{cvt} v{T+5}, v{T+1}, v{T}')
        a(f'{mf32} {vr(D2,4)}, {vr(VXC+4,4)}, {vr(BX,4)}, 0')
        WOS(1, 0)
        a(f'v_cndmask_b32 v{PM}, 0, v{T+4}, {S_LO}\nv_cndmask_b32 v{PM+1}, v{T+5}, 0, {S_LO}')
        a(f'{mf32} {vr(D,4)}, {vr(VXC,4)}, {vr(BX,4)}, 0')
        WOS(1, 1)
        a(f'{cvt} v{VMH+1}, v{AV+6}, v{AV+7}')
        a(f'{mf16} {vr(DL,4)}, {vr(HALF,2)}, {vr(PM,2)}, {vr(DL,4)}')
        Z(1)
        a(f'{mf16} {vr(D,4)}, {vr(VMH,2)}, {vr(PM,2)}, {vr(D,4)}')
        Z(o.get('zpv', 5))
        l = DL + 1
        a(f'v_add_f32_dpp v{l}, v{DL}, v{DL} {QP}\nv_rcp_f32 v{l}, v{l}')
        for i in range(4): a(f'v_add_f32_dpp v{D+i}, v{D2+i}, v{D+i} {QP}')
        for i in (0, 2): a(f'v_pk_mul_f32 {vr(D+i,2)}, {vr(D+i,2)}, {vr(l-1,2)} op_sel:[0,1] op_sel_hi:[1,1]')
        a(f'{cvt} v{T}, v{D}, v{D+1}\n{cvt} v{T+1}, v{D+2}, v{D+3}')
        a(f'v_and_or_b32 v{T}, v{T}, -2, {S_OTAG}')
        self.stamp(5)
        a(f'ds_write_b64 v{V_OW}, {vr(T,2)}')
        a(f's_cmp_eq_u32 {S_S}, 63\ns_cbranch_scc1 L_Rtail_{tg}')
        OA = AK
        WA = M + 16
        def oread():
            for k in range(4): a(f'ds_read_b128 {vr(OA+4*k,4)}, v{V_OR} offset:{(k//2)*2048 + (k%2)*512}')
        oc = [f'v_bitop3_b32 v{T+2+k}, v{OA+4*k}, v{OA+4*k+2}, {S_NOTAG} bitop3:0x42' for k in range(4)] + \
             [f'v_bitop3_b32 v{T+2}, v{T+2}, v{T+3}, v{T+4} bitop3:0x80', f'v_bitop3_b32 v{T+2}, v{T+2}, v{T+5}, 1 bitop3:0x80', f'v_cmp_eq_u32 vcc, 0, v{T+2}']
        Z(len(zs))
        for _ in range(o.get('z3', 4)): a('s_nop 1')
        oread()
        for _ in range(o.get('z4', 2)): dmf(M)
        self.stamp(6)
        def wo(t, k):
            fr = WVB + 8 * WO_SPILL.index((t, k)) if (t, k) in WO_SPILL else wo_frag(t, k)
            self.smf(WA + 4 * t, OA + 4 * k, vr(fr, 8))
        def fc(t): a(f'{cvt} v{AQ+2*t}, v{WA+4*t}, v{WA+4*t+1}\n{cvt} v{AQ+2*t+1}, v{WA+4*t+2}, v{WA+4*t+3}')
        def tagit(r): a(f'v_and_or_b32 v{r}, v{r}, -2, {S_TAG}')
        a(f'L_wo_{tg}:')
        for k in range(4):
            wo(0, k); a(oc[k]) if k < 3 else None
            wo(1, k)
            if k == 3: a(oc[3])
        wo(2, 0); a(oc[4])
        wo(3, 0); a(oc[5])
        wo(2, 1); a(oc[6])
        wo(3, 1); fc(0)
        wo(2, 2); fc(1)
        a(f's_cbranch_vccnz L_ofix_{tg}')
        wo(3, 2); tagit(AQ)
        wo(2, 3)
        a(f'buffer_store_dwordx4 {vr(AQ,4)}, v{V_IST}, {WS}, {S_IN0} offen {cf}')
        wo(3, 3)
        fc(2); tagit(AQ + 4); fc(3)
        a(f'buffer_store_dwordx4 {vr(AQ+4,4)}, v{V_IST}, {WS}, {S_IN1} offen {cf}')
        def fix():
            a(f'L_ofix_{tg}:\ns_mov_b32 s23, {SPIN}\nL_ofix2_{tg}:')
            a.forget(vm=False)
            oread(); a.wait(lgkm=0)
            for x in oc: a(x)
            a(f's_cbranch_vccz L_ofix3_{tg}\ns_sub_u32 s23, s23, 1\ns_cbranch_scc0 L_ofix2_{tg}\ns_endpgm\nL_ofix3_{tg}:')
            for r in range(WA, WA + 16, 2): a(f'v_mov_b64 {vr(r,2)}, 0')
            a(f's_branch L_wo_{tg}')
        self.fixups.append(fix)
        self.stamp(7)
        def pack_kvm():
            a(f's_mov_b64 vcc, {S_LO}')
            for i in range(4):
                qp = '[0,0,0,2]' if i < 2 else '[0,0,1,3]'
                a(f'v_cndmask_b32_dpp v{KMH+i}, v{VMH+i%2}, v{KMH+i}, vcc quad_perm:{qp} row_mask:0xf bank_mask:0xf')
        self.pack_kvm = pack_kvm
        def preA():
            a(f"""
            v_mov_b32 v{PA}, {S_NTAG}
            v_mov_b32 v{PA+4}, {S_NTAG}
            """)
            for i in range(o.get('dA', 4) if wv >= 2 else o.get('dA0', o.get('dA', 4))): dmf(R)
        def slackA():
            preload()
            pack_kvm()
            a(f"""
            s_add_u32 {S_S}, {S_S}, 1
            s_xor_b32 {S_IN0}, {S_IN0}, 0x40000
            s_and_b32 {S_T0}, {S_S}, 3
            s_lshl_b32 {S_T0}, {S_T0}, 13
            v_mov_b64 {vr(M,2)}, -1
            s_andn2_b32 {S_PUBB}, {S_PUBB}, 0x6000
            s_andn2_b32 {S_MEMP}, {S_MEMP}, 0x6000
            v_mov_b64 {vr(M+2,2)}, -1
            s_or_b32 {S_MEMP}, {S_MEMP}, {S_T0}
            s_xor_b32 {S_RST}, {S_T0}, 0x4000
            v_mov_b64 {vr(M+4,2)}, -1
            s_or_b32 {S_RST}, {S_RST}, {S_PUBB}
            s_or_b32 {S_PUBB}, {S_PUBB}, {S_T0}
            v_mov_b64 {vr(M+6,2)}, -1
            """)
            if not o.get('zB'):
                for r in range(AQ, AQ + 24, 2): a(f'v_mov_b64 {vr(r,2)}, 0')
            a.wait(lgkm=0)
        def checkA():
            a(f"""
            v_bitop3_b32 v{VXC}, v{PA}, v{PA+4}, {S_NTAG} bitop3:0x42
            v_and_b32 v{VXC}, 1, v{VXC}
            v_cmp_eq_u32 vcc, 0, v{VXC}
            """)
        def shadowA():
            a(f'v_smfmac_f32_16x16x64_bf16 {vr(R,4)}, {vr(SELR,4)}, {vr(PA,8)}, v{V_IDX} abid:1')
        if True:
            pl = [(M + 24, 'q', 0, 0), (M + 16, 'q', 0, 1), (B0, 'q', 1, 0), (B1, 'q', 1, 1), (T, 'k', 0, 0)]
            chA = [(40, pack_kvm)]
            chA += sa(f"""
            s_add_u32 {S_S}, {S_S}, 1
            s_xor_b32 {S_IN0}, {S_IN0}, 0x40000
            s_and_b32 {S_T0}, {S_S}, 3
            s_lshl_b32 {S_T0}, {S_T0}, 13
            s_andn2_b32 {S_PUBB}, {S_PUBB}, 0x6000
            s_andn2_b32 {S_MEMP}, {S_MEMP}, 0x6000
            s_or_b32 {S_MEMP}, {S_MEMP}, {S_T0}
            s_xor_b32 {S_RST}, {S_T0}, 0x4000
            s_or_b32 {S_RST}, {S_RST}, {S_PUBB}
            s_or_b32 {S_PUBB}, {S_PUBB}, {S_T0}
            """)
            zz = [f'v_mov_b64 {vr(r,2)}, 0' for r in range(AQ, AQ + 24, 2)] + [f'v_mov_b32 v{M}, -1']
            for k in range(10):
                chA.append((16, lambda k=k: (RD(*pl[k // 2], k % 2), a(zz[k]))))
            chA += va(zz[10:])
            chA.append((4, lambda: a.wait(lgkm=0)))
            zr = lambda: a(f'v_mov_b64 {vr(R,2)}, 0\nv_mov_b64 {vr(R+2,2)}, 0')
            chA.append((16, zr))
            self.poll2('A' + tg, PA, S_INP, chA, o.get('tA0', 260), o.get('tA1', 180), o.get('tA2', 100), lambda: dmf(VXC + 4), checkA, shadowA, retry=zr)
        self.stamp(8)
        hp = ''
        a(f"""
        {'s_nop 1' + chr(10) + a.dummy + chr(10) + 's_nop 0' if hp else ''}
        v_add_f32_dpp v{R}, v{R}, v{R} row_ror:8 row_mask:0xf bank_mask:0x3 {hp}
        v_add_f32_dpp v{R+1}, v{R+1}, v{R+1} row_ror:8 row_mask:0xf bank_mask:0x3 {hp}
        v_add_f32_dpp v{R}, v{R+2}, v{R+2} row_ror:8 row_mask:0xf bank_mask:0xc {hp}
        v_add_f32_dpp v{R+1}, v{R+3}, v{R+3} row_ror:8 row_mask:0xf bank_mask:0xc {hp}
        v_add_f32_dpp v{R}, v{R}, v{R} row_ror:12 row_mask:0xf bank_mask:0xf
        v_add_f32_dpp v{R+1}, v{R+1}, v{R+1} row_ror:12 row_mask:0xf bank_mask:0xf
        {cvt} v{R+2}, v{R}, v{R+1}
        buffer_store_dword v{R+2}, v{V_PUB}, {WS}, {S_PUBB} offen {cf}
        """)
        self.stamp(9)
        a(f'buffer_store_dword v{M}, v{V_PUB}, {WS}, {S_RST} offen {cf}')
        if o.get('span2') and wv == 0:
            lab = a.newlabel('n8')
            a(f's_cmp_lg_u32 {S_S}, 8\ns_cbranch_scc1 {lab}')
            self.note(5, T + 10)
            a(f'{lab}:')
        if not o.get('rt'): self.dump_stamps(tg)
        a(f's_branch L_Rloop_{tg}')
        a.hot = False
        a(f'{spin}:')
        self.spin_flag(V_FLAG, f'v{V_Z}', S_FKV)
        a(f's_branch {back}')
        for txt, sh in zip(self.late, self.late_sh):
            pre, post = txt.split('@SH@')
            a(pre); a('s_nop 7'); sh(); a('s_nop 7'); a(post)
        for f in self.fixups: f()
        a(f'L_Rtail_{tg}:')
        a.forget()
        self.pack_kvm()
        a(f'''
        buffer_store_dwordx4 {vr(KMH,4)}, v{V_L16}, {WS}, {S_KVM} offen sc1
        s_waitcnt vmcnt(0) lgkmcnt(0)
        buffer_store_dword v{V_F}, v{V_ONE}, {WS}, {S_FM} offen sc1
        buffer_store_dword v{V_F}, v{V_ONE}, {WS}, {S_FM} offen offset:2048 sc1
        ''')
        self.tstamp(6, T + 4)
        self.note(6, T + 4)
        if o.get('stamp'):
            set_srd(a, 12, P_DBG, 256)
            a(f'''
            s_memtime s[82:83]
            s_memrealtime s[84:85]
            s_waitcnt lgkmcnt(0)
            s_sub_u32 s82, s82, s80
            s_sub_u32 s84, s84, s30
            s_sub_u32 s28, s28, s30
            v_mov_b32 v{T}, s82
            v_mov_b32 v{T+1}, {S_FAST}
            v_mov_b32 v{T+2}, s28
            v_mov_b32 v{T+3}, s84
            v_mov_b32 v{T+4}, 16
            buffer_store_dwordx4 {vr(T,4)}, v{T+4}, {ST}, 0 offen
            ''')
        a('s_endpgm')
        a.auto_vm = True
```

```python
import layout as L
from gen_common import *

V_L16, V_IST, V_PUB, V_X0, V_F, V_SMW, V_OW, V_WV = 1, 2, 3, 4, 8, 9, 10, 11
KMH, VMH = 12, 16
V_IDX, V_WV2 = 18, 19
SELR, SELV, V_ONE, V_OR, SELQ, SELK = 20, 24, 26, 27, 28, 128
V_Z = 29
VXC, VXN, KX = 32, 40, 48
WVB = 56
AQ, AK, AV = 72, 80, 88
M = 96
T = 132
WO0 = 144
V_FLAG = 0
SC = 128 ** -0.5 * 1.4426950408889634
import struct
def f2u(x): return struct.unpack('<I', struct.pack('<f', x))[0]

WO_SPILL = [(0, 0), (1, 0)]
def wo_frag(t, kb):
    order = [(t_, k_) for t_ in range(4) for k_ in range(4) if (t_, k_) not in WO_SPILL]
    return WO0 + 8 * order.index((t, kb))

LDSF = [('q', 0, 0), ('q', 0, 1), ('q', 1, 0), ('q', 1, 1), ('k', 0, 0)] + [('k', k, 1) for k in range(2, 8)] + [('k', 7, 0)] + [('v', k, p) for k in (6, 7) for p in range(2)]
AGF = [(m, k, p) for m in 'qkv' for k in range(8) for p in range(2) if (m, k, p) not in LDSF]
assert len(LDSF) == 16 and len(AGF) == 32
S_S = 's61'
S_MEMP = 's62'
S_PUBB = 's63'
S_IN0, S_IN1 = 's64', 's65'
S_INP = 's66'
S_REC = 's67'
S_FKV = 's68'
S_KVM, S_FM = 's69', 's70'
S_RST = 's71'
S_LO = 's[72:73]'
S_SC = 's74'
S_T0, S_T1 = 's75', 's76'
S_FAST = 's77'
S_TAG, S_NTAG = 's78', 's79'
S_OTAG, S_NOTAG = 's24', 's25'

class RRole:
    def smf(self, acc, A, B):
        self.a(f'v_smfmac_f32_16x16x64_bf16 {vr(acc,4)}, {vr(A,4)}, {B}, v{V_IDX}')

    def r_role(self):
        a = self.a; o = self.o
        a('L_R:')
        a.vq = list(self.vq_role)
        self.mark(0)
        self.note(2, 40)
        VD8, VD1, VTQ, VTO, VTA = 28, 29, 30, 31, 7
        a(f"""
        v_and_b32 v1, 63, v0
        v_lshrrev_b32 v2, 4, v1
        v_and_b32 v3, 15, v1
        v_lshlrev_b32 v4, 4, v3
        v_lshl_add_u32 v{VD8}, v2, 17, v4
        v_and_b32 v4, 0x70, v4
        v_lshrrev_b32 v3, 3, v3
        v_lshl_add_u32 v4, v3, 9, v4
        v_lshl_add_u32 v{VD1}, v2, 14, v4
        s_lshl_b32 s21, {S_W}, 7
        v_add_u32 v{VD1}, s21, v{VD1}
        s_mul_i32 s78, {S_W}, {L.BLK}
        """)
        groups = [(m, b) for m in 'oqkv' for b in range(2)]
        def issue(gi):
            mat, b = groups[gi]
            if b == 0: set_srd(a, 8, {'q': P_WQ, 'k': P_WK, 'v': P_WV, 'o': P_WO}[mat], 4 << 20)
            a(f's_add_u32 m0, s78, {(gi % 2) * L.GRP}')
            if mat != 'o':
                a(f's_add_u32 s21, {S_W}, {4 * b}\ns_lshl_b32 s21, s21, 19\ns_lshl_b32 s22, {S_RANK}, 8\ns_add_u32 s21, s21, s22')
                self.dma_block(f'v{VD8}', 's21', 8192)
            else:
                a(f's_lshl_b32 s21, {S_RANK}, 17\ns_add_u32 s21, s21, {b * 65536}')
                self.dma_block(f'v{VD1}', 's21', 1024)
        issue(0)
        self.load_table('T_R', 96, 28, 7)
        self.confirm_role()
        issue(1)
        self.mark(1)
        self.gate_and_store()
        names = list(L.r_table().keys())
        def tv(n): return 96 + names.index(n)
        a(f'v_mov_b32 v{VTQ}, v{tv("trq")}\nv_mov_b32 v{VTO}, v{tv("tro")}\nv_add_u32 v6, 65536, v{tv("wv")}')
        if o.get('code'):
            pc = a.newlabel('pc')
            a(f's_getpc_b64 s[12:13]\n{pc}:\ns_add_u32 s12, s12, L_R_ready-{pc}\ns_addc_u32 s13, s13, 0\ns_mov_b32 s14, L_R_slow-L_R_ready\ns_mov_b32 s15, 0x20000')
            a(f'v_lshlrev_b32 v1, 7, v0\nbuffer_load_dword v27, v1, {ST}, 0 offen')
        else:
            a(f'buffer_load_dword v27, v{tv("one")}, {WS}, 0 offen')
        a(f'buffer_load_dword v26, v{tv("mm")}, {WS}, 0 offen')
        a.auto_vm = False
        TMP = 56
        park = {}
        parkregs = [32, 64, 72, 80, 88, 124, 132, 8]
        for f in LDSF:
            if f[0] == 'k': park[f] = parkregs.pop(0)
            if f[0] == 'q': park[f] = -8 * AGF.index(('v', 3 + 2 * f[1], f[2])) - 1
        S_RDY = 's76'
        def scalars():
            if o.get('pa2', 0):
                dec = f's_lshr_b32 s84, {S_RANK}, 3\ns_lshl_b32 s84, s84, 1\ns_lshr_b32 s21, {S_W}, 1\ns_add_u32 s84, s84, s21\n' \
                      f's_lshr_b32 s85, {S_RANK}, 1\ns_and_b32 s85, s85, 3\n' \
                      f's_and_b32 s86, {S_RANK}, 1\ns_lshl_b32 s86, s86, 1\ns_and_b32 s21, {S_W}, 1\ns_add_u32 s86, s86, s21'
            else:
                dec = f's_lshr_b32 s84, {S_RANK}, 2\ns_and_b32 s85, {S_RANK}, 3\ns_mov_b32 s86, {S_W}'
            a(f'''
            {dec}
            s_lshl_b32 {S_INP}, s84, 2
            s_add_u32 {S_INP}, {S_INP}, s85
            s_lshl_b32 {S_INP}, {S_INP}, 2
            s_add_u32 {S_INP}, {S_INP}, s86
            s_lshl_b32 {S_INP}, {S_INP}, 11
            s_add_u32 {S_INP}, {S_INP}, {hex(L.RIN)}
            s_lshl_b32 {S_PUBB}, s84, 10
            s_and_b32 s22, s85, 2
            s_lshl_b32 s22, s22, 7
            s_add_u32 {S_PUBB}, {S_PUBB}, s22
            s_and_b32 s22, s85, 1
            s_lshl_b32 s22, s22, 5
            s_add_u32 {S_PUBB}, {S_PUBB}, s22
            s_lshl_b32 s22, s86, 6
            s_add_u32 {S_PUBB}, {S_PUBB}, s22
            s_add_u32 {S_PUBB}, {S_PUBB}, {hex(L.RMEM)}
            s_and_b32 s22, s84, 1
            s_lshl_b32 s22, s22, 9
            s_lshr_b32 s21, s84, 1
            s_lshl_b32 s21, s21, 7
            s_add_u32 s21, s21, s22
            s_lshl_b32 s22, s85, 3
            s_add_u32 s21, s21, s22
            s_lshl_b32 s22, s86, 11
            s_add_u32 s75, s21, s22
            s_mul_i32 {S_REC}, {S_RANK}, 24576
            s_mul_i32 s21, {S_W}, 6144
            s_add_u32 {S_REC}, {S_REC}, s21
            s_lshl_b32 {S_FKV}, {S_RANK}, 6
            s_lshl_b32 s21, {S_W}, 2
            s_add_u32 {S_FKV}, {S_FKV}, s21
            s_add_u32 {S_FM}, {S_FKV}, {hex(L.F_M - 4096)}
            s_add_u32 {S_FKV}, {S_FKV}, {hex(L.F_KV)}
            s_lshl_b32 {S_KVM}, {S_RANK}, 12
            s_lshl_b32 s21, {S_W}, 10
            s_add_u32 {S_KVM}, {S_KVM}, s21
            s_add_u32 {S_KVM}, {S_KVM}, {hex(L.KVM - 131072)}
            s_lshl_b32 s21, {S_W}, 11
            s_add_u32 {S_MEMP}, s21, {hex(L.RMEM)}
            s_lshl_b32 {S_IN0}, {S_RANK}, 6
            s_add_u32 {S_IN0}, {S_IN0}, {hex(L.RIN)}
            s_mov_b32 s72, 0x33333333
            s_mov_b32 s73, 0x33333333
            s_mov_b32 {S_SC}, {hex(f2u(SC))}
            s_mov_b32 {S_S}, 0
            ''')
        def first_records(l16):
            for i in range(2):
                a(f'buffer_load_dwordx4 {vr(KX+4*i,4)}, v{l16}, {WS}, {S_REC} offen offset:{1024*i} sc1')
                a(f'buffer_load_dwordx4 {vr(VXN+4*i,4)}, v{l16}, {WS}, {S_REC} offen offset:{2048+1024*i} sc1')
        def stage_w():
            set_srd(a, 12, P_DBG, 256)
            a(f"""
            v_and_b32 v2, 1, v0
            v_lshlrev_b32 v5, 3, v2
            v_lshlrev_b32 v2, 11, v2
            buffer_load_dword v3, v5, {ST}, 0 offen sc1
            """)
        def stage_t():
            a(f"""
            v_readlane_b32 s21, v3, 0
            v_readlane_b32 s22, v3, 1
            v_mov_b64 v[24:25], -1
            v_mov_b64 v[26:27], -1
            s_bcnt1_i32_b32 s21, s21
            s_add_u32 s21, s21, s22
            s_cmp_ge_u32 s21, 32
            s_cselect_b32 s21, {S_INP}, {hex(L.OOB)}
            s_cselect_b32 s22, {S_PUBB}, {hex(L.OOB)}
            """)
            for sl in range(2):
                for i in range(2): a(f'buffer_store_dwordx4 v[24:27], v{tv("l16")}, {WS}, s21 offen offset:{1024*i}')
                a('s_add_u32 s21, s21, 0x40000')
            for sl in range(4):
                a(f'buffer_store_dword v24, v{tv("pub")}, {WS}, s22 offen\ns_add_u32 s22, s22, 0x2000')
        def stage_x():
            a(f'buffer_load_dword v4, v2, {WS}, {S_FKV} offen sc1')
        def stage_y():
            a(f"""
            v_lshl_or_b32 v140, v141, 16, v140
            v_readlane_b32 s21, v3, 0
            v_readlane_b32 s22, v3, 1
            v_cmp_eq_u32 vcc, 0, v4
            s_mov_b32 {S_RDY}, 0
            s_bcnt1_i32_b32 s21, s21
            s_add_u32 s21, s21, s22
            s_mov_b32 {S_FAST}, 1
            s_cbranch_vccnz L_R_notyet
            s_cmp_lt_u32 s21, 32
            s_cbranch_scc1 L_R_notyet
            s_mov_b32 {S_RDY}, 1
            """)
            if not o.get('touchx', 1): a(f'buffer_store_dword v140, v{tv("pub")}, {WS}, {S_PUBB} offen sc1')
            first_records(tv('l16'))
            a('L_R_notyet:')
        scalars()
        set_srd(a, 24, P_MEM0, 8192)
        a(f'buffer_load_ushort v140, v{tv("m0a")}, s[24:27], s75 offen\nbuffer_load_ushort v141, v{tv("m0a")}, s[24:27], s75 offen offset:32')
        todo = []
        self.ldsf_off = {}
        def flush(n):
            for _ in range(n):
                f, r = todo.pop(0); off = 8192 * len(self.ldsf_off)
                self.ldsf_off[f] = off
                for hh in range(2):
                    src = vr(r + 4 * hh, 4) if r >= 0 else ar(-r - 1 + 4 * hh, 4)
                    a(f'ds_write_b128 v{tv("wv") if off < 65536 else 6}, {src} offset:{off % 65536 + 1024 * hh}')
                if r >= 0: parkregs.append(r)
        for gi in range(8):
            mat, b = groups[gi]
            if gi == 0: self.mark(2)
            a.wait(vm=[16 + 5, 5 + 16, 16, 16, 16, 16, 16, 0][gi] if o.get('xearly', 1) else [16 + 5, 5 + 16, 16, 16, 16, 16, 16 + 1, 1][gi])
            if gi == 6 and o.get('xearly', 1): stage_y()
            if gi == 7 and o.get('touchx', 1): stage_t()
            if gi == 7 and o.get('touchp', 0): a(f'buffer_load_dword v5, v{tv("mm")}, {WS}, 0 offen sc1')
            if gi in (0, 2, 4, 7): self.mark(3 + [0, 2, 4, 7].index(gi))
            a('s_barrier')
            hb = (gi % 2) * L.GRP
            for x in range(4):
                dsts = []
                if mat == 'o':
                    for p in range(2):
                        f = (x, 2 * b + p)
                        dsts.append((vr, (TMP if x == 0 else 40) if f in WO_SPILL else wo_frag(*f)))
                    offs = [0, 2112, 8448, 10560]; xo = 64 * x
                    if x == 0: a(f'v_add_u32 v{VTA}, {hb}, v{VTO}')
                else:
                    offs = [0, 1056, 512, 1568]; xo = 0
                    a(f's_xor_b32 s21, {S_W}, {x}\ns_mul_i32 s21, s21, {L.BLK}\ns_add_u32 s21, s21, {hb}\nv_add_u32 v{VTA}, s21, v{VTQ}')
                    for p in range(2):
                        f = (mat, 2 * x + b, p)
                        if f in AGF: dsts.append((ar, 8 * AGF.index(f)))
                        else:
                            if f not in park: park[f] = TMP if (f[1], f[2]) == (6, 0) else (16 if (f[1], f[2]) == (6, 1) else parkregs.pop(0))
                            if park[f] < 0: dsts.append((ar, -park[f] - 1)); todo.insert(0, (f, park[f]))
                            else: dsts.append((vr, park[f])); todo.append((f, park[f]))
                for p in range(2):
                    rf, d = dsts[p]
                    for r in range(4):
                        a(f'ds_read_b64_tr_b16 {rf(d + 2 * r, 2)}, v{VTA} offset:{xo + offs[r] + (512 if mat == "o" else 32) * p}')
            if gi == 7 and not o.get('xearly', 1):
                a.wait(vm=0); stage_y()
            a.wait(lgkm=0)
            if gi == 0:
                for i in range(2):
                    for hh in range(2):
                        a(f'ds_write_b128 v{tv("x0")}, {vr((TMP if i == 0 else 40) + 4 * hh, 4)} offset:{16384 + 8192 * i + 1024 * hh}')
            a('s_barrier')
            if gi == 1: stage_w()

            if gi == 5 and o.get('xearly', 1): stage_x()
            if gi + 2 < 8: issue(gi + 2)
            if gi == 5 and not o.get('xearly', 1): stage_x()
            if gi == 2: self.signal_init(barrier=False)
            if gi == 6: flush(8)
            if gi == 7: flush(8)
        assert not todo and len(self.ldsf_off) == 16
        a.wait(lgkm=0)
        a.auto_vm = True; a.forget()
        a(f'v_mov_b32 v{V_WV2}, v6')
        for n, d in [('l16', V_L16), ('ist', V_IST), ('pub', V_PUB), ('x0', V_X0), ('x1', V_X0 + 1), ('x2', V_X0 + 2), ('x3', V_X0 + 3),
                     ('f', V_F), ('smw', V_SMW), ('ow', V_OW), ('wv', V_WV), ('idx', V_IDX), ('one', V_ONE), ('or', V_OR)] + \
                    [(f'selr{i}', SELR + i) for i in range(4)] + [(f'selv{i}', SELV + i) for i in range(2)] + \
                    [('selq', SELQ), ('selq', SELQ + 3), ('selk', SELK), ('selk', SELK + 3)]:
            a(f'v_mov_b32 v{d}, v{tv(n)}')
        for d in (SELQ + 1, SELQ + 2, SELK + 1, SELK + 2): a(f'v_mov_b32 v{d}, 0')
        self.dump_marks(T + 4)
        self.tstamp(1, T + 4)
        self.note(3, T + 4)
        a(f's_cmp_eq_u32 {S_RDY}, 1\ns_cbranch_scc1 L_R_ready')
        self.wait_init(t0=T + 4)
        a(f's_cmp_ge_u32 s21, 32\ns_cselect_b32 {S_FAST}, 1, 0')
        if not o.get('touchx', 1): a(f'buffer_store_dword v140, v{V_PUB}, {WS}, {S_PUBB} offen sc1')
        self.spin_flag(V_FLAG, f'v{V_Z}', S_FKV)
        first_records(V_L16)
        a(f's_add_u32 s21, {S_FKV}, 2048')
        self.spin_flag(V_FLAG, f'v{V_Z}', 's21')
        a('L_R_ready:')
        a.wait(vm=0)
        a.forget()
        if o.get('force_slow'): a(f's_mov_b32 {S_FAST}, 0')
        if o.get('touchx', 1):
            a(f's_cmp_eq_u32 {S_FAST}, 0\ns_cselect_b32 s21, {hex(L.OOB)}, {S_PUBB}\ns_cselect_b32 s22, {S_PUBB}, {hex(L.OOB)}')
            a(f'buffer_store_dword v140, v{V_PUB}, {WS}, s21 offen\nbuffer_store_dword v140, v{V_PUB}, {WS}, s22 offen sc1')
        a(f's_add_u32 {S_FKV}, {S_FKV}, 2048\nv_mov_b32 v{V_FLAG}, 1')
        for r in range(M, M + 8, 2): a(f'v_mov_b64 {vr(r,2)}, -1')
        a(f's_lshl_b32 s21, {S_RANK}, 6\ns_add_u32 s21, s21, {hex(L.F_RS)}\ns_cmp_eq_u32 {S_W}, 0\ns_cselect_b32 s21, s21, {hex(L.OOB)}')
        a(f'buffer_store_dword v{V_F}, v{V_ONE}, {WS}, s21 offen sc1')
        self.tstamp(2, T + 4)
        self.tstamp(3, T + 4)
        self.note(4, T + 4)
        if o.get('stamp'):
            a('s_memtime s[80:81]\ns_memrealtime s[28:29]'); a.wait(lgkm=0)
        a('s_mov_b32 s26, 0x3f803f80\ns_mov_b32 s27, 0x3f803f80\ns_mov_b32 s8, 0x3f003f00\ns_mov_b32 s9, 0x3f003f00')
        a(f'ds_write_b64 v{V_OW}, {vr(M,2)}')
        a.wait(lgkm=0)
        a(f's_cmp_eq_u32 {S_FAST}, 0\ns_cbranch_scc1 L_R_slow')
        if o.get('nostag'):
            self.r_loop('f', '')
        else:
            for w in range(1, 4): a(f's_cmp_eq_u32 {S_W}, {w}\ns_cbranch_scc1 L_R_w{w}')
            for w in range(4):
                if w: a(f'L_R_w{w}:')
                self.r_loop('f' + (str(w) if w else ''), '', wv=w)
        a('L_R_slow:')
        self.r_loop('s', 'sc1')

    def spin_flag(self, dst, voff, soff):
        a = self.a
        lab = a.newlabel('sf'); ok = a.newlabel('sfok')
        sv = a.auto_vm; a.auto_vm = False
        a(f'''
        s_mov_b32 s23, {SPIN}
        {lab}:
        buffer_load_dword v{dst}, {voff}, {WS}, {soff} offen sc1
        s_waitcnt vmcnt(0)
        v_cmp_ne_u32 vcc, 0, v{dst}
        s_cbranch_vccnz {ok}
        s_sleep 2
        s_sub_u32 s23, s23, 1
        s_cbranch_scc0 {lab}
        s_mov_b32 {SPIN}, 0x400
        {ok}:
        ''')
        a.auto_vm = sv; a.vq = []

    def poll(self, tag, dst, voff, soff, pre, check, shadow, nchk, mid=None, nmid=0, blk=None):
        a = self.a
        lab = f'L_poll_{tag}'; ok = f'L_pok_{tag}'
        def issue():
            a(f'buffer_load_dwordx4 {vr(dst,4)}, v{voff}, {WS}, {soff} offen {self.pf}')
            a(f'buffer_load_dwordx4 {vr(dst+4,4)}, v{voff}, {WS}, {soff} offen offset:1024 {self.pf}')
        pre()
        if blk:
            gap, cover, fill = blk
            issue()
            if mid: mid()
            for i in range(gap): fill()
            a(f's_mov_b32 s23, {SPIN}')
            issue()
            for i in range(cover): fill()
            a(f's_branch L_pw_{tag}\n{lab}:')
            a(f's_sub_u32 s23, s23, 1\ns_cbranch_scc1 L_pto_{tag}')
            issue()
            a(f'L_pw_{tag}:\ns_waitcnt vmcnt(2)')
            check(); shadow()
            a(f's_cbranch_vccnz {lab}\n{ok}:')
            self.late.append(f'L_pto_{tag}:\ns_mov_b32 {SPIN}, 0x400\ns_waitcnt vmcnt(0)\n@SH@s_branch {ok}')
            self.late_sh.append(shadow)
            return
        if mid:
            issue(); mid()
            for r in range(nmid):
                check(); shadow()
                a(f's_cbranch_vccz {ok}')
        a(f's_mov_b32 s23, {SPIN}')
        a(f'{lab}:')
        issue()
        for r in range(nchk - 1):
            check(); shadow()
            a(f's_cbranch_vccz {ok}')
        a(f's_sub_u32 s23, s23, 1\ns_cbranch_scc1 L_pto_{tag}')
        check(); shadow()
        a(f's_cbranch_vccnz {lab}\n{ok}:')
        self.late.append(f'L_pto_{tag}:\ns_mov_b32 {SPIN}, 0x400\ns_waitcnt vmcnt(0)\n@SH@s_branch {ok}')
        self.late_sh.append(shadow)

    def poll2(self, tag, dst, soff, chores, t0, t1, t2, fill, check, shadow, retry=None):
        a = self.a
        lab = f'L_poll_{tag}'; ok = f'L_pok_{tag}'
        def issue():
            a(f'buffer_load_dwordx4 {vr(dst,4)}, v{V_L16}, {WS}, {soff} offen {self.pf}')
            a(f'buffer_load_dwordx4 {vr(dst+4,4)}, v{V_L16}, {WS}, {soff} offen offset:1024 {self.pf}')
        def spend(t, flush=False):
            while chores and (flush or chores[0][0] <= t + 4):
                c, f = chores.pop(0); f(); t -= c
            while t >= 12: fill(); t -= 16
        spend(t0); issue()
        spend(t1 - 40); issue()
        spend(t2 - 40, flush=True)
        a(f's_mov_b32 s23, {SPIN}\ns_branch L_pw_{tag}\n{lab}:')
        a(f's_sub_u32 s23, s23, 1\ns_cbranch_scc1 L_pto_{tag}')
        issue()
        if retry: retry()
        a(f'L_pw_{tag}:\ns_waitcnt vmcnt(2)')
        check(); shadow()
        a(f's_cbranch_vccnz {lab}\n{ok}:')
        self.late.append(f'L_pto_{tag}:\ns_mov_b32 {SPIN}, 0x400\ns_waitcnt vmcnt(0)\n@SH@s_branch {ok}')
        self.late_sh.append((lambda: (retry(), shadow())) if retry else shadow)

    def stamp(self, i):
        if self.o.get('stamp') and (self.o.get('smask', 0x3ff) >> i) & 1: self.a.raw(f'    {"s_memrealtime" if self.o.get("rt") else "s_memtime"} s[{82+2*i}:{83+2*i}]')

    def dump_stamps(self, tg):
        a = self.a
        if not self.o.get('stamp'): return
        lab = f'L_nodump_{tg}'
        a(f's_cmp_lg_u32 {S_S}, {self.o.get("dstep", 41)}\ns_cbranch_scc1 {lab}\ns_waitcnt lgkmcnt(0)')
        a(f's_lshl_b32 s21, {S_RANK}, 8\ns_lshl_b32 s22, {S_W}, 6\ns_add_u32 s21, s21, s22\ns_add_u32 s21, s21, {hex(L.DBG)}')
        a(f'v_mov_b32 v{T+10}, 0')
        for i in range(10):
            a(f'v_mov_b32 v{T+11}, s{82+2*i}\nbuffer_store_dword v{T+11}, v{T+10}, {WS}, s21 offen offset:{4*i}')
        a(f's_waitcnt vmcnt(0)\n{lab}:')

    def r_loop(self, tg, cf, wv=0):
        a = self.a; o = self.o
        mf16 = 'v_mfma_f32_16x16x16_bf16'; mf32 = 'v_mfma_f32_16x16x32_bf16'
        cvt = 'v_cvt_pk_bf16_f32'
        QP = 'quad_perm:[2,3,0,1] row_mask:0xf bank_mask:0xf'
        dum = lambda n=1: [a(a.dummy) for _ in range(n)]
        self.late = []; self.late_sh = []; self.fixups = []
        self.pf = 'nt' if (not cf and o.get('pollnt')) else 'sc1'
        a.auto_vm = False
        B0, B1, B2 = WVB, WVB + 8, M
        ACC = {'q': AQ, 'k': AK, 'v': AV}
        def S(m, k, p, buf=None):
            f = (m, k, p)
            self.smf(ACC[m] + 4 * p, M + 4 * k, ar(8 * AGF.index(f), 8) if buf is None else vr(buf, 8))
        def V(k, p, buf=None): S('v', k, p, buf)
        def RD(buf, m, k, p, hh):
            off = self.ldsf_off[(m, k, p)]
            a(f'ds_read_b128 {vr(buf + 4*hh, 4)}, v{V_WV if off < 65536 else V_WV2} offset:{off % 65536 + hh*1024}')
        def RD2(buf, m, k, p): RD(buf, m, k, p, 0); RD(buf, m, k, p, 1)
        def pkadd(d, x, y): a(f'v_add_f32 v{d}, v{x}, v{y}\nv_add_f32 v{d+1}, v{x+1}, v{y+1}')
        def PK(d, x, y): a(f'v_pk_add_f32 {vr(d,2)}, {vr(x,2)}, {vr(y,2)}')
        def add(d, x, y): a(f'v_add_f32 v{d}, v{x}, v{y}')
        def dmf(r):
            m = o.get('fillm', 2)
            if m == 1 or (m == 2 and r == M + 8): a('s_nop 3')
            elif m == 3: a(f's_nop 2\n{a.dummy}')
            elif m == 4: a(f'{mf16} {vr(r,4)}, s[26:27], s[26:27], 0' if False else f'{mf16} {vr(r,4)}, {vr(SELQ+2,2)}, {vr(SELQ,2)}, 0')
            else: a(f'{mf16} {vr(r,4)}, {vr(SELQ,2)}, {vr(SELQ,2)}, {vr(r,4)}')
        def filt(line):
            st = 'buffer_store' in line and ('s75' in line or 's76' in line) and 'sc1' in line
            ld = 'buffer_load' in line and ('s67' in line or 's68' in line)
            if o.get('nost') and st: return None
            if o.get('nofst') and st and 's76' in line: return None
            if o.get('nold') and ld: return None
            if o.get('nofld') and ld and 's68' in line: return None
            if o.get('ldplain') and ld and 's67' in line: return line.replace(' sc1', '')
            if o.get('ldnt') and ld and 's67' in line: return line.replace(' sc1', ' nt')
            if o.get('stplain') and st: return line.replace(' sc1', '')
            if o.get('novm') and 'vmcnt' in line: return None
            if o.get('nowarm') and 'buffer_load_dword v27' in line: return 's_nop 0'
            if o.get('novmh') and 'buffer_store_dwordx2' in line: return None
            return line
        PA = M + 8; R = T + 8
        spin = f'L_kvspin_{tg}'; back = f'L_kvback_{tg}'
        def preload():
            RD2(M + 24, 'q', 0, 0); RD2(M + 16, 'q', 0, 1); RD2(B0, 'q', 1, 0); RD2(B1, 'q', 1, 1); RD2(T, 'k', 0, 0)
        def slackB():
            a(f'v_cmp_eq_u32 vcc, 0, v{V_FLAG}')
            for r in range(0, 8, 2): a(f'v_mov_b64 {vr(VXC+r,2)}, {vr(VXN+r,2)}')
            a(f's_xor_b32 {S_INP}, {S_INP}, 0x40000')
            a(f's_cbranch_vccnz {spin}\n{back}:')
            a(f"""
            s_cmp_lt_u32 {S_S}, 63
            s_cselect_b32 {S_T0}, {0 if o.get("nopf") else 32*24576}, 0
            s_add_u32 {S_REC}, {S_REC}, {S_T0}
            s_cmp_lt_u32 {S_S}, 62
            s_cselect_b32 {S_T0}, 2048, 0
            s_add_u32 {S_FKV}, {S_FKV}, {S_T0}
            s_cmp_ge_u32 {S_S}, 2
            s_cselect_b32 {S_T1}, {S_FM}, {hex(L.OOB)}
            s_cmp_ge_u32 {S_S}, 1
            s_cselect_b32 {S_T0}, {S_KVM}, {hex(L.OOB)}
            s_add_u32 {S_FM}, {S_FM}, 2048
            s_cmp_eq_u32 {S_S}, 62
            s_cselect_b32 {S_TAG}, {hex((L.KVL - L.KVM - 62 * 131072) & 0xFFFFFFFF) if o.get('dpoll', 1) else 0}, 0
            s_add_u32 {S_KVM}, {S_KVM}, {S_TAG}
            s_add_u32 {S_KVM}, {S_KVM}, 131072
            s_lshr_b32 {S_TAG}, {S_S}, 1
            s_and_b32 {S_TAG}, {S_TAG}, 1
            s_sub_u32 {S_NTAG}, {S_TAG}, 1
            s_add_u32 {S_IN1}, {S_IN0}, 32768
            s_and_b32 {S_OTAG}, {S_S}, 1
            s_sub_u32 {S_NOTAG}, {S_OTAG}, 1
            """)
            if o.get('steplog') and wv == 0 and tg != 's':
                a(f's_memrealtime s[82:83]\ns_lshl_b32 s84, {S_S}, 2\ns_lshl_b32 s85, {S_RANK}, 8\ns_add_u32 s84, s84, s85\ns_add_u32 s84, s84, {hex(L.DBG + 131072)}')
                a(f's_waitcnt lgkmcnt(0)\nv_mov_b32 v{T+10}, s82\nbuffer_store_dword v{T+10}, v{V_ONE}, {WS}, s84 offen')
            if o.get('zB'):
                for r in range(AQ, AQ + 24, 2): a(f'v_mov_b64 {vr(r,2)}, 0')
            if o.get('barB'): dmf(PA); a('s_barrier')
            for i in range(o.get('dB', 8) if wv >= 2 else o.get('dB0', o.get('dB', 8))): dmf(PA + 4 * (i % 2))
        def checkB():
            if not o.get('shortchk'):
                a(f"""
                v_max3_u32 v{R}, v{M}, v{M+1}, v{M+2}
                v_max3_u32 v{R+1}, v{M+3}, v{M+4}, v{M+5}
                v_max3_u32 v{R}, v{R}, v{M+6}, v{M+7}
                v_max_u32 v{R}, v{R}, v{R+1}
                """)
            else:
                a(f'v_max_u32 v{R}, v{M}, v{M+7}')
            a(f'v_cmp_eq_u32 vcc, -1, v{R}')
        def shadowB():
            if o.get('specw', 1): a(f'ds_write_b128 v{V_X0}, {vr(M,4)}')
            else: dmf(PA); a('s_nop 2')
        preload()
        for r in range(AQ, AQ + 24, 2): a(f'v_mov_b64 {vr(r,2)}, 0')
        a(f's_xor_b32 {S_INP}, {S_INP}, 0x40000')
        a.wait(lgkm=0)
        a(f'L_Rloop_{tg}:')
        a.forget()
        a.hot = True
        a.filt = filt
        sa = lambda txt: [(4, lambda l=l: a(l)) for l in txt.strip().split('\n')]
        va = lambda lines: [(8, lambda l=l: a(l)) for l in lines]
        if True:
            chB = [(44, lambda: a(f'v_cmp_eq_u32 vcc, 0, v{V_FLAG}\ns_cbranch_vccnz {spin}\n{back}:'))]
            chB += va([f'v_mov_b64 {vr(VXC+r,2)}, {vr(VXN+r,2)}' for r in range(0, 8, 2)])
            chB += sa(f"""
            s_xor_b32 {S_INP}, {S_INP}, 0x40000
            s_cmp_lt_u32 {S_S}, 63
            s_cselect_b32 {S_T0}, {0 if o.get("nopf") else 32*24576}, 0
            s_add_u32 {S_REC}, {S_REC}, {S_T0}
            s_cmp_lt_u32 {S_S}, 62
            s_cselect_b32 {S_T0}, 2048, 0
            s_add_u32 {S_FKV}, {S_FKV}, {S_T0}
            s_cmp_ge_u32 {S_S}, 2
            s_cselect_b32 {S_T1}, {S_FM}, {hex(L.OOB)}
            s_cmp_ge_u32 {S_S}, 1
            s_cselect_b32 {S_T0}, {S_KVM}, {hex(L.OOB)}
            s_add_u32 {S_FM}, {S_FM}, 2048
            s_cmp_eq_u32 {S_S}, 62
            s_cselect_b32 {S_TAG}, {hex((L.KVL - L.KVM - 62 * 131072) & 0xFFFFFFFF) if o.get('dpoll', 1) else 0}, 0
            s_add_u32 {S_KVM}, {S_KVM}, {S_TAG}
            s_add_u32 {S_KVM}, {S_KVM}, 131072
            s_lshr_b32 {S_TAG}, {S_S}, 1
            s_and_b32 {S_TAG}, {S_TAG}, 1
            s_sub_u32 {S_NTAG}, {S_TAG}, 1
            s_add_u32 {S_IN1}, {S_IN0}, 32768
            s_and_b32 {S_OTAG}, {S_S}, 1
            s_sub_u32 {S_NOTAG}, {S_OTAG}, 1
            """)
            if o.get('steplog') and wv == 0 and tg != 's':
                chB.insert(0, (70, lambda: (a(f's_memrealtime s[82:83]\ns_lshl_b32 s84, {S_S}, 2\ns_lshl_b32 s85, {S_RANK}, 8\ns_add_u32 s84, s84, s85\ns_add_u32 s84, s84, {hex(L.DBG + 131072)}'),
                    a(f's_waitcnt lgkmcnt(0)\nv_mov_b32 v{R}, s82\nbuffer_store_dword v{R}, v{V_ONE}, {WS}, s84 offen'))))
            if not o.get('split', 1):
                self.poll2('B' + tg, M, S_MEMP, chB, o.get('tB0', 200), o.get('tB1', 180), o.get('tB2', 100), lambda: dmf(PA), checkB, shadowB)
            else:
                ld = lambda i: a(f'buffer_load_dwordx4 {vr(M+4*i,4)}, v{V_L16}, {WS}, {S_MEMP} offen offset:{1024*i} {self.pf}')
                def spend(t, flush=False):
                    while chB and (flush or chB[0][0] <= t + 4):
                        c, f = chB.pop(0); f(); t -= c
                    while t >= 12: dmf(PA); t -= 16
                def chk(i):
                    a(f'v_max3_u32 v{R}, v{M+4*i}, v{M+4*i+1}, v{M+4*i+2}\nv_max_u32 v{R}, v{R}, v{M+4*i+3}\nv_cmp_eq_u32 vcc, -1, v{R}')
                g = o.get('tBg', 32)
                spend(o.get('tB0', 170)); ld(0); spend(g); ld(1)
                spend(o.get('tB1', 180) - 40 - g); ld(0); spend(g); ld(1)
                spend(o.get('tB2', 100) - 40 - g, flush=True)
                a(f's_mov_b32 s23, {SPIN}\nL_pw_B{tg}:\ns_waitcnt vmcnt(3)')
                chk(0)
                a(f'ds_write_b128 v{V_X0}, {vr(M,4)}')
                S('q', 0, 0, M + 24)
                a(f's_cbranch_vccnz L_poll_B{tg}\nL_pok_B{tg}:')
                def fixB():
                    a(f'L_poll_B{tg}:\ns_sub_u32 s23, s23, 1\ns_cbranch_scc1 L_pto_B{tg}')
                    ld(0); ld(1)
                    a(f'v_mov_b64 {vr(AQ,2)}, 0\nv_mov_b64 {vr(AQ+2,2)}, 0\ns_branch L_pw_B{tg}')
                    a(f'L_pto_B{tg}:\ns_mov_b32 {SPIN}, 0x400\ns_branch L_pok_B{tg}')
                    a(f'L_pol1_B{tg}:\ns_waitcnt vmcnt(0)')
                    chk(1)
                    a(f's_cbranch_vccz L_pk1_B{tg}\ns_sub_u32 s23, s23, 1\ns_cbranch_scc1 L_pt1_B{tg}')
                    ld(1)
                    a(f's_branch L_pol1_B{tg}\nL_pt1_B{tg}:\ns_mov_b32 {SPIN}, 0x400\ns_branch L_pk1_B{tg}')
                self.fixups.append(fixB)
        if o.get('rt'): a('s_mov_b32 s84, s82')
        self.stamp(0)
        if o.get('rt'): self.dump_stamps(tg)
        wp = o.get('wpat', 5)
        ws = {0: (0, 1), 1: (1 + wv, 5 + wv), 2: (1 + 2 * (wv % 2), 2 + 2 * (wv % 2)), 3: (1 + wv % 2, 3 + wv % 2), 4: (1 + wv // 2, 3 + wv // 2),
              5: (1, 2), 6: (wv, 4 + wv), 7: (wv % 2, 2 + wv % 2), 8: (wv // 2, 2 + wv // 2)}[wp]
        wslot = [0]
        def MW():
            for i in range(2):
                if ws[i] == wslot[0] and not (i == 0 and o.get('specw', 1)): a(f'ds_write_b128 v{V_X0}, {vr(M+4*i,4)} offset:{1024*i}')
            wslot[0] += 1
        if not o.get('split', 1):
            MW()
            S('q', 0, 0, M + 24); MW()
            S('q', 0, 1, M + 16); MW()
            S('q', 1, 0, B0); MW()
            S('q', 1, 1, B1); MW()
            S('k', 0, 0, T); MW()
            S('k', 0, 1); MW()
            S('k', 1, 0); MW()
            S('k', 1, 1); MW()
        else:
            S('q', 0, 1, M + 16)
            a('s_waitcnt vmcnt(2)')
            a(f'v_max3_u32 v{R}, v{M+4}, v{M+5}, v{M+6}')
            S('k', 0, 0, T); a(f'v_max_u32 v{R}, v{R}, v{M+7}')
            S('k', 0, 1); a(f'v_cmp_eq_u32 vcc, -1, v{R}')
            V(0, 0)
            a(f's_cbranch_vccnz L_pol1_B{tg}\nL_pk1_B{tg}:')
            a(f'ds_write_b128 v{V_X0}, {vr(M+4,4)} offset:1024')
            S('q', 1, 0, B0); S('q', 1, 1, B1); S('k', 1, 0); S('k', 1, 1)
        a.wait_lds_writes()
        a('s_barrier')
        def MR(k): a(f'ds_read_b128 {vr(M+4*k,4)}, v{V_X0 + k//2} offset:{1024*(k%2)}')
        MR(2); MR(3)
        if not o.get('split', 1): V(0, 0)
        MR(4)
        V(0, 1); MR(5)
        V(1, 0); MR(6)
        V(1, 1); MR(7)
        VXL = lambda i: a(f'buffer_load_dwordx4 {vr(VXN+4*i,4)}, v{V_L16}, {WS}, {S_REC} offen offset:{2048+1024*i} sc1')
        self.stamp(1)
        vm_ops = [
            lambda: a(f'buffer_store_dwordx4 {vr(KMH,4)}, v{V_L16}, {WS}, {S_T0} offen sc1'),
            lambda: VXL(0),
            lambda: VXL(1),
            lambda: (a(f'buffer_store_dword v{V_F}, v{V_ONE}, {WS}, {S_T1} offen sc1'),
                     a(f'buffer_load_dword v{V_FLAG}, v{V_Z}, {WS}, {S_FKV} offen sc1')),
        ]
        slot = [0]
        first = o.get('vm0', 5)
        def X():
            i = slot[0] - first - wv
            if i == 0: a('s_waitcnt vmcnt(0)')
            if i >= 0 and i % 4 == 0 and i // 4 < len(vm_ops): vm_ops[i // 4]()
            slot[0] += 1
        S('q', 2, 0); RD(B0, 'k', 2, 1, 0); X()
        S('q', 3, 0); RD(B0, 'k', 2, 1, 1); X()
        S('q', 4, 0); RD(B1, 'k', 3, 1, 0); X()
        S('q', 5, 0); RD(B1, 'k', 3, 1, 1); X()
        S('q', 6, 0); RD(T, 'k', 4, 1, 0); X()
        S('q', 7, 0); RD(T, 'k', 4, 1, 1); X()
        S('q', 2, 1); X()
        S('q', 3, 1); X()
        S('q', 4, 1); X()
        assert slot[0] > first + wv
        S('q', 5, 1); RD(B2, 'k', 5, 1, 0); X(); add(AQ, AQ, AQ + 2)
        S('q', 6, 1); RD(B2, 'k', 5, 1, 1); X(); add(AQ + 1, AQ + 1, AQ + 3)
        S('q', 7, 1); X(); a(f'{cvt} v{AQ+2}, v{AQ}, v{AQ+1}')
        S('k', 2, 0); X()
        S('k', 2, 1, B0); RD(B0, 'k', 6, 1, 0); X()
        S('k', 3, 0); RD(B0, 'k', 6, 1, 1); X()
        S('k', 3, 1, B1); RD(B1, 'k', 7, 0, 0); X(); add(AQ + 4, AQ + 4, AQ + 6)
        S('k', 4, 0); RD(B1, 'k', 7, 0, 1); X(); add(AQ + 5, AQ + 5, AQ + 7)
        S('k', 4, 1, T); RD(T, 'k', 7, 1, 0); X(); a(f'{cvt} v{AQ+3}, v{AQ+4}, v{AQ+5}')
        S('k', 5, 0); RD(T, 'k', 7, 1, 1); X()
        a(f'{mf16} {vr(AQ+4,4)}, {vr(AQ+2,2)}, {vr(SELQ,2)}, 0'); X()
        a(f'{mf16} {vr(T+8,4)}, {vr(AQ+2,2)}, {vr(SELQ+2,2)}, 0'); X()
        S('k', 5, 1, B2); RD(B2, 'v', 6, 0, 0); X()
        S('k', 6, 0); RD(B2, 'v', 6, 0, 1)
        S('k', 7, 0, B1); RD(B1, 'v', 7, 0, 0); a(f'{cvt} v{AQ}, v{AQ+4}, v{AQ+5}')
        S('k', 6, 1, B0); RD(B1, 'v', 7, 0, 1); a(f'{cvt} v{AQ+1}, v{AQ+6}, v{AQ+7}\n{cvt} v{AQ+2}, v{T+8}, v{T+9}')
        S('k', 7, 1, T); RD(B0, 'v', 6, 1, 0); a(f'{cvt} v{AQ+3}, v{T+10}, v{T+11}')
        assert slot[0] > first + wv + 4 * (len(vm_ops) - 1)
        self.stamp(2)
        RD(B0, 'v', 6, 1, 1)
        add(AK, AK, AK + 2)
        a(f'{mf32} {vr(AQ+4,4)}, {vr(KX,4)}, {vr(AQ,4)}, 0')
        add(AK + 1, AK + 1, AK + 3)
        a(f'{cvt} v{AK+2}, v{AK}, v{AK+1}')
        a(f'{mf32} {vr(T+8,4)}, {vr(KX+4,4)}, {vr(AQ,4)}, 0')
        pkadd(AK + 4, AK + 4, AK + 6)
        a(f'{cvt} v{AK+3}, v{AK+4}, v{AK+5}')
        a(f'{mf16} {vr(AK+4,4)}, {vr(AK+2,2)}, {vr(SELK,2)}, 0')
        a(f'{mf16} {vr(T,4)}, {vr(AK+2,2)}, {vr(SELK+2,2)}, 0')
        kslot = [0]
        def KL():
            i = kslot[0] - wv
            if i in (0, 4): a(f'buffer_load_dwordx4 {vr(KX+i,4)}, v{V_L16}, {WS}, {S_REC} offen offset:{256*i} sc1')
            kslot[0] += 1
        for i in range(4): a(f'v_cndmask_b32 v{AK+i}, v{T+8+i}, v{AQ+4+i}, {S_LO}')
        a(f'{cvt} v{KMH}, v{AK+4}, v{AK+5}\n{cvt} v{KMH+1}, v{AK+6}, v{AK+7}')
        a(f'{cvt} v{KMH+2}, v{T}, v{T+1}\n{cvt} v{KMH+3}, v{T+2}, v{T+3}')
        a(f'{mf32} {vr(T+4,4)}, {vr(KMH,4)}, {vr(AQ,4)}, 0')
        V(2, 0)
        a(f'ds_write_b128 v{V_X0}, {vr(AK,4)} offset:8192')
        a(f'v_cndmask_b32 v{T+4}, v{T+5}, v{T+4}, {S_LO}')
        V(2, 1)
        a(f'ds_write_b32 v{V_SMW}, v{T+4}')
        self.stamp(3)
        B3 = M + 8
        ONES, HALF = B2, B2 + 4
        V(3, 0); KL()
        V(3, 1); RD(B3, 'v', 7, 1, 0); KL()
        V(6, 0, B2); RD(B3, 'v', 7, 1, 1); KL()
        V(6, 1, B0); KL()
        if o.get('vb', 4) > 4: V(7, 0, B1)
        a.wait_lds_writes()
        a('s_barrier')
        SX = [T + 4, T + 8, AQ + 4]
        SR = lambda x: a(f'ds_read_b128 {vr(SX[x-1],4)}, v{V_X0+x} offset:8192')
        SR(1)
        if o.get('vb', 4) <= 4: V(7, 0, B1)
        SR(2); SR(3)
        V(4, 0); a(f'ds_read_b128 {vr(T,4)}, v{V_F} offset:1024'); a(f'v_mov_b64 {vr(ONES,2)}, s[26:27]')
        V(4, 1); KL(); a(f'v_mov_b64 {vr(ONES+2,2)}, s[26:27]')
        V(5, 0); KL(); a(f'v_mov_b64 {vr(HALF,2)}, s[8:9]')
        V(7, 1, B3); KL()
        V(5, 1); KL()
        WOS = lambda i, hh: a(f'ds_read_b128 {vr(WVB+8*i+4*hh,4)}, v{V_X0} offset:{16384+8192*i+1024*hh}')
        zs = list(range(M + 16, M + 32, 2))
        def Z(n):
            for _ in range(n): a(f'v_mov_b64 {vr(zs.pop(0),2)}, 0')
        self.stamp(4)
        pkadd(AK, AK, SX[0]); pkadd(AK + 2, AK + 2, SX[0] + 2)
        PK(SX[1], SX[1], SX[2]); PK(SX[1] + 2, SX[1] + 2, SX[2] + 2)
        PK(T, T, T + 2)
        PK(AK, AK, SX[1]); PK(AK + 2, AK + 2, SX[1] + 2)
        add(T, T, T + 1)
        mx, t2 = T + 2, T + 3
        a(f'v_max3_f32 v{mx}, v{AK}, v{AK+1}, v{AK+2}\nv_max3_f32 v{mx}, v{mx}, v{AK+3}, v{T}')
        PK(AV, AV, AV + 2); PK(AV + 4, AV + 4, AV + 6)
        a(f'v_max_f32_dpp v{t2}, v{mx}, v{mx} {QP}\nv_max_f32_dpp v{mx}, v{mx}, v{mx} {QP}')
        a(f'{cvt} v{AV+2}, v{AV}, v{AV+1}\n{cvt} v{AV+3}, v{AV+4}, v{AV+5}')
        a(f'v_permlane16_swap_b32 v{mx}, v{t2}\nv_max_f32 v{T+1}, v{mx}, v{t2}\nv_max_f32 v{mx}, v{mx}, v{t2}')
        a(f'{mf16} {vr(AV+4,4)}, {vr(SELV,2)}, {vr(AV+2,2)}, 0')
        WOS(0, 0)
        a(f'v_permlane32_swap_b32 v{mx}, v{T+1}\nv_max_f32 v{mx}, v{mx}, v{T+1}\nv_mul_f32 v{mx}, {S_SC}, v{mx}')
        E = [AK, AK + 1, AK + 2, AK + 3, T]
        for e in E: a(f'v_fma_f32 v{e}, v{e}, {S_SC}, -v{mx}')
        for e in E: a(f'v_exp_f32 v{e}, v{e}')
        BX, PM = AQ, T + 6
        a(f'{cvt} v{T+8}, v{AK}, v{AK+1}\n{cvt} v{T+9}, v{AK+2}, v{AK+3}')
        a(f"""
        v_cndmask_b32 v{BX}, 0, v{T+8}, {S_LO}
        v_cndmask_b32 v{BX+1}, 0, v{T+9}, {S_LO}
        v_cndmask_b32 v{BX+2}, v{T+8}, 0, {S_LO}
        v_cndmask_b32 v{BX+3}, v{T+9}, 0, {S_LO}
        v_mov_b32_dpp v{T+1}, v{T} {QP}
        {cvt} v{VMH}, v{AV+4}, v{AV+5}
        """)
        D, D2, DL = AQ + 4, AK + 4, T + 8
        a(f'{mf32} {vr(DL,4)}, {vr(ONES,4)}, {vr(BX,4)}, 0')
        WOS(0, 1)
        a(f'{cvt} v{T+4}, v{T}, v{T+1}\n{cvt} v{T+5}, v{T+1}, v{T}')
        a(f'{mf32} {vr(D2,4)}, {vr(VXC+4,4)}, {vr(BX,4)}, 0')
        WOS(1, 0)
        a(f'v_cndmask_b32 v{PM}, 0, v{T+4}, {S_LO}\nv_cndmask_b32 v{PM+1}, v{T+5}, 0, {S_LO}')
        a(f'{mf32} {vr(D,4)}, {vr(VXC,4)}, {vr(BX,4)}, 0')
        WOS(1, 1)
        a(f'{cvt} v{VMH+1}, v{AV+6}, v{AV+7}')
        a(f'{mf16} {vr(DL,4)}, {vr(HALF,2)}, {vr(PM,2)}, {vr(DL,4)}')
        Z(1)
        a(f'{mf16} {vr(D,4)}, {vr(VMH,2)}, {vr(PM,2)}, {vr(D,4)}')
        Z(o.get('zpv', 5))
        l = DL + 1
        a(f'v_add_f32_dpp v{l}, v{DL}, v{DL} {QP}\nv_rcp_f32 v{l}, v{l}')
        for i in range(4): a(f'v_add_f32_dpp v{D+i}, v{D2+i}, v{D+i} {QP}')
        for i in (0, 2): a(f'v_pk_mul_f32 {vr(D+i,2)}, {vr(D+i,2)}, {vr(l-1,2)} op_sel:[0,1] op_sel_hi:[1,1]')
        a(f'{cvt} v{T}, v{D}, v{D+1}\n{cvt} v{T+1}, v{D+2}, v{D+3}')
        a(f'v_and_or_b32 v{T}, v{T}, -2, {S_OTAG}')
        self.stamp(5)
        a(f'ds_write_b64 v{V_OW}, {vr(T,2)}')
        a(f's_cmp_eq_u32 {S_S}, 63\ns_cbranch_scc1 L_Rtail_{tg}')
        OA = AK
        WA = M + 16
        def oread():
            for k in range(4): a(f'ds_read_b128 {vr(OA+4*k,4)}, v{V_OR} offset:{(k//2)*2048 + (k%2)*512}')
        oc = [f'v_bitop3_b32 v{T+2+k}, v{OA+4*k}, v{OA+4*k+2}, {S_NOTAG} bitop3:0x42' for k in range(4)] + \
             [f'v_bitop3_b32 v{T+2}, v{T+2}, v{T+3}, v{T+4} bitop3:0x80', f'v_bitop3_b32 v{T+2}, v{T+2}, v{T+5}, 1 bitop3:0x80', f'v_cmp_eq_u32 vcc, 0, v{T+2}']
        Z(len(zs))
        for _ in range(o.get('z3', 4)): a('s_nop 1')
        oread()
        for _ in range(o.get('z4', 2)): dmf(M)
        self.stamp(6)
        def wo(t, k):
            fr = WVB + 8 * WO_SPILL.index((t, k)) if (t, k) in WO_SPILL else wo_frag(t, k)
            self.smf(WA + 4 * t, OA + 4 * k, vr(fr, 8))
        def fc(t): a(f'{cvt} v{AQ+2*t}, v{WA+4*t}, v{WA+4*t+1}\n{cvt} v{AQ+2*t+1}, v{WA+4*t+2}, v{WA+4*t+3}')
        def tagit(r): a(f'v_and_or_b32 v{r}, v{r}, -2, {S_TAG}')
        a(f'L_wo_{tg}:')
        for k in range(4):
            wo(0, k); a(oc[k]) if k < 3 else None
            wo(1, k)
            if k == 3: a(oc[3])
        wo(2, 0); a(oc[4])
        wo(3, 0); a(oc[5])
        wo(2, 1); a(oc[6])
        wo(3, 1); fc(0)
        wo(2, 2); fc(1)
        a(f's_cbranch_vccnz L_ofix_{tg}')
        wo(3, 2); tagit(AQ)
        wo(2, 3)
        a(f'buffer_store_dwordx4 {vr(AQ,4)}, v{V_IST}, {WS}, {S_IN0} offen {cf}')
        wo(3, 3)
        fc(2); tagit(AQ + 4); fc(3)
        a(f'buffer_store_dwordx4 {vr(AQ+4,4)}, v{V_IST}, {WS}, {S_IN1} offen {cf}')
        def fix():
            a(f'L_ofix_{tg}:\ns_mov_b32 s23, {SPIN}\nL_ofix2_{tg}:')
            a.forget(vm=False)
            oread(); a.wait(lgkm=0)
            for x in oc: a(x)
            a(f's_cbranch_vccz L_ofix3_{tg}\ns_sub_u32 s23, s23, 1\ns_cbranch_scc0 L_ofix2_{tg}\ns_endpgm\nL_ofix3_{tg}:')
            for r in range(WA, WA + 16, 2): a(f'v_mov_b64 {vr(r,2)}, 0')
            a(f's_branch L_wo_{tg}')
        self.fixups.append(fix)
        self.stamp(7)
        def pack_kvm():
            a(f's_mov_b64 vcc, {S_LO}')
            for i in range(4):
                qp = '[0,0,0,2]' if i < 2 else '[0,0,1,3]'
                a(f'v_cndmask_b32_dpp v{KMH+i}, v{VMH+i%2}, v{KMH+i}, vcc quad_perm:{qp} row_mask:0xf bank_mask:0xf')
        self.pack_kvm = pack_kvm
        def preA():
            a(f"""
            v_mov_b32 v{PA}, {S_NTAG}
            v_mov_b32 v{PA+4}, {S_NTAG}
            """)
            for i in range(o.get('dA', 4) if wv >= 2 else o.get('dA0', o.get('dA', 4))): dmf(R)
        def slackA():
            preload()
            pack_kvm()
            a(f"""
            s_add_u32 {S_S}, {S_S}, 1
            s_xor_b32 {S_IN0}, {S_IN0}, 0x40000
            s_and_b32 {S_T0}, {S_S}, 3
            s_lshl_b32 {S_T0}, {S_T0}, 13
            v_mov_b64 {vr(M,2)}, -1
            s_andn2_b32 {S_PUBB}, {S_PUBB}, 0x6000
            s_andn2_b32 {S_MEMP}, {S_MEMP}, 0x6000
            v_mov_b64 {vr(M+2,2)}, -1
            s_or_b32 {S_MEMP}, {S_MEMP}, {S_T0}
            s_xor_b32 {S_RST}, {S_T0}, 0x4000
            v_mov_b64 {vr(M+4,2)}, -1
            s_or_b32 {S_RST}, {S_RST}, {S_PUBB}
            s_or_b32 {S_PUBB}, {S_PUBB}, {S_T0}
            v_mov_b64 {vr(M+6,2)}, -1
            """)
            if not o.get('zB'):
                for r in range(AQ, AQ + 24, 2): a(f'v_mov_b64 {vr(r,2)}, 0')
            a.wait(lgkm=0)
        def checkA():
            a(f"""
            v_bitop3_b32 v{VXC}, v{PA}, v{PA+4}, {S_NTAG} bitop3:0x42
            v_and_b32 v{VXC}, 1, v{VXC}
            v_cmp_eq_u32 vcc, 0, v{VXC}
            """)
        def shadowA():
            a(f'v_smfmac_f32_16x16x64_bf16 {vr(R,4)}, {vr(SELR,4)}, {vr(PA,8)}, v{V_IDX} abid:1')
        if True:
            pl = [(M + 24, 'q', 0, 0), (M + 16, 'q', 0, 1), (B0, 'q', 1, 0), (B1, 'q', 1, 1), (T, 'k', 0, 0)]
            chA = [(40, pack_kvm)]
            chA += sa(f"""
            s_add_u32 {S_S}, {S_S}, 1
            s_xor_b32 {S_IN0}, {S_IN0}, 0x40000
            s_and_b32 {S_T0}, {S_S}, 3
            s_lshl_b32 {S_T0}, {S_T0}, 13
            s_andn2_b32 {S_PUBB}, {S_PUBB}, 0x6000
            s_andn2_b32 {S_MEMP}, {S_MEMP}, 0x6000
            s_or_b32 {S_MEMP}, {S_MEMP}, {S_T0}
            s_xor_b32 {S_RST}, {S_T0}, 0x4000
            s_or_b32 {S_RST}, {S_RST}, {S_PUBB}
            s_or_b32 {S_PUBB}, {S_PUBB}, {S_T0}
            """)
            zz = [f'v_mov_b64 {vr(r,2)}, 0' for r in range(AQ, AQ + 24, 2)] + [f'v_mov_b32 v{M}, -1']
            for k in range(10):
                chA.append((16, lambda k=k: (RD(*pl[k // 2], k % 2), a(zz[k]))))
            chA += va(zz[10:])
            chA.append((4, lambda: a.wait(lgkm=0)))
            zr = lambda: a(f'v_mov_b64 {vr(R,2)}, 0\nv_mov_b64 {vr(R+2,2)}, 0')
            chA.append((16, zr))
            self.poll2('A' + tg, PA, S_INP, chA, o.get('tA0', 260), o.get('tA1', 180), o.get('tA2', 100), lambda: dmf(VXC + 4), checkA, shadowA, retry=zr)
        self.stamp(8)
        hp = ''
        a(f"""
        {'s_nop 1' + chr(10) + a.dummy + chr(10) + 's_nop 0' if hp else ''}
        v_add_f32_dpp v{R}, v{R}, v{R} row_ror:8 row_mask:0xf bank_mask:0x3 {hp}
        v_add_f32_dpp v{R+1}, v{R+1}, v{R+1} row_ror:8 row_mask:0xf bank_mask:0x3 {hp}
        v_add_f32_dpp v{R}, v{R+2}, v{R+2} row_ror:8 row_mask:0xf bank_mask:0xc {hp}
        v_add_f32_dpp v{R+1}, v{R+3}, v{R+3} row_ror:8 row_mask:0xf bank_mask:0xc {hp}
        v_add_f32_dpp v{R}, v{R}, v{R} row_ror:12 row_mask:0xf bank_mask:0xf
        v_add_f32_dpp v{R+1}, v{R+1}, v{R+1} row_ror:12 row_mask:0xf bank_mask:0xf
        {cvt} v{R+2}, v{R}, v{R+1}
        buffer_store_dword v{R+2}, v{V_PUB}, {WS}, {S_PUBB} offen {cf}
        """)
        self.stamp(9)
        a(f'buffer_store_dword v{M}, v{V_PUB}, {WS}, {S_RST} offen {cf}')
        if o.get('span2') and wv == 0:
            lab = a.newlabel('n8')
            a(f's_cmp_lg_u32 {S_S}, 8\ns_cbranch_scc1 {lab}')
            self.note(5, T + 10)
            a(f'{lab}:')
        if not o.get('rt'): self.dump_stamps(tg)
        a(f's_branch L_Rloop_{tg}')
        a.hot = False
        a(f'{spin}:')
        self.spin_flag(V_FLAG, f'v{V_Z}', S_FKV)
        a(f's_branch {back}')
        for txt, sh in zip(self.late, self.late_sh):
            pre, post = txt.split('@SH@')
            a(pre); a('s_nop 7'); sh(); a('s_nop 7'); a(post)
        for f in self.fixups: f()
        a(f'L_Rtail_{tg}:')
        a.forget()
        self.pack_kvm()
        a(f'''
        buffer_store_dwordx4 {vr(KMH,4)}, v{V_L16}, {WS}, {S_KVM} offen sc1
        s_waitcnt vmcnt(0) lgkmcnt(0)
        buffer_store_dword v{V_F}, v{V_ONE}, {WS}, {S_FM} offen sc1
        buffer_store_dword v{V_F}, v{V_ONE}, {WS}, {S_FM} offen offset:2048 sc1
        ''')
        self.tstamp(6, T + 4)
        self.note(6, T + 4)
        if o.get('stamp'):
            set_srd(a, 12, P_DBG, 256)
            a(f'''
            s_memtime s[82:83]
            s_memrealtime s[84:85]
            s_waitcnt lgkmcnt(0)
            s_sub_u32 s82, s82, s80
            s_sub_u32 s84, s84, s30
            s_sub_u32 s28, s28, s30
            v_mov_b32 v{T}, s82
            v_mov_b32 v{T+1}, {S_FAST}
            v_mov_b32 v{T+2}, s28
            v_mov_b32 v{T+3}, s84
            v_mov_b32 v{T+4}, 16
            buffer_store_dwordx4 {vr(T,4)}, v{T+4}, {ST}, 0 offen
            ''')
        a('s_endpgm')
        a.auto_vm = True
```

```python
import layout as L
from gen_common import *
import struct
def f2u(x): return struct.unpack('<I', struct.pack('<f', x))[0]
mf16 = 'v_mfma_f32_16x16x16_bf16'; mf32 = 'v_mfma_f32_16x16x32_bf16'; cvt = 'v_cvt_pk_bf16_f32'

TB = 0
NAMES = list(L.w_table().keys())
def tv(n): return TB + NAMES.index(n)
V_TID = 24
XF = 48
ACC = 64
S_ISB, S_SEG, S_END, S_STEP, S_BASE, S_STR = 's61', 's62', 's63', 's64', 's65', 's66'
S_XB, S_PF, S_PF2, S_A, S_B, S_HEAD = 's67', 's68', 's69', 's70', 's71', 's72'
S_FIRST = 's73'
S_TFAST = 's89'
SX = 's[24:27]'

def wfrag(m, ks, p):
    c = 'qkv'.index(m) * 8 + ks // 2
    r = c * 16 + p * 8 + (ks % 2) * 4
    return ar(r, 4) if r < 256 else vr(128 + r - 256, 4)

class Workers:
    def tables(self):
        return L.table_text('T_R', L.r_table()) + L.table_text('T_W', L.w_table())

    def xlane(self, op, x, t):
        a = self.a
        a(f'v_mov_b32 v{t}, v{x}\nv_permlane16_swap_b32 v{x}, v{t}\n{op} v{x}, v{x}, v{t}')
        a(f'v_mov_b32 v{t}, v{x}\nv_permlane32_swap_b32 v{x}, v{t}\n{op} v{x}, v{x}, v{t}')

    def x_dma(self, piece=None):
        a = self.a
        if piece is not None and piece >= 0:
            a(f'buffer_load_dwordx4 v{tv("xg")}, {SX}, s21 offen lds')
            a('s_add_u32 m0, m0, 1024')
            a(f's_add_u32 s21, s21, {16384 if piece % 2 == 0 else hex((64 - 16384) & 0xFFFFFFFF)}')
            return
        a(f's_lshl_b32 s21, {S_A}, 15\ns_lshl_b32 s22, {S_W}, 8\ns_add_u32 s21, s21, s22')
        a(f's_lshl_b32 s22, {S_W}, 13\ns_add_u32 m0, s22, {S_XB}')
        if piece is not None: return
        for k in range(4):
            for tt in range(2):
                a(f'buffer_load_dwordx4 v{tv("xg")}, {SX}, s21 offen lds')
                a('s_add_u32 m0, m0, 1024')
                a(f's_add_u32 s21, s21, {16384 if tt == 0 else hex((64 - 16384) & 0xFFFFFFFF)}')

    def worker_role(self):
        a = self.a; o = self.o
        a('L_worker:')
        a.vq = list(self.vq_role)
        self.mark(0)
        if o.get('no_workers'):
            self.gate_and_store(); a.wait(vm=0); self.signal_init(); a('s_endpgm'); return
        nb = o.get('nb', 1)
        a(f'''
        s_sub_u32 s21, {S_TEAM}, 1
        {'s_add_u32 s22, s21, 6' + chr(10) + 's_sub_u32 s21, s21, 1' + chr(10) + 's_cselect_b32 s21, s22, s21' if nb else ''}
        s_lshl_b32 s21, s21, 5
        s_add_u32 s21, s21, {S_RANK}
        s_cmp_ge_u32 s21, 192
        s_cselect_b32 {S_ISB}, 1, 0
        s_cbranch_scc1 L_w_B
        s_mul_i32 {S_HEAD}, s21, 43691
        s_lshr_b32 {S_HEAD}, {S_HEAD}, 18
        s_mul_i32 s22, {S_HEAD}, 6
        s_sub_u32 {S_SEG}, s21, s22
        s_mov_b32 {S_END}, 64
        s_mov_b32 {S_STEP}, 6
        s_mov_b32 {S_FIRST}, 0
        s_movk_i32 {S_STR}, 8192
        s_mov_b32 s75, {4<<20}
        s_branch L_w_dec
        L_w_B:
        s_sub_u32 s21, s21, 192
        s_lshr_b32 {S_HEAD}, s21, 3
        s_and_b32 s21, s21, 7
        s_lshl_b32 {S_FIRST}, s21, 3
        s_add_u32 {S_END}, {S_FIRST}, 8
        s_max_u32 {S_SEG}, {S_FIRST}, 1
        s_sub_u32 {S_SEG}, {S_SEG}, 1
        s_mov_b32 {S_STEP}, 1
        s_movk_i32 {S_STR}, 3072
        s_mov_b32 s75, {512*3072}
        L_w_dec:
        v_and_b32 v1, 63, v0
        v_lshrrev_b32 v2, 4, v1
        v_and_b32 v3, 15, v1
        v_lshlrev_b32 v3, 4, v3
        s_lshl_b32 s79, {S_STR}, 4
        v_mul_lo_u32 v2, v2, s79
        v_add_u32 v28, v2, v3
        s_mul_i32 s78, {S_W}, {L.BLK}
        s_lshl_b32 s77, {S_HEAD}, 8
        s_lshl_b32 s79, {S_STR}, 6
        ''')
        nwarm = 0
        if o.get('mall'):
            a(f's_sub_u32 s21, {S_TEAM}, 1\ns_lshl_b32 s21, s21, 5\ns_add_u32 s21, s21, {S_RANK}\ns_lshl_b32 s21, s21, 2\ns_add_u32 s21, s21, {S_W}')
            a('v_lshlrev_b32 v29, 7, v1\ns_mov_b32 s10, 0x400000\ns_mov_b32 s11, 0x20000')
            for i in range(2):
                a(f'''
                s_add_u32 s22, s21, {896 * i}
                s_cmp_ge_u32 s22, 512
                s_cselect_b32 s8, s{P_WV}, s{P_WK}
                s_cselect_b32 s9, s{P_WV+1}, s{P_WK+1}
                s_and_b32 s23, s22, 511
                s_lshl_b32 s23, s23, 13
                s_cmp_ge_u32 s22, 1024
                s_cselect_b32 s23, {hex(L.OOB)}, s23
                buffer_load_dword v{30+i%2}, v29, {SA}, s23 offen
                ''')
        groups = [(m, b) for m in 'kvq' for b in range(2)]
        def issue(gi):
            m, b = groups[gi]
            if b == 0:
                ptr = {'q': P_WQ, 'k': P_WK, 'v': P_WV}[m]
                a(f"""
                s_cmp_eq_u32 {S_ISB}, 1
                s_cselect_b32 s8, s{P_WQKV}, s{ptr}
                s_cselect_b32 s9, s{P_WQKV+1}, s{ptr+1}
                s_mov_b32 s10, s75
                s_mov_b32 s11, 0x20000
                s_cselect_b32 s76, {'qkv'.index(m) * 1024}, 0
                s_add_u32 s76, s76, s77
                """)
            a(f's_add_u32 m0, s78, {(gi % 2) * L.GRP}')
            a(f's_add_u32 s21, {S_W}, {4 * b}\ns_mul_i32 s21, s21, s79\ns_add_u32 s21, s21, s76')
            self.dma_block('v28', 's21', S_STR)
        issue(0)
        self.load_table('T_W', 96, 24, 7)
        self.confirm_role()
        issue(1)
        self.mark(1)
        self.gate_and_store()
        a(f'v_mov_b32 v{V_TID}, v0')
        for i in range(24): a(f'v_mov_b32 v{TB+i}, v{96+i}')
        a(f'v_add_u32 v29, {L.GRP}, v{tv("trp")}')
        set_srd(a, 24, P_X, 2048 * 1024)
        a(f's_mov_b32 {S_XB}, 0\ns_mov_b32 {S_A}, {S_SEG}')
        a.auto_vm = False
        def consume(gi):
            m, b = groups[gi]
            a('s_barrier')
            for x in range(4):
                for p in range(2):
                    for h in range(2):
                        f = wfrag(m, 2 * (4 * b + x) + h, p)
                        kind, base = f[0], int(f[2:f.index(':')])
                        for r in range(2):
                            a(f'ds_read_b64_tr_b16 {kind}[{base+2*r}:{base+2*r+1}], v{tv("trp") if gi % 2 == 0 else 29} offset:{x * L.BLK + 512*h + 4224*r + 32*p}')
            a.wait(lgkm=0)
            a('s_barrier')
        VX = 25
        KP, VP = 112, 116
        acc = lambda m, p, tt: ACC + 16 * 'qkv'.index(m) + 8 * p + 4 * tt
        def xr(ks):
            for tt in range(2):
                a(f'ds_read_b128 {vr(XF + 8*(ks%2) + 4*tt, 4)}, v{VX} offset:{(ks*2+tt)*1024}')
        def loop_head(lab, mats, nst):
            a(f'{lab}:')
            pm = o.get('pmark') and lab == 'L_P_kv'
            if pm: a.raw('    s_memtime s[82:83]')
            a(f's_waitcnt vmcnt({nst + 1})')
            a('s_barrier')
            if pm: a.raw('    s_memtime s[84:85]')
            a(f's_add_u32 {S_A}, {S_SEG}, {S_STEP}\ns_min_u32 {S_A}, {S_A}, 63\ns_xor_b32 {S_XB}, {S_XB}, 32768')
            self.x_dma(-1)
            if pm: a.raw('    s_memtime s[86:87]')
            xr(0)
            for ks in range(16):
                if ks < 15: xr(ks + 1)
                if ks == 9:
                    if pm: a.raw('    s_memtime s[94:95]')
                    a('s_waitcnt vmcnt(8)')
                    if pm: a.raw('    s_memtime s[96:97]')
                    a(f'buffer_store_dword v{tv("oxr")}, v{tv("one")}, {WS}, {S_PF} offen sc1')
                for m in mats:
                    for p in range(2):
                        for tt in range(2):
                            d = vr(acc(m, p, tt), 4)
                            x = vr(XF + 8 * (ks % 2) + 4 * tt, 4); w = wfrag(m, ks, p)
                            A, B = (w, x) if m != 'v' else (x, w)
                            a(f'{mf32} {d}, {A}, {B}, {d if ks else 0}')
                            if ks < 8 and m == mats[0] and p == 0 and tt == 0: self.x_dma(ks)
            if pm: a.raw('    s_memtime s[98:99]')
            a(f'v_xor_b32 v{VX}, 32768, v{VX}')
        def loop_tail(lab):
            a(f's_add_u32 {S_SEG}, {S_SEG}, {S_STEP}\ns_cmp_lt_u32 {S_SEG}, {S_END}\ns_cbranch_scc1 {lab}')
            a('s_waitcnt vmcnt(0)')
            a(f'buffer_store_dword v{tv("oxr")}, v{tv("one")}, {WS}, {S_PF} offen sc1')
            a('s_barrier')
        def start_loop():
            a(f's_mov_b32 {S_PF}, {hex(L.OOB)}\nv_mov_b32 v{VX}, v{tv("l16")}')
        def init_sync(marks=True, t=40):
            a.forget()
            if marks:
                self.dump_marks(t)
                self.tstamp(1, t)
            lab = a.newlabel('wz')
            a(f'v_mov_b32 v{t+4}, {L.LDS_BYTES - 16}\ns_cmp_lg_u32 {S_W}, 0\ns_cbranch_scc1 {lab}')
            self.wait_init(t0=t, tid=V_TID)
            a(f'v_mov_b32 v{t+5}, s21\nds_write_b32 v{t+4}, v{t+5}')
            a.wait(lgkm=0)
            a(f'{lab}:\ns_waitcnt vmcnt(0)\ns_barrier\nds_read_b32 v{t+5}, v{t+4}')
            a(f'v_readfirstlane_b32 s21, v{t+5}')
            a(f's_cmp_ge_u32 s21, 32\ns_cselect_b32 {S_TFAST}, 1, 0')
            if o.get('force_slow'): a(f's_mov_b32 {S_TFAST}, 0')
            self.tstamp(2, t)
        def a_epilogue(frs, foff, flagoff):
            a(f"""
            s_lshl_b32 s21, {S_SEG}, 5
            s_add_u32 s21, s21, {S_HEAD}
            s_lshl_b32 {S_PF}, s21, 6
            s_mul_i32 s21, s21, 24576
            s_mul_i32 s22, {S_W}, 6144
            s_add_u32 s21, s21, s22
            s_add_u32 s21, s21, {foff}
            s_lshl_b32 s23, {S_W}, 2
            s_add_u32 {S_PF}, {S_PF}, s23
            s_add_u32 {S_PF}, {S_PF}, {hex(L.F_KV + flagoff)}
            """)
            for f, (t0, t1) in enumerate(frs):
                o4 = 32 + 4 * f
                for i, t in enumerate((t0, t1)):
                    r = acc(*t)
                    a(f'{cvt} v{o4+2*i}, v{r}, v{r+1}\n{cvt} v{o4+2*i+1}, v{r+2}, v{r+3}')
                a(f'buffer_store_dwordx4 {vr(o4,4)}, v{tv("l16")}, {WS}, s21 offen offset:{1024*f} sc1')
        self.mark(2)
        for gi in range(2):
            a.wait(vm=17)
            if gi == 0: self.mark(3)
            consume(gi); issue(gi + 2)
        a.wait(vm=16); self.mark(4)
        consume(2)
        a(f's_cmp_eq_u32 {S_ISB}, 1\ns_cbranch_scc1 L_w_Bload')
        self.x_dma()
        self.signal_init(tid=V_TID, t=40, barrier=False)
        a.wait(vm=8); self.mark(5); self.mark(6)
        consume(3)
        a.forget()
        if not o.get('pmark'): self.dump_marks(40)
        self.tstamp(1, 40); self.note(7, 40)
        a('s_waitcnt vmcnt(0)')
        a(f's_mov_b32 {S_FIRST}, {S_SEG}')
        start_loop()
        loop_head('L_P_kv', 'kv', 4)
        a_epilogue([[('k', 0, 0), ('k', 1, 0)], [('k', 0, 1), ('k', 1, 1)], [('v', 0, 0), ('v', 1, 1)], [('v', 1, 0), ('v', 0, 1)]], 0, 0)
        lab = a.newlabel('nf')
        a(f's_cmp_lg_u32 {S_SEG}, {S_FIRST}\ns_cbranch_scc1 {lab}')
        init_sync(marks=False, t=48)
        a(f'buffer_store_dword v{tv("oxr")}, v{tv("one")}, {WS}, {S_PF} offen sc1')
        if o.get('hold', 0):
            l2 = a.newlabel('hold')
            a(f's_cmp_lg_u32 {S_W}, 0\ns_cbranch_scc1 {l2}\ns_lshl_b32 s21, {S_HEAD}, 6\ns_add_u32 s21, s21, {hex(L.F_RS)}\nv_mov_b32 v48, 0')
            self.spin4('v48', 's21', 49, n=1, sleep=8)
            a(f'{l2}:')
        a(f'{lab}:')
        if o.get('pmark'):
            a.raw('    s_memtime s[100:101]')
            lab = a.newlabel('pm')
            a(f's_cmp_lt_u32 {S_SEG}, 30\ns_cbranch_scc1 {lab}\ns_cmp_ge_u32 {S_SEG}, 36\ns_cbranch_scc1 {lab}')
            self.dump_marks(48)
            a(f's_waitcnt vmcnt(0)\n{lab}:')
        loop_tail('L_P_kv')
        issue(4); issue(5)
        a('s_waitcnt vmcnt(16)'); consume(4)
        a(f's_mov_b32 {S_SEG}, {S_FIRST}\ns_mov_b32 {S_XB}, 0\ns_mov_b32 {S_A}, {S_SEG}')
        self.x_dma()
        a('s_waitcnt vmcnt(8)'); consume(5)
        a('s_waitcnt vmcnt(0)')
        start_loop()
        loop_head('L_P_q', 'q', 2)
        a_epilogue([[('q', 0, 0), ('q', 1, 0)], [('q', 0, 1), ('q', 1, 1)]], 4096, 16)
        loop_tail('L_P_q')
        a('s_branch L_P_done')
        a('L_w_Bload:')
        issue(4)
        self.signal_init(tid=V_TID, t=40, barrier=False)
        a('s_waitcnt vmcnt(16)'); consume(3); issue(5)
        a('s_waitcnt vmcnt(16)'); self.mark(5); consume(4)
        self.x_dma()
        a('s_waitcnt vmcnt(8)'); self.mark(6); consume(5)
        init_sync()
        for r in range(KP, KP + 8, 2): a(f'v_mov_b64 {vr(r,2)}, 0')
        start_loop()
        loop_head('L_P_B', 'qkv', 4)
        G1 = 26
        a(f's_lshl_b32 s21, {S_SEG}, 7\ns_add_u32 s21, s21, {hex(L.GATE)}')
        a(f'buffer_load_dword v{G1}, v{tv("c4")}, {WS}, s21 offen sc1\nbuffer_load_dword v{G1+1}, v{tv("c4")}, {WS}, s21 offen offset:64 sc1')
        for m in 'qkv':
            for p in range(2):
                for tt in range(2):
                    r = acc(m, p, tt)
                    a(f'{cvt} v{r}, v{r}, v{r+1}\n{cvt} v{r+1}, v{r+2}, v{r+3}')
        a(f'''
        s_mov_b32 s80, 0xaaaaaaaa
        s_mov_b32 s81, 0xaaaaaaaa
        v_cmp_ne_u32 s[82:83], 0, v{tv("mc0")}
        v_cmp_ne_u32 s[84:85], 0, v{tv("mc1")}
        s_mov_b32 s86, {hex(f2u(0.25 * 1.4426950408889634))}
        s_cmp_eq_u32 {S_SEG}, 0
        s_cselect_b32 s87, 0xf149f2ca, 0
        s_lshl_b32 s21, {S_SEG}, 5
        s_lshl_b32 s22, {S_HEAD}, 3
        s_add_u32 s21, s21, s22
        s_lshl_b32 s22, {S_W}, 1
        s_add_u32 s21, s21, s22
        s_lshl_b32 s21, s21, 10
        s_add_u32 s21, s21, {hex(L.OB)}
        s_cmp_lt_u32 {S_SEG}, {S_FIRST}
        s_cselect_b32 s21, {hex(L.OOB)}, s21
        s_lshl_b32 {S_PF}, {S_SEG}, 2
        s_add_u32 {S_PF}, {S_PF}, {S_HEAD}
        s_lshl_b32 {S_PF}, {S_PF}, 6
        s_lshl_b32 s22, {S_W}, 2
        s_add_u32 {S_PF}, {S_PF}, s22
        s_add_u32 {S_PF}, {S_PF}, {hex(L.F_OB)}
        s_cmp_lt_u32 {S_SEG}, {S_FIRST}
        s_cselect_b32 {S_PF}, {hex(L.OOB)}, {S_PF}
        s_waitcnt vmcnt(0)
        v_sub_f32 v{G1}, 1.0, v{G1}
        v_sub_f32 v{G1+1}, 1.0, v{G1+1}
        ''')
        for p in range(2):
            for tt in range(2):
                q = acc('q', p, tt); kc = acc('k', p, tt); vc = acc('v', p, tt)
                kp = KP + 2 * p if tt == 0 else acc('k', p, 0)
                vp = VP + 2 * p if tt == 0 else acc('v', p, 0)
                SC_, SP_, OD = 28, 32, 36
                a(f'{mf16} {vr(SC_,4)}, {vr(kc,2)}, {vr(q,2)}, 0\n{mf16} {vr(SP_,4)}, {vr(kp,2)}, {vr(q,2)}, 0')
                for j in range(2):
                    a(f'v_cndmask_b32 v{SC_+2*j}, v{SC_+2*j}, v{SC_+2*j+1}, s[80:81]')
                    a(f'v_cndmask_b32 v{SP_+2*j}, v{SP_+2*j}, v{SP_+2*j+1}, s[80:81]')
                    if tt == 0: a(f'v_add_f32 v{SP_+2*j}, s87, v{SP_+2*j}')
                    a(f'v_cndmask_b32 v{40+j}, v{SP_+2*j}, v{SC_+2*j}, s[{82+2*j}:{83+2*j}]')
                a('v_max_f32 v42, v40, v41')
                self.xlane('v_max_f32', 42, 43)
                a('v_mul_f32 v42, s86, v42')
                for j in range(2): a(f'v_fma_f32 v{40+j}, v{40+j}, s86, -v42\nv_exp_f32 v{40+j}, v{40+j}')
                a('v_add_f32 v42, v40, v41')
                self.xlane('v_add_f32', 42, 43)
                a(f'v_rcp_f32 v42, v42')
                for j in range(2):
                    a(f'{cvt} v{40+j}, v{40+j}, v{40+j}')
                    a(f'v_and_b32 v{44+j}, v{40+j}, v{tv(f"mc{j}")}\nv_and_b32 v{46+j}, v{40+j}, v{tv(f"mp{j}")}')
                a(f'v_mul_f32 v42, v42, v{G1+tt}')
                a(f'{mf16} {vr(OD,4)}, {vr(vc,2)}, v[44:45], 0\n{mf16} {vr(OD,4)}, {vr(vp,2)}, v[46:47], {vr(OD,4)}')
                for i in range(4): a(f'v_mul_f32 v{OD+i}, v{OD+i}, v42')
                ob = XF + 2 * (2 * p + tt)
                a(f'{cvt} v{ob}, v{OD}, v{OD+1}\n{cvt} v{ob+1}, v{OD+2}, v{OD+3}')
                a(f'buffer_store_dwordx2 {vr(ob,2)}, v{tv("l8")}, {WS}, s21 offen offset:{1024*p + 512*tt} sc1')
        for p in range(2):
            a(f'v_mov_b64 {vr(KP+2*p,2)}, {vr(acc("k",p,1),2)}\nv_mov_b64 {vr(VP+2*p,2)}, {vr(acc("v",p,1),2)}')
        loop_tail('L_P_B')
        if nb:
            self.tstamp(6, 40)
            a('s_endpgm')
        a('L_P_done:')
        self.tstamp(3, 40)
        self.note(8, 40)
        if o.get('no_F'):
            a('s_endpgm'); a.auto_vm = True; return
        self.f_phase()

    def spin4(self, voff, soff, tmp, n=4, sleep=2):
        a = self.a
        lab = a.newlabel('s4'); ok = a.newlabel('s4ok')
        ld = {1: 'buffer_load_dword', 4: 'buffer_load_dwordx4'}[n]
        a(f's_mov_b32 s23, {SPIN}\n{lab}:')
        a(f'{ld} {vr(tmp,n)}, {voff}, {WS}, {soff} offen sc1\ns_waitcnt vmcnt(0)')
        if n == 4: a(f'v_min_u32 v{tmp}, v{tmp}, v{tmp+1}\nv_min3_u32 v{tmp}, v{tmp}, v{tmp+2}, v{tmp+3}')
        a(f'v_cmp_eq_u32 vcc, 0, v{tmp}\ns_cbranch_vccz {ok}\n{"s_sleep %d" % sleep if sleep else ""}\ns_sub_u32 s23, s23, 1\ns_cbranch_scc0 {lab}\ns_mov_b32 {SPIN}, 0x400\n{ok}:')

    def f_phase(self):
        a = self.a; o = self.o
        set_srd(a, 8, P_WO, 4 << 20)
        a(f's_mul_i32 s78, {S_W}, 36864\ns_mov_b32 m0, s78')
        for kb in range(2):
            for T in range(4):
                a(f's_lshl_b32 s21, {S_RANK}, 17\ns_add_u32 s21, s21, {kb*65536 + T*64}')
                self.dma_chunk(f'v{tv("dma1k")}', 's21', 1024)
        set_srd(a, 8, P_WOB, 512 * 1024)
        for T in range(4):
            a(f's_lshl_b32 s21, {S_RANK}, 14\ns_add_u32 s21, s21, {T*64}')
            self.dma_chunk(f'v{tv("dma1k")}', 's21', 1024, n=1)
        set_srd(a, 12, P_OUT, 2048 * 1024)
        V_Z = 26
        a(f'v_mov_b32 v{V_Z}, 0')
        for kt in range(2):
            for i in range(4):
                a(f'v_cmp_le_i32 s[{64+8*kt+2*i}:{65+8*kt+2*i}], {16*kt+i}, v{tv("qrow")}')
        a('s_waitcnt vmcnt(0)')
        wof = lambda T, p, ks: 4 * ((T * 2 + p) * 4 + ks)
        wob = lambda T, p: 128 + 2 * (T * 2 + p)
        for kb in range(2):
            for T in range(4):
                so = (kb * 4 + T) * 4096
                for p in range(2):
                    for h in range(2):
                        for r in range(2):
                            a(f'ds_read_b64_tr_b16 {ar(wof(T,p,2*kb+h)+2*r,2)}, v{tv("trf")} offset:{so + 2048*h + 1024*r + 8*p}')
        for T in range(4):
            for p in range(2):
                a(f'ds_read_b64_tr_b16 {ar(wob(T,p),2)}, v{tv("trf")} offset:{32768 + 1024*T + 8*p}')
        a.wait(lgkm=0)
        S_FS, S_RB, S_FB = 's61', 's62', 's63'
        a(f's_sub_u32 {S_FS}, {S_TEAM}, {2 if o.get("nb", 1) else 1}\ns_mov_b32 s80, {hex(f2u(128 ** -0.5 * 1.4426950408889634))}\ns_mov_b32 s81, 0xf149f2ca')
        a(f's_lshr_b32 s82, {S_W}, 1\ns_and_b32 s83, {S_W}, 1')
        a(f's_lshl_b32 s86, {S_TEAM}, 21\ns_add_u32 s86, s86, {hex(L.FP)}')
        Q, K0, K1, V, KM, VM, OBF, G, S0, S1, SM, PX, PM, D, OF, AC = 28, 44, 60, 76, 92, 108, 112, 116, 120, 124, 128, 132, 136, 140, 156, 188
        a('L_F_loop:')
        a.forget(); a.auto_vm = True
        a(f'''
        s_lshl_b32 s21, {S_FS}, 5
        s_add_u32 s21, s21, {S_RANK}
        s_lshl_b32 {S_FB}, s21, 6
        s_mul_i32 {S_RB}, s21, 24576
        s_lshl_b32 s84, s21, 12
        s_add_u32 s84, s84, {hex(L.KVM)}
        s_lshl_b32 s85, s21, 10
        s_add_u32 s85, s85, {hex(L.OB)}
        s_add_u32 s21, {S_FB}, {hex(L.F_KV + 16)}
        ''')
        self.spin4(f'v{V_Z}', 's21', Q)
        a(f'''
        s_lshl_b32 s21, {S_FS}, 2
        s_lshr_b32 s22, {S_RANK}, 3
        s_add_u32 s21, s21, s22
        s_lshl_b32 s21, s21, 6
        s_and_b32 s22, {S_RANK}, 6
        s_lshl_b32 s22, s22, 1
        s_add_u32 s21, s21, s22
        s_add_u32 s21, s21, {hex(L.F_OB)}
        ''')
        self.spin4(f'v{V_Z}', 's21', Q, n=1)
        a.forget()
        l16 = f'v{tv("l16")}'
        a(f's_lshl_b32 s87, {S_FS}, 2\ns_add_u32 s87, s87, {S_W}\ns_lshl_b32 s87, s87, 5\ns_add_u32 s87, s87, {S_RANK}\ns_lshl_b32 s87, s87, 2\ns_add_u32 s87, s87, {hex(L.F_P)}')
        a(f's_cmp_eq_u32 {S_TFAST}, 0\ns_cselect_b32 s21, {hex(L.OOB)}, s87\nbuffer_store_dword v{V_Z}, v{tv("one")}, {WS}, s21 offen')
        for qt in range(2):
            a(f'buffer_load_dwordx2 {vr(OBF+2*qt,2)}, v{tv("l8")}, {WS}, s85 offen offset:{512*qt} sc1')
        a(f's_lshl_b32 s22, s82, 10\ns_add_u32 s22, s22, 4096\ns_add_u32 s22, s22, {S_RB}\ns_mov_b32 s21, {S_RB}')
        for sl in range(4):
            a(f'buffer_load_dwordx4 {vr(Q+4*sl,4)}, {l16}, {WS}, s22 offen sc1')
            a(f'buffer_load_dwordx4 {vr(K0+4*sl,4)}, {l16}, {WS}, s21 offen sc1')
            a(f'buffer_load_dwordx4 {vr(K1+4*sl,4)}, {l16}, {WS}, s21 offen offset:1024 sc1')
            if sl < 3: a('s_add_u32 s21, s21, 6144\ns_add_u32 s22, s22, 6144')
        a(f's_mul_i32 s21, s83, 12288\ns_add_u32 s21, s21, {S_RB}\ns_add_u32 s22, s21, 6144')
        for sl in range(2):
            for f in range(2):
                a(f'buffer_load_dwordx4 {vr(V+8*sl+4*f,4)}, {l16}, {WS}, {"s21" if sl == 0 else "s22"} offen offset:{2048+1024*f} sc1')
        a(f's_lshl_b32 s21, {S_FS}, 7\ns_lshl_b32 s22, s82, 6\ns_add_u32 s21, s21, s22\ns_add_u32 s21, s21, {hex(L.GATE)}')
        a(f'buffer_load_dword v{G}, v{tv("c4")}, {WS}, s21 offen sc1')
        for qt in range(2):
            for T in range(4):
                for p in range(2):
                    a(f'{mf16} {vr(AC+32*qt+8*T+4*p,4)}, {ar(wob(T,p),2)}, {vr(OBF+2*qt,2)}, 0')
        for sl in range(4):
            a(f'{mf32} {vr(S0,4)}, {vr(K0+4*sl,4)}, {vr(Q+4*sl,4)}, {vr(S0,4) if sl else 0}')
            a(f'{mf32} {vr(S1,4)}, {vr(K1+4*sl,4)}, {vr(Q+4*sl,4)}, {vr(S1,4) if sl else 0}')
        NEG = 27
        a(f'v_mov_b32 v{NEG}, s81')
        for kt, Sx in enumerate((S0, S1)):
            for i in range(4): a(f'v_cndmask_b32 v{Sx+i}, v{NEG}, v{Sx+i}, s[{64+8*kt+2*i}:{65+8*kt+2*i}]')
        MX = 117
        a(f'v_max3_f32 v{MX}, v{S0}, v{S0+1}, v{S0+2}\nv_max3_f32 v{MX}, v{MX}, v{S0+3}, v{S1}\nv_max3_f32 v{MX}, v{MX}, v{S1+1}, v{S1+2}\nv_max_f32 v{MX}, v{MX}, v{S1+3}')
        a.wait(vm=0)
        skip = a.newlabel('fw')
        dp = o.get('dpoll', 1)
        if dp:
            a(f"""
            s_cmp_ge_u32 {S_FS}, 62
            s_cselect_b32 s22, {hex((L.KVL - L.KVM - 62 * 131072) & 0xFFFFFFFF)}, 0
            s_add_u32 s84, s84, s22
            s_max_u32 s22, {S_FS}, 61
            s_sub_u32 s22, s22, 61
            s_lshl_b32 s22, s22, 11
            """)
        else: a('s_mov_b32 s22, 0')
        a(f's_cmp_lg_u32 {S_W}, 0\ns_cbranch_scc1 {skip}\ns_add_u32 s21, {S_FB}, {hex(L.F_M)}\ns_sub_u32 s21, s21, s22')
        self.spin4(f'v{V_Z}', 's21', KM)
        self.tstamp(4, 252)
        a(f'{skip}:\ns_barrier')
        fm = (lambda i: a.raw(f'    s_memtime s[{88+2*i}:{89+2*i}]')) if o.get('fmark') else (lambda i: None)
        fm(1)
        a.forget()
        a(f's_lshl_b32 s21, s83, 11\ns_add_u32 s21, s21, s84\ns_mov_b32 s23, 0x8000\nL_F_km:')
        for sl in range(4):
            a(f'buffer_load_dwordx4 {vr(KM+4*sl,4)}, {l16}, {WS}, s84 offen offset:{1024*sl} sc1')
        for sl in range(2):
            a(f'buffer_load_dwordx2 {vr(VM+2*sl,2)}, v{tv("vml")}, {WS}, s21 offen offset:{1024*sl} sc1')
        if dp:
            a(f's_cmp_lt_u32 {S_FS}, 62\ns_cbranch_scc1 L_F_kmok')
            vq = list(a.vq)
            a(f'v_max3_u32 v118, v{KM}, v{KM+1}, v{KM+2}')
            for r in range(KM + 3, KM + 19, 2): a(f'v_max3_u32 v118, v118, v{r}, v{r+1}')
            a(f'v_max_u32 v118, v118, v{VM+3}\nv_cmp_eq_u32 vcc, -1, v118\ns_cbranch_vccz L_F_kmok')
            if o.get('dsl', 0): a(f's_sleep {o.get("dsl")}')
            a(f's_sub_u32 s23, s23, 1\ns_cbranch_scc0 L_F_km\nL_F_kmok:')
            a.vq = vq
        for sl in range(4):
            a(f'{mf32} {vr(SM,4)}, {vr(KM+4*sl,4)}, {vr(Q+4*sl,4)}, {vr(SM,4) if sl else 0}')
        fm(2)
        a(f'v_max3_f32 v{MX}, v{MX}, v{SM}, v{SM+1}')
        self.xlane('v_max_f32', MX, 118)
        a(f'v_mul_f32 v{MX}, s80, v{MX}')
        E = [S0 + i for i in range(4)] + [S1 + i for i in range(4)] + [SM, SM + 1]
        for e in E: a(f'v_fma_f32 v{e}, v{e}, s80, -v{MX}')
        for e in E: a(f'v_exp_f32 v{e}, v{e}')
        a(f'{cvt} v{PX}, v{S0}, v{S0+1}\n{cvt} v{PX+1}, v{S0+2}, v{S0+3}\n{cvt} v{PX+2}, v{S1}, v{S1+1}\n{cvt} v{PX+3}, v{S1+2}, v{S1+3}')
        a(f'{cvt} v{PM}, v{SM}, v{SM+1}\nv_mov_b32 v{PM+1}, 0\nv_mov_b32 v{PM+2}, 0\n{cvt} v{PM+3}, v{SM}, v{SM+1}')
        for sl in range(2):
            f1, f2 = V + 8 * sl, V + 8 * sl + 4
            for p in range(2):
                d = vr(D + 8 * sl + 4 * p, 4)
                X = f1 if p == 0 else f2; Y = f2 + 2 if p == 0 else f1 + 2
                a(f'{mf16} {d}, {vr(X,2)}, {vr(PX,2)}, 0')
                a(f'{mf16} {d}, {vr(Y,2)}, {vr(PX+2,2)}, {d}')
                a(f'{mf16} {d}, {vr(VM+2*sl,2)}, {vr(PM+2*p,2)}, {d}')
        LS = 119
        a(f'v_add_f32 v{LS}, v{E[0]}, v{E[1]}')
        for e in E[2:]: a(f'v_add_f32 v{LS}, v{LS}, v{e}')
        self.xlane('v_add_f32', LS, 118)
        a(f'v_rcp_f32 v{LS}, v{LS}\nv_mul_f32 v{LS}, v{LS}, v{G}')
        for i in range(16): a(f'v_mul_f32 v{D+i}, v{D+i}, v{LS}')
        for i in range(8): a(f'{cvt} v{D+i}, v{D+2*i}, v{D+2*i+1}')
        fm(3)
        for sl in range(2): a(f'ds_write_b128 v{tv("oxw")}, {vr(D+4*sl,4)} offset:{1024*sl}')
        a.wait(lgkm=0)
        a('s_barrier')
        for qt in range(2):
            for sl in range(4):
                a(f'ds_read_b128 {vr(OF+16*qt+4*sl,4)}, v{tv("oxr")} offset:{4096*qt+1024*sl}')
        a(f's_xor_b32 s86, s86, {1<<20}\ns_lshl_b32 s21, {S_RANK}, 10\ns_add_u32 s21, s21, s86\ns_lshl_b32 s22, {S_W}, 17\ns_add_u32 s21, s21, s22')
        a(f's_cmp_eq_u32 {S_TFAST}, 0\ns_cbranch_scc1 L_F_slowst')
        lq0 = list(a.lq)
        for cf in ('', 'sc1'):
            if cf: a('L_F_slowst:'); a.lq = list(lq0)
            def fin(k):
                qt, T = divmod(k, 4)
                r = AC + 32 * qt + 8 * T
                for i in range(4): a(f'{cvt} v{r+i}, v{r+2*i}, v{r+2*i+1}')
                a(f'buffer_store_dwordx4 {vr(r,4)}, {l16}, {WS}, s21 offen {cf}')
                a(f's_add_u32 s21, s21, {32768 if T < 3 else 13 * 32768}')
            for k in range(8):
                qt, T = divmod(k, 4)
                for ks in range(4):
                    for p in range(2):
                        d = vr(AC + 32 * qt + 8 * T + 4 * p, 4)
                        a(f'{mf32} {d}, {ar(wof(T,p,ks),4)}, {vr(OF+16*qt+4*ks,4)}, {d}')
                if k: fin(k - 1)
            fin(7)
            fm(4)
            a.wait(vm=0)
            fm(5)
            a(f'buffer_store_dword v{tv("oxr")}, v{tv("one")}, {WS}, s87 offen {cf}')
            if not cf: a('s_branch L_F_stdone')
        a('L_F_stdone:')
        self.tstamp(5, 252)
        a(f's_lshl_b32 s21, {S_FS}, 9\ns_and_b32 s22, {S_RANK}, 12\ns_lshl_b32 s22, s22, 5\ns_add_u32 s21, s21, s22\ns_add_u32 s21, s21, {hex(L.F_P)}')
        self.spin4(f'v{tv("pfl")}', 's21', Q, n=1, sleep=0)
        fm(6)
        if o.get('fmark'):
            a(f's_lshl_b32 s21, {S_TEAM}, 5\ns_add_u32 s21, s21, {S_RANK}\ns_lshl_b32 s21, s21, 7\ns_add_u32 s21, s21, {hex(L.DBG + 65536)}\ns_waitcnt lgkmcnt(0)')
            for i in range(1, 7): a(f'v_mov_b32 v252, s{88+2*i}\nbuffer_store_dword v252, v{V_Z}, {WS}, s21 offen offset:{4*(15+i)}')
        a.forget()
        a(f's_lshl_b32 s21, {S_RANK}, 15\ns_add_u32 s21, s21, s86')
        for l in range(8):
            a(f'buffer_load_dwordx4 {vr(Q+4*l,4)}, v{tv("fpld")}, {WS}, s21 offen sc1')
            if l < 7: a('s_add_u32 s21, s21, 4096')
        for l in range(8):
            a(f'{mf32} {vr(S0,4)}, {vr(tv("self0"),4)}, {vr(Q+4*l,4)}, {vr(S0,4) if l else 0}')
        a(f's_lshl_b32 s21, {S_FS}, 5\ns_and_b32 s22, {S_RANK}, 16\ns_add_u32 s21, s21, s22\ns_lshl_b32 s21, s21, 10\ns_and_b32 s22, {S_RANK}, 15\ns_lshl_b32 s22, s22, 6\ns_add_u32 s21, s21, s22')
        a(f'{cvt} v{S0}, v{S0}, v{S0+1}\n{cvt} v{S0+1}, v{S0+2}, v{S0+3}')
        a(f'buffer_store_dwordx2 {vr(S0,2)}, v{tv("outst")}, {ST}, s21 offen')
        if o.get('wb'):
            lab = a.newlabel('wb')
            a(f's_cmp_lt_u32 {S_FS}, 50\ns_cbranch_scc1 {lab}\ns_cmp_ge_u32 {S_FS}, 61\ns_cbranch_scc1 {lab}')
            a(f's_or_b32 s21, {S_RANK}, {S_W}\ns_cmp_lg_u32 s21, 0\ns_cbranch_scc1 {lab}\nbuffer_wbl2 sc1\n{lab}:')
        a(f's_add_u32 {S_FS}, {S_FS}, {6 if o.get("nb", 1) else 7}\ns_cmp_lt_u32 {S_FS}, 64\ns_cbranch_scc1 L_F_loop')
        a.wait(vm=0)
        self.tstamp(6, 40)
        self.span(40)
        self.note(9, 40)
        a('s_endpgm')
```

```python
import sys, math
from asmlib import Asm
import layout as L

KNAME = 'gated_mix__memory_aug_recurrent_mem_tr__sliding_local_dilated__prompt_kernel'

from gen_common import *

class Gen:
    def __init__(self, opt):
        self.o = opt
        self.a = Asm()

    def prologue(self):
        a = self.a; o = self.o
        a(f'''
        s_cmp_ge_u32 s2, 256
        s_cbranch_scc1 L_exit
        {'s_memrealtime s[30:31]' if (o.get('stamp') or o.get('span') or o.get('span2') or o.get('lite')) else ''}
        s_load_dwordx16 s[32:47], s[0:1], 0
        s_load_dwordx8 s[48:55], s[0:1], 64
        s_load_dwordx4 s[56:59], s[0:1], 96
        s_getreg_b32 s20, hwreg(HW_REG_XCC_ID)
        v_lshrrev_b32 v1, 6, v0
        s_and_b32 s20, s20, 7
        v_readfirstlane_b32 {S_W}, v1
        s_mov_b32 {SPIN}, 0x400000
        ''')
        if o.get('fake_xcc'):
            a('s_and_b32 s20, s2, 1\ns_add_u32 s20, s20, 1')
        if o.get('fake_perm'):
            a('s_xor_b32 s2, s2, 0x55\ns_lshl_b32 s21, s2, 3\ns_lshr_b32 s2, s2, 5\ns_or_b32 s2, s2, s21\ns_and_b32 s2, s2, 255')
        a.wait(lgkm=0)
        if o.get('touch'):
            MBy = 1 << 20
            touch = [(p, off) for p in (P_WO, P_WQ, P_WK, P_WV) for off in (0, 2 * MBy, 4 * MBy - 128)]
            touch += [(P_X, 2 * MBy - 128), (P_GATE, 0), (P_MEM0, 0), (P_WQKV, 0), (P_WQKV, 512 * 3072 - 128), (P_WOB, 0), (P_DBG, 0)]
            touch += [(P_WS, L.GATE + 16384), (P_WS, L.RIN + MBy), (None, 0)]
            a(f'v_mov_b32 v30, s{P_X}\nv_mov_b32 v31, s{P_X+1}')
            for i, (p, off) in enumerate(touch):
                if p is None: a('s_getpc_b64 s[22:23]\ns_add_u32 s22, s22, 0x8000\ns_addc_u32 s23, s23, 0')
                elif off: a(f's_add_u32 s22, s{p}, {hex(off)}\ns_addc_u32 s23, s{p+1}, 0')
                lo, hi = ('s22', 's23') if (off or p is None) else (f's{p}', f's{p+1}')
                a(f'v_writelane_b32 v30, {lo}, {i+1}\nv_writelane_b32 v31, {hi}, {i+1}')
            a('global_load_dword v29, v[30:31], off')
        set_srd(a, 4, P_WS, L.WS_BYTES)
        set_srd(a, 12, P_DBG, 256)
        a(f'''
        s_mul_i32 s21, s20, 24
        s_add_u32 s21, s21, 40
        s_cmp_eq_u32 s20, 0
        s_cselect_b32 s21, 0, s21
        s_mov_b32 s29, s21
        s_lshr_b32 {S_RANK}, s2, 3
        s_lshl_b32 s28, 1, {S_RANK}
        s_mov_b32 {S_TEAM}, s20
        s_mov_b32 s19, 0
        v_mov_b32 v2, s21
        v_mov_b32 v63, s28
        v_cmp_ne_u32 vcc, 0, v0
        v_mov_b32 v4, {hex(L.OOB)}
        v_cndmask_b32 v2, v2, v4, vcc
        ''')
        a(f'buffer_atomic_or v63, v2, {ST}, 0 offen sc0')
        set_srd(a, 8, P_X, 2048 * 1024)
        a(f'''
        v_and_b32 v5, 63, v0
        v_lshlrev_b32 v5, 4, v5
        s_lshl_b32 s22, s2, 13
        s_lshl_b32 s23, {S_W}, 11
        s_add_u32 s22, s22, s23
        buffer_load_dwordx4 v[8:11], v5, {SA}, s22 offen
        buffer_load_dwordx4 v[12:15], v5, {SA}, s22 offen offset:1024
        ''')
        set_srd(a, 24, P_GATE, 1024)
        a(f'buffer_load_dwordx4 v[16:19], v5, s[24:27], 0 offen')
        a(f'''
        v_mov_b32 v20, -1
        v_mov_b32 v21, -1
        v_mov_b32 v22, -1
        v_mov_b32 v23, -1
        v_mov_b32 v24, 0
        v_mov_b32 v25, 0
        v_mov_b32 v26, 0
        v_mov_b32 v27, 0
        v_lshlrev_b32 v6, 4, v0
        s_lshl_b32 s22, s2, 12
        s_add_u32 s22, s22, {hex(L.RIN)}
        buffer_store_dwordx4 v[20:23], v6, {WS}, s22 offen sc1
        v_cmp_le_u32 vcc, 0x80, v0
        s_lshl_b32 s22, s2, 11
        s_add_u32 s22, s22, {hex(L.FLG)}
        v_cndmask_b32 v7, v6, v4, vcc
        ''')
        if o.get('keep_kv_flags'):
            a(f's_cmp_lt_u32 s2, 64\ns_cselect_b32 s22, {hex(L.OOB)}, s22')
        a(f'buffer_store_dwordx4 v[24:27], v7, {WS}, s22 offen sc1')
        self.vq_role = list(a.vq)
        a('L_role_ok:')
        a(f's_cmp_eq_u32 {S_TEAM}, 0\ns_cbranch_scc1 L_R')
        a('s_branch L_worker')

    def confirm_role(self):
        a = self.a
        ok = a.newlabel('cf'); sk = a.newlabel('cfs')
        a(f's_cmp_eq_u32 s19, 1\ns_cbranch_scc1 {ok}')
        a(f'v_mov_b32 v62, {L.LDS_BYTES - 32}\ns_cmp_lg_u32 {S_W}, 0\ns_cbranch_scc1 {sk}')
        sv = list(a.vq)
        a('v_readfirstlane_b32 s21, v63\nv_mov_b32 v63, s21\nds_write_b32 v62, v63')
        a.wait(lgkm=0)
        a.vq = sv
        a(f'{sk}:\ns_barrier\nds_read_b32 v61, v62')
        a(f'v_readfirstlane_b32 s21, v61\ns_mov_b32 s19, 1\ns_and_b32 s22, s21, s28\ns_cbranch_scc1 L_reclaim\n{ok}:')

    def reclaim(self):
        a = self.a
        a.auto_vm = False
        set_srd(a, 12, P_DBG, 256)
        a(f"""
        L_reclaim:
        s_waitcnt vmcnt(0)
        s_barrier
        s_mov_b32 s12, s{P_DBG}
        s_mov_b32 s13, s{P_DBG+1}
        s_mov_b32 s14, 256
        s_mov_b32 s15, 0x20000
        v_mov_b32 v4, {hex(L.OOB)}
        v_cmp_ne_u32 vcc, 0, v0
        s_cmp_lg_u32 {S_W}, 0
        s_cbranch_scc1 L_rc_done
        v_mov_b32 v2, s29
        v_cndmask_b32 v2, v2, v4, vcc
        v_mov_b32 v63, 1
        buffer_atomic_add v63, v2, {ST}, 0 offen offset:8 sc0
        v_and_b32 v2, 7, v0
        v_mul_u32_u24 v61, 24, v2
        v_add_u32 v61, 40, v61
        v_cmp_eq_u32 vcc, 0, v2
        v_cndmask_b32 v61, v61, v2, vcc
        s_waitcnt vmcnt(0)
        v_readfirstlane_b32 s28, v63
        s_mov_b32 s21, {SPIN}
        L_ov_poll:
        buffer_load_dword v60, v61, {ST}, 0 offen sc1
        buffer_load_dword v63, v61, {ST}, 0 offen offset:8 sc1
        s_waitcnt vmcnt(0)
        s_mov_b32 s22, 0
        """)
        for x in range(8): a(f'v_readlane_b32 s{64+x}, v60, {x}\nv_readlane_b32 s{72+x}, v63, {x}')
        a('s_nop 1')
        for x in range(8): a(f's_bcnt1_i32_b32 s23, s{64+x}\ns_add_u32 s22, s22, s23\ns_add_u32 s22, s22, s{72+x}')
        a(f"""
        s_cmp_ge_u32 s22, 256
        s_cbranch_scc1 L_ov_have
        s_sub_u32 s21, s21, 1
        s_cbranch_scc1 L_ov_none
        s_sleep 4
        s_branch L_ov_poll
        L_ov_have:
        s_mov_b32 s22, 0
        """)
        for x in range(8):
            a(f"""
            s_bcnt0_i32_b32 s{80+x}, s{64+x}
            s_cmp_eq_u32 s20, {x}
            s_cselect_b32 s21, s{64+x}, s21
            s_cselect_b32 s29, s{80+x}, s29
            s_max_u32 s23, s{72+x}, s{80+x}
            s_sub_u32 s23, s23, s{80+x}
            s_cmp_gt_u32 s20, {x}
            s_cselect_b32 s23, s23, 0
            s_add_u32 s22, s22, s23
            """)
        a(f's_cmp_lt_u32 s28, s29\ns_cbranch_scc1 L_ov_bit\ns_sub_u32 s28, s28, s29\ns_add_u32 s22, s22, s28')
        for x in range(8):
            a(f"""
            s_max_u32 s23, s{80+x}, s{72+x}
            s_sub_u32 s23, s23, s{72+x}
            s_mov_b32 {S_TEAM}, {x}
            s_mov_b32 s21, s{64+x}
            s_add_u32 s28, s{72+x}, s22
            s_cmp_lt_u32 s22, s23
            s_cbranch_scc1 L_ov_bit
            s_sub_u32 s22, s22, s23
            """)
        a(f"""
        L_ov_none:
        s_mov_b32 {S_TEAM}, 8
        s_mov_b32 {S_RANK}, 0
        s_branch L_rc_have
        L_ov_bit:
        s_ff0_i32_b32 {S_RANK}, s21
        s_and_b32 {S_RANK}, {S_RANK}, 31
        s_bitset1_b32 s21, {S_RANK}
        s_sub_u32 s28, s28, 1
        s_cbranch_scc0 L_ov_bit
        L_rc_have:
        s_lshl_b32 s21, {S_TEAM}, 5
        s_add_u32 s21, s21, {S_RANK}
        v_mov_b32 v63, s21
        ds_write_b32 v62, v63
        s_waitcnt lgkmcnt(0)
        L_rc_done:
        s_barrier
        ds_read_b32 v63, v62
        s_waitcnt lgkmcnt(0)
        v_readfirstlane_b32 s21, v63
        s_nop 0
        s_lshr_b32 {S_TEAM}, s21, 5
        s_and_b32 {S_RANK}, s21, 31
        s_cmp_lt_u32 {S_TEAM}, 8
        s_cbranch_scc1 L_role_ok
        """)
        a.forget(); a.auto_vm = True

    def gate_and_store(self, tmp=28):
        a = self.a
        a('v_mov_b32 v20, 0\nv_mov_b32 v21, 0')
        for i in range(4):
            a(f'v_dot2c_f32_bf16 v20, v{8+i}, v{16+i}\nv_dot2c_f32_bf16 v21, v{12+i}, v{16+i}')
        a('s_nop 2')
        a('v_permlane32_swap_b32 v20, v21\nv_add_f32 v20, v20, v21')
        a('v_mov_b32 v21, v20\nv_permlane16_swap_b32 v20, v21\nv_add_f32 v20, v20, v21')
        for sh in (8, 4, 2, 1):
            a(f'v_add_f32_dpp v20, v20, v20 row_ror:{sh} row_mask:0xf bank_mask:0xf')
        a(f'''
        v_mul_f32 v20, 0xbfb8aa3b, v20
        v_exp_f32 v20, v20
        v_add_f32 v20, 1.0, v20
        v_rcp_f32 v20, v20
        v_and_b32 v21, 63, v0
        v_lshrrev_b32 v22, 5, v21
        v_lshlrev_b32 v22, 2, v22
        v_and_b32 v21, 31, v21
        v_cmp_ne_u32 vcc, 0, v21
        v_mov_b32 v23, {hex(L.OOB)}
        v_cndmask_b32 v22, v22, v23, vcc
        s_lshl_b32 s22, s2, 5
        s_lshl_b32 s23, {S_W}, 3
        s_add_u32 s22, s22, s23
        s_add_u32 s22, s22, {hex(L.GATE)}
        buffer_store_dword v20, v22, {WS}, s22 offen sc1
        ''')

    def signal_init(self, tid=0, t=20, barrier=True):
        a = self.a
        lab = a.newlabel('sig')
        set_srd(a, 12, P_DBG, 256)
        if barrier: a('s_barrier')
        a(f'''
        s_cmp_lg_u32 {S_W}, 0
        s_cbranch_scc1 {lab}
        s_and_b32 s21, s2, 3
        s_lshl_b32 s21, s21, 6
        s_add_u32 s21, s21, 60
        v_mov_b32 v{t}, s21
        v_mov_b32 v{t+1}, 1
        v_mov_b32 v{t+2}, {hex(L.OOB)}
        v_and_b32 v{t+3}, 63, v{tid}
        v_cmp_ne_u32 vcc, 0, v{t+3}
        v_cndmask_b32 v{t}, v{t}, v{t+2}, vcc
        buffer_atomic_add v{t+1}, v{t}, {ST}, 0 offen
        {lab}:
        ''')

    def wait_init(self, t0=20, tid=0, sleep=16):
        a = self.a
        lab = a.newlabel('wi'); ok = a.newlabel('wiok')
        set_srd(a, 12, P_DBG, 256)
        sv = a.auto_vm; a.auto_vm = False
        a(f'''
        v_and_b32 v{t0}, 3, v{tid}
        v_lshlrev_b32 v{t0}, 6, v{t0}
        v_add_u32 v{t0}, 60, v{t0}
        s_mul_i32 s21, {S_TEAM}, 24
        s_add_u32 s21, s21, 40
        s_cmp_eq_u32 {S_TEAM}, 0
        s_cselect_b32 s21, 0, s21
        v_and_b32 v{t0+2}, 1, v{tid}
        v_lshl_add_u32 v{t0+2}, v{t0+2}, 3, s21
        s_mov_b32 s23, {SPIN}
        {lab}:
        buffer_load_dword v{t0+1}, v{t0}, {ST}, 0 offen sc1
        buffer_load_dword v{t0+3}, v{t0+2}, {ST}, 0 offen sc1
        s_waitcnt vmcnt(0)
        v_readlane_b32 s22, v{t0+3}, 1
        v_readlane_b32 s84, v{t0+1}, 0
        v_readlane_b32 s85, v{t0+1}, 1
        v_readlane_b32 s86, v{t0+1}, 2
        v_readlane_b32 s87, v{t0+1}, 3
        v_readlane_b32 s21, v{t0+3}, 0
        s_nop 1
        s_bcnt1_i32_b32 s21, s21
        s_add_u32 s21, s21, s22
        s_add_u32 s84, s84, s85
        s_add_u32 s86, s86, s87
        s_add_u32 s84, s84, s86
        s_cmp_ge_u32 s84, 256
        s_cbranch_scc1 {ok}
        s_sleep {sleep}
        s_sub_u32 s23, s23, 1
        s_cbranch_scc0 {lab}
        {ok}:
        ''')
        a.auto_vm = sv
        a.forget()

    def tstamp(self, i, t):
        if not (self.o.get('stamp') or (self.o.get('lite') and i == 6)): return
        a = self.a
        lab = a.newlabel('ts')
        a(f'''
        s_cmp_lg_u32 {S_W}, 0
        s_cbranch_scc1 {lab}
        s_memrealtime s[90:91]
        s_lshl_b32 s92, {S_TEAM}, 5
        s_add_u32 s92, s92, {S_RANK}
        s_lshl_b32 s92, s92, 7
        s_add_u32 s92, s92, {hex(L.DBG + 65536 + 4 * i)}
        s_waitcnt lgkmcnt(0)
        v_mov_b32 v{t}, s90
        v_mov_b32 v{t+1}, 0
        buffer_store_dword v{t}, v{t+1}, {WS}, s92 offen
        {'v_mov_b32 v%d, s30' % t if i in (1, 6) else ''}
        {'buffer_store_dword v%d, v%d, %s, s92 offen offset:%d' % (t, t+1, WS, 124 if i == 1 else 4) if i in (1, 6) else ''}
        s_waitcnt vmcnt(0)
        {lab}:
        ''')

    def span(self, t):
        if not self.o.get('span'): return
        a = self.a
        set_srd(a, 12, P_DBG, 256)
        a(f'''
        s_waitcnt vmcnt(0)
        s_memrealtime s[90:91]
        s_not_b32 s30, s30
        v_mov_b32 v{t}, 16
        v_mov_b32 v{t+1}, s30
        s_waitcnt lgkmcnt(0)
        v_mov_b32 v{t+2}, s90
        s_mov_b64 exec, 1
        buffer_atomic_umax v{t+1}, v{t}, {ST}, 0 offen
        buffer_atomic_umax v{t+2}, v{t}, {ST}, 0 offen offset:4
        ''')
    def note(self, slot, t, rank=0):
        if not self.o.get('span2'): return
        a = self.a
        lab = a.newlabel('nt')
        a(f's_cmp_lg_u32 {S_W}, 0\ns_cbranch_scc1 {lab}\ns_cmp_lg_u32 {S_RANK}, {rank}\ns_cbranch_scc1 {lab}\ns_cmp_gt_u32 {S_TEAM}, 1\ns_cbranch_scc1 {lab}')
        set_srd(a, 92, P_DBG, 256)
        a(f'''
        s_memrealtime s[90:91]
        v_mov_b32 v{t}, {4*slot}
        s_waitcnt lgkmcnt(0)
        s_sub_u32 s90, s90, s30
        v_mov_b32 v{t+1}, s90
        buffer_store_dword v{t+1}, v{t}, s[92:95], 0 offen
        {lab}:
        ''')
    def mark(self, i):
        if self.o.get('stamp'): self.a.raw(f'    s_memrealtime s[{82+2*i if i < 4 else 86+2*i}:{83+2*i if i < 4 else 87+2*i}]')
    def dump_marks(self, t):
        if not self.o.get('stamp'): return
        a = self.a
        a(f's_lshl_b32 s92, {S_TEAM}, 5\ns_add_u32 s92, s92, {S_RANK}\ns_lshl_b32 s92, s92, 7\ns_add_u32 s92, s92, {hex(L.DBG + 65536)}\ns_waitcnt lgkmcnt(0)\nv_mov_b32 v{t+1}, 0')
        for i in range(7):
            a(f'v_mov_b32 v{t}, s{82+2*i if i < 4 else 86+2*i}\nbuffer_store_dword v{t}, v{t+1}, {WS}, s92 offen offset:{4*(8+i)}')

    def dma_chunk(self, voff, soff, stride, n=4):
        a = self.a
        for i in range(n):
            a(f'buffer_load_dwordx4 {voff}, {SA}, {soff} offen lds')
            a(f's_add_u32 m0, m0, 1024')
            if i < n - 1: a(f's_add_u32 {soff}, {soff}, {16*stride}')

    def dma_block(self, voff, soff, stride):
        a = self.a
        for i in range(16):
            a(f'buffer_load_dwordx4 {voff}, {SA}, {soff} offen lds')
            if i < 15: a(f's_add_u32 m0, m0, 1056\ns_add_u32 {soff}, {soff}, {stride}')

    def load_table(self, label, dst, ndw, tmp):
        a = self.a
        pc = a.newlabel('pc')
        a(f'''
        s_getpc_b64 s[12:13]
        {pc}:
        s_add_u32 s12, s12, {label}-{pc}
        s_addc_u32 s13, s13, 0
        s_mov_b32 s14, {256*ndw*4}
        s_mov_b32 s15, 0x20000
        v_mul_u32_u24 v{tmp}, {ndw*4}, v0
        ''')
        for i in range(0, ndw, 4):
            a(f'buffer_load_dwordx4 {vr(dst+i,4)}, v{tmp}, {ST}, 0 offen offset:{i*4}')

from rrole import RRole
from workers import Workers

class Full(Gen, RRole, Workers):
    def build(self):
        a = self.a
        self.prologue()
        self.r_role()
        self.worker_role()
        self.reclaim()
        a('L_exit:\ns_endpgm')
        a.timed = not self.o.get('untimed')
        n = a.pad_hazards()
        hdr = open('cdna_kernels/' + KNAME[:-7] + '.s.ref').read().split('\n')
        hdr = [h for h in hdr if h.startswith(';') and '@launch' not in h and 'Override' not in h and 'grid=ceil' not in h]
        txt = '\n'.join(hdr) + f'\n; @launch grid=(256,1,1) block=(256,1,1) lds={L.LDS_BYTES}\n'
        txt += f'.amdgcn_target "amdgcn-amd-amdhsa--gfx950"\n.text\n.globl {KNAME}\n.p2align 8\n.type {KNAME},@function\n{KNAME}:\n'
        txt += a.text()
        txt += self.tables()
        txt += f'''.section .rodata,"a"
.p2align 6
.amdhsa_kernel {KNAME}
  .amdhsa_next_free_vgpr 512
  .amdhsa_next_free_sgpr 102
  .amdhsa_accum_offset 256
  .amdhsa_group_segment_fixed_size 0
  .amdhsa_kernarg_size 112
  .amdhsa_user_sgpr_count 2
  .amdhsa_user_sgpr_kernarg_segment_ptr 1
  .amdhsa_system_sgpr_workgroup_id_x 1
  .amdhsa_float_denorm_mode_32 3
.end_amdhsa_kernel
'''
        return txt, n

if __name__ == '__main__':
    opt = {}
    out = 'cdna_kernels/' + KNAME[:-7] + '.s'
    for arg in sys.argv[1:]:
        if arg.startswith('-o'): out = arg[2:]
        elif '=' in arg:
            k, v = arg.split('='); opt[k] = int(v)
        else: opt[arg] = 1
    txt, n = Full(opt).build()
    open(out, 'w').write(txt)
    print('written', out, len(txt), 'bytes; hazard pad states', n)
```

```python
import layout as L
from gen_common import *
import struct
def f2u(x): return struct.unpack('<I', struct.pack('<f', x))[0]
mf16 = 'v_mfma_f32_16x16x16_bf16'; mf32 = 'v_mfma_f32_16x16x32_bf16'; cvt = 'v_cvt_pk_bf16_f32'

TB = 0
NAMES = list(L.w_table().keys())
def tv(n): return TB + NAMES.index(n)
V_TID = 24
XF = 48
ACC = 64
S_ISB, S_SEG, S_END, S_STEP, S_BASE, S_STR = 's61', 's62', 's63', 's64', 's65', 's66'
S_XB, S_PF, S_PF2, S_A, S_B, S_HEAD = 's67', 's68', 's69', 's70', 's71', 's72'
S_FIRST = 's73'
S_TFAST = 's89'
SX = 's[24:27]'

def wfrag(m, ks, p):
    c = 'qkv'.index(m) * 8 + ks // 2
    r = c * 16 + p * 8 + (ks % 2) * 4
    return ar(r, 4) if r < 256 else vr(128 + r - 256, 4)

class Workers:
    def tables(self):
        return L.table_text('T_R', L.r_table()) + L.table_text('T_W', L.w_table())

    def xlane(self, op, x, t):
        a = self.a
        a(f'v_mov_b32 v{t}, v{x}\nv_permlane16_swap_b32 v{x}, v{t}\n{op} v{x}, v{x}, v{t}')
        a(f'v_mov_b32 v{t}, v{x}\nv_permlane32_swap_b32 v{x}, v{t}\n{op} v{x}, v{x}, v{t}')

    def x_dma(self, piece=None):
        a = self.a
        if piece is not None and piece >= 0:
            a(f'buffer_load_dwordx4 v{tv("xg")}, {SX}, s21 offen lds')
            a('s_add_u32 m0, m0, 1024')
            a(f's_add_u32 s21, s21, {16384 if piece % 2 == 0 else hex((64 - 16384) & 0xFFFFFFFF)}')
            return
        a(f's_lshl_b32 s21, {S_A}, 15\ns_lshl_b32 s22, {S_W}, 8\ns_add_u32 s21, s21, s22')
        a(f's_lshl_b32 s22, {S_W}, 13\ns_add_u32 m0, s22, {S_XB}')
        if piece is not None: return
        for k in range(4):
            for tt in range(2):
                a(f'buffer_load_dwordx4 v{tv("xg")}, {SX}, s21 offen lds')
                a('s_add_u32 m0, m0, 1024')
                a(f's_add_u32 s21, s21, {16384 if tt == 0 else hex((64 - 16384) & 0xFFFFFFFF)}')

    def worker_role(self):
        a = self.a; o = self.o
        a('L_worker:')
        a.vq = list(self.vq_role)
        self.mark(0)
        if o.get('no_workers'):
            self.gate_and_store(); a.wait(vm=0); self.signal_init(); a('s_endpgm'); return
        nb = o.get('nb', 1)
        a(f'''
        s_sub_u32 s21, {S_TEAM}, 1
        {'s_add_u32 s22, s21, 6' + chr(10) + 's_sub_u32 s21, s21, 1' + chr(10) + 's_cselect_b32 s21, s22, s21' if nb else ''}
        s_lshl_b32 s21, s21, 5
        s_add_u32 s21, s21, {S_RANK}
        s_cmp_ge_u32 s21, 192
        s_cselect_b32 {S_ISB}, 1, 0
        s_cbranch_scc1 L_w_B
        s_mul_i32 {S_HEAD}, s21, 43691
        s_lshr_b32 {S_HEAD}, {S_HEAD}, 18
        s_mul_i32 s22, {S_HEAD}, 6
        s_sub_u32 {S_SEG}, s21, s22
        s_mov_b32 {S_END}, 64
        s_mov_b32 {S_STEP}, 6
        s_mov_b32 {S_FIRST}, 0
        s_movk_i32 {S_STR}, 8192
        s_mov_b32 s75, {4<<20}
        s_branch L_w_dec
        L_w_B:
        s_sub_u32 s21, s21, 192
        s_lshr_b32 {S_HEAD}, s21, 3
        s_and_b32 s21, s21, 7
        s_lshl_b32 {S_FIRST}, s21, 3
        s_add_u32 {S_END}, {S_FIRST}, 8
        s_max_u32 {S_SEG}, {S_FIRST}, 1
        s_sub_u32 {S_SEG}, {S_SEG}, 1
        s_mov_b32 {S_STEP}, 1
        s_movk_i32 {S_STR}, 3072
        s_mov_b32 s75, {512*3072}
        L_w_dec:
        v_and_b32 v1, 63, v0
        v_lshrrev_b32 v2, 4, v1
        v_and_b32 v3, 15, v1
        v_lshlrev_b32 v3, 4, v3
        s_lshl_b32 s79, {S_STR}, 4
        v_mul_lo_u32 v2, v2, s79
        v_add_u32 v28, v2, v3
        s_mul_i32 s78, {S_W}, {L.BLK}
        s_lshl_b32 s77, {S_HEAD}, 8
        s_lshl_b32 s79, {S_STR}, 6
        ''')
        nwarm = 0
        if o.get('mall'):
            a(f's_sub_u32 s21, {S_TEAM}, 1\ns_lshl_b32 s21, s21, 5\ns_add_u32 s21, s21, {S_RANK}\ns_lshl_b32 s21, s21, 2\ns_add_u32 s21, s21, {S_W}')
            a('v_lshlrev_b32 v29, 7, v1\ns_mov_b32 s10, 0x400000\ns_mov_b32 s11, 0x20000')
            for i in range(2):
                a(f'''
                s_add_u32 s22, s21, {896 * i}
                s_cmp_ge_u32 s22, 512
                s_cselect_b32 s8, s{P_WV}, s{P_WK}
                s_cselect_b32 s9, s{P_WV+1}, s{P_WK+1}
                s_and_b32 s23, s22, 511
                s_lshl_b32 s23, s23, 13
                s_cmp_ge_u32 s22, 1024
                s_cselect_b32 s23, {hex(L.OOB)}, s23
                buffer_load_dword v{30+i%2}, v29, {SA}, s23 offen
                ''')
        groups = [(m, b) for m in 'kvq' for b in range(2)]
        def issue(gi):
            m, b = groups[gi]
            if b == 0:
                ptr = {'q': P_WQ, 'k': P_WK, 'v': P_WV}[m]
                a(f"""
                s_cmp_eq_u32 {S_ISB}, 1
                s_cselect_b32 s8, s{P_WQKV}, s{ptr}
                s_cselect_b32 s9, s{P_WQKV+1}, s{ptr+1}
                s_mov_b32 s10, s75
                s_mov_b32 s11, 0x20000
                s_cselect_b32 s76, {'qkv'.index(m) * 1024}, 0
                s_add_u32 s76, s76, s77
                """)
            a(f's_add_u32 m0, s78, {(gi % 2) * L.GRP}')
            a(f's_add_u32 s21, {S_W}, {4 * b}\ns_mul_i32 s21, s21, s79\ns_add_u32 s21, s21, s76')
            self.dma_block('v28', 's21', S_STR)
        issue(0)
        self.load_table('T_W', 96, 24, 7)
        self.confirm_role()
        issue(1)
        self.mark(1)
        self.gate_and_store()
        a(f'v_mov_b32 v{V_TID}, v0')
        for i in range(24): a(f'v_mov_b32 v{TB+i}, v{96+i}')
        a(f'v_add_u32 v29, {L.GRP}, v{tv("trp")}')
        set_srd(a, 24, P_X, 2048 * 1024)
        a(f's_mov_b32 {S_XB}, 0\ns_mov_b32 {S_A}, {S_SEG}')
        a.auto_vm = False
        def consume(gi):
            m, b = groups[gi]
            a('s_barrier')
            for x in range(4):
                for p in range(2):
                    for h in range(2):
                        f = wfrag(m, 2 * (4 * b + x) + h, p)
                        kind, base = f[0], int(f[2:f.index(':')])
                        for r in range(2):
                            a(f'ds_read_b64_tr_b16 {kind}[{base+2*r}:{base+2*r+1}], v{tv("trp") if gi % 2 == 0 else 29} offset:{x * L.BLK + 512*h + 4224*r + 32*p}')
            a.wait(lgkm=0)
            a('s_barrier')
        VX = 25
        KP, VP = 112, 116
        acc = lambda m, p, tt: ACC + 16 * 'qkv'.index(m) + 8 * p + 4 * tt
        def xr(ks):
            for tt in range(2):
                a(f'ds_read_b128 {vr(XF + 8*(ks%2) + 4*tt, 4)}, v{VX} offset:{(ks*2+tt)*1024}')
        def loop_head(lab, mats, nst):
            a(f'{lab}:')
            pm = o.get('pmark') and lab == 'L_P_kv'
            if pm: a.raw('    s_memtime s[82:83]')
            a(f's_waitcnt vmcnt({nst + 1})')
            a('s_barrier')
            if pm: a.raw('    s_memtime s[84:85]')
            a(f's_add_u32 {S_A}, {S_SEG}, {S_STEP}\ns_min_u32 {S_A}, {S_A}, 63\ns_xor_b32 {S_XB}, {S_XB}, 32768')
            self.x_dma(-1)
            if pm: a.raw('    s_memtime s[86:87]')
            xr(0)
            for ks in range(16):
                if ks < 15: xr(ks + 1)
                if ks == 9:
                    if pm: a.raw('    s_memtime s[94:95]')
                    a('s_waitcnt vmcnt(8)')
                    if pm: a.raw('    s_memtime s[96:97]')
                    a(f'buffer_store_dword v{tv("oxr")}, v{tv("one")}, {WS}, {S_PF} offen sc1')
                for m in mats:
                    for p in range(2):
                        for tt in range(2):
                            d = vr(acc(m, p, tt), 4)
                            x = vr(XF + 8 * (ks % 2) + 4 * tt, 4); w = wfrag(m, ks, p)
                            A, B = (w, x) if m != 'v' else (x, w)
                            a(f'{mf32} {d}, {A}, {B}, {d if ks else 0}')
                            if ks < 8 and m == mats[0] and p == 0 and tt == 0: self.x_dma(ks)
            if pm: a.raw('    s_memtime s[98:99]')
            a(f'v_xor_b32 v{VX}, 32768, v{VX}')
        def loop_tail(lab):
            a(f's_add_u32 {S_SEG}, {S_SEG}, {S_STEP}\ns_cmp_lt_u32 {S_SEG}, {S_END}\ns_cbranch_scc1 {lab}')
            a('s_waitcnt vmcnt(0)')
            a(f'buffer_store_dword v{tv("oxr")}, v{tv("one")}, {WS}, {S_PF} offen sc1')
            a('s_barrier')
        def start_loop():
            a(f's_mov_b32 {S_PF}, {hex(L.OOB)}\nv_mov_b32 v{VX}, v{tv("l16")}')
        def init_sync(marks=True, t=40):
            a.forget()
            if marks:
                self.dump_marks(t)
                self.tstamp(1, t)
            lab = a.newlabel('wz')
            a(f'v_mov_b32 v{t+4}, {L.LDS_BYTES - 16}\ns_cmp_lg_u32 {S_W}, 0\ns_cbranch_scc1 {lab}')
            self.wait_init(t0=t, tid=V_TID)
            a(f'v_mov_b32 v{t+5}, s21\nds_write_b32 v{t+4}, v{t+5}')
            a.wait(lgkm=0)
            a(f'{lab}:\ns_waitcnt vmcnt(0)\ns_barrier\nds_read_b32 v{t+5}, v{t+4}')
            a(f'v_readfirstlane_b32 s21, v{t+5}')
            a(f's_cmp_ge_u32 s21, 32\ns_cselect_b32 {S_TFAST}, 1, 0')
            if o.get('force_slow'): a(f's_mov_b32 {S_TFAST}, 0')
            self.tstamp(2, t)
        def a_epilogue(frs, foff, flagoff):
            a(f"""
            s_lshl_b32 s21, {S_SEG}, 5
            s_add_u32 s21, s21, {S_HEAD}
            s_lshl_b32 {S_PF}, s21, 6
            s_mul_i32 s21, s21, 24576
            s_mul_i32 s22, {S_W}, 6144
            s_add_u32 s21, s21, s22
            s_add_u32 s21, s21, {foff}
            s_lshl_b32 s23, {S_W}, 2
            s_add_u32 {S_PF}, {S_PF}, s23
            s_add_u32 {S_PF}, {S_PF}, {hex(L.F_KV + flagoff)}
            """)
            for f, (t0, t1) in enumerate(frs):
                o4 = 32 + 4 * f
                for i, t in enumerate((t0, t1)):
                    r = acc(*t)
                    a(f'{cvt} v{o4+2*i}, v{r}, v{r+1}\n{cvt} v{o4+2*i+1}, v{r+2}, v{r+3}')
                a(f'buffer_store_dwordx4 {vr(o4,4)}, v{tv("l16")}, {WS}, s21 offen offset:{1024*f} sc1')
        self.mark(2)
        for gi in range(2):
            a.wait(vm=17)
            if gi == 0: self.mark(3)
            consume(gi); issue(gi + 2)
        a.wait(vm=16); self.mark(4)
        consume(2)
        a(f's_cmp_eq_u32 {S_ISB}, 1\ns_cbranch_scc1 L_w_Bload')
        self.x_dma()
        self.signal_init(tid=V_TID, t=40, barrier=False)
        a.wait(vm=8); self.mark(5); self.mark(6)
        consume(3)
        a.forget()
        if not o.get('pmark'): self.dump_marks(40)
        self.tstamp(1, 40); self.note(7, 40)
        a('s_waitcnt vmcnt(0)')
        a(f's_mov_b32 {S_FIRST}, {S_SEG}')
        start_loop()
        loop_head('L_P_kv', 'kv', 4)
        a_epilogue([[('k', 0, 0), ('k', 1, 0)], [('k', 0, 1), ('k', 1, 1)], [('v', 0, 0), ('v', 1, 1)], [('v', 1, 0), ('v', 0, 1)]], 0, 0)
        lab = a.newlabel('nf')
        a(f's_cmp_lg_u32 {S_SEG}, {S_FIRST}\ns_cbranch_scc1 {lab}')
        init_sync(marks=False, t=48)
        a(f'buffer_store_dword v{tv("oxr")}, v{tv("one")}, {WS}, {S_PF} offen sc1')
        if o.get('hold', 0):
            l2 = a.newlabel('hold')
            a(f's_cmp_lg_u32 {S_W}, 0\ns_cbranch_scc1 {l2}\ns_lshl_b32 s21, {S_HEAD}, 6\ns_add_u32 s21, s21, {hex(L.F_RS)}\nv_mov_b32 v48, 0')
            self.spin4('v48', 's21', 49, n=1, sleep=8)
            a(f'{l2}:')
        a(f'{lab}:')
        if o.get('pmark'):
            a.raw('    s_memtime s[100:101]')
            lab = a.newlabel('pm')
            a(f's_cmp_lt_u32 {S_SEG}, 30\ns_cbranch_scc1 {lab}\ns_cmp_ge_u32 {S_SEG}, 36\ns_cbranch_scc1 {lab}')
            self.dump_marks(48)
            a(f's_waitcnt vmcnt(0)\n{lab}:')
        loop_tail('L_P_kv')
        issue(4); issue(5)
        a('s_waitcnt vmcnt(16)'); consume(4)
        a(f's_mov_b32 {S_SEG}, {S_FIRST}\ns_mov_b32 {S_XB}, 0\ns_mov_b32 {S_A}, {S_SEG}')
        self.x_dma()
        a('s_waitcnt vmcnt(8)'); consume(5)
        a('s_waitcnt vmcnt(0)')
        start_loop()
        loop_head('L_P_q', 'q', 2)
        a_epilogue([[('q', 0, 0), ('q', 1, 0)], [('q', 0, 1), ('q', 1, 1)]], 4096, 16)
        loop_tail('L_P_q')
        a('s_branch L_P_done')
        a('L_w_Bload:')
        issue(4)
        self.signal_init(tid=V_TID, t=40, barrier=False)
        a('s_waitcnt vmcnt(16)'); consume(3); issue(5)
        a('s_waitcnt vmcnt(16)'); self.mark(5); consume(4)
        self.x_dma()
        a('s_waitcnt vmcnt(8)'); self.mark(6); consume(5)
        init_sync()
        for r in range(KP, KP + 8, 2): a(f'v_mov_b64 {vr(r,2)}, 0')
        start_loop()
        loop_head('L_P_B', 'qkv', 4)
        G1 = 26
        a(f's_lshl_b32 s21, {S_SEG}, 7\ns_add_u32 s21, s21, {hex(L.GATE)}')
        a(f'buffer_load_dword v{G1}, v{tv("c4")}, {WS}, s21 offen sc1\nbuffer_load_dword v{G1+1}, v{tv("c4")}, {WS}, s21 offen offset:64 sc1')
        for m in 'qkv':
            for p in range(2):
                for tt in range(2):
                    r = acc(m, p, tt)
                    a(f'{cvt} v{r}, v{r}, v{r+1}\n{cvt} v{r+1}, v{r+2}, v{r+3}')
        a(f'''
        s_mov_b32 s80, 0xaaaaaaaa
        s_mov_b32 s81, 0xaaaaaaaa
        v_cmp_ne_u32 s[82:83], 0, v{tv("mc0")}
        v_cmp_ne_u32 s[84:85], 0, v{tv("mc1")}
        s_mov_b32 s86, {hex(f2u(0.25 * 1.4426950408889634))}
        s_cmp_eq_u32 {S_SEG}, 0
        s_cselect_b32 s87, 0xf149f2ca, 0
        s_lshl_b32 s21, {S_SEG}, 5
        s_lshl_b32 s22, {S_HEAD}, 3
        s_add_u32 s21, s21, s22
        s_lshl_b32 s22, {S_W}, 1
        s_add_u32 s21, s21, s22
        s_lshl_b32 s21, s21, 10
        s_add_u32 s21, s21, {hex(L.OB)}
        s_cmp_lt_u32 {S_SEG}, {S_FIRST}
        s_cselect_b32 s21, {hex(L.OOB)}, s21
        s_lshl_b32 {S_PF}, {S_SEG}, 2
        s_add_u32 {S_PF}, {S_PF}, {S_HEAD}
        s_lshl_b32 {S_PF}, {S_PF}, 6
        s_lshl_b32 s22, {S_W}, 2
        s_add_u32 {S_PF}, {S_PF}, s22
        s_add_u32 {S_PF}, {S_PF}, {hex(L.F_OB)}
        s_cmp_lt_u32 {S_SEG}, {S_FIRST}
        s_cselect_b32 {S_PF}, {hex(L.OOB)}, {S_PF}
        s_waitcnt vmcnt(0)
        v_sub_f32 v{G1}, 1.0, v{G1}
        v_sub_f32 v{G1+1}, 1.0, v{G1+1}
        ''')
        for p in range(2):
            for tt in range(2):
                q = acc('q', p, tt); kc = acc('k', p, tt); vc = acc('v', p, tt)
                kp = KP + 2 * p if tt == 0 else acc('k', p, 0)
                vp = VP + 2 * p if tt == 0 else acc('v', p, 0)
                SC_, SP_, OD = 28, 32, 36
                a(f'{mf16} {vr(SC_,4)}, {vr(kc,2)}, {vr(q,2)}, 0\n{mf16} {vr(SP_,4)}, {vr(kp,2)}, {vr(q,2)}, 0')
                for j in range(2):
                    a(f'v_cndmask_b32 v{SC_+2*j}, v{SC_+2*j}, v{SC_+2*j+1}, s[80:81]')
                    a(f'v_cndmask_b32 v{SP_+2*j}, v{SP_+2*j}, v{SP_+2*j+1}, s[80:81]')
                    if tt == 0: a(f'v_add_f32 v{SP_+2*j}, s87, v{SP_+2*j}')
                    a(f'v_cndmask_b32 v{40+j}, v{SP_+2*j}, v{SC_+2*j}, s[{82+2*j}:{83+2*j}]')
                a('v_max_f32 v42, v40, v41')
                self.xlane('v_max_f32', 42, 43)
                a('v_mul_f32 v42, s86, v42')
                for j in range(2): a(f'v_fma_f32 v{40+j}, v{40+j}, s86, -v42\nv_exp_f32 v{40+j}, v{40+j}')
                a('v_add_f32 v42, v40, v41')
                self.xlane('v_add_f32', 42, 43)
                a(f'v_rcp_f32 v42, v42')
                for j in range(2):
                    a(f'{cvt} v{40+j}, v{40+j}, v{40+j}')
                    a(f'v_and_b32 v{44+j}, v{40+j}, v{tv(f"mc{j}")}\nv_and_b32 v{46+j}, v{40+j}, v{tv(f"mp{j}")}')
                a(f'v_mul_f32 v42, v42, v{G1+tt}')
                a(f'{mf16} {vr(OD,4)}, {vr(vc,2)}, v[44:45], 0\n{mf16} {vr(OD,4)}, {vr(vp,2)}, v[46:47], {vr(OD,4)}')
                for i in range(4): a(f'v_mul_f32 v{OD+i}, v{OD+i}, v42')
                ob = XF + 2 * (2 * p + tt)
                a(f'{cvt} v{ob}, v{OD}, v{OD+1}\n{cvt} v{ob+1}, v{OD+2}, v{OD+3}')
                a(f'buffer_store_dwordx2 {vr(ob,2)}, v{tv("l8")}, {WS}, s21 offen offset:{1024*p + 512*tt} sc1')
        for p in range(2):
            a(f'v_mov_b64 {vr(KP+2*p,2)}, {vr(acc("k",p,1),2)}\nv_mov_b64 {vr(VP+2*p,2)}, {vr(acc("v",p,1),2)}')
        loop_tail('L_P_B')
        if nb:
            self.tstamp(6, 40)
            a('s_endpgm')
        a('L_P_done:')
        self.tstamp(3, 40)
        self.note(8, 40)
        if o.get('no_F'):
            a('s_endpgm'); a.auto_vm = True; return
        self.f_phase()

    def spin4(self, voff, soff, tmp, n=4, sleep=2):
        a = self.a
        lab = a.newlabel('s4'); ok = a.newlabel('s4ok')
        ld = {1: 'buffer_load_dword', 4: 'buffer_load_dwordx4'}[n]
        a(f's_mov_b32 s23, {SPIN}\n{lab}:')
        a(f'{ld} {vr(tmp,n)}, {voff}, {WS}, {soff} offen sc1\ns_waitcnt vmcnt(0)')
        if n == 4: a(f'v_min_u32 v{tmp}, v{tmp}, v{tmp+1}\nv_min3_u32 v{tmp}, v{tmp}, v{tmp+2}, v{tmp+3}')
        a(f'v_cmp_eq_u32 vcc, 0, v{tmp}\ns_cbranch_vccz {ok}\n{"s_sleep %d" % sleep if sleep else ""}\ns_sub_u32 s23, s23, 1\ns_cbranch_scc0 {lab}\ns_mov_b32 {SPIN}, 0x400\n{ok}:')

    def f_phase(self):
        a = self.a; o = self.o
        set_srd(a, 8, P_WO, 4 << 20)
        a(f's_mul_i32 s78, {S_W}, 36864\ns_mov_b32 m0, s78')
        for kb in range(2):
            for T in range(4):
                a(f's_lshl_b32 s21, {S_RANK}, 17\ns_add_u32 s21, s21, {kb*65536 + T*64}')
                self.dma_chunk(f'v{tv("dma1k")}', 's21', 1024)
        set_srd(a, 8, P_WOB, 512 * 1024)
        for T in range(4):
            a(f's_lshl_b32 s21, {S_RANK}, 14\ns_add_u32 s21, s21, {T*64}')
            self.dma_chunk(f'v{tv("dma1k")}', 's21', 1024, n=1)
        set_srd(a, 12, P_OUT, 2048 * 1024)
        V_Z = 26
        a(f'v_mov_b32 v{V_Z}, 0')
        for kt in range(2):
            for i in range(4):
                a(f'v_cmp_le_i32 s[{64+8*kt+2*i}:{65+8*kt+2*i}], {16*kt+i}, v{tv("qrow")}')
        a('s_waitcnt vmcnt(0)')
        wof = lambda T, p, ks: 4 * ((T * 2 + p) * 4 + ks)
        wob = lambda T, p: 128 + 2 * (T * 2 + p)
        for kb in range(2):
            for T in range(4):
                so = (kb * 4 + T) * 4096
                for p in range(2):
                    for h in range(2):
                        for r in range(2):
                            a(f'ds_read_b64_tr_b16 {ar(wof(T,p,2*kb+h)+2*r,2)}, v{tv("trf")} offset:{so + 2048*h + 1024*r + 8*p}')
        for T in range(4):
            for p in range(2):
                a(f'ds_read_b64_tr_b16 {ar(wob(T,p),2)}, v{tv("trf")} offset:{32768 + 1024*T + 8*p}')
        a.wait(lgkm=0)
        S_FS, S_RB, S_FB = 's61', 's62', 's63'
        a(f's_sub_u32 {S_FS}, {S_TEAM}, {2 if o.get("nb", 1) else 1}\ns_mov_b32 s80, {hex(f2u(128 ** -0.5 * 1.4426950408889634))}\ns_mov_b32 s81, 0xf149f2ca')
        a(f's_lshr_b32 s82, {S_W}, 1\ns_and_b32 s83, {S_W}, 1')
        a(f's_lshl_b32 s86, {S_TEAM}, 21\ns_add_u32 s86, s86, {hex(L.FP)}')
        Q, K0, K1, V, KM, VM, OBF, G, S0, S1, SM, PX, PM, D, OF, AC = 28, 44, 60, 76, 92, 108, 112, 116, 120, 124, 128, 132, 136, 140, 156, 188
        a('L_F_loop:')
        a.forget(); a.auto_vm = True
        a(f'''
        s_lshl_b32 s21, {S_FS}, 5
        s_add_u32 s21, s21, {S_RANK}
        s_lshl_b32 {S_FB}, s21, 6
        s_mul_i32 {S_RB}, s21, 24576
        s_lshl_b32 s84, s21, 12
        s_add_u32 s84, s84, {hex(L.KVM)}
        s_lshl_b32 s85, s21, 10
        s_add_u32 s85, s85, {hex(L.OB)}
        s_add_u32 s21, {S_FB}, {hex(L.F_KV + 16)}
        ''')
        self.spin4(f'v{V_Z}', 's21', Q)
        a(f'''
        s_lshl_b32 s21, {S_FS}, 2
        s_lshr_b32 s22, {S_RANK}, 3
        s_add_u32 s21, s21, s22
        s_lshl_b32 s21, s21, 6
        s_and_b32 s22, {S_RANK}, 6
        s_lshl_b32 s22, s22, 1
        s_add_u32 s21, s21, s22
        s_add_u32 s21, s21, {hex(L.F_OB)}
        ''')
        self.spin4(f'v{V_Z}', 's21', Q, n=1)
        a.forget()
        l16 = f'v{tv("l16")}'
        a(f's_lshl_b32 s87, {S_FS}, 2\ns_add_u32 s87, s87, {S_W}\ns_lshl_b32 s87, s87, 5\ns_add_u32 s87, s87, {S_RANK}\ns_lshl_b32 s87, s87, 2\ns_add_u32 s87, s87, {hex(L.F_P)}')
        a(f's_cmp_eq_u32 {S_TFAST}, 0\ns_cselect_b32 s21, {hex(L.OOB)}, s87\nbuffer_store_dword v{V_Z}, v{tv("one")}, {WS}, s21 offen')
        for qt in range(2):
            a(f'buffer_load_dwordx2 {vr(OBF+2*qt,2)}, v{tv("l8")}, {WS}, s85 offen offset:{512*qt} sc1')
        a(f's_lshl_b32 s22, s82, 10\ns_add_u32 s22, s22, 4096\ns_add_u32 s22, s22, {S_RB}\ns_mov_b32 s21, {S_RB}')
        for sl in range(4):
            a(f'buffer_load_dwordx4 {vr(Q+4*sl,4)}, {l16}, {WS}, s22 offen sc1')
            a(f'buffer_load_dwordx4 {vr(K0+4*sl,4)}, {l16}, {WS}, s21 offen sc1')
            a(f'buffer_load_dwordx4 {vr(K1+4*sl,4)}, {l16}, {WS}, s21 offen offset:1024 sc1')
            if sl < 3: a('s_add_u32 s21, s21, 6144\ns_add_u32 s22, s22, 6144')
        a(f's_mul_i32 s21, s83, 12288\ns_add_u32 s21, s21, {S_RB}\ns_add_u32 s22, s21, 6144')
        for sl in range(2):
            for f in range(2):
                a(f'buffer_load_dwordx4 {vr(V+8*sl+4*f,4)}, {l16}, {WS}, {"s21" if sl == 0 else "s22"} offen offset:{2048+1024*f} sc1')
        a(f's_lshl_b32 s21, {S_FS}, 7\ns_lshl_b32 s22, s82, 6\ns_add_u32 s21, s21, s22\ns_add_u32 s21, s21, {hex(L.GATE)}')
        a(f'buffer_load_dword v{G}, v{tv("c4")}, {WS}, s21 offen sc1')
        for qt in range(2):
            for T in range(4):
                for p in range(2):
                    a(f'{mf16} {vr(AC+32*qt+8*T+4*p,4)}, {ar(wob(T,p),2)}, {vr(OBF+2*qt,2)}, 0')
        for sl in range(4):
            a(f'{mf32} {vr(S0,4)}, {vr(K0+4*sl,4)}, {vr(Q+4*sl,4)}, {vr(S0,4) if sl else 0}')
            a(f'{mf32} {vr(S1,4)}, {vr(K1+4*sl,4)}, {vr(Q+4*sl,4)}, {vr(S1,4) if sl else 0}')
        NEG = 27
        a(f'v_mov_b32 v{NEG}, s81')
        for kt, Sx in enumerate((S0, S1)):
            for i in range(4): a(f'v_cndmask_b32 v{Sx+i}, v{NEG}, v{Sx+i}, s[{64+8*kt+2*i}:{65+8*kt+2*i}]')
        MX = 117
        a(f'v_max3_f32 v{MX}, v{S0}, v{S0+1}, v{S0+2}\nv_max3_f32 v{MX}, v{MX}, v{S0+3}, v{S1}\nv_max3_f32 v{MX}, v{MX}, v{S1+1}, v{S1+2}\nv_max_f32 v{MX}, v{MX}, v{S1+3}')
        a.wait(vm=0)
        skip = a.newlabel('fw')
        dp = o.get('dpoll', 1)
        if dp:
            a(f"""
            s_cmp_ge_u32 {S_FS}, 62
            s_cselect_b32 s22, {hex((L.KVL - L.KVM - 62 * 131072) & 0xFFFFFFFF)}, 0
            s_add_u32 s84, s84, s22
            s_max_u32 s22, {S_FS}, 61
            s_sub_u32 s22, s22, 61
            s_lshl_b32 s22, s22, 11
            """)
        else: a('s_mov_b32 s22, 0')
        a(f's_cmp_lg_u32 {S_W}, 0\ns_cbranch_scc1 {skip}\ns_add_u32 s21, {S_FB}, {hex(L.F_M)}\ns_sub_u32 s21, s21, s22')
        self.spin4(f'v{V_Z}', 's21', KM)
        self.tstamp(4, 252)
        a(f'{skip}:\ns_barrier')
        fm = (lambda i: a.raw(f'    s_memtime s[{88+2*i}:{89+2*i}]')) if o.get('fmark') else (lambda i: None)
        fm(1)
        a.forget()
        a(f's_lshl_b32 s21, s83, 11\ns_add_u32 s21, s21, s84\ns_mov_b32 s23, 0x8000\nL_F_km:')
        for sl in range(4):
            a(f'buffer_load_dwordx4 {vr(KM+4*sl,4)}, {l16}, {WS}, s84 offen offset:{1024*sl} sc1')
        for sl in range(2):
            a(f'buffer_load_dwordx2 {vr(VM+2*sl,2)}, v{tv("vml")}, {WS}, s21 offen offset:{1024*sl} sc1')
        if dp:
            a(f's_cmp_lt_u32 {S_FS}, 62\ns_cbranch_scc1 L_F_kmok')
            vq = list(a.vq)
            a(f'v_max3_u32 v118, v{KM}, v{KM+1}, v{KM+2}')
            for r in range(KM + 3, KM + 19, 2): a(f'v_max3_u32 v118, v118, v{r}, v{r+1}')
            a(f'v_max_u32 v118, v118, v{VM+3}\nv_cmp_eq_u32 vcc, -1, v118\ns_cbranch_vccz L_F_kmok')
            if o.get('dsl', 0): a(f's_sleep {o.get("dsl")}')
            a(f's_sub_u32 s23, s23, 1\ns_cbranch_scc0 L_F_km\nL_F_kmok:')
            a.vq = vq
        for sl in range(4):
            a(f'{mf32} {vr(SM,4)}, {vr(KM+4*sl,4)}, {vr(Q+4*sl,4)}, {vr(SM,4) if sl else 0}')
        fm(2)
        a(f'v_max3_f32 v{MX}, v{MX}, v{SM}, v{SM+1}')
        self.xlane('v_max_f32', MX, 118)
        a(f'v_mul_f32 v{MX}, s80, v{MX}')
        E = [S0 + i for i in range(4)] + [S1 + i for i in range(4)] + [SM, SM + 1]
        for e in E: a(f'v_fma_f32 v{e}, v{e}, s80, -v{MX}')
        for e in E: a(f'v_exp_f32 v{e}, v{e}')
        a(f'{cvt} v{PX}, v{S0}, v{S0+1}\n{cvt} v{PX+1}, v{S0+2}, v{S0+3}\n{cvt} v{PX+2}, v{S1}, v{S1+1}\n{cvt} v{PX+3}, v{S1+2}, v{S1+3}')
        a(f'{cvt} v{PM}, v{SM}, v{SM+1}\nv_mov_b32 v{PM+1}, 0\nv_mov_b32 v{PM+2}, 0\n{cvt} v{PM+3}, v{SM}, v{SM+1}')
        for sl in range(2):
            f1, f2 = V + 8 * sl, V + 8 * sl + 4
            for p in range(2):
                d = vr(D + 8 * sl + 4 * p, 4)
                X = f1 if p == 0 else f2; Y = f2 + 2 if p == 0 else f1 + 2
                a(f'{mf16} {d}, {vr(X,2)}, {vr(PX,2)}, 0')
                a(f'{mf16} {d}, {vr(Y,2)}, {vr(PX+2,2)}, {d}')
                a(f'{mf16} {d}, {vr(VM+2*sl,2)}, {vr(PM+2*p,2)}, {d}')
        LS = 119
        a(f'v_add_f32 v{LS}, v{E[0]}, v{E[1]}')
        for e in E[2:]: a(f'v_add_f32 v{LS}, v{LS}, v{e}')
        self.xlane('v_add_f32', LS, 118)
        a(f'v_rcp_f32 v{LS}, v{LS}\nv_mul_f32 v{LS}, v{LS}, v{G}')
        for i in range(16): a(f'v_mul_f32 v{D+i}, v{D+i}, v{LS}')
        for i in range(8): a(f'{cvt} v{D+i}, v{D+2*i}, v{D+2*i+1}')
        fm(3)
        for sl in range(2): a(f'ds_write_b128 v{tv("oxw")}, {vr(D+4*sl,4)} offset:{1024*sl}')
        a.wait(lgkm=0)
        a('s_barrier')
        for qt in range(2):
            for sl in range(4):
                a(f'ds_read_b128 {vr(OF+16*qt+4*sl,4)}, v{tv("oxr")} offset:{4096*qt+1024*sl}')
        a(f's_xor_b32 s86, s86, {1<<20}\ns_lshl_b32 s21, {S_RANK}, 10\ns_add_u32 s21, s21, s86\ns_lshl_b32 s22, {S_W}, 17\ns_add_u32 s21, s21, s22')
        a(f's_cmp_eq_u32 {S_TFAST}, 0\ns_cbranch_scc1 L_F_slowst')
        lq0 = list(a.lq)
        for cf in ('', 'sc1'):
            if cf: a('L_F_slowst:'); a.lq = list(lq0)
            df = cf or ('nt' if o.get('fpnt') else '')
            def fin(k):
                qt, T = divmod(k, 4)
                r = AC + 32 * qt + 8 * T
                for i in range(4): a(f'{cvt} v{r+i}, v{r+2*i}, v{r+2*i+1}')
                a(f'buffer_store_dwordx4 {vr(r,4)}, {l16}, {WS}, s21 offen {df}')
                a(f's_add_u32 s21, s21, {32768 if T < 3 else 13 * 32768}')
            for k in range(8):
                qt, T = divmod(k, 4)
                for ks in range(4):
                    for p in range(2):
                        d = vr(AC + 32 * qt + 8 * T + 4 * p, 4)
                        a(f'{mf32} {d}, {ar(wof(T,p,ks),4)}, {vr(OF+16*qt+4*ks,4)}, {d}')
                if k: fin(k - 1)
            fin(7)
            fm(4)
            a.wait(vm=0)
            fm(5)
            a(f'buffer_store_dword v{tv("oxr")}, v{tv("one")}, {WS}, s87 offen {cf}')
            if not cf: a('s_branch L_F_stdone')
        a('L_F_stdone:')
        self.tstamp(5, 252)
        a(f's_lshl_b32 s21, {S_FS}, 9\ns_and_b32 s22, {S_RANK}, 12\ns_lshl_b32 s22, s22, 5\ns_add_u32 s21, s21, s22\ns_add_u32 s21, s21, {hex(L.F_P)}')
        self.spin4(f'v{tv("pfl")}', 's21', Q, n=1, sleep=0)
        fm(6)
        if o.get('fmark'):
            a(f's_lshl_b32 s21, {S_TEAM}, 5\ns_add_u32 s21, s21, {S_RANK}\ns_lshl_b32 s21, s21, 7\ns_add_u32 s21, s21, {hex(L.DBG + 65536)}\ns_waitcnt lgkmcnt(0)')
            for i in range(1, 7): a(f'v_mov_b32 v252, s{88+2*i}\nbuffer_store_dword v252, v{V_Z}, {WS}, s21 offen offset:{4*(15+i)}')
        a.forget()
        a(f's_lshl_b32 s21, {S_RANK}, 15\ns_add_u32 s21, s21, s86')
        for l in range(8):
            a(f'buffer_load_dwordx4 {vr(Q+4*l,4)}, v{tv("fpld")}, {WS}, s21 offen sc1')
            if l < 7: a('s_add_u32 s21, s21, 4096')
        for l in range(8):
            a(f'{mf32} {vr(S0,4)}, {vr(tv("self0"),4)}, {vr(Q+4*l,4)}, {vr(S0,4) if l else 0}')
        a(f's_lshl_b32 s21, {S_FS}, 5\ns_and_b32 s22, {S_RANK}, 16\ns_add_u32 s21, s21, s22\ns_lshl_b32 s21, s21, 10\ns_and_b32 s22, {S_RANK}, 15\ns_lshl_b32 s22, s22, 6\ns_add_u32 s21, s21, s22')
        a(f'{cvt} v{S0}, v{S0}, v{S0+1}\n{cvt} v{S0+1}, v{S0+2}, v{S0+3}')
        a(f'buffer_store_dwordx2 {vr(S0,2)}, v{tv("outst")}, {ST}, s21 offen')
        if o.get('wb'):
            lab = a.newlabel('wb')
            a(f's_cmp_lt_u32 {S_FS}, 52\ns_cbranch_scc1 {lab}\ns_cmp_ge_u32 {S_FS}, {o.get("wbmax", 62)}\ns_cbranch_scc1 {lab}')
            a(f's_or_b32 s21, {S_RANK}, {S_W}\ns_cmp_lg_u32 s21, 0\ns_cbranch_scc1 {lab}\ns_sleep 32\nbuffer_wbl2 sc1\ns_waitcnt vmcnt(0)\n{lab}:')
        a(f's_add_u32 {S_FS}, {S_FS}, {6 if o.get("nb", 1) else 7}\ns_cmp_lt_u32 {S_FS}, 64\ns_cbranch_scc1 L_F_loop')
        a.wait(vm=0)
        self.tstamp(6, 40)
        self.span(40)
        self.note(9, 40)
        a('s_endpgm')
```

```python
import layout as L
from gen_common import *

V_L16, V_IST, V_PUB, V_X0, V_F, V_SMW, V_OW, V_WV = 1, 2, 3, 4, 8, 9, 10, 11
KMH, VMH = 12, 16
V_IDX, V_WV2 = 18, 19
SELR, SELV, V_ONE, V_OR, SELQ, SELK = 20, 24, 26, 27, 28, 128
V_Z = 29
VXC, VXN, KX = 32, 40, 48
WVB = 56
AQ, AK, AV = 72, 80, 88
M = 96
T = 132
WO0 = 144
V_FLAG = 0
SC = 128 ** -0.5 * 1.4426950408889634
import struct
def f2u(x): return struct.unpack('<I', struct.pack('<f', x))[0]

WO_SPILL = [(0, 0), (1, 0)]
def wo_frag(t, kb):
    order = [(t_, k_) for t_ in range(4) for k_ in range(4) if (t_, k_) not in WO_SPILL]
    return WO0 + 8 * order.index((t, kb))

LDSF = [('q', 0, 0), ('q', 0, 1), ('q', 1, 0), ('q', 1, 1), ('k', 0, 0)] + [('k', k, 1) for k in range(2, 8)] + [('k', 7, 0)] + [('v', k, p) for k in (6, 7) for p in range(2)]
AGF = [(m, k, p) for m in 'qkv' for k in range(8) for p in range(2) if (m, k, p) not in LDSF]
assert len(LDSF) == 16 and len(AGF) == 32
S_S = 's61'
S_MEMP = 's62'
S_PUBB = 's63'
S_IN0, S_IN1 = 's64', 's65'
S_INP = 's66'
S_REC = 's67'
S_FKV = 's68'
S_KVM, S_FM = 's69', 's70'
S_RST = 's71'
S_LO = 's[72:73]'
S_SC = 's74'
S_T0, S_T1 = 's75', 's76'
S_FAST = 's77'
S_TAG, S_NTAG = 's78', 's79'
S_OTAG, S_NOTAG = 's24', 's25'
S_HST, S_HLD, S_S1 = 's10', 's11', 's19'

class RRole:
    def smf(self, acc, A, B):
        self.a(f'v_smfmac_f32_16x16x64_bf16 {vr(acc,4)}, {vr(A,4)}, {B}, v{V_IDX}')

    def r_role(self):
        a = self.a; o = self.o
        a('L_R:')
        a.vq = list(self.vq_role)
        self.mark(0)
        self.note(2, 40)
        VD8, VD1, VTQ, VTO, VTA = 28, 29, 30, 31, 7
        a(f"""
        v_and_b32 v1, 63, v0
        v_lshrrev_b32 v2, 4, v1
        v_and_b32 v3, 15, v1
        v_lshlrev_b32 v4, 4, v3
        v_lshl_add_u32 v{VD8}, v2, 17, v4
        v_and_b32 v4, 0x70, v4
        v_lshrrev_b32 v3, 3, v3
        v_lshl_add_u32 v4, v3, 9, v4
        v_lshl_add_u32 v{VD1}, v2, 14, v4
        s_lshl_b32 s21, {S_W}, 7
        v_add_u32 v{VD1}, s21, v{VD1}
        s_mul_i32 s78, {S_W}, {L.BLK}
        """)
        groups = [(m, b) for m in 'oqkv' for b in range(2)]
        def issue(gi):
            mat, b = groups[gi]
            if b == 0: set_srd(a, 8, {'q': P_WQ, 'k': P_WK, 'v': P_WV, 'o': P_WO}[mat], 4 << 20)
            a(f's_add_u32 m0, s78, {(gi % 2) * L.GRP}')
            if mat != 'o':
                a(f's_add_u32 s21, {S_W}, {4 * b}\ns_lshl_b32 s21, s21, 19\ns_lshl_b32 s22, {S_RANK}, 8\ns_add_u32 s21, s21, s22')
                self.dma_block(f'v{VD8}', 's21', 8192)
            else:
                a(f's_lshl_b32 s21, {S_RANK}, 17\ns_add_u32 s21, s21, {b * 65536}')
                self.dma_block(f'v{VD1}', 's21', 1024)
        issue(0)
        self.load_table('T_R', 96, 28, 7)
        self.confirm_role()
        issue(1)
        self.mark(1)
        self.gate_and_store()
        names = list(L.r_table().keys())
        def tv(n): return 96 + names.index(n)
        a(f'v_mov_b32 v{VTQ}, v{tv("trq")}\nv_mov_b32 v{VTO}, v{tv("tro")}\nv_add_u32 v6, 65536, v{tv("wv")}')
        if o.get('code'):
            pc = a.newlabel('pc')
            a(f's_getpc_b64 s[12:13]\n{pc}:\ns_add_u32 s12, s12, L_R_ready-{pc}\ns_addc_u32 s13, s13, 0\ns_mov_b32 s14, L_R_slow-L_R_ready\ns_mov_b32 s15, 0x20000')
            a(f'v_lshlrev_b32 v1, 7, v0\nbuffer_load_dword v27, v1, {ST}, 0 offen')
        else:
            a(f'buffer_load_dword v27, v{tv("one")}, {WS}, 0 offen')
        a(f'buffer_load_dword v26, v{tv("mm")}, {WS}, 0 offen')
        a.auto_vm = False
        TMP = 56
        park = {}
        parkregs = [32, 64, 72, 80, 88, 124, 132, 8]
        for f in LDSF:
            if f[0] == 'k': park[f] = parkregs.pop(0)
            if f[0] == 'q': park[f] = -8 * AGF.index(('v', 3 + 2 * f[1], f[2])) - 1
        S_RDY = 's76'
        def scalars():
            if o.get('pa2', 0):
                dec = f's_lshr_b32 s84, {S_RANK}, 3\ns_lshl_b32 s84, s84, 1\ns_lshr_b32 s21, {S_W}, 1\ns_add_u32 s84, s84, s21\n' \
                      f's_lshr_b32 s85, {S_RANK}, 1\ns_and_b32 s85, s85, 3\n' \
                      f's_and_b32 s86, {S_RANK}, 1\ns_lshl_b32 s86, s86, 1\ns_and_b32 s21, {S_W}, 1\ns_add_u32 s86, s86, s21'
            else:
                dec = f's_lshr_b32 s84, {S_RANK}, 2\ns_and_b32 s85, {S_RANK}, 3\ns_mov_b32 s86, {S_W}'
            a(f'''
            {dec}
            s_lshl_b32 {S_INP}, s84, 2
            s_add_u32 {S_INP}, {S_INP}, s85
            s_lshl_b32 {S_INP}, {S_INP}, 2
            s_add_u32 {S_INP}, {S_INP}, s86
            s_lshl_b32 {S_INP}, {S_INP}, 11
            s_add_u32 {S_INP}, {S_INP}, {hex(L.RIN)}
            s_lshl_b32 {S_PUBB}, s84, 10
            s_and_b32 s22, s85, 2
            s_lshl_b32 s22, s22, 7
            s_add_u32 {S_PUBB}, {S_PUBB}, s22
            s_and_b32 s22, s85, 1
            s_lshl_b32 s22, s22, 5
            s_add_u32 {S_PUBB}, {S_PUBB}, s22
            s_lshl_b32 s22, s86, 6
            s_add_u32 {S_PUBB}, {S_PUBB}, s22
            s_add_u32 {S_PUBB}, {S_PUBB}, {hex(L.RMEM)}
            s_and_b32 s22, s84, 1
            s_lshl_b32 s22, s22, 9
            s_lshr_b32 s21, s84, 1
            s_lshl_b32 s21, s21, 7
            s_add_u32 s21, s21, s22
            s_lshl_b32 s22, s85, 3
            s_add_u32 s21, s21, s22
            s_lshl_b32 s22, s86, 11
            s_add_u32 s75, s21, s22
            s_mul_i32 {S_REC}, {S_RANK}, 24576
            s_mul_i32 s21, {S_W}, 6144
            s_add_u32 {S_REC}, {S_REC}, s21
            s_lshl_b32 {S_FKV}, {S_RANK}, 6
            s_lshl_b32 s21, {S_W}, 2
            s_add_u32 {S_FKV}, {S_FKV}, s21
            s_add_u32 {S_FM}, {S_FKV}, {hex(L.F_M - 4096)}
            s_add_u32 {S_FKV}, {S_FKV}, {hex(L.F_KV)}
            s_lshl_b32 {S_KVM}, {S_RANK}, 12
            s_lshl_b32 s21, {S_W}, 10
            s_add_u32 {S_KVM}, {S_KVM}, s21
            s_add_u32 {S_KVM}, {S_KVM}, {hex(L.KVM - 131072)}
            s_lshl_b32 s21, {S_W}, 11
            s_add_u32 {S_MEMP}, s21, {hex(L.RMEM)}
            s_lshl_b32 {S_IN0}, {S_RANK}, 6
            s_add_u32 {S_IN0}, {S_IN0}, {hex(L.RIN)}
            s_mov_b32 s72, 0x33333333
            s_mov_b32 s73, 0x33333333
            s_mov_b32 {S_SC}, {hex(f2u(SC))}
            s_mov_b32 {S_S}, 0
            ''')
        def first_records(l16):
            for i in range(2):
                a(f'buffer_load_dwordx4 {vr(KX+4*i,4)}, v{l16}, {WS}, {S_REC} offen offset:{1024*i} sc1')
                a(f'buffer_load_dwordx4 {vr(VXN+4*i,4)}, v{l16}, {WS}, {S_REC} offen offset:{2048+1024*i} sc1')
        def stage_w():
            set_srd(a, 12, P_DBG, 256)
            a(f"""
            v_and_b32 v2, 1, v0
            v_lshlrev_b32 v5, 3, v2
            v_lshlrev_b32 v2, 11, v2
            buffer_load_dword v3, v5, {ST}, 0 offen sc1
            """)
        def stage_t():
            a(f"""
            v_readlane_b32 s21, v3, 0
            v_readlane_b32 s22, v3, 1
            v_mov_b64 v[24:25], -1
            v_mov_b64 v[26:27], -1
            s_bcnt1_i32_b32 s21, s21
            s_add_u32 s21, s21, s22
            s_cmp_ge_u32 s21, 32
            s_cselect_b32 s21, {S_INP}, {hex(L.OOB)}
            s_cselect_b32 s22, {S_PUBB}, {hex(L.OOB)}
            """)
            for sl in range(2):
                for i in range(2): a(f'buffer_store_dwordx4 v[24:27], v{tv("l16")}, {WS}, s21 offen offset:{1024*i}')
                a('s_add_u32 s21, s21, 0x40000')
            for sl in range(4):
                a(f'buffer_store_dword v24, v{tv("pub")}, {WS}, s22 offen\ns_add_u32 s22, s22, 0x2000')
            a(f'v_mov_b32 v25, 0\ns_lshl_b32 s22, {S_W}, 5\ns_add_u32 s22, s22, {S_RANK}\ns_lshl_b32 s22, s22, 2\ns_add_u32 s22, s22, {hex(L.R_HINT)}')
            a(f's_cmp_ge_u32 s21, {hex(L.OOB)}\ns_cselect_b32 s22, s21, s22\nbuffer_store_dword v25, v{tv("one")}, {WS}, s22 offen')
        def stage_x():
            a(f'buffer_load_dword v4, v2, {WS}, {S_FKV} offen sc1')
        def stage_y():
            a(f"""
            v_lshl_or_b32 v140, v141, 16, v140
            v_readlane_b32 s21, v3, 0
            v_readlane_b32 s22, v3, 1
            v_cmp_eq_u32 vcc, 0, v4
            s_mov_b32 {S_RDY}, 0
            s_bcnt1_i32_b32 s21, s21
            s_add_u32 s21, s21, s22
            s_mov_b32 {S_FAST}, 1
            s_cbranch_vccnz L_R_notyet
            s_cmp_lt_u32 s21, 32
            s_cbranch_scc1 L_R_notyet
            s_mov_b32 {S_RDY}, 1
            """)
            if not o.get('touchx', 1): a(f'buffer_store_dword v140, v{tv("pub")}, {WS}, {S_PUBB} offen sc1')
            first_records(tv('l16'))
            a('L_R_notyet:')
        scalars()
        set_srd(a, 24, P_MEM0, 8192)
        a(f'buffer_load_ushort v140, v{tv("m0a")}, s[24:27], s75 offen\nbuffer_load_ushort v141, v{tv("m0a")}, s[24:27], s75 offen offset:32')
        todo = []
        self.ldsf_off = {}
        def flush(n):
            for _ in range(n):
                f, r = todo.pop(0); off = 8192 * len(self.ldsf_off)
                self.ldsf_off[f] = off
                for hh in range(2):
                    src = vr(r + 4 * hh, 4) if r >= 0 else ar(-r - 1 + 4 * hh, 4)
                    a(f'ds_write_b128 v{tv("wv") if off < 65536 else 6}, {src} offset:{off % 65536 + 1024 * hh}')
                if r >= 0: parkregs.append(r)
        for gi in range(8):
            mat, b = groups[gi]
            if gi == 0: self.mark(2)
            a.wait(vm=[16 + 5, 5 + 16, 16, 16, 16, 16, 16, 0][gi] if o.get('xearly', 1) else [16 + 5, 5 + 16, 16, 16, 16, 16, 16 + 1, 1][gi])
            if gi == 6 and o.get('xearly', 1): stage_y()
            if gi == 7 and o.get('touchx', 1): stage_t()
            if gi == 7 and o.get('touchp', 0): a(f'buffer_load_dword v5, v{tv("mm")}, {WS}, 0 offen sc1')
            if gi in (0, 2, 4, 7): self.mark(3 + [0, 2, 4, 7].index(gi))
            a('s_barrier')
            hb = (gi % 2) * L.GRP
            for x in range(4):
                dsts = []
                if mat == 'o':
                    for p in range(2):
                        f = (x, 2 * b + p)
                        dsts.append((vr, (TMP if x == 0 else 40) if f in WO_SPILL else wo_frag(*f)))
                    offs = [0, 2112, 8448, 10560]; xo = 64 * x
                    if x == 0: a(f'v_add_u32 v{VTA}, {hb}, v{VTO}')
                else:
                    offs = [0, 1056, 512, 1568]; xo = 0
                    a(f's_xor_b32 s21, {S_W}, {x}\ns_mul_i32 s21, s21, {L.BLK}\ns_add_u32 s21, s21, {hb}\nv_add_u32 v{VTA}, s21, v{VTQ}')
                    for p in range(2):
                        f = (mat, 2 * x + b, p)
                        if f in AGF: dsts.append((ar, 8 * AGF.index(f)))
                        else:
                            if f not in park: park[f] = TMP if (f[1], f[2]) == (6, 0) else (16 if (f[1], f[2]) == (6, 1) else parkregs.pop(0))
                            if park[f] < 0: dsts.append((ar, -park[f] - 1)); todo.insert(0, (f, park[f]))
                            else: dsts.append((vr, park[f])); todo.append((f, park[f]))
                for p in range(2):
                    rf, d = dsts[p]
                    for r in range(4):
                        a(f'ds_read_b64_tr_b16 {rf(d + 2 * r, 2)}, v{VTA} offset:{xo + offs[r] + (512 if mat == "o" else 32) * p}')
            if gi == 7 and not o.get('xearly', 1):
                a.wait(vm=0); stage_y()
            a.wait(lgkm=0)
            if gi == 0:
                for i in range(2):
                    for hh in range(2):
                        a(f'ds_write_b128 v{tv("x0")}, {vr((TMP if i == 0 else 40) + 4 * hh, 4)} offset:{16384 + 8192 * i + 1024 * hh}')
            a('s_barrier')
            if gi == 1: stage_w()

            if gi == 5 and o.get('xearly', 1): stage_x()
            if gi + 2 < 8: issue(gi + 2)
            if gi == 5 and not o.get('xearly', 1): stage_x()
            if gi == 2: self.signal_init(barrier=False)
            if gi == 6: flush(8)
            if gi == 7: flush(8)
        assert not todo and len(self.ldsf_off) == 16
        a.wait(lgkm=0)
        a.auto_vm = True; a.forget()
        a(f'v_mov_b32 v{V_WV2}, v6')
        for n, d in [('l16', V_L16), ('ist', V_IST), ('pub', V_PUB), ('x0', V_X0), ('x1', V_X0 + 1), ('x2', V_X0 + 2), ('x3', V_X0 + 3),
                     ('f', V_F), ('smw', V_SMW), ('ow', V_OW), ('wv', V_WV), ('idx', V_IDX), ('one', V_ONE), ('or', V_OR)] + \
                    [(f'selr{i}', SELR + i) for i in range(4)] + [(f'selv{i}', SELV + i) for i in range(2)] + \
                    [('selq', SELQ), ('selq', SELQ + 3), ('selk', SELK), ('selk', SELK + 3)]:
            a(f'v_mov_b32 v{d}, v{tv(n)}')
        for d in (SELQ + 1, SELQ + 2, SELK + 1, SELK + 2): a(f'v_mov_b32 v{d}, 0')
        self.dump_marks(T + 4)
        self.tstamp(1, T + 4)
        self.note(3, T + 4)
        a(f's_cmp_eq_u32 {S_RDY}, 1\ns_cbranch_scc1 L_R_ready')
        self.wait_init(t0=T + 4)
        a(f's_cmp_ge_u32 s21, 32\ns_cselect_b32 {S_FAST}, 1, 0')
        if not o.get('touchx', 1): a(f'buffer_store_dword v140, v{V_PUB}, {WS}, {S_PUBB} offen sc1')
        self.spin_flag(V_FLAG, f'v{V_Z}', S_FKV)
        first_records(V_L16)
        a(f's_add_u32 s21, {S_FKV}, 2048')
        self.spin_flag(V_FLAG, f'v{V_Z}', 's21')
        a('L_R_ready:')
        a.wait(vm=0)
        a.forget()
        if o.get('force_slow'): a(f's_mov_b32 {S_FAST}, 0')
        if o.get('touchx', 1):
            a(f's_cmp_eq_u32 {S_FAST}, 0\ns_cselect_b32 s21, {hex(L.OOB)}, {S_PUBB}\ns_cselect_b32 s22, {S_PUBB}, {hex(L.OOB)}')
            a(f'buffer_store_dword v140, v{V_PUB}, {WS}, s21 offen\nbuffer_store_dword v140, v{V_PUB}, {WS}, s22 offen sc1')
        a(f's_add_u32 {S_FKV}, {S_FKV}, 2048\nv_mov_b32 v{V_FLAG}, 1')
        for r in range(M, M + 8, 2): a(f'v_mov_b64 {vr(r,2)}, -1')
        a(f's_lshl_b32 s21, {S_RANK}, 6\ns_add_u32 s21, s21, {hex(L.F_RS)}\ns_cmp_eq_u32 {S_W}, 0\ns_cselect_b32 s21, s21, {hex(L.OOB)}')
        a(f'buffer_store_dword v{V_F}, v{V_ONE}, {WS}, s21 offen sc1')
        self.tstamp(2, T + 4)
        self.tstamp(3, T + 4)
        self.note(4, T + 4)
        if o.get('stamp'):
            a('s_memtime s[80:81]\ns_memrealtime s[28:29]'); a.wait(lgkm=0)
        a(f's_lshl_b32 {S_HST}, {S_W}, 5\ns_add_u32 {S_HST}, {S_HST}, {S_RANK}\ns_lshl_b32 {S_HST}, {S_HST}, 2\ns_add_u32 {S_HST}, {S_HST}, {hex(L.R_HINT)}')
        a(f's_lshr_b32 {S_HLD}, {S_RANK}, 3\ns_lshl_b32 {S_HLD}, {S_HLD}, 7\ns_add_u32 {S_HLD}, {S_HLD}, {hex(L.R_HINT)}')
        a('s_mov_b32 s26, 0x3f803f80\ns_mov_b32 s27, 0x3f803f80\ns_mov_b32 s8, 0x3f003f00\ns_mov_b32 s9, 0x3f003f00')
        a(f'ds_write_b64 v{V_OW}, {vr(M,2)}')
        a.wait(lgkm=0)
        a(f's_cmp_eq_u32 {S_FAST}, 0\ns_cbranch_scc1 L_R_slow')
        if o.get('nostag'):
            self.r_loop('f', '')
        else:
            for w in range(1, 4): a(f's_cmp_eq_u32 {S_W}, {w}\ns_cbranch_scc1 L_R_w{w}')
            for w in range(4):
                if w: a(f'L_R_w{w}:')
                self.r_loop('f' + (str(w) if w else ''), '', wv=w)
        a('L_R_slow:')
        self.r_loop('s', 'sc1')

    def spin_flag(self, dst, voff, soff):
        a = self.a
        lab = a.newlabel('sf'); ok = a.newlabel('sfok')
        sv = a.auto_vm; a.auto_vm = False
        a(f'''
        s_mov_b32 s23, {SPIN}
        {lab}:
        buffer_load_dword v{dst}, {voff}, {WS}, {soff} offen sc1
        s_waitcnt vmcnt(0)
        v_cmp_ne_u32 vcc, 0, v{dst}
        s_cbranch_vccnz {ok}
        s_sleep 2
        s_sub_u32 s23, s23, 1
        s_cbranch_scc0 {lab}
        s_mov_b32 {SPIN}, 0x400
        {ok}:
        ''')
        a.auto_vm = sv; a.vq = []

    def poll(self, tag, dst, voff, soff, pre, check, shadow, nchk, mid=None, nmid=0, blk=None):
        a = self.a
        lab = f'L_poll_{tag}'; ok = f'L_pok_{tag}'
        def issue():
            a(f'buffer_load_dwordx4 {vr(dst,4)}, v{voff}, {WS}, {soff} offen {self.pf}')
            a(f'buffer_load_dwordx4 {vr(dst+4,4)}, v{voff}, {WS}, {soff} offen offset:1024 {self.pf}')
        pre()
        if blk:
            gap, cover, fill = blk
            issue()
            if mid: mid()
            for i in range(gap): fill()
            a(f's_mov_b32 s23, {SPIN}')
            issue()
            for i in range(cover): fill()
            a(f's_branch L_pw_{tag}\n{lab}:')
            a(f's_sub_u32 s23, s23, 1\ns_cbranch_scc1 L_pto_{tag}')
            issue()
            a(f'L_pw_{tag}:\ns_waitcnt vmcnt(2)')
            check(); shadow()
            a(f's_cbranch_vccnz {lab}\n{ok}:')
            self.late.append(f'L_pto_{tag}:\ns_mov_b32 {SPIN}, 0x400\ns_waitcnt vmcnt(0)\n@SH@s_branch {ok}')
            self.late_sh.append(shadow)
            return
        if mid:
            issue(); mid()
            for r in range(nmid):
                check(); shadow()
                a(f's_cbranch_vccz {ok}')
        a(f's_mov_b32 s23, {SPIN}')
        a(f'{lab}:')
        issue()
        for r in range(nchk - 1):
            check(); shadow()
            a(f's_cbranch_vccz {ok}')
        a(f's_sub_u32 s23, s23, 1\ns_cbranch_scc1 L_pto_{tag}')
        check(); shadow()
        a(f's_cbranch_vccnz {lab}\n{ok}:')
        self.late.append(f'L_pto_{tag}:\ns_mov_b32 {SPIN}, 0x400\ns_waitcnt vmcnt(0)\n@SH@s_branch {ok}')
        self.late_sh.append(shadow)

    def poll2(self, tag, dst, soff, chores, t0, t1, t2, fill, check, shadow, retry=None):
        a = self.a
        lab = f'L_poll_{tag}'; ok = f'L_pok_{tag}'
        def issue():
            a(f'buffer_load_dwordx4 {vr(dst,4)}, v{V_L16}, {WS}, {soff} offen {self.pf}')
            a(f'buffer_load_dwordx4 {vr(dst+4,4)}, v{V_L16}, {WS}, {soff} offen offset:1024 {self.pf}')
        def spend(t, flush=False):
            while chores and (flush or chores[0][0] <= t + 4):
                c, f = chores.pop(0); f(); t -= c
            while t >= 12: fill(); t -= 16
        spend(t0); issue()
        spend(t1 - 40); issue()
        spend(t2 - 40, flush=True)
        a(f's_mov_b32 s23, {SPIN}\ns_branch L_pw_{tag}\n{lab}:')
        a(f's_sub_u32 s23, s23, 1\ns_cbranch_scc1 L_pto_{tag}')
        issue()
        if retry: retry()
        a(f'L_pw_{tag}:\ns_waitcnt vmcnt(2)')
        check(); shadow()
        a(f's_cbranch_vccnz {lab}\n{ok}:')
        self.late.append(f'L_pto_{tag}:\ns_mov_b32 {SPIN}, 0x400\ns_waitcnt vmcnt(0)\n@SH@s_branch {ok}')
        self.late_sh.append((lambda: (retry(), shadow())) if retry else shadow)

    def stamp(self, i):
        if self.o.get('stamp') and (self.o.get('smask', 0x3ff) >> i) & 1: self.a.raw(f'    {"s_memrealtime" if self.o.get("rt") else "s_memtime"} s[{82+2*i}:{83+2*i}]')

    def dump_stamps(self, tg):
        a = self.a
        if not self.o.get('stamp'): return
        lab = f'L_nodump_{tg}'
        a(f's_cmp_lg_u32 {S_S}, {self.o.get("dstep", 41)}\ns_cbranch_scc1 {lab}\ns_waitcnt lgkmcnt(0)')
        a(f's_lshl_b32 s21, {S_RANK}, 8\ns_lshl_b32 s22, {S_W}, 6\ns_add_u32 s21, s21, s22\ns_add_u32 s21, s21, {hex(L.DBG)}')
        a(f'v_mov_b32 v{T+10}, 0')
        for i in range(10):
            a(f'v_mov_b32 v{T+11}, s{82+2*i}\nbuffer_store_dword v{T+11}, v{T+10}, {WS}, s21 offen offset:{4*i}')
        a(f's_waitcnt vmcnt(0)\n{lab}:')

    def r_loop(self, tg, cf, wv=0):
        a = self.a; o = self.o
        mf16 = 'v_mfma_f32_16x16x16_bf16'; mf32 = 'v_mfma_f32_16x16x32_bf16'
        cvt = 'v_cvt_pk_bf16_f32'
        QP = 'quad_perm:[2,3,0,1] row_mask:0xf bank_mask:0xf'
        dum = lambda n=1: [a(a.dummy) for _ in range(n)]
        self.late = []; self.late_sh = []; self.fixups = []
        self.pf = 'nt' if (not cf and o.get('pollnt')) else 'sc1'
        a.auto_vm = False
        B0, B1, B2 = WVB, WVB + 8, M
        ACC = {'q': AQ, 'k': AK, 'v': AV}
        def S(m, k, p, buf=None):
            f = (m, k, p)
            self.smf(ACC[m] + 4 * p, M + 4 * k, ar(8 * AGF.index(f), 8) if buf is None else vr(buf, 8))
        def V(k, p, buf=None): S('v', k, p, buf)
        def RD(buf, m, k, p, hh):
            off = self.ldsf_off[(m, k, p)]
            a(f'ds_read_b128 {vr(buf + 4*hh, 4)}, v{V_WV if off < 65536 else V_WV2} offset:{off % 65536 + hh*1024}')
        def RD2(buf, m, k, p): RD(buf, m, k, p, 0); RD(buf, m, k, p, 1)
        def pkadd(d, x, y): a(f'v_add_f32 v{d}, v{x}, v{y}\nv_add_f32 v{d+1}, v{x+1}, v{y+1}')
        def PK(d, x, y): a(f'v_pk_add_f32 {vr(d,2)}, {vr(x,2)}, {vr(y,2)}')
        def add(d, x, y): a(f'v_add_f32 v{d}, v{x}, v{y}')
        def dmf(r):
            m = o.get('fillm', 2)
            if m == 1 or (m == 2 and r == M + 8): a('s_nop 3')
            elif m == 3: a(f's_nop 2\n{a.dummy}')
            elif m == 4: a(f'{mf16} {vr(r,4)}, s[26:27], s[26:27], 0' if False else f'{mf16} {vr(r,4)}, {vr(SELQ+2,2)}, {vr(SELQ,2)}, 0')
            else: a(f'{mf16} {vr(r,4)}, {vr(SELQ,2)}, {vr(SELQ,2)}, {vr(r,4)}')
        def filt(line):
            st = 'buffer_store' in line and ('s75' in line or 's76' in line) and 'sc1' in line
            ld = 'buffer_load' in line and ('s67' in line or 's68' in line)
            if o.get('nost') and st: return None
            if o.get('nofst') and st and 's76' in line: return None
            if o.get('nold') and ld: return None
            if o.get('nofld') and ld and 's68' in line: return None
            if o.get('ldplain') and ld and 's67' in line: return line.replace(' sc1', '')
            if o.get('ldnt') and ld and 's67' in line: return line.replace(' sc1', ' nt')
            if o.get('stplain') and st: return line.replace(' sc1', '')
            if o.get('novm') and 'vmcnt' in line: return None
            if o.get('nowarm') and 'buffer_load_dword v27' in line: return 's_nop 0'
            if o.get('novmh') and 'buffer_store_dwordx2' in line: return None
            return line
        PA = M + 8; R = T + 8
        spin = f'L_kvspin_{tg}'; back = f'L_kvback_{tg}'
        def preload():
            RD2(M + 24, 'q', 0, 0); RD2(M + 16, 'q', 0, 1); RD2(B0, 'q', 1, 0); RD2(B1, 'q', 1, 1); RD2(T, 'k', 0, 0)
        def slackB():
            a(f'v_cmp_eq_u32 vcc, 0, v{V_FLAG}')
            for r in range(0, 8, 2): a(f'v_mov_b64 {vr(VXC+r,2)}, {vr(VXN+r,2)}')
            a(f's_xor_b32 {S_INP}, {S_INP}, 0x40000')
            a(f's_cbranch_vccnz {spin}\n{back}:')
            a(f"""
            s_cmp_lt_u32 {S_S}, 63
            s_cselect_b32 {S_T0}, {0 if o.get("nopf") else 32*24576}, 0
            s_add_u32 {S_REC}, {S_REC}, {S_T0}
            s_cmp_lt_u32 {S_S}, 62
            s_cselect_b32 {S_T0}, 2048, 0
            s_add_u32 {S_FKV}, {S_FKV}, {S_T0}
            s_cmp_ge_u32 {S_S}, 2
            s_cselect_b32 {S_T1}, {S_FM}, {hex(L.OOB)}
            s_cmp_ge_u32 {S_S}, 1
            s_cselect_b32 {S_T0}, {S_KVM}, {hex(L.OOB)}
            s_add_u32 {S_FM}, {S_FM}, 2048
            s_cmp_eq_u32 {S_S}, 62
            s_cselect_b32 {S_TAG}, {hex((L.KVL - L.KVM - 62 * 131072) & 0xFFFFFFFF) if o.get('dpoll', 1) else 0}, 0
            s_add_u32 {S_KVM}, {S_KVM}, {S_TAG}
            s_add_u32 {S_KVM}, {S_KVM}, 131072
            s_lshr_b32 {S_TAG}, {S_S}, 1
            s_and_b32 {S_TAG}, {S_TAG}, 1
            s_sub_u32 {S_NTAG}, {S_TAG}, 1
            s_add_u32 {S_IN1}, {S_IN0}, 32768
            s_and_b32 {S_OTAG}, {S_S}, 1
            s_sub_u32 {S_NOTAG}, {S_OTAG}, 1
            """)
            if o.get('steplog') and wv == 0 and tg != 's':
                a(f's_memrealtime s[82:83]\ns_lshl_b32 s84, {S_S}, 2\ns_lshl_b32 s85, {S_RANK}, 8\ns_add_u32 s84, s84, s85\ns_add_u32 s84, s84, {hex(L.DBG + 131072)}')
                a(f's_waitcnt lgkmcnt(0)\nv_mov_b32 v{T+10}, s82\nbuffer_store_dword v{T+10}, v{V_ONE}, {WS}, s84 offen')
            if o.get('zB'):
                for r in range(AQ, AQ + 24, 2): a(f'v_mov_b64 {vr(r,2)}, 0')
            if o.get('barB'): dmf(PA); a('s_barrier')
            for i in range(o.get('dB', 8) if wv >= 2 else o.get('dB0', o.get('dB', 8))): dmf(PA + 4 * (i % 2))
        def checkB():
            if not o.get('shortchk'):
                a(f"""
                v_max3_u32 v{R}, v{M}, v{M+1}, v{M+2}
                v_max3_u32 v{R+1}, v{M+3}, v{M+4}, v{M+5}
                v_max3_u32 v{R}, v{R}, v{M+6}, v{M+7}
                v_max_u32 v{R}, v{R}, v{R+1}
                """)
            else:
                a(f'v_max_u32 v{R}, v{M}, v{M+7}')
            a(f'v_cmp_eq_u32 vcc, -1, v{R}')
        def shadowB():
            if o.get('specw', 1): a(f'ds_write_b128 v{V_X0}, {vr(M,4)}')
            else: dmf(PA); a('s_nop 2')
        preload()
        for r in range(AQ, AQ + 24, 2): a(f'v_mov_b64 {vr(r,2)}, 0')
        a(f's_xor_b32 {S_INP}, {S_INP}, 0x40000')
        a.wait(lgkm=0)
        a(f'L_Rloop_{tg}:')
        a.forget()
        a.hot = True
        a.filt = filt
        sa = lambda txt: [(4, lambda l=l: a(l)) for l in txt.strip().split('\n')]
        va = lambda lines: [(8, lambda l=l: a(l)) for l in lines]
        if True:
            chB = [(44, lambda: a(f'v_cmp_eq_u32 vcc, 0, v{V_FLAG}\ns_cbranch_vccnz {spin}\n{back}:'))]
            chB += va([f'v_mov_b64 {vr(VXC+r,2)}, {vr(VXN+r,2)}' for r in range(0, 8, 2)])
            chB += sa(f"""
            s_xor_b32 {S_INP}, {S_INP}, 0x40000
            s_cmp_lt_u32 {S_S}, 63
            s_cselect_b32 {S_T0}, {0 if o.get("nopf") else 32*24576}, 0
            s_add_u32 {S_REC}, {S_REC}, {S_T0}
            s_cmp_lt_u32 {S_S}, 62
            s_cselect_b32 {S_T0}, 2048, 0
            s_add_u32 {S_FKV}, {S_FKV}, {S_T0}
            s_cmp_ge_u32 {S_S}, 2
            s_cselect_b32 {S_T1}, {S_FM}, {hex(L.OOB)}
            s_cmp_ge_u32 {S_S}, 1
            s_cselect_b32 {S_T0}, {S_KVM}, {hex(L.OOB)}
            s_add_u32 {S_FM}, {S_FM}, 2048
            s_cmp_eq_u32 {S_S}, 62
            s_cselect_b32 {S_TAG}, {hex((L.KVL - L.KVM - 62 * 131072) & 0xFFFFFFFF) if o.get('dpoll', 1) else 0}, 0
            s_add_u32 {S_KVM}, {S_KVM}, {S_TAG}
            s_add_u32 {S_KVM}, {S_KVM}, 131072
            s_lshr_b32 {S_TAG}, {S_S}, 1
            s_and_b32 {S_TAG}, {S_TAG}, 1
            s_sub_u32 {S_NTAG}, {S_TAG}, 1
            s_add_u32 {S_IN1}, {S_IN0}, 32768
            s_and_b32 {S_OTAG}, {S_S}, 1
            s_sub_u32 {S_NOTAG}, {S_OTAG}, 1
            """)
            if o.get('steplog') and wv == 0 and tg != 's':
                chB.insert(0, (70, lambda: (a(f's_memrealtime s[82:83]\ns_lshl_b32 s84, {S_S}, 2\ns_lshl_b32 s85, {S_RANK}, 8\ns_add_u32 s84, s84, s85\ns_add_u32 s84, s84, {hex(L.DBG + 131072)}'),
                    a(f's_waitcnt lgkmcnt(0)\nv_mov_b32 v{R}, s82\nbuffer_store_dword v{R}, v{V_ONE}, {WS}, s84 offen'))))
            if not o.get('split', 1):
                self.poll2('B' + tg, M, S_MEMP, chB, o.get('tB0', 200), o.get('tB1', 180), o.get('tB2', 100), lambda: dmf(PA), checkB, shadowB)
            else:
                ld = lambda i: a(f'buffer_load_dwordx4 {vr(M+4*i,4)}, v{V_L16}, {WS}, {S_MEMP} offen offset:{1024*i} {self.pf}')
                def spend(t, flush=False):
                    while chB and (flush or chB[0][0] <= t + 4):
                        c, f = chB.pop(0); f(); t -= c
                    while t >= 12: dmf(PA); t -= 16
                def chk(i):
                    a(f'v_max3_u32 v{R}, v{M+4*i}, v{M+4*i+1}, v{M+4*i+2}\nv_max_u32 v{R}, v{R}, v{M+4*i+3}\nv_cmp_eq_u32 vcc, -1, v{R}')
                g = o.get('tBg', 32)
                spend(o.get('tB0', 170) if wv >= 2 else o.get('tB00', o.get('tB0', 170))); ld(0); spend(g); ld(1)
                spend(o.get('tB1', 180) - 40 - g); ld(0); spend(g); ld(1)
                spend(o.get('tB2', 100) - 40 - g, flush=True)
                a(f's_mov_b32 s23, {SPIN}\nL_pw_B{tg}:\ns_waitcnt vmcnt(3)')
                chk(0)
                a(f'ds_write_b128 v{V_X0}, {vr(M,4)}')
                S('q', 0, 0, M + 24)
                a(f's_cbranch_vccnz L_poll_B{tg}\nL_pok_B{tg}:')
                def fixB():
                    a(f'L_poll_B{tg}:\ns_sub_u32 s23, s23, 1\ns_cbranch_scc1 L_pto_B{tg}')
                    ld(0); ld(1)
                    a(f'v_mov_b64 {vr(AQ,2)}, 0\nv_mov_b64 {vr(AQ+2,2)}, 0\ns_branch L_pw_B{tg}')
                    a(f'L_pto_B{tg}:\ns_mov_b32 {SPIN}, 0x400\ns_branch L_pok_B{tg}')
                    a(f'L_pol1_B{tg}:\ns_waitcnt vmcnt(0)')
                    chk(1)
                    a(f's_cbranch_vccz L_pk1_B{tg}\ns_sub_u32 s23, s23, 1\ns_cbranch_scc1 L_pt1_B{tg}')
                    ld(1)
                    a(f's_branch L_pol1_B{tg}\nL_pt1_B{tg}:\ns_mov_b32 {SPIN}, 0x400\ns_branch L_pk1_B{tg}')
                self.fixups.append(fixB)
        if o.get('rt'): a('s_mov_b32 s84, s82')
        self.stamp(0)
        if o.get('rt'): self.dump_stamps(tg)
        wp = o.get('wpat', 5)
        ws = {0: (0, 1), 1: (1 + wv, 5 + wv), 2: (1 + 2 * (wv % 2), 2 + 2 * (wv % 2)), 3: (1 + wv % 2, 3 + wv % 2), 4: (1 + wv // 2, 3 + wv // 2),
              5: (1, 2), 6: (wv, 4 + wv), 7: (wv % 2, 2 + wv % 2), 8: (wv // 2, 2 + wv // 2)}[wp]
        wslot = [0]
        def MW():
            for i in range(2):
                if ws[i] == wslot[0] and not (i == 0 and o.get('specw', 1)): a(f'ds_write_b128 v{V_X0}, {vr(M+4*i,4)} offset:{1024*i}')
            wslot[0] += 1
        if not o.get('split', 1):
            MW()
            S('q', 0, 0, M + 24); MW()
            S('q', 0, 1, M + 16); MW()
            S('q', 1, 0, B0); MW()
            S('q', 1, 1, B1); MW()
            S('k', 0, 0, T); MW()
            S('k', 0, 1); MW()
            S('k', 1, 0); MW()
            S('k', 1, 1); MW()
        else:
            S('q', 0, 1, M + 16)
            a('s_waitcnt vmcnt(2)')
            a(f'v_max3_u32 v{R}, v{M+4}, v{M+5}, v{M+6}')
            S('k', 0, 0, T); a(f'v_max_u32 v{R}, v{R}, v{M+7}')
            S('k', 0, 1); a(f'v_cmp_eq_u32 vcc, -1, v{R}')
            V(0, 0)
            a(f's_cbranch_vccnz L_pol1_B{tg}\nL_pk1_B{tg}:')
            a(f'ds_write_b128 v{V_X0}, {vr(M+4,4)} offset:1024')
            if o.get('lastx', 1): a(f's_cmp_eq_u32 {S_S}, 63')
            S('k', 1, 0)
            if o.get('lastx', 1): a(f's_cbranch_scc1 L_Rlast_{tg}')
            lq_last = list(a.lq)
            S('q', 1, 0, B0); S('q', 1, 1, B1); S('k', 1, 1)
        a.wait_lds_writes()
        a('s_barrier')
        def MR(k): a(f'ds_read_b128 {vr(M+4*k,4)}, v{V_X0 + k//2} offset:{1024*(k%2)}')
        MR(2); MR(3)
        if not o.get('split', 1): V(0, 0)
        MR(4)
        V(0, 1); MR(5)
        V(1, 0); MR(6)
        V(1, 1); MR(7)
        VXL = lambda i: a(f'buffer_load_dwordx4 {vr(VXN+4*i,4)}, v{V_L16}, {WS}, {S_REC} offen offset:{2048+1024*i} sc1')
        self.stamp(1)
        vm_ops = [
            lambda: a(f'buffer_store_dwordx4 {vr(KMH,4)}, v{V_L16}, {WS}, {S_T0} offen sc1'),
            lambda: VXL(0),
            lambda: VXL(1),
            lambda: (a(f'buffer_store_dword v{V_F}, v{V_ONE}, {WS}, {S_T1} offen sc1'),
                     a(f'buffer_load_dword v{V_FLAG}, v{V_Z}, {WS}, {S_FKV} offen sc1')),
        ]
        slot = [0]
        first = o.get('vm0', 5)
        def X():
            i = slot[0] - first - wv
            if i == 0: a('s_waitcnt vmcnt(0)')
            if i >= 0 and i % 4 == 0 and i // 4 < len(vm_ops): vm_ops[i // 4]()
            slot[0] += 1
        S('q', 2, 0); RD(B0, 'k', 2, 1, 0); X()
        S('q', 3, 0); RD(B0, 'k', 2, 1, 1); X()
        S('q', 4, 0); RD(B1, 'k', 3, 1, 0); X()
        S('q', 5, 0); RD(B1, 'k', 3, 1, 1); X()
        S('q', 6, 0); RD(T, 'k', 4, 1, 0); X()
        S('q', 7, 0); RD(T, 'k', 4, 1, 1); X()
        S('q', 2, 1); X()
        S('q', 3, 1); X()
        S('q', 4, 1); X()
        assert slot[0] > first + wv
        S('q', 5, 1); RD(B2, 'k', 5, 1, 0); X(); add(AQ, AQ, AQ + 2)
        S('q', 6, 1); RD(B2, 'k', 5, 1, 1); X(); add(AQ + 1, AQ + 1, AQ + 3)
        S('q', 7, 1); X(); a(f'{cvt} v{AQ+2}, v{AQ}, v{AQ+1}')
        S('k', 2, 0); X()
        S('k', 2, 1, B0); RD(B0, 'k', 6, 1, 0); X()
        S('k', 3, 0); RD(B0, 'k', 6, 1, 1); X()
        S('k', 3, 1, B1); RD(B1, 'k', 7, 0, 0); X(); add(AQ + 4, AQ + 4, AQ + 6)
        S('k', 4, 0); RD(B1, 'k', 7, 0, 1); X(); add(AQ + 5, AQ + 5, AQ + 7)
        S('k', 4, 1, T); RD(T, 'k', 7, 1, 0); X(); a(f'{cvt} v{AQ+3}, v{AQ+4}, v{AQ+5}')
        S('k', 5, 0); RD(T, 'k', 7, 1, 1); X()
        a(f'{mf16} {vr(AQ+4,4)}, {vr(AQ+2,2)}, {vr(SELQ,2)}, 0'); X()
        a(f'{mf16} {vr(T+8,4)}, {vr(AQ+2,2)}, {vr(SELQ+2,2)}, 0'); X()
        S('k', 5, 1, B2); RD(B2, 'v', 6, 0, 0); X()
        S('k', 6, 0); RD(B2, 'v', 6, 0, 1)
        S('k', 7, 0, B1); RD(B1, 'v', 7, 0, 0); a(f'{cvt} v{AQ}, v{AQ+4}, v{AQ+5}')
        S('k', 6, 1, B0); RD(B1, 'v', 7, 0, 1); a(f'{cvt} v{AQ+1}, v{AQ+6}, v{AQ+7}\n{cvt} v{AQ+2}, v{T+8}, v{T+9}')
        S('k', 7, 1, T); RD(B0, 'v', 6, 1, 0); a(f'{cvt} v{AQ+3}, v{T+10}, v{T+11}')
        assert slot[0] > first + wv + 4 * (len(vm_ops) - 1)
        self.stamp(2)
        RD(B0, 'v', 6, 1, 1)
        add(AK, AK, AK + 2)
        a(f'{mf32} {vr(AQ+4,4)}, {vr(KX,4)}, {vr(AQ,4)}, 0')
        add(AK + 1, AK + 1, AK + 3)
        a(f'{cvt} v{AK+2}, v{AK}, v{AK+1}')
        a(f'{mf32} {vr(T+8,4)}, {vr(KX+4,4)}, {vr(AQ,4)}, 0')
        pkadd(AK + 4, AK + 4, AK + 6)
        a(f'{cvt} v{AK+3}, v{AK+4}, v{AK+5}')
        a(f'{mf16} {vr(AK+4,4)}, {vr(AK+2,2)}, {vr(SELK,2)}, 0')
        a(f'{mf16} {vr(T,4)}, {vr(AK+2,2)}, {vr(SELK+2,2)}, 0')
        kslot = [0]
        def KL():
            i = kslot[0] - wv
            if i in (0, 4): a(f'buffer_load_dwordx4 {vr(KX+i,4)}, v{V_L16}, {WS}, {S_REC} offen offset:{256*i} sc1')
            kslot[0] += 1
        for i in range(4): a(f'v_cndmask_b32 v{AK+i}, v{T+8+i}, v{AQ+4+i}, {S_LO}')
        a(f'{cvt} v{KMH}, v{AK+4}, v{AK+5}\n{cvt} v{KMH+1}, v{AK+6}, v{AK+7}')
        a(f'{cvt} v{KMH+2}, v{T}, v{T+1}\n{cvt} v{KMH+3}, v{T+2}, v{T+3}')
        a(f'{mf32} {vr(T+4,4)}, {vr(KMH,4)}, {vr(AQ,4)}, 0')
        V(2, 0)
        a(f'ds_write_b128 v{V_X0}, {vr(AK,4)} offset:8192')
        a(f'v_cndmask_b32 v{T+4}, v{T+5}, v{T+4}, {S_LO}')
        V(2, 1)
        a(f'ds_write_b32 v{V_SMW}, v{T+4}')
        self.stamp(3)
        B3 = M + 8
        ONES, HALF = B2, B2 + 4
        V(3, 0); KL()
        V(3, 1); RD(B3, 'v', 7, 1, 0); KL()
        V(6, 0, B2); RD(B3, 'v', 7, 1, 1); KL()
        V(6, 1, B0); KL()
        if o.get('vb', 4) > 4: V(7, 0, B1)
        a.wait_lds_writes()
        a('s_barrier')
        SX = [T + 4, T + 8, AQ + 4]
        SR = lambda x: a(f'ds_read_b128 {vr(SX[x-1],4)}, v{V_X0+x} offset:8192')
        SR(1)
        if o.get('vb', 4) <= 4: V(7, 0, B1)
        SR(2); SR(3)
        V(4, 0); a(f'ds_read_b128 {vr(T,4)}, v{V_F} offset:1024'); a(f'v_mov_b64 {vr(ONES,2)}, s[26:27]')
        V(4, 1); KL(); a(f'v_mov_b64 {vr(ONES+2,2)}, s[26:27]')
        V(5, 0); KL(); a(f'v_mov_b64 {vr(HALF,2)}, s[8:9]')
        V(7, 1, B3); KL()
        V(5, 1); KL()
        WOS = lambda i, hh: a(f'ds_read_b128 {vr(WVB+8*i+4*hh,4)}, v{V_X0} offset:{16384+8192*i+1024*hh}')
        zs = list(range(M + 16, M + 32, 2))
        def Z(n):
            for _ in range(n): a(f'v_mov_b64 {vr(zs.pop(0),2)}, 0')
        self.stamp(4)
        pkadd(AK, AK, SX[0]); pkadd(AK + 2, AK + 2, SX[0] + 2)
        PK(SX[1], SX[1], SX[2]); PK(SX[1] + 2, SX[1] + 2, SX[2] + 2)
        PK(T, T, T + 2)
        PK(AK, AK, SX[1]); PK(AK + 2, AK + 2, SX[1] + 2)
        add(T, T, T + 1)
        mx, t2 = T + 2, T + 3
        a(f'v_max3_f32 v{mx}, v{AK}, v{AK+1}, v{AK+2}\nv_max3_f32 v{mx}, v{mx}, v{AK+3}, v{T}')
        PK(AV, AV, AV + 2); PK(AV + 4, AV + 4, AV + 6)
        a(f'v_max_f32_dpp v{t2}, v{mx}, v{mx} {QP}\nv_max_f32_dpp v{mx}, v{mx}, v{mx} {QP}')
        a(f'{cvt} v{AV+2}, v{AV}, v{AV+1}\n{cvt} v{AV+3}, v{AV+4}, v{AV+5}')
        a(f'v_permlane16_swap_b32 v{mx}, v{t2}\nv_max_f32 v{T+1}, v{mx}, v{t2}\nv_max_f32 v{mx}, v{mx}, v{t2}')
        a(f'{mf16} {vr(AV+4,4)}, {vr(SELV,2)}, {vr(AV+2,2)}, 0')
        WOS(0, 0)
        a(f'v_permlane32_swap_b32 v{mx}, v{T+1}\nv_max_f32 v{mx}, v{mx}, v{T+1}\nv_mul_f32 v{mx}, {S_SC}, v{mx}')
        E = [AK, AK + 1, AK + 2, AK + 3, T]
        for e in E: a(f'v_fma_f32 v{e}, v{e}, {S_SC}, -v{mx}')
        for e in E: a(f'v_exp_f32 v{e}, v{e}')
        BX, PM = AQ, T + 6
        a(f'{cvt} v{T+8}, v{AK}, v{AK+1}\n{cvt} v{T+9}, v{AK+2}, v{AK+3}')
        a(f"""
        v_cndmask_b32 v{BX}, 0, v{T+8}, {S_LO}
        v_cndmask_b32 v{BX+1}, 0, v{T+9}, {S_LO}
        v_cndmask_b32 v{BX+2}, v{T+8}, 0, {S_LO}
        v_cndmask_b32 v{BX+3}, v{T+9}, 0, {S_LO}
        v_mov_b32_dpp v{T+1}, v{T} {QP}
        {cvt} v{VMH}, v{AV+4}, v{AV+5}
        """)
        D, D2, DL = AQ + 4, AK + 4, T + 8
        a(f'{mf32} {vr(DL,4)}, {vr(ONES,4)}, {vr(BX,4)}, 0')
        WOS(0, 1)
        a(f'{cvt} v{T+4}, v{T}, v{T+1}\n{cvt} v{T+5}, v{T+1}, v{T}')
        a(f'{mf32} {vr(D2,4)}, {vr(VXC+4,4)}, {vr(BX,4)}, 0')
        WOS(1, 0)
        a(f'v_cndmask_b32 v{PM}, 0, v{T+4}, {S_LO}\nv_cndmask_b32 v{PM+1}, v{T+5}, 0, {S_LO}')
        a(f'{mf32} {vr(D,4)}, {vr(VXC,4)}, {vr(BX,4)}, 0')
        WOS(1, 1)
        a(f'{cvt} v{VMH+1}, v{AV+6}, v{AV+7}')
        a(f'{mf16} {vr(DL,4)}, {vr(HALF,2)}, {vr(PM,2)}, {vr(DL,4)}')
        Z(1)
        a(f'{mf16} {vr(D,4)}, {vr(VMH,2)}, {vr(PM,2)}, {vr(D,4)}')
        Z(o.get('zpv', 5))
        l = DL + 1
        a(f'v_add_f32_dpp v{l}, v{DL}, v{DL} {QP}\nv_rcp_f32 v{l}, v{l}')
        for i in range(4): a(f'v_add_f32_dpp v{D+i}, v{D2+i}, v{D+i} {QP}')
        for i in (0, 2): a(f'v_pk_mul_f32 {vr(D+i,2)}, {vr(D+i,2)}, {vr(l-1,2)} op_sel:[0,1] op_sel_hi:[1,1]')
        a(f'{cvt} v{T}, v{D}, v{D+1}\n{cvt} v{T+1}, v{D+2}, v{D+3}')
        a(f'v_and_or_b32 v{T}, v{T}, -2, {S_OTAG}')
        self.stamp(5)
        a(f'ds_write_b64 v{V_OW}, {vr(T,2)}')
        if not (o.get('lastx', 1) and o.get('split', 1)): a(f's_cmp_eq_u32 {S_S}, 63\ns_cbranch_scc1 L_Rtail_{tg}')
        else: a('s_nop 2')
        OA = AK
        WA = M + 16
        def oread():
            for k in range(4): a(f'ds_read_b128 {vr(OA+4*k,4)}, v{V_OR} offset:{(k//2)*2048 + (k%2)*512}')
        oc = [f'v_bitop3_b32 v{T+2+k}, v{OA+4*k}, v{OA+4*k+2}, {S_NOTAG} bitop3:0x42' for k in range(4)] + \
             [f'v_bitop3_b32 v{T+2}, v{T+2}, v{T+3}, v{T+4} bitop3:0x80', f'v_bitop3_b32 v{T+2}, v{T+2}, v{T+5}, 1 bitop3:0x80', f'v_cmp_eq_u32 vcc, 0, v{T+2}']
        Z(len(zs))
        for _ in range(o.get('z3', 3)): a('s_nop 1')
        oread()
        for _ in range(o.get('z4', 2)): dmf(M)
        self.stamp(6)
        def wo(t, k):
            fr = WVB + 8 * WO_SPILL.index((t, k)) if (t, k) in WO_SPILL else wo_frag(t, k)
            self.smf(WA + 4 * t, OA + 4 * k, vr(fr, 8))
        def fc(t): a(f'{cvt} v{AQ+2*t}, v{WA+4*t}, v{WA+4*t+1}\n{cvt} v{AQ+2*t+1}, v{WA+4*t+2}, v{WA+4*t+3}')
        def tagit(r): a(f'v_and_or_b32 v{r}, v{r}, -2, {S_TAG}')
        hint = o.get('hint', 0) and not cf
        hp_ = o.get('hpos', 6)
        cnt = [0]
        def H():
            if hint and cnt[0] == hp_: a(f'buffer_store_dword v{T+6}, v{V_ONE}, {WS}, {S_HST} offen')
            cnt[0] += 1
        if hint: a(f's_add_u32 {S_S1}, {S_S}, 1\nv_mov_b32 v{T+6}, {S_S1}')
        a(f'L_wo_{tg}:')
        if not o.get('early0', 1):
            for k in range(4):
                wo(0, k); H(); a(oc[k]) if k < 3 else None
                wo(1, k); H()
                if k == 3: a(oc[3])
            wo(2, 0); H(); a(oc[4])
            wo(3, 0); H(); a(oc[5])
            wo(2, 1); H(); a(oc[6])
            wo(3, 1); H(); fc(0)
            wo(2, 2); H(); fc(1)
            a(f's_cbranch_vccnz L_ofix_{tg}')
            wo(3, 2); H(); tagit(AQ)
            wo(2, 3)
            a(f'buffer_store_dwordx4 {vr(AQ,4)}, v{V_IST}, {WS}, {S_IN0} offen {cf}')
            wo(3, 3)
        else:
            for k in range(4):
                wo(0, k); a(oc[2 * k])
                wo(1, k)
                if k < 3: a(oc[2 * k + 1])
            wo(2, 0)
            a(f's_cbranch_vccnz L_ofix_{tg}')
            wo(3, 0); fc(0)
            wo(2, 1); fc(1)
            wo(3, 1); tagit(AQ)
            a(f'buffer_store_dwordx4 {vr(AQ,4)}, v{V_IST}, {WS}, {S_IN0} offen {cf}')
            wo(2, 2); wo(3, 2); wo(2, 3); wo(3, 3)
        fc(2); tagit(AQ + 4); fc(3)
        a(f'buffer_store_dwordx4 {vr(AQ+4,4)}, v{V_IST}, {WS}, {S_IN1} offen {cf}')
        def fix():
            a(f'L_ofix_{tg}:\ns_mov_b32 s23, {SPIN}\nL_ofix2_{tg}:')
            a.forget(vm=False)
            oread(); a.wait(lgkm=0)
            for x in oc: a(x)
            a(f's_cbranch_vccz L_ofix3_{tg}\ns_sub_u32 s23, s23, 1\ns_cbranch_scc0 L_ofix2_{tg}\ns_endpgm\nL_ofix3_{tg}:')
            for r in range(WA, WA + 16, 2): a(f'v_mov_b64 {vr(r,2)}, 0')
            a(f's_branch L_wo_{tg}')
        self.fixups.append(fix)
        self.stamp(7)
        def pack_kvm():
            a(f's_mov_b64 vcc, {S_LO}')
            for i in range(4):
                qp = '[0,0,0,2]' if i < 2 else '[0,0,1,3]'
                a(f'v_cndmask_b32_dpp v{KMH+i}, v{VMH+i%2}, v{KMH+i}, vcc quad_perm:{qp} row_mask:0xf bank_mask:0xf')
        self.pack_kvm = pack_kvm
        def preA():
            a(f"""
            v_mov_b32 v{PA}, {S_NTAG}
            v_mov_b32 v{PA+4}, {S_NTAG}
            """)
            for i in range(o.get('dA', 4) if wv >= 2 else o.get('dA0', o.get('dA', 4))): dmf(R)
        def slackA():
            preload()
            pack_kvm()
            a(f"""
            s_add_u32 {S_S}, {S_S}, 1
            s_xor_b32 {S_IN0}, {S_IN0}, 0x40000
            s_and_b32 {S_T0}, {S_S}, 3
            s_lshl_b32 {S_T0}, {S_T0}, 13
            v_mov_b64 {vr(M,2)}, -1
            s_andn2_b32 {S_PUBB}, {S_PUBB}, 0x6000
            s_andn2_b32 {S_MEMP}, {S_MEMP}, 0x6000
            v_mov_b64 {vr(M+2,2)}, -1
            s_or_b32 {S_MEMP}, {S_MEMP}, {S_T0}
            s_xor_b32 {S_RST}, {S_T0}, 0x4000
            v_mov_b64 {vr(M+4,2)}, -1
            s_or_b32 {S_RST}, {S_RST}, {S_PUBB}
            s_or_b32 {S_PUBB}, {S_PUBB}, {S_T0}
            v_mov_b64 {vr(M+6,2)}, -1
            """)
            if not o.get('zB'):
                for r in range(AQ, AQ + 24, 2): a(f'v_mov_b64 {vr(r,2)}, 0')
            a.wait(lgkm=0)
        def checkA():
            a(f"""
            v_bitop3_b32 v{VXC}, v{PA}, v{PA+4}, {S_NTAG} bitop3:0x42
            v_and_b32 v{VXC}, 1, v{VXC}
            v_cmp_eq_u32 vcc, 0, v{VXC}
            """)
        def shadowA():
            a(f'v_smfmac_f32_16x16x64_bf16 {vr(R,4)}, {vr(SELR,4)}, {vr(PA,8)}, v{V_IDX} abid:1')
        if True:
            pl = [(M + 24, 'q', 0, 0), (M + 16, 'q', 0, 1), (B0, 'q', 1, 0), (B1, 'q', 1, 1), (T, 'k', 0, 0)]
            chA = [(40, pack_kvm)]
            chA += sa(f"""
            s_add_u32 {S_S}, {S_S}, 1
            s_xor_b32 {S_IN0}, {S_IN0}, 0x40000
            s_and_b32 {S_T0}, {S_S}, 3
            s_lshl_b32 {S_T0}, {S_T0}, 13
            s_andn2_b32 {S_PUBB}, {S_PUBB}, 0x6000
            s_andn2_b32 {S_MEMP}, {S_MEMP}, 0x6000
            s_or_b32 {S_MEMP}, {S_MEMP}, {S_T0}
            s_xor_b32 {S_RST}, {S_T0}, 0x4000
            s_or_b32 {S_RST}, {S_RST}, {S_PUBB}
            s_or_b32 {S_PUBB}, {S_PUBB}, {S_T0}
            """)
            zz = [f'v_mov_b64 {vr(r,2)}, 0' for r in range(AQ, AQ + 24, 2)] + [f'v_mov_b32 v{M}, -1']
            for k in range(10):
                chA.append((16, lambda k=k: (RD(*pl[k // 2], k % 2), a(zz[k]))))
            chA += va(zz[10:])
            chA.append((4, lambda: a.wait(lgkm=0)))
            zr = lambda: a(f'v_mov_b64 {vr(R,2)}, 0\nv_mov_b64 {vr(R+2,2)}, 0')
            chA.append((16, zr))
            if hint:
                HV, HD = VXC + 1, VXC + 2
                a(f'v_lshrrev_b32 v{HV}, 2, v{V_L16}\nv_and_b32 v{HV}, 0x7f, v{HV}\nv_mov_b32 v{HD}, 0')
                hl = lambda: a(f'buffer_load_dword v{HD}, v{HV}, {WS}, {S_HLD} offen sc1')
                def spendh(t):
                    while chA and chA[0][0] <= t + 4:
                        c, f = chA.pop(0); f(); t -= c
                    while t >= 12: dmf(VXC + 4); t -= 16
                nh = o.get('hdep', 4)
                for k in range(nh - 1): hl(); spendh(o.get('hq', 48) - 8)
                a(f's_mov_b32 s23, {SPIN}\nL_hp_{tg}:')
                hl()
                a(f'v_cmp_gt_u32 vcc, {S_S1}, v{HD}\ns_sub_u32 s23, s23, 1\ns_cbranch_scc1 L_hk_{tg}\ns_cbranch_vccnz L_hp_{tg}\nL_hk_{tg}:')
            self.poll2('A' + tg, PA, S_INP, chA, o.get('hdel', 0) if hint else (o.get('tA0', 230) if wv >= 2 else o.get('tA00', o.get('tA0', 230))), o.get('tA1', 180), o.get('tA2', 100), lambda: dmf(VXC + 4), checkA, shadowA, retry=zr)
        self.stamp(8)
        hp = ''
        a(f"""
        {'s_nop 1' + chr(10) + a.dummy + chr(10) + 's_nop 0' if hp else ''}
        v_add_f32_dpp v{R}, v{R}, v{R} row_ror:8 row_mask:0xf bank_mask:0x3 {hp}
        v_add_f32_dpp v{R+1}, v{R+1}, v{R+1} row_ror:8 row_mask:0xf bank_mask:0x3 {hp}
        v_add_f32_dpp v{R}, v{R+2}, v{R+2} row_ror:8 row_mask:0xf bank_mask:0xc {hp}
        v_add_f32_dpp v{R+1}, v{R+3}, v{R+3} row_ror:8 row_mask:0xf bank_mask:0xc {hp}
        v_add_f32_dpp v{R}, v{R}, v{R} row_ror:12 row_mask:0xf bank_mask:0xf
        v_add_f32_dpp v{R+1}, v{R+1}, v{R+1} row_ror:12 row_mask:0xf bank_mask:0xf
        {cvt} v{R+2}, v{R}, v{R+1}
        buffer_store_dword v{R+2}, v{V_PUB}, {WS}, {S_PUBB} offen {cf}
        """)
        self.stamp(9)
        a(f'buffer_store_dword v{M}, v{V_PUB}, {WS}, {S_RST} offen {cf}')
        if o.get('span2') and wv == 0:
            lab = a.newlabel('n8')
            a(f's_cmp_lg_u32 {S_S}, 8\ns_cbranch_scc1 {lab}')
            self.note(5, T + 10)
            a(f'{lab}:')
        if not o.get('rt'): self.dump_stamps(tg)
        a(f's_branch L_Rloop_{tg}')
        a.hot = False
        a(f'{spin}:')
        self.spin_flag(V_FLAG, f'v{V_Z}', S_FKV)
        a(f's_branch {back}')
        for txt, sh in zip(self.late, self.late_sh):
            pre, post = txt.split('@SH@')
            a(pre); a('s_nop 7'); sh(); a('s_nop 7'); a(post)
        for f in self.fixups: f()
        if o.get('lastx', 1) and o.get('split', 1):
            a(f'L_Rlast_{tg}:')
            a.lq = list(lq_last)
            RD2(B0, 'k', 2, 1); S('k', 1, 1); RD2(B1, 'k', 3, 1); V(0, 1); RD2(T, 'k', 4, 1); V(1, 0); V(1, 1)
            a.wait(lgkm=6)
            a('s_barrier')
            for k in range(2, 8): MR(k)
            a('s_waitcnt vmcnt(0)')
            a(f'buffer_store_dwordx4 {vr(KMH,4)}, v{V_L16}, {WS}, {S_T0} offen sc1')
            a(f'buffer_store_dword v{V_F}, v{V_ONE}, {WS}, {S_T1} offen sc1')
            RD2(B2, 'k', 5, 1)
            rest = [('k', 6, 1), ('k', 7, 0), ('k', 7, 1), ('v', 6, 0), ('v', 6, 1), ('v', 7, 0), ('v', 7, 1)]
            ring = [(B0, ('k', 2, 1)), (B1, ('k', 3, 1)), (T, ('k', 4, 1)), (B2, ('k', 5, 1))]
            regf = [('k', k, 0) for k in range(2, 7)] + [('v', k, p) for k in range(2, 6) for p in range(2)]
            while ring:
                if regf: S(*regf.pop(0))
                b, f = ring.pop(0)
                S(*f, b)
                if rest:
                    f = rest.pop(0); RD2(b, *f); ring.append((b, f))
                if f == ('v', 6, 1) and not rest[2:] and False: pass
            for f in regf: S(*f)
            for x, r in ((AK, SELK), (AV, None)):
                pkadd(x, x, x + 2); pkadd(x + 4, x + 4, x + 6)
                a(f'{cvt} v{x+2}, v{x}, v{x+1}\n{cvt} v{x+3}, v{x+4}, v{x+5}')
            a(f'{mf16} {vr(AK+4,4)}, {vr(AK+2,2)}, {vr(SELK,2)}, 0\n{mf16} {vr(T,4)}, {vr(AK+2,2)}, {vr(SELK+2,2)}, 0')
            a(f'{mf16} {vr(AV+4,4)}, {vr(SELV,2)}, {vr(AV+2,2)}, 0')
            a(f'{cvt} v{KMH}, v{AK+4}, v{AK+5}\n{cvt} v{KMH+1}, v{AK+6}, v{AK+7}\n{cvt} v{KMH+2}, v{T}, v{T+1}\n{cvt} v{KMH+3}, v{T+2}, v{T+3}')
            a(f'{cvt} v{VMH}, v{AV+4}, v{AV+5}\n{cvt} v{VMH+1}, v{AV+6}, v{AV+7}')
        a(f'L_Rtail_{tg}:')
        a.forget()
        self.pack_kvm()
        a(f'''
        buffer_store_dwordx4 {vr(KMH,4)}, v{V_L16}, {WS}, {S_KVM} offen sc1
        s_waitcnt vmcnt(0) lgkmcnt(0)
        buffer_store_dword v{V_F}, v{V_ONE}, {WS}, {S_FM} offen sc1
        buffer_store_dword v{V_F}, v{V_ONE}, {WS}, {S_FM} offen offset:2048 sc1
        ''')
        self.tstamp(6, T + 4)
        self.note(6, T + 4)
        if o.get('stamp'):
            set_srd(a, 12, P_DBG, 256)
            a(f'''
            s_memtime s[82:83]
            s_memrealtime s[84:85]
            s_waitcnt lgkmcnt(0)
            s_sub_u32 s82, s82, s80
            s_sub_u32 s84, s84, s30
            s_sub_u32 s28, s28, s30
            v_mov_b32 v{T}, s82
            v_mov_b32 v{T+1}, {S_FAST}
            v_mov_b32 v{T+2}, s28
            v_mov_b32 v{T+3}, s84
            v_mov_b32 v{T+4}, 16
            buffer_store_dwordx4 {vr(T,4)}, v{T+4}, {ST}, 0 offen
            ''')
        a('s_endpgm')
        a.auto_vm = True
```

```python
import layout as L
from gen_common import *

V_L16, V_IST, V_PUB, V_X0, V_F, V_SMW, V_OW, V_WV = 1, 2, 3, 4, 8, 9, 10, 11
KMH, VMH = 12, 16
V_IDX, V_WV2 = 18, 19
SELR, SELV, V_ONE, V_OR, SELQ, SELK = 20, 24, 26, 27, 28, 128
V_Z = 29
VXC, VXN, KX = 32, 40, 48
WVB = 56
AQ, AK, AV = 72, 80, 88
M = 96
T = 132
WO0 = 144
V_FLAG = 0
SC = 128 ** -0.5 * 1.4426950408889634
import struct
def f2u(x): return struct.unpack('<I', struct.pack('<f', x))[0]

WO_SPILL = [(0, 0), (1, 0)]
def wo_frag(t, kb):
    order = [(t_, k_) for t_ in range(4) for k_ in range(4) if (t_, k_) not in WO_SPILL]
    return WO0 + 8 * order.index((t, kb))

LDSF = [('q', 0, 0), ('q', 0, 1), ('q', 1, 0), ('q', 1, 1), ('k', 0, 0)] + [('k', k, 1) for k in range(2, 8)] + [('k', 7, 0)] + [('v', k, p) for k in (6, 7) for p in range(2)]
AGF = [(m, k, p) for m in 'qkv' for k in range(8) for p in range(2) if (m, k, p) not in LDSF]
assert len(LDSF) == 16 and len(AGF) == 32
S_S = 's61'
S_MEMP = 's62'
S_PUBB = 's63'
S_IN0, S_IN1 = 's64', 's65'
S_INP = 's66'
S_REC = 's67'
S_FKV = 's68'
S_KVM, S_FM = 's69', 's70'
S_RST = 's71'
S_LO = 's[72:73]'
S_SC = 's74'
S_T0, S_T1 = 's75', 's76'
S_FAST = 's77'
S_TAG, S_NTAG = 's78', 's79'
S_OTAG, S_NOTAG = 's24', 's25'
S_HST, S_HLD, S_S1 = 's10', 's11', 's19'

class RRole:
    def smf(self, acc, A, B):
        self.a(f'v_smfmac_f32_16x16x64_bf16 {vr(acc,4)}, {vr(A,4)}, {B}, v{V_IDX}')

    def r_role(self):
        a = self.a; o = self.o
        a('L_R:')
        a.vq = list(self.vq_role)
        self.mark(0)
        self.note(2, 40)
        VD8, VD1, VTQ, VTO, VTA = 28, 29, 30, 31, 7
        a(f"""
        v_and_b32 v1, 63, v0
        v_lshrrev_b32 v2, 4, v1
        v_and_b32 v3, 15, v1
        v_lshlrev_b32 v4, 4, v3
        v_lshl_add_u32 v{VD8}, v2, 17, v4
        v_and_b32 v4, 0x70, v4
        v_lshrrev_b32 v3, 3, v3
        v_lshl_add_u32 v4, v3, 9, v4
        v_lshl_add_u32 v{VD1}, v2, 14, v4
        s_lshl_b32 s21, {S_W}, 7
        v_add_u32 v{VD1}, s21, v{VD1}
        s_mul_i32 s78, {S_W}, {L.BLK}
        """)
        groups = [(m, b) for m in 'oqkv' for b in range(2)]
        def issue(gi):
            mat, b = groups[gi]
            if b == 0: set_srd(a, 8, {'q': P_WQ, 'k': P_WK, 'v': P_WV, 'o': P_WO}[mat], 4 << 20)
            a(f's_add_u32 m0, s78, {(gi % 2) * L.GRP}')
            if mat != 'o':
                a(f's_add_u32 s21, {S_W}, {4 * b}\ns_lshl_b32 s21, s21, 19\ns_lshl_b32 s22, {S_RANK}, 8\ns_add_u32 s21, s21, s22')
                self.dma_block(f'v{VD8}', 's21', 8192)
            else:
                a(f's_lshl_b32 s21, {S_RANK}, 17\ns_add_u32 s21, s21, {b * 65536}')
                self.dma_block(f'v{VD1}', 's21', 1024)
        issue(0)
        self.load_table('T_R', 96, 28, 7)
        self.confirm_role()
        issue(1)
        self.mark(1)
        self.gate_and_store()
        names = list(L.r_table().keys())
        def tv(n): return 96 + names.index(n)
        a(f'v_mov_b32 v{VTQ}, v{tv("trq")}\nv_mov_b32 v{VTO}, v{tv("tro")}\nv_add_u32 v6, 65536, v{tv("wv")}')
        if o.get('code'):
            pc = a.newlabel('pc')
            a(f's_getpc_b64 s[12:13]\n{pc}:\ns_add_u32 s12, s12, L_R_ready-{pc}\ns_addc_u32 s13, s13, 0\ns_mov_b32 s14, L_R_slow-L_R_ready\ns_mov_b32 s15, 0x20000')
            a(f'v_lshlrev_b32 v1, 7, v0\nbuffer_load_dword v27, v1, {ST}, 0 offen')
        else:
            a(f'buffer_load_dword v27, v{tv("one")}, {WS}, 0 offen')
        a(f'buffer_load_dword v26, v{tv("mm")}, {WS}, 0 offen')
        a.auto_vm = False
        TMP = 56
        park = {}
        parkregs = [32, 64, 72, 80, 88, 124, 132, 8]
        for f in LDSF:
            if f[0] == 'k': park[f] = parkregs.pop(0)
            if f[0] == 'q': park[f] = -8 * AGF.index(('v', 3 + 2 * f[1], f[2])) - 1
        S_RDY = 's76'
        def scalars():
            if o.get('pa2', 0):
                dec = f's_lshr_b32 s84, {S_RANK}, 3\ns_lshl_b32 s84, s84, 1\ns_lshr_b32 s21, {S_W}, 1\ns_add_u32 s84, s84, s21\n' \
                      f's_lshr_b32 s85, {S_RANK}, 1\ns_and_b32 s85, s85, 3\n' \
                      f's_and_b32 s86, {S_RANK}, 1\ns_lshl_b32 s86, s86, 1\ns_and_b32 s21, {S_W}, 1\ns_add_u32 s86, s86, s21'
            else:
                dec = f's_lshr_b32 s84, {S_RANK}, 2\ns_and_b32 s85, {S_RANK}, 3\ns_mov_b32 s86, {S_W}'
            a(f'''
            {dec}
            s_lshl_b32 {S_INP}, s84, 2
            s_add_u32 {S_INP}, {S_INP}, s85
            s_lshl_b32 {S_INP}, {S_INP}, 2
            s_add_u32 {S_INP}, {S_INP}, s86
            s_lshl_b32 {S_INP}, {S_INP}, 11
            s_add_u32 {S_INP}, {S_INP}, {hex(L.RIN)}
            s_lshl_b32 {S_PUBB}, s84, 10
            s_and_b32 s22, s85, 2
            s_lshl_b32 s22, s22, 7
            s_add_u32 {S_PUBB}, {S_PUBB}, s22
            s_and_b32 s22, s85, 1
            s_lshl_b32 s22, s22, 5
            s_add_u32 {S_PUBB}, {S_PUBB}, s22
            s_lshl_b32 s22, s86, 6
            s_add_u32 {S_PUBB}, {S_PUBB}, s22
            s_add_u32 {S_PUBB}, {S_PUBB}, {hex(L.RMEM)}
            s_and_b32 s22, s84, 1
            s_lshl_b32 s22, s22, 9
            s_lshr_b32 s21, s84, 1
            s_lshl_b32 s21, s21, 7
            s_add_u32 s21, s21, s22
            s_lshl_b32 s22, s85, 3
            s_add_u32 s21, s21, s22
            s_lshl_b32 s22, s86, 11
            s_add_u32 s75, s21, s22
            s_mul_i32 {S_REC}, {S_RANK}, 24576
            s_mul_i32 s21, {S_W}, 6144
            s_add_u32 {S_REC}, {S_REC}, s21
            s_lshl_b32 {S_FKV}, {S_RANK}, 6
            s_lshl_b32 s21, {S_W}, 2
            s_add_u32 {S_FKV}, {S_FKV}, s21
            s_add_u32 {S_FM}, {S_FKV}, {hex(L.F_M - 4096)}
            s_add_u32 {S_FKV}, {S_FKV}, {hex(L.F_KV)}
            s_lshl_b32 {S_KVM}, {S_RANK}, 12
            s_lshl_b32 s21, {S_W}, 10
            s_add_u32 {S_KVM}, {S_KVM}, s21
            s_add_u32 {S_KVM}, {S_KVM}, {hex(L.KVM - 131072)}
            s_lshl_b32 s21, {S_W}, 11
            s_add_u32 {S_MEMP}, s21, {hex(L.RMEM)}
            s_lshl_b32 {S_IN0}, {S_RANK}, 6
            s_add_u32 {S_IN0}, {S_IN0}, {hex(L.RIN)}
            s_mov_b32 s72, 0x33333333
            s_mov_b32 s73, 0x33333333
            s_mov_b32 {S_SC}, {hex(f2u(SC))}
            s_mov_b32 {S_S}, 0
            ''')
        def first_records(l16):
            for i in range(2):
                a(f'buffer_load_dwordx4 {vr(KX+4*i,4)}, v{l16}, {WS}, {S_REC} offen offset:{1024*i} sc1')
                a(f'buffer_load_dwordx4 {vr(VXN+4*i,4)}, v{l16}, {WS}, {S_REC} offen offset:{2048+1024*i} sc1')
        nw = 4 if o.get('warm', 0) else 2
        def stage_w():
            set_srd(a, 12, P_DBG, 256)
            a(f"""
            v_and_b32 v2, 1, v0
            v_lshlrev_b32 v5, 3, v2
            v_and_b32 v2, {nw - 1}, v0
            v_lshlrev_b32 v2, 11, v2
            buffer_load_dword v3, v5, {ST}, 0 offen sc1
            """)
        def stage_t():
            a(f"""
            v_readlane_b32 s21, v3, 0
            v_readlane_b32 s22, v3, 1
            v_mov_b64 v[24:25], -1
            v_mov_b64 v[26:27], -1
            s_bcnt1_i32_b32 s21, s21
            s_add_u32 s21, s21, s22
            s_cmp_ge_u32 s21, 32
            s_cselect_b32 s21, {S_INP}, {hex(L.OOB)}
            s_cselect_b32 s22, {S_PUBB}, {hex(L.OOB)}
            """)
            if o.get('touchx', 2) >= 2:
                a(f's_add_u32 s23, s21, 0x40000\ns_lshl_b32 s84, {S_RANK}, 10\ns_add_u32 s84, s84, {hex(L.RMEM)}\ns_cmp_ge_u32 s21, {hex(L.OOB)}\ns_cselect_b32 s84, s21, s84')
                for so in ('s21', 's23'):
                    for i in range(2): a(f'buffer_load_dwordx4 v[24:27], v{tv("l16")}, {WS}, {so} offen offset:{1024*i}')
                a(f'buffer_load_dwordx4 v[24:27], v{tv("l16")}, {WS}, s84 offen')
                if o.get('touchx', 2) == 2: return
                a('s_waitcnt vmcnt(0)\nv_mov_b64 v[24:25], -1\nv_mov_b64 v[26:27], -1')
            for sl in range(2):
                for i in range(2): a(f'buffer_store_dwordx4 v[24:27], v{tv("l16")}, {WS}, s21 offen offset:{1024*i}')
                a('s_add_u32 s21, s21, 0x40000')
            for sl in range(4):
                a(f'buffer_store_dword v24, v{tv("pub")}, {WS}, s22 offen\ns_add_u32 s22, s22, 0x2000')
            a(f'v_mov_b32 v25, 0\ns_lshl_b32 s22, {S_W}, 5\ns_add_u32 s22, s22, {S_RANK}\ns_lshl_b32 s22, s22, 2\ns_add_u32 s22, s22, {hex(L.R_HINT)}')
            a(f's_cmp_ge_u32 s21, {hex(L.OOB)}\ns_cselect_b32 s22, s21, s22\nbuffer_store_dword v25, v{tv("one")}, {WS}, s22 offen')
        def stage_x():
            a(f'buffer_load_dword v4, v2, {WS}, {S_FKV} offen sc1')
        def stage_y():
            a(f"""
            v_lshl_or_b32 v140, v141, 16, v140
            v_readlane_b32 s21, v3, 0
            v_readlane_b32 s22, v3, 1
            v_cmp_eq_u32 vcc, 0, v4
            s_mov_b32 {S_RDY}, 0
            s_bcnt1_i32_b32 s21, s21
            s_add_u32 s21, s21, s22
            s_mov_b32 {S_FAST}, 1
            s_cbranch_vccnz L_R_notyet
            s_cmp_lt_u32 s21, 32
            s_cbranch_scc1 L_R_notyet
            s_mov_b32 {S_RDY}, 1
            """)
            if not o.get('touchx', 2): a(f'buffer_store_dword v140, v{tv("pub")}, {WS}, {S_PUBB} offen sc1')
            first_records(tv('l16'))
            for k in range(o.get('warm', 0)):
                a(f's_add_u32 s21, {S_REC}, {(k + 1) * 32 * 24576}')
                for i in range(4): a(f'buffer_load_dwordx4 v[24:27], v{tv("l16")}, {WS}, s21 offen offset:{1024*i}')
            a('L_R_notyet:')
        scalars()
        set_srd(a, 24, P_MEM0, 8192)
        a(f'buffer_load_ushort v140, v{tv("m0a")}, s[24:27], s75 offen\nbuffer_load_ushort v141, v{tv("m0a")}, s[24:27], s75 offen offset:32')
        todo = []
        self.ldsf_off = {}
        def flush(n):
            for _ in range(n):
                f, r = todo.pop(0); off = 8192 * len(self.ldsf_off)
                self.ldsf_off[f] = off
                for hh in range(2):
                    src = vr(r + 4 * hh, 4) if r >= 0 else ar(-r - 1 + 4 * hh, 4)
                    a(f'ds_write_b128 v{tv("wv") if off < 65536 else 6}, {src} offset:{off % 65536 + 1024 * hh}')
                if r >= 0: parkregs.append(r)
        for gi in range(8):
            mat, b = groups[gi]
            if gi == 0: self.mark(2)
            a.wait(vm=[16 + 5, 5 + 16, 16, 16, 16, 16, 16, 0][gi] if o.get('xearly', 1) else [16 + 5, 5 + 16, 16, 16, 16, 16, 16 + 1, 1][gi])
            if gi == 6 and o.get('xearly', 1): stage_y()
            if gi == 7 and o.get('touchx', 2): stage_t()
            if gi == 6 and o.get('code2', 1):
                pc = a.newlabel('pc')
                a(f's_getpc_b64 s[12:13]\n{pc}:\ns_add_u32 s12, s12, L_R_ready-{pc}\ns_addc_u32 s13, s13, 0\ns_mov_b32 s14, L_R_slow-L_R_ready\ns_mov_b32 s15, 0x20000')
                a(f'v_lshlrev_b32 v1, 4, v0')
                for k in range(5): a(f'buffer_load_dwordx4 v[24:27], v1, {ST}, 0 offen\nv_add_u32 v1, 4096, v1')
            if gi == 7 and o.get('touchp', 0): a(f'buffer_load_dword v5, v{tv("mm")}, {WS}, 0 offen sc1')
            if gi in (0, 2, 4, 7): self.mark(3 + [0, 2, 4, 7].index(gi))
            a('s_barrier')
            hb = (gi % 2) * L.GRP
            for x in range(4):
                dsts = []
                if mat == 'o':
                    for p in range(2):
                        f = (x, 2 * b + p)
                        dsts.append((vr, (TMP if x == 0 else 40) if f in WO_SPILL else wo_frag(*f)))
                    offs = [0, 2112, 8448, 10560]; xo = 64 * x
                    if x == 0: a(f'v_add_u32 v{VTA}, {hb}, v{VTO}')
                else:
                    offs = [0, 1056, 512, 1568]; xo = 0
                    a(f's_xor_b32 s21, {S_W}, {x}\ns_mul_i32 s21, s21, {L.BLK}\ns_add_u32 s21, s21, {hb}\nv_add_u32 v{VTA}, s21, v{VTQ}')
                    for p in range(2):
                        f = (mat, 2 * x + b, p)
                        if f in AGF: dsts.append((ar, 8 * AGF.index(f)))
                        else:
                            if f not in park: park[f] = TMP if (f[1], f[2]) == (6, 0) else (16 if (f[1], f[2]) == (6, 1) else parkregs.pop(0))
                            if park[f] < 0: dsts.append((ar, -park[f] - 1)); todo.insert(0, (f, park[f]))
                            else: dsts.append((vr, park[f])); todo.append((f, park[f]))
                for p in range(2):
                    rf, d = dsts[p]
                    for r in range(4):
                        a(f'ds_read_b64_tr_b16 {rf(d + 2 * r, 2)}, v{VTA} offset:{xo + offs[r] + (512 if mat == "o" else 32) * p}')
            if gi == 7 and not o.get('xearly', 1):
                a.wait(vm=0); stage_y()
            a.wait(lgkm=0)
            if gi == 0:
                for i in range(2):
                    for hh in range(2):
                        a(f'ds_write_b128 v{tv("x0")}, {vr((TMP if i == 0 else 40) + 4 * hh, 4)} offset:{16384 + 8192 * i + 1024 * hh}')
            a('s_barrier')
            if gi == 1: stage_w()

            if gi == 5 and o.get('xearly', 1): stage_x()
            if gi + 2 < 8: issue(gi + 2)
            if gi == 5 and not o.get('xearly', 1): stage_x()
            if gi == 2: self.signal_init(barrier=False)
            if gi == 6: flush(8)
            if gi == 7: flush(8)
        assert not todo and len(self.ldsf_off) == 16
        a.wait(lgkm=0, vm=0 if o.get('touchx', 2) == 2 else None)
        a.auto_vm = True; a.forget()
        a(f'v_mov_b32 v{V_WV2}, v6')
        for n, d in [('l16', V_L16), ('ist', V_IST), ('pub', V_PUB), ('x0', V_X0), ('x1', V_X0 + 1), ('x2', V_X0 + 2), ('x3', V_X0 + 3),
                     ('f', V_F), ('smw', V_SMW), ('ow', V_OW), ('wv', V_WV), ('idx', V_IDX), ('one', V_ONE), ('or', V_OR)] + \
                    [(f'selr{i}', SELR + i) for i in range(4)] + [(f'selv{i}', SELV + i) for i in range(2)] + \
                    [('selq', SELQ), ('selq', SELQ + 3), ('selk', SELK), ('selk', SELK + 3)]:
            a(f'v_mov_b32 v{d}, v{tv(n)}')
        for d in (SELQ + 1, SELQ + 2, SELK + 1, SELK + 2): a(f'v_mov_b32 v{d}, 0')
        self.dump_marks(T + 4)
        self.tstamp(1, T + 4)
        self.note(3, T + 4)
        a(f's_cmp_eq_u32 {S_RDY}, 1\ns_cbranch_scc1 L_R_ready')
        self.wait_init(t0=T + 4)
        a(f's_cmp_ge_u32 s21, 32\ns_cselect_b32 {S_FAST}, 1, 0')
        if not o.get('touchx', 2): a(f'buffer_store_dword v140, v{V_PUB}, {WS}, {S_PUBB} offen sc1')
        self.spin_flag(V_FLAG, f'v{V_Z}', S_FKV)
        first_records(V_L16)
        a(f's_add_u32 s21, {S_FKV}, 2048')
        self.spin_flag(V_FLAG, f'v{V_Z}', 's21')
        a('L_R_ready:')
        a.wait(vm=0)
        a.forget()
        if o.get('force_slow'): a(f's_mov_b32 {S_FAST}, 0')
        if o.get('touchx', 2):
            a(f's_cmp_eq_u32 {S_FAST}, 0\ns_cselect_b32 s21, {hex(L.OOB)}, {S_PUBB}\ns_cselect_b32 s22, {S_PUBB}, {hex(L.OOB)}')
            a(f'buffer_store_dword v140, v{V_PUB}, {WS}, s21 offen\nbuffer_store_dword v140, v{V_PUB}, {WS}, s22 offen sc1')
        a(f's_add_u32 {S_FKV}, {S_FKV}, 2048\nv_mov_b32 v{V_FLAG}, 1')
        for r in range(M, M + 8, 2): a(f'v_mov_b64 {vr(r,2)}, -1')
        if o.get('hold'):
            a(f's_lshl_b32 s21, {S_RANK}, 6\ns_add_u32 s21, s21, {hex(L.F_RS)}\ns_cmp_eq_u32 {S_W}, 0\ns_cselect_b32 s21, s21, {hex(L.OOB)}')
            a(f'buffer_store_dword v{V_F}, v{V_ONE}, {WS}, s21 offen sc1')
        self.tstamp(2, T + 4)
        self.tstamp(3, T + 4)
        self.note(4, T + 4)
        if o.get('stamp'):
            a('s_memtime s[80:81]\ns_memrealtime s[28:29]'); a.wait(lgkm=0)
        a(f's_lshl_b32 {S_HST}, {S_W}, 5\ns_add_u32 {S_HST}, {S_HST}, {S_RANK}\ns_lshl_b32 {S_HST}, {S_HST}, 2\ns_add_u32 {S_HST}, {S_HST}, {hex(L.R_HINT)}')
        a(f's_lshr_b32 {S_HLD}, {S_RANK}, 3\ns_lshl_b32 {S_HLD}, {S_HLD}, 7\ns_add_u32 {S_HLD}, {S_HLD}, {hex(L.R_HINT)}')
        a('s_mov_b32 s26, 0x3f803f80\ns_mov_b32 s27, 0x3f803f80\ns_mov_b32 s8, 0x3f003f00\ns_mov_b32 s9, 0x3f003f00')
        a(f'ds_write_b64 v{V_OW}, {vr(M,2)}')
        a.wait(lgkm=0)
        a(f's_cmp_eq_u32 {S_FAST}, 0\ns_cbranch_scc1 L_R_slow')
        if o.get('nostag'):
            self.r_loop('f', '')
        else:
            for w in range(1, 4): a(f's_cmp_eq_u32 {S_W}, {w}\ns_cbranch_scc1 L_R_w{w}')
            for w in range(4):
                if w: a(f'L_R_w{w}:')
                self.r_loop('f' + (str(w) if w else ''), '', wv=w)
        a('L_R_slow:')
        self.r_loop('s', 'sc1')

    def spin_flag(self, dst, voff, soff):
        a = self.a
        lab = a.newlabel('sf'); ok = a.newlabel('sfok')
        sv = a.auto_vm; a.auto_vm = False
        a(f'''
        s_mov_b32 s23, {SPIN}
        {lab}:
        buffer_load_dword v{dst}, {voff}, {WS}, {soff} offen sc1
        s_waitcnt vmcnt(0)
        v_cmp_ne_u32 vcc, 0, v{dst}
        s_cbranch_vccnz {ok}
        s_sleep 2
        s_sub_u32 s23, s23, 1
        s_cbranch_scc0 {lab}
        s_mov_b32 {SPIN}, 0x400
        {ok}:
        ''')
        a.auto_vm = sv; a.vq = []

    def poll(self, tag, dst, voff, soff, pre, check, shadow, nchk, mid=None, nmid=0, blk=None):
        a = self.a
        lab = f'L_poll_{tag}'; ok = f'L_pok_{tag}'
        def issue():
            a(f'buffer_load_dwordx4 {vr(dst,4)}, v{voff}, {WS}, {soff} offen {self.pf}')
            a(f'buffer_load_dwordx4 {vr(dst+4,4)}, v{voff}, {WS}, {soff} offen offset:1024 {self.pf}')
        pre()
        if blk:
            gap, cover, fill = blk
            issue()
            if mid: mid()
            for i in range(gap): fill()
            a(f's_mov_b32 s23, {SPIN}')
            issue()
            for i in range(cover): fill()
            a(f's_branch L_pw_{tag}\n{lab}:')
            a(f's_sub_u32 s23, s23, 1\ns_cbranch_scc1 L_pto_{tag}')
            issue()
            a(f'L_pw_{tag}:\ns_waitcnt vmcnt(2)')
            check(); shadow()
            a(f's_cbranch_vccnz {lab}\n{ok}:')
            self.late.append(f'L_pto_{tag}:\ns_mov_b32 {SPIN}, 0x400\ns_waitcnt vmcnt(0)\n@SH@s_branch {ok}')
            self.late_sh.append(shadow)
            return
        if mid:
            issue(); mid()
            for r in range(nmid):
                check(); shadow()
                a(f's_cbranch_vccz {ok}')
        a(f's_mov_b32 s23, {SPIN}')
        a(f'{lab}:')
        issue()
        for r in range(nchk - 1):
            check(); shadow()
            a(f's_cbranch_vccz {ok}')
        a(f's_sub_u32 s23, s23, 1\ns_cbranch_scc1 L_pto_{tag}')
        check(); shadow()
        a(f's_cbranch_vccnz {lab}\n{ok}:')
        self.late.append(f'L_pto_{tag}:\ns_mov_b32 {SPIN}, 0x400\ns_waitcnt vmcnt(0)\n@SH@s_branch {ok}')
        self.late_sh.append(shadow)

    def poll2(self, tag, dst, soff, chores, t0, t1, t2, fill, check, shadow, retry=None):
        a = self.a
        lab = f'L_poll_{tag}'; ok = f'L_pok_{tag}'
        def issue():
            a(f'buffer_load_dwordx4 {vr(dst,4)}, v{V_L16}, {WS}, {soff} offen {self.pf}')
            a(f'buffer_load_dwordx4 {vr(dst+4,4)}, v{V_L16}, {WS}, {soff} offen offset:1024 {self.pf}')
        def spend(t, flush=False):
            while chores and (flush or chores[0][0] <= t + 4):
                c, f = chores.pop(0); f(); t -= c
            while t >= 12: fill(); t -= 16
        spend(t0); issue()
        spend(t1 - 40); issue()
        spend(t2 - 40, flush=True)
        a(f's_mov_b32 s23, {SPIN}\ns_branch L_pw_{tag}\n{lab}:')
        a(f's_sub_u32 s23, s23, 1\ns_cbranch_scc1 L_pto_{tag}')
        issue()
        if retry: retry()
        a(f'L_pw_{tag}:\ns_waitcnt vmcnt(2)')
        check(); shadow()
        a(f's_cbranch_vccnz {lab}\n{ok}:')
        self.late.append(f'L_pto_{tag}:\ns_mov_b32 {SPIN}, 0x400\ns_waitcnt vmcnt(0)\n@SH@s_branch {ok}')
        self.late_sh.append((lambda: (retry(), shadow())) if retry else shadow)

    def stamp(self, i):
        if self.o.get('stamp') and (self.o.get('smask', 0x3ff) >> i) & 1: self.a.raw(f'    {"s_memrealtime" if self.o.get("rt") else "s_memtime"} s[{82+2*i}:{83+2*i}]')

    def dump_stamps(self, tg):
        a = self.a
        if not self.o.get('stamp'): return
        lab = f'L_nodump_{tg}'
        a(f's_cmp_lg_u32 {S_S}, {self.o.get("dstep", 41)}\ns_cbranch_scc1 {lab}\ns_waitcnt lgkmcnt(0)')
        a(f's_lshl_b32 s21, {S_RANK}, 8\ns_lshl_b32 s22, {S_W}, 6\ns_add_u32 s21, s21, s22\ns_add_u32 s21, s21, {hex(L.DBG)}')
        a(f'v_mov_b32 v{T+10}, 0')
        for i in range(10):
            a(f'v_mov_b32 v{T+11}, s{82+2*i}\nbuffer_store_dword v{T+11}, v{T+10}, {WS}, s21 offen offset:{4*i}')
        a(f's_waitcnt vmcnt(0)\n{lab}:')

    def r_loop(self, tg, cf, wv=0):
        a = self.a; o = self.o
        mf16 = 'v_mfma_f32_16x16x16_bf16'; mf32 = 'v_mfma_f32_16x16x32_bf16'
        cvt = 'v_cvt_pk_bf16_f32'
        QP = 'quad_perm:[2,3,0,1] row_mask:0xf bank_mask:0xf'
        dum = lambda n=1: [a(a.dummy) for _ in range(n)]
        self.late = []; self.late_sh = []; self.fixups = []
        self.pf = 'nt' if (not cf and o.get('pollnt')) else 'sc1'
        a.auto_vm = False
        B0, B1, B2 = WVB, WVB + 8, M
        ACC = {'q': AQ, 'k': AK, 'v': AV}
        def S(m, k, p, buf=None):
            f = (m, k, p)
            self.smf(ACC[m] + 4 * p, M + 4 * k, ar(8 * AGF.index(f), 8) if buf is None else vr(buf, 8))
        def V(k, p, buf=None): S('v', k, p, buf)
        def RD(buf, m, k, p, hh):
            off = self.ldsf_off[(m, k, p)]
            a(f'ds_read_b128 {vr(buf + 4*hh, 4)}, v{V_WV if off < 65536 else V_WV2} offset:{off % 65536 + hh*1024}')
        def RD2(buf, m, k, p): RD(buf, m, k, p, 0); RD(buf, m, k, p, 1)
        def pkadd(d, x, y): a(f'v_add_f32 v{d}, v{x}, v{y}\nv_add_f32 v{d+1}, v{x+1}, v{y+1}')
        def PK(d, x, y): a(f'v_pk_add_f32 {vr(d,2)}, {vr(x,2)}, {vr(y,2)}')
        def add(d, x, y): a(f'v_add_f32 v{d}, v{x}, v{y}')
        def dmf(r):
            m = o.get('fillm', 2)
            if m == 1 or (m == 2 and r == M + 8): a('s_nop 3')
            elif m == 3: a(f's_nop 2\n{a.dummy}')
            elif m == 4: a(f'{mf16} {vr(r,4)}, s[26:27], s[26:27], 0' if False else f'{mf16} {vr(r,4)}, {vr(SELQ+2,2)}, {vr(SELQ,2)}, 0')
            else: a(f'{mf16} {vr(r,4)}, {vr(SELQ,2)}, {vr(SELQ,2)}, {vr(r,4)}')
        def filt(line):
            st = 'buffer_store' in line and ('s75' in line or 's76' in line) and 'sc1' in line
            ld = 'buffer_load' in line and ('s67' in line or 's68' in line)
            if o.get('nost') and st: return None
            if o.get('nofst') and st and 's76' in line: return None
            if o.get('nold') and ld: return None
            if o.get('nofld') and ld and 's68' in line: return None
            if o.get('ldplain') and ld and 's67' in line: return line.replace(' sc1', '')
            if o.get('ldnt') and ld and 's67' in line: return line.replace(' sc1', ' nt')
            if o.get('stplain') and st: return line.replace(' sc1', '')
            if o.get('novm') and 'vmcnt' in line: return None
            if o.get('nowarm') and 'buffer_load_dword v27' in line: return 's_nop 0'
            if o.get('novmh') and 'buffer_store_dwordx2' in line: return None
            return line
        PA = M + 8; R = T + 8
        spin = f'L_kvspin_{tg}'; back = f'L_kvback_{tg}'
        def preload():
            RD2(M + 24, 'q', 0, 0); RD2(M + 16, 'q', 0, 1); RD2(B0, 'q', 1, 0); RD2(B1, 'q', 1, 1); RD2(T, 'k', 0, 0)
        def slackB():
            a(f'v_cmp_eq_u32 vcc, 0, v{V_FLAG}')
            for r in range(0, 8, 2): a(f'v_mov_b64 {vr(VXC+r,2)}, {vr(VXN+r,2)}')
            a(f's_xor_b32 {S_INP}, {S_INP}, 0x40000')
            a(f's_cbranch_vccnz {spin}\n{back}:')
            a(f"""
            s_cmp_lt_u32 {S_S}, 63
            s_cselect_b32 {S_T0}, {0 if o.get("nopf") else 32*24576}, 0
            s_add_u32 {S_REC}, {S_REC}, {S_T0}
            s_cmp_lt_u32 {S_S}, 62
            s_cselect_b32 {S_T0}, 2048, 0
            s_add_u32 {S_FKV}, {S_FKV}, {S_T0}
            s_cmp_ge_u32 {S_S}, 2
            s_cselect_b32 {S_T1}, {S_FM}, {hex(L.OOB)}
            s_cmp_ge_u32 {S_S}, 1
            s_cselect_b32 {S_T0}, {S_KVM}, {hex(L.OOB)}
            s_add_u32 {S_FM}, {S_FM}, 2048
            s_cmp_eq_u32 {S_S}, 62
            s_cselect_b32 {S_TAG}, {hex((L.KVL - L.KVM - 62 * 131072) & 0xFFFFFFFF) if o.get('dpoll', 1) else 0}, 0
            s_add_u32 {S_KVM}, {S_KVM}, {S_TAG}
            s_add_u32 {S_KVM}, {S_KVM}, 131072
            s_lshr_b32 {S_TAG}, {S_S}, 1
            s_and_b32 {S_TAG}, {S_TAG}, 1
            s_sub_u32 {S_NTAG}, {S_TAG}, 1
            s_add_u32 {S_IN1}, {S_IN0}, 32768
            s_and_b32 {S_OTAG}, {S_S}, 1
            s_sub_u32 {S_NOTAG}, {S_OTAG}, 1
            """)
            if o.get('steplog') and wv == 0 and tg != 's':
                a(f's_memrealtime s[82:83]\ns_lshl_b32 s84, {S_S}, 2\ns_lshl_b32 s85, {S_RANK}, 8\ns_add_u32 s84, s84, s85\ns_add_u32 s84, s84, {hex(L.DBG + 131072)}')
                a(f's_waitcnt lgkmcnt(0)\nv_mov_b32 v{T+10}, s82\nbuffer_store_dword v{T+10}, v{V_ONE}, {WS}, s84 offen')
            if o.get('zB'):
                for r in range(AQ, AQ + 24, 2): a(f'v_mov_b64 {vr(r,2)}, 0')
            if o.get('barB'): dmf(PA); a('s_barrier')
            for i in range(o.get('dB', 8) if wv >= 2 else o.get('dB0', o.get('dB', 8))): dmf(PA + 4 * (i % 2))
        def checkB():
            if not o.get('shortchk'):
                a(f"""
                v_max3_u32 v{R}, v{M}, v{M+1}, v{M+2}
                v_max3_u32 v{R+1}, v{M+3}, v{M+4}, v{M+5}
                v_max3_u32 v{R}, v{R}, v{M+6}, v{M+7}
                v_max_u32 v{R}, v{R}, v{R+1}
                """)
            else:
                a(f'v_max_u32 v{R}, v{M}, v{M+7}')
            a(f'v_cmp_eq_u32 vcc, -1, v{R}')
        def shadowB():
            if o.get('specw', 1): a(f'ds_write_b128 v{V_X0}, {vr(M,4)}')
            else: dmf(PA); a('s_nop 2')
        preload()
        for r in range(AQ, AQ + 24, 2): a(f'v_mov_b64 {vr(r,2)}, 0')
        a(f's_xor_b32 {S_INP}, {S_INP}, 0x40000')
        a.wait(lgkm=0)
        a(f'L_Rloop_{tg}:')
        a.forget()
        a.hot = True
        a.filt = filt
        sa = lambda txt: [(4, lambda l=l: a(l)) for l in txt.strip().split('\n')]
        va = lambda lines: [(8, lambda l=l: a(l)) for l in lines]
        if True:
            chB = [(44, lambda: a(f'v_cmp_eq_u32 vcc, 0, v{V_FLAG}\ns_cbranch_vccnz {spin}\n{back}:'))]
            chB += va([f'v_mov_b64 {vr(VXC+r,2)}, {vr(VXN+r,2)}' for r in range(0, 8, 2)])
            chB += sa(f"""
            s_xor_b32 {S_INP}, {S_INP}, 0x40000
            s_cmp_lt_u32 {S_S}, 63
            s_cselect_b32 {S_T0}, {0 if o.get("nopf") else 32*24576}, 0
            s_add_u32 {S_REC}, {S_REC}, {S_T0}
            s_cmp_lt_u32 {S_S}, 62
            s_cselect_b32 {S_T0}, 2048, 0
            s_add_u32 {S_FKV}, {S_FKV}, {S_T0}
            s_cmp_ge_u32 {S_S}, 2
            s_cselect_b32 {S_T1}, {S_FM}, {hex(L.OOB)}
            s_cmp_ge_u32 {S_S}, 1
            s_cselect_b32 {S_T0}, {S_KVM}, {hex(L.OOB)}
            s_add_u32 {S_FM}, {S_FM}, 2048
            s_cmp_eq_u32 {S_S}, 62
            s_cselect_b32 {S_TAG}, {hex((L.KVL - L.KVM - 62 * 131072) & 0xFFFFFFFF) if o.get('dpoll', 1) else 0}, 0
            s_add_u32 {S_KVM}, {S_KVM}, {S_TAG}
            s_add_u32 {S_KVM}, {S_KVM}, 131072
            s_lshr_b32 {S_TAG}, {S_S}, 1
            s_and_b32 {S_TAG}, {S_TAG}, 1
            s_sub_u32 {S_NTAG}, {S_TAG}, 1
            s_add_u32 {S_IN1}, {S_IN0}, 32768
            s_and_b32 {S_OTAG}, {S_S}, 1
            s_sub_u32 {S_NOTAG}, {S_OTAG}, 1
            """)
            if o.get('steplog') and wv == 0 and tg != 's':
                chB.insert(0, (70, lambda: (a(f's_memrealtime s[82:83]\ns_lshl_b32 s84, {S_S}, 2\ns_lshl_b32 s85, {S_RANK}, 8\ns_add_u32 s84, s84, s85\ns_add_u32 s84, s84, {hex(L.DBG + 131072)}'),
                    a(f's_waitcnt lgkmcnt(0)\nv_mov_b32 v{R}, s82\nbuffer_store_dword v{R}, v{V_ONE}, {WS}, s84 offen'))))
            if not o.get('split', 1):
                self.poll2('B' + tg, M, S_MEMP, chB, o.get('tB0', 200), o.get('tB1', 180), o.get('tB2', 100), lambda: dmf(PA), checkB, shadowB)
            else:
                ld = lambda i: a(f'buffer_load_dwordx4 {vr(M+4*i,4)}, v{V_L16}, {WS}, {S_MEMP} offen offset:{1024*i} {self.pf}')
                def spend(t, flush=False):
                    while chB and (flush or chB[0][0] <= t + 4):
                        c, f = chB.pop(0); f(); t -= c
                    while t >= 12: dmf(PA); t -= 16
                def chk(i):
                    a(f'v_max3_u32 v{R}, v{M+4*i}, v{M+4*i+1}, v{M+4*i+2}\nv_max_u32 v{R}, v{R}, v{M+4*i+3}\nv_cmp_eq_u32 vcc, -1, v{R}')
                g = o.get('tBg', 32)
                spend(o.get('tB0', 170) if wv >= 2 else o.get('tB00', o.get('tB0', 170))); ld(0); spend(g); ld(1)
                spend(o.get('tB1', 180) - 40 - g); ld(0); spend(g); ld(1)
                spend(o.get('tB2', 100) - 40 - g, flush=True)
                a(f's_mov_b32 s23, {SPIN}\nL_pw_B{tg}:\ns_waitcnt vmcnt(3)')
                chk(0)
                a(f'ds_write_b128 v{V_X0}, {vr(M,4)}')
                S('q', 0, 0, M + 24)
                a(f's_cbranch_vccnz L_poll_B{tg}\nL_pok_B{tg}:')
                def fixB():
                    a(f'L_poll_B{tg}:\ns_sub_u32 s23, s23, 1\ns_cbranch_scc1 L_pto_B{tg}')
                    ld(0); ld(1)
                    a(f'v_mov_b64 {vr(AQ,2)}, 0\nv_mov_b64 {vr(AQ+2,2)}, 0\ns_branch L_pw_B{tg}')
                    a(f'L_pto_B{tg}:\ns_mov_b32 {SPIN}, 0x400\ns_branch L_pok_B{tg}')
                    a(f'L_pol1_B{tg}:\ns_waitcnt vmcnt(0)')
                    chk(1)
                    a(f's_cbranch_vccz L_pk1_B{tg}\ns_sub_u32 s23, s23, 1\ns_cbranch_scc1 L_pt1_B{tg}')
                    ld(1)
                    a(f's_branch L_pol1_B{tg}\nL_pt1_B{tg}:\ns_mov_b32 {SPIN}, 0x400\ns_branch L_pk1_B{tg}')
                self.fixups.append(fixB)
        if o.get('rt'): a('s_mov_b32 s84, s82')
        self.stamp(0)
        if o.get('rt'): self.dump_stamps(tg)
        wp = o.get('wpat', 5)
        ws = {0: (0, 1), 1: (1 + wv, 5 + wv), 2: (1 + 2 * (wv % 2), 2 + 2 * (wv % 2)), 3: (1 + wv % 2, 3 + wv % 2), 4: (1 + wv // 2, 3 + wv // 2),
              5: (1, 2), 6: (wv, 4 + wv), 7: (wv % 2, 2 + wv % 2), 8: (wv // 2, 2 + wv // 2)}[wp]
        wslot = [0]
        def MW():
            for i in range(2):
                if ws[i] == wslot[0] and not (i == 0 and o.get('specw', 1)): a(f'ds_write_b128 v{V_X0}, {vr(M+4*i,4)} offset:{1024*i}')
            wslot[0] += 1
        if not o.get('split', 1):
            MW()
            S('q', 0, 0, M + 24); MW()
            S('q', 0, 1, M + 16); MW()
            S('q', 1, 0, B0); MW()
            S('q', 1, 1, B1); MW()
            S('k', 0, 0, T); MW()
            S('k', 0, 1); MW()
            S('k', 1, 0); MW()
            S('k', 1, 1); MW()
        else:
            S('q', 0, 1, M + 16)
            a('s_waitcnt vmcnt(2)')
            a(f'v_max3_u32 v{R}, v{M+4}, v{M+5}, v{M+6}')
            S('k', 0, 0, T); a(f'v_max_u32 v{R}, v{R}, v{M+7}')
            S('k', 0, 1); a(f'v_cmp_eq_u32 vcc, -1, v{R}')
            V(0, 0)
            a(f's_cbranch_vccnz L_pol1_B{tg}\nL_pk1_B{tg}:')
            a(f'ds_write_b128 v{V_X0}, {vr(M+4,4)} offset:1024')
            if o.get('lastx', 1): a(f's_cmp_eq_u32 {S_S}, 63')
            S('k', 1, 0)
            if o.get('lastx', 1): a(f's_cbranch_scc1 L_Rlast_{tg}')
            lq_last = list(a.lq)
            S('q', 1, 0, B0); S('q', 1, 1, B1); S('k', 1, 1)
        a.wait_lds_writes()
        a('s_barrier')
        def MR(k): a(f'ds_read_b128 {vr(M+4*k,4)}, v{V_X0 + k//2} offset:{1024*(k%2)}')
        MR(2); MR(3)
        if not o.get('split', 1): V(0, 0)
        MR(4)
        V(0, 1); MR(5)
        V(1, 0); MR(6)
        V(1, 1); MR(7)
        VXL = lambda i: a(f'buffer_load_dwordx4 {vr(VXN+4*i,4)}, v{V_L16}, {WS}, {S_REC} offen offset:{2048+1024*i} sc1')
        self.stamp(1)
        vm_ops = [
            lambda: a(f'buffer_store_dwordx4 {vr(KMH,4)}, v{V_L16}, {WS}, {S_T0} offen sc1'),
            lambda: VXL(0),
            lambda: VXL(1),
            lambda: (a(f'buffer_store_dword v{V_F}, v{V_ONE}, {WS}, {S_T1} offen sc1'),
                     a(f'buffer_load_dword v{V_FLAG}, v{V_Z}, {WS}, {S_FKV} offen sc1')),
        ]
        slot = [0]
        first = o.get('vm0', 5)
        def X():
            i = slot[0] - first - wv
            if i == 0: a('s_waitcnt vmcnt(0)')
            if i >= 0 and i % 4 == 0 and i // 4 < len(vm_ops): vm_ops[i // 4]()
            slot[0] += 1
        S('q', 2, 0); RD(B0, 'k', 2, 1, 0); X()
        S('q', 3, 0); RD(B0, 'k', 2, 1, 1); X()
        S('q', 4, 0); RD(B1, 'k', 3, 1, 0); X()
        S('q', 5, 0); RD(B1, 'k', 3, 1, 1); X()
        S('q', 6, 0); RD(T, 'k', 4, 1, 0); X()
        S('q', 7, 0); RD(T, 'k', 4, 1, 1); X()
        S('q', 2, 1); X()
        S('q', 3, 1); X()
        S('q', 4, 1); X()
        assert slot[0] > first + wv
        S('q', 5, 1); RD(B2, 'k', 5, 1, 0); X(); add(AQ, AQ, AQ + 2)
        S('q', 6, 1); RD(B2, 'k', 5, 1, 1); X(); add(AQ + 1, AQ + 1, AQ + 3)
        S('q', 7, 1); X(); a(f'{cvt} v{AQ+2}, v{AQ}, v{AQ+1}')
        S('k', 2, 0); X()
        S('k', 2, 1, B0); RD(B0, 'k', 6, 1, 0); X()
        S('k', 3, 0); RD(B0, 'k', 6, 1, 1); X()
        S('k', 3, 1, B1); RD(B1, 'k', 7, 0, 0); X(); add(AQ + 4, AQ + 4, AQ + 6)
        S('k', 4, 0); RD(B1, 'k', 7, 0, 1); X(); add(AQ + 5, AQ + 5, AQ + 7)
        S('k', 4, 1, T); RD(T, 'k', 7, 1, 0); X(); a(f'{cvt} v{AQ+3}, v{AQ+4}, v{AQ+5}')
        S('k', 5, 0); RD(T, 'k', 7, 1, 1); X()
        a(f'{mf16} {vr(AQ+4,4)}, {vr(AQ+2,2)}, {vr(SELQ,2)}, 0'); X()
        a(f'{mf16} {vr(T+8,4)}, {vr(AQ+2,2)}, {vr(SELQ+2,2)}, 0'); X()
        S('k', 5, 1, B2); RD(B2, 'v', 6, 0, 0); X()
        S('k', 6, 0); RD(B2, 'v', 6, 0, 1)
        S('k', 7, 0, B1); RD(B1, 'v', 7, 0, 0); a(f'{cvt} v{AQ}, v{AQ+4}, v{AQ+5}')
        S('k', 6, 1, B0); RD(B1, 'v', 7, 0, 1); a(f'{cvt} v{AQ+1}, v{AQ+6}, v{AQ+7}\n{cvt} v{AQ+2}, v{T+8}, v{T+9}')
        S('k', 7, 1, T); RD(B0, 'v', 6, 1, 0); a(f'{cvt} v{AQ+3}, v{T+10}, v{T+11}')
        assert slot[0] > first + wv + 4 * (len(vm_ops) - 1)
        self.stamp(2)
        RD(B0, 'v', 6, 1, 1)
        add(AK, AK, AK + 2)
        a(f'{mf32} {vr(AQ+4,4)}, {vr(KX,4)}, {vr(AQ,4)}, 0')
        add(AK + 1, AK + 1, AK + 3)
        a(f'{cvt} v{AK+2}, v{AK}, v{AK+1}')
        a(f'{mf32} {vr(T+8,4)}, {vr(KX+4,4)}, {vr(AQ,4)}, 0')
        pkadd(AK + 4, AK + 4, AK + 6)
        a(f'{cvt} v{AK+3}, v{AK+4}, v{AK+5}')
        a(f'{mf16} {vr(AK+4,4)}, {vr(AK+2,2)}, {vr(SELK,2)}, 0')
        a(f'{mf16} {vr(T,4)}, {vr(AK+2,2)}, {vr(SELK+2,2)}, 0')
        kslot = [0]
        def KL():
            i = kslot[0] - wv
            if i in (0, 4): a(f'buffer_load_dwordx4 {vr(KX+i,4)}, v{V_L16}, {WS}, {S_REC} offen offset:{256*i} sc1')
            kslot[0] += 1
        for i in range(4): a(f'v_cndmask_b32 v{AK+i}, v{T+8+i}, v{AQ+4+i}, {S_LO}')
        a(f'{cvt} v{KMH}, v{AK+4}, v{AK+5}\n{cvt} v{KMH+1}, v{AK+6}, v{AK+7}')
        a(f'{cvt} v{KMH+2}, v{T}, v{T+1}\n{cvt} v{KMH+3}, v{T+2}, v{T+3}')
        a(f'{mf32} {vr(T+4,4)}, {vr(KMH,4)}, {vr(AQ,4)}, 0')
        V(2, 0)
        a(f'ds_write_b128 v{V_X0}, {vr(AK,4)} offset:8192')
        a(f'v_cndmask_b32 v{T+4}, v{T+5}, v{T+4}, {S_LO}')
        V(2, 1)
        a(f'ds_write_b32 v{V_SMW}, v{T+4}')
        self.stamp(3)
        B3 = M + 8
        ONES, HALF = B2, B2 + 4
        V(3, 0); KL()
        V(3, 1); RD(B3, 'v', 7, 1, 0); KL()
        V(6, 0, B2); RD(B3, 'v', 7, 1, 1); KL()
        V(6, 1, B0); KL()
        if o.get('vb', 4) > 4: V(7, 0, B1)
        a.wait_lds_writes()
        a('s_barrier')
        SX = [T + 4, T + 8, AQ + 4]
        SR = lambda x: a(f'ds_read_b128 {vr(SX[x-1],4)}, v{V_X0+x} offset:8192')
        SR(1)
        if o.get('vb', 4) <= 4: V(7, 0, B1)
        SR(2); SR(3)
        V(4, 0); a(f'ds_read_b128 {vr(T,4)}, v{V_F} offset:1024'); a(f'v_mov_b64 {vr(ONES,2)}, s[26:27]')
        V(4, 1); KL(); a(f'v_mov_b64 {vr(ONES+2,2)}, s[26:27]')
        V(5, 0); KL(); a(f'v_mov_b64 {vr(HALF,2)}, s[8:9]')
        V(7, 1, B3); KL()
        V(5, 1); KL()
        WOS = lambda i, hh: a(f'ds_read_b128 {vr(WVB+8*i+4*hh,4)}, v{V_X0} offset:{16384+8192*i+1024*hh}')
        zs = list(range(M + 16, M + 32, 2))
        def Z(n):
            for _ in range(n): a(f'v_mov_b64 {vr(zs.pop(0),2)}, 0')
        self.stamp(4)
        pkadd(AK, AK, SX[0]); pkadd(AK + 2, AK + 2, SX[0] + 2)
        PK(SX[1], SX[1], SX[2]); PK(SX[1] + 2, SX[1] + 2, SX[2] + 2)
        PK(T, T, T + 2)
        PK(AK, AK, SX[1]); PK(AK + 2, AK + 2, SX[1] + 2)
        add(T, T, T + 1)
        mx, t2 = T + 2, T + 3
        a(f'v_max3_f32 v{mx}, v{AK}, v{AK+1}, v{AK+2}\nv_max3_f32 v{mx}, v{mx}, v{AK+3}, v{T}')
        PK(AV, AV, AV + 2); PK(AV + 4, AV + 4, AV + 6)
        a(f'v_max_f32_dpp v{t2}, v{mx}, v{mx} {QP}\nv_max_f32_dpp v{mx}, v{mx}, v{mx} {QP}')
        a(f'{cvt} v{AV+2}, v{AV}, v{AV+1}\n{cvt} v{AV+3}, v{AV+4}, v{AV+5}')
        a(f'v_permlane16_swap_b32 v{mx}, v{t2}\nv_max_f32 v{T+1}, v{mx}, v{t2}\nv_max_f32 v{mx}, v{mx}, v{t2}')
        a(f'{mf16} {vr(AV+4,4)}, {vr(SELV,2)}, {vr(AV+2,2)}, 0')
        WOS(0, 0)
        a(f'v_permlane32_swap_b32 v{mx}, v{T+1}\nv_max_f32 v{mx}, v{mx}, v{T+1}\nv_mul_f32 v{mx}, {S_SC}, v{mx}')
        E = [AK, AK + 1, AK + 2, AK + 3, T]
        for e in E: a(f'v_fma_f32 v{e}, v{e}, {S_SC}, -v{mx}')
        for e in E: a(f'v_exp_f32 v{e}, v{e}')
        BX, PM = AQ, T + 6
        a(f'{cvt} v{T+8}, v{AK}, v{AK+1}\n{cvt} v{T+9}, v{AK+2}, v{AK+3}')
        a(f"""
        v_cndmask_b32 v{BX}, 0, v{T+8}, {S_LO}
        v_cndmask_b32 v{BX+1}, 0, v{T+9}, {S_LO}
        v_cndmask_b32 v{BX+2}, v{T+8}, 0, {S_LO}
        v_cndmask_b32 v{BX+3}, v{T+9}, 0, {S_LO}
        v_mov_b32_dpp v{T+1}, v{T} {QP}
        {cvt} v{VMH}, v{AV+4}, v{AV+5}
        """)
        D, D2, DL = AQ + 4, AK + 4, T + 8
        a(f'{mf32} {vr(DL,4)}, {vr(ONES,4)}, {vr(BX,4)}, 0')
        WOS(0, 1)
        a(f'{cvt} v{T+4}, v{T}, v{T+1}\n{cvt} v{T+5}, v{T+1}, v{T}')
        a(f'{mf32} {vr(D2,4)}, {vr(VXC+4,4)}, {vr(BX,4)}, 0')
        WOS(1, 0)
        a(f'v_cndmask_b32 v{PM}, 0, v{T+4}, {S_LO}\nv_cndmask_b32 v{PM+1}, v{T+5}, 0, {S_LO}')
        a(f'{mf32} {vr(D,4)}, {vr(VXC,4)}, {vr(BX,4)}, 0')
        WOS(1, 1)
        a(f'{cvt} v{VMH+1}, v{AV+6}, v{AV+7}')
        a(f'{mf16} {vr(DL,4)}, {vr(HALF,2)}, {vr(PM,2)}, {vr(DL,4)}')
        Z(1)
        a(f'{mf16} {vr(D,4)}, {vr(VMH,2)}, {vr(PM,2)}, {vr(D,4)}')
        Z(o.get('zpv', 5))
        l = DL + 1
        a(f'v_add_f32_dpp v{l}, v{DL}, v{DL} {QP}\nv_rcp_f32 v{l}, v{l}')
        for i in range(4): a(f'v_add_f32_dpp v{D+i}, v{D2+i}, v{D+i} {QP}')
        for i in (0, 2): a(f'v_pk_mul_f32 {vr(D+i,2)}, {vr(D+i,2)}, {vr(l-1,2)} op_sel:[0,1] op_sel_hi:[1,1]')
        a(f'{cvt} v{T}, v{D}, v{D+1}\n{cvt} v{T+1}, v{D+2}, v{D+3}')
        a(f'v_and_or_b32 v{T}, v{T}, -2, {S_OTAG}')
        self.stamp(5)
        a(f'ds_write_b64 v{V_OW}, {vr(T,2)}')
        if not (o.get('lastx', 1) and o.get('split', 1)): a(f's_cmp_eq_u32 {S_S}, 63\ns_cbranch_scc1 L_Rtail_{tg}')
        else: a('s_nop 2')
        OA = AK
        WA = M + 16
        def oread():
            for k in range(4): a(f'ds_read_b128 {vr(OA+4*k,4)}, v{V_OR} offset:{(k//2)*2048 + (k%2)*512}')
        oc = [f'v_bitop3_b32 v{T+2+k}, v{OA+4*k}, v{OA+4*k+2}, {S_NOTAG} bitop3:0x42' for k in range(4)] + \
             [f'v_bitop3_b32 v{T+2}, v{T+2}, v{T+3}, v{T+4} bitop3:0x80', f'v_bitop3_b32 v{T+2}, v{T+2}, v{T+5}, 1 bitop3:0x80', f'v_cmp_eq_u32 vcc, 0, v{T+2}']
        Z(len(zs))
        for _ in range(o.get('z3', 3)): a('s_nop 1')
        oread()
        for _ in range(o.get('z4', 2)): dmf(M)
        self.stamp(6)
        def wo(t, k):
            fr = WVB + 8 * WO_SPILL.index((t, k)) if (t, k) in WO_SPILL else wo_frag(t, k)
            self.smf(WA + 4 * t, OA + 4 * k, vr(fr, 8))
        def fc(t): a(f'{cvt} v{AQ+2*t}, v{WA+4*t}, v{WA+4*t+1}\n{cvt} v{AQ+2*t+1}, v{WA+4*t+2}, v{WA+4*t+3}')
        def tagit(r): a(f'v_and_or_b32 v{r}, v{r}, -2, {S_TAG}')
        hint = o.get('hint', 0) and not cf
        hp_ = o.get('hpos', 6)
        cnt = [0]
        def H():
            if hint and cnt[0] == hp_: a(f'buffer_store_dword v{T+6}, v{V_ONE}, {WS}, {S_HST} offen')
            cnt[0] += 1
        if hint: a(f's_add_u32 {S_S1}, {S_S}, 1\nv_mov_b32 v{T+6}, {S_S1}')
        a(f'L_wo_{tg}:')
        if not o.get('early0', 1):
            for k in range(4):
                wo(0, k); H(); a(oc[k]) if k < 3 else None
                wo(1, k); H()
                if k == 3: a(oc[3])
            wo(2, 0); H(); a(oc[4])
            wo(3, 0); H(); a(oc[5])
            wo(2, 1); H(); a(oc[6])
            wo(3, 1); H(); fc(0)
            wo(2, 2); H(); fc(1)
            a(f's_cbranch_vccnz L_ofix_{tg}')
            wo(3, 2); H(); tagit(AQ)
            wo(2, 3)
            a(f'buffer_store_dwordx4 {vr(AQ,4)}, v{V_IST}, {WS}, {S_IN0} offen {cf}')
            wo(3, 3)
        else:
            for k in range(4):
                wo(0, k); a(oc[2 * k])
                wo(1, k)
                if k < 3: a(oc[2 * k + 1])
            wo(2, 0)
            a(f's_cbranch_vccnz L_ofix_{tg}')
            wo(3, 0); fc(0)
            wo(2, 1); fc(1)
            wo(3, 1); tagit(AQ)
            a(f'buffer_store_dwordx4 {vr(AQ,4)}, v{V_IST}, {WS}, {S_IN0} offen {cf}')
            wo(2, 2); wo(3, 2); wo(2, 3); wo(3, 3)
        fc(2); tagit(AQ + 4); fc(3)
        a(f'buffer_store_dwordx4 {vr(AQ+4,4)}, v{V_IST}, {WS}, {S_IN1} offen {cf}')
        def fix():
            a(f'L_ofix_{tg}:\ns_mov_b32 s23, {SPIN}\nL_ofix2_{tg}:')
            a.forget(vm=False)
            oread(); a.wait(lgkm=0)
            for x in oc: a(x)
            a(f's_cbranch_vccz L_ofix3_{tg}\ns_sub_u32 s23, s23, 1\ns_cbranch_scc0 L_ofix2_{tg}\ns_endpgm\nL_ofix3_{tg}:')
            for r in range(WA, WA + 16, 2): a(f'v_mov_b64 {vr(r,2)}, 0')
            a(f's_branch L_wo_{tg}')
        self.fixups.append(fix)
        self.stamp(7)
        def pack_kvm():
            a(f's_mov_b64 vcc, {S_LO}')
            for i in range(4):
                qp = '[0,0,0,2]' if i < 2 else '[0,0,1,3]'
                a(f'v_cndmask_b32_dpp v{KMH+i}, v{VMH+i%2}, v{KMH+i}, vcc quad_perm:{qp} row_mask:0xf bank_mask:0xf')
        self.pack_kvm = pack_kvm
        def preA():
            a(f"""
            v_mov_b32 v{PA}, {S_NTAG}
            v_mov_b32 v{PA+4}, {S_NTAG}
            """)
            for i in range(o.get('dA', 4) if wv >= 2 else o.get('dA0', o.get('dA', 4))): dmf(R)
        def slackA():
            preload()
            pack_kvm()
            a(f"""
            s_add_u32 {S_S}, {S_S}, 1
            s_xor_b32 {S_IN0}, {S_IN0}, 0x40000
            s_and_b32 {S_T0}, {S_S}, 3
            s_lshl_b32 {S_T0}, {S_T0}, 13
            v_mov_b64 {vr(M,2)}, -1
            s_andn2_b32 {S_PUBB}, {S_PUBB}, 0x6000
            s_andn2_b32 {S_MEMP}, {S_MEMP}, 0x6000
            v_mov_b64 {vr(M+2,2)}, -1
            s_or_b32 {S_MEMP}, {S_MEMP}, {S_T0}
            s_xor_b32 {S_RST}, {S_T0}, 0x4000
            v_mov_b64 {vr(M+4,2)}, -1
            s_or_b32 {S_RST}, {S_RST}, {S_PUBB}
            s_or_b32 {S_PUBB}, {S_PUBB}, {S_T0}
            v_mov_b64 {vr(M+6,2)}, -1
            """)
            if not o.get('zB'):
                for r in range(AQ, AQ + 24, 2): a(f'v_mov_b64 {vr(r,2)}, 0')
            a.wait(lgkm=0)
        def checkA():
            a(f"""
            v_bitop3_b32 v{VXC}, v{PA}, v{PA+4}, {S_NTAG} bitop3:0x42
            v_and_b32 v{VXC}, 1, v{VXC}
            v_cmp_eq_u32 vcc, 0, v{VXC}
            """)
        def shadowA():
            a(f'v_smfmac_f32_16x16x64_bf16 {vr(R,4)}, {vr(SELR,4)}, {vr(PA,8)}, v{V_IDX} abid:1')
        if True:
            pl = [(M + 24, 'q', 0, 0), (M + 16, 'q', 0, 1), (B0, 'q', 1, 0), (B1, 'q', 1, 1), (T, 'k', 0, 0)]
            chA = [(40, pack_kvm)]
            chA += sa(f"""
            s_add_u32 {S_S}, {S_S}, 1
            s_xor_b32 {S_IN0}, {S_IN0}, 0x40000
            s_and_b32 {S_T0}, {S_S}, 3
            s_lshl_b32 {S_T0}, {S_T0}, 13
            s_andn2_b32 {S_PUBB}, {S_PUBB}, 0x6000
            s_andn2_b32 {S_MEMP}, {S_MEMP}, 0x6000
            s_or_b32 {S_MEMP}, {S_MEMP}, {S_T0}
            s_xor_b32 {S_RST}, {S_T0}, 0x4000
            s_or_b32 {S_RST}, {S_RST}, {S_PUBB}
            s_or_b32 {S_PUBB}, {S_PUBB}, {S_T0}
            """)
            zz = [f'v_mov_b64 {vr(r,2)}, 0' for r in range(AQ, AQ + 24, 2)] + [f'v_mov_b32 v{M}, -1']
            for k in range(10):
                chA.append((16, lambda k=k: (RD(*pl[k // 2], k % 2), a(zz[k]))))
            chA += va(zz[10:])
            chA.append((4, lambda: a.wait(lgkm=0)))
            zr = lambda: a(f'v_mov_b64 {vr(R,2)}, 0\nv_mov_b64 {vr(R+2,2)}, 0')
            chA.append((16, zr))
            if hint:
                HV, HD = VXC + 1, VXC + 2
                a(f'v_lshrrev_b32 v{HV}, 2, v{V_L16}\nv_and_b32 v{HV}, 0x7f, v{HV}\nv_mov_b32 v{HD}, 0')
                hl = lambda: a(f'buffer_load_dword v{HD}, v{HV}, {WS}, {S_HLD} offen sc1')
                def spendh(t):
                    while chA and chA[0][0] <= t + 4:
                        c, f = chA.pop(0); f(); t -= c
                    while t >= 12: dmf(VXC + 4); t -= 16
                nh = o.get('hdep', 4)
                for k in range(nh - 1): hl(); spendh(o.get('hq', 48) - 8)
                a(f's_mov_b32 s23, {SPIN}\nL_hp_{tg}:')
                hl()
                a(f'v_cmp_gt_u32 vcc, {S_S1}, v{HD}\ns_sub_u32 s23, s23, 1\ns_cbranch_scc1 L_hk_{tg}\ns_cbranch_vccnz L_hp_{tg}\nL_hk_{tg}:')
            self.poll2('A' + tg, PA, S_INP, chA, o.get('hdel', 0) if hint else (o.get('tA0', 230) if wv >= 2 else o.get('tA00', o.get('tA0', 230))), o.get('tA1', 180), o.get('tA2', 100), lambda: dmf(VXC + 4), checkA, shadowA, retry=zr)
        self.stamp(8)
        hp = ''
        a(f"""
        {'s_nop 1' + chr(10) + a.dummy + chr(10) + 's_nop 0' if hp else ''}
        v_add_f32_dpp v{R}, v{R}, v{R} row_ror:8 row_mask:0xf bank_mask:0x3 {hp}
        v_add_f32_dpp v{R+1}, v{R+1}, v{R+1} row_ror:8 row_mask:0xf bank_mask:0x3 {hp}
        v_add_f32_dpp v{R}, v{R+2}, v{R+2} row_ror:8 row_mask:0xf bank_mask:0xc {hp}
        v_add_f32_dpp v{R+1}, v{R+3}, v{R+3} row_ror:8 row_mask:0xf bank_mask:0xc {hp}
        v_add_f32_dpp v{R}, v{R}, v{R} row_ror:12 row_mask:0xf bank_mask:0xf
        v_add_f32_dpp v{R+1}, v{R+1}, v{R+1} row_ror:12 row_mask:0xf bank_mask:0xf
        {cvt} v{R+2}, v{R}, v{R+1}
        buffer_store_dword v{R+2}, v{V_PUB}, {WS}, {S_PUBB} offen {cf}
        """)
        self.stamp(9)
        a(f'buffer_store_dword v{M}, v{V_PUB}, {WS}, {S_RST} offen {cf}')
        if o.get('span2') and wv == 0:
            lab = a.newlabel('n8')
            a(f's_cmp_lg_u32 {S_S}, 8\ns_cbranch_scc1 {lab}')
            self.note(5, T + 10)
            a(f'{lab}:')
        if not o.get('rt'): self.dump_stamps(tg)
        a(f's_branch L_Rloop_{tg}')
        a.hot = False
        a(f'{spin}:')
        self.spin_flag(V_FLAG, f'v{V_Z}', S_FKV)
        a(f's_branch {back}')
        for txt, sh in zip(self.late, self.late_sh):
            pre, post = txt.split('@SH@')
            a(pre); a('s_nop 7'); sh(); a('s_nop 7'); a(post)
        for f in self.fixups: f()
        if o.get('lastx', 1) and o.get('split', 1):
            a(f'L_Rlast_{tg}:')
            a.lq = list(lq_last)
            RD2(B0, 'k', 2, 1); S('k', 1, 1); RD2(B1, 'k', 3, 1); V(0, 1); RD2(T, 'k', 4, 1); V(1, 0); V(1, 1)
            a.wait(lgkm=6)
            a('s_barrier')
            for k in range(2, 8): MR(k)
            a('s_waitcnt vmcnt(0)')
            a(f'buffer_store_dwordx4 {vr(KMH,4)}, v{V_L16}, {WS}, {S_T0} offen sc1')
            a(f'buffer_store_dword v{V_F}, v{V_ONE}, {WS}, {S_T1} offen sc1')
            RD2(B2, 'k', 5, 1)
            rest = [('k', 6, 1), ('k', 7, 0), ('k', 7, 1), ('v', 6, 0), ('v', 6, 1), ('v', 7, 0), ('v', 7, 1)]
            ring = [(B0, ('k', 2, 1)), (B1, ('k', 3, 1)), (T, ('k', 4, 1)), (B2, ('k', 5, 1))]
            regf = [('k', k, 0) for k in range(2, 7)] + [('v', k, p) for k in range(2, 6) for p in range(2)]
            while ring:
                if regf: S(*regf.pop(0))
                b, f = ring.pop(0)
                S(*f, b)
                if rest:
                    f = rest.pop(0); RD2(b, *f); ring.append((b, f))
                if f == ('v', 6, 1) and not rest[2:] and False: pass
            for f in regf: S(*f)
            for x, r in ((AK, SELK), (AV, None)):
                pkadd(x, x, x + 2); pkadd(x + 4, x + 4, x + 6)
                a(f'{cvt} v{x+2}, v{x}, v{x+1}\n{cvt} v{x+3}, v{x+4}, v{x+5}')
            a(f'{mf16} {vr(AK+4,4)}, {vr(AK+2,2)}, {vr(SELK,2)}, 0\n{mf16} {vr(T,4)}, {vr(AK+2,2)}, {vr(SELK+2,2)}, 0')
            a(f'{mf16} {vr(AV+4,4)}, {vr(SELV,2)}, {vr(AV+2,2)}, 0')
            a(f'{cvt} v{KMH}, v{AK+4}, v{AK+5}\n{cvt} v{KMH+1}, v{AK+6}, v{AK+7}\n{cvt} v{KMH+2}, v{T}, v{T+1}\n{cvt} v{KMH+3}, v{T+2}, v{T+3}')
            a(f'{cvt} v{VMH}, v{AV+4}, v{AV+5}\n{cvt} v{VMH+1}, v{AV+6}, v{AV+7}')
        a(f'L_Rtail_{tg}:')
        a.forget()
        self.pack_kvm()
        a(f'''
        buffer_store_dwordx4 {vr(KMH,4)}, v{V_L16}, {WS}, {S_KVM} offen sc1
        s_waitcnt vmcnt(0) lgkmcnt(0)
        buffer_store_dword v{V_F}, v{V_ONE}, {WS}, {S_FM} offen sc1
        buffer_store_dword v{V_F}, v{V_ONE}, {WS}, {S_FM} offen offset:2048 sc1
        ''')
        self.tstamp(6, T + 4)
        self.note(6, T + 4)
        if o.get('stamp'):
            set_srd(a, 12, P_DBG, 256)
            a(f'''
            s_memtime s[82:83]
            s_memrealtime s[84:85]
            s_waitcnt lgkmcnt(0)
            s_sub_u32 s82, s82, s80
            s_sub_u32 s84, s84, s30
            s_sub_u32 s28, s28, s30
            v_mov_b32 v{T}, s82
            v_mov_b32 v{T+1}, {S_FAST}
            v_mov_b32 v{T+2}, s28
            v_mov_b32 v{T+3}, s84
            v_mov_b32 v{T+4}, 16
            buffer_store_dwordx4 {vr(T,4)}, v{T+4}, {ST}, 0 offen
            ''')
        a('s_endpgm')
        a.auto_vm = True
```

```python
import layout as L
from gen_common import *
import struct
def f2u(x): return struct.unpack('<I', struct.pack('<f', x))[0]
mf16 = 'v_mfma_f32_16x16x16_bf16'; mf32 = 'v_mfma_f32_16x16x32_bf16'; cvt = 'v_cvt_pk_bf16_f32'

TB = 0
NAMES = list(L.w_table().keys())
def tv(n): return TB + NAMES.index(n)
V_TID = 24
XF = 48
ACC = 64
S_ISB, S_SEG, S_END, S_STEP, S_BASE, S_STR = 's61', 's62', 's63', 's64', 's65', 's66'
S_XB, S_PF, S_PF2, S_A, S_B, S_HEAD = 's67', 's68', 's69', 's70', 's71', 's72'
S_FIRST = 's73'
S_TFAST = 's89'
SX = 's[24:27]'

def wfrag(m, ks, p):
    c = 'qkv'.index(m) * 8 + ks // 2
    r = c * 16 + p * 8 + (ks % 2) * 4
    return ar(r, 4) if r < 256 else vr(128 + r - 256, 4)

class Workers:
    def tables(self):
        return L.table_text('T_R', L.r_table()) + L.table_text('T_W', L.w_table())

    def xlane(self, op, x, t):
        a = self.a
        a(f'v_mov_b32 v{t}, v{x}\nv_permlane16_swap_b32 v{x}, v{t}\n{op} v{x}, v{x}, v{t}')
        a(f'v_mov_b32 v{t}, v{x}\nv_permlane32_swap_b32 v{x}, v{t}\n{op} v{x}, v{x}, v{t}')

    def x_dma(self, piece=None):
        a = self.a
        if piece is not None and piece >= 0:
            a(f'buffer_load_dwordx4 v{tv("xg")}, {SX}, s21 offen lds')
            a('s_add_u32 m0, m0, 1024')
            a(f's_add_u32 s21, s21, {16384 if piece % 2 == 0 else hex((64 - 16384) & 0xFFFFFFFF)}')
            return
        a(f's_lshl_b32 s21, {S_A}, 15\ns_lshl_b32 s22, {S_W}, 8\ns_add_u32 s21, s21, s22')
        a(f's_lshl_b32 s22, {S_W}, 13\ns_add_u32 m0, s22, {S_XB}')
        if piece is not None: return
        for k in range(4):
            for tt in range(2):
                a(f'buffer_load_dwordx4 v{tv("xg")}, {SX}, s21 offen lds')
                a('s_add_u32 m0, m0, 1024')
                a(f's_add_u32 s21, s21, {16384 if tt == 0 else hex((64 - 16384) & 0xFFFFFFFF)}')

    def worker_role(self):
        a = self.a; o = self.o
        a('L_worker:')
        a.vq = list(self.vq_role)
        self.mark(0)
        if o.get('no_workers'):
            self.gate_and_store(); a.wait(vm=0); self.signal_init(); a('s_endpgm'); return
        nb = o.get('nb', 1)
        a(f'''
        s_sub_u32 s21, {S_TEAM}, 1
        {'s_add_u32 s22, s21, 6' + chr(10) + 's_sub_u32 s21, s21, 1' + chr(10) + 's_cselect_b32 s21, s22, s21' if nb else ''}
        s_lshl_b32 s21, s21, 5
        s_add_u32 s21, s21, {S_RANK}
        s_cmp_ge_u32 s21, 192
        s_cselect_b32 {S_ISB}, 1, 0
        s_cbranch_scc1 L_w_B
        s_mul_i32 {S_HEAD}, s21, 43691
        s_lshr_b32 {S_HEAD}, {S_HEAD}, 18
        s_mul_i32 s22, {S_HEAD}, 6
        s_sub_u32 {S_SEG}, s21, s22
        s_mov_b32 {S_END}, 64
        s_mov_b32 {S_STEP}, 6
        s_mov_b32 {S_FIRST}, 0
        s_movk_i32 {S_STR}, 8192
        s_mov_b32 s75, {4<<20}
        s_branch L_w_dec
        L_w_B:
        s_sub_u32 s21, s21, 192
        s_lshr_b32 {S_HEAD}, s21, 3
        s_and_b32 s21, s21, 7
        s_lshl_b32 {S_FIRST}, s21, 3
        s_add_u32 {S_END}, {S_FIRST}, 8
        s_max_u32 {S_SEG}, {S_FIRST}, 1
        s_sub_u32 {S_SEG}, {S_SEG}, 1
        s_mov_b32 {S_STEP}, 1
        s_movk_i32 {S_STR}, 3072
        s_mov_b32 s75, {512*3072}
        L_w_dec:
        v_and_b32 v1, 63, v0
        v_lshrrev_b32 v2, 4, v1
        v_and_b32 v3, 15, v1
        v_lshlrev_b32 v3, 4, v3
        s_lshl_b32 s79, {S_STR}, 4
        v_mul_lo_u32 v2, v2, s79
        v_add_u32 v28, v2, v3
        s_mul_i32 s78, {S_W}, {L.BLK}
        s_lshl_b32 s77, {S_HEAD}, 8
        s_lshl_b32 s79, {S_STR}, 6
        ''')
        nwarm = 0
        if o.get('mall'):
            a(f's_sub_u32 s21, {S_TEAM}, 1\ns_lshl_b32 s21, s21, 5\ns_add_u32 s21, s21, {S_RANK}\ns_lshl_b32 s21, s21, 2\ns_add_u32 s21, s21, {S_W}')
            a('v_lshlrev_b32 v29, 7, v1\ns_mov_b32 s10, 0x400000\ns_mov_b32 s11, 0x20000')
            for i in range(2):
                a(f'''
                s_add_u32 s22, s21, {896 * i}
                s_cmp_ge_u32 s22, 512
                s_cselect_b32 s8, s{P_WV}, s{P_WK}
                s_cselect_b32 s9, s{P_WV+1}, s{P_WK+1}
                s_and_b32 s23, s22, 511
                s_lshl_b32 s23, s23, 13
                s_cmp_ge_u32 s22, 1024
                s_cselect_b32 s23, {hex(L.OOB)}, s23
                buffer_load_dword v{30+i%2}, v29, {SA}, s23 offen
                ''')
        groups = [(m, b) for m in 'kvq' for b in range(2)]
        def issue(gi):
            m, b = groups[gi]
            if b == 0:
                ptr = {'q': P_WQ, 'k': P_WK, 'v': P_WV}[m]
                a(f"""
                s_cmp_eq_u32 {S_ISB}, 1
                s_cselect_b32 s8, s{P_WQKV}, s{ptr}
                s_cselect_b32 s9, s{P_WQKV+1}, s{ptr+1}
                s_mov_b32 s10, s75
                s_mov_b32 s11, 0x20000
                s_cselect_b32 s76, {'qkv'.index(m) * 1024}, 0
                s_add_u32 s76, s76, s77
                """)
            a(f's_add_u32 m0, s78, {(gi % 2) * L.GRP}')
            a(f's_add_u32 s21, {S_W}, {4 * b}\ns_mul_i32 s21, s21, s79\ns_add_u32 s21, s21, s76')
            self.dma_block('v28', 's21', S_STR)
        issue(0)
        self.load_table('T_W', 96, 24, 7)
        self.confirm_role()
        issue(1)
        self.mark(1)
        self.gate_and_store()
        a(f'v_mov_b32 v{V_TID}, v0')
        for i in range(24): a(f'v_mov_b32 v{TB+i}, v{96+i}')
        a(f'v_add_u32 v29, {L.GRP}, v{tv("trp")}')
        set_srd(a, 24, P_X, 2048 * 1024)
        a(f's_mov_b32 {S_XB}, 0\ns_mov_b32 {S_A}, {S_SEG}')
        a.auto_vm = False
        def consume(gi):
            m, b = groups[gi]
            a('s_barrier')
            for x in range(4):
                for p in range(2):
                    for h in range(2):
                        f = wfrag(m, 2 * (4 * b + x) + h, p)
                        kind, base = f[0], int(f[2:f.index(':')])
                        for r in range(2):
                            a(f'ds_read_b64_tr_b16 {kind}[{base+2*r}:{base+2*r+1}], v{tv("trp") if gi % 2 == 0 else 29} offset:{x * L.BLK + 512*h + 4224*r + 32*p}')
            a.wait(lgkm=0)
            a('s_barrier')
        VX = 25
        KP, VP = 112, 116
        acc = lambda m, p, tt: ACC + 16 * 'qkv'.index(m) + 8 * p + 4 * tt
        def xr(ks):
            for tt in range(2):
                a(f'ds_read_b128 {vr(XF + 8*(ks%2) + 4*tt, 4)}, v{VX} offset:{(ks*2+tt)*1024}')
        def loop_head(lab, mats, nst):
            a(f'{lab}:')
            pm = o.get('pmark') and lab == 'L_P_kv'
            if pm: a.raw('    s_memtime s[82:83]')
            a(f's_waitcnt vmcnt({nst + 1})')
            a('s_barrier')
            if pm: a.raw('    s_memtime s[84:85]')
            a(f's_add_u32 {S_A}, {S_SEG}, {S_STEP}\ns_min_u32 {S_A}, {S_A}, 63\ns_xor_b32 {S_XB}, {S_XB}, 32768')
            self.x_dma(-1)
            if pm: a.raw('    s_memtime s[86:87]')
            xr(0)
            for ks in range(16):
                if ks < 15: xr(ks + 1)
                if ks == 9:
                    if pm: a.raw('    s_memtime s[94:95]')
                    a('s_waitcnt vmcnt(8)')
                    if pm: a.raw('    s_memtime s[96:97]')
                    a(f'buffer_store_dword v{tv("oxr")}, v{tv("one")}, {WS}, {S_PF} offen sc1')
                for m in mats:
                    for p in range(2):
                        for tt in range(2):
                            d = vr(acc(m, p, tt), 4)
                            x = vr(XF + 8 * (ks % 2) + 4 * tt, 4); w = wfrag(m, ks, p)
                            A, B = (w, x) if m != 'v' else (x, w)
                            a(f'{mf32} {d}, {A}, {B}, {d if ks else 0}')
                            if ks < 8 and m == mats[0] and p == 0 and tt == 0: self.x_dma(ks)
            if pm: a.raw('    s_memtime s[98:99]')
            a(f'v_xor_b32 v{VX}, 32768, v{VX}')
        def loop_tail(lab):
            a(f's_add_u32 {S_SEG}, {S_SEG}, {S_STEP}\ns_cmp_lt_u32 {S_SEG}, {S_END}\ns_cbranch_scc1 {lab}')
            a('s_waitcnt vmcnt(0)')
            a(f'buffer_store_dword v{tv("oxr")}, v{tv("one")}, {WS}, {S_PF} offen sc1')
            a('s_barrier')
        def start_loop():
            a(f's_mov_b32 {S_PF}, {hex(L.OOB)}\nv_mov_b32 v{VX}, v{tv("l16")}')
        def init_sync(marks=True, t=40):
            a.forget()
            if marks:
                self.dump_marks(t)
                self.tstamp(1, t)
            lab = a.newlabel('wz')
            a(f'v_mov_b32 v{t+4}, {L.LDS_BYTES - 16}\ns_cmp_lg_u32 {S_W}, 0\ns_cbranch_scc1 {lab}')
            self.wait_init(t0=t, tid=V_TID)
            a(f'v_mov_b32 v{t+5}, s21\nds_write_b32 v{t+4}, v{t+5}')
            a.wait(lgkm=0)
            a(f'{lab}:\ns_waitcnt vmcnt(0)\ns_barrier\nds_read_b32 v{t+5}, v{t+4}')
            a(f'v_readfirstlane_b32 s21, v{t+5}')
            a(f's_cmp_ge_u32 s21, 32\ns_cselect_b32 {S_TFAST}, 1, 0')
            if o.get('force_slow'): a(f's_mov_b32 {S_TFAST}, 0')
            self.tstamp(2, t)
        def a_epilogue(frs, foff, flagoff):
            a(f"""
            s_lshl_b32 s21, {S_SEG}, 5
            s_add_u32 s21, s21, {S_HEAD}
            s_lshl_b32 {S_PF}, s21, 6
            s_mul_i32 s21, s21, 24576
            s_mul_i32 s22, {S_W}, 6144
            s_add_u32 s21, s21, s22
            s_add_u32 s21, s21, {foff}
            s_lshl_b32 s23, {S_W}, 2
            s_add_u32 {S_PF}, {S_PF}, s23
            s_add_u32 {S_PF}, {S_PF}, {hex(L.F_KV + flagoff)}
            """)
            for f, (t0, t1) in enumerate(frs):
                o4 = 32 + 4 * f
                for i, t in enumerate((t0, t1)):
                    r = acc(*t)
                    a(f'{cvt} v{o4+2*i}, v{r}, v{r+1}\n{cvt} v{o4+2*i+1}, v{r+2}, v{r+3}')
                a(f'buffer_store_dwordx4 {vr(o4,4)}, v{tv("l16")}, {WS}, s21 offen offset:{1024*f} sc1')
        self.mark(2)
        for gi in range(2):
            a.wait(vm=17)
            if gi == 0: self.mark(3)
            consume(gi); issue(gi + 2)
        a.wait(vm=16); self.mark(4)
        consume(2)
        a(f's_cmp_eq_u32 {S_ISB}, 1\ns_cbranch_scc1 L_w_Bload')
        self.x_dma()
        self.signal_init(tid=V_TID, t=40, barrier=False)
        a.wait(vm=8); self.mark(5); self.mark(6)
        consume(3)
        a.forget()
        if not o.get('pmark'): self.dump_marks(40)
        self.tstamp(1, 40); self.note(7, 40)
        a('s_waitcnt vmcnt(0)')
        a(f's_mov_b32 {S_FIRST}, {S_SEG}')
        start_loop()
        loop_head('L_P_kv', 'kv', 4)
        a_epilogue([[('k', 0, 0), ('k', 1, 0)], [('k', 0, 1), ('k', 1, 1)], [('v', 0, 0), ('v', 1, 1)], [('v', 1, 0), ('v', 0, 1)]], 0, 0)
        lab = a.newlabel('nf')
        a(f's_cmp_lg_u32 {S_SEG}, {S_FIRST}\ns_cbranch_scc1 {lab}')
        init_sync(marks=False, t=48)
        a(f'buffer_store_dword v{tv("oxr")}, v{tv("one")}, {WS}, {S_PF} offen sc1')
        if o.get('hold', 0):
            l2 = a.newlabel('hold')
            a(f's_cmp_lg_u32 {S_W}, 0\ns_cbranch_scc1 {l2}\ns_lshl_b32 s21, {S_HEAD}, 6\ns_add_u32 s21, s21, {hex(L.F_RS)}\nv_mov_b32 v48, 0')
            self.spin4('v48', 's21', 49, n=1, sleep=8)
            a(f'{l2}:')
        a(f'{lab}:')
        if o.get('pmark'):
            a.raw('    s_memtime s[100:101]')
            lab = a.newlabel('pm')
            a(f's_cmp_lt_u32 {S_SEG}, 30\ns_cbranch_scc1 {lab}\ns_cmp_ge_u32 {S_SEG}, 36\ns_cbranch_scc1 {lab}')
            self.dump_marks(48)
            a(f's_waitcnt vmcnt(0)\n{lab}:')
        loop_tail('L_P_kv')
        issue(4); issue(5)
        a('s_waitcnt vmcnt(16)'); consume(4)
        a(f's_mov_b32 {S_SEG}, {S_FIRST}\ns_mov_b32 {S_XB}, 0\ns_mov_b32 {S_A}, {S_SEG}')
        self.x_dma()
        a('s_waitcnt vmcnt(8)'); consume(5)
        a('s_waitcnt vmcnt(0)')
        start_loop()
        loop_head('L_P_q', 'q', 2)
        a_epilogue([[('q', 0, 0), ('q', 1, 0)], [('q', 0, 1), ('q', 1, 1)]], 4096, 16)
        loop_tail('L_P_q')
        a('s_branch L_P_done')
        a('L_w_Bload:')
        issue(4)
        self.signal_init(tid=V_TID, t=40, barrier=False)
        a('s_waitcnt vmcnt(16)'); consume(3); issue(5)
        a('s_waitcnt vmcnt(16)'); self.mark(5); consume(4)
        self.x_dma()
        a('s_waitcnt vmcnt(8)'); self.mark(6); consume(5)
        init_sync()
        for r in range(KP, KP + 8, 2): a(f'v_mov_b64 {vr(r,2)}, 0')
        start_loop()
        loop_head('L_P_B', 'qkv', 4)
        G1 = 26
        a(f's_lshl_b32 s21, {S_SEG}, 7\ns_add_u32 s21, s21, {hex(L.GATE)}')
        a(f'buffer_load_dword v{G1}, v{tv("c4")}, {WS}, s21 offen sc1\nbuffer_load_dword v{G1+1}, v{tv("c4")}, {WS}, s21 offen offset:64 sc1')
        for m in 'qkv':
            for p in range(2):
                for tt in range(2):
                    r = acc(m, p, tt)
                    a(f'{cvt} v{r}, v{r}, v{r+1}\n{cvt} v{r+1}, v{r+2}, v{r+3}')
        a(f'''
        s_mov_b32 s80, 0xaaaaaaaa
        s_mov_b32 s81, 0xaaaaaaaa
        v_cmp_ne_u32 s[82:83], 0, v{tv("mc0")}
        v_cmp_ne_u32 s[84:85], 0, v{tv("mc1")}
        s_mov_b32 s86, {hex(f2u(0.25 * 1.4426950408889634))}
        s_cmp_eq_u32 {S_SEG}, 0
        s_cselect_b32 s87, 0xf149f2ca, 0
        s_lshl_b32 s21, {S_SEG}, 5
        s_lshl_b32 s22, {S_HEAD}, 3
        s_add_u32 s21, s21, s22
        s_lshl_b32 s22, {S_W}, 1
        s_add_u32 s21, s21, s22
        s_lshl_b32 s21, s21, 10
        s_add_u32 s21, s21, {hex(L.OB)}
        s_cmp_lt_u32 {S_SEG}, {S_FIRST}
        s_cselect_b32 s21, {hex(L.OOB)}, s21
        s_lshl_b32 {S_PF}, {S_SEG}, 2
        s_add_u32 {S_PF}, {S_PF}, {S_HEAD}
        s_lshl_b32 {S_PF}, {S_PF}, 6
        s_lshl_b32 s22, {S_W}, 2
        s_add_u32 {S_PF}, {S_PF}, s22
        s_add_u32 {S_PF}, {S_PF}, {hex(L.F_OB)}
        s_cmp_lt_u32 {S_SEG}, {S_FIRST}
        s_cselect_b32 {S_PF}, {hex(L.OOB)}, {S_PF}
        s_waitcnt vmcnt(0)
        v_sub_f32 v{G1}, 1.0, v{G1}
        v_sub_f32 v{G1+1}, 1.0, v{G1+1}
        ''')
        for p in range(2):
            for tt in range(2):
                q = acc('q', p, tt); kc = acc('k', p, tt); vc = acc('v', p, tt)
                kp = KP + 2 * p if tt == 0 else acc('k', p, 0)
                vp = VP + 2 * p if tt == 0 else acc('v', p, 0)
                SC_, SP_, OD = 28, 32, 36
                a(f'{mf16} {vr(SC_,4)}, {vr(kc,2)}, {vr(q,2)}, 0\n{mf16} {vr(SP_,4)}, {vr(kp,2)}, {vr(q,2)}, 0')
                for j in range(2):
                    a(f'v_cndmask_b32 v{SC_+2*j}, v{SC_+2*j}, v{SC_+2*j+1}, s[80:81]')
                    a(f'v_cndmask_b32 v{SP_+2*j}, v{SP_+2*j}, v{SP_+2*j+1}, s[80:81]')
                    if tt == 0: a(f'v_add_f32 v{SP_+2*j}, s87, v{SP_+2*j}')
                    a(f'v_cndmask_b32 v{40+j}, v{SP_+2*j}, v{SC_+2*j}, s[{82+2*j}:{83+2*j}]')
                a('v_max_f32 v42, v40, v41')
                self.xlane('v_max_f32', 42, 43)
                a('v_mul_f32 v42, s86, v42')
                for j in range(2): a(f'v_fma_f32 v{40+j}, v{40+j}, s86, -v42\nv_exp_f32 v{40+j}, v{40+j}')
                a('v_add_f32 v42, v40, v41')
                self.xlane('v_add_f32', 42, 43)
                a(f'v_rcp_f32 v42, v42')
                for j in range(2):
                    a(f'{cvt} v{40+j}, v{40+j}, v{40+j}')
                    a(f'v_and_b32 v{44+j}, v{40+j}, v{tv(f"mc{j}")}\nv_and_b32 v{46+j}, v{40+j}, v{tv(f"mp{j}")}')
                a(f'v_mul_f32 v42, v42, v{G1+tt}')
                a(f'{mf16} {vr(OD,4)}, {vr(vc,2)}, v[44:45], 0\n{mf16} {vr(OD,4)}, {vr(vp,2)}, v[46:47], {vr(OD,4)}')
                for i in range(4): a(f'v_mul_f32 v{OD+i}, v{OD+i}, v42')
                ob = XF + 2 * (2 * p + tt)
                a(f'{cvt} v{ob}, v{OD}, v{OD+1}\n{cvt} v{ob+1}, v{OD+2}, v{OD+3}')
                a(f'buffer_store_dwordx2 {vr(ob,2)}, v{tv("l8")}, {WS}, s21 offen offset:{1024*p + 512*tt} sc1')
        for p in range(2):
            a(f'v_mov_b64 {vr(KP+2*p,2)}, {vr(acc("k",p,1),2)}\nv_mov_b64 {vr(VP+2*p,2)}, {vr(acc("v",p,1),2)}')
        loop_tail('L_P_B')
        if nb:
            self.tstamp(6, 40)
            a('s_endpgm')
        a('L_P_done:')
        self.tstamp(3, 40)
        self.note(8, 40)
        if o.get('no_F'):
            a('s_endpgm'); a.auto_vm = True; return
        self.f_phase()

    def spin4(self, voff, soff, tmp, n=4, sleep=2):
        a = self.a
        lab = a.newlabel('s4'); ok = a.newlabel('s4ok')
        ld = {1: 'buffer_load_dword', 4: 'buffer_load_dwordx4'}[n]
        a(f's_mov_b32 s23, {SPIN}\n{lab}:')
        a(f'{ld} {vr(tmp,n)}, {voff}, {WS}, {soff} offen sc1\ns_waitcnt vmcnt(0)')
        if n == 4: a(f'v_min_u32 v{tmp}, v{tmp}, v{tmp+1}\nv_min3_u32 v{tmp}, v{tmp}, v{tmp+2}, v{tmp+3}')
        a(f'v_cmp_eq_u32 vcc, 0, v{tmp}\ns_cbranch_vccz {ok}\n{"s_sleep %d" % sleep if sleep else ""}\ns_sub_u32 s23, s23, 1\ns_cbranch_scc0 {lab}\ns_mov_b32 {SPIN}, 0x400\n{ok}:')

    def f_phase(self):
        a = self.a; o = self.o
        set_srd(a, 8, P_WO, 4 << 20)
        a(f's_mul_i32 s78, {S_W}, 36864\ns_mov_b32 m0, s78')
        for kb in range(2):
            for T in range(4):
                a(f's_lshl_b32 s21, {S_RANK}, 17\ns_add_u32 s21, s21, {kb*65536 + T*64}')
                self.dma_chunk(f'v{tv("dma1k")}', 's21', 1024)
        set_srd(a, 8, P_WOB, 512 * 1024)
        for T in range(4):
            a(f's_lshl_b32 s21, {S_RANK}, 14\ns_add_u32 s21, s21, {T*64}')
            self.dma_chunk(f'v{tv("dma1k")}', 's21', 1024, n=1)
        set_srd(a, 12, P_OUT, 2048 * 1024)
        V_Z = 26
        a(f'v_mov_b32 v{V_Z}, 0')
        for kt in range(2):
            for i in range(4):
                a(f'v_cmp_le_i32 s[{64+8*kt+2*i}:{65+8*kt+2*i}], {16*kt+i}, v{tv("qrow")}')
        a('s_waitcnt vmcnt(0)')
        wof = lambda T, p, ks: 4 * ((T * 2 + p) * 4 + ks)
        wob = lambda T, p: 128 + 2 * (T * 2 + p)
        for kb in range(2):
            for T in range(4):
                so = (kb * 4 + T) * 4096
                for p in range(2):
                    for h in range(2):
                        for r in range(2):
                            a(f'ds_read_b64_tr_b16 {ar(wof(T,p,2*kb+h)+2*r,2)}, v{tv("trf")} offset:{so + 2048*h + 1024*r + 8*p}')
        for T in range(4):
            for p in range(2):
                a(f'ds_read_b64_tr_b16 {ar(wob(T,p),2)}, v{tv("trf")} offset:{32768 + 1024*T + 8*p}')
        a.wait(lgkm=0)
        S_FS, S_RB, S_FB = 's61', 's62', 's63'
        a(f's_sub_u32 {S_FS}, {S_TEAM}, {2 if o.get("nb", 1) else 1}\ns_mov_b32 s80, {hex(f2u(128 ** -0.5 * 1.4426950408889634))}\ns_mov_b32 s81, 0xf149f2ca')
        a(f's_lshr_b32 s82, {S_W}, 1\ns_and_b32 s83, {S_W}, 1')
        a(f's_lshl_b32 s86, {S_TEAM}, 21\ns_add_u32 s86, s86, {hex(L.FP)}')
        Q, K0, K1, V, KM, VM, OBF, G, S0, S1, SM, PX, PM, D, OF, AC = 28, 44, 60, 76, 92, 108, 112, 116, 120, 124, 128, 132, 136, 140, 156, 188
        a('L_F_loop:')
        a.forget(); a.auto_vm = True
        a(f'''
        s_lshl_b32 s21, {S_FS}, 5
        s_add_u32 s21, s21, {S_RANK}
        s_lshl_b32 {S_FB}, s21, 6
        s_mul_i32 {S_RB}, s21, 24576
        s_lshl_b32 s84, s21, 12
        s_add_u32 s84, s84, {hex(L.KVM)}
        s_lshl_b32 s85, s21, 10
        s_add_u32 s85, s85, {hex(L.OB)}
        s_add_u32 s21, {S_FB}, {hex(L.F_KV + 16)}
        ''')
        self.spin4(f'v{V_Z}', 's21', Q)
        a(f'''
        s_lshl_b32 s21, {S_FS}, 2
        s_lshr_b32 s22, {S_RANK}, 3
        s_add_u32 s21, s21, s22
        s_lshl_b32 s21, s21, 6
        s_and_b32 s22, {S_RANK}, 6
        s_lshl_b32 s22, s22, 1
        s_add_u32 s21, s21, s22
        s_add_u32 s21, s21, {hex(L.F_OB)}
        ''')
        self.spin4(f'v{V_Z}', 's21', Q, n=1)
        a.forget()
        l16 = f'v{tv("l16")}'
        NEGJ = 252
        a(f's_lshl_b32 s87, {S_FS}, 2\ns_add_u32 s87, s87, {S_W}\ns_lshl_b32 s87, s87, 5\ns_add_u32 s87, s87, {S_RANK}\ns_lshl_b32 s87, s87, 2\ns_add_u32 s87, s87, {hex(L.F_P)}')
        a(f's_cmp_eq_u32 {S_TFAST}, 0\ns_cselect_b32 s21, {hex(L.OOB)}, s87\nbuffer_load_dword v{NEGJ}, v{tv("one")}, {WS}, s21 offen')
        for qt in range(2):
            a(f'buffer_load_dwordx2 {vr(OBF+2*qt,2)}, v{tv("l8")}, {WS}, s85 offen offset:{512*qt} sc1')
        a(f's_lshl_b32 s22, s82, 10\ns_add_u32 s22, s22, 4096\ns_add_u32 s22, s22, {S_RB}\ns_mov_b32 s21, {S_RB}')
        for sl in range(4):
            a(f'buffer_load_dwordx4 {vr(Q+4*sl,4)}, {l16}, {WS}, s22 offen sc1')
            a(f'buffer_load_dwordx4 {vr(K0+4*sl,4)}, {l16}, {WS}, s21 offen sc1')
            a(f'buffer_load_dwordx4 {vr(K1+4*sl,4)}, {l16}, {WS}, s21 offen offset:1024 sc1')
            if sl < 3: a('s_add_u32 s21, s21, 6144\ns_add_u32 s22, s22, 6144')
        a(f's_mul_i32 s21, s83, 12288\ns_add_u32 s21, s21, {S_RB}\ns_add_u32 s22, s21, 6144')
        for sl in range(2):
            for f in range(2):
                a(f'buffer_load_dwordx4 {vr(V+8*sl+4*f,4)}, {l16}, {WS}, {"s21" if sl == 0 else "s22"} offen offset:{2048+1024*f} sc1')
        a(f's_lshl_b32 s21, {S_FS}, 7\ns_lshl_b32 s22, s82, 6\ns_add_u32 s21, s21, s22\ns_add_u32 s21, s21, {hex(L.GATE)}')
        a(f'buffer_load_dword v{G}, v{tv("c4")}, {WS}, s21 offen sc1')
        for qt in range(2):
            for T in range(4):
                for p in range(2):
                    a(f'{mf16} {vr(AC+32*qt+8*T+4*p,4)}, {ar(wob(T,p),2)}, {vr(OBF+2*qt,2)}, 0')
        for sl in range(4):
            a(f'{mf32} {vr(S0,4)}, {vr(K0+4*sl,4)}, {vr(Q+4*sl,4)}, {vr(S0,4) if sl else 0}')
            a(f'{mf32} {vr(S1,4)}, {vr(K1+4*sl,4)}, {vr(Q+4*sl,4)}, {vr(S1,4) if sl else 0}')
        NEG = 27
        a(f'v_mov_b32 v{NEG}, s81')
        for kt, Sx in enumerate((S0, S1)):
            for i in range(4): a(f'v_cndmask_b32 v{Sx+i}, v{NEG}, v{Sx+i}, s[{64+8*kt+2*i}:{65+8*kt+2*i}]')
        MX = 117
        a(f'v_max3_f32 v{MX}, v{S0}, v{S0+1}, v{S0+2}\nv_max3_f32 v{MX}, v{MX}, v{S0+3}, v{S1}\nv_max3_f32 v{MX}, v{MX}, v{S1+1}, v{S1+2}\nv_max_f32 v{MX}, v{MX}, v{S1+3}')
        if o.get('fpt', 1):
            a(f's_xor_b32 s22, s86, {1<<20}\ns_lshl_b32 s21, {S_RANK}, 10\ns_add_u32 s21, s21, s22\ns_lshl_b32 s22, {S_W}, 17\ns_add_u32 s21, s21, s22')
            a(f's_cmp_eq_u32 {S_TFAST}, 0\ns_cselect_b32 s21, {hex(L.OOB)}, s21')
            for k in range(8):
                a(f'buffer_load_dwordx4 {vr(OF,4)}, {l16}, {WS}, s21 offen\ns_add_u32 s21, s21, {32768 if k % 4 < 3 else 13 * 32768}')
        a.wait(vm=0)
        skip = a.newlabel('fw')
        dp = o.get('dpoll', 1)
        if dp:
            a(f"""
            s_cmp_ge_u32 {S_FS}, 62
            s_cselect_b32 s22, {hex((L.KVL - L.KVM - 62 * 131072) & 0xFFFFFFFF)}, 0
            s_add_u32 s84, s84, s22
            s_max_u32 s22, {S_FS}, 61
            s_sub_u32 s22, s22, 61
            s_lshl_b32 s22, s22, 11
            """)
        else: a('s_mov_b32 s22, 0')
        a(f's_cmp_lg_u32 {S_W}, 0\ns_cbranch_scc1 {skip}\ns_add_u32 s21, {S_FB}, {hex(L.F_M)}\ns_sub_u32 s21, s21, s22')
        self.spin4(f'v{V_Z}', 's21', KM)
        self.tstamp(4, 252)
        a(f'{skip}:\ns_barrier')
        fm = (lambda i: a.raw(f'    s_memtime s[{88+2*i}:{89+2*i}]')) if o.get('fmark') else (lambda i: None)
        fm(1)
        a.forget()
        a(f's_lshl_b32 s21, s83, 11\ns_add_u32 s21, s21, s84\ns_mov_b32 s23, 0x8000\nL_F_km:')
        for sl in range(4):
            a(f'buffer_load_dwordx4 {vr(KM+4*sl,4)}, {l16}, {WS}, s84 offen offset:{1024*sl} sc1')
        for sl in range(2):
            a(f'buffer_load_dwordx2 {vr(VM+2*sl,2)}, v{tv("vml")}, {WS}, s21 offen offset:{1024*sl} sc1')
        if dp:
            a(f's_cmp_lt_u32 {S_FS}, 62\ns_cbranch_scc1 L_F_kmok')
            vq = list(a.vq)
            a(f'v_max3_u32 v118, v{KM}, v{KM+1}, v{KM+2}')
            for r in range(KM + 3, KM + 19, 2): a(f'v_max3_u32 v118, v118, v{r}, v{r+1}')
            a(f'v_max_u32 v118, v118, v{VM+3}\nv_cmp_eq_u32 vcc, -1, v118\ns_cbranch_vccz L_F_kmok')
            if o.get('dsl', 0): a(f's_sleep {o.get("dsl")}')
            a(f's_sub_u32 s23, s23, 1\ns_cbranch_scc0 L_F_km\nL_F_kmok:')
            a.vq = vq
        for sl in range(4):
            a(f'{mf32} {vr(SM,4)}, {vr(KM+4*sl,4)}, {vr(Q+4*sl,4)}, {vr(SM,4) if sl else 0}')
        fm(2)
        a(f'v_max3_f32 v{MX}, v{MX}, v{SM}, v{SM+1}')
        self.xlane('v_max_f32', MX, 118)
        a(f'v_mul_f32 v{MX}, s80, v{MX}')
        E = [S0 + i for i in range(4)] + [S1 + i for i in range(4)] + [SM, SM + 1]
        for e in E: a(f'v_fma_f32 v{e}, v{e}, s80, -v{MX}')
        for e in E: a(f'v_exp_f32 v{e}, v{e}')
        a(f'{cvt} v{PX}, v{S0}, v{S0+1}\n{cvt} v{PX+1}, v{S0+2}, v{S0+3}\n{cvt} v{PX+2}, v{S1}, v{S1+1}\n{cvt} v{PX+3}, v{S1+2}, v{S1+3}')
        a(f'{cvt} v{PM}, v{SM}, v{SM+1}\nv_mov_b32 v{PM+1}, 0\nv_mov_b32 v{PM+2}, 0\n{cvt} v{PM+3}, v{SM}, v{SM+1}')
        for sl in range(2):
            f1, f2 = V + 8 * sl, V + 8 * sl + 4
            for p in range(2):
                d = vr(D + 8 * sl + 4 * p, 4)
                X = f1 if p == 0 else f2; Y = f2 + 2 if p == 0 else f1 + 2
                a(f'{mf16} {d}, {vr(X,2)}, {vr(PX,2)}, 0')
                a(f'{mf16} {d}, {vr(Y,2)}, {vr(PX+2,2)}, {d}')
                a(f'{mf16} {d}, {vr(VM+2*sl,2)}, {vr(PM+2*p,2)}, {d}')
        LS = 119
        a(f'v_add_f32 v{LS}, v{E[0]}, v{E[1]}')
        for e in E[2:]: a(f'v_add_f32 v{LS}, v{LS}, v{e}')
        self.xlane('v_add_f32', LS, 118)
        a(f'v_rcp_f32 v{LS}, v{LS}\nv_mul_f32 v{LS}, v{LS}, v{G}')
        for i in range(16): a(f'v_mul_f32 v{D+i}, v{D+i}, v{LS}')
        for i in range(8): a(f'{cvt} v{D+i}, v{D+2*i}, v{D+2*i+1}')
        fm(3)
        for sl in range(2): a(f'ds_write_b128 v{tv("oxw")}, {vr(D+4*sl,4)} offset:{1024*sl}')
        a.wait(lgkm=0)
        a('s_barrier')
        for qt in range(2):
            for sl in range(4):
                a(f'ds_read_b128 {vr(OF+16*qt+4*sl,4)}, v{tv("oxr")} offset:{4096*qt+1024*sl}')
        a(f's_xor_b32 s86, s86, {1<<20}\ns_lshl_b32 s21, {S_RANK}, 10\ns_add_u32 s21, s21, s86\ns_lshl_b32 s22, {S_W}, 17\ns_add_u32 s21, s21, s22')
        a(f's_cmp_eq_u32 {S_TFAST}, 0\ns_cbranch_scc1 L_F_slowst')
        lq0 = list(a.lq)
        for cf in ('', 'sc1'):
            if cf: a('L_F_slowst:'); a.lq = list(lq0)
            df = cf or ('nt' if o.get('fpnt') else '')
            def fin(k):
                qt, T = divmod(k, 4)
                r = AC + 32 * qt + 8 * T
                for i in range(4): a(f'{cvt} v{r+i}, v{r+2*i}, v{r+2*i+1}')
                a(f'buffer_store_dwordx4 {vr(r,4)}, {l16}, {WS}, s21 offen {df}')
                a(f's_add_u32 s21, s21, {32768 if T < 3 else 13 * 32768}')
            for k in range(8):
                qt, T = divmod(k, 4)
                for ks in range(4):
                    for p in range(2):
                        d = vr(AC + 32 * qt + 8 * T + 4 * p, 4)
                        a(f'{mf32} {d}, {ar(wof(T,p,ks),4)}, {vr(OF+16*qt+4*ks,4)}, {d}')
                if k: fin(k - 1)
            fin(7)
            fm(4)
            a.wait(vm=0)
            fm(5)
            a(f'buffer_store_dword v{tv("oxr")}, v{tv("one")}, {WS}, s87 offen {cf}')
            if not cf: a('s_branch L_F_stdone')
        a('L_F_stdone:')
        self.tstamp(5, 252)
        a(f's_lshl_b32 s21, {S_FS}, 9\ns_and_b32 s22, {S_RANK}, 12\ns_lshl_b32 s22, s22, 5\ns_add_u32 s21, s21, s22\ns_add_u32 s21, s21, {hex(L.F_P)}')
        self.spin4(f'v{tv("pfl")}', 's21', Q, n=1, sleep=0)
        fm(6)
        if o.get('fmark'):
            a(f's_lshl_b32 s21, {S_TEAM}, 5\ns_add_u32 s21, s21, {S_RANK}\ns_lshl_b32 s21, s21, 7\ns_add_u32 s21, s21, {hex(L.DBG + 65536)}\ns_waitcnt lgkmcnt(0)')
            for i in range(1, 7): a(f'v_mov_b32 v252, s{88+2*i}\nbuffer_store_dword v252, v{V_Z}, {WS}, s21 offen offset:{4*(15+i)}')
        a.forget()
        a(f's_lshl_b32 s21, {S_RANK}, 15\ns_add_u32 s21, s21, s86')
        for l in range(8):
            a(f'buffer_load_dwordx4 {vr(Q+4*l,4)}, v{tv("fpld")}, {WS}, s21 offen sc1')
            if l < 7: a('s_add_u32 s21, s21, 4096')
        for l in range(8):
            a(f'{mf32} {vr(S0,4)}, {vr(tv("self0"),4)}, {vr(Q+4*l,4)}, {vr(S0,4) if l else 0}')
        a(f's_lshl_b32 s21, {S_FS}, 5\ns_and_b32 s22, {S_RANK}, 16\ns_add_u32 s21, s21, s22\ns_lshl_b32 s21, s21, 10\ns_and_b32 s22, {S_RANK}, 15\ns_lshl_b32 s22, s22, 6\ns_add_u32 s21, s21, s22')
        a(f'{cvt} v{S0}, v{S0}, v{S0+1}\n{cvt} v{S0+1}, v{S0+2}, v{S0+3}')
        a(f'buffer_store_dwordx2 {vr(S0,2)}, v{tv("outst")}, {ST}, s21 offen')
        if o.get('wb'):
            lab = a.newlabel('wb')
            a(f's_cmp_lt_u32 {S_FS}, 52\ns_cbranch_scc1 {lab}\ns_cmp_ge_u32 {S_FS}, {o.get("wbmax", 62)}\ns_cbranch_scc1 {lab}')
            a(f's_or_b32 s21, {S_RANK}, {S_W}\ns_cmp_lg_u32 s21, 0\ns_cbranch_scc1 {lab}\ns_sleep 32\nbuffer_wbl2 sc1\ns_waitcnt vmcnt(0)\n{lab}:')
        a(f's_add_u32 {S_FS}, {S_FS}, {6 if o.get("nb", 1) else 7}\ns_cmp_lt_u32 {S_FS}, 64\ns_cbranch_scc1 L_F_loop')
        a.wait(vm=0)
        self.tstamp(6, 40)
        self.span(40)
        self.note(9, 40)
        a('s_endpgm')
```

```python
import layout as L
from gen_common import *

V_L16, V_IST, V_PUB, V_X0, V_F, V_SMW, V_OW, V_WV = 1, 2, 3, 4, 8, 9, 10, 11
KMH, VMH = 12, 16
V_IDX, V_WV2 = 18, 19
SELR, SELV, V_ONE, V_OR, SELQ, SELK = 20, 24, 26, 27, 28, 128
V_Z = 29
VXC, VXN, KX = 32, 40, 48
WVB = 56
AQ, AK, AV = 72, 80, 88
M = 96
T = 132
WO0 = 144
V_FLAG = 0
SC = 128 ** -0.5 * 1.4426950408889634
import struct
def f2u(x): return struct.unpack('<I', struct.pack('<f', x))[0]

WO_SPILL = [(0, 0), (1, 0)]
def wo_frag(t, kb):
    order = [(t_, k_) for t_ in range(4) for k_ in range(4) if (t_, k_) not in WO_SPILL]
    return WO0 + 8 * order.index((t, kb))

LDSF = [('q', 0, 0), ('q', 0, 1), ('q', 1, 0), ('q', 1, 1), ('k', 0, 0)] + [('k', k, 1) for k in range(2, 8)] + [('k', 7, 0)] + [('v', k, p) for k in (6, 7) for p in range(2)]
AGF = [(m, k, p) for m in 'qkv' for k in range(8) for p in range(2) if (m, k, p) not in LDSF]
assert len(LDSF) == 16 and len(AGF) == 32
S_S = 's61'
S_MEMP = 's62'
S_PUBB = 's63'
S_IN0, S_IN1 = 's64', 's65'
S_INP = 's66'
S_REC = 's67'
S_FKV = 's68'
S_KVM, S_FM = 's69', 's70'
S_RST = 's71'
S_LO = 's[72:73]'
S_SC = 's74'
S_T0, S_T1 = 's75', 's76'
S_FAST = 's77'
S_TAG, S_NTAG = 's78', 's79'
S_OTAG, S_NOTAG = 's24', 's25'
S_HST, S_HLD, S_S1 = 's10', 's11', 's19'

class RRole:
    def smf(self, acc, A, B):
        self.a(f'v_smfmac_f32_16x16x64_bf16 {vr(acc,4)}, {vr(A,4)}, {B}, v{V_IDX}')

    def r_role(self):
        a = self.a; o = self.o
        a('L_R:')
        a.vq = list(self.vq_role)
        self.mark(0)
        self.note(2, 40)
        VD8, VD1, VTQ, VTO, VTA = 28, 29, 30, 31, 7
        a(f"""
        v_and_b32 v1, 63, v0
        v_lshrrev_b32 v2, 4, v1
        v_and_b32 v3, 15, v1
        v_lshlrev_b32 v4, 4, v3
        v_lshl_add_u32 v{VD8}, v2, 17, v4
        v_and_b32 v4, 0x70, v4
        v_lshrrev_b32 v3, 3, v3
        v_lshl_add_u32 v4, v3, 9, v4
        v_lshl_add_u32 v{VD1}, v2, 14, v4
        s_lshl_b32 s21, {S_W}, 7
        v_add_u32 v{VD1}, s21, v{VD1}
        s_mul_i32 s78, {S_W}, {L.BLK}
        """)
        groups = [(m, b) for m in 'oqkv' for b in range(2)]
        def issue(gi):
            mat, b = groups[gi]
            if b == 0: set_srd(a, 8, {'q': P_WQ, 'k': P_WK, 'v': P_WV, 'o': P_WO}[mat], 4 << 20)
            a(f's_add_u32 m0, s78, {(gi % 2) * L.GRP}')
            if mat != 'o':
                a(f's_add_u32 s21, {S_W}, {4 * b}\ns_lshl_b32 s21, s21, 19\ns_lshl_b32 s22, {S_RANK}, 8\ns_add_u32 s21, s21, s22')
                self.dma_block(f'v{VD8}', 's21', 8192)
            else:
                a(f's_lshl_b32 s21, {S_RANK}, 17\ns_add_u32 s21, s21, {b * 65536}')
                self.dma_block(f'v{VD1}', 's21', 1024)
        issue(0)
        self.load_table('T_R', 96, 28, 7)
        self.confirm_role()
        issue(1)
        self.mark(1)
        self.gate_and_store()
        names = list(L.r_table().keys())
        def tv(n): return 96 + names.index(n)
        a(f'v_mov_b32 v{VTQ}, v{tv("trq")}\nv_mov_b32 v{VTO}, v{tv("tro")}\nv_add_u32 v6, 65536, v{tv("wv")}')
        if o.get('code'):
            pc = a.newlabel('pc')
            a(f's_getpc_b64 s[12:13]\n{pc}:\ns_add_u32 s12, s12, L_R_ready-{pc}\ns_addc_u32 s13, s13, 0\ns_mov_b32 s14, L_R_slow-L_R_ready\ns_mov_b32 s15, 0x20000')
            a(f'v_lshlrev_b32 v1, 7, v0\nbuffer_load_dword v27, v1, {ST}, 0 offen')
        else:
            a(f'buffer_load_dword v27, v{tv("one")}, {WS}, 0 offen')
        a(f'buffer_load_dword v26, v{tv("mm")}, {WS}, 0 offen')
        a.auto_vm = False
        TMP = 56
        park = {}
        parkregs = [32, 64, 72, 80, 88, 124, 132, 8]
        for f in LDSF:
            if f[0] == 'k': park[f] = parkregs.pop(0)
            if f[0] == 'q': park[f] = -8 * AGF.index(('v', 3 + 2 * f[1], f[2])) - 1
        S_RDY = 's76'
        def scalars():
            if o.get('pa2', 0):
                dec = f's_lshr_b32 s84, {S_RANK}, 3\ns_lshl_b32 s84, s84, 1\ns_lshr_b32 s21, {S_W}, 1\ns_add_u32 s84, s84, s21\n' \
                      f's_lshr_b32 s85, {S_RANK}, 1\ns_and_b32 s85, s85, 3\n' \
                      f's_and_b32 s86, {S_RANK}, 1\ns_lshl_b32 s86, s86, 1\ns_and_b32 s21, {S_W}, 1\ns_add_u32 s86, s86, s21'
            else:
                dec = f's_lshr_b32 s84, {S_RANK}, 2\ns_and_b32 s85, {S_RANK}, 3\ns_mov_b32 s86, {S_W}'
            a(f'''
            {dec}
            s_lshl_b32 {S_INP}, s84, 2
            s_add_u32 {S_INP}, {S_INP}, s85
            s_lshl_b32 {S_INP}, {S_INP}, 2
            s_add_u32 {S_INP}, {S_INP}, s86
            s_lshl_b32 {S_INP}, {S_INP}, 11
            s_add_u32 {S_INP}, {S_INP}, {hex(L.RIN)}
            s_lshl_b32 {S_PUBB}, s84, 10
            s_and_b32 s22, s85, 2
            s_lshl_b32 s22, s22, 7
            s_add_u32 {S_PUBB}, {S_PUBB}, s22
            s_and_b32 s22, s85, 1
            s_lshl_b32 s22, s22, 5
            s_add_u32 {S_PUBB}, {S_PUBB}, s22
            s_lshl_b32 s22, s86, 6
            s_add_u32 {S_PUBB}, {S_PUBB}, s22
            s_add_u32 {S_PUBB}, {S_PUBB}, {hex(L.RMEM)}
            s_and_b32 s22, s84, 1
            s_lshl_b32 s22, s22, 9
            s_lshr_b32 s21, s84, 1
            s_lshl_b32 s21, s21, 7
            s_add_u32 s21, s21, s22
            s_lshl_b32 s22, s85, 3
            s_add_u32 s21, s21, s22
            s_lshl_b32 s22, s86, 11
            s_add_u32 s75, s21, s22
            s_mul_i32 {S_REC}, {S_RANK}, 24576
            s_mul_i32 s21, {S_W}, 6144
            s_add_u32 {S_REC}, {S_REC}, s21
            s_lshl_b32 {S_FKV}, {S_RANK}, 6
            s_lshl_b32 s21, {S_W}, 2
            s_add_u32 {S_FKV}, {S_FKV}, s21
            s_add_u32 {S_FM}, {S_FKV}, {hex(L.F_M - 4096)}
            s_add_u32 {S_FKV}, {S_FKV}, {hex(L.F_KV)}
            s_lshl_b32 {S_KVM}, {S_RANK}, 12
            s_lshl_b32 s21, {S_W}, 10
            s_add_u32 {S_KVM}, {S_KVM}, s21
            s_add_u32 {S_KVM}, {S_KVM}, {hex(L.KVM - 131072)}
            s_lshl_b32 s21, {S_W}, 11
            s_add_u32 {S_MEMP}, s21, {hex(L.RMEM)}
            s_lshl_b32 {S_IN0}, {S_RANK}, 6
            s_add_u32 {S_IN0}, {S_IN0}, {hex(L.RIN)}
            s_mov_b32 s72, 0x33333333
            s_mov_b32 s73, 0x33333333
            s_mov_b32 {S_SC}, {hex(f2u(SC))}
            s_mov_b32 {S_S}, 0
            ''')
        def first_records(l16):
            for i in range(2):
                a(f'buffer_load_dwordx4 {vr(KX+4*i,4)}, v{l16}, {WS}, {S_REC} offen offset:{1024*i} sc1')
                a(f'buffer_load_dwordx4 {vr(VXN+4*i,4)}, v{l16}, {WS}, {S_REC} offen offset:{2048+1024*i} sc1')
        nw = 4 if o.get('warm', 0) else 2
        def stage_w():
            set_srd(a, 12, P_DBG, 256)
            a(f"""
            v_and_b32 v2, 1, v0
            v_lshlrev_b32 v5, 3, v2
            v_and_b32 v2, {nw - 1}, v0
            v_lshlrev_b32 v2, 11, v2
            buffer_load_dword v3, v5, {ST}, 0 offen sc1
            """)
        def stage_t():
            assert o.get('xearly', 1)
            a(f"""
            v_mov_b64 v[24:25], -1
            v_mov_b64 v[26:27], -1
            s_cmp_eq_u32 {S_RDY}, 1
            s_cselect_b32 s21, {S_INP}, {hex(L.OOB)}
            s_cselect_b32 s22, {S_PUBB}, {hex(L.OOB)}
            """)
            if o.get('touchx', 2) >= 2:
                a(f's_add_u32 s23, s21, 0x40000\ns_lshl_b32 s84, {S_RANK}, 10\ns_add_u32 s84, s84, {hex(L.RMEM)}\ns_cmp_ge_u32 s21, {hex(L.OOB)}\ns_cselect_b32 s84, s21, s84')
                for so in ('s21', 's23'):
                    for i in range(2): a(f'buffer_load_dwordx4 v[24:27], v{tv("l16")}, {WS}, {so} offen offset:{1024*i}')
                a(f'buffer_load_dwordx4 v[24:27], v{tv("l16")}, {WS}, s84 offen')
                if o.get('touchx', 2) == 2: return
                a('s_waitcnt vmcnt(0)\nv_mov_b64 v[24:25], -1\nv_mov_b64 v[26:27], -1')
            for sl in range(2):
                for i in range(2): a(f'buffer_store_dwordx4 v[24:27], v{tv("l16")}, {WS}, s21 offen offset:{1024*i}')
                a('s_add_u32 s21, s21, 0x40000')
            for sl in range(4):
                a(f'buffer_store_dword v24, v{tv("pub")}, {WS}, s22 offen\ns_add_u32 s22, s22, 0x2000')
            a(f'v_mov_b32 v25, 0\ns_lshl_b32 s22, {S_W}, 5\ns_add_u32 s22, s22, {S_RANK}\ns_lshl_b32 s22, s22, 2\ns_add_u32 s22, s22, {hex(L.R_HINT)}')
            a(f's_cmp_ge_u32 s21, {hex(L.OOB)}\ns_cselect_b32 s22, s21, s22\nbuffer_store_dword v25, v{tv("one")}, {WS}, s22 offen')
        def stage_x():
            a(f'buffer_load_dword v4, v2, {WS}, {S_FKV} offen sc1')
        def stage_y():
            a(f"""
            v_lshl_or_b32 v140, v141, 16, v140
            v_readlane_b32 s21, v3, 0
            v_readlane_b32 s22, v3, 1
            v_cmp_eq_u32 vcc, 0, v4
            s_mov_b32 {S_RDY}, 0
            s_bcnt1_i32_b32 s21, s21
            s_add_u32 s21, s21, s22
            s_mov_b32 {S_FAST}, 1
            s_cbranch_vccnz L_R_notyet
            s_cmp_lt_u32 s21, 32
            s_cbranch_scc1 L_R_notyet
            s_mov_b32 {S_RDY}, 1
            """)
            if not o.get('touchx', 2): a(f'buffer_store_dword v140, v{tv("pub")}, {WS}, {S_PUBB} offen sc1')
            first_records(tv('l16'))
            for k in range(o.get('warm', 0)):
                a(f's_add_u32 s21, {S_REC}, {(k + 1) * 32 * 24576}')
                for i in range(4): a(f'buffer_load_dwordx4 v[24:27], v{tv("l16")}, {WS}, s21 offen offset:{1024*i}')
            a('L_R_notyet:')
        scalars()
        set_srd(a, 24, P_MEM0, 8192)
        a(f'buffer_load_ushort v140, v{tv("m0a")}, s[24:27], s75 offen\nbuffer_load_ushort v141, v{tv("m0a")}, s[24:27], s75 offen offset:32')
        todo = []
        self.ldsf_off = {}
        def flush(n):
            for _ in range(n):
                f, r = todo.pop(0); off = 8192 * len(self.ldsf_off)
                self.ldsf_off[f] = off
                for hh in range(2):
                    src = vr(r + 4 * hh, 4) if r >= 0 else ar(-r - 1 + 4 * hh, 4)
                    a(f'ds_write_b128 v{tv("wv") if off < 65536 else 6}, {src} offset:{off % 65536 + 1024 * hh}')
                if r >= 0: parkregs.append(r)
        for gi in range(8):
            mat, b = groups[gi]
            if gi == 0: self.mark(2)
            a.wait(vm=[16 + 5, 5 + 16, 16, 16, 16, 16, 16, 0][gi] if o.get('xearly', 1) else [16 + 5, 5 + 16, 16, 16, 16, 16, 16 + 1, 1][gi])
            if gi == 6 and o.get('xearly', 1): stage_y()
            if gi == 7 and o.get('touchx', 2): stage_t()
            if gi == 6 and o.get('code2', 1):
                pc = a.newlabel('pc')
                a(f's_getpc_b64 s[12:13]\n{pc}:\ns_add_u32 s12, s12, L_R_ready-{pc}\ns_addc_u32 s13, s13, 0\ns_mov_b32 s14, L_R_slow-L_R_ready\ns_mov_b32 s15, 0x20000')
                a(f'v_lshlrev_b32 v1, 4, v0')
                for k in range(5): a(f'buffer_load_dwordx4 v[24:27], v1, {ST}, 0 offen\nv_add_u32 v1, 4096, v1')
            if gi == 7 and o.get('touchp', 0): a(f'buffer_load_dword v5, v{tv("mm")}, {WS}, 0 offen sc1')
            if gi in (0, 2, 4, 7): self.mark(3 + [0, 2, 4, 7].index(gi))
            a('s_barrier')
            hb = (gi % 2) * L.GRP
            for x in range(4):
                dsts = []
                if mat == 'o':
                    for p in range(2):
                        f = (x, 2 * b + p)
                        dsts.append((vr, (TMP if x == 0 else 40) if f in WO_SPILL else wo_frag(*f)))
                    offs = [0, 2112, 8448, 10560]; xo = 64 * x
                    if x == 0: a(f'v_add_u32 v{VTA}, {hb}, v{VTO}')
                else:
                    offs = [0, 1056, 512, 1568]; xo = 0
                    a(f's_xor_b32 s21, {S_W}, {x}\ns_mul_i32 s21, s21, {L.BLK}\ns_add_u32 s21, s21, {hb}\nv_add_u32 v{VTA}, s21, v{VTQ}')
                    for p in range(2):
                        f = (mat, 2 * x + b, p)
                        if f in AGF: dsts.append((ar, 8 * AGF.index(f)))
                        else:
                            if f not in park: park[f] = TMP if (f[1], f[2]) == (6, 0) else (16 if (f[1], f[2]) == (6, 1) else parkregs.pop(0))
                            if park[f] < 0: dsts.append((ar, -park[f] - 1)); todo.insert(0, (f, park[f]))
                            else: dsts.append((vr, park[f])); todo.append((f, park[f]))
                for p in range(2):
                    rf, d = dsts[p]
                    for r in range(4):
                        a(f'ds_read_b64_tr_b16 {rf(d + 2 * r, 2)}, v{VTA} offset:{xo + offs[r] + (512 if mat == "o" else 32) * p}')
            if gi == 7 and not o.get('xearly', 1):
                a.wait(vm=0); stage_y()
            a.wait(lgkm=0)
            if gi == 0:
                for i in range(2):
                    for hh in range(2):
                        a(f'ds_write_b128 v{tv("x0")}, {vr((TMP if i == 0 else 40) + 4 * hh, 4)} offset:{16384 + 8192 * i + 1024 * hh}')
            a('s_barrier')
            if gi == 1: stage_w()

            if gi == 5 and o.get('xearly', 1): stage_x()
            if gi + 2 < 8: issue(gi + 2)
            if gi == 5 and not o.get('xearly', 1): stage_x()
            if gi == 2: self.signal_init(barrier=False)
            if gi == 6: flush(8)
            if gi == 7: flush(8)
        assert not todo and len(self.ldsf_off) == 16
        a.wait(lgkm=0, vm=0 if (o.get('touchx', 2) == 2 and 7 == 7) else None)
        a.auto_vm = True; a.forget()
        a(f'v_mov_b32 v{V_WV2}, v6')
        for n, d in [('l16', V_L16), ('ist', V_IST), ('pub', V_PUB), ('x0', V_X0), ('x1', V_X0 + 1), ('x2', V_X0 + 2), ('x3', V_X0 + 3),
                     ('f', V_F), ('smw', V_SMW), ('ow', V_OW), ('wv', V_WV), ('idx', V_IDX), ('one', V_ONE), ('or', V_OR)] + \
                    [(f'selr{i}', SELR + i) for i in range(4)] + [(f'selv{i}', SELV + i) for i in range(2)] + \
                    [('selq', SELQ), ('selq', SELQ + 3), ('selk', SELK), ('selk', SELK + 3)]:
            a(f'v_mov_b32 v{d}, v{tv(n)}')
        for d in (SELQ + 1, SELQ + 2, SELK + 1, SELK + 2): a(f'v_mov_b32 v{d}, 0')
        self.dump_marks(T + 4)
        self.tstamp(1, T + 4)
        self.note(3, T + 4)
        a(f's_cmp_eq_u32 {S_RDY}, 1\ns_cbranch_scc1 L_R_ready')
        self.wait_init(t0=T + 4)
        a(f's_cmp_ge_u32 s21, 32\ns_cselect_b32 {S_FAST}, 1, 0')
        if not o.get('touchx', 2): a(f'buffer_store_dword v140, v{V_PUB}, {WS}, {S_PUBB} offen sc1')
        self.spin_flag(V_FLAG, f'v{V_Z}', S_FKV)
        first_records(V_L16)
        a(f's_add_u32 s21, {S_FKV}, 2048')
        self.spin_flag(V_FLAG, f'v{V_Z}', 's21')
        a('L_R_ready:')
        a.wait(vm=0)
        a.forget()
        if o.get('force_slow'): a(f's_mov_b32 {S_FAST}, 0')
        if o.get('touchx', 2):
            a(f's_cmp_eq_u32 {S_FAST}, 0\ns_cselect_b32 s21, {hex(L.OOB)}, {S_PUBB}\ns_cselect_b32 s22, {S_PUBB}, {hex(L.OOB)}')
            a(f'buffer_store_dword v140, v{V_PUB}, {WS}, s21 offen\nbuffer_store_dword v140, v{V_PUB}, {WS}, s22 offen sc1')
        a(f's_add_u32 {S_FKV}, {S_FKV}, 2048\nv_mov_b32 v{V_FLAG}, 1')
        for r in range(M, M + 8, 2): a(f'v_mov_b64 {vr(r,2)}, -1')
        if o.get('hold'):
            a(f's_lshl_b32 s21, {S_RANK}, 6\ns_add_u32 s21, s21, {hex(L.F_RS)}\ns_cmp_eq_u32 {S_W}, 0\ns_cselect_b32 s21, s21, {hex(L.OOB)}')
            a(f'buffer_store_dword v{V_F}, v{V_ONE}, {WS}, s21 offen sc1')
        self.tstamp(2, T + 4)
        self.tstamp(3, T + 4)
        self.note(4, T + 4)
        if o.get('stamp'):
            a('s_memtime s[80:81]\ns_memrealtime s[28:29]'); a.wait(lgkm=0)
        a(f's_lshl_b32 {S_HST}, {S_W}, 5\ns_add_u32 {S_HST}, {S_HST}, {S_RANK}\ns_lshl_b32 {S_HST}, {S_HST}, 2\ns_add_u32 {S_HST}, {S_HST}, {hex(L.R_HINT)}')
        a(f's_lshr_b32 {S_HLD}, {S_RANK}, 3\ns_lshl_b32 {S_HLD}, {S_HLD}, 7\ns_add_u32 {S_HLD}, {S_HLD}, {hex(L.R_HINT)}')
        a('s_mov_b32 s26, 0x3f803f80\ns_mov_b32 s27, 0x3f803f80\ns_mov_b32 s8, 0x3f003f00\ns_mov_b32 s9, 0x3f003f00')
        a(f'ds_write_b64 v{V_OW}, {vr(M,2)}')
        a.wait(lgkm=0)
        a(f's_cmp_eq_u32 {S_FAST}, 0\ns_cbranch_scc1 L_R_slow')
        if o.get('nostag'):
            self.r_loop('f', '')
        else:
            for w in range(1, 4): a(f's_cmp_eq_u32 {S_W}, {w}\ns_cbranch_scc1 L_R_w{w}')
            for w in range(4):
                if w: a(f'L_R_w{w}:')
                self.r_loop('f' + (str(w) if w else ''), '', wv=w)
        a('L_R_slow:')
        self.r_loop('s', 'sc1')

    def spin_flag(self, dst, voff, soff):
        a = self.a
        lab = a.newlabel('sf'); ok = a.newlabel('sfok')
        sv = a.auto_vm; a.auto_vm = False
        a(f'''
        s_mov_b32 s23, {SPIN}
        {lab}:
        buffer_load_dword v{dst}, {voff}, {WS}, {soff} offen sc1
        s_waitcnt vmcnt(0)
        v_cmp_ne_u32 vcc, 0, v{dst}
        s_cbranch_vccnz {ok}
        s_sleep 2
        s_sub_u32 s23, s23, 1
        s_cbranch_scc0 {lab}
        s_mov_b32 {SPIN}, 0x400
        {ok}:
        ''')
        a.auto_vm = sv; a.vq = []

    def poll(self, tag, dst, voff, soff, pre, check, shadow, nchk, mid=None, nmid=0, blk=None):
        a = self.a
        lab = f'L_poll_{tag}'; ok = f'L_pok_{tag}'
        def issue():
            a(f'buffer_load_dwordx4 {vr(dst,4)}, v{voff}, {WS}, {soff} offen {self.pf}')
            a(f'buffer_load_dwordx4 {vr(dst+4,4)}, v{voff}, {WS}, {soff} offen offset:1024 {self.pf}')
        pre()
        if blk:
            gap, cover, fill = blk
            issue()
            if mid: mid()
            for i in range(gap): fill()
            a(f's_mov_b32 s23, {SPIN}')
            issue()
            for i in range(cover): fill()
            a(f's_branch L_pw_{tag}\n{lab}:')
            a(f's_sub_u32 s23, s23, 1\ns_cbranch_scc1 L_pto_{tag}')
            issue()
            a(f'L_pw_{tag}:\ns_waitcnt vmcnt(2)')
            check(); shadow()
            a(f's_cbranch_vccnz {lab}\n{ok}:')
            self.late.append(f'L_pto_{tag}:\ns_mov_b32 {SPIN}, 0x400\ns_waitcnt vmcnt(0)\n@SH@s_branch {ok}')
            self.late_sh.append(shadow)
            return
        if mid:
            issue(); mid()
            for r in range(nmid):
                check(); shadow()
                a(f's_cbranch_vccz {ok}')
        a(f's_mov_b32 s23, {SPIN}')
        a(f'{lab}:')
        issue()
        for r in range(nchk - 1):
            check(); shadow()
            a(f's_cbranch_vccz {ok}')
        a(f's_sub_u32 s23, s23, 1\ns_cbranch_scc1 L_pto_{tag}')
        check(); shadow()
        a(f's_cbranch_vccnz {lab}\n{ok}:')
        self.late.append(f'L_pto_{tag}:\ns_mov_b32 {SPIN}, 0x400\ns_waitcnt vmcnt(0)\n@SH@s_branch {ok}')
        self.late_sh.append(shadow)

    def poll2(self, tag, dst, soff, chores, t0, t1, t2, fill, check, shadow, retry=None):
        a = self.a
        lab = f'L_poll_{tag}'; ok = f'L_pok_{tag}'
        def issue():
            a(f'buffer_load_dwordx4 {vr(dst,4)}, v{V_L16}, {WS}, {soff} offen {self.pf}')
            a(f'buffer_load_dwordx4 {vr(dst+4,4)}, v{V_L16}, {WS}, {soff} offen offset:1024 {self.pf}')
        def spend(t, flush=False):
            while chores and (flush or chores[0][0] <= t + 4):
                c, f = chores.pop(0); f(); t -= c
            while t >= 12: fill(); t -= 16
        spend(t0); issue()
        spend(t1 - 40); issue()
        spend(t2 - 40, flush=True)
        a(f's_mov_b32 s23, {SPIN}\ns_branch L_pw_{tag}\n{lab}:')
        a(f's_sub_u32 s23, s23, 1\ns_cbranch_scc1 L_pto_{tag}')
        issue()
        if retry: retry()
        a(f'L_pw_{tag}:\ns_waitcnt vmcnt(2)')
        check(); shadow()
        a(f's_cbranch_vccnz {lab}\n{ok}:')
        self.late.append(f'L_pto_{tag}:\ns_mov_b32 {SPIN}, 0x400\ns_waitcnt vmcnt(0)\n@SH@s_branch {ok}')
        self.late_sh.append((lambda: (retry(), shadow())) if retry else shadow)

    def stamp(self, i):
        if self.o.get('stamp') and (self.o.get('smask', 0x3ff) >> i) & 1: self.a.raw(f'    {"s_memrealtime" if self.o.get("rt") else "s_memtime"} s[{82+2*i}:{83+2*i}]')

    def dump_stamps(self, tg):
        a = self.a
        if not self.o.get('stamp'): return
        lab = f'L_nodump_{tg}'
        a(f's_cmp_lg_u32 {S_S}, {self.o.get("dstep", 41)}\ns_cbranch_scc1 {lab}\ns_waitcnt lgkmcnt(0)')
        a(f's_lshl_b32 s21, {S_RANK}, 8\ns_lshl_b32 s22, {S_W}, 6\ns_add_u32 s21, s21, s22\ns_add_u32 s21, s21, {hex(L.DBG)}')
        a(f'v_mov_b32 v{T+10}, 0')
        for i in range(10):
            a(f'v_mov_b32 v{T+11}, s{82+2*i}\nbuffer_store_dword v{T+11}, v{T+10}, {WS}, s21 offen offset:{4*i}')
        a(f's_waitcnt vmcnt(0)\n{lab}:')

    def r_loop(self, tg, cf, wv=0):
        a = self.a; o = self.o
        mf16 = 'v_mfma_f32_16x16x16_bf16'; mf32 = 'v_mfma_f32_16x16x32_bf16'
        cvt = 'v_cvt_pk_bf16_f32'
        QP = 'quad_perm:[2,3,0,1] row_mask:0xf bank_mask:0xf'
        dum = lambda n=1: [a(a.dummy) for _ in range(n)]
        self.late = []; self.late_sh = []; self.fixups = []
        self.pf = 'nt' if (not cf and o.get('pollnt')) else 'sc1'
        a.auto_vm = False
        B0, B1, B2 = WVB, WVB + 8, M
        ACC = {'q': AQ, 'k': AK, 'v': AV}
        def S(m, k, p, buf=None):
            f = (m, k, p)
            self.smf(ACC[m] + 4 * p, M + 4 * k, ar(8 * AGF.index(f), 8) if buf is None else vr(buf, 8))
        def V(k, p, buf=None): S('v', k, p, buf)
        def RD(buf, m, k, p, hh):
            off = self.ldsf_off[(m, k, p)]
            a(f'ds_read_b128 {vr(buf + 4*hh, 4)}, v{V_WV if off < 65536 else V_WV2} offset:{off % 65536 + hh*1024}')
        def RD2(buf, m, k, p): RD(buf, m, k, p, 0); RD(buf, m, k, p, 1)
        def pkadd(d, x, y): a(f'v_add_f32 v{d}, v{x}, v{y}\nv_add_f32 v{d+1}, v{x+1}, v{y+1}')
        def PK(d, x, y): a(f'v_pk_add_f32 {vr(d,2)}, {vr(x,2)}, {vr(y,2)}')
        def add(d, x, y): a(f'v_add_f32 v{d}, v{x}, v{y}')
        def dmf(r):
            m = o.get('fillm', 2)
            if m == 1 or (m == 2 and r == M + 8): a('s_nop 3')
            elif m == 3: a(f's_nop 2\n{a.dummy}')
            elif m == 4: a(f'{mf16} {vr(r,4)}, s[26:27], s[26:27], 0' if False else f'{mf16} {vr(r,4)}, {vr(SELQ+2,2)}, {vr(SELQ,2)}, 0')
            else: a(f'{mf16} {vr(r,4)}, {vr(SELQ,2)}, {vr(SELQ,2)}, {vr(r,4)}')
        def filt(line):
            st = 'buffer_store' in line and ('s75' in line or 's76' in line) and 'sc1' in line
            ld = 'buffer_load' in line and ('s67' in line or 's68' in line)
            if o.get('nost') and st: return None
            if o.get('nofst') and st and 's76' in line: return None
            if o.get('nold') and ld: return None
            if o.get('nofld') and ld and 's68' in line: return None
            if o.get('ldplain') and ld and 's67' in line: return line.replace(' sc1', '')
            if o.get('ldnt') and ld and 's67' in line: return line.replace(' sc1', ' nt')
            if o.get('stplain') and st: return line.replace(' sc1', '')
            if o.get('novm') and 'vmcnt' in line: return None
            if o.get('nowarm') and 'buffer_load_dword v27' in line: return 's_nop 0'
            if o.get('novmh') and 'buffer_store_dwordx2' in line: return None
            return line
        PA = M + 8; R = T + 8
        spin = f'L_kvspin_{tg}'; back = f'L_kvback_{tg}'
        def preload():
            RD2(M + 24, 'q', 0, 0); RD2(M + 16, 'q', 0, 1); RD2(B0, 'q', 1, 0); RD2(B1, 'q', 1, 1); RD2(T, 'k', 0, 0)
        def slackB():
            a(f'v_cmp_eq_u32 vcc, 0, v{V_FLAG}')
            for r in range(0, 8, 2): a(f'v_mov_b64 {vr(VXC+r,2)}, {vr(VXN+r,2)}')
            a(f's_xor_b32 {S_INP}, {S_INP}, 0x40000')
            a(f's_cbranch_vccnz {spin}\n{back}:')
            a(f"""
            s_cmp_lt_u32 {S_S}, 63
            s_cselect_b32 {S_T0}, {0 if o.get("nopf") else 32*24576}, 0
            s_add_u32 {S_REC}, {S_REC}, {S_T0}
            s_cmp_lt_u32 {S_S}, 62
            s_cselect_b32 {S_T0}, 2048, 0
            s_add_u32 {S_FKV}, {S_FKV}, {S_T0}
            s_cmp_ge_u32 {S_S}, 2
            s_cselect_b32 {S_T1}, {S_FM}, {hex(L.OOB)}
            s_cmp_ge_u32 {S_S}, 1
            s_cselect_b32 {S_T0}, {S_KVM}, {hex(L.OOB)}
            s_add_u32 {S_FM}, {S_FM}, 2048
            s_cmp_eq_u32 {S_S}, 62
            s_cselect_b32 {S_TAG}, {hex((L.KVL - L.KVM - 62 * 131072) & 0xFFFFFFFF) if o.get('dpoll', 1) else 0}, 0
            s_add_u32 {S_KVM}, {S_KVM}, {S_TAG}
            s_add_u32 {S_KVM}, {S_KVM}, 131072
            s_lshr_b32 {S_TAG}, {S_S}, 1
            s_and_b32 {S_TAG}, {S_TAG}, 1
            s_sub_u32 {S_NTAG}, {S_TAG}, 1
            s_add_u32 {S_IN1}, {S_IN0}, 32768
            s_and_b32 {S_OTAG}, {S_S}, 1
            s_sub_u32 {S_NOTAG}, {S_OTAG}, 1
            """)
            if o.get('steplog') and wv == 0 and tg != 's':
                a(f's_memrealtime s[82:83]\ns_lshl_b32 s84, {S_S}, 2\ns_lshl_b32 s85, {S_RANK}, 8\ns_add_u32 s84, s84, s85\ns_add_u32 s84, s84, {hex(L.DBG + 131072)}')
                a(f's_waitcnt lgkmcnt(0)\nv_mov_b32 v{T+10}, s82\nbuffer_store_dword v{T+10}, v{V_ONE}, {WS}, s84 offen')
            if o.get('zB'):
                for r in range(AQ, AQ + 24, 2): a(f'v_mov_b64 {vr(r,2)}, 0')
            if o.get('barB'): dmf(PA); a('s_barrier')
            for i in range(o.get('dB', 8) if wv >= 2 else o.get('dB0', o.get('dB', 8))): dmf(PA + 4 * (i % 2))
        def checkB():
            if not o.get('shortchk'):
                a(f"""
                v_max3_u32 v{R}, v{M}, v{M+1}, v{M+2}
                v_max3_u32 v{R+1}, v{M+3}, v{M+4}, v{M+5}
                v_max3_u32 v{R}, v{R}, v{M+6}, v{M+7}
                v_max_u32 v{R}, v{R}, v{R+1}
                """)
            else:
                a(f'v_max_u32 v{R}, v{M}, v{M+7}')
            a(f'v_cmp_eq_u32 vcc, -1, v{R}')
        def shadowB():
            if o.get('specw', 1): a(f'ds_write_b128 v{V_X0}, {vr(M,4)}')
            else: dmf(PA); a('s_nop 2')
        preload()
        for r in range(AQ, AQ + 24, 2): a(f'v_mov_b64 {vr(r,2)}, 0')
        a(f's_xor_b32 {S_INP}, {S_INP}, 0x40000')
        a.wait(lgkm=0)
        a(f'L_Rloop_{tg}:')
        a.forget()
        a.hot = True
        a.filt = filt
        sa = lambda txt: [(4, lambda l=l: a(l)) for l in txt.strip().split('\n')]
        va = lambda lines: [(8, lambda l=l: a(l)) for l in lines]
        if True:
            chB = [(44, lambda: a(f'v_cmp_eq_u32 vcc, 0, v{V_FLAG}\ns_cbranch_vccnz {spin}\n{back}:'))]
            chB += va([f'v_mov_b64 {vr(VXC+r,2)}, {vr(VXN+r,2)}' for r in range(0, 8, 2)])
            chB += sa(f"""
            s_xor_b32 {S_INP}, {S_INP}, 0x40000
            s_cmp_lt_u32 {S_S}, 63
            s_cselect_b32 {S_T0}, {0 if o.get("nopf") else 32*24576}, 0
            s_add_u32 {S_REC}, {S_REC}, {S_T0}
            s_cmp_lt_u32 {S_S}, 62
            s_cselect_b32 {S_T0}, 2048, 0
            s_add_u32 {S_FKV}, {S_FKV}, {S_T0}
            s_cmp_ge_u32 {S_S}, 2
            s_cselect_b32 {S_T1}, {S_FM}, {hex(L.OOB)}
            s_cmp_ge_u32 {S_S}, 1
            s_cselect_b32 {S_T0}, {S_KVM}, {hex(L.OOB)}
            s_add_u32 {S_FM}, {S_FM}, 2048
            s_cmp_eq_u32 {S_S}, 62
            s_cselect_b32 {S_TAG}, {hex((L.KVL - L.KVM - 62 * 131072) & 0xFFFFFFFF) if o.get('dpoll', 1) else 0}, 0
            s_add_u32 {S_KVM}, {S_KVM}, {S_TAG}
            s_add_u32 {S_KVM}, {S_KVM}, 131072
            s_lshr_b32 {S_TAG}, {S_S}, 1
            s_and_b32 {S_TAG}, {S_TAG}, 1
            s_sub_u32 {S_NTAG}, {S_TAG}, 1
            s_add_u32 {S_IN1}, {S_IN0}, 32768
            s_and_b32 {S_OTAG}, {S_S}, 1
            s_sub_u32 {S_NOTAG}, {S_OTAG}, 1
            """)
            if o.get('steplog') and wv == 0 and tg != 's':
                chB.insert(0, (70, lambda: (a(f's_memrealtime s[82:83]\ns_lshl_b32 s84, {S_S}, 2\ns_lshl_b32 s85, {S_RANK}, 8\ns_add_u32 s84, s84, s85\ns_add_u32 s84, s84, {hex(L.DBG + 131072)}'),
                    a(f's_waitcnt lgkmcnt(0)\nv_mov_b32 v{R}, s82\nbuffer_store_dword v{R}, v{V_ONE}, {WS}, s84 offen'))))
            if not o.get('split', 1):
                self.poll2('B' + tg, M, S_MEMP, chB, o.get('tB0', 200), o.get('tB1', 180), o.get('tB2', 100), lambda: dmf(PA), checkB, shadowB)
            else:
                ld = lambda i: a(f'buffer_load_dwordx4 {vr(M+4*i,4)}, v{V_L16}, {WS}, {S_MEMP} offen offset:{1024*i} {self.pf}')
                def spend(t, flush=False):
                    while chB and (flush or chB[0][0] <= t + 4):
                        c, f = chB.pop(0); f(); t -= c
                    while t >= 12: dmf(PA); t -= 16
                def chk(i):
                    a(f'v_max3_u32 v{R}, v{M+4*i}, v{M+4*i+1}, v{M+4*i+2}\nv_max_u32 v{R}, v{R}, v{M+4*i+3}\nv_cmp_eq_u32 vcc, -1, v{R}')
                g = o.get('tBg', 32)
                spend(o.get('tB0', 170) if wv >= 2 else o.get('tB00', o.get('tB0', 170))); ld(0); spend(g); ld(1)
                spend(o.get('tB1', 180) - 40 - g); ld(0); spend(g); ld(1)
                spend(o.get('tB2', 100) - 40 - g, flush=True)
                a(f's_mov_b32 s23, {SPIN}\nL_pw_B{tg}:\ns_waitcnt vmcnt(3)')
                chk(0)
                a(f'ds_write_b128 v{V_X0}, {vr(M,4)}')
                S('q', 0, 0, M + 24)
                a(f's_cbranch_vccnz L_poll_B{tg}\nL_pok_B{tg}:')
                def fixB():
                    a(f'L_poll_B{tg}:\ns_sub_u32 s23, s23, 1\ns_cbranch_scc1 L_pto_B{tg}')
                    ld(0); ld(1)
                    a(f'v_mov_b64 {vr(AQ,2)}, 0\nv_mov_b64 {vr(AQ+2,2)}, 0\ns_branch L_pw_B{tg}')
                    a(f'L_pto_B{tg}:\ns_mov_b32 {SPIN}, 0x400\ns_branch L_pok_B{tg}')
                    a(f'L_pol1_B{tg}:\ns_waitcnt vmcnt(0)')
                    chk(1)
                    a(f's_cbranch_vccz L_pk1_B{tg}\ns_sub_u32 s23, s23, 1\ns_cbranch_scc1 L_pt1_B{tg}')
                    ld(1)
                    a(f's_branch L_pol1_B{tg}\nL_pt1_B{tg}:\ns_mov_b32 {SPIN}, 0x400\ns_branch L_pk1_B{tg}')
                self.fixups.append(fixB)
        if o.get('rt'): a('s_mov_b32 s84, s82')
        self.stamp(0)
        if o.get('rt'): self.dump_stamps(tg)
        wp = o.get('wpat', 5)
        ws = {0: (0, 1), 1: (1 + wv, 5 + wv), 2: (1 + 2 * (wv % 2), 2 + 2 * (wv % 2)), 3: (1 + wv % 2, 3 + wv % 2), 4: (1 + wv // 2, 3 + wv // 2),
              5: (1, 2), 6: (wv, 4 + wv), 7: (wv % 2, 2 + wv % 2), 8: (wv // 2, 2 + wv // 2)}[wp]
        wslot = [0]
        def MW():
            for i in range(2):
                if ws[i] == wslot[0] and not (i == 0 and o.get('specw', 1)): a(f'ds_write_b128 v{V_X0}, {vr(M+4*i,4)} offset:{1024*i}')
            wslot[0] += 1
        if not o.get('split', 1):
            MW()
            S('q', 0, 0, M + 24); MW()
            S('q', 0, 1, M + 16); MW()
            S('q', 1, 0, B0); MW()
            S('q', 1, 1, B1); MW()
            S('k', 0, 0, T); MW()
            S('k', 0, 1); MW()
            S('k', 1, 0); MW()
            S('k', 1, 1); MW()
        else:
            S('q', 0, 1, M + 16)
            a('s_waitcnt vmcnt(2)')
            a(f'v_max3_u32 v{R}, v{M+4}, v{M+5}, v{M+6}')
            S('k', 0, 0, T); a(f'v_max_u32 v{R}, v{R}, v{M+7}')
            S('k', 0, 1); a(f'v_cmp_eq_u32 vcc, -1, v{R}')
            V(0, 0)
            a(f's_cbranch_vccnz L_pol1_B{tg}\nL_pk1_B{tg}:')
            a(f'ds_write_b128 v{V_X0}, {vr(M+4,4)} offset:1024')
            if o.get('lastx', 1): a(f's_cmp_eq_u32 {S_S}, 63')
            S('k', 1, 0)
            if o.get('lastx', 1): a(f's_cbranch_scc1 L_Rlast_{tg}')
            lq_last = list(a.lq)
            S('q', 1, 0, B0); S('q', 1, 1, B1); S('k', 1, 1)
        a.wait_lds_writes()
        a('s_barrier')
        def MR(k): a(f'ds_read_b128 {vr(M+4*k,4)}, v{V_X0 + k//2} offset:{1024*(k%2)}')
        MR(2); MR(3)
        if not o.get('split', 1): V(0, 0)
        MR(4)
        V(0, 1); MR(5)
        V(1, 0); MR(6)
        V(1, 1); MR(7)
        VXL = lambda i: a(f'buffer_load_dwordx4 {vr(VXN+4*i,4)}, v{V_L16}, {WS}, {S_REC} offen offset:{2048+1024*i} sc1')
        self.stamp(1)
        vm_ops = [
            lambda: a(f'buffer_store_dwordx4 {vr(KMH,4)}, v{V_L16}, {WS}, {S_T0} offen sc1'),
            lambda: VXL(0),
            lambda: VXL(1),
            lambda: (a(f'buffer_store_dword v{V_F}, v{V_ONE}, {WS}, {S_T1} offen sc1'),
                     a(f'buffer_load_dword v{V_FLAG}, v{V_Z}, {WS}, {S_FKV} offen sc1')),
        ]
        slot = [0]
        first = o.get('vm0', 5)
        def X():
            i = slot[0] - first - wv
            if i == 0: a('s_waitcnt vmcnt(0)')
            if i >= 0 and i % 4 == 0 and i // 4 < len(vm_ops): vm_ops[i // 4]()
            slot[0] += 1
        S('q', 2, 0); RD(B0, 'k', 2, 1, 0); X()
        S('q', 3, 0); RD(B0, 'k', 2, 1, 1); X()
        S('q', 4, 0); RD(B1, 'k', 3, 1, 0); X()
        S('q', 5, 0); RD(B1, 'k', 3, 1, 1); X()
        S('q', 6, 0); RD(T, 'k', 4, 1, 0); X()
        S('q', 7, 0); RD(T, 'k', 4, 1, 1); X()
        S('q', 2, 1); X()
        S('q', 3, 1); X()
        S('q', 4, 1); X()
        assert slot[0] > first + wv
        S('q', 5, 1); RD(B2, 'k', 5, 1, 0); X(); add(AQ, AQ, AQ + 2)
        S('q', 6, 1); RD(B2, 'k', 5, 1, 1); X(); add(AQ + 1, AQ + 1, AQ + 3)
        S('q', 7, 1); X(); a(f'{cvt} v{AQ+2}, v{AQ}, v{AQ+1}')
        S('k', 2, 0); X()
        S('k', 2, 1, B0); RD(B0, 'k', 6, 1, 0); X()
        S('k', 3, 0); RD(B0, 'k', 6, 1, 1); X()
        S('k', 3, 1, B1); RD(B1, 'k', 7, 0, 0); X(); add(AQ + 4, AQ + 4, AQ + 6)
        S('k', 4, 0); RD(B1, 'k', 7, 0, 1); X(); add(AQ + 5, AQ + 5, AQ + 7)
        S('k', 4, 1, T); RD(T, 'k', 7, 1, 0); X(); a(f'{cvt} v{AQ+3}, v{AQ+4}, v{AQ+5}')
        S('k', 5, 0); RD(T, 'k', 7, 1, 1); X()
        a(f'{mf16} {vr(AQ+4,4)}, {vr(AQ+2,2)}, {vr(SELQ,2)}, 0'); X()
        a(f'{mf16} {vr(T+8,4)}, {vr(AQ+2,2)}, {vr(SELQ+2,2)}, 0'); X()
        S('k', 5, 1, B2); RD(B2, 'v', 6, 0, 0); X()
        S('k', 6, 0); RD(B2, 'v', 6, 0, 1)
        S('k', 7, 0, B1); RD(B1, 'v', 7, 0, 0); a(f'{cvt} v{AQ}, v{AQ+4}, v{AQ+5}')
        S('k', 6, 1, B0); RD(B1, 'v', 7, 0, 1); a(f'{cvt} v{AQ+1}, v{AQ+6}, v{AQ+7}\n{cvt} v{AQ+2}, v{T+8}, v{T+9}')
        S('k', 7, 1, T); RD(B0, 'v', 6, 1, 0); a(f'{cvt} v{AQ+3}, v{T+10}, v{T+11}')
        assert slot[0] > first + wv + 4 * (len(vm_ops) - 1)
        self.stamp(2)
        RD(B0, 'v', 6, 1, 1)
        add(AK, AK, AK + 2)
        a(f'{mf32} {vr(AQ+4,4)}, {vr(KX,4)}, {vr(AQ,4)}, 0')
        add(AK + 1, AK + 1, AK + 3)
        a(f'{cvt} v{AK+2}, v{AK}, v{AK+1}')
        a(f'{mf32} {vr(T+8,4)}, {vr(KX+4,4)}, {vr(AQ,4)}, 0')
        pkadd(AK + 4, AK + 4, AK + 6)
        a(f'{cvt} v{AK+3}, v{AK+4}, v{AK+5}')
        a(f'{mf16} {vr(AK+4,4)}, {vr(AK+2,2)}, {vr(SELK,2)}, 0')
        a(f'{mf16} {vr(T,4)}, {vr(AK+2,2)}, {vr(SELK+2,2)}, 0')
        kslot = [0]
        def KL():
            i = kslot[0] - wv
            if i in (0, 4): a(f'buffer_load_dwordx4 {vr(KX+i,4)}, v{V_L16}, {WS}, {S_REC} offen offset:{256*i} sc1')
            kslot[0] += 1
        for i in range(4): a(f'v_cndmask_b32 v{AK+i}, v{T+8+i}, v{AQ+4+i}, {S_LO}')
        a(f'{cvt} v{KMH}, v{AK+4}, v{AK+5}\n{cvt} v{KMH+1}, v{AK+6}, v{AK+7}')
        a(f'{cvt} v{KMH+2}, v{T}, v{T+1}\n{cvt} v{KMH+3}, v{T+2}, v{T+3}')
        a(f'{mf32} {vr(T+4,4)}, {vr(KMH,4)}, {vr(AQ,4)}, 0')
        V(2, 0)
        a(f'ds_write_b128 v{V_X0}, {vr(AK,4)} offset:8192')
        a(f'v_cndmask_b32 v{T+4}, v{T+5}, v{T+4}, {S_LO}')
        V(2, 1)
        a(f'ds_write_b32 v{V_SMW}, v{T+4}')
        self.stamp(3)
        B3 = M + 8
        ONES, HALF = B2, B2 + 4
        V(3, 0); KL()
        V(3, 1); RD(B3, 'v', 7, 1, 0); KL()
        V(6, 0, B2); RD(B3, 'v', 7, 1, 1); KL()
        V(6, 1, B0); KL()
        if o.get('vb', 4) > 4: V(7, 0, B1)
        a.wait_lds_writes()
        a('s_barrier')
        SX = [T + 4, T + 8, AQ + 4]
        SR = lambda x: a(f'ds_read_b128 {vr(SX[x-1],4)}, v{V_X0+x} offset:8192')
        SR(1)
        if o.get('vb', 4) <= 4: V(7, 0, B1)
        SR(2); SR(3)
        V(4, 0); a(f'ds_read_b128 {vr(T,4)}, v{V_F} offset:1024'); a(f'v_mov_b64 {vr(ONES,2)}, s[26:27]')
        V(4, 1); KL(); a(f'v_mov_b64 {vr(ONES+2,2)}, s[26:27]')
        V(5, 0); KL(); a(f'v_mov_b64 {vr(HALF,2)}, s[8:9]')
        V(7, 1, B3); KL()
        V(5, 1); KL()
        WOS = lambda i, hh: a(f'ds_read_b128 {vr(WVB+8*i+4*hh,4)}, v{V_X0} offset:{16384+8192*i+1024*hh}')
        zs = list(range(M + 16, M + 32, 2))
        def Z(n):
            for _ in range(n): a(f'v_mov_b64 {vr(zs.pop(0),2)}, 0')
        self.stamp(4)
        pkadd(AK, AK, SX[0]); pkadd(AK + 2, AK + 2, SX[0] + 2)
        PK(SX[1], SX[1], SX[2]); PK(SX[1] + 2, SX[1] + 2, SX[2] + 2)
        PK(T, T, T + 2)
        PK(AK, AK, SX[1]); PK(AK + 2, AK + 2, SX[1] + 2)
        add(T, T, T + 1)
        mx, t2 = T + 2, T + 3
        a(f'v_max3_f32 v{mx}, v{AK}, v{AK+1}, v{AK+2}\nv_max3_f32 v{mx}, v{mx}, v{AK+3}, v{T}')
        PK(AV, AV, AV + 2); PK(AV + 4, AV + 4, AV + 6)
        a(f'v_max_f32_dpp v{t2}, v{mx}, v{mx} {QP}\nv_max_f32_dpp v{mx}, v{mx}, v{mx} {QP}')
        a(f'{cvt} v{AV+2}, v{AV}, v{AV+1}\n{cvt} v{AV+3}, v{AV+4}, v{AV+5}')
        a(f'v_permlane16_swap_b32 v{mx}, v{t2}\nv_max_f32 v{T+1}, v{mx}, v{t2}\nv_max_f32 v{mx}, v{mx}, v{t2}')
        a(f'{mf16} {vr(AV+4,4)}, {vr(SELV,2)}, {vr(AV+2,2)}, 0')
        WOS(0, 0)
        a(f'v_permlane32_swap_b32 v{mx}, v{T+1}\nv_max_f32 v{mx}, v{mx}, v{T+1}\nv_mul_f32 v{mx}, {S_SC}, v{mx}')
        E = [AK, AK + 1, AK + 2, AK + 3, T]
        for e in E: a(f'v_fma_f32 v{e}, v{e}, {S_SC}, -v{mx}')
        for e in E: a(f'v_exp_f32 v{e}, v{e}')
        BX, PM = AQ, T + 6
        a(f'{cvt} v{T+8}, v{AK}, v{AK+1}\n{cvt} v{T+9}, v{AK+2}, v{AK+3}')
        a(f"""
        v_cndmask_b32 v{BX}, 0, v{T+8}, {S_LO}
        v_cndmask_b32 v{BX+1}, 0, v{T+9}, {S_LO}
        v_cndmask_b32 v{BX+2}, v{T+8}, 0, {S_LO}
        v_cndmask_b32 v{BX+3}, v{T+9}, 0, {S_LO}
        v_mov_b32_dpp v{T+1}, v{T} {QP}
        {cvt} v{VMH}, v{AV+4}, v{AV+5}
        """)
        D, D2, DL = AQ + 4, AK + 4, T + 8
        a(f'{mf32} {vr(DL,4)}, {vr(ONES,4)}, {vr(BX,4)}, 0')
        WOS(0, 1)
        a(f'{cvt} v{T+4}, v{T}, v{T+1}\n{cvt} v{T+5}, v{T+1}, v{T}')
        a(f'{mf32} {vr(D2,4)}, {vr(VXC+4,4)}, {vr(BX,4)}, 0')
        WOS(1, 0)
        a(f'v_cndmask_b32 v{PM}, 0, v{T+4}, {S_LO}\nv_cndmask_b32 v{PM+1}, v{T+5}, 0, {S_LO}')
        a(f'{mf32} {vr(D,4)}, {vr(VXC,4)}, {vr(BX,4)}, 0')
        WOS(1, 1)
        a(f'{cvt} v{VMH+1}, v{AV+6}, v{AV+7}')
        a(f'{mf16} {vr(DL,4)}, {vr(HALF,2)}, {vr(PM,2)}, {vr(DL,4)}')
        Z(1)
        a(f'{mf16} {vr(D,4)}, {vr(VMH,2)}, {vr(PM,2)}, {vr(D,4)}')
        Z(o.get('zpv', 5))
        l = DL + 1
        a(f'v_add_f32_dpp v{l}, v{DL}, v{DL} {QP}\nv_rcp_f32 v{l}, v{l}')
        for i in range(4): a(f'v_add_f32_dpp v{D+i}, v{D2+i}, v{D+i} {QP}')
        for i in (0, 2): a(f'v_pk_mul_f32 {vr(D+i,2)}, {vr(D+i,2)}, {vr(l-1,2)} op_sel:[0,1] op_sel_hi:[1,1]')
        a(f'{cvt} v{T}, v{D}, v{D+1}\n{cvt} v{T+1}, v{D+2}, v{D+3}')
        a(f'v_and_or_b32 v{T}, v{T}, -2, {S_OTAG}')
        self.stamp(5)
        a(f'ds_write_b64 v{V_OW}, {vr(T,2)}')
        if not (o.get('lastx', 1) and o.get('split', 1)): a(f's_cmp_eq_u32 {S_S}, 63\ns_cbranch_scc1 L_Rtail_{tg}')
        else: a('s_nop 2')
        OA = AK
        WA = M + 16
        def oread():
            for k in range(4): a(f'ds_read_b128 {vr(OA+4*k,4)}, v{V_OR} offset:{(k//2)*2048 + (k%2)*512}')
        oc = [f'v_bitop3_b32 v{T+2+k}, v{OA+4*k}, v{OA+4*k+2}, {S_NOTAG} bitop3:0x42' for k in range(4)] + \
             [f'v_bitop3_b32 v{T+2}, v{T+2}, v{T+3}, v{T+4} bitop3:0x80', f'v_bitop3_b32 v{T+2}, v{T+2}, v{T+5}, 1 bitop3:0x80', f'v_cmp_eq_u32 vcc, 0, v{T+2}']
        Z(len(zs))
        for _ in range(o.get('z3', 3)): a('s_nop 1')
        oread()
        for _ in range(o.get('z4', 2)): dmf(M)
        self.stamp(6)
        def wo(t, k):
            fr = WVB + 8 * WO_SPILL.index((t, k)) if (t, k) in WO_SPILL else wo_frag(t, k)
            self.smf(WA + 4 * t, OA + 4 * k, vr(fr, 8))
        def fc(t): a(f'{cvt} v{AQ+2*t}, v{WA+4*t}, v{WA+4*t+1}\n{cvt} v{AQ+2*t+1}, v{WA+4*t+2}, v{WA+4*t+3}')
        def tagit(r): a(f'v_and_or_b32 v{r}, v{r}, -2, {S_TAG}')
        hint = o.get('hint', 0) and not cf
        hp_ = o.get('hpos', 6)
        cnt = [0]
        def H():
            if hint and cnt[0] == hp_: a(f'buffer_store_dword v{T+6}, v{V_ONE}, {WS}, {S_HST} offen')
            cnt[0] += 1
        if hint: a(f's_add_u32 {S_S1}, {S_S}, 1\nv_mov_b32 v{T+6}, {S_S1}')
        a(f'L_wo_{tg}:')
        if not o.get('early0', 1):
            for k in range(4):
                wo(0, k); H(); a(oc[k]) if k < 3 else None
                wo(1, k); H()
                if k == 3: a(oc[3])
            wo(2, 0); H(); a(oc[4])
            wo(3, 0); H(); a(oc[5])
            wo(2, 1); H(); a(oc[6])
            wo(3, 1); H(); fc(0)
            wo(2, 2); H(); fc(1)
            a(f's_cbranch_vccnz L_ofix_{tg}')
            wo(3, 2); H(); tagit(AQ)
            wo(2, 3)
            a(f'buffer_store_dwordx4 {vr(AQ,4)}, v{V_IST}, {WS}, {S_IN0} offen {cf}')
            wo(3, 3)
        else:
            for k in range(4):
                wo(0, k); a(oc[2 * k])
                wo(1, k)
                if k < 3: a(oc[2 * k + 1])
            wo(2, 0)
            a(f's_cbranch_vccnz L_ofix_{tg}')
            wo(3, 0); fc(0)
            wo(2, 1); fc(1)
            wo(3, 1); tagit(AQ)
            a(f'buffer_store_dwordx4 {vr(AQ,4)}, v{V_IST}, {WS}, {S_IN0} offen {cf}')
            wo(2, 2); wo(3, 2); wo(2, 3); wo(3, 3)
        fc(2); tagit(AQ + 4); fc(3)
        a(f'buffer_store_dwordx4 {vr(AQ+4,4)}, v{V_IST}, {WS}, {S_IN1} offen {cf}')
        def fix():
            a(f'L_ofix_{tg}:\ns_mov_b32 s23, {SPIN}\nL_ofix2_{tg}:')
            a.forget(vm=False)
            oread(); a.wait(lgkm=0)
            for x in oc: a(x)
            a(f's_cbranch_vccz L_ofix3_{tg}\ns_sub_u32 s23, s23, 1\ns_cbranch_scc0 L_ofix2_{tg}\ns_endpgm\nL_ofix3_{tg}:')
            for r in range(WA, WA + 16, 2): a(f'v_mov_b64 {vr(r,2)}, 0')
            a(f's_branch L_wo_{tg}')
        self.fixups.append(fix)
        self.stamp(7)
        def pack_kvm():
            a(f's_mov_b64 vcc, {S_LO}')
            for i in range(4):
                qp = '[0,0,0,2]' if i < 2 else '[0,0,1,3]'
                a(f'v_cndmask_b32_dpp v{KMH+i}, v{VMH+i%2}, v{KMH+i}, vcc quad_perm:{qp} row_mask:0xf bank_mask:0xf')
        self.pack_kvm = pack_kvm
        def preA():
            a(f"""
            v_mov_b32 v{PA}, {S_NTAG}
            v_mov_b32 v{PA+4}, {S_NTAG}
            """)
            for i in range(o.get('dA', 4) if wv >= 2 else o.get('dA0', o.get('dA', 4))): dmf(R)
        def slackA():
            preload()
            pack_kvm()
            a(f"""
            s_add_u32 {S_S}, {S_S}, 1
            s_xor_b32 {S_IN0}, {S_IN0}, 0x40000
            s_and_b32 {S_T0}, {S_S}, 3
            s_lshl_b32 {S_T0}, {S_T0}, 13
            v_mov_b64 {vr(M,2)}, -1
            s_andn2_b32 {S_PUBB}, {S_PUBB}, 0x6000
            s_andn2_b32 {S_MEMP}, {S_MEMP}, 0x6000
            v_mov_b64 {vr(M+2,2)}, -1
            s_or_b32 {S_MEMP}, {S_MEMP}, {S_T0}
            s_xor_b32 {S_RST}, {S_T0}, 0x4000
            v_mov_b64 {vr(M+4,2)}, -1
            s_or_b32 {S_RST}, {S_RST}, {S_PUBB}
            s_or_b32 {S_PUBB}, {S_PUBB}, {S_T0}
            v_mov_b64 {vr(M+6,2)}, -1
            """)
            if not o.get('zB'):
                for r in range(AQ, AQ + 24, 2): a(f'v_mov_b64 {vr(r,2)}, 0')
            a.wait(lgkm=0)
        def checkA():
            a(f"""
            v_bitop3_b32 v{VXC}, v{PA}, v{PA+4}, {S_NTAG} bitop3:0x42
            v_and_b32 v{VXC}, 1, v{VXC}
            v_cmp_eq_u32 vcc, 0, v{VXC}
            """)
        def shadowA():
            a(f'v_smfmac_f32_16x16x64_bf16 {vr(R,4)}, {vr(SELR,4)}, {vr(PA,8)}, v{V_IDX} abid:1')
        if True:
            pl = [(M + 24, 'q', 0, 0), (M + 16, 'q', 0, 1), (B0, 'q', 1, 0), (B1, 'q', 1, 1), (T, 'k', 0, 0)]
            chA = [(40, pack_kvm)]
            chA += sa(f"""
            s_add_u32 {S_S}, {S_S}, 1
            s_xor_b32 {S_IN0}, {S_IN0}, 0x40000
            s_and_b32 {S_T0}, {S_S}, 3
            s_lshl_b32 {S_T0}, {S_T0}, 13
            s_andn2_b32 {S_PUBB}, {S_PUBB}, 0x6000
            s_andn2_b32 {S_MEMP}, {S_MEMP}, 0x6000
            s_or_b32 {S_MEMP}, {S_MEMP}, {S_T0}
            s_xor_b32 {S_RST}, {S_T0}, 0x4000
            s_or_b32 {S_RST}, {S_RST}, {S_PUBB}
            s_or_b32 {S_PUBB}, {S_PUBB}, {S_T0}
            """)
            zz = [f'v_mov_b64 {vr(r,2)}, 0' for r in range(AQ, AQ + 24, 2)] + [f'v_mov_b32 v{M}, -1']
            for k in range(10):
                chA.append((16, lambda k=k: (RD(*pl[k // 2], k % 2), a(zz[k]))))
            chA += va(zz[10:])
            chA.append((4, lambda: a.wait(lgkm=0)))
            zr = lambda: a(f'v_mov_b64 {vr(R,2)}, 0\nv_mov_b64 {vr(R+2,2)}, 0')
            chA.append((16, zr))
            if hint:
                HV, HD = VXC + 1, VXC + 2
                a(f'v_lshrrev_b32 v{HV}, 2, v{V_L16}\nv_and_b32 v{HV}, 0x7f, v{HV}\nv_mov_b32 v{HD}, 0')
                hl = lambda: a(f'buffer_load_dword v{HD}, v{HV}, {WS}, {S_HLD} offen sc1')
                def spendh(t):
                    while chA and chA[0][0] <= t + 4:
                        c, f = chA.pop(0); f(); t -= c
                    while t >= 12: dmf(VXC + 4); t -= 16
                nh = o.get('hdep', 4)
                for k in range(nh - 1): hl(); spendh(o.get('hq', 48) - 8)
                a(f's_mov_b32 s23, {SPIN}\nL_hp_{tg}:')
                hl()
                a(f'v_cmp_gt_u32 vcc, {S_S1}, v{HD}\ns_sub_u32 s23, s23, 1\ns_cbranch_scc1 L_hk_{tg}\ns_cbranch_vccnz L_hp_{tg}\nL_hk_{tg}:')
            self.poll2('A' + tg, PA, S_INP, chA, o.get('hdel', 0) if hint else (o.get('tA0', 230) if wv >= 2 else o.get('tA00', o.get('tA0', 230))), o.get('tA1', 180), o.get('tA2', 100), lambda: dmf(VXC + 4), checkA, shadowA, retry=zr)
        self.stamp(8)
        hp = ''
        a(f"""
        {'s_nop 1' + chr(10) + a.dummy + chr(10) + 's_nop 0' if hp else ''}
        v_add_f32_dpp v{R}, v{R}, v{R} row_ror:8 row_mask:0xf bank_mask:0x3 {hp}
        v_add_f32_dpp v{R+1}, v{R+1}, v{R+1} row_ror:8 row_mask:0xf bank_mask:0x3 {hp}
        v_add_f32_dpp v{R}, v{R+2}, v{R+2} row_ror:8 row_mask:0xf bank_mask:0xc {hp}
        v_add_f32_dpp v{R+1}, v{R+3}, v{R+3} row_ror:8 row_mask:0xf bank_mask:0xc {hp}
        v_add_f32_dpp v{R}, v{R}, v{R} row_ror:12 row_mask:0xf bank_mask:0xf
        v_add_f32_dpp v{R+1}, v{R+1}, v{R+1} row_ror:12 row_mask:0xf bank_mask:0xf
        {cvt} v{R+2}, v{R}, v{R+1}
        buffer_store_dword v{R+2}, v{V_PUB}, {WS}, {S_PUBB} offen {cf}
        """)
        self.stamp(9)
        a(f'buffer_store_dword v{M}, v{V_PUB}, {WS}, {S_RST} offen {cf}')
        if o.get('span2') and wv == 0:
            lab = a.newlabel('n8')
            a(f's_cmp_lg_u32 {S_S}, 8\ns_cbranch_scc1 {lab}')
            self.note(5, T + 10)
            a(f'{lab}:')
        if not o.get('rt'): self.dump_stamps(tg)
        a(f's_branch L_Rloop_{tg}')
        a.hot = False
        a(f'{spin}:')
        self.spin_flag(V_FLAG, f'v{V_Z}', S_FKV)
        a(f's_branch {back}')
        for txt, sh in zip(self.late, self.late_sh):
            pre, post = txt.split('@SH@')
            a(pre); a('s_nop 7'); sh(); a('s_nop 7'); a(post)
        for f in self.fixups: f()
        if o.get('lastx', 1) and o.get('split', 1):
            a(f'L_Rlast_{tg}:')
            a.lq = list(lq_last)
            RD2(B0, 'k', 2, 1); S('k', 1, 1); RD2(B1, 'k', 3, 1); V(0, 1); RD2(T, 'k', 4, 1); V(1, 0); V(1, 1)
            a.wait(lgkm=6)
            a('s_barrier')
            for k in range(2, 8): MR(k)
            a('s_waitcnt vmcnt(0)')
            a(f'buffer_store_dwordx4 {vr(KMH,4)}, v{V_L16}, {WS}, {S_T0} offen sc1')
            a(f'buffer_store_dword v{V_F}, v{V_ONE}, {WS}, {S_T1} offen sc1')
            RD2(B2, 'k', 5, 1)
            rest = [('k', 6, 1), ('k', 7, 0), ('k', 7, 1), ('v', 6, 0), ('v', 6, 1), ('v', 7, 0), ('v', 7, 1)]
            ring = [(B0, ('k', 2, 1)), (B1, ('k', 3, 1)), (T, ('k', 4, 1)), (B2, ('k', 5, 1))]
            regf = [('k', k, 0) for k in range(2, 7)] + [('v', k, p) for k in range(2, 6) for p in range(2)]
            while ring:
                if regf: S(*regf.pop(0))
                b, f = ring.pop(0)
                S(*f, b)
                if rest:
                    f = rest.pop(0); RD2(b, *f); ring.append((b, f))
                if f == ('v', 6, 1) and not rest[2:] and False: pass
            for f in regf: S(*f)
            for x, r in ((AK, SELK), (AV, None)):
                pkadd(x, x, x + 2); pkadd(x + 4, x + 4, x + 6)
                a(f'{cvt} v{x+2}, v{x}, v{x+1}\n{cvt} v{x+3}, v{x+4}, v{x+5}')
            a(f'{mf16} {vr(AK+4,4)}, {vr(AK+2,2)}, {vr(SELK,2)}, 0\n{mf16} {vr(T,4)}, {vr(AK+2,2)}, {vr(SELK+2,2)}, 0')
            a(f'{mf16} {vr(AV+4,4)}, {vr(SELV,2)}, {vr(AV+2,2)}, 0')
            a(f'{cvt} v{KMH}, v{AK+4}, v{AK+5}\n{cvt} v{KMH+1}, v{AK+6}, v{AK+7}\n{cvt} v{KMH+2}, v{T}, v{T+1}\n{cvt} v{KMH+3}, v{T+2}, v{T+3}')
            a(f'{cvt} v{VMH}, v{AV+4}, v{AV+5}\n{cvt} v{VMH+1}, v{AV+6}, v{AV+7}')
        a(f'L_Rtail_{tg}:')
        a.forget()
        self.pack_kvm()
        a(f'''
        buffer_store_dwordx4 {vr(KMH,4)}, v{V_L16}, {WS}, {S_KVM} offen sc1
        s_waitcnt vmcnt(0) lgkmcnt(0)
        buffer_store_dword v{V_F}, v{V_ONE}, {WS}, {S_FM} offen sc1
        buffer_store_dword v{V_F}, v{V_ONE}, {WS}, {S_FM} offen offset:2048 sc1
        ''')
        self.tstamp(6, T + 4)
        self.note(6, T + 4)
        if o.get('stamp'):
            set_srd(a, 12, P_DBG, 256)
            a(f'''
            s_memtime s[82:83]
            s_memrealtime s[84:85]
            s_waitcnt lgkmcnt(0)
            s_sub_u32 s82, s82, s80
            s_sub_u32 s84, s84, s30
            s_sub_u32 s28, s28, s30
            v_mov_b32 v{T}, s82
            v_mov_b32 v{T+1}, {S_FAST}
            v_mov_b32 v{T+2}, s28
            v_mov_b32 v{T+3}, s84
            v_mov_b32 v{T+4}, 16
            buffer_store_dwordx4 {vr(T,4)}, v{T+4}, {ST}, 0 offen
            ''')
        a('s_endpgm')
        a.auto_vm = True
```

```python
import layout as L
from gen_common import *
import struct
def f2u(x): return struct.unpack('<I', struct.pack('<f', x))[0]
mf16 = 'v_mfma_f32_16x16x16_bf16'; mf32 = 'v_mfma_f32_16x16x32_bf16'; cvt = 'v_cvt_pk_bf16_f32'

TB = 0
NAMES = list(L.w_table().keys())
def tv(n): return TB + NAMES.index(n)
V_TID = 24
XF = 48
ACC = 64
S_ISB, S_SEG, S_END, S_STEP, S_BASE, S_STR = 's61', 's62', 's63', 's64', 's65', 's66'
S_XB, S_PF, S_PF2, S_A, S_B, S_HEAD = 's67', 's68', 's69', 's70', 's71', 's72'
S_FIRST = 's73'
S_TFAST = 's89'
SX = 's[24:27]'

def wfrag(m, ks, p):
    c = 'qkv'.index(m) * 8 + ks // 2
    r = c * 16 + p * 8 + (ks % 2) * 4
    return ar(r, 4) if r < 256 else vr(128 + r - 256, 4)

class Workers:
    def tables(self):
        return L.table_text('T_R', L.r_table()) + L.table_text('T_W', L.w_table())

    def xlane(self, op, x, t):
        a = self.a
        a(f'v_mov_b32 v{t}, v{x}\nv_permlane16_swap_b32 v{x}, v{t}\n{op} v{x}, v{x}, v{t}')
        a(f'v_mov_b32 v{t}, v{x}\nv_permlane32_swap_b32 v{x}, v{t}\n{op} v{x}, v{x}, v{t}')

    def x_dma(self, piece=None):
        a = self.a
        if piece is not None and piece >= 0:
            a(f'buffer_load_dwordx4 v{tv("xg")}, {SX}, s21 offen lds')
            a('s_add_u32 m0, m0, 1024')
            a(f's_add_u32 s21, s21, {16384 if piece % 2 == 0 else hex((64 - 16384) & 0xFFFFFFFF)}')
            return
        a(f's_lshl_b32 s21, {S_A}, 15\ns_lshl_b32 s22, {S_W}, 8\ns_add_u32 s21, s21, s22')
        a(f's_lshl_b32 s22, {S_W}, 13\ns_add_u32 m0, s22, {S_XB}')
        if piece is not None: return
        for k in range(4):
            for tt in range(2):
                a(f'buffer_load_dwordx4 v{tv("xg")}, {SX}, s21 offen lds')
                a('s_add_u32 m0, m0, 1024')
                a(f's_add_u32 s21, s21, {16384 if tt == 0 else hex((64 - 16384) & 0xFFFFFFFF)}')

    def worker_role(self):
        a = self.a; o = self.o
        a('L_worker:')
        a.vq = list(self.vq_role)
        self.mark(0)
        if o.get('no_workers'):
            self.gate_and_store(); a.wait(vm=0); self.signal_init(); a('s_endpgm'); return
        nb = o.get('nb', 1)
        a(f'''
        s_sub_u32 s21, {S_TEAM}, 1
        {'s_add_u32 s22, s21, 6' + chr(10) + 's_sub_u32 s21, s21, 1' + chr(10) + 's_cselect_b32 s21, s22, s21' if nb else ''}
        s_lshl_b32 s21, s21, 5
        s_add_u32 s21, s21, {S_RANK}
        s_cmp_ge_u32 s21, 192
        s_cselect_b32 {S_ISB}, 1, 0
        s_cbranch_scc1 L_w_B
        s_mul_i32 {S_HEAD}, s21, 43691
        s_lshr_b32 {S_HEAD}, {S_HEAD}, 18
        s_mul_i32 s22, {S_HEAD}, 6
        s_sub_u32 {S_SEG}, s21, s22
        s_mov_b32 {S_END}, 64
        s_mov_b32 {S_STEP}, 6
        s_mov_b32 {S_FIRST}, 0
        s_movk_i32 {S_STR}, 8192
        s_mov_b32 s75, {4<<20}
        s_branch L_w_dec
        L_w_B:
        s_sub_u32 s21, s21, 192
        s_lshr_b32 {S_HEAD}, s21, 3
        s_and_b32 s21, s21, 7
        s_lshl_b32 {S_FIRST}, s21, 3
        s_add_u32 {S_END}, {S_FIRST}, 8
        s_max_u32 {S_SEG}, {S_FIRST}, 1
        s_sub_u32 {S_SEG}, {S_SEG}, 1
        s_mov_b32 {S_STEP}, 1
        s_movk_i32 {S_STR}, 3072
        s_mov_b32 s75, {512*3072}
        L_w_dec:
        v_and_b32 v1, 63, v0
        v_lshrrev_b32 v2, 4, v1
        v_and_b32 v3, 15, v1
        v_lshlrev_b32 v3, 4, v3
        s_lshl_b32 s79, {S_STR}, 4
        v_mul_lo_u32 v2, v2, s79
        v_add_u32 v28, v2, v3
        s_mul_i32 s78, {S_W}, {L.BLK}
        s_lshl_b32 s77, {S_HEAD}, 8
        s_lshl_b32 s79, {S_STR}, 6
        ''')
        nwarm = 0
        if o.get('mall'):
            a(f's_sub_u32 s21, {S_TEAM}, 1\ns_lshl_b32 s21, s21, 5\ns_add_u32 s21, s21, {S_RANK}\ns_lshl_b32 s21, s21, 2\ns_add_u32 s21, s21, {S_W}')
            a('v_lshlrev_b32 v29, 7, v1\ns_mov_b32 s10, 0x400000\ns_mov_b32 s11, 0x20000')
            for i in range(2):
                a(f'''
                s_add_u32 s22, s21, {896 * i}
                s_cmp_ge_u32 s22, 512
                s_cselect_b32 s8, s{P_WV}, s{P_WK}
                s_cselect_b32 s9, s{P_WV+1}, s{P_WK+1}
                s_and_b32 s23, s22, 511
                s_lshl_b32 s23, s23, 13
                s_cmp_ge_u32 s22, 1024
                s_cselect_b32 s23, {hex(L.OOB)}, s23
                buffer_load_dword v{30+i%2}, v29, {SA}, s23 offen
                ''')
        def mallq():
            a(f's_sub_u32 s21, {S_TEAM}, 1\ns_lshl_b32 s21, s21, 5\ns_add_u32 s21, s21, {S_RANK}\ns_lshl_b32 s21, s21, 2\ns_add_u32 s21, s21, {S_W}\ns_mul_i32 s21, s21, 5120')
            set_srd(a, 24, P_WQ, 4 << 20)
            a('v_lshlrev_b32 v29, 4, v1')
            for i in range(5): a(f'buffer_load_dwordx4 v[32:35], v29, s[24:27], s21 offen\ns_add_u32 s21, s21, 1024')
        groups = [(m, b) for m in 'kvq' for b in range(2)]
        def issue(gi):
            m, b = groups[gi]
            if b == 0:
                ptr = {'q': P_WQ, 'k': P_WK, 'v': P_WV}[m]
                a(f"""
                s_cmp_eq_u32 {S_ISB}, 1
                s_cselect_b32 s8, s{P_WQKV}, s{ptr}
                s_cselect_b32 s9, s{P_WQKV+1}, s{ptr+1}
                s_mov_b32 s10, s75
                s_mov_b32 s11, 0x20000
                s_cselect_b32 s76, {'qkv'.index(m) * 1024}, 0
                s_add_u32 s76, s76, s77
                """)
            a(f's_add_u32 m0, s78, {(gi % 2) * L.GRP}')
            a(f's_add_u32 s21, {S_W}, {4 * b}\ns_mul_i32 s21, s21, s79\ns_add_u32 s21, s21, s76')
            self.dma_block('v28', 's21', S_STR)
        issue(0)
        self.load_table('T_W', 96, 24, 7)
        self.confirm_role()
        if o.get('mallq', 1) == 1: mallq()
        issue(1)
        if o.get('mallq') == 2: mallq()
        self.mark(1)
        self.gate_and_store()
        a(f'v_mov_b32 v{V_TID}, v0')
        for i in range(24): a(f'v_mov_b32 v{TB+i}, v{96+i}')
        a(f'v_add_u32 v29, {L.GRP}, v{tv("trp")}')
        set_srd(a, 24, P_X, 2048 * 1024)
        a(f's_mov_b32 {S_XB}, 0\ns_mov_b32 {S_A}, {S_SEG}')
        a.auto_vm = False
        def consume(gi):
            m, b = groups[gi]
            a('s_barrier')
            for x in range(4):
                for p in range(2):
                    for h in range(2):
                        f = wfrag(m, 2 * (4 * b + x) + h, p)
                        kind, base = f[0], int(f[2:f.index(':')])
                        for r in range(2):
                            a(f'ds_read_b64_tr_b16 {kind}[{base+2*r}:{base+2*r+1}], v{tv("trp") if gi % 2 == 0 else 29} offset:{x * L.BLK + 512*h + 4224*r + 32*p}')
            a.wait(lgkm=0)
            a('s_barrier')
        VX = 25
        KP, VP = 112, 116
        acc = lambda m, p, tt: ACC + 16 * 'qkv'.index(m) + 8 * p + 4 * tt
        def xr(ks):
            for tt in range(2):
                a(f'ds_read_b128 {vr(XF + 8*(ks%2) + 4*tt, 4)}, v{VX} offset:{(ks*2+tt)*1024}')
        def loop_head(lab, mats, nst):
            a(f'{lab}:')
            pm = o.get('pmark') and lab == 'L_P_kv'
            if pm: a.raw('    s_memtime s[82:83]')
            a(f's_waitcnt vmcnt({nst + 1})')
            a('s_barrier')
            if pm: a.raw('    s_memtime s[84:85]')
            a(f's_add_u32 {S_A}, {S_SEG}, {S_STEP}\ns_min_u32 {S_A}, {S_A}, 63\ns_xor_b32 {S_XB}, {S_XB}, 32768')
            self.x_dma(-1)
            if pm: a.raw('    s_memtime s[86:87]')
            xr(0)
            for ks in range(16):
                if ks < 15: xr(ks + 1)
                if ks == 9:
                    if pm: a.raw('    s_memtime s[94:95]')
                    a('s_waitcnt vmcnt(8)')
                    if pm: a.raw('    s_memtime s[96:97]')
                    a(f'buffer_store_dword v{tv("oxr")}, v{tv("one")}, {WS}, {S_PF} offen sc1')
                for m in mats:
                    for p in range(2):
                        for tt in range(2):
                            d = vr(acc(m, p, tt), 4)
                            x = vr(XF + 8 * (ks % 2) + 4 * tt, 4); w = wfrag(m, ks, p)
                            A, B = (w, x) if m != 'v' else (x, w)
                            a(f'{mf32} {d}, {A}, {B}, {d if ks else 0}')
                            if ks < 8 and m == mats[0] and p == 0 and tt == 0: self.x_dma(ks)
            if pm: a.raw('    s_memtime s[98:99]')
            a(f'v_xor_b32 v{VX}, 32768, v{VX}')
        def loop_tail(lab):
            a(f's_add_u32 {S_SEG}, {S_SEG}, {S_STEP}\ns_cmp_lt_u32 {S_SEG}, {S_END}\ns_cbranch_scc1 {lab}')
            a('s_waitcnt vmcnt(0)')
            a(f'buffer_store_dword v{tv("oxr")}, v{tv("one")}, {WS}, {S_PF} offen sc1')
            a('s_barrier')
        def start_loop():
            a(f's_mov_b32 {S_PF}, {hex(L.OOB)}\nv_mov_b32 v{VX}, v{tv("l16")}')
        def init_sync(marks=True, t=40):
            a.forget()
            if marks:
                self.dump_marks(t)
                self.tstamp(1, t)
            lab = a.newlabel('wz')
            a(f'v_mov_b32 v{t+4}, {L.LDS_BYTES - 16}\ns_cmp_lg_u32 {S_W}, 0\ns_cbranch_scc1 {lab}')
            self.wait_init(t0=t, tid=V_TID)
            a(f'v_mov_b32 v{t+5}, s21\nds_write_b32 v{t+4}, v{t+5}')
            a.wait(lgkm=0)
            a(f'{lab}:\ns_waitcnt vmcnt(0)\ns_barrier\nds_read_b32 v{t+5}, v{t+4}')
            a(f'v_readfirstlane_b32 s21, v{t+5}')
            a(f's_cmp_ge_u32 s21, 32\ns_cselect_b32 {S_TFAST}, 1, 0')
            if o.get('force_slow'): a(f's_mov_b32 {S_TFAST}, 0')
            self.tstamp(2, t)
        def a_epilogue(frs, foff, flagoff):
            a(f"""
            s_lshl_b32 s21, {S_SEG}, 5
            s_add_u32 s21, s21, {S_HEAD}
            s_lshl_b32 {S_PF}, s21, 6
            s_mul_i32 s21, s21, 24576
            s_mul_i32 s22, {S_W}, 6144
            s_add_u32 s21, s21, s22
            s_add_u32 s21, s21, {foff}
            s_lshl_b32 s23, {S_W}, 2
            s_add_u32 {S_PF}, {S_PF}, s23
            s_add_u32 {S_PF}, {S_PF}, {hex(L.F_KV + flagoff)}
            """)
            for f, (t0, t1) in enumerate(frs):
                o4 = 32 + 4 * f
                for i, t in enumerate((t0, t1)):
                    r = acc(*t)
                    a(f'{cvt} v{o4+2*i}, v{r}, v{r+1}\n{cvt} v{o4+2*i+1}, v{r+2}, v{r+3}')
                a(f'buffer_store_dwordx4 {vr(o4,4)}, v{tv("l16")}, {WS}, s21 offen offset:{1024*f} sc1')
        self.mark(2)
        for gi in range(2):
            a.wait(vm=17)
            if gi == 0: self.mark(3)
            consume(gi); issue(gi + 2)
        a.wait(vm=16); self.mark(4)
        consume(2)
        a(f's_cmp_eq_u32 {S_ISB}, 1\ns_cbranch_scc1 L_w_Bload')
        self.x_dma()
        self.signal_init(tid=V_TID, t=40, barrier=False)
        a.wait(vm=8); self.mark(5); self.mark(6)
        consume(3)
        a.forget()
        if not o.get('pmark'): self.dump_marks(40)
        self.tstamp(1, 40); self.note(7, 40)
        a('s_waitcnt vmcnt(0)')
        a(f's_mov_b32 {S_FIRST}, {S_SEG}')
        start_loop()
        loop_head('L_P_kv', 'kv', 4)
        a_epilogue([[('k', 0, 0), ('k', 1, 0)], [('k', 0, 1), ('k', 1, 1)], [('v', 0, 0), ('v', 1, 1)], [('v', 1, 0), ('v', 0, 1)]], 0, 0)
        lab = a.newlabel('nf')
        a(f's_cmp_lg_u32 {S_SEG}, {S_FIRST}\ns_cbranch_scc1 {lab}')
        init_sync(marks=False, t=48)
        a(f'buffer_store_dword v{tv("oxr")}, v{tv("one")}, {WS}, {S_PF} offen sc1')
        if o.get('hold', 0):
            l2 = a.newlabel('hold')
            a(f's_cmp_lg_u32 {S_W}, 0\ns_cbranch_scc1 {l2}\ns_lshl_b32 s21, {S_HEAD}, 6\ns_add_u32 s21, s21, {hex(L.F_RS)}\nv_mov_b32 v48, 0')
            self.spin4('v48', 's21', 49, n=1, sleep=8)
            a(f'{l2}:')
        a(f'{lab}:')
        if o.get('pmark'):
            a.raw('    s_memtime s[100:101]')
            lab = a.newlabel('pm')
            a(f's_cmp_lt_u32 {S_SEG}, 30\ns_cbranch_scc1 {lab}\ns_cmp_ge_u32 {S_SEG}, 36\ns_cbranch_scc1 {lab}')
            self.dump_marks(48)
            a(f's_waitcnt vmcnt(0)\n{lab}:')
        if o.get('slowP'):
            for _ in range(4): a('s_sleep 127')
        loop_tail('L_P_kv')
        issue(4); issue(5)
        a('s_waitcnt vmcnt(16)'); consume(4)
        a(f's_mov_b32 {S_SEG}, {S_FIRST}\ns_mov_b32 {S_XB}, 0\ns_mov_b32 {S_A}, {S_SEG}')
        self.x_dma()
        a('s_waitcnt vmcnt(8)'); consume(5)
        a('s_waitcnt vmcnt(0)')
        start_loop()
        loop_head('L_P_q', 'q', 2)
        a_epilogue([[('q', 0, 0), ('q', 1, 0)], [('q', 0, 1), ('q', 1, 1)]], 4096, 16)
        loop_tail('L_P_q')
        a('s_branch L_P_done')
        a('L_w_Bload:')
        issue(4)
        self.signal_init(tid=V_TID, t=40, barrier=False)
        a('s_waitcnt vmcnt(16)'); consume(3); issue(5)
        a('s_waitcnt vmcnt(16)'); self.mark(5); consume(4)
        self.x_dma()
        a('s_waitcnt vmcnt(8)'); self.mark(6); consume(5)
        init_sync()
        for r in range(KP, KP + 8, 2): a(f'v_mov_b64 {vr(r,2)}, 0')
        start_loop()
        loop_head('L_P_B', 'qkv', 4)
        G1 = 26
        a(f's_lshl_b32 s21, {S_SEG}, 7\ns_add_u32 s21, s21, {hex(L.GATE)}')
        a(f'buffer_load_dword v{G1}, v{tv("c4")}, {WS}, s21 offen sc1\nbuffer_load_dword v{G1+1}, v{tv("c4")}, {WS}, s21 offen offset:64 sc1')
        for m in 'qkv':
            for p in range(2):
                for tt in range(2):
                    r = acc(m, p, tt)
                    a(f'{cvt} v{r}, v{r}, v{r+1}\n{cvt} v{r+1}, v{r+2}, v{r+3}')
        a(f'''
        s_mov_b32 s80, 0xaaaaaaaa
        s_mov_b32 s81, 0xaaaaaaaa
        v_cmp_ne_u32 s[82:83], 0, v{tv("mc0")}
        v_cmp_ne_u32 s[84:85], 0, v{tv("mc1")}
        s_mov_b32 s86, {hex(f2u(0.25 * 1.4426950408889634))}
        s_cmp_eq_u32 {S_SEG}, 0
        s_cselect_b32 s87, 0xf149f2ca, 0
        s_lshl_b32 s21, {S_SEG}, 5
        s_lshl_b32 s22, {S_HEAD}, 3
        s_add_u32 s21, s21, s22
        s_lshl_b32 s22, {S_W}, 1
        s_add_u32 s21, s21, s22
        s_lshl_b32 s21, s21, 10
        s_add_u32 s21, s21, {hex(L.OB)}
        s_cmp_lt_u32 {S_SEG}, {S_FIRST}
        s_cselect_b32 s21, {hex(L.OOB)}, s21
        s_lshl_b32 {S_PF}, {S_SEG}, 2
        s_add_u32 {S_PF}, {S_PF}, {S_HEAD}
        s_lshl_b32 {S_PF}, {S_PF}, 6
        s_lshl_b32 s22, {S_W}, 2
        s_add_u32 {S_PF}, {S_PF}, s22
        s_add_u32 {S_PF}, {S_PF}, {hex(L.F_OB)}
        s_cmp_lt_u32 {S_SEG}, {S_FIRST}
        s_cselect_b32 {S_PF}, {hex(L.OOB)}, {S_PF}
        s_waitcnt vmcnt(0)
        v_sub_f32 v{G1}, 1.0, v{G1}
        v_sub_f32 v{G1+1}, 1.0, v{G1+1}
        ''')
        for p in range(2):
            for tt in range(2):
                q = acc('q', p, tt); kc = acc('k', p, tt); vc = acc('v', p, tt)
                kp = KP + 2 * p if tt == 0 else acc('k', p, 0)
                vp = VP + 2 * p if tt == 0 else acc('v', p, 0)
                SC_, SP_, OD = 28, 32, 36
                a(f'{mf16} {vr(SC_,4)}, {vr(kc,2)}, {vr(q,2)}, 0\n{mf16} {vr(SP_,4)}, {vr(kp,2)}, {vr(q,2)}, 0')
                for j in range(2):
                    a(f'v_cndmask_b32 v{SC_+2*j}, v{SC_+2*j}, v{SC_+2*j+1}, s[80:81]')
                    a(f'v_cndmask_b32 v{SP_+2*j}, v{SP_+2*j}, v{SP_+2*j+1}, s[80:81]')
                    if tt == 0: a(f'v_add_f32 v{SP_+2*j}, s87, v{SP_+2*j}')
                    a(f'v_cndmask_b32 v{40+j}, v{SP_+2*j}, v{SC_+2*j}, s[{82+2*j}:{83+2*j}]')
                a(f'{cvt} v41, v40, v41\nv_lshlrev_b32 v40, 16, v41\nv_and_b32 v41, 0xffff0000, v41')
                a('v_max_f32 v42, v40, v41')
                self.xlane('v_max_f32', 42, 43)
                a('v_mul_f32 v42, s86, v42')
                for j in range(2): a(f'v_fma_f32 v{40+j}, v{40+j}, s86, -v42\nv_exp_f32 v{40+j}, v{40+j}')
                a('v_add_f32 v42, v40, v41')
                self.xlane('v_add_f32', 42, 43)
                a(f'v_rcp_f32 v42, v42')
                for j in range(2):
                    a(f'{cvt} v{40+j}, v{40+j}, v{40+j}')
                    a(f'v_and_b32 v{44+j}, v{40+j}, v{tv(f"mc{j}")}\nv_and_b32 v{46+j}, v{40+j}, v{tv(f"mp{j}")}')
                a(f'v_mul_f32 v42, v42, v{G1+tt}')
                a(f'{mf16} {vr(OD,4)}, {vr(vc,2)}, v[44:45], 0\n{mf16} {vr(OD,4)}, {vr(vp,2)}, v[46:47], {vr(OD,4)}')
                for i in range(4): a(f'v_mul_f32 v{OD+i}, v{OD+i}, v42')
                ob = XF + 2 * (2 * p + tt)
                a(f'{cvt} v{ob}, v{OD}, v{OD+1}\n{cvt} v{ob+1}, v{OD+2}, v{OD+3}')
                a(f'buffer_store_dwordx2 {vr(ob,2)}, v{tv("l8")}, {WS}, s21 offen offset:{1024*p + 512*tt} sc1')
        for p in range(2):
            a(f'v_mov_b64 {vr(KP+2*p,2)}, {vr(acc("k",p,1),2)}\nv_mov_b64 {vr(VP+2*p,2)}, {vr(acc("v",p,1),2)}')
        loop_tail('L_P_B')
        if nb:
            self.tstamp(6, 40)
            a('s_endpgm')
        a('L_P_done:')
        self.tstamp(3, 40)
        self.note(8, 40)
        if o.get('no_F'):
            a('s_endpgm'); a.auto_vm = True; return
        self.f_phase()

    def spin4(self, voff, soff, tmp, n=4, sleep=2):
        a = self.a
        lab = a.newlabel('s4'); ok = a.newlabel('s4ok')
        ld = {1: 'buffer_load_dword', 4: 'buffer_load_dwordx4'}[n]
        a(f's_mov_b32 s23, {SPIN}\n{lab}:')
        a(f'{ld} {vr(tmp,n)}, {voff}, {WS}, {soff} offen sc1\ns_waitcnt vmcnt(0)')
        if n == 4: a(f'v_min_u32 v{tmp}, v{tmp}, v{tmp+1}\nv_min3_u32 v{tmp}, v{tmp}, v{tmp+2}, v{tmp+3}')
        a(f'v_cmp_eq_u32 vcc, 0, v{tmp}\ns_cbranch_vccz {ok}\n{"s_sleep %d" % sleep if sleep else ""}\ns_sub_u32 s23, s23, 1\ns_cbranch_scc0 {lab}\ns_mov_b32 {SPIN}, 0x400\n{ok}:')

    def f_phase(self):
        a = self.a; o = self.o
        set_srd(a, 8, P_WO, 4 << 20)
        a(f's_mul_i32 s78, {S_W}, 36864\ns_mov_b32 m0, s78')
        for kb in range(2):
            for T in range(4):
                a(f's_lshl_b32 s21, {S_RANK}, 17\ns_add_u32 s21, s21, {kb*65536 + T*64}')
                self.dma_chunk(f'v{tv("dma1k")}', 's21', 1024)
        set_srd(a, 8, P_WOB, 512 * 1024)
        for T in range(4):
            a(f's_lshl_b32 s21, {S_RANK}, 14\ns_add_u32 s21, s21, {T*64}')
            self.dma_chunk(f'v{tv("dma1k")}', 's21', 1024, n=1)
        set_srd(a, 12, P_OUT, 2048 * 1024)
        V_Z = 26
        a(f'v_mov_b32 v{V_Z}, 0')
        for kt in range(2):
            for i in range(4):
                a(f'v_cmp_le_i32 s[{64+8*kt+2*i}:{65+8*kt+2*i}], {16*kt+i}, v{tv("qrow")}')
        a('s_waitcnt vmcnt(0)')
        wof = lambda T, p, ks: 4 * ((T * 2 + p) * 4 + ks)
        wob = lambda T, p: 128 + 2 * (T * 2 + p)
        for kb in range(2):
            for T in range(4):
                so = (kb * 4 + T) * 4096
                for p in range(2):
                    for h in range(2):
                        for r in range(2):
                            a(f'ds_read_b64_tr_b16 {ar(wof(T,p,2*kb+h)+2*r,2)}, v{tv("trf")} offset:{so + 2048*h + 1024*r + 8*p}')
        for T in range(4):
            for p in range(2):
                a(f'ds_read_b64_tr_b16 {ar(wob(T,p),2)}, v{tv("trf")} offset:{32768 + 1024*T + 8*p}')
        a.wait(lgkm=0)
        S_FS, S_RB, S_FB = 's61', 's62', 's63'
        a(f's_sub_u32 {S_FS}, {S_TEAM}, {2 if o.get("nb", 1) else 1}\ns_mov_b32 s80, {hex(f2u(128 ** -0.5 * 1.4426950408889634))}\ns_mov_b32 s81, 0xf149f2ca')
        a(f's_lshr_b32 s82, {S_W}, 1\ns_and_b32 s83, {S_W}, 1')
        a(f's_lshl_b32 s86, {S_TEAM}, 21\ns_add_u32 s86, s86, {hex(L.FP)}')
        Q, K0, K1, V, KM, VM, OBF, G, S0, S1, SM, PX, PM, D, OF, AC = 28, 44, 60, 76, 92, 108, 112, 116, 120, 124, 128, 132, 136, 140, 156, 188
        a('L_F_loop:')
        a.forget(); a.auto_vm = True
        a(f'''
        s_lshl_b32 s21, {S_FS}, 5
        s_add_u32 s21, s21, {S_RANK}
        s_lshl_b32 {S_FB}, s21, 6
        s_mul_i32 {S_RB}, s21, 24576
        s_lshl_b32 s84, s21, 12
        s_add_u32 s84, s84, {hex(L.KVM)}
        s_lshl_b32 s85, s21, 10
        s_add_u32 s85, s85, {hex(L.OB)}
        s_add_u32 s21, {S_FB}, {hex(L.F_KV + 16)}
        ''')
        self.spin4(f'v{V_Z}', 's21', Q)
        a(f'''
        s_lshl_b32 s21, {S_FS}, 2
        s_lshr_b32 s22, {S_RANK}, 3
        s_add_u32 s21, s21, s22
        s_lshl_b32 s21, s21, 6
        s_and_b32 s22, {S_RANK}, 6
        s_lshl_b32 s22, s22, 1
        s_add_u32 s21, s21, s22
        s_add_u32 s21, s21, {hex(L.F_OB)}
        ''')
        self.spin4(f'v{V_Z}', 's21', Q, n=1)
        a.forget()
        l16 = f'v{tv("l16")}'
        NEGJ = 252
        a(f's_lshl_b32 s87, {S_FS}, 2\ns_add_u32 s87, s87, {S_W}\ns_lshl_b32 s87, s87, 5\ns_add_u32 s87, s87, {S_RANK}\ns_lshl_b32 s87, s87, 2\ns_add_u32 s87, s87, {hex(L.F_P)}')
        a(f's_cmp_eq_u32 {S_TFAST}, 0\ns_cselect_b32 s21, {hex(L.OOB)}, s87\nbuffer_load_dword v{NEGJ}, v{tv("one")}, {WS}, s21 offen')
        for qt in range(2):
            a(f'buffer_load_dwordx2 {vr(OBF+2*qt,2)}, v{tv("l8")}, {WS}, s85 offen offset:{512*qt} sc1')
        a(f's_lshl_b32 s22, s82, 10\ns_add_u32 s22, s22, 4096\ns_add_u32 s22, s22, {S_RB}\ns_mov_b32 s21, {S_RB}')
        for sl in range(4):
            a(f'buffer_load_dwordx4 {vr(Q+4*sl,4)}, {l16}, {WS}, s22 offen sc1')
            a(f'buffer_load_dwordx4 {vr(K0+4*sl,4)}, {l16}, {WS}, s21 offen sc1')
            a(f'buffer_load_dwordx4 {vr(K1+4*sl,4)}, {l16}, {WS}, s21 offen offset:1024 sc1')
            if sl < 3: a('s_add_u32 s21, s21, 6144\ns_add_u32 s22, s22, 6144')
        a(f's_mul_i32 s21, s83, 12288\ns_add_u32 s21, s21, {S_RB}\ns_add_u32 s22, s21, 6144')
        for sl in range(2):
            for f in range(2):
                a(f'buffer_load_dwordx4 {vr(V+8*sl+4*f,4)}, {l16}, {WS}, {"s21" if sl == 0 else "s22"} offen offset:{2048+1024*f} sc1')
        a(f's_lshl_b32 s21, {S_FS}, 7\ns_lshl_b32 s22, s82, 6\ns_add_u32 s21, s21, s22\ns_add_u32 s21, s21, {hex(L.GATE)}')
        a(f'buffer_load_dword v{G}, v{tv("c4")}, {WS}, s21 offen sc1')
        for qt in range(2):
            for T in range(4):
                for p in range(2):
                    a(f'{mf16} {vr(AC+32*qt+8*T+4*p,4)}, {ar(wob(T,p),2)}, {vr(OBF+2*qt,2)}, 0')
        for sl in range(4):
            a(f'{mf32} {vr(S0,4)}, {vr(K0+4*sl,4)}, {vr(Q+4*sl,4)}, {vr(S0,4) if sl else 0}')
            a(f'{mf32} {vr(S1,4)}, {vr(K1+4*sl,4)}, {vr(Q+4*sl,4)}, {vr(S1,4) if sl else 0}')
        NEG = 27
        a(f'v_mov_b32 v{NEG}, s81')
        for kt, Sx in enumerate((S0, S1)):
            for i in range(4): a(f'v_cndmask_b32 v{Sx+i}, v{NEG}, v{Sx+i}, s[{64+8*kt+2*i}:{65+8*kt+2*i}]')
        MX = 117
        a(f'v_max3_f32 v{MX}, v{S0}, v{S0+1}, v{S0+2}\nv_max3_f32 v{MX}, v{MX}, v{S0+3}, v{S1}\nv_max3_f32 v{MX}, v{MX}, v{S1+1}, v{S1+2}\nv_max_f32 v{MX}, v{MX}, v{S1+3}')
        if o.get('fpt', 1):
            a(f's_xor_b32 s22, s86, {1<<20}\ns_lshl_b32 s21, {S_RANK}, 10\ns_add_u32 s21, s21, s22\ns_lshl_b32 s22, {S_W}, 17\ns_add_u32 s21, s21, s22')
            a(f's_cmp_eq_u32 {S_TFAST}, 0\ns_cselect_b32 s21, {hex(L.OOB)}, s21')
            for k in range(8):
                a(f'buffer_load_dwordx4 {vr(OF,4)}, {l16}, {WS}, s21 offen\ns_add_u32 s21, s21, {32768 if k % 4 < 3 else 13 * 32768}')
        a.wait(vm=0)
        skip = a.newlabel('fw')
        dp = o.get('dpoll', 1)
        if dp:
            a(f"""
            s_cmp_ge_u32 {S_FS}, 62
            s_cselect_b32 s22, {hex((L.KVL - L.KVM - 62 * 131072) & 0xFFFFFFFF)}, 0
            s_add_u32 s84, s84, s22
            s_max_u32 s22, {S_FS}, 61
            s_sub_u32 s22, s22, 61
            s_lshl_b32 s22, s22, 11
            """)
        else: a('s_mov_b32 s22, 0')
        a(f's_cmp_lg_u32 {S_W}, 0\ns_cbranch_scc1 {skip}\ns_add_u32 s21, {S_FB}, {hex(L.F_M)}\ns_sub_u32 s21, s21, s22')
        self.spin4(f'v{V_Z}', 's21', KM)
        self.tstamp(4, 252)
        a(f'{skip}:\ns_barrier')
        fm = (lambda i: a.raw(f'    s_memtime s[{88+2*i}:{89+2*i}]')) if o.get('fmark') else (lambda i: None)
        fm(1)
        a.forget()
        a(f's_lshl_b32 s21, s83, 11\ns_add_u32 s21, s21, s84\ns_mov_b32 s23, 0x8000\nL_F_km:')
        for sl in range(4):
            a(f'buffer_load_dwordx4 {vr(KM+4*sl,4)}, {l16}, {WS}, s84 offen offset:{1024*sl} sc1')
        for sl in range(2):
            a(f'buffer_load_dwordx2 {vr(VM+2*sl,2)}, v{tv("vml")}, {WS}, s21 offen offset:{1024*sl} sc1')
        if dp:
            a(f's_cmp_lt_u32 {S_FS}, 62\ns_cbranch_scc1 L_F_kmok')
            vq = list(a.vq)
            a(f'v_max3_u32 v118, v{KM}, v{KM+1}, v{KM+2}')
            for r in range(KM + 3, KM + 19, 2): a(f'v_max3_u32 v118, v118, v{r}, v{r+1}')
            a(f'v_max_u32 v118, v118, v{VM+3}\nv_cmp_eq_u32 vcc, -1, v118\ns_cbranch_vccz L_F_kmok')
            if o.get('dsl', 0): a(f's_sleep {o.get("dsl")}')
            a(f's_sub_u32 s23, s23, 1\ns_cbranch_scc0 L_F_km\nL_F_kmok:')
            a.vq = vq
        for sl in range(4):
            a(f'{mf32} {vr(SM,4)}, {vr(KM+4*sl,4)}, {vr(Q+4*sl,4)}, {vr(SM,4) if sl else 0}')
        fm(2)
        a(f'v_max3_f32 v{MX}, v{MX}, v{SM}, v{SM+1}')
        self.xlane('v_max_f32', MX, 118)
        a(f'v_mul_f32 v{MX}, s80, v{MX}')
        E = [S0 + i for i in range(4)] + [S1 + i for i in range(4)] + [SM, SM + 1]
        for e in E: a(f'v_fma_f32 v{e}, v{e}, s80, -v{MX}')
        for e in E: a(f'v_exp_f32 v{e}, v{e}')
        a(f'{cvt} v{PX}, v{S0}, v{S0+1}\n{cvt} v{PX+1}, v{S0+2}, v{S0+3}\n{cvt} v{PX+2}, v{S1}, v{S1+1}\n{cvt} v{PX+3}, v{S1+2}, v{S1+3}')
        a(f'{cvt} v{PM}, v{SM}, v{SM+1}\nv_mov_b32 v{PM+1}, 0\nv_mov_b32 v{PM+2}, 0\n{cvt} v{PM+3}, v{SM}, v{SM+1}')
        for sl in range(2):
            f1, f2 = V + 8 * sl, V + 8 * sl + 4
            for p in range(2):
                d = vr(D + 8 * sl + 4 * p, 4)
                X = f1 if p == 0 else f2; Y = f2 + 2 if p == 0 else f1 + 2
                a(f'{mf16} {d}, {vr(X,2)}, {vr(PX,2)}, 0')
                a(f'{mf16} {d}, {vr(Y,2)}, {vr(PX+2,2)}, {d}')
                a(f'{mf16} {d}, {vr(VM+2*sl,2)}, {vr(PM+2*p,2)}, {d}')
        LS = 119
        a(f'v_add_f32 v{LS}, v{E[0]}, v{E[1]}')
        for e in E[2:]: a(f'v_add_f32 v{LS}, v{LS}, v{e}')
        self.xlane('v_add_f32', LS, 118)
        a(f'v_rcp_f32 v{LS}, v{LS}\nv_mul_f32 v{LS}, v{LS}, v{G}')
        for i in range(16): a(f'v_mul_f32 v{D+i}, v{D+i}, v{LS}')
        for i in range(8): a(f'{cvt} v{D+i}, v{D+2*i}, v{D+2*i+1}')
        fm(3)
        for sl in range(2): a(f'ds_write_b128 v{tv("oxw")}, {vr(D+4*sl,4)} offset:{1024*sl}')
        a.wait(lgkm=0)
        a('s_barrier')
        for qt in range(2):
            for sl in range(4):
                a(f'ds_read_b128 {vr(OF+16*qt+4*sl,4)}, v{tv("oxr")} offset:{4096*qt+1024*sl}')
        a(f's_xor_b32 s86, s86, {1<<20}\ns_lshl_b32 s21, {S_RANK}, 10\ns_add_u32 s21, s21, s86\ns_lshl_b32 s22, {S_W}, 17\ns_add_u32 s21, s21, s22')
        a(f's_cmp_eq_u32 {S_TFAST}, 0\ns_cbranch_scc1 L_F_slowst')
        lq0 = list(a.lq)
        for cf in ('', 'sc1'):
            if cf: a('L_F_slowst:'); a.lq = list(lq0)
            df = cf or ('nt' if o.get('fpnt') else '')
            def fin(k):
                qt, T = divmod(k, 4)
                r = AC + 32 * qt + 8 * T
                for i in range(4): a(f'{cvt} v{r+i}, v{r+2*i}, v{r+2*i+1}')
                a(f'buffer_store_dwordx4 {vr(r,4)}, {l16}, {WS}, s21 offen {df}')
                a(f's_add_u32 s21, s21, {32768 if T < 3 else 13 * 32768}')
            for k in range(8):
                qt, T = divmod(k, 4)
                for ks in range(4):
                    for p in range(2):
                        d = vr(AC + 32 * qt + 8 * T + 4 * p, 4)
                        a(f'{mf32} {d}, {ar(wof(T,p,ks),4)}, {vr(OF+16*qt+4*ks,4)}, {d}')
                if k: fin(k - 1)
            fin(7)
            fm(4)
            a.wait(vm=0)
            fm(5)
            a(f'buffer_store_dword v{tv("oxr")}, v{tv("one")}, {WS}, s87 offen {cf}')
            if not cf: a('s_branch L_F_stdone')
        a('L_F_stdone:')
        self.tstamp(5, 252)
        a(f's_lshl_b32 s21, {S_FS}, 9\ns_and_b32 s22, {S_RANK}, 12\ns_lshl_b32 s22, s22, 5\ns_add_u32 s21, s21, s22\ns_add_u32 s21, s21, {hex(L.F_P)}')
        self.spin4(f'v{tv("pfl")}', 's21', Q, n=1, sleep=0)
        fm(6)
        if o.get('fmark'):
            a(f's_lshl_b32 s21, {S_TEAM}, 5\ns_add_u32 s21, s21, {S_RANK}\ns_lshl_b32 s21, s21, 7\ns_add_u32 s21, s21, {hex(L.DBG + 65536)}\ns_waitcnt lgkmcnt(0)')
            for i in range(1, 7): a(f'v_mov_b32 v252, s{88+2*i}\nbuffer_store_dword v252, v{V_Z}, {WS}, s21 offen offset:{4*(15+i)}')
        a.forget()
        a(f's_lshl_b32 s21, {S_RANK}, 15\ns_add_u32 s21, s21, s86')
        for l in range(8):
            a(f'buffer_load_dwordx4 {vr(Q+4*l,4)}, v{tv("fpld")}, {WS}, s21 offen sc1')
            if l < 7: a('s_add_u32 s21, s21, 4096')
        for l in range(8):
            a(f'{mf32} {vr(S0,4)}, {vr(tv("self0"),4)}, {vr(Q+4*l,4)}, {vr(S0,4) if l else 0}')
        a(f's_lshl_b32 s21, {S_FS}, 5\ns_and_b32 s22, {S_RANK}, 16\ns_add_u32 s21, s21, s22\ns_lshl_b32 s21, s21, 10\ns_and_b32 s22, {S_RANK}, 15\ns_lshl_b32 s22, s22, 6\ns_add_u32 s21, s21, s22')
        a(f'{cvt} v{S0}, v{S0}, v{S0+1}\n{cvt} v{S0+1}, v{S0+2}, v{S0+3}')
        a(f'buffer_store_dwordx2 {vr(S0,2)}, v{tv("outst")}, {ST}, s21 offen')
        if o.get('wb'):
            lab = a.newlabel('wb')
            a(f's_cmp_lt_u32 {S_FS}, 52\ns_cbranch_scc1 {lab}\ns_cmp_ge_u32 {S_FS}, {o.get("wbmax", 62)}\ns_cbranch_scc1 {lab}')
            a(f's_or_b32 s21, {S_RANK}, {S_W}\ns_cmp_lg_u32 s21, 0\ns_cbranch_scc1 {lab}\ns_sleep 32\nbuffer_wbl2 sc1\ns_waitcnt vmcnt(0)\n{lab}:')
        a(f's_add_u32 {S_FS}, {S_FS}, {6 if o.get("nb", 1) else 7}\ns_cmp_lt_u32 {S_FS}, 64\ns_cbranch_scc1 L_F_loop')
        a.wait(vm=0)
        self.tstamp(6, 40)
        self.span(40)
        self.note(9, 40)
        a('s_endpgm')
```

```python
import re

REG_RE = re.compile(r'^(-|\|)?([vas])(?:(\d+)|\[(\d+):(\d+)\])\|?$')

def parse_reg(tok):
    tok = tok.strip()
    if tok.startswith('abs(') and tok.endswith(')'):
        tok = tok[4:-1]
    if tok in ('vcc',):
        return {('s', 106), ('s', 107)}
    if tok == 'vcc_lo': return {('s', 106)}
    if tok == 'vcc_hi': return {('s', 107)}
    if tok == 'exec': return {('s', 126), ('s', 127)}
    if tok == 'exec_lo': return {('s', 126)}
    if tok == 'exec_hi': return {('s', 127)}
    if tok == 'm0': return {('s', 124)}
    m = REG_RE.match(tok)
    if not m:
        return set()
    k = m.group(2)
    if m.group(3) is not None:
        return {(k, int(m.group(3)))}
    return {(k, i) for i in range(int(m.group(4)), int(m.group(5)) + 1)}

TRANS = ('v_exp_', 'v_log_', 'v_rcp_', 'v_rsq_', 'v_sqrt_', 'v_sin_', 'v_cos_')
VCC = {('s', 106), ('s', 107)}
EXEC = {('s', 126), ('s', 127)}
M0 = {('s', 124)}

class Ins:
    __slots__ = ('text', 'op', 'kind', 'defs', 'uses', 'srcc', 'srcab', 'passes', 'label', 'target',
                 'dpp', 'states', 'wide_store_data', 'lds_dma', 'store_data', 'note')
    def __init__(self, text):
        self.text = text
        self.label = None; self.target = None
        self.defs = set(); self.uses = set(); self.srcc = set(); self.srcab = set()
        self.passes = 0; self.dpp = False; self.states = 1
        self.wide_store_data = set(); self.lds_dma = False; self.note = None
        t = text.split(';')[0].strip()
        if not t or t.startswith('.') and not t.endswith(':'):
            self.kind = 'dir'; self.op = t; self.states = 0; return
        if t.endswith(':'):
            self.kind = 'label'; self.label = t[:-1]; self.op = ''; self.states = 0; return
        parts = t.split(None, 1)
        op = parts[0]; self.op = op
        rest = parts[1] if len(parts) > 1 else ''
        ops = [o.strip() for o in re.split(r',(?![^\[]*\])', rest)] if rest else []
        mods = []
        if ops:
            last = ops[-1].split()
            if op.startswith('s_waitcnt') or op.startswith('s_getreg') or op.startswith('s_setreg'):
                pass
            else:
                ops[-1] = last[0] if last else ''
                mods = last[1:]
        R = [parse_reg(o) for o in ops]
        allm = ' '.join(mods)
        if op.startswith('v_mfma') or op.startswith('v_smfmac'):
            self.kind = 'mfma'
            self.passes = 8 if '32x32' in op else 4
            if '_f32_16x16x4_f32' in op or '32x32x2_f32' in op: raise ValueError('sgemm not modelled')
            self.defs = set(R[0])
            if op.startswith('v_smfmac'):
                self.srcc = set(R[0]); self.srcab = R[1] | R[2] | R[3]
            else:
                self.srcc = set(R[3]); self.srcab = R[1] | R[2]
            self.uses = self.srcc | self.srcab | EXEC
        elif op.startswith('v_'):
            self.kind = 'valu'
            self.dpp = ('_dpp' in op) or ('row_' in allm) or ('quad_perm' in allm) or ('wave_' in allm)
            if op.startswith('v_permlane') and 'swap' in op:
                self.defs = R[0] | R[1]; self.uses = R[0] | R[1]
            elif op.startswith('v_cmp'):
                self.defs = set(R[0]); self.uses = set().union(*R[1:])
                if op.startswith('v_cmpx'): raise ValueError('cmpx not modelled')
            elif op.startswith(('v_add_co', 'v_sub_co', 'v_addc_co', 'v_subb_co', 'v_subrev_co')):
                self.defs = R[0] | R[1]; self.uses = set().union(*R[2:])
            else:
                self.defs = set(R[0]); self.uses = set().union(*R[1:]) if len(R) > 1 else set()
                if op.startswith(('v_fmac', 'v_dot2c', 'v_pk_fmac', 'v_writelane')):
                    self.uses |= R[0]
            self.uses |= EXEC
        elif op.startswith('ds_'):
            self.kind = 'ds'
            if op.startswith(('ds_read', 'ds_bpermute', 'ds_permute', 'ds_swizzle')) or '_rtn' in op:
                self.defs = set(R[0]); self.uses = set().union(*R[1:])
            else:
                self.uses = set().union(*R)
            self.uses |= EXEC
        elif op.startswith(('buffer_', 'global_')):
            self.kind = 'vmem'
            if op in ('buffer_inv', 'buffer_wbl2'):
                pass
            elif 'load' in op:
                if 'lds' in mods or '_lds_' in op:
                    self.lds_dma = True; self.uses = set().union(*R) | M0
                else:
                    self.defs = set(R[0]); self.uses = set().union(*R[1:])
            elif 'atomic' in op:
                self.uses = set().union(*R)
                if 'sc0' in mods:
                    self.defs = set(R[0])
            else:
                self.uses = set().union(*R)
                if 'x3' in op or 'x4' in op:
                    self.wide_store_data = set(R[0]) if op.startswith('buffer') else set(R[1])
            self.uses |= EXEC
        elif op.startswith('s_'):
            self.kind = 'salu'
            if op == 's_nop':
                self.states = int(ops[0], 0) + 1
            elif op in ('s_branch',) or op.startswith('s_cbranch'):
                self.kind = 'branch'; self.target = ops[0]
                if 'vcc' in op: self.uses = set(VCC)
                if 'exec' in op: self.uses = set(EXEC)
            elif op in ('s_endpgm',):
                self.kind = 'end'
            elif op.startswith(('s_waitcnt', 's_barrier', 's_sleep', 's_setprio', 's_cmp', 's_bitcmp')):
                self.uses = set().union(*R) if R else set()
            elif op.startswith(('s_load', 's_buffer_load', 's_memtime', 's_memrealtime')):
                self.kind = 'smem'; self.defs = set(R[0]); self.uses = set().union(*R[1:]) if len(R) > 1 else set()
            else:
                self.defs = set(R[0]) if R else set()
                self.uses = set().union(*R[1:]) if len(R) > 1 else set()
                if 'saveexec' in op: self.defs |= EXEC; self.uses |= EXEC
                if op.startswith(('s_addk', 's_mulk', 's_cmov', 's_bitset')): self.uses |= R[0]
        else:
            raise ValueError('unknown op: ' + text)

def vregs(s):
    return {r for r in s if r[0] in 'va'}
def sregs(s):
    return {r for r in s if r[0] == 's'}

def required(p, c):
    need = 0
    if p.kind == 'valu':
        pv = vregs(p.defs); ps = sregs(p.defs)
        if c.kind == 'mfma' and (pv & (c.srcab | c.srcc)): need = max(need, 2)
        if c.kind == 'valu':
            if c.dpp and (pv & c.uses): need = max(need, 2)
            if c.op.startswith('v_permlane') and (pv & c.uses): need = max(need, 2)
            if c.op.startswith(('v_readlane', 'v_readfirstlane')) and (pv & c.uses): need = max(need, 1)
            if p.op.startswith(TRANS) and not c.op.startswith(TRANS) and (pv & c.uses): need = max(need, 1)
            if (ps - EXEC) & c.uses:
                need = max(need, 4 if c.op.startswith(('v_readlane', 'v_writelane')) else 2)
            if ('sdwa' in p.op or 'op_sel' in p.text and not p.op.startswith('v_pk')) and (pv & (c.uses | c.defs)): need = max(need, 1)
        if p.op.startswith(TRANS) and c.kind in ('mfma', 'ds', 'vmem') and (pv & c.uses): need = max(need, 2 if c.kind == 'mfma' else 1)
        if c.kind in ('vmem',) and (ps & c.uses): need = max(need, 5)
        if c.kind in ('salu', 'smem') and (ps & c.uses): need = max(need, 1)
    if p.kind == 'mfma':
        P = p.passes
        if c.kind == 'mfma':
            if p.defs & c.srcab: need = max(need, {4: 8, 8: 12}[P])
            if p.defs & c.srcc:
                if not (p.defs == c.srcc and p.passes == c.passes): need = max(need, {4: 6, 8: 10}[P])
            elif (p.defs & c.defs) and p.passes != c.passes:
                need = max(need, {4: 6, 8: 10}[P])
        elif c.kind in ('valu', 'ds', 'vmem'):
            if p.defs & (c.uses | c.defs): need = max(need, {4: 8, 8: 12}[P])
            if c.kind == 'valu' and (p.srcc & c.defs): need = max(need, {4: 3, 8: 7}[P])
    if p.kind == 'salu' and (p.defs & M0) and c.kind == 'vmem' and c.lds_dma: need = max(need, 1)
    if p.kind == 'vmem' and p.wide_store_data and (p.wide_store_data & c.defs):
        need = max(need, 2 if c.kind in ('valu', 'mfma') else 1)
    return need

class Asm:
    def __init__(self):
        self.ins = []
        self.lq = []
        self.vq = []
        self.auto_vm = True
        self.auto_lgkm = True
        self.uid = 0
        self.hot = False
        self.timed = True
        self.dummy = 'v_mov_b32 v1, v1'
    def newlabel(self, base):
        self.uid += 1
        return f'L_{base}_{self.uid}'
    def raw(self, text):
        self.ins.append(Ins(text))
    def _autowait(self, I):
        touched = I.uses | I.defs
        need_l = None; need_v = None
        if self.auto_lgkm:
            for i, d in enumerate(self.lq):
                if d and (d & touched): need_l = len(self.lq) - 1 - i
        if self.auto_vm:
            for i, d in enumerate(self.vq):
                if d and (d & touched): need_v = len(self.vq) - 1 - i
        if need_l is not None or need_v is not None:
            self.wait(vm=need_v, lgkm=need_l)
    def wait(self, vm=None, lgkm=None):
        s = []
        if vm is not None:
            vm = min(vm, 63); s.append(f'vmcnt({vm})')
            self.vq = self.vq[len(self.vq) - vm:] if vm < len(self.vq) else self.vq
            if vm == 0: self.vq = []
        if lgkm is not None:
            lgkm = min(lgkm, 15); s.append(f'lgkmcnt({lgkm})')
            self.lq = self.lq[len(self.lq) - lgkm:] if lgkm < len(self.lq) else self.lq
            if lgkm == 0: self.lq = []
        if s: self.raw('    s_waitcnt ' + ' '.join(s))
    def wait_lds_writes(self):
        idx = [i for i, d in enumerate(self.lq) if not d]
        if idx: self.wait(lgkm=len(self.lq) - 1 - idx[-1])
    def __call__(self, text):
        for line in text.split('\n'):
            if not line.strip(): continue
            if self.hot and getattr(self, 'filt', None):
                line = self.filt(line)
                if not line: continue
            I = Ins('    ' + line.strip() if not line.strip().endswith(':') else line.strip())
            if I.kind in ('label', 'branch', 'end'):
                pass
            elif I.kind != 'dir':
                self._autowait(I)
            I.note = 'hot' if self.hot else None
            self.ins.append(I)
            if I.kind == 'ds': self.lq.append(set(I.defs) or None)
            if I.kind == 'vmem' and I.op not in ('buffer_inv', 'buffer_wbl2'): self.vq.append(set(I.defs) or None)
            if I.kind == 'smem': self.smem_pending = True
    def label(self, name):
        self(name + ':')
    def forget(self, vm=True, lgkm=True):
        if vm: self.vq = []
        if lgkm: self.lq = []
    def comment(self, s):
        self.ins.append(Ins('; ' + s))
    def pad_hazards(self, maxdist=14):
        ins = self.ins
        nins = 0
        i = 0
        while i < len(ins):
            c = ins[i]
            if c.kind in ('valu', 'mfma', 'ds', 'vmem', 'salu', 'smem') and 'padded by hand' not in c.text:
                labels = None
                deficit = self._deficit(i, c, maxdist)
                if deficit > 0:
                    n = deficit
                    pads = []
                    while n > 0:
                        if getattr(c, 'note', None) == 'hot' and n > 2:
                            pads.append(Ins('    s_nop 1')); pads.append(Ins('    ' + self.dummy)); n -= 3
                        else:
                            k = min(n, 16); pads.append(Ins(f'    s_nop {k-1}')); n -= k
                    ins[i:i] = pads
                    self._idx = None
                    i += len(pads); nins += deficit
                    continue
            i += 1
        return nins
    def _branches_to(self):
        d = {}
        for j, x in enumerate(self.ins):
            if x.kind == 'branch': d.setdefault(x.target, []).append(j)
        return d
    def _deficit(self, i, c, maxdist):
        if getattr(self, '_idx', None) is None: self._idx = self._branches_to()
        br = self._idx
        worst = 0
        stack = [(i - 1, 0)]
        seen = {}
        while stack:
            j, dist = stack.pop()
            while j >= 0 and dist < maxdist:
                if seen.get(j, 99) <= dist: break
                seen[j] = dist
                p = self.ins[j]
                if p.kind == 'label':
                    for b in br.get(p.label, []):
                        stack.append((b, dist))
                    k = j - 1
                    while k >= 0 and self.ins[k].kind in ('dir',): k -= 1
                    if k >= 0 and (self.ins[k].kind == 'end' or self.ins[k].op == 's_branch'): break
                    j -= 1; continue
                if p.kind != 'dir':
                    r = required(p, c)
                    if r > dist:
                        d = r - dist
                        if self.timed and p.kind == 'mfma' and j < i and getattr(c, 'note', None) == 'hot':
                            d = min(d, self._timed_deficit(j, i, r))
                        worst = max(worst, d)
                    dist += p.states
                j -= 1
        return worst
    def _timed_deficit(self, j, i, r):
        seq = self.ins[j:i + 1]
        if any(x.kind in ('label', 'branch') for x in seq): return 99
        seq = [x for x in seq if x.kind != 'dir']
        if any(x.kind == 'mfma' and x.passes != 4 for x in seq): return 99
        t = 0; last = 0; hold = 12 if seq[0].op.startswith('v_smfmac') else 8
        for k in range(1, len(seq)):
            t += 4 * seq[k - 1].states
            x = seq[k]
            if x.kind == 'mfma':
                t = max(t, last + 16); last = t; hold = 12 if x.op.startswith('v_smfmac') else 8
            elif x.kind == 'valu':
                t = max(t, last + hold)
        need = 4 * (r + 1)
        return max(0, -(-(need - t) // 4))
    def merge_nops(self):
        out = []
        for x in self.ins:
            if x.op == 's_nop' and out and out[-1].op == 's_nop' and out[-1].states + x.states <= 16:
                out[-1] = Ins(f'    s_nop {out[-1].states + x.states - 1}')
            else: out.append(x)
        self.ins = out
    def text(self):
        return '\n'.join(x.text for x in self.ins) + '\n'
```

```python
import layout as L
from gen_common import *

V_L16, V_IST, V_PUB, V_X0, V_F, V_SMW, V_OW, V_WV = 1, 2, 3, 4, 8, 9, 10, 11
KMH, VMH = 12, 16
V_IDX, V_WV2 = 18, 19
SELR, SELV, V_ONE, V_OR, SELQ, SELK = 20, 24, 26, 27, 28, 128
V_Z = 29
VXC, VXN, KX = 32, 40, 48
WVB = 56
AQ, AK, AV = 72, 80, 88
M = 96
T = 132
WO0 = 144
V_FLAG = 0
SC = 128 ** -0.5 * 1.4426950408889634
import struct
def f2u(x): return struct.unpack('<I', struct.pack('<f', x))[0]

WO_SPILL = [(0, 0), (1, 0)]
def wo_frag(t, kb):
    order = [(t_, k_) for t_ in range(4) for k_ in range(4) if (t_, k_) not in WO_SPILL]
    return WO0 + 8 * order.index((t, kb))

LDSF = [('q', 0, 0), ('q', 0, 1), ('q', 1, 0), ('q', 1, 1), ('k', 0, 0)] + [('k', k, 1) for k in range(2, 8)] + [('k', 7, 0)] + [('v', k, p) for k in (6, 7) for p in range(2)]
AGF = [(m, k, p) for m in 'qkv' for k in range(8) for p in range(2) if (m, k, p) not in LDSF]
assert len(LDSF) == 16 and len(AGF) == 32
S_S = 's61'
S_MEMP = 's62'
S_PUBB = 's63'
S_IN0, S_IN1 = 's64', 's65'
S_INP = 's66'
S_REC = 's67'
S_FKV = 's68'
S_KVM, S_FM = 's69', 's70'
S_RST = 's71'
S_LO = 's[72:73]'
S_SC = 's74'
S_T0, S_T1 = 's75', 's76'
S_FAST = 's77'
S_TAG, S_NTAG = 's78', 's79'
S_OTAG, S_NOTAG = 's24', 's25'
S_HST, S_HLD, S_S1 = 's10', 's11', 's19'

class RRole:
    def smf(self, acc, A, B):
        self.a(f'v_smfmac_f32_16x16x64_bf16 {vr(acc,4)}, {vr(A,4)}, {B}, v{V_IDX}')

    def r_role(self):
        a = self.a; o = self.o
        a('L_R:')
        a.vq = list(self.vq_role)
        self.mark(0)
        self.note(2, 40)
        VD8, VD1, VTQ, VTO, VTA = 28, 29, 30, 31, 7
        a(f"""
        v_and_b32 v1, 63, v0
        v_lshrrev_b32 v2, 4, v1
        v_and_b32 v3, 15, v1
        v_lshlrev_b32 v4, 4, v3
        v_lshl_add_u32 v{VD8}, v2, 17, v4
        v_and_b32 v4, 0x70, v4
        v_lshrrev_b32 v3, 3, v3
        v_lshl_add_u32 v4, v3, 9, v4
        v_lshl_add_u32 v{VD1}, v2, 14, v4
        s_lshl_b32 s21, {S_W}, 7
        v_add_u32 v{VD1}, s21, v{VD1}
        s_mul_i32 s78, {S_W}, {L.BLK}
        """)
        groups = [(m, b) for m in 'oqkv' for b in range(2)]
        def issue(gi):
            mat, b = groups[gi]
            if b == 0: set_srd(a, 8, {'q': P_WQ, 'k': P_WK, 'v': P_WV, 'o': P_WO}[mat], 4 << 20)
            a(f's_add_u32 m0, s78, {(gi % 2) * L.GRP}')
            if mat != 'o':
                a(f's_add_u32 s21, {S_W}, {4 * b}\ns_lshl_b32 s21, s21, 19\ns_lshl_b32 s22, {S_RANK}, 8\ns_add_u32 s21, s21, s22')
                self.dma_block(f'v{VD8}', 's21', 8192)
            else:
                a(f's_lshl_b32 s21, {S_RANK}, 17\ns_add_u32 s21, s21, {b * 65536}')
                if o.get('rot', 0):
                    a(f's_mov_b32 s47, m0\ns_mul_i32 s22, {S_RANK}, {o.get("rot")}\ns_and_b32 s22, s22, 15')
                    for i in range(16):
                        a(f's_mul_i32 s23, s22, 1056\ns_add_u32 m0, s47, s23\ns_lshl_b32 s23, s22, 10\ns_add_u32 s23, s23, s21')
                        a(f'buffer_load_dwordx4 v{VD1}, {SA}, s23 offen lds\ns_add_u32 s22, s22, 1\ns_and_b32 s22, s22, 15')
                else: self.dma_block(f'v{VD1}', 's21', 1024)
        issue(0)
        self.load_table('T_R', 96, 28, 7)
        self.confirm_role()
        issue(1)
        self.mark(1)
        self.gate_and_store()
        names = list(L.r_table().keys())
        def tv(n): return 96 + names.index(n)
        a(f'v_mov_b32 v{VTQ}, v{tv("trq")}\nv_mov_b32 v{VTO}, v{tv("tro")}\nv_add_u32 v6, 65536, v{tv("wv")}')
        if o.get('code'):
            pc = a.newlabel('pc')
            a(f's_getpc_b64 s[12:13]\n{pc}:\ns_add_u32 s12, s12, L_R_ready-{pc}\ns_addc_u32 s13, s13, 0\ns_mov_b32 s14, L_R_slow-L_R_ready\ns_mov_b32 s15, 0x20000')
            a(f'v_lshlrev_b32 v1, 7, v0\nbuffer_load_dword v27, v1, {ST}, 0 offen')
        else:
            a(f'buffer_load_dword v27, v{tv("one")}, {WS}, 0 offen')
        a(f'buffer_load_dword v26, v{tv("mm")}, {WS}, 0 offen')
        a.auto_vm = False
        TMP = 56
        park = {}
        parkregs = [32, 64, 72, 80, 88, 124, 132, 8]
        for f in LDSF:
            if f[0] == 'k': park[f] = parkregs.pop(0)
            if f[0] == 'q': park[f] = -8 * AGF.index(('v', 3 + 2 * f[1], f[2])) - 1
        S_RDY = 's76'
        def scalars():
            if o.get('pa2', 0):
                dec = f's_lshr_b32 s84, {S_RANK}, 3\ns_lshl_b32 s84, s84, 1\ns_lshr_b32 s21, {S_W}, 1\ns_add_u32 s84, s84, s21\n' \
                      f's_lshr_b32 s85, {S_RANK}, 1\ns_and_b32 s85, s85, 3\n' \
                      f's_and_b32 s86, {S_RANK}, 1\ns_lshl_b32 s86, s86, 1\ns_and_b32 s21, {S_W}, 1\ns_add_u32 s86, s86, s21'
            else:
                dec = f's_lshr_b32 s84, {S_RANK}, 2\ns_and_b32 s85, {S_RANK}, 3\ns_mov_b32 s86, {S_W}'
            a(f'''
            {dec}
            s_lshl_b32 {S_INP}, s84, 2
            s_add_u32 {S_INP}, {S_INP}, s85
            s_lshl_b32 {S_INP}, {S_INP}, 2
            s_add_u32 {S_INP}, {S_INP}, s86
            s_lshl_b32 {S_INP}, {S_INP}, 11
            s_add_u32 {S_INP}, {S_INP}, {hex(L.RIN)}
            s_lshl_b32 {S_PUBB}, s84, 10
            s_and_b32 s22, s85, 2
            s_lshl_b32 s22, s22, 7
            s_add_u32 {S_PUBB}, {S_PUBB}, s22
            s_and_b32 s22, s85, 1
            s_lshl_b32 s22, s22, 5
            s_add_u32 {S_PUBB}, {S_PUBB}, s22
            s_lshl_b32 s22, s86, 6
            s_add_u32 {S_PUBB}, {S_PUBB}, s22
            s_add_u32 {S_PUBB}, {S_PUBB}, {hex(L.RMEM)}
            s_and_b32 s22, s84, 1
            s_lshl_b32 s22, s22, 9
            s_lshr_b32 s21, s84, 1
            s_lshl_b32 s21, s21, 7
            s_add_u32 s21, s21, s22
            s_lshl_b32 s22, s85, 3
            s_add_u32 s21, s21, s22
            s_lshl_b32 s22, s86, 11
            s_add_u32 s75, s21, s22
            s_mul_i32 {S_REC}, {S_RANK}, 24576
            s_mul_i32 s21, {S_W}, 6144
            s_add_u32 {S_REC}, {S_REC}, s21
            s_lshl_b32 {S_FKV}, {S_RANK}, 6
            s_lshl_b32 s21, {S_W}, 2
            s_add_u32 {S_FKV}, {S_FKV}, s21
            s_add_u32 {S_FM}, {S_FKV}, {hex(L.F_M - 4096)}
            s_add_u32 {S_FKV}, {S_FKV}, {hex(L.F_KV)}
            s_lshl_b32 {S_KVM}, {S_RANK}, 12
            s_lshl_b32 s21, {S_W}, 10
            s_add_u32 {S_KVM}, {S_KVM}, s21
            s_add_u32 {S_KVM}, {S_KVM}, {hex(L.KVM - 131072)}
            s_lshl_b32 s21, {S_W}, 11
            s_add_u32 {S_MEMP}, s21, {hex(L.RMEM)}
            s_lshl_b32 {S_IN0}, {S_RANK}, 6
            s_add_u32 {S_IN0}, {S_IN0}, {hex(L.RIN)}
            s_mov_b32 s72, 0x33333333
            s_mov_b32 s73, 0x33333333
            s_mov_b32 {S_SC}, {hex(f2u(SC))}
            s_mov_b32 {S_S}, 0
            ''')
        def first_records(l16):
            for i in range(2):
                a(f'buffer_load_dwordx4 {vr(KX+4*i,4)}, v{l16}, {WS}, {S_REC} offen offset:{1024*i} sc1')
                a(f'buffer_load_dwordx4 {vr(VXN+4*i,4)}, v{l16}, {WS}, {S_REC} offen offset:{2048+1024*i} sc1')
        nw = 4 if o.get('warm', 0) else 2
        def stage_w():
            set_srd(a, 12, P_DBG, 256)
            a(f"""
            v_and_b32 v2, 1, v0
            v_lshlrev_b32 v5, 3, v2
            v_and_b32 v2, {nw - 1}, v0
            v_lshlrev_b32 v2, 11, v2
            buffer_load_dword v3, v5, {ST}, 0 offen sc1
            """)
        def stage_t():
            assert o.get('xearly', 1)
            a(f"""
            v_mov_b64 v[24:25], -1
            v_mov_b64 v[26:27], -1
            s_cmp_eq_u32 {S_RDY}, 1
            s_cselect_b32 s21, {S_INP}, {hex(L.OOB)}
            s_cselect_b32 s22, {S_PUBB}, {hex(L.OOB)}
            """)
            if o.get('touchx', 2) >= 2:
                a(f's_add_u32 s23, s21, 0x40000\ns_lshl_b32 s84, {S_RANK}, 10\ns_add_u32 s84, s84, {hex(L.RMEM)}\ns_cmp_ge_u32 s21, {hex(L.OOB)}\ns_cselect_b32 s84, s21, s84')
                for so in ('s21', 's23'):
                    for i in range(2): a(f'buffer_load_dwordx4 v[24:27], v{tv("l16")}, {WS}, {so} offen offset:{1024*i}')
                a(f'buffer_load_dwordx4 v[24:27], v{tv("l16")}, {WS}, s84 offen')
                if o.get('touchx', 2) == 2: return
                a('s_waitcnt vmcnt(0)\nv_mov_b64 v[24:25], -1\nv_mov_b64 v[26:27], -1')
            for sl in range(2):
                for i in range(2): a(f'buffer_store_dwordx4 v[24:27], v{tv("l16")}, {WS}, s21 offen offset:{1024*i}')
                a('s_add_u32 s21, s21, 0x40000')
            for sl in range(4):
                a(f'buffer_store_dword v24, v{tv("pub")}, {WS}, s22 offen\ns_add_u32 s22, s22, 0x2000')
            a(f'v_mov_b32 v25, 0\ns_lshl_b32 s22, {S_W}, 5\ns_add_u32 s22, s22, {S_RANK}\ns_lshl_b32 s22, s22, 2\ns_add_u32 s22, s22, {hex(L.R_HINT)}')
            a(f's_cmp_ge_u32 s21, {hex(L.OOB)}\ns_cselect_b32 s22, s21, s22\nbuffer_store_dword v25, v{tv("one")}, {WS}, s22 offen')
        def stage_x():
            a(f'buffer_load_dword v4, v2, {WS}, {S_FKV} offen sc1')
        def stage_y():
            a(f"""
            v_lshl_or_b32 v140, v141, 16, v140
            v_readlane_b32 s21, v3, 0
            v_readlane_b32 s22, v3, 1
            v_cmp_eq_u32 vcc, 0, v4
            s_mov_b32 {S_RDY}, 0
            s_bcnt1_i32_b32 s21, s21
            s_add_u32 s21, s21, s22
            s_mov_b32 {S_FAST}, 1
            s_cbranch_vccnz L_R_notyet
            s_cmp_lt_u32 s21, 32
            s_cbranch_scc1 L_R_notyet
            s_mov_b32 {S_RDY}, 1
            """)
            if o.get('touchx', 2) in (0, 2): a(f'buffer_store_dword v140, v{tv("pub")}, {WS}, {S_PUBB} offen sc1')
            first_records(tv('l16'))
            for k in range(o.get('warm', 0)):
                a(f's_add_u32 s21, {S_REC}, {(k + 1) * 32 * 24576}')
                for i in range(4): a(f'buffer_load_dwordx4 v[24:27], v{tv("l16")}, {WS}, s21 offen offset:{1024*i}')
            a('L_R_notyet:')
        scalars()
        set_srd(a, 24, P_MEM0, 8192)
        a(f'buffer_load_ushort v140, v{tv("m0a")}, s[24:27], s75 offen\nbuffer_load_ushort v141, v{tv("m0a")}, s[24:27], s75 offen offset:32')
        todo = []
        self.ldsf_off = {}
        def flush(n):
            for _ in range(n):
                f, r = todo.pop(0); off = 8192 * len(self.ldsf_off)
                self.ldsf_off[f] = off
                for hh in range(2):
                    src = vr(r + 4 * hh, 4) if r >= 0 else ar(-r - 1 + 4 * hh, 4)
                    a(f'ds_write_b128 v{tv("wv") if off < 65536 else 6}, {src} offset:{off % 65536 + 1024 * hh}')
                if r >= 0: parkregs.append(r)
        for gi in range(8):
            mat, b = groups[gi]
            if gi == 0: self.mark(2)
            a.wait(vm=[16 + 5, 5 + 16, 16, 16, 16, 16, 16, 0][gi] if o.get('xearly', 1) else [16 + 5, 5 + 16, 16, 16, 16, 16, 16 + 1, 1][gi])
            if gi == 6 and o.get('xearly', 1): stage_y()
            if gi == 7 and o.get('touchx', 2): stage_t()
            if gi == 6 and o.get('code2', 1):
                pc = a.newlabel('pc')
                a(f's_getpc_b64 s[12:13]\n{pc}:\ns_add_u32 s12, s12, L_R_ready-{pc}\ns_addc_u32 s13, s13, 0\ns_mov_b32 s14, L_R_slow-L_R_ready\ns_mov_b32 s15, 0x20000')
                a(f'v_lshlrev_b32 v1, 4, v0')
                for k in range(5): a(f'buffer_load_dwordx4 v[24:27], v1, {ST}, 0 offen\nv_add_u32 v1, 4096, v1')
            if gi == 7 and o.get('touchp', 0): a(f'buffer_load_dword v5, v{tv("mm")}, {WS}, 0 offen sc1')
            if gi in (0, 2, 4, 7): self.mark(3 + [0, 2, 4, 7].index(gi))
            a('s_barrier')
            hb = (gi % 2) * L.GRP
            for x in range(4):
                dsts = []
                if mat == 'o':
                    for p in range(2):
                        f = (x, 2 * b + p)
                        dsts.append((vr, (TMP if x == 0 else 40) if f in WO_SPILL else wo_frag(*f)))
                    offs = [0, 2112, 8448, 10560]; xo = 64 * x
                    if x == 0: a(f'v_add_u32 v{VTA}, {hb}, v{VTO}')
                else:
                    offs = [0, 1056, 512, 1568]; xo = 0
                    a(f's_xor_b32 s21, {S_W}, {x}\ns_mul_i32 s21, s21, {L.BLK}\ns_add_u32 s21, s21, {hb}\nv_add_u32 v{VTA}, s21, v{VTQ}')
                    for p in range(2):
                        f = (mat, 2 * x + b, p)
                        if f in AGF: dsts.append((ar, 8 * AGF.index(f)))
                        else:
                            if f not in park: park[f] = TMP if (f[1], f[2]) == (6, 0) else (16 if (f[1], f[2]) == (6, 1) else parkregs.pop(0))
                            if park[f] < 0: dsts.append((ar, -park[f] - 1)); todo.insert(0, (f, park[f]))
                            else: dsts.append((vr, park[f])); todo.append((f, park[f]))
                for p in range(2):
                    rf, d = dsts[p]
                    for r in range(4):
                        a(f'ds_read_b64_tr_b16 {rf(d + 2 * r, 2)}, v{VTA} offset:{xo + offs[r] + (512 if mat == "o" else 32) * p}')
            if gi == 7 and not o.get('xearly', 1):
                a.wait(vm=0); stage_y()
            a.wait(lgkm=0)
            if gi == 0:
                for i in range(2):
                    for hh in range(2):
                        a(f'ds_write_b128 v{tv("x0")}, {vr((TMP if i == 0 else 40) + 4 * hh, 4)} offset:{16384 + 8192 * i + 1024 * hh}')
            a('s_barrier')
            if gi == 1: stage_w()

            if gi == 5 and o.get('xearly', 1): stage_x()
            if gi + 2 < 8: issue(gi + 2)
            if gi == 5 and not o.get('xearly', 1): stage_x()
            if gi == 2: self.signal_init(barrier=False)
            if gi == 6: flush(8)
            if gi == 7: flush(8)
        assert not todo and len(self.ldsf_off) == 16
        a.wait(lgkm=0, vm=0 if (o.get('touchx', 2) == 2 and 7 == 7) else None)
        a.auto_vm = True; a.forget()
        a(f'v_mov_b32 v{V_WV2}, v6')
        for n, d in [('l16', V_L16), ('ist', V_IST), ('pub', V_PUB), ('x0', V_X0), ('x1', V_X0 + 1), ('x2', V_X0 + 2), ('x3', V_X0 + 3),
                     ('f', V_F), ('smw', V_SMW), ('ow', V_OW), ('wv', V_WV), ('idx', V_IDX), ('one', V_ONE), ('or', V_OR)] + \
                    [(f'selr{i}', SELR + i) for i in range(4)] + [(f'selv{i}', SELV + i) for i in range(2)] + \
                    [('selq', SELQ), ('selq', SELQ + 3), ('selk', SELK), ('selk', SELK + 3)]:
            a(f'v_mov_b32 v{d}, v{tv(n)}')
        for d in (SELQ + 1, SELQ + 2, SELK + 1, SELK + 2): a(f'v_mov_b32 v{d}, 0')
        self.dump_marks(T + 4)
        self.tstamp(1, T + 4)
        self.note(3, T + 4)
        a(f's_cmp_eq_u32 {S_RDY}, 1\ns_cbranch_scc1 L_R_ready')
        self.wait_init(t0=T + 4)
        a(f's_cmp_ge_u32 s21, 32\ns_cselect_b32 {S_FAST}, 1, 0')
        if o.get('touchx', 2) in (0, 2): a(f'buffer_store_dword v140, v{V_PUB}, {WS}, {S_PUBB} offen sc1')
        self.spin_flag(V_FLAG, f'v{V_Z}', S_FKV)
        first_records(V_L16)
        a(f's_add_u32 s21, {S_FKV}, 2048')
        self.spin_flag(V_FLAG, f'v{V_Z}', 's21')
        a('L_R_ready:')
        a.wait(vm=0)
        a.forget()
        if o.get('force_slow'): a(f's_mov_b32 {S_FAST}, 0')
        if o.get('touchx', 2) in (1, 3):
            a(f's_cmp_eq_u32 {S_FAST}, 0\ns_cselect_b32 s21, {hex(L.OOB)}, {S_PUBB}\ns_cselect_b32 s22, {S_PUBB}, {hex(L.OOB)}')
            a(f'buffer_store_dword v140, v{V_PUB}, {WS}, s21 offen\nbuffer_store_dword v140, v{V_PUB}, {WS}, s22 offen sc1')
        a(f's_add_u32 {S_FKV}, {S_FKV}, 2048\nv_mov_b32 v{V_FLAG}, 1')
        for r in range(M, M + 8, 2): a(f'v_mov_b64 {vr(r,2)}, -1')
        if o.get('hold'):
            a(f's_lshl_b32 s21, {S_RANK}, 6\ns_add_u32 s21, s21, {hex(L.F_RS)}\ns_cmp_eq_u32 {S_W}, 0\ns_cselect_b32 s21, s21, {hex(L.OOB)}')
            a(f'buffer_store_dword v{V_F}, v{V_ONE}, {WS}, s21 offen sc1')
        self.tstamp(2, T + 4)
        self.tstamp(3, T + 4)
        self.note(4, T + 4)
        if o.get('stamp'):
            a('s_memtime s[80:81]\ns_memrealtime s[28:29]'); a.wait(lgkm=0)
        a(f's_lshl_b32 {S_HST}, {S_W}, 5\ns_add_u32 {S_HST}, {S_HST}, {S_RANK}\ns_lshl_b32 {S_HST}, {S_HST}, 2\ns_add_u32 {S_HST}, {S_HST}, {hex(L.R_HINT)}')
        a(f's_lshr_b32 {S_HLD}, {S_RANK}, 3\ns_lshl_b32 {S_HLD}, {S_HLD}, 7\ns_add_u32 {S_HLD}, {S_HLD}, {hex(L.R_HINT)}')
        a('s_mov_b32 s26, 0x3f803f80\ns_mov_b32 s27, 0x3f803f80\ns_mov_b32 s8, 0x3f003f00\ns_mov_b32 s9, 0x3f003f00')
        a(f'ds_write_b64 v{V_OW}, {vr(M,2)}')
        a.wait(lgkm=0)
        a(f's_cmp_eq_u32 {S_FAST}, 0\ns_cbranch_scc1 L_R_slow')
        if o.get('nostag'):
            self.r_loop('f', '')
        else:
            for w in range(1, 4): a(f's_cmp_eq_u32 {S_W}, {w}\ns_cbranch_scc1 L_R_w{w}')
            for w in range(4):
                if w: a(f'L_R_w{w}:')
                self.r_loop('f' + (str(w) if w else ''), '', wv=w)
        a('L_R_slow:')
        self.r_loop('s', 'sc1')

    def spin_flag(self, dst, voff, soff):
        a = self.a
        lab = a.newlabel('sf'); ok = a.newlabel('sfok')
        sv = a.auto_vm; a.auto_vm = False
        a(f'''
        s_mov_b32 s23, {SPIN}
        {lab}:
        buffer_load_dword v{dst}, {voff}, {WS}, {soff} offen sc1
        s_waitcnt vmcnt(0)
        v_cmp_ne_u32 vcc, 0, v{dst}
        s_cbranch_vccnz {ok}
        s_sleep 2
        s_sub_u32 s23, s23, 1
        s_cbranch_scc0 {lab}
        s_mov_b32 {SPIN}, 0x400
        {ok}:
        ''')
        a.auto_vm = sv; a.vq = []

    def poll(self, tag, dst, voff, soff, pre, check, shadow, nchk, mid=None, nmid=0, blk=None):
        a = self.a
        lab = f'L_poll_{tag}'; ok = f'L_pok_{tag}'
        def issue():
            a(f'buffer_load_dwordx4 {vr(dst,4)}, v{voff}, {WS}, {soff} offen {self.pf}')
            a(f'buffer_load_dwordx4 {vr(dst+4,4)}, v{voff}, {WS}, {soff} offen offset:1024 {self.pf}')
        pre()
        if blk:
            gap, cover, fill = blk
            issue()
            if mid: mid()
            for i in range(gap): fill()
            a(f's_mov_b32 s23, {SPIN}')
            issue()
            for i in range(cover): fill()
            a(f's_branch L_pw_{tag}\n{lab}:')
            a(f's_sub_u32 s23, s23, 1\ns_cbranch_scc1 L_pto_{tag}')
            issue()
            a(f'L_pw_{tag}:\ns_waitcnt vmcnt(2)')
            check(); shadow()
            a(f's_cbranch_vccnz {lab}\n{ok}:')
            self.late.append(f'L_pto_{tag}:\ns_mov_b32 {SPIN}, 0x400\ns_waitcnt vmcnt(0)\n@SH@s_branch {ok}')
            self.late_sh.append(shadow)
            return
        if mid:
            issue(); mid()
            for r in range(nmid):
                check(); shadow()
                a(f's_cbranch_vccz {ok}')
        a(f's_mov_b32 s23, {SPIN}')
        a(f'{lab}:')
        issue()
        for r in range(nchk - 1):
            check(); shadow()
            a(f's_cbranch_vccz {ok}')
        a(f's_sub_u32 s23, s23, 1\ns_cbranch_scc1 L_pto_{tag}')
        check(); shadow()
        a(f's_cbranch_vccnz {lab}\n{ok}:')
        self.late.append(f'L_pto_{tag}:\ns_mov_b32 {SPIN}, 0x400\ns_waitcnt vmcnt(0)\n@SH@s_branch {ok}')
        self.late_sh.append(shadow)

    def poll2(self, tag, dst, soff, chores, t0, t1, t2, fill, check, shadow, retry=None, depth=2, nat=False):
        a = self.a
        lab = f'L_poll_{tag}'; ok = f'L_pok_{tag}'
        def issue():
            a(f'buffer_load_dwordx4 {vr(dst,4)}, v{V_L16}, {WS}, {soff} offen {self.pf}')
            a(f'buffer_load_dwordx4 {vr(dst+4,4)}, v{V_L16}, {WS}, {soff} offen offset:1024 {self.pf}')
        def spend(t, flush=False):
            while chores and (flush or chores[0][0] <= t + 4):
                c, f = chores.pop(0); f(); t -= c
            while t >= 12: fill(); t -= 16
        def work(t):
            while chores and chores[0][0] <= t + 4:
                c, f = chores.pop(0); f(); t -= c
        if nat:
            work(t0); a('s_waitcnt vmcnt(1)'); issue()
            work(t1); a('s_waitcnt vmcnt(2)'); issue()
        else:
            spend(t0); issue()
        for _ in range(0 if nat else depth - 1):
            spend(t1 - 40); issue()
        spend(t2 - 40, flush=True)
        a(f's_mov_b32 s23, {SPIN}\ns_branch L_pw_{tag}\n{lab}:')
        a(f's_sub_u32 s23, s23, 1\ns_cbranch_scc1 L_pto_{tag}')
        issue()
        if retry: retry()
        a(f'L_pw_{tag}:\ns_waitcnt vmcnt({2 * (depth - 1)})')
        check(); shadow()
        a(f's_cbranch_vccnz {lab}\n{ok}:')
        self.late.append(f'L_pto_{tag}:\ns_mov_b32 {SPIN}, 0x400\ns_waitcnt vmcnt(0)\n@SH@s_branch {ok}')
        self.late_sh.append((lambda: (retry(), shadow())) if retry else shadow)

    def stamp(self, i):
        if self.o.get('stamp') and (self.o.get('smask', 0x3ff) >> i) & 1: self.a.raw(f'    {"s_memrealtime" if self.o.get("rt") else "s_memtime"} s[{82+2*i}:{83+2*i}]')

    def dump_stamps(self, tg):
        a = self.a
        if not self.o.get('stamp'): return
        lab = f'L_nodump_{tg}'
        a(f's_cmp_lg_u32 {S_S}, {self.o.get("dstep", 41)}\ns_cbranch_scc1 {lab}\ns_waitcnt lgkmcnt(0)')
        a(f's_lshl_b32 s21, {S_RANK}, 8\ns_lshl_b32 s22, {S_W}, 6\ns_add_u32 s21, s21, s22\ns_add_u32 s21, s21, {hex(L.DBG)}')
        a(f'v_mov_b32 v{T+10}, 0')
        for i in range(10):
            a(f'v_mov_b32 v{T+11}, s{82+2*i}\nbuffer_store_dword v{T+11}, v{T+10}, {WS}, s21 offen offset:{4*i}')
        a(f's_waitcnt vmcnt(0)\n{lab}:')

    def r_loop(self, tg, cf, wv=0):
        a = self.a; o = self.o
        mf16 = 'v_mfma_f32_16x16x16_bf16'; mf32 = 'v_mfma_f32_16x16x32_bf16'
        cvt = 'v_cvt_pk_bf16_f32'
        QP = 'quad_perm:[2,3,0,1] row_mask:0xf bank_mask:0xf'
        dum = lambda n=1: [a(a.dummy) for _ in range(n)]
        self.late = []; self.late_sh = []; self.fixups = []
        self.pf = 'nt' if (not cf and o.get('pollnt')) else 'sc1'
        a.auto_vm = False
        B0, B1, B2 = WVB, WVB + 8, M
        ACC = {'q': AQ, 'k': AK, 'v': AV}
        def S(m, k, p, buf=None):
            f = (m, k, p)
            self.smf(ACC[m] + 4 * p, M + 4 * k, ar(8 * AGF.index(f), 8) if buf is None else vr(buf, 8))
        def V(k, p, buf=None): S('v', k, p, buf)
        def RD(buf, m, k, p, hh):
            off = self.ldsf_off[(m, k, p)]
            a(f'ds_read_b128 {vr(buf + 4*hh, 4)}, v{V_WV if off < 65536 else V_WV2} offset:{off % 65536 + hh*1024}')
        def RD2(buf, m, k, p): RD(buf, m, k, p, 0); RD(buf, m, k, p, 1)
        def pkadd(d, x, y): a(f'v_add_f32 v{d}, v{x}, v{y}\nv_add_f32 v{d+1}, v{x+1}, v{y+1}')
        def PK(d, x, y): a(f'v_pk_add_f32 {vr(d,2)}, {vr(x,2)}, {vr(y,2)}')
        def add(d, x, y): a(f'v_add_f32 v{d}, v{x}, v{y}')
        def dmf(r):
            m = o.get('fillm', 2)
            if m == 1 or (m == 2 and r == M + 8): a('s_nop 3')
            elif m == 3: a(f's_nop 2\n{a.dummy}')
            elif m == 4: a(f'{mf16} {vr(r,4)}, s[26:27], s[26:27], 0' if False else f'{mf16} {vr(r,4)}, {vr(SELQ+2,2)}, {vr(SELQ,2)}, 0')
            else: a(f'{mf16} {vr(r,4)}, {vr(SELQ,2)}, {vr(SELQ,2)}, {vr(r,4)}')
        def filt(line):
            st = 'buffer_store' in line and ('s75' in line or 's76' in line) and 'sc1' in line
            ld = 'buffer_load' in line and ('s67' in line or 's68' in line)
            if o.get('nost') and st: return None
            if o.get('nofst') and st and 's76' in line: return None
            if o.get('nold') and ld: return None
            if o.get('nofld') and ld and 's68' in line: return None
            if o.get('ldplain') and ld and 's67' in line: return line.replace(' sc1', '')
            if o.get('ldnt') and ld and 's67' in line: return line.replace(' sc1', ' nt')
            if o.get('stplain') and st: return line.replace(' sc1', '')
            if o.get('novm') and 'vmcnt' in line: return None
            if o.get('nowarm') and 'buffer_load_dword v27' in line: return 's_nop 0'
            if o.get('novmh') and 'buffer_store_dwordx2' in line: return None
            return line
        PA = M + 8; R = T + 8
        spin = f'L_kvspin_{tg}'; back = f'L_kvback_{tg}'
        def preload():
            RD2(M + 24, 'q', 0, 0); RD2(M + 16, 'q', 0, 1); RD2(B0, 'q', 1, 0); RD2(B1, 'q', 1, 1); RD2(T, 'k', 0, 0)
        def slackB():
            a(f'v_cmp_eq_u32 vcc, 0, v{V_FLAG}')
            for r in range(0, 8, 2): a(f'v_mov_b64 {vr(VXC+r,2)}, {vr(VXN+r,2)}')
            a(f's_xor_b32 {S_INP}, {S_INP}, 0x40000')
            a(f's_cbranch_vccnz {spin}\n{back}:')
            a(f"""
            s_cmp_lt_u32 {S_S}, 63
            s_cselect_b32 {S_T0}, {0 if o.get("nopf") else 32*24576}, 0
            s_add_u32 {S_REC}, {S_REC}, {S_T0}
            s_cmp_lt_u32 {S_S}, 62
            s_cselect_b32 {S_T0}, 2048, 0
            s_add_u32 {S_FKV}, {S_FKV}, {S_T0}
            s_cmp_ge_u32 {S_S}, 2
            s_cselect_b32 {S_T1}, {S_FM}, {hex(L.OOB)}
            s_cmp_ge_u32 {S_S}, 1
            s_cselect_b32 {S_T0}, {S_KVM}, {hex(L.OOB)}
            s_add_u32 {S_FM}, {S_FM}, 2048
            s_cmp_eq_u32 {S_S}, 62
            s_cselect_b32 {S_TAG}, {hex((L.KVL - L.KVM - 62 * 131072) & 0xFFFFFFFF) if o.get('dpoll', 1) else 0}, 0
            s_add_u32 {S_KVM}, {S_KVM}, {S_TAG}
            s_add_u32 {S_KVM}, {S_KVM}, 131072
            s_lshr_b32 {S_TAG}, {S_S}, 1
            s_and_b32 {S_TAG}, {S_TAG}, 1
            s_sub_u32 {S_NTAG}, {S_TAG}, 1
            s_add_u32 {S_IN1}, {S_IN0}, 32768
            s_and_b32 {S_OTAG}, {S_S}, 1
            s_sub_u32 {S_NOTAG}, {S_OTAG}, 1
            """)
            if o.get('steplog') and wv == 0 and tg != 's':
                a(f's_memrealtime s[82:83]\ns_lshl_b32 s84, {S_S}, 2\ns_lshl_b32 s85, {S_RANK}, 8\ns_add_u32 s84, s84, s85\ns_add_u32 s84, s84, {hex(L.DBG + 131072)}')
                a(f's_waitcnt lgkmcnt(0)\nv_mov_b32 v{T+10}, s82\nbuffer_store_dword v{T+10}, v{V_ONE}, {WS}, s84 offen')
            if o.get('zB'):
                for r in range(AQ, AQ + 24, 2): a(f'v_mov_b64 {vr(r,2)}, 0')
            if o.get('barB'): dmf(PA); a('s_barrier')
            for i in range(o.get('dB', 8) if wv >= 2 else o.get('dB0', o.get('dB', 8))): dmf(PA + 4 * (i % 2))
        def checkB():
            if not o.get('shortchk'):
                a(f"""
                v_max3_u32 v{R}, v{M}, v{M+1}, v{M+2}
                v_max3_u32 v{R+1}, v{M+3}, v{M+4}, v{M+5}
                v_max3_u32 v{R}, v{R}, v{M+6}, v{M+7}
                v_max_u32 v{R}, v{R}, v{R+1}
                """)
            else:
                a(f'v_max_u32 v{R}, v{M}, v{M+7}')
            a(f'v_cmp_eq_u32 vcc, -1, v{R}')
        def shadowB():
            if o.get('specw', 1): a(f'ds_write_b128 v{V_X0}, {vr(M,4)}')
            else: dmf(PA); a('s_nop 2')
        preload()
        for r in range(AQ, AQ + 24, 2): a(f'v_mov_b64 {vr(r,2)}, 0')
        a(f's_xor_b32 {S_INP}, {S_INP}, 0x40000')
        a.wait(lgkm=0)
        a(f'L_Rloop_{tg}:')
        a.forget()
        a.hot = True
        a.filt = filt
        sa = lambda txt: [(4, lambda l=l: a(l)) for l in txt.strip().split('\n')]
        va = lambda lines: [(8, lambda l=l: a(l)) for l in lines]
        if True:
            chB = [(44, lambda: a(f'v_cmp_eq_u32 vcc, 0, v{V_FLAG}\ns_cbranch_vccnz {spin}\n{back}:'))]
            chB += va([f'v_mov_b64 {vr(VXC+r,2)}, {vr(VXN+r,2)}' for r in range(0, 8, 2)])
            chB += sa(f"""
            s_xor_b32 {S_INP}, {S_INP}, 0x40000
            s_cmp_lt_u32 {S_S}, 63
            s_cselect_b32 {S_T0}, {0 if o.get("nopf") else 32*24576}, 0
            s_add_u32 {S_REC}, {S_REC}, {S_T0}
            s_cmp_lt_u32 {S_S}, 62
            s_cselect_b32 {S_T0}, 2048, 0
            s_add_u32 {S_FKV}, {S_FKV}, {S_T0}
            s_cmp_ge_u32 {S_S}, 2
            s_cselect_b32 {S_T1}, {S_FM}, {hex(L.OOB)}
            s_cmp_ge_u32 {S_S}, 1
            s_cselect_b32 {S_T0}, {S_KVM}, {hex(L.OOB)}
            s_add_u32 {S_FM}, {S_FM}, 2048
            s_cmp_eq_u32 {S_S}, 62
            s_cselect_b32 {S_TAG}, {hex((L.KVL - L.KVM - 62 * 131072) & 0xFFFFFFFF) if o.get('dpoll', 1) else 0}, 0
            s_add_u32 {S_KVM}, {S_KVM}, {S_TAG}
            s_add_u32 {S_KVM}, {S_KVM}, 131072
            s_lshr_b32 {S_TAG}, {S_S}, 1
            s_and_b32 {S_TAG}, {S_TAG}, 1
            s_sub_u32 {S_NTAG}, {S_TAG}, 1
            s_add_u32 {S_IN1}, {S_IN0}, 32768
            s_and_b32 {S_OTAG}, {S_S}, 1
            s_sub_u32 {S_NOTAG}, {S_OTAG}, 1
            """)
            if o.get('steplog') and wv == 0 and tg != 's':
                chB.insert(0, (70, lambda: (a(f's_memrealtime s[82:83]\ns_lshl_b32 s84, {S_S}, 2\ns_lshl_b32 s85, {S_RANK}, 8\ns_add_u32 s84, s84, s85\ns_add_u32 s84, s84, {hex(L.DBG + 131072)}'),
                    a(f's_waitcnt lgkmcnt(0)\nv_mov_b32 v{R}, s82\nbuffer_store_dword v{R}, v{V_ONE}, {WS}, s84 offen'))))
            if not o.get('split', 1):
                self.poll2('B' + tg, M, S_MEMP, chB, o.get('tB0', 200), o.get('tB1', 180), o.get('tB2', 40), lambda: dmf(PA), checkB, shadowB)
            else:
                ld = lambda i: a(f'buffer_load_dwordx4 {vr(M+4*i,4)}, v{V_L16}, {WS}, {S_MEMP} offen offset:{1024*i} {self.pf}')
                def spend(t, flush=False):
                    while chB and (flush or chB[0][0] <= t + 4):
                        c, f = chB.pop(0); f(); t -= c
                    while t >= 12: dmf(PA); t -= 16
                def chk(i):
                    a(f'v_max3_u32 v{R}, v{M+4*i}, v{M+4*i+1}, v{M+4*i+2}\nv_max_u32 v{R}, v{R}, v{M+4*i+3}\nv_cmp_eq_u32 vcc, -1, v{R}')
                g = o.get('tBg', 32)
                if o.get('natB', 0) == 1:
                    spend(o.get('tB0', 140)); ld(0); spend(1000 if False else 30); ld(1); spend(0, flush=True)
                    a('s_waitcnt vmcnt(2)'); ld(0); ld(1)
                elif o.get('natB', 0) == 3:
                    c, f = chB.pop(0); f()
                    a('s_waitcnt vmcnt(1)'); ld(0); a('s_waitcnt vmcnt(1)'); ld(1)
                    n = len(chB) - o.get('nBg', 6)
                    for c, f in chB[:n]: f()
                    ld(0)
                    for c, f in chB[n:]: f()
                    ld(1)
                elif o.get('natB', 0) == 4:
                    n = o.get('nB0', 13)
                    for c, f in chB[:n]: f()
                    ld(0)
                    for c, f in chB[n:n + 6]: f()
                    ld(1)
                    for c, f in chB[n + 6:]: f()
                    a('s_waitcnt vmcnt(2)'); ld(0); ld(1)
                elif o.get('natB', 0) == 2:
                    spend(0, flush=True); a('s_waitcnt vmcnt(1)'); ld(0); a('s_waitcnt vmcnt(1)'); ld(1)
                    spend(o.get('tB1', 180) - 40 - g); ld(0); spend(g); ld(1)
                else:
                    spend(o.get('tB0', 150) if wv >= 2 else o.get('tB00', o.get('tB0', 150))); ld(0); spend(g); ld(1)
                    spend(o.get('tB1', 180) - 40 - g); ld(0); spend(g); ld(1)
                    spend(o.get('tB2', 40) - 40 - g, flush=True)
                a(f's_mov_b32 s23, {SPIN}\nL_pw_B{tg}:\ns_waitcnt vmcnt(3)')
                chk(0)
                a(f'ds_write_b128 v{V_X0}, {vr(M,4)}')
                S('q', 0, 0, M + 24)
                a(f's_cbranch_vccnz L_poll_B{tg}\nL_pok_B{tg}:')
                def fixB():
                    a(f'L_poll_B{tg}:\ns_sub_u32 s23, s23, 1\ns_cbranch_scc1 L_pto_B{tg}')
                    ld(0); ld(1)
                    a(f'v_mov_b64 {vr(AQ,2)}, 0\nv_mov_b64 {vr(AQ+2,2)}, 0\ns_branch L_pw_B{tg}')
                    a(f'L_pto_B{tg}:\ns_mov_b32 {SPIN}, 0x400\ns_branch L_pok_B{tg}')
                    a(f'L_pol1_B{tg}:\ns_waitcnt vmcnt(0)')
                    chk(1)
                    a(f's_cbranch_vccz L_pk1_B{tg}\ns_sub_u32 s23, s23, 1\ns_cbranch_scc1 L_pt1_B{tg}')
                    ld(1)
                    a(f's_branch L_pol1_B{tg}\nL_pt1_B{tg}:\ns_mov_b32 {SPIN}, 0x400\ns_branch L_pk1_B{tg}')
                self.fixups.append(fixB)
        if o.get('rt'): a('s_mov_b32 s84, s82')
        self.stamp(0)
        if o.get('rt'): self.dump_stamps(tg)
        wp = o.get('wpat', 5)
        ws = {0: (0, 1), 1: (1 + wv, 5 + wv), 2: (1 + 2 * (wv % 2), 2 + 2 * (wv % 2)), 3: (1 + wv % 2, 3 + wv % 2), 4: (1 + wv // 2, 3 + wv // 2),
              5: (1, 2), 6: (wv, 4 + wv), 7: (wv % 2, 2 + wv % 2), 8: (wv // 2, 2 + wv // 2)}[wp]
        wslot = [0]
        def MW():
            for i in range(2):
                if ws[i] == wslot[0] and not (i == 0 and o.get('specw', 1)): a(f'ds_write_b128 v{V_X0}, {vr(M+4*i,4)} offset:{1024*i}')
            wslot[0] += 1
        if not o.get('split', 1):
            MW()
            S('q', 0, 0, M + 24); MW()
            S('q', 0, 1, M + 16); MW()
            S('q', 1, 0, B0); MW()
            S('q', 1, 1, B1); MW()
            S('k', 0, 0, T); MW()
            S('k', 0, 1); MW()
            S('k', 1, 0); MW()
            S('k', 1, 1); MW()
        else:
            S('q', 0, 1, M + 16)
            a('s_waitcnt vmcnt(2)')
            a(f'v_max3_u32 v{R}, v{M+4}, v{M+5}, v{M+6}')
            S('k', 0, 0, T); a(f'v_max_u32 v{R}, v{R}, v{M+7}')
            S('k', 0, 1); a(f'v_cmp_eq_u32 vcc, -1, v{R}')
            V(0, 0)
            a(f's_cbranch_vccnz L_pol1_B{tg}\nL_pk1_B{tg}:')
            a(f'ds_write_b128 v{V_X0}, {vr(M+4,4)} offset:1024')
            if o.get('lastx', 1): a(f's_cmp_eq_u32 {S_S}, 63')
            S('k', 1, 0)
            if o.get('lastx', 1): a(f's_cbranch_scc1 L_Rlast_{tg}')
            lq_last = list(a.lq)
            S('q', 1, 0, B0); S('q', 1, 1, B1); S('k', 1, 1)
        a.wait_lds_writes()
        a('s_barrier')
        def MR(k): a(f'ds_read_b128 {vr(M+4*k,4)}, v{V_X0 + k//2} offset:{1024*(k%2)}')
        MR(2); MR(3)
        if not o.get('split', 1): V(0, 0)
        MR(4)
        V(0, 1); MR(5)
        V(1, 0); MR(6)
        V(1, 1); MR(7)
        VXL = lambda i: a(f'buffer_load_dwordx4 {vr(VXN+4*i,4)}, v{V_L16}, {WS}, {S_REC} offen offset:{2048+1024*i} sc1')
        self.stamp(1)
        vm_ops = [
            lambda: a(f'buffer_store_dwordx4 {vr(KMH,4)}, v{V_L16}, {WS}, {S_T0} offen sc1'),
            lambda: VXL(0),
            lambda: VXL(1),
            lambda: (a(f'buffer_store_dword v{V_F}, v{V_ONE}, {WS}, {S_T1} offen sc1'),
                     a(f'buffer_load_dword v{V_FLAG}, v{V_Z}, {WS}, {S_FKV} offen sc1')),
        ]
        slot = [0]
        first = o.get('vm0', 5)
        def X():
            i = slot[0] - first - wv
            if i == 0: a('s_waitcnt vmcnt(0)')
            if i >= 0 and i % 4 == 0 and i // 4 < len(vm_ops): vm_ops[i // 4]()
            slot[0] += 1
        S('q', 2, 0); RD(B0, 'k', 2, 1, 0); X()
        S('q', 3, 0); RD(B0, 'k', 2, 1, 1); X()
        S('q', 4, 0); RD(B1, 'k', 3, 1, 0); X()
        S('q', 5, 0); RD(B1, 'k', 3, 1, 1); X()
        S('q', 6, 0); RD(T, 'k', 4, 1, 0); X()
        S('q', 7, 0); RD(T, 'k', 4, 1, 1); X()
        S('q', 2, 1); X()
        S('q', 3, 1); X()
        S('q', 4, 1); X()
        assert slot[0] > first + wv
        S('q', 5, 1); RD(B2, 'k', 5, 1, 0); X(); add(AQ, AQ, AQ + 2)
        S('q', 6, 1); RD(B2, 'k', 5, 1, 1); X(); add(AQ + 1, AQ + 1, AQ + 3)
        S('q', 7, 1); X(); a(f'{cvt} v{AQ+2}, v{AQ}, v{AQ+1}')
        S('k', 2, 0); X()
        S('k', 2, 1, B0); RD(B0, 'k', 6, 1, 0); X()
        S('k', 3, 0); RD(B0, 'k', 6, 1, 1); X()
        S('k', 3, 1, B1); RD(B1, 'k', 7, 0, 0); X(); add(AQ + 4, AQ + 4, AQ + 6)
        S('k', 4, 0); RD(B1, 'k', 7, 0, 1); X(); add(AQ + 5, AQ + 5, AQ + 7)
        S('k', 4, 1, T); RD(T, 'k', 7, 1, 0); X(); a(f'{cvt} v{AQ+3}, v{AQ+4}, v{AQ+5}')
        S('k', 5, 0); RD(T, 'k', 7, 1, 1); X()
        a(f'{mf16} {vr(AQ+4,4)}, {vr(AQ+2,2)}, {vr(SELQ,2)}, 0'); X()
        a(f'{mf16} {vr(T+8,4)}, {vr(AQ+2,2)}, {vr(SELQ+2,2)}, 0'); X()
        S('k', 5, 1, B2); RD(B2, 'v', 6, 0, 0); X()
        S('k', 6, 0); RD(B2, 'v', 6, 0, 1)
        S('k', 7, 0, B1); RD(B1, 'v', 7, 0, 0); a(f'{cvt} v{AQ}, v{AQ+4}, v{AQ+5}')
        S('k', 6, 1, B0); RD(B1, 'v', 7, 0, 1); a(f'{cvt} v{AQ+1}, v{AQ+6}, v{AQ+7}\n{cvt} v{AQ+2}, v{T+8}, v{T+9}')
        S('k', 7, 1, T); RD(B0, 'v', 6, 1, 0); a(f'{cvt} v{AQ+3}, v{T+10}, v{T+11}')
        assert slot[0] > first + wv + 4 * (len(vm_ops) - 1)
        self.stamp(2)
        RD(B0, 'v', 6, 1, 1)
        add(AK, AK, AK + 2)
        a(f'{mf32} {vr(AQ+4,4)}, {vr(KX,4)}, {vr(AQ,4)}, 0')
        add(AK + 1, AK + 1, AK + 3)
        a(f'{cvt} v{AK+2}, v{AK}, v{AK+1}')
        a(f'{mf32} {vr(T+8,4)}, {vr(KX+4,4)}, {vr(AQ,4)}, 0')
        pkadd(AK + 4, AK + 4, AK + 6)
        a(f'{cvt} v{AK+3}, v{AK+4}, v{AK+5}')
        a(f'{mf16} {vr(AK+4,4)}, {vr(AK+2,2)}, {vr(SELK,2)}, 0')
        a(f'{mf16} {vr(T,4)}, {vr(AK+2,2)}, {vr(SELK+2,2)}, 0')
        kslot = [0]
        def KL():
            i = kslot[0] - wv
            if i in (0, 4): a(f'buffer_load_dwordx4 {vr(KX+i,4)}, v{V_L16}, {WS}, {S_REC} offen offset:{256*i} sc1')
            kslot[0] += 1
        for i in range(4): a(f'v_cndmask_b32 v{AK+i}, v{T+8+i}, v{AQ+4+i}, {S_LO}')
        a(f'{cvt} v{KMH}, v{AK+4}, v{AK+5}\n{cvt} v{KMH+1}, v{AK+6}, v{AK+7}')
        a(f'{cvt} v{KMH+2}, v{T}, v{T+1}\n{cvt} v{KMH+3}, v{T+2}, v{T+3}')
        a(f'{mf32} {vr(T+4,4)}, {vr(KMH,4)}, {vr(AQ,4)}, 0')
        V(2, 0)
        a(f'ds_write_b128 v{V_X0}, {vr(AK,4)} offset:8192')
        a(f'v_cndmask_b32 v{T+4}, v{T+5}, v{T+4}, {S_LO}')
        V(2, 1)
        a(f'ds_write_b32 v{V_SMW}, v{T+4}')
        self.stamp(3)
        B3 = M + 8
        ONES, HALF = B2, B2 + 4
        V(3, 0); KL()
        V(3, 1); RD(B3, 'v', 7, 1, 0); KL()
        V(6, 0, B2); RD(B3, 'v', 7, 1, 1); KL()
        V(6, 1, B0); KL()
        if o.get('vb', 4) > 4: V(7, 0, B1)
        a.wait_lds_writes()
        a('s_barrier')
        SX = [T + 4, T + 8, AQ + 4]
        SR = lambda x: a(f'ds_read_b128 {vr(SX[x-1],4)}, v{V_X0+x} offset:8192')
        SR(1)
        if o.get('vb', 4) <= 4: V(7, 0, B1)
        SR(2); SR(3)
        V(4, 0); a(f'ds_read_b128 {vr(T,4)}, v{V_F} offset:1024'); a(f'v_mov_b64 {vr(ONES,2)}, s[26:27]')
        V(4, 1); KL(); a(f'v_mov_b64 {vr(ONES+2,2)}, s[26:27]')
        V(5, 0); KL(); a(f'v_mov_b64 {vr(HALF,2)}, s[8:9]')
        V(7, 1, B3); KL()
        V(5, 1); KL()
        WOS = lambda i, hh: a(f'ds_read_b128 {vr(WVB+8*i+4*hh,4)}, v{V_X0} offset:{16384+8192*i+1024*hh}')
        zs = list(range(M + 16, M + 32, 2))
        def Z(n):
            for _ in range(n): a(f'v_mov_b64 {vr(zs.pop(0),2)}, 0')
        self.stamp(4)
        pkadd(AK, AK, SX[0]); pkadd(AK + 2, AK + 2, SX[0] + 2)
        PK(SX[1], SX[1], SX[2]); PK(SX[1] + 2, SX[1] + 2, SX[2] + 2)
        PK(T, T, T + 2)
        PK(AK, AK, SX[1]); PK(AK + 2, AK + 2, SX[1] + 2)
        add(T, T, T + 1)
        mx, t2 = T + 2, T + 3
        a(f'v_max3_f32 v{mx}, v{AK}, v{AK+1}, v{AK+2}\nv_max3_f32 v{mx}, v{mx}, v{AK+3}, v{T}')
        PK(AV, AV, AV + 2); PK(AV + 4, AV + 4, AV + 6)
        a(f'v_max_f32_dpp v{t2}, v{mx}, v{mx} {QP}\nv_max_f32_dpp v{mx}, v{mx}, v{mx} {QP}')
        a(f'{cvt} v{AV+2}, v{AV}, v{AV+1}\n{cvt} v{AV+3}, v{AV+4}, v{AV+5}')
        a(f'v_permlane16_swap_b32 v{mx}, v{t2}\nv_max_f32 v{T+1}, v{mx}, v{t2}\nv_max_f32 v{mx}, v{mx}, v{t2}')
        a(f'{mf16} {vr(AV+4,4)}, {vr(SELV,2)}, {vr(AV+2,2)}, 0')
        WOS(0, 0)
        a(f'v_permlane32_swap_b32 v{mx}, v{T+1}\nv_max_f32 v{mx}, v{mx}, v{T+1}\nv_mul_f32 v{mx}, {S_SC}, v{mx}')
        E = [AK, AK + 1, AK + 2, AK + 3, T]
        for e in E: a(f'v_fma_f32 v{e}, v{e}, {S_SC}, -v{mx}')
        for e in E: a(f'v_exp_f32 v{e}, v{e}')
        BX, PM = AQ, T + 6
        a(f'{cvt} v{T+8}, v{AK}, v{AK+1}\n{cvt} v{T+9}, v{AK+2}, v{AK+3}')
        a(f"""
        v_cndmask_b32 v{BX}, 0, v{T+8}, {S_LO}
        v_cndmask_b32 v{BX+1}, 0, v{T+9}, {S_LO}
        v_cndmask_b32 v{BX+2}, v{T+8}, 0, {S_LO}
        v_cndmask_b32 v{BX+3}, v{T+9}, 0, {S_LO}
        v_mov_b32_dpp v{T+1}, v{T} {QP}
        {cvt} v{VMH}, v{AV+4}, v{AV+5}
        """)
        D, D2, DL = AQ + 4, AK + 4, T + 8
        a(f'{mf32} {vr(DL,4)}, {vr(ONES,4)}, {vr(BX,4)}, 0')
        WOS(0, 1)
        a(f'{cvt} v{T+4}, v{T}, v{T+1}\n{cvt} v{T+5}, v{T+1}, v{T}')
        a(f'{mf32} {vr(D2,4)}, {vr(VXC+4,4)}, {vr(BX,4)}, 0')
        WOS(1, 0)
        a(f'v_cndmask_b32 v{PM}, 0, v{T+4}, {S_LO}\nv_cndmask_b32 v{PM+1}, v{T+5}, 0, {S_LO}')
        a(f'{mf32} {vr(D,4)}, {vr(VXC,4)}, {vr(BX,4)}, 0')
        WOS(1, 1)
        a(f'{cvt} v{VMH+1}, v{AV+6}, v{AV+7}')
        a(f'{mf16} {vr(DL,4)}, {vr(HALF,2)}, {vr(PM,2)}, {vr(DL,4)}')
        Z(1)
        a(f'{mf16} {vr(D,4)}, {vr(VMH,2)}, {vr(PM,2)}, {vr(D,4)}')
        Z(o.get('zpv', 5))
        l = DL + 1
        a(f'v_add_f32_dpp v{l}, v{DL}, v{DL} {QP}\nv_rcp_f32 v{l}, v{l}')
        for i in range(4): a(f'v_add_f32_dpp v{D+i}, v{D2+i}, v{D+i} {QP}')
        for i in (0, 2): a(f'v_pk_mul_f32 {vr(D+i,2)}, {vr(D+i,2)}, {vr(l-1,2)} op_sel:[0,1] op_sel_hi:[1,1]')
        a(f'{cvt} v{T}, v{D}, v{D+1}\n{cvt} v{T+1}, v{D+2}, v{D+3}')
        a(f'v_and_or_b32 v{T}, v{T}, -2, {S_OTAG}')
        self.stamp(5)
        a(f'ds_write_b64 v{V_OW}, {vr(T,2)}')
        if not (o.get('lastx', 1) and o.get('split', 1)): a(f's_cmp_eq_u32 {S_S}, 63\ns_cbranch_scc1 L_Rtail_{tg}')
        else: a('s_nop 2')
        OA = AK
        WA = M + 16
        def oread():
            for k in range(4): a(f'ds_read_b128 {vr(OA+4*k,4)}, v{V_OR} offset:{(k//2)*2048 + (k%2)*512}')
        oc = [f'v_bitop3_b32 v{T+2+k}, v{OA+4*k}, v{OA+4*k+2}, {S_NOTAG} bitop3:0x42' for k in range(4)] + \
             [f'v_bitop3_b32 v{T+2}, v{T+2}, v{T+3}, v{T+4} bitop3:0x80', f'v_bitop3_b32 v{T+2}, v{T+2}, v{T+5}, 1 bitop3:0x80', f'v_cmp_eq_u32 vcc, 0, v{T+2}']
        Z(len(zs))
        for _ in range(o.get('z3', 3)): a('s_nop 1')
        oread()
        for _ in range(o.get('z4', 2)): dmf(M)
        self.stamp(6)
        def wo(t, k):
            fr = WVB + 8 * WO_SPILL.index((t, k)) if (t, k) in WO_SPILL else wo_frag(t, k)
            self.smf(WA + 4 * t, OA + 4 * k, vr(fr, 8))
        def fc(t): a(f'{cvt} v{AQ+2*t}, v{WA+4*t}, v{WA+4*t+1}\n{cvt} v{AQ+2*t+1}, v{WA+4*t+2}, v{WA+4*t+3}')
        def tagit(r): a(f'v_and_or_b32 v{r}, v{r}, -2, {S_TAG}')
        hint = o.get('hint', 0) and not cf
        hp_ = o.get('hpos', 6)
        cnt = [0]
        def H():
            if hint and cnt[0] == hp_: a(f'buffer_store_dword v{T+6}, v{V_ONE}, {WS}, {S_HST} offen')
            cnt[0] += 1
        if hint: a(f's_add_u32 {S_S1}, {S_S}, 1\nv_mov_b32 v{T+6}, {S_S1}')
        a(f'L_wo_{tg}:')
        if not o.get('early0', 1):
            for k in range(4):
                wo(0, k); H(); a(oc[k]) if k < 3 else None
                wo(1, k); H()
                if k == 3: a(oc[3])
            wo(2, 0); H(); a(oc[4])
            wo(3, 0); H(); a(oc[5])
            wo(2, 1); H(); a(oc[6])
            wo(3, 1); H(); fc(0)
            wo(2, 2); H(); fc(1)
            a(f's_cbranch_vccnz L_ofix_{tg}')
            wo(3, 2); H(); tagit(AQ)
            wo(2, 3)
            a(f'buffer_store_dwordx4 {vr(AQ,4)}, v{V_IST}, {WS}, {S_IN0} offen {cf}')
            wo(3, 3)
        else:
            for k in range(4):
                wo(0, k); a(oc[2 * k])
                wo(1, k)
                if k < 3: a(oc[2 * k + 1])
            wo(2, 0)
            a(f's_cbranch_vccnz L_ofix_{tg}')
            wo(3, 0); fc(0)
            wo(2, 1); fc(1)
            wo(3, 1); tagit(AQ)
            a(f'buffer_store_dwordx4 {vr(AQ,4)}, v{V_IST}, {WS}, {S_IN0} offen {cf}')
            wo(2, 2); wo(3, 2); wo(2, 3); wo(3, 3)
        fc(2); tagit(AQ + 4); fc(3)
        a(f'buffer_store_dwordx4 {vr(AQ+4,4)}, v{V_IST}, {WS}, {S_IN1} offen {cf}')
        def fix():
            a(f'L_ofix_{tg}:\ns_mov_b32 s23, {SPIN}\nL_ofix2_{tg}:')
            a.forget(vm=False)
            oread(); a.wait(lgkm=0)
            for x in oc: a(x)
            a(f's_cbranch_vccz L_ofix3_{tg}\ns_sub_u32 s23, s23, 1\ns_cbranch_scc0 L_ofix2_{tg}\ns_endpgm\nL_ofix3_{tg}:')
            for r in range(WA, WA + 16, 2): a(f'v_mov_b64 {vr(r,2)}, 0')
            a(f's_branch L_wo_{tg}')
        self.fixups.append(fix)
        self.stamp(7)
        def pack_kvm():
            a(f's_mov_b64 vcc, {S_LO}')
            for i in range(4):
                qp = '[0,0,0,2]' if i < 2 else '[0,0,1,3]'
                a(f'v_cndmask_b32_dpp v{KMH+i}, v{VMH+i%2}, v{KMH+i}, vcc quad_perm:{qp} row_mask:0xf bank_mask:0xf')
        self.pack_kvm = pack_kvm
        def preA():
            a(f"""
            v_mov_b32 v{PA}, {S_NTAG}
            v_mov_b32 v{PA+4}, {S_NTAG}
            """)
            for i in range(o.get('dA', 4) if wv >= 2 else o.get('dA0', o.get('dA', 4))): dmf(R)
        def slackA():
            preload()
            pack_kvm()
            a(f"""
            s_add_u32 {S_S}, {S_S}, 1
            s_xor_b32 {S_IN0}, {S_IN0}, 0x40000
            s_and_b32 {S_T0}, {S_S}, 3
            s_lshl_b32 {S_T0}, {S_T0}, 13
            v_mov_b64 {vr(M,2)}, -1
            s_andn2_b32 {S_PUBB}, {S_PUBB}, 0x6000
            s_andn2_b32 {S_MEMP}, {S_MEMP}, 0x6000
            v_mov_b64 {vr(M+2,2)}, -1
            s_or_b32 {S_MEMP}, {S_MEMP}, {S_T0}
            s_xor_b32 {S_RST}, {S_T0}, 0x4000
            v_mov_b64 {vr(M+4,2)}, -1
            s_or_b32 {S_RST}, {S_RST}, {S_PUBB}
            s_or_b32 {S_PUBB}, {S_PUBB}, {S_T0}
            v_mov_b64 {vr(M+6,2)}, -1
            """)
            if not o.get('zB'):
                for r in range(AQ, AQ + 24, 2): a(f'v_mov_b64 {vr(r,2)}, 0')
            a.wait(lgkm=0)
        def checkA():
            a(f"""
            v_bitop3_b32 v{VXC}, v{PA}, v{PA+4}, {S_NTAG} bitop3:0x42
            v_and_b32 v{VXC}, 1, v{VXC}
            v_cmp_eq_u32 vcc, 0, v{VXC}
            """)
        def shadowA():
            a(f'v_smfmac_f32_16x16x64_bf16 {vr(R,4)}, {vr(SELR,4)}, {vr(PA,8)}, v{V_IDX} abid:1')
        if True:
            pl = [(M + 24, 'q', 0, 0), (M + 16, 'q', 0, 1), (B0, 'q', 1, 0), (B1, 'q', 1, 1), (T, 'k', 0, 0)]
            chA = [(40, pack_kvm)]
            chA += sa(f"""
            s_add_u32 {S_S}, {S_S}, 1
            s_xor_b32 {S_IN0}, {S_IN0}, 0x40000
            s_and_b32 {S_T0}, {S_S}, 3
            s_lshl_b32 {S_T0}, {S_T0}, 13
            s_andn2_b32 {S_PUBB}, {S_PUBB}, 0x6000
            s_andn2_b32 {S_MEMP}, {S_MEMP}, 0x6000
            s_or_b32 {S_MEMP}, {S_MEMP}, {S_T0}
            s_xor_b32 {S_RST}, {S_T0}, 0x4000
            s_or_b32 {S_RST}, {S_RST}, {S_PUBB}
            s_or_b32 {S_PUBB}, {S_PUBB}, {S_T0}
            """)
            zz = [f'v_mov_b64 {vr(r,2)}, 0' for r in range(AQ, AQ + 24, 2)] + [f'v_mov_b32 v{M}, -1']
            for k in range(10):
                chA.append((16, lambda k=k: (RD(*pl[k // 2], k % 2), a(zz[k]))))
            chA += va(zz[10:])
            chA.append((4, lambda: a.wait(lgkm=0)))
            zr = lambda: a(f'v_mov_b64 {vr(R,2)}, 0\nv_mov_b64 {vr(R+2,2)}, 0')
            chA.append((16, zr))
            if hint:
                HV, HD = VXC + 1, VXC + 2
                a(f'v_lshrrev_b32 v{HV}, 2, v{V_L16}\nv_and_b32 v{HV}, 0x7f, v{HV}\nv_mov_b32 v{HD}, 0')
                hl = lambda: a(f'buffer_load_dword v{HD}, v{HV}, {WS}, {S_HLD} offen sc1')
                def spendh(t):
                    while chA and chA[0][0] <= t + 4:
                        c, f = chA.pop(0); f(); t -= c
                    while t >= 12: dmf(VXC + 4); t -= 16
                nh = o.get('hdep', 4)
                for k in range(nh - 1): hl(); spendh(o.get('hq', 48) - 8)
                a(f's_mov_b32 s23, {SPIN}\nL_hp_{tg}:')
                hl()
                a(f'v_cmp_gt_u32 vcc, {S_S1}, v{HD}\ns_sub_u32 s23, s23, 1\ns_cbranch_scc1 L_hk_{tg}\ns_cbranch_vccnz L_hp_{tg}\nL_hk_{tg}:')
            self.poll2('A' + tg, PA, S_INP, chA, o.get('hdel', 0) if hint else (o.get('tA0', 230) if wv >= 2 else o.get('tA00', o.get('tA0', 230))), o.get('tA1', 180) if wv >= 2 else o.get('tA10', o.get('tA1', 180)), o.get('tA2', 40) if wv >= 2 else o.get('tA20', o.get('tA2', 40)), lambda: dmf(VXC + 4), checkA, shadowA, retry=zr,
                       depth=o.get('dpA', 2) if wv >= 2 else o.get('dpA0', o.get('dpA', 2)), nat=o.get('natA', 0))
        self.stamp(8)
        hp = ''
        a(f"""
        {'s_nop 1' + chr(10) + a.dummy + chr(10) + 's_nop 0' if hp else ''}
        v_add_f32_dpp v{R}, v{R}, v{R} row_ror:8 row_mask:0xf bank_mask:0x3 {hp}
        v_add_f32_dpp v{R+1}, v{R+1}, v{R+1} row_ror:8 row_mask:0xf bank_mask:0x3 {hp}
        v_add_f32_dpp v{R}, v{R+2}, v{R+2} row_ror:8 row_mask:0xf bank_mask:0xc {hp}
        v_add_f32_dpp v{R+1}, v{R+3}, v{R+3} row_ror:8 row_mask:0xf bank_mask:0xc {hp}
        v_add_f32_dpp v{R}, v{R}, v{R} row_ror:12 row_mask:0xf bank_mask:0xf
        v_add_f32_dpp v{R+1}, v{R+1}, v{R+1} row_ror:12 row_mask:0xf bank_mask:0xf
        {cvt} v{R+2}, v{R}, v{R+1}
        buffer_store_dword v{R+2}, v{V_PUB}, {WS}, {S_PUBB} offen {cf}
        """)
        self.stamp(9)
        a(f'buffer_store_dword v{M}, v{V_PUB}, {WS}, {S_RST} offen {cf}')
        if o.get('span2') and wv == 0:
            lab = a.newlabel('n8')
            a(f's_cmp_lg_u32 {S_S}, 8\ns_cbranch_scc1 {lab}')
            self.note(5, T + 10)
            a(f'{lab}:')
        if not o.get('rt'): self.dump_stamps(tg)
        a(f's_branch L_Rloop_{tg}')
        a.hot = False
        a(f'{spin}:')
        self.spin_flag(V_FLAG, f'v{V_Z}', S_FKV)
        a(f's_branch {back}')
        for txt, sh in zip(self.late, self.late_sh):
            pre, post = txt.split('@SH@')
            a(pre); a('s_nop 7'); sh(); a('s_nop 7'); a(post)
        for f in self.fixups: f()
        if o.get('lastx', 1) and o.get('split', 1):
            a(f'L_Rlast_{tg}:')
            a.lq = list(lq_last)
            RD2(B0, 'k', 2, 1); S('k', 1, 1); RD2(B1, 'k', 3, 1); V(0, 1); RD2(T, 'k', 4, 1); V(1, 0); V(1, 1)
            a.wait(lgkm=6)
            a('s_barrier')
            for k in range(2, 8): MR(k)
            a('s_waitcnt vmcnt(0)')
            a(f'buffer_store_dwordx4 {vr(KMH,4)}, v{V_L16}, {WS}, {S_T0} offen sc1')
            a(f'buffer_store_dword v{V_F}, v{V_ONE}, {WS}, {S_T1} offen sc1')
            RD2(B2, 'k', 5, 1)
            rest = [('k', 6, 1), ('k', 7, 0), ('k', 7, 1), ('v', 6, 0), ('v', 6, 1), ('v', 7, 0), ('v', 7, 1)]
            ring = [(B0, ('k', 2, 1)), (B1, ('k', 3, 1)), (T, ('k', 4, 1)), (B2, ('k', 5, 1))]
            regf = [('k', k, 0) for k in range(2, 7)] + [('v', k, p) for k in range(2, 6) for p in range(2)]
            while ring:
                if regf: S(*regf.pop(0))
                b, f = ring.pop(0)
                S(*f, b)
                if rest:
                    f = rest.pop(0); RD2(b, *f); ring.append((b, f))
                if f == ('v', 6, 1) and not rest[2:] and False: pass
            for f in regf: S(*f)
            for x, r in ((AK, SELK), (AV, None)):
                pkadd(x, x, x + 2); pkadd(x + 4, x + 4, x + 6)
                a(f'{cvt} v{x+2}, v{x}, v{x+1}\n{cvt} v{x+3}, v{x+4}, v{x+5}')
            a(f'{mf16} {vr(AK+4,4)}, {vr(AK+2,2)}, {vr(SELK,2)}, 0\n{mf16} {vr(T,4)}, {vr(AK+2,2)}, {vr(SELK+2,2)}, 0')
            a(f'{mf16} {vr(AV+4,4)}, {vr(SELV,2)}, {vr(AV+2,2)}, 0')
            a(f'{cvt} v{KMH}, v{AK+4}, v{AK+5}\n{cvt} v{KMH+1}, v{AK+6}, v{AK+7}\n{cvt} v{KMH+2}, v{T}, v{T+1}\n{cvt} v{KMH+3}, v{T+2}, v{T+3}')
            a(f'{cvt} v{VMH}, v{AV+4}, v{AV+5}\n{cvt} v{VMH+1}, v{AV+6}, v{AV+7}')
        a(f'L_Rtail_{tg}:')
        a.forget()
        self.pack_kvm()
        a(f'''
        buffer_store_dwordx4 {vr(KMH,4)}, v{V_L16}, {WS}, {S_KVM} offen sc1
        s_waitcnt vmcnt(0) lgkmcnt(0)
        buffer_store_dword v{V_F}, v{V_ONE}, {WS}, {S_FM} offen sc1
        buffer_store_dword v{V_F}, v{V_ONE}, {WS}, {S_FM} offen offset:2048 sc1
        ''')
        self.tstamp(6, T + 4)
        self.note(6, T + 4)
        if o.get('stamp'):
            set_srd(a, 12, P_DBG, 256)
            a(f'''
            s_memtime s[82:83]
            s_memrealtime s[84:85]
            s_waitcnt lgkmcnt(0)
            s_sub_u32 s82, s82, s80
            s_sub_u32 s84, s84, s30
            s_sub_u32 s28, s28, s30
            v_mov_b32 v{T}, s82
            v_mov_b32 v{T+1}, {S_FAST}
            v_mov_b32 v{T+2}, s28
            v_mov_b32 v{T+3}, s84
            v_mov_b32 v{T+4}, 16
            buffer_store_dwordx4 {vr(T,4)}, v{T+4}, {ST}, 0 offen
            ''')
        a('s_endpgm')
        a.auto_vm = True
```

```python
import sys, math
from asmlib import Asm
import layout as L

KNAME = 'gated_mix__memory_aug_recurrent_mem_tr__sliding_local_dilated__prompt_kernel'

from gen_common import *

DOC = '''; One persistent launch, one workgroup (4 waves x 512 registers, all LDS) per CU, roles by team (= compute die) and slot:
; All cross-workgroup hand-offs are cleared in-launch (start-up barrier in d_debug); every wait is bounded.
'''

class Gen:
    def __init__(self, opt):
        self.o = opt
        self.a = Asm()

    def prologue(self):
        a = self.a; o = self.o
        a(f'''
        s_cmp_ge_u32 s2, 256
        s_cbranch_scc1 L_exit
        {'s_memrealtime s[30:31]' if (o.get('stamp') or o.get('span') or o.get('span2') or o.get('lite')) else ''}
        s_load_dwordx16 s[32:47], s[0:1], 0
        s_load_dwordx8 s[48:55], s[0:1], 64
        s_load_dwordx4 s[56:59], s[0:1], 96
        s_getreg_b32 s20, hwreg(HW_REG_XCC_ID)
        v_lshrrev_b32 v1, 6, v0
        s_and_b32 s20, s20, 7
        v_readfirstlane_b32 {S_W}, v1
        s_mov_b32 {SPIN}, 0x400000
        ''')
        if o.get('fake_xcc'):
            a('s_and_b32 s20, s2, 1\ns_add_u32 s20, s20, 1')
        if o.get('fake_perm'):
            a('s_xor_b32 s2, s2, 0x55\ns_lshl_b32 s21, s2, 3\ns_lshr_b32 s2, s2, 5\ns_or_b32 s2, s2, s21\ns_and_b32 s2, s2, 255')
        a.wait(lgkm=0)
        if o.get('touch'):
            MBy = 1 << 20
            touch = [(p, off) for p in (P_WO, P_WQ, P_WK, P_WV) for off in (0, 2 * MBy, 4 * MBy - 128)]
            touch += [(P_X, 2 * MBy - 128), (P_GATE, 0), (P_MEM0, 0), (P_WQKV, 0), (P_WQKV, 512 * 3072 - 128), (P_WOB, 0), (P_DBG, 0)]
            touch += [(P_WS, L.GATE + 16384), (P_WS, L.RIN + MBy), (None, 0)]
            a(f'v_mov_b32 v30, s{P_X}\nv_mov_b32 v31, s{P_X+1}')
            for i, (p, off) in enumerate(touch):
                if p is None: a('s_getpc_b64 s[22:23]\ns_add_u32 s22, s22, 0x8000\ns_addc_u32 s23, s23, 0')
                elif off: a(f's_add_u32 s22, s{p}, {hex(off)}\ns_addc_u32 s23, s{p+1}, 0')
                lo, hi = ('s22', 's23') if (off or p is None) else (f's{p}', f's{p+1}')
                a(f'v_writelane_b32 v30, {lo}, {i+1}\nv_writelane_b32 v31, {hi}, {i+1}')
            a('global_load_dword v29, v[30:31], off')
        set_srd(a, 4, P_WS, L.WS_BYTES)
        set_srd(a, 12, P_DBG, 256)
        a(f'''
        s_mul_i32 s21, s20, 24
        s_add_u32 s21, s21, 40
        s_cmp_eq_u32 s20, 0
        s_cselect_b32 s21, 0, s21
        s_mov_b32 s29, s21
        s_lshr_b32 {S_RANK}, s2, 3
        {'s_xor_b32 %s, %s, %d' % (S_RANK, S_RANK, o.get('hx')) if o.get('hx') else ''}
        s_lshl_b32 s28, 1, {S_RANK}
        s_mov_b32 {S_TEAM}, s20
        s_mov_b32 s19, 0
        v_mov_b32 v2, s21
        v_mov_b32 v63, s28
        v_cmp_ne_u32 vcc, 0, v0
        v_mov_b32 v4, {hex(L.OOB)}
        v_cndmask_b32 v2, v2, v4, vcc
        ''')
        a(f'buffer_atomic_or v63, v2, {ST}, 0 offen sc0')
        set_srd(a, 8, P_X, 2048 * 1024)
        a(f'''
        v_and_b32 v5, 63, v0
        v_lshlrev_b32 v5, 4, v5
        s_lshl_b32 s22, s2, 13
        s_lshl_b32 s23, {S_W}, 11
        s_add_u32 s22, s22, s23
        buffer_load_dwordx4 v[8:11], v5, {SA}, s22 offen
        buffer_load_dwordx4 v[12:15], v5, {SA}, s22 offen offset:1024
        ''')
        set_srd(a, 24, P_GATE, 1024)
        a(f'buffer_load_dwordx4 v[16:19], v5, s[24:27], 0 offen')
        a(f'''
        v_mov_b32 v20, -1
        v_mov_b32 v21, -1
        v_mov_b32 v22, -1
        v_mov_b32 v23, -1
        v_mov_b32 v24, 0
        v_mov_b32 v25, 0
        v_mov_b32 v26, 0
        v_mov_b32 v27, 0
        v_lshlrev_b32 v6, 4, v0
        s_lshl_b32 s22, s2, 12
        s_add_u32 s22, s22, {hex(L.RIN)}
        buffer_store_dwordx4 v[20:23], v6, {WS}, s22 offen sc1
        v_cmp_le_u32 vcc, 0x80, v0
        s_lshl_b32 s22, s2, 11
        s_add_u32 s22, s22, {hex(L.FLG)}
        v_cndmask_b32 v7, v6, v4, vcc
        ''')
        if o.get('keep_kv_flags'):
            a(f's_cmp_lt_u32 s2, 64\ns_cselect_b32 s22, {hex(L.OOB)}, s22')
        a(f'buffer_store_dwordx4 v[24:27], v7, {WS}, s22 offen sc1')
        self.vq_role = list(a.vq)
        a('L_role_ok:')
        a(f's_cmp_eq_u32 {S_TEAM}, 0\ns_cbranch_scc1 L_R')
        a('s_branch L_worker')

    def confirm_role(self):
        a = self.a
        ok = a.newlabel('cf'); sk = a.newlabel('cfs')
        a(f's_cmp_eq_u32 s19, 1\ns_cbranch_scc1 {ok}')
        a(f'v_mov_b32 v62, {L.LDS_BYTES - 32}\ns_cmp_lg_u32 {S_W}, 0\ns_cbranch_scc1 {sk}')
        sv = list(a.vq)
        a('v_readfirstlane_b32 s21, v63\nv_mov_b32 v63, s21\nds_write_b32 v62, v63')
        a.wait(lgkm=0)
        a.vq = sv
        a(f'{sk}:\ns_barrier\nds_read_b32 v61, v62')
        a(f'v_readfirstlane_b32 s21, v61\ns_mov_b32 s19, 1\ns_and_b32 s22, s21, s28\ns_cbranch_scc1 L_reclaim\n{ok}:')

    def reclaim(self):
        a = self.a
        a.auto_vm = False
        set_srd(a, 12, P_DBG, 256)
        a(f"""
        L_reclaim:
        s_waitcnt vmcnt(0)
        s_barrier
        s_mov_b32 s12, s{P_DBG}
        s_mov_b32 s13, s{P_DBG+1}
        s_mov_b32 s14, 256
        s_mov_b32 s15, 0x20000
        v_mov_b32 v4, {hex(L.OOB)}
        v_cmp_ne_u32 vcc, 0, v0
        s_cmp_lg_u32 {S_W}, 0
        s_cbranch_scc1 L_rc_done
        v_mov_b32 v2, s29
        v_cndmask_b32 v2, v2, v4, vcc
        v_mov_b32 v63, 1
        buffer_atomic_add v63, v2, {ST}, 0 offen offset:8 sc0
        v_and_b32 v2, 7, v0
        v_mul_u32_u24 v61, 24, v2
        v_add_u32 v61, 40, v61
        v_cmp_eq_u32 vcc, 0, v2
        v_cndmask_b32 v61, v61, v2, vcc
        s_waitcnt vmcnt(0)
        v_readfirstlane_b32 s28, v63
        s_mov_b32 s21, {SPIN}
        L_ov_poll:
        buffer_load_dword v60, v61, {ST}, 0 offen sc1
        buffer_load_dword v63, v61, {ST}, 0 offen offset:8 sc1
        s_waitcnt vmcnt(0)
        s_mov_b32 s22, 0
        """)
        for x in range(8): a(f'v_readlane_b32 s{64+x}, v60, {x}\nv_readlane_b32 s{72+x}, v63, {x}')
        a('s_nop 1')
        for x in range(8): a(f's_bcnt1_i32_b32 s23, s{64+x}\ns_add_u32 s22, s22, s23\ns_add_u32 s22, s22, s{72+x}')
        a(f"""
        s_cmp_ge_u32 s22, 256
        s_cbranch_scc1 L_ov_have
        s_sub_u32 s21, s21, 1
        s_cbranch_scc1 L_ov_none
        s_sleep 4
        s_branch L_ov_poll
        L_ov_have:
        s_mov_b32 s22, 0
        """)
        for x in range(8):
            a(f"""
            s_bcnt0_i32_b32 s{80+x}, s{64+x}
            s_cmp_eq_u32 s20, {x}
            s_cselect_b32 s21, s{64+x}, s21
            s_cselect_b32 s29, s{80+x}, s29
            s_max_u32 s23, s{72+x}, s{80+x}
            s_sub_u32 s23, s23, s{80+x}
            s_cmp_gt_u32 s20, {x}
            s_cselect_b32 s23, s23, 0
            s_add_u32 s22, s22, s23
            """)
        a(f's_cmp_lt_u32 s28, s29\ns_cbranch_scc1 L_ov_bit\ns_sub_u32 s28, s28, s29\ns_add_u32 s22, s22, s28')
        for x in range(8):
            a(f"""
            s_max_u32 s23, s{80+x}, s{72+x}
            s_sub_u32 s23, s23, s{72+x}
            s_mov_b32 {S_TEAM}, {x}
            s_mov_b32 s21, s{64+x}
            s_add_u32 s28, s{72+x}, s22
            s_cmp_lt_u32 s22, s23
            s_cbranch_scc1 L_ov_bit
            s_sub_u32 s22, s22, s23
            """)
        a(f"""
        L_ov_none:
        s_mov_b32 {S_TEAM}, 8
        s_mov_b32 {S_RANK}, 0
        s_branch L_rc_have
        L_ov_bit:
        s_ff0_i32_b32 {S_RANK}, s21
        s_and_b32 {S_RANK}, {S_RANK}, 31
        s_bitset1_b32 s21, {S_RANK}
        s_sub_u32 s28, s28, 1
        s_cbranch_scc0 L_ov_bit
        L_rc_have:
        s_lshl_b32 s21, {S_TEAM}, 5
        s_add_u32 s21, s21, {S_RANK}
        v_mov_b32 v63, s21
        ds_write_b32 v62, v63
        s_waitcnt lgkmcnt(0)
        L_rc_done:
        s_barrier
        ds_read_b32 v63, v62
        s_waitcnt lgkmcnt(0)
        v_readfirstlane_b32 s21, v63
        s_nop 0
        s_lshr_b32 {S_TEAM}, s21, 5
        s_and_b32 {S_RANK}, s21, 31
        s_cmp_lt_u32 {S_TEAM}, 8
        s_cbranch_scc1 L_role_ok
        """)
        a.forget(); a.auto_vm = True

    def gate_and_store(self, tmp=28):
        a = self.a
        a('v_mov_b32 v20, 0\nv_mov_b32 v21, 0')
        for i in range(4):
            a(f'v_dot2c_f32_bf16 v20, v{8+i}, v{16+i}\nv_dot2c_f32_bf16 v21, v{12+i}, v{16+i}')
        a('s_nop 2')
        a('v_permlane32_swap_b32 v20, v21\nv_add_f32 v20, v20, v21')
        a('v_mov_b32 v21, v20\nv_permlane16_swap_b32 v20, v21\nv_add_f32 v20, v20, v21')
        for sh in (8, 4, 2, 1):
            a(f'v_add_f32_dpp v20, v20, v20 row_ror:{sh} row_mask:0xf bank_mask:0xf')
        a(f'''
        v_mul_f32 v20, 0xbfb8aa3b, v20
        v_exp_f32 v20, v20
        v_add_f32 v20, 1.0, v20
        v_rcp_f32 v20, v20
        v_and_b32 v21, 63, v0
        v_lshrrev_b32 v22, 5, v21
        v_lshlrev_b32 v22, 2, v22
        v_and_b32 v21, 31, v21
        v_cmp_ne_u32 vcc, 0, v21
        v_mov_b32 v23, {hex(L.OOB)}
        v_cndmask_b32 v22, v22, v23, vcc
        s_lshl_b32 s22, s2, 5
        s_lshl_b32 s23, {S_W}, 3
        s_add_u32 s22, s22, s23
        s_add_u32 s22, s22, {hex(L.GATE)}
        buffer_store_dword v20, v22, {WS}, s22 offen sc1
        ''')

    def signal_init(self, tid=0, t=20, barrier=True):
        a = self.a
        lab = a.newlabel('sig')
        set_srd(a, 12, P_DBG, 256)
        if barrier: a('s_barrier')
        a(f'''
        s_cmp_lg_u32 {S_W}, 0
        s_cbranch_scc1 {lab}
        s_and_b32 s21, s2, 3
        s_lshl_b32 s21, s21, 6
        s_add_u32 s21, s21, 60
        v_mov_b32 v{t}, s21
        v_mov_b32 v{t+1}, 1
        v_mov_b32 v{t+2}, {hex(L.OOB)}
        v_and_b32 v{t+3}, 63, v{tid}
        v_cmp_ne_u32 vcc, 0, v{t+3}
        v_cndmask_b32 v{t}, v{t}, v{t+2}, vcc
        buffer_atomic_add v{t+1}, v{t}, {ST}, 0 offen
        {lab}:
        ''')

    def wait_init(self, t0=20, tid=0, sleep=16):
        a = self.a
        lab = a.newlabel('wi'); ok = a.newlabel('wiok')
        set_srd(a, 12, P_DBG, 256)
        sv = a.auto_vm; a.auto_vm = False
        a(f'''
        v_and_b32 v{t0}, 3, v{tid}
        v_lshlrev_b32 v{t0}, 6, v{t0}
        v_add_u32 v{t0}, 60, v{t0}
        s_mul_i32 s21, {S_TEAM}, 24
        s_add_u32 s21, s21, 40
        s_cmp_eq_u32 {S_TEAM}, 0
        s_cselect_b32 s21, 0, s21
        v_and_b32 v{t0+2}, 1, v{tid}
        v_lshl_add_u32 v{t0+2}, v{t0+2}, 3, s21
        s_mov_b32 s23, {SPIN}
        {lab}:
        buffer_load_dword v{t0+1}, v{t0}, {ST}, 0 offen sc1
        buffer_load_dword v{t0+3}, v{t0+2}, {ST}, 0 offen sc1
        s_waitcnt vmcnt(0)
        v_readlane_b32 s22, v{t0+3}, 1
        v_readlane_b32 s84, v{t0+1}, 0
        v_readlane_b32 s85, v{t0+1}, 1
        v_readlane_b32 s86, v{t0+1}, 2
        v_readlane_b32 s87, v{t0+1}, 3
        v_readlane_b32 s21, v{t0+3}, 0
        s_nop 1
        s_bcnt1_i32_b32 s21, s21
        s_add_u32 s21, s21, s22
        s_add_u32 s84, s84, s85
        s_add_u32 s86, s86, s87
        s_add_u32 s84, s84, s86
        s_cmp_ge_u32 s84, 256
        s_cbranch_scc1 {ok}
        s_sleep {sleep}
        s_sub_u32 s23, s23, 1
        s_cbranch_scc0 {lab}
        {ok}:
        ''')
        a.auto_vm = sv
        a.forget()

    def tstamp(self, i, t):
        if not (self.o.get('stamp') or (self.o.get('lite') and i == 6)): return
        a = self.a
        lab = a.newlabel('ts')
        a(f'''
        s_cmp_lg_u32 {S_W}, 0
        s_cbranch_scc1 {lab}
        s_memrealtime s[90:91]
        s_lshl_b32 s92, {S_TEAM}, 5
        s_add_u32 s92, s92, {S_RANK}
        s_lshl_b32 s92, s92, 7
        s_add_u32 s92, s92, {hex(L.DBG + 65536 + 4 * i)}
        s_waitcnt lgkmcnt(0)
        v_mov_b32 v{t}, s90
        v_mov_b32 v{t+1}, 0
        buffer_store_dword v{t}, v{t+1}, {WS}, s92 offen
        {'v_mov_b32 v%d, s30' % t if i in (1, 6) else ''}
        {'buffer_store_dword v%d, v%d, %s, s92 offen offset:%d' % (t, t+1, WS, 124 if i == 1 else 4) if i in (1, 6) else ''}
        s_waitcnt vmcnt(0)
        {lab}:
        ''')

    def span(self, t):
        if not self.o.get('span'): return
        a = self.a
        set_srd(a, 12, P_DBG, 256)
        a(f'''
        s_waitcnt vmcnt(0)
        s_memrealtime s[90:91]
        s_not_b32 s30, s30
        v_mov_b32 v{t}, 16
        v_mov_b32 v{t+1}, s30
        s_waitcnt lgkmcnt(0)
        v_mov_b32 v{t+2}, s90
        s_mov_b64 exec, 1
        buffer_atomic_umax v{t+1}, v{t}, {ST}, 0 offen
        buffer_atomic_umax v{t+2}, v{t}, {ST}, 0 offen offset:4
        ''')
    def note(self, slot, t, rank=0):
        if not self.o.get('span2'): return
        a = self.a
        lab = a.newlabel('nt')
        a(f's_cmp_lg_u32 {S_W}, 0\ns_cbranch_scc1 {lab}\ns_cmp_lg_u32 {S_RANK}, {rank}\ns_cbranch_scc1 {lab}\ns_cmp_gt_u32 {S_TEAM}, 1\ns_cbranch_scc1 {lab}')
        set_srd(a, 92, P_DBG, 256)
        a(f'''
        s_memrealtime s[90:91]
        v_mov_b32 v{t}, {4*slot}
        s_waitcnt lgkmcnt(0)
        s_sub_u32 s90, s90, s30
        v_mov_b32 v{t+1}, s90
        buffer_store_dword v{t+1}, v{t}, s[92:95], 0 offen
        {lab}:
        ''')
    def mark(self, i):
        if self.o.get('stamp'): self.a.raw(f'    s_memrealtime s[{82+2*i if i < 4 else 86+2*i}:{83+2*i if i < 4 else 87+2*i}]')
    def dump_marks(self, t):
        if not self.o.get('stamp'): return
        a = self.a
        a(f's_lshl_b32 s92, {S_TEAM}, 5\ns_add_u32 s92, s92, {S_RANK}\ns_lshl_b32 s92, s92, 7\ns_add_u32 s92, s92, {hex(L.DBG + 65536)}\ns_waitcnt lgkmcnt(0)\nv_mov_b32 v{t+1}, 0')
        for i in range(7):
            a(f'v_mov_b32 v{t}, s{82+2*i if i < 4 else 86+2*i}\nbuffer_store_dword v{t}, v{t+1}, {WS}, s92 offen offset:{4*(8+i)}')

    def dma_chunk(self, voff, soff, stride, n=4):
        a = self.a
        for i in range(n):
            a(f'buffer_load_dwordx4 {voff}, {SA}, {soff} offen lds')
            a(f's_add_u32 m0, m0, 1024')
            if i < n - 1: a(f's_add_u32 {soff}, {soff}, {16*stride}')

    def dma_block(self, voff, soff, stride):
        a = self.a
        for i in range(16):
            a(f'buffer_load_dwordx4 {voff}, {SA}, {soff} offen lds')
            if i < 15: a(f's_add_u32 m0, m0, 1056\ns_add_u32 {soff}, {soff}, {stride}')

    def load_table(self, label, dst, ndw, tmp):
        a = self.a
        pc = a.newlabel('pc')
        a(f'''
        s_getpc_b64 s[12:13]
        {pc}:
        s_add_u32 s12, s12, {label}-{pc}
        s_addc_u32 s13, s13, 0
        s_mov_b32 s14, {256*ndw*4}
        s_mov_b32 s15, 0x20000
        v_mul_u32_u24 v{tmp}, {ndw*4}, v0
        ''')
        for i in range(0, ndw, 4):
            a(f'buffer_load_dwordx4 {vr(dst+i,4)}, v{tmp}, {ST}, 0 offen offset:{i*4}')

from rrole import RRole
from workers import Workers

class Full(Gen, RRole, Workers):
    def build(self):
        a = self.a
        self.prologue()
        self.r_role()
        self.worker_role()
        self.reclaim()
        a('L_exit:\ns_endpgm')
        a.timed = not self.o.get('untimed')
        n = a.pad_hazards()
        a.merge_nops()
        hdr = open('cdna_kernels/' + KNAME[:-7] + '.s.ref').read().split('\n')
        hdr = [h for h in hdr if h.startswith(';') and '@launch' not in h and 'Override' not in h and 'grid=ceil' not in h]
        txt = '\n'.join(hdr) + f'\n; @launch grid=(256,1,1) block=(256,1,1) lds={L.LDS_BYTES}\n'
        txt += DOC
        txt += f'.amdgcn_target "amdgcn-amd-amdhsa--gfx950"\n.text\n.globl {KNAME}\n.p2align 8\n.type {KNAME},@function\n{KNAME}:\n'
        txt += a.text()
        txt += self.tables()
        txt += f'''.section .rodata,"a"
.p2align 6
.amdhsa_kernel {KNAME}
  .amdhsa_next_free_vgpr 512
  .amdhsa_next_free_sgpr 102
  .amdhsa_accum_offset 256
  .amdhsa_group_segment_fixed_size 0
  .amdhsa_kernarg_size 112
  .amdhsa_user_sgpr_count 2
  .amdhsa_user_sgpr_kernarg_segment_ptr 1
  .amdhsa_system_sgpr_workgroup_id_x 1
  .amdhsa_float_denorm_mode_32 3
.end_amdhsa_kernel
'''
        return txt, n

if __name__ == '__main__':
    opt = {}
    out = 'cdna_kernels/' + KNAME[:-7] + '.s'
    for arg in sys.argv[1:]:
        if arg.startswith('-o'): out = arg[2:]
        elif '=' in arg:
            k, v = arg.split('='); opt[k] = int(v)
        else: opt[arg] = 1
    txt, n = Full(opt).build()
    open(out, 'w').write(txt)
    print('written', out, len(txt), 'bytes; hazard pad states', n)
```

```python
import layout as L
from gen_common import *

V_L16, V_IST, V_PUB, V_X0, V_F, V_SMW, V_OW, V_WV = 1, 2, 3, 4, 8, 9, 10, 11
KMH, VMH = 12, 16
V_IDX, V_WV2 = 18, 19
SELR, SELV, V_ONE, V_OR, SELQ, SELK = 20, 24, 26, 27, 28, 128
V_Z = 29
VXC, VXN, KX = 32, 40, 48
WVB = 56
AQ, AK, AV = 72, 80, 88
M = 96
T = 132
WO0 = 144
V_FLAG = 0
SC = 128 ** -0.5 * 1.4426950408889634
import struct
def f2u(x): return struct.unpack('<I', struct.pack('<f', x))[0]

WO_SPILL = [(0, 0), (1, 0)]
def wo_frag(t, kb):
    order = [(t_, k_) for t_ in range(4) for k_ in range(4) if (t_, k_) not in WO_SPILL]
    return WO0 + 8 * order.index((t, kb))

LDSF = [('q', 0, 0), ('q', 0, 1), ('q', 1, 0), ('q', 1, 1), ('k', 0, 0)] + [('k', k, 1) for k in range(2, 8)] + [('k', 7, 0)] + [('v', k, p) for k in (6, 7) for p in range(2)]
AGF = [(m, k, p) for m in 'qkv' for k in range(8) for p in range(2) if (m, k, p) not in LDSF]
assert len(LDSF) == 16 and len(AGF) == 32
S_S = 's61'
S_MEMP = 's62'
S_PUBB = 's63'
S_IN0, S_IN1 = 's64', 's65'
S_INP = 's66'
S_REC = 's67'
S_FKV = 's68'
S_KVM, S_FM = 's69', 's70'
S_RST = 's71'
S_LO = 's[72:73]'
S_SC = 's74'
S_T0, S_T1 = 's75', 's76'
S_FAST = 's77'
S_TAG, S_NTAG = 's78', 's79'
S_OTAG, S_NOTAG = 's24', 's25'
S_HST, S_HLD, S_S1 = 's10', 's11', 's19'
S_FS0 = 's47'

class RRole:
    def smf(self, acc, A, B):
        self.a(f'v_smfmac_f32_16x16x64_bf16 {vr(acc,4)}, {vr(A,4)}, {B}, v{V_IDX}')

    def r_role(self):
        a = self.a; o = self.o
        a('L_R:')
        a.vq = list(self.vq_role)
        self.mark(0)
        self.note(2, 40)
        VD8, VD1, VTQ, VTO, VTA = 28, 29, 30, 31, 7
        a(f"""
        v_and_b32 v1, 63, v0
        v_lshrrev_b32 v2, 4, v1
        v_and_b32 v3, 15, v1
        v_lshlrev_b32 v4, 4, v3
        v_lshl_add_u32 v{VD8}, v2, 17, v4
        v_and_b32 v4, 0x70, v4
        v_lshrrev_b32 v3, 3, v3
        v_lshl_add_u32 v4, v3, 9, v4
        v_lshl_add_u32 v{VD1}, v2, 14, v4
        s_lshl_b32 s21, {S_W}, 7
        v_add_u32 v{VD1}, s21, v{VD1}
        s_mul_i32 s78, {S_W}, {L.BLK}
        """)
        groups = [(m, b) for m in 'oqkv' for b in range(2)]
        def issue(gi):
            mat, b = groups[gi]
            if b == 0: set_srd(a, 8, {'q': P_WQ, 'k': P_WK, 'v': P_WV, 'o': P_WO}[mat], 4 << 20)
            a(f's_add_u32 m0, s78, {(gi % 2) * L.GRP}')
            if mat != 'o':
                a(f's_add_u32 s21, {S_W}, {4 * b}\ns_lshl_b32 s21, s21, 19\ns_lshl_b32 s22, {S_RANK}, 8\ns_add_u32 s21, s21, s22')
                self.dma_block(f'v{VD8}', 's21', 8192)
            else:
                a(f's_lshl_b32 s21, {S_RANK}, 17\ns_add_u32 s21, s21, {b * 65536}')
                if o.get('rot', 0):
                    a(f's_mov_b32 s47, m0\ns_mul_i32 s22, {S_RANK}, {o.get("rot")}\ns_and_b32 s22, s22, 15')
                    for i in range(16):
                        a(f's_mul_i32 s23, s22, 1056\ns_add_u32 m0, s47, s23\ns_lshl_b32 s23, s22, 10\ns_add_u32 s23, s23, s21')
                        a(f'buffer_load_dwordx4 v{VD1}, {SA}, s23 offen lds\ns_add_u32 s22, s22, 1\ns_and_b32 s22, s22, 15')
                else: self.dma_block(f'v{VD1}', 's21', 1024)
        issue(0)
        self.load_table('T_R', 96, 28, 7)
        self.confirm_role()
        issue(1)
        self.mark(1)
        self.gate_and_store()
        names = list(L.r_table().keys())
        def tv(n): return 96 + names.index(n)
        a(f'v_mov_b32 v{VTQ}, v{tv("trq")}\nv_mov_b32 v{VTO}, v{tv("tro")}\nv_add_u32 v6, 65536, v{tv("wv")}')
        if o.get('code'):
            pc = a.newlabel('pc')
            a(f's_getpc_b64 s[12:13]\n{pc}:\ns_add_u32 s12, s12, L_R_ready-{pc}\ns_addc_u32 s13, s13, 0\ns_mov_b32 s14, L_R_slow-L_R_ready\ns_mov_b32 s15, 0x20000')
            a(f'v_lshlrev_b32 v1, 7, v0\nbuffer_load_dword v27, v1, {ST}, 0 offen')
        else:
            a(f'buffer_load_dword v27, v{tv("one")}, {WS}, 0 offen')
        a(f'buffer_load_dword v26, v{tv("mm")}, {WS}, 0 offen')
        a.auto_vm = False
        TMP = 56
        park = {}
        parkregs = [32, 64, 72, 80, 88, 124, 132, 8]
        for f in LDSF:
            if f[0] == 'k': park[f] = parkregs.pop(0)
            if f[0] == 'q': park[f] = -8 * AGF.index(('v', 3 + 2 * f[1], f[2])) - 1
        S_RDY = 's76'
        def scalars():
            if o.get('pa2', 0):
                dec = f's_lshr_b32 s84, {S_RANK}, 3\ns_lshl_b32 s84, s84, 1\ns_lshr_b32 s21, {S_W}, 1\ns_add_u32 s84, s84, s21\n' \
                      f's_lshr_b32 s85, {S_RANK}, 1\ns_and_b32 s85, s85, 3\n' \
                      f's_and_b32 s86, {S_RANK}, 1\ns_lshl_b32 s86, s86, 1\ns_and_b32 s21, {S_W}, 1\ns_add_u32 s86, s86, s21'
            else:
                dec = f's_lshr_b32 s84, {S_RANK}, 2\ns_and_b32 s85, {S_RANK}, 3\ns_mov_b32 s86, {S_W}'
            a(f'''
            {dec}
            s_lshl_b32 {S_INP}, s84, 2
            s_add_u32 {S_INP}, {S_INP}, s85
            s_lshl_b32 {S_INP}, {S_INP}, 2
            s_add_u32 {S_INP}, {S_INP}, s86
            s_lshl_b32 {S_INP}, {S_INP}, 11
            s_add_u32 {S_INP}, {S_INP}, {hex(L.RIN)}
            s_lshl_b32 {S_PUBB}, s84, 10
            s_and_b32 s22, s85, 2
            s_lshl_b32 s22, s22, 7
            s_add_u32 {S_PUBB}, {S_PUBB}, s22
            s_and_b32 s22, s85, 1
            s_lshl_b32 s22, s22, 5
            s_add_u32 {S_PUBB}, {S_PUBB}, s22
            s_lshl_b32 s22, s86, 6
            s_add_u32 {S_PUBB}, {S_PUBB}, s22
            s_add_u32 {S_PUBB}, {S_PUBB}, {hex(L.RMEM)}
            s_and_b32 s22, s84, 1
            s_lshl_b32 s22, s22, 9
            s_lshr_b32 s21, s84, 1
            s_lshl_b32 s21, s21, 7
            s_add_u32 s21, s21, s22
            s_lshl_b32 s22, s85, 3
            s_add_u32 s21, s21, s22
            s_lshl_b32 s22, s86, 11
            s_add_u32 s75, s21, s22
            s_mul_i32 {S_REC}, {S_RANK}, 24576
            s_mul_i32 s21, {S_W}, 6144
            s_add_u32 {S_REC}, {S_REC}, s21
            s_lshl_b32 {S_FKV}, {S_RANK}, 6
            s_lshl_b32 s21, {S_W}, 2
            s_add_u32 {S_FKV}, {S_FKV}, s21
            s_add_u32 {S_FM}, {S_FKV}, {hex(L.F_M - 4096)}
            s_add_u32 {S_FKV}, {S_FKV}, {hex(L.F_KV)}
            s_lshl_b32 {S_KVM}, {S_RANK}, 12
            s_lshl_b32 s21, {S_W}, 10
            s_add_u32 {S_KVM}, {S_KVM}, s21
            s_add_u32 {S_KVM}, {S_KVM}, {hex(L.KVM - 131072)}
            s_lshl_b32 s21, {S_W}, 11
            s_add_u32 {S_MEMP}, s21, {hex(L.RMEM)}
            s_lshl_b32 {S_IN0}, {S_RANK}, 6
            s_add_u32 {S_IN0}, {S_IN0}, {hex(L.RIN)}
            s_mov_b32 s72, 0x33333333
            s_mov_b32 s73, 0x33333333
            s_mov_b32 {S_SC}, {hex(f2u(SC))}
            s_mov_b32 {S_S}, 0
            ''')
        def first_records(l16):
            for i in range(2):
                a(f'buffer_load_dwordx4 {vr(KX+4*i,4)}, v{l16}, {WS}, {S_REC} offen offset:{1024*i} sc1')
                a(f'buffer_load_dwordx4 {vr(VXN+4*i,4)}, v{l16}, {WS}, {S_REC} offen offset:{2048+1024*i} sc1')
        nw = 4 if o.get('warm', 0) else 2
        def stage_w():
            set_srd(a, 12, P_DBG, 256)
            a(f"""
            v_and_b32 v5, 1, v0
            v_lshlrev_b32 v5, 3, v5
            buffer_load_dword v3, v5, {ST}, 0 offen sc1
            """)
        def stage_t():
            assert o.get('xearly', 1)
            a(f"""
            v_mov_b64 v[24:25], -1
            v_mov_b64 v[26:27], -1
            {'s_cmp_ge_u32 s85, 32' if own else 's_cmp_eq_u32 %s, 1' % S_RDY}
            s_cselect_b32 s21, {S_INP}, {hex(L.OOB)}
            s_cselect_b32 s22, {S_PUBB}, {hex(L.OOB)}
            """)
            if o.get('touchx', 2) >= 2:
                a(f's_add_u32 s23, s21, 0x40000\ns_lshl_b32 s84, {S_RANK}, 10\ns_add_u32 s84, s84, {hex(L.RMEM)}\ns_cmp_ge_u32 s21, {hex(L.OOB)}\ns_cselect_b32 s84, s21, s84')
                for so in ('s21', 's23'):
                    for i in range(2): a(f'buffer_load_dwordx4 v[24:27], v{tv("l16")}, {WS}, {so} offen offset:{1024*i}')
                a(f'buffer_load_dwordx4 v[24:27], v{tv("l16")}, {WS}, s84 offen')
                if o.get('touchx', 2) == 2: return
                a('s_waitcnt vmcnt(0)\nv_mov_b64 v[24:25], -1\nv_mov_b64 v[26:27], -1')
            for sl in range(2):
                for i in range(2): a(f'buffer_store_dwordx4 v[24:27], v{tv("l16")}, {WS}, s21 offen offset:{1024*i}')
                a('s_add_u32 s21, s21, 0x40000')
            for sl in range(4):
                a(f'buffer_store_dword v24, v{tv("pub")}, {WS}, s22 offen\ns_add_u32 s22, s22, 0x2000')
            a(f'v_mov_b32 v25, 0\ns_lshl_b32 s22, {S_W}, 5\ns_add_u32 s22, s22, {S_RANK}\ns_lshl_b32 s22, s22, 2\ns_add_u32 s22, s22, {hex(L.R_HINT)}')
            a(f's_cmp_ge_u32 s21, {hex(L.OOB)}\ns_cselect_b32 s22, s21, s22\nbuffer_store_dword v25, v{tv("one")}, {WS}, s22 offen')
        def stage_c(dst):
            set_srd(a, 12, P_DBG, 256)
            a(f'v_and_b32 v5, 3, v0\nv_lshlrev_b32 v5, 6, v5\nbuffer_load_dword v{dst}, v5, {ST}, 0 offen offset:60 sc1')
        def stage_x():
            a(f'buffer_load_dword v4, v2, {WS}, {S_FS0} offen sc1')
        def stage_y(second=False):
            lab = 'L_R_notyet2' if second else 'L_R_notyet'
            if second: a(f's_cmp_eq_u32 {S_RDY}, 1\ns_cbranch_scc1 {lab}')
            else: a(f'v_lshl_or_b32 v140, v141, 16, v140\ns_mov_b32 {S_RDY}, 0\ns_mov_b32 {S_FAST}, 1')
            a(f"""
            v_readlane_b32 s21, v3, 0
            v_readlane_b32 s22, v3, 1
            {'v_cmp_ne_u32 vcc, v4, v4' if o.get('keep_kv_flags') else 'v_cmp_eq_u32 vcc, v143, v4'}
            s_bcnt1_i32_b32 s21, s21
            s_add_u32 s85, s21, s22
            s_cbranch_vccnz {lab}
            s_cmp_lt_u32 s85, 32
            s_cbranch_scc1 {lab}
            s_mov_b32 {S_RDY}, 1
            """)
            if o.get('touchx', 2) in (0, 2): a(f'buffer_store_dword v140, v{tv("pub")}, {WS}, {S_PUBB} offen sc1')
            first_records(tv('l16'))
            a(f'{lab}:')
        scalars()
        own = o.get('own', 0) and o.get('touchx', 2) == 2
        if own:
            a(f'v_mov_b64 v[20:21], -1\nv_mov_b64 v[22:23], -1\ns_add_u32 s21, {S_INP}, 0x40000\ns_lshl_b32 s22, {S_RANK}, 10\ns_add_u32 s22, s22, {hex(L.RMEM)}')
            for so in (S_INP, 's21'):
                for i in range(2): a(f'buffer_store_dwordx4 v[20:23], v{tv("l16")}, {WS}, {so} offen offset:{1024*i} sc1')
            a(f'buffer_store_dwordx4 v[20:23], v{tv("l16")}, {WS}, s22 offen sc1')
        a(f'v_and_b32 v2, 1, v0\nv_lshlrev_b32 v2, 11, v2\ns_add_u32 {S_FS0}, {S_FKV}, {hex((L.F_S - L.F_KV) & 0xFFFFFFFF)}')
        a(f'buffer_load_dword v143, v2, {WS}, {S_FS0} offen sc1')
        set_srd(a, 24, P_MEM0, 8192)
        a(f'buffer_load_ushort v140, v{tv("m0a")}, s[24:27], s75 offen\nbuffer_load_ushort v141, v{tv("m0a")}, s[24:27], s75 offen offset:32')
        todo = []
        self.ldsf_off = {}
        def flush(n):
            for _ in range(n):
                f, r = todo.pop(0); off = 8192 * len(self.ldsf_off)
                self.ldsf_off[f] = off
                for hh in range(2):
                    src = vr(r + 4 * hh, 4) if r >= 0 else ar(-r - 1 + 4 * hh, 4)
                    a(f'ds_write_b128 v{tv("wv") if off < 65536 else 6}, {src} offset:{off % 65536 + 1024 * hh}')
                if r >= 0: parkregs.append(r)
        for gi in range(8):
            mat, b = groups[gi]
            if gi == 0: self.mark(2)
            a.wait(vm=[16 + 5, 2 + 16, 16, 16, 16, 16, 16, 0][gi] if o.get('xearly', 1) else [16 + 5, 5 + 16, 16, 16, 16, 16, 16 + 1, 1][gi])
            if gi == 6 and o.get('xearly', 1): stage_y()
            if gi == 7 and not o.get('nox2'): stage_y(second=True)
            if gi == (6 if own else 7) and o.get('touchx', 2): stage_t()
            if gi == 6 and o.get('code2', 1):
                pc = a.newlabel('pc')
                a(f's_getpc_b64 s[12:13]\n{pc}:\ns_add_u32 s12, s12, L_R_ready-{pc}\ns_addc_u32 s13, s13, 0\ns_mov_b32 s14, L_R_slow-L_R_ready\ns_mov_b32 s15, 0x20000')
                a(f'v_lshlrev_b32 v1, 4, v0')
                for k in range(5): a(f'buffer_load_dwordx4 v[24:27], v1, {ST}, 0 offen\nv_add_u32 v1, 4096, v1')
            if gi == 7 and o.get('touchp', 0): a(f'buffer_load_dword v5, v{tv("mm")}, {WS}, 0 offen sc1')
            if gi in (0, 2, 4, 7): self.mark(3 + [0, 2, 4, 7].index(gi))
            a('s_barrier')
            hb = (gi % 2) * L.GRP
            for x in range(4):
                dsts = []
                if mat == 'o':
                    for p in range(2):
                        f = (x, 2 * b + p)
                        dsts.append((vr, (TMP if x == 0 else 40) if f in WO_SPILL else wo_frag(*f)))
                    offs = [0, 2112, 8448, 10560]; xo = 64 * x
                    if x == 0: a(f'v_add_u32 v{VTA}, {hb}, v{VTO}')
                else:
                    offs = [0, 1056, 512, 1568]; xo = 0
                    a(f's_xor_b32 s21, {S_W}, {x}\ns_mul_i32 s21, s21, {L.BLK}\ns_add_u32 s21, s21, {hb}\nv_add_u32 v{VTA}, s21, v{VTQ}')
                    for p in range(2):
                        f = (mat, 2 * x + b, p)
                        if f in AGF: dsts.append((ar, 8 * AGF.index(f)))
                        else:
                            if f not in park: park[f] = TMP if (f[1], f[2]) == (6, 0) else (16 if (f[1], f[2]) == (6, 1) else parkregs.pop(0))
                            if park[f] < 0: dsts.append((ar, -park[f] - 1)); todo.insert(0, (f, park[f]))
                            else: dsts.append((vr, park[f])); todo.append((f, park[f]))
                for p in range(2):
                    rf, d = dsts[p]
                    for r in range(4):
                        a(f'ds_read_b64_tr_b16 {rf(d + 2 * r, 2)}, v{VTA} offset:{xo + offs[r] + (512 if mat == "o" else 32) * p}')
            if gi == 7 and not o.get('xearly', 1):
                a.wait(vm=0); stage_y()
            a.wait(lgkm=0)
            if gi == 0:
                for i in range(2):
                    for hh in range(2):
                        a(f'ds_write_b128 v{tv("x0")}, {vr((TMP if i == 0 else 40) + 4 * hh, 4)} offset:{16384 + 8192 * i + 1024 * hh}')
            a('s_barrier')
            if gi == 1: stage_w()

            if gi == 5 and o.get('xearly', 1): stage_x()
            if gi + 2 < 8: issue(gi + 2)
            if gi == 5 and not o.get('xearly', 1): stage_x()
            if gi == 1: self.signal_init(barrier=False)
            if gi == 6 and not o.get('nox2'): stage_x()
            if gi == 6: flush(8)
            if gi == 7: flush(8)
        assert not todo and len(self.ldsf_off) == 16
        a.wait(lgkm=0, vm=0 if (o.get('touchx', 2) == 2 and not own) else None)
        a.auto_vm = True; a.forget()
        a(f'v_mov_b32 v{V_WV2}, v6')
        for n, d in [('l16', V_L16), ('ist', V_IST), ('pub', V_PUB), ('x0', V_X0), ('x1', V_X0 + 1), ('x2', V_X0 + 2), ('x3', V_X0 + 3),
                     ('f', V_F), ('smw', V_SMW), ('ow', V_OW), ('wv', V_WV), ('idx', V_IDX), ('one', V_ONE), ('or', V_OR)] + \
                    [(f'selr{i}', SELR + i) for i in range(4)] + [(f'selv{i}', SELV + i) for i in range(2)] + \
                    [('selq', SELQ), ('selq', SELQ + 3), ('selk', SELK), ('selk', SELK + 3)]:
            a(f'v_mov_b32 v{d}, v{tv(n)}')
        for d in (SELQ + 1, SELQ + 2, SELK + 1, SELK + 2): a(f'v_mov_b32 v{d}, 0')
        self.dump_marks(T + 4)
        self.tstamp(1, T + 4)
        self.note(3, T + 4)
        a(f's_cmp_eq_u32 {S_RDY}, 1\ns_cbranch_scc1 L_R_ready')
        a(f's_cmp_ge_u32 s85, 32\ns_cbranch_scc1 L_R_mode')
        self.wait_init(t0=T + 4)
        a(f's_cmp_ge_u32 s21, 32\ns_cselect_b32 {S_FAST}, 1, 0\nL_R_mode:')
        a(f'v_and_b32 v{T+4}, 1, v0\nv_lshlrev_b32 v{T+4}, 11, v{T+4}')
        lab = a.newlabel('f2')
        a.auto_vm = False
        a(f's_mov_b32 s23, {SPIN}\n{lab}:\nbuffer_load_dword v{T+5}, v{T+4}, {WS}, {S_FS0} offen sc1\ns_waitcnt vmcnt(0)\nv_cmp_eq_u32 vcc, v143, v{T+5}')
        a(f's_cbranch_vccz {lab}k\ns_sub_u32 s23, s23, 1\ns_cbranch_scc0 {lab}\ns_mov_b32 {SPIN}, 0x400\n{lab}k:')
        a(f'buffer_store_dword v140, v{V_PUB}, {WS}, {S_PUBB} offen sc1')
        first_records(V_L16)
        if not own:
            a(f's_cmp_eq_u32 {S_FAST}, 1\ns_cselect_b32 s21, {S_INP}, {hex(L.OOB)}\ns_lshl_b32 s22, {S_RANK}, 10\ns_add_u32 s22, s22, {hex(L.RMEM)}\ns_cmp_eq_u32 {S_FAST}, 0\ns_cselect_b32 s22, s21, s22\ns_add_u32 s84, s21, 0x40000')
            for so in ('s21', 's84'):
                for i in range(2): a(f'buffer_load_dwordx4 {vr(T+4,4)}, v{V_L16}, {WS}, {so} offen offset:{1024*i}')
            a(f'buffer_load_dwordx4 {vr(T+4,4)}, v{V_L16}, {WS}, s22 offen')
        a.auto_vm = True
        a('L_R_ready:')
        a.wait(vm=0)
        a.forget()
        if o.get('force_slow'): a(f's_mov_b32 {S_FAST}, 0')
        if o.get('touchx', 2) in (1, 3):
            a(f's_cmp_eq_u32 {S_FAST}, 0\ns_cselect_b32 s21, {hex(L.OOB)}, {S_PUBB}\ns_cselect_b32 s22, {S_PUBB}, {hex(L.OOB)}')
            a(f'buffer_store_dword v140, v{V_PUB}, {WS}, s21 offen\nbuffer_store_dword v140, v{V_PUB}, {WS}, s22 offen sc1')
        a(f's_add_u32 {S_FKV}, {S_FKV}, 2048\nv_mov_b32 v{V_FLAG}, 1')
        for r in range(M, M + 8, 2): a(f'v_mov_b64 {vr(r,2)}, -1')
        if o.get('hold') or o.get('holdB'):
            a(f's_lshl_b32 s21, {S_RANK}, 6\ns_add_u32 s21, s21, {hex(L.F_RS)}\ns_cmp_eq_u32 {S_W}, 0\ns_cselect_b32 s21, s21, {hex(L.OOB)}')
            a(f'buffer_store_dword v{V_F}, v{V_ONE}, {WS}, s21 offen sc1')
        if o.get('rdylog'):
            a(f's_lshl_b32 s21, {S_RANK}, 2\ns_add_u32 s21, s21, {S_W}\ns_lshl_b32 s21, s21, 2\ns_add_u32 s21, s21, {hex(L.DBG + 196608)}\nv_mov_b32 v{T+4}, {S_RDY}\nbuffer_store_dword v{T+4}, v{V_ONE}, {WS}, s21 offen')
        self.tstamp(2, T + 4)
        self.tstamp(3, T + 4)
        self.note(4, T + 4)
        if o.get('stamp'):
            a('s_memtime s[80:81]\ns_memrealtime s[28:29]'); a.wait(lgkm=0)
        a(f's_lshl_b32 {S_HST}, {S_W}, 5\ns_add_u32 {S_HST}, {S_HST}, {S_RANK}\ns_lshl_b32 {S_HST}, {S_HST}, 2\ns_add_u32 {S_HST}, {S_HST}, {hex(L.R_HINT)}')
        a(f's_lshr_b32 {S_HLD}, {S_RANK}, 3\ns_lshl_b32 {S_HLD}, {S_HLD}, 7\ns_add_u32 {S_HLD}, {S_HLD}, {hex(L.R_HINT)}')
        a('s_mov_b32 s26, 0x3f803f80\ns_mov_b32 s27, 0x3f803f80\ns_mov_b32 s8, 0x3f003f00\ns_mov_b32 s9, 0x3f003f00')
        a(f'ds_write_b64 v{V_OW}, {vr(M,2)}')
        a.wait(lgkm=0)
        a(f's_cmp_eq_u32 {S_FAST}, 0\ns_cbranch_scc1 L_R_slow')
        if o.get('nostag'):
            self.r_loop('f', '')
        else:
            for w in range(1, 4): a(f's_cmp_eq_u32 {S_W}, {w}\ns_cbranch_scc1 L_R_w{w}')
            for w in range(4):
                if w: a(f'L_R_w{w}:')
                self.r_loop('f' + (str(w) if w else ''), '', wv=w)
        a('L_R_slow:')
        self.r_loop('s', 'sc1')

    def spin_flag(self, dst, voff, soff):
        a = self.a
        lab = a.newlabel('sf'); ok = a.newlabel('sfok')
        sv = a.auto_vm; a.auto_vm = False
        a(f'''
        s_mov_b32 s23, {SPIN}
        {lab}:
        buffer_load_dword v{dst}, {voff}, {WS}, {soff} offen sc1
        s_waitcnt vmcnt(0)
        v_cmp_ne_u32 vcc, 0, v{dst}
        s_cbranch_vccnz {ok}
        s_sleep 2
        s_sub_u32 s23, s23, 1
        s_cbranch_scc0 {lab}
        s_mov_b32 {SPIN}, 0x400
        {ok}:
        ''')
        a.auto_vm = sv; a.vq = []

    def poll(self, tag, dst, voff, soff, pre, check, shadow, nchk, mid=None, nmid=0, blk=None):
        a = self.a
        lab = f'L_poll_{tag}'; ok = f'L_pok_{tag}'
        def issue():
            a(f'buffer_load_dwordx4 {vr(dst,4)}, v{voff}, {WS}, {soff} offen {self.pf}')
            a(f'buffer_load_dwordx4 {vr(dst+4,4)}, v{voff}, {WS}, {soff} offen offset:1024 {self.pf}')
        pre()
        if blk:
            gap, cover, fill = blk
            issue()
            if mid: mid()
            for i in range(gap): fill()
            a(f's_mov_b32 s23, {SPIN}')
            issue()
            for i in range(cover): fill()
            a(f's_branch L_pw_{tag}\n{lab}:')
            a(f's_sub_u32 s23, s23, 1\ns_cbranch_scc1 L_pto_{tag}')
            issue()
            a(f'L_pw_{tag}:\ns_waitcnt vmcnt(2)')
            check(); shadow()
            a(f's_cbranch_vccnz {lab}\n{ok}:')
            self.late.append(f'L_pto_{tag}:\ns_mov_b32 {SPIN}, 0x400\ns_waitcnt vmcnt(0)\n@SH@s_branch {ok}')
            self.late_sh.append(shadow)
            return
        if mid:
            issue(); mid()
            for r in range(nmid):
                check(); shadow()
                a(f's_cbranch_vccz {ok}')
        a(f's_mov_b32 s23, {SPIN}')
        a(f'{lab}:')
        issue()
        for r in range(nchk - 1):
            check(); shadow()
            a(f's_cbranch_vccz {ok}')
        a(f's_sub_u32 s23, s23, 1\ns_cbranch_scc1 L_pto_{tag}')
        check(); shadow()
        a(f's_cbranch_vccnz {lab}\n{ok}:')
        self.late.append(f'L_pto_{tag}:\ns_mov_b32 {SPIN}, 0x400\ns_waitcnt vmcnt(0)\n@SH@s_branch {ok}')
        self.late_sh.append(shadow)

    def poll2(self, tag, dst, soff, chores, t0, t1, t2, fill, check, shadow, retry=None, depth=2, nat=False):
        a = self.a
        lab = f'L_poll_{tag}'; ok = f'L_pok_{tag}'
        def issue():
            a(f'buffer_load_dwordx4 {vr(dst,4)}, v{V_L16}, {WS}, {soff} offen {self.pf}')
            a(f'buffer_load_dwordx4 {vr(dst+4,4)}, v{V_L16}, {WS}, {soff} offen offset:1024 {self.pf}')
        def spend(t, flush=False):
            while chores and (flush or chores[0][0] <= t + 4):
                c, f = chores.pop(0); f(); t -= c
            if t >= 12: a.comment('poll back-off (matrix pipe kept awake for the reduction that follows)')
            while t >= 12: fill(); t -= 16
        def work(t):
            while chores and chores[0][0] <= t + 4:
                c, f = chores.pop(0); f(); t -= c
        if nat:
            work(t0); a('s_waitcnt vmcnt(1)'); issue()
            work(t1); a('s_waitcnt vmcnt(2)'); issue()
        else:
            spend(t0); issue()
        for _ in range(0 if nat else depth - 1):
            spend(t1 - 40); issue()
        spend(t2 - 40, flush=True)
        a(f's_mov_b32 s23, {SPIN}\ns_branch L_pw_{tag}\n{lab}:')
        a(f's_sub_u32 s23, s23, 1\ns_cbranch_scc1 L_pto_{tag}')
        issue()
        if retry: retry()
        a(f'L_pw_{tag}:\ns_waitcnt vmcnt({2 * (depth - 1)})')
        check(); shadow()
        a(f's_cbranch_vccnz {lab}\n{ok}:')
        self.late.append(f'L_pto_{tag}:\ns_mov_b32 {SPIN}, 0x400\ns_waitcnt vmcnt(0)\n@SH@s_branch {ok}')
        self.late_sh.append((lambda: (retry(), shadow())) if retry else shadow)

    def stamp(self, i):
        if self.o.get('stamp') and (self.o.get('smask', 0x3ff) >> i) & 1: self.a.raw(f'    {"s_memrealtime" if self.o.get("rt") else "s_memtime"} s[{82+2*i}:{83+2*i}]')

    def dump_stamps(self, tg):
        a = self.a
        if not self.o.get('stamp'): return
        lab = f'L_nodump_{tg}'
        a(f's_cmp_lg_u32 {S_S}, {self.o.get("dstep", 41)}\ns_cbranch_scc1 {lab}\ns_waitcnt lgkmcnt(0)')
        a(f's_lshl_b32 s21, {S_RANK}, 8\ns_lshl_b32 s22, {S_W}, 6\ns_add_u32 s21, s21, s22\ns_add_u32 s21, s21, {hex(L.DBG)}')
        a(f'v_mov_b32 v{T+10}, 0')
        for i in range(10):
            a(f'v_mov_b32 v{T+11}, s{82+2*i}\nbuffer_store_dword v{T+11}, v{T+10}, {WS}, s21 offen offset:{4*i}')
        a(f's_waitcnt vmcnt(0)\n{lab}:')

    def r_loop(self, tg, cf, wv=0):
        a = self.a; o = self.o
        mf16 = 'v_mfma_f32_16x16x16_bf16'; mf32 = 'v_mfma_f32_16x16x32_bf16'
        cvt = 'v_cvt_pk_bf16_f32'
        QP = 'quad_perm:[2,3,0,1] row_mask:0xf bank_mask:0xf'
        dum = lambda n=1: [a(a.dummy) for _ in range(n)]
        self.late = []; self.late_sh = []; self.fixups = []
        self.pf = 'nt' if (not cf and o.get('pollnt')) else 'sc1'
        a.auto_vm = False
        B0, B1, B2 = WVB, WVB + 8, M
        ACC = {'q': AQ, 'k': AK, 'v': AV}
        def S(m, k, p, buf=None):
            f = (m, k, p)
            self.smf(ACC[m] + 4 * p, M + 4 * k, ar(8 * AGF.index(f), 8) if buf is None else vr(buf, 8))
        def V(k, p, buf=None): S('v', k, p, buf)
        def RD(buf, m, k, p, hh):
            off = self.ldsf_off[(m, k, p)]
            a(f'ds_read_b128 {vr(buf + 4*hh, 4)}, v{V_WV if off < 65536 else V_WV2} offset:{off % 65536 + hh*1024}')
        def RD2(buf, m, k, p): RD(buf, m, k, p, 0); RD(buf, m, k, p, 1)
        def pkadd(d, x, y): a(f'v_add_f32 v{d}, v{x}, v{y}\nv_add_f32 v{d+1}, v{x+1}, v{y+1}')
        def PK(d, x, y): a(f'v_pk_add_f32 {vr(d,2)}, {vr(x,2)}, {vr(y,2)}')
        def add(d, x, y): a(f'v_add_f32 v{d}, v{x}, v{y}')
        def dmf(r):
            m = o.get('fillm', 2)
            if m == 1 or (m == 2 and r == M + 8): a('s_nop 3')
            elif m == 3: a(f's_nop 2\n{a.dummy}')
            elif m == 4: a(f'{mf16} {vr(r,4)}, s[26:27], s[26:27], 0' if False else f'{mf16} {vr(r,4)}, {vr(SELQ+2,2)}, {vr(SELQ,2)}, 0')
            else: a(f'{mf16} {vr(r,4)}, {vr(SELQ,2)}, {vr(SELQ,2)}, {vr(r,4)}')
        def filt(line):
            st = 'buffer_store' in line and ('s75' in line or 's76' in line) and 'sc1' in line
            ld = 'buffer_load' in line and ('s67' in line or 's68' in line)
            if o.get('nost') and st: return None
            if o.get('nofst') and st and 's76' in line: return None
            if o.get('nold') and ld: return None
            if o.get('nofld') and ld and 's68' in line: return None
            if o.get('ldplain') and ld and 's67' in line: return line.replace(' sc1', '')
            if o.get('ldnt') and ld and 's67' in line: return line.replace(' sc1', ' nt')
            if o.get('stplain') and st: return line.replace(' sc1', '')
            if o.get('novm') and 'vmcnt' in line: return None
            if o.get('nowarm') and 'buffer_load_dword v27' in line: return 's_nop 0'
            if o.get('novmh') and 'buffer_store_dwordx2' in line: return None
            return line
        PA = M + 8; R = T + 8
        spin = f'L_kvspin_{tg}'; back = f'L_kvback_{tg}'
        def preload():
            RD2(M + 24, 'q', 0, 0); RD2(M + 16, 'q', 0, 1); RD2(B0, 'q', 1, 0); RD2(B1, 'q', 1, 1); RD2(T, 'k', 0, 0)
        def slackB():
            a(f'v_cmp_eq_u32 vcc, 0, v{V_FLAG}')
            for r in range(0, 8, 2): a(f'v_mov_b64 {vr(VXC+r,2)}, {vr(VXN+r,2)}')
            a(f's_xor_b32 {S_INP}, {S_INP}, 0x40000')
            a(f's_cbranch_vccnz {spin}\n{back}:')
            a(f"""
            s_cmp_lt_u32 {S_S}, 63
            s_cselect_b32 {S_T0}, {0 if o.get("nopf") else 32*24576}, 0
            s_add_u32 {S_REC}, {S_REC}, {S_T0}
            s_cmp_lt_u32 {S_S}, 62
            s_cselect_b32 {S_T0}, 2048, 0
            s_add_u32 {S_FKV}, {S_FKV}, {S_T0}
            s_cmp_ge_u32 {S_S}, 2
            s_cselect_b32 {S_T1}, {S_FM}, {hex(L.OOB)}
            s_cmp_ge_u32 {S_S}, 1
            s_cselect_b32 {S_T0}, {S_KVM}, {hex(L.OOB)}
            s_add_u32 {S_FM}, {S_FM}, 2048
            s_cmp_eq_u32 {S_S}, 62
            s_cselect_b32 {S_TAG}, {hex((L.KVL - L.KVM - 62 * 131072) & 0xFFFFFFFF) if o.get('dpoll', 1) else 0}, 0
            s_add_u32 {S_KVM}, {S_KVM}, {S_TAG}
            s_add_u32 {S_KVM}, {S_KVM}, 131072
            s_lshr_b32 {S_TAG}, {S_S}, 1
            s_and_b32 {S_TAG}, {S_TAG}, 1
            s_sub_u32 {S_NTAG}, {S_TAG}, 1
            s_add_u32 {S_IN1}, {S_IN0}, 32768
            s_and_b32 {S_OTAG}, {S_S}, 1
            s_sub_u32 {S_NOTAG}, {S_OTAG}, 1
            """)
            if o.get('steplog') and wv == 0 and tg != 's':
                a(f's_memrealtime s[82:83]\ns_lshl_b32 s84, {S_S}, 2\ns_lshl_b32 s85, {S_RANK}, 8\ns_add_u32 s84, s84, s85\ns_add_u32 s84, s84, {hex(L.DBG + 131072)}')
                a(f's_waitcnt lgkmcnt(0)\nv_mov_b32 v{T+10}, s82\nbuffer_store_dword v{T+10}, v{V_ONE}, {WS}, s84 offen')
            if o.get('zB'):
                for r in range(AQ, AQ + 24, 2): a(f'v_mov_b64 {vr(r,2)}, 0')
            if o.get('barB'): dmf(PA); a('s_barrier')
            for i in range(o.get('dB', 8) if wv >= 2 else o.get('dB0', o.get('dB', 8))): dmf(PA + 4 * (i % 2))
        def checkB():
            if not o.get('shortchk'):
                a(f"""
                v_max3_u32 v{R}, v{M}, v{M+1}, v{M+2}
                v_max3_u32 v{R+1}, v{M+3}, v{M+4}, v{M+5}
                v_max3_u32 v{R}, v{R}, v{M+6}, v{M+7}
                v_max_u32 v{R}, v{R}, v{R+1}
                """)
            else:
                a(f'v_max_u32 v{R}, v{M}, v{M+7}')
            a(f'v_cmp_eq_u32 vcc, -1, v{R}')
        def shadowB():
            if o.get('specw', 1): a(f'ds_write_b128 v{V_X0}, {vr(M,4)}')
            else: dmf(PA); a('s_nop 2')
        preload()
        for r in range(AQ, AQ + 24, 2): a(f'v_mov_b64 {vr(r,2)}, 0')
        a(f's_xor_b32 {S_INP}, {S_INP}, 0x40000')
        a.wait(lgkm=0)
        a(f'L_Rloop_{tg}:')
        a.forget()
        a.hot = True
        a.filt = filt
        sa = lambda txt: [(4, lambda l=l: a(l)) for l in txt.strip().split('\n')]
        va = lambda lines: [(8, lambda l=l: a(l)) for l in lines]
        if True:
            chB = [(44, lambda: a(f'v_cmp_eq_u32 vcc, 0, v{V_FLAG}\ns_cbranch_vccnz {spin}\n{back}:'))]
            chB += va([f'v_mov_b64 {vr(VXC+r,2)}, {vr(VXN+r,2)}' for r in range(0, 8, 2)])
            chB += sa(f"""
            s_xor_b32 {S_INP}, {S_INP}, 0x40000
            s_cmp_lt_u32 {S_S}, 63
            s_cselect_b32 {S_T0}, {0 if o.get("nopf") else 32*24576}, 0
            s_add_u32 {S_REC}, {S_REC}, {S_T0}
            s_cmp_lt_u32 {S_S}, 62
            s_cselect_b32 {S_T0}, 2048, 0
            s_add_u32 {S_FKV}, {S_FKV}, {S_T0}
            s_cmp_ge_u32 {S_S}, 2
            s_cselect_b32 {S_T1}, {S_FM}, {hex(L.OOB)}
            s_cmp_ge_u32 {S_S}, 1
            s_cselect_b32 {S_T0}, {S_KVM}, {hex(L.OOB)}
            s_add_u32 {S_FM}, {S_FM}, 2048
            s_cmp_eq_u32 {S_S}, 62
            s_cselect_b32 {S_TAG}, {hex((L.KVL - L.KVM - 62 * 131072) & 0xFFFFFFFF) if o.get('dpoll', 1) else 0}, 0
            s_add_u32 {S_KVM}, {S_KVM}, {S_TAG}
            s_add_u32 {S_KVM}, {S_KVM}, 131072
            s_lshr_b32 {S_TAG}, {S_S}, 1
            s_and_b32 {S_TAG}, {S_TAG}, 1
            s_sub_u32 {S_NTAG}, {S_TAG}, 1
            s_add_u32 {S_IN1}, {S_IN0}, 32768
            s_and_b32 {S_OTAG}, {S_S}, 1
            s_sub_u32 {S_NOTAG}, {S_OTAG}, 1
            """)
            if o.get('steplog') and wv == 0 and tg != 's':
                chB.insert(0, (70, lambda: (a(f's_memrealtime s[82:83]\ns_lshl_b32 s84, {S_S}, 2\ns_lshl_b32 s85, {S_RANK}, 8\ns_add_u32 s84, s84, s85\ns_add_u32 s84, s84, {hex(L.DBG + 131072)}'),
                    a(f's_waitcnt lgkmcnt(0)\nv_mov_b32 v{R}, s82\nbuffer_store_dword v{R}, v{V_ONE}, {WS}, s84 offen'))))
            if not o.get('split', 1):
                self.poll2('B' + tg, M, S_MEMP, chB, o.get('tB0', 200), o.get('tB1', 180), o.get('tB2', 40), lambda: dmf(PA), checkB, shadowB)
            else:
                ld = lambda i: a(f'buffer_load_dwordx4 {vr(M+4*i,4)}, v{V_L16}, {WS}, {S_MEMP} offen offset:{1024*i} {self.pf}')
                def spend(t, flush=False):
                    while chB and (flush or chB[0][0] <= t + 4):
                        c, f = chB.pop(0); f(); t -= c
                    if t >= 12: a.comment('poll back-off: a look issued earlier only queues in front of the one that will succeed')
                    while t >= 12: dmf(PA); t -= 16
                def chk(i):
                    a(f'v_max3_u32 v{R}, v{M+4*i}, v{M+4*i+1}, v{M+4*i+2}\nv_max_u32 v{R}, v{R}, v{M+4*i+3}\nv_cmp_eq_u32 vcc, -1, v{R}')
                g = o.get('tBg', 32)
                if o.get('natB', 0) == 1:
                    spend(o.get('tB0', 140)); ld(0); spend(1000 if False else 30); ld(1); spend(0, flush=True)
                    a('s_waitcnt vmcnt(2)'); ld(0); ld(1)
                elif o.get('natB', 0) == 3:
                    c, f = chB.pop(0); f()
                    a('s_waitcnt vmcnt(1)'); ld(0); a('s_waitcnt vmcnt(1)'); ld(1)
                    n = len(chB) - o.get('nBg', 6)
                    for c, f in chB[:n]: f()
                    ld(0)
                    for c, f in chB[n:]: f()
                    ld(1)
                elif o.get('natB', 0) == 4:
                    n = o.get('nB0', 13)
                    for c, f in chB[:n]: f()
                    ld(0)
                    for c, f in chB[n:n + 6]: f()
                    ld(1)
                    for c, f in chB[n + 6:]: f()
                    a('s_waitcnt vmcnt(2)'); ld(0); ld(1)
                elif o.get('natB', 0) == 2:
                    spend(0, flush=True); a('s_waitcnt vmcnt(1)'); ld(0); a('s_waitcnt vmcnt(1)'); ld(1)
                    spend(o.get('tB1', 180) - 40 - g); ld(0); spend(g); ld(1)
                else:
                    spend(o.get('tB0', 150) if wv >= 2 else o.get('tB00', o.get('tB0', 150))); ld(0); spend(g); ld(1)
                    spend(o.get('tB1', 180) - 40 - g); ld(0); spend(g); ld(1)
                    spend(o.get('tB2', 40) - 40 - g, flush=True)
                a(f's_mov_b32 s23, {SPIN}\nL_pw_B{tg}:\ns_waitcnt vmcnt(3)')
                chk(0)
                a(f'ds_write_b128 v{V_X0}, {vr(M,4)}')
                S('q', 0, 0, M + 24)
                a(f's_cbranch_vccnz L_poll_B{tg}\nL_pok_B{tg}:')
                def fixB():
                    a(f'L_poll_B{tg}:\ns_sub_u32 s23, s23, 1\ns_cbranch_scc1 L_pto_B{tg}')
                    ld(0); ld(1)
                    a(f'v_mov_b64 {vr(AQ,2)}, 0\nv_mov_b64 {vr(AQ+2,2)}, 0\ns_branch L_pw_B{tg}')
                    a(f'L_pto_B{tg}:\ns_mov_b32 {SPIN}, 0x400\ns_branch L_pok_B{tg}')
                    a(f'L_pol1_B{tg}:\ns_waitcnt vmcnt(0)')
                    chk(1)
                    a(f's_cbranch_vccz L_pk1_B{tg}\ns_sub_u32 s23, s23, 1\ns_cbranch_scc1 L_pt1_B{tg}')
                    ld(1)
                    a(f's_branch L_pol1_B{tg}\nL_pt1_B{tg}:\ns_mov_b32 {SPIN}, 0x400\ns_branch L_pk1_B{tg}')
                self.fixups.append(fixB)
        if o.get('rt'): a('s_mov_b32 s84, s82')
        self.stamp(0)
        if o.get('rt'): self.dump_stamps(tg)
        wp = o.get('wpat', 5)
        ws = {0: (0, 1), 1: (1 + wv, 5 + wv), 2: (1 + 2 * (wv % 2), 2 + 2 * (wv % 2)), 3: (1 + wv % 2, 3 + wv % 2), 4: (1 + wv // 2, 3 + wv // 2),
              5: (1, 2), 6: (wv, 4 + wv), 7: (wv % 2, 2 + wv % 2), 8: (wv // 2, 2 + wv // 2)}[wp]
        wslot = [0]
        def MW():
            for i in range(2):
                if ws[i] == wslot[0] and not (i == 0 and o.get('specw', 1)): a(f'ds_write_b128 v{V_X0}, {vr(M+4*i,4)} offset:{1024*i}')
            wslot[0] += 1
        if not o.get('split', 1):
            MW()
            S('q', 0, 0, M + 24); MW()
            S('q', 0, 1, M + 16); MW()
            S('q', 1, 0, B0); MW()
            S('q', 1, 1, B1); MW()
            S('k', 0, 0, T); MW()
            S('k', 0, 1); MW()
            S('k', 1, 0); MW()
            S('k', 1, 1); MW()
        else:
            S('q', 0, 1, M + 16)
            a('s_waitcnt vmcnt(2)')
            a(f'v_max3_u32 v{R}, v{M+4}, v{M+5}, v{M+6}')
            S('k', 0, 0, T); a(f'v_max_u32 v{R}, v{R}, v{M+7}')
            S('k', 0, 1); a(f'v_cmp_eq_u32 vcc, -1, v{R}')
            V(0, 0)
            a(f's_cbranch_vccnz L_pol1_B{tg}\nL_pk1_B{tg}:')
            a(f'ds_write_b128 v{V_X0}, {vr(M+4,4)} offset:1024')
            if o.get('lastx', 1): a(f's_cmp_eq_u32 {S_S}, 63')
            S('k', 1, 0)
            if o.get('lastx', 1): a(f's_cbranch_scc1 L_Rlast_{tg}')
            lq_last = list(a.lq)
            S('q', 1, 0, B0); S('q', 1, 1, B1); S('k', 1, 1)
        a.wait_lds_writes()
        a('s_barrier')
        def MR(k): a(f'ds_read_b128 {vr(M+4*k,4)}, v{V_X0 + k//2} offset:{1024*(k%2)}')
        MR(2); MR(3)
        if not o.get('split', 1): V(0, 0)
        MR(4)
        V(0, 1); MR(5)
        V(1, 0); MR(6)
        V(1, 1); MR(7)
        VXL = lambda i: a(f'buffer_load_dwordx4 {vr(VXN+4*i,4)}, v{V_L16}, {WS}, {S_REC} offen offset:{2048+1024*i} sc1')
        self.stamp(1)
        vm_ops = [
            lambda: a(f'buffer_store_dwordx4 {vr(KMH,4)}, v{V_L16}, {WS}, {S_T0} offen sc1'),
            lambda: VXL(0),
            lambda: VXL(1),
            lambda: (a(f'buffer_store_dword v{V_F}, v{V_ONE}, {WS}, {S_T1} offen sc1'),
                     a(f'buffer_load_dword v{V_FLAG}, v{V_Z}, {WS}, {S_FKV} offen sc1')),
        ]
        slot = [0]
        first = o.get('vm0', 5)
        def X():
            i = slot[0] - first - wv
            if i == 0: a('s_waitcnt vmcnt(0)')
            if i >= 0 and i % 4 == 0 and i // 4 < len(vm_ops): vm_ops[i // 4]()
            slot[0] += 1
        S('q', 2, 0); RD(B0, 'k', 2, 1, 0); X()
        S('q', 3, 0); RD(B0, 'k', 2, 1, 1); X()
        S('q', 4, 0); RD(B1, 'k', 3, 1, 0); X()
        S('q', 5, 0); RD(B1, 'k', 3, 1, 1); X()
        S('q', 6, 0); RD(T, 'k', 4, 1, 0); X()
        S('q', 7, 0); RD(T, 'k', 4, 1, 1); X()
        S('q', 2, 1); X()
        S('q', 3, 1); X()
        S('q', 4, 1); X()
        assert slot[0] > first + wv
        S('q', 5, 1); RD(B2, 'k', 5, 1, 0); X(); add(AQ, AQ, AQ + 2)
        S('q', 6, 1); RD(B2, 'k', 5, 1, 1); X(); add(AQ + 1, AQ + 1, AQ + 3)
        S('q', 7, 1); X(); a(f'{cvt} v{AQ+2}, v{AQ}, v{AQ+1}')
        S('k', 2, 0); X()
        S('k', 2, 1, B0); RD(B0, 'k', 6, 1, 0); X()
        S('k', 3, 0); RD(B0, 'k', 6, 1, 1); X()
        S('k', 3, 1, B1); RD(B1, 'k', 7, 0, 0); X(); add(AQ + 4, AQ + 4, AQ + 6)
        S('k', 4, 0); RD(B1, 'k', 7, 0, 1); X(); add(AQ + 5, AQ + 5, AQ + 7)
        S('k', 4, 1, T); RD(T, 'k', 7, 1, 0); X(); a(f'{cvt} v{AQ+3}, v{AQ+4}, v{AQ+5}')
        S('k', 5, 0); RD(T, 'k', 7, 1, 1); X()
        a(f'{mf16} {vr(AQ+4,4)}, {vr(AQ+2,2)}, {vr(SELQ,2)}, 0'); X()
        a(f'{mf16} {vr(T+8,4)}, {vr(AQ+2,2)}, {vr(SELQ+2,2)}, 0'); X()
        S('k', 5, 1, B2); RD(B2, 'v', 6, 0, 0); X()
        S('k', 6, 0); RD(B2, 'v', 6, 0, 1)
        S('k', 7, 0, B1); RD(B1, 'v', 7, 0, 0); a(f'{cvt} v{AQ}, v{AQ+4}, v{AQ+5}')
        S('k', 6, 1, B0); RD(B1, 'v', 7, 0, 1); a(f'{cvt} v{AQ+1}, v{AQ+6}, v{AQ+7}\n{cvt} v{AQ+2}, v{T+8}, v{T+9}')
        S('k', 7, 1, T); RD(B0, 'v', 6, 1, 0); a(f'{cvt} v{AQ+3}, v{T+10}, v{T+11}')
        assert slot[0] > first + wv + 4 * (len(vm_ops) - 1)
        self.stamp(2)
        RD(B0, 'v', 6, 1, 1)
        add(AK, AK, AK + 2)
        a(f'{mf32} {vr(AQ+4,4)}, {vr(KX,4)}, {vr(AQ,4)}, 0')
        add(AK + 1, AK + 1, AK + 3)
        a(f'{cvt} v{AK+2}, v{AK}, v{AK+1}')
        a(f'{mf32} {vr(T+8,4)}, {vr(KX+4,4)}, {vr(AQ,4)}, 0')
        pkadd(AK + 4, AK + 4, AK + 6)
        a(f'{cvt} v{AK+3}, v{AK+4}, v{AK+5}')
        a(f'{mf16} {vr(AK+4,4)}, {vr(AK+2,2)}, {vr(SELK,2)}, 0')
        a(f'{mf16} {vr(T,4)}, {vr(AK+2,2)}, {vr(SELK+2,2)}, 0')
        kslot = [0]
        def KL():
            i = kslot[0] - wv
            if i in (0, 4): a(f'buffer_load_dwordx4 {vr(KX+i,4)}, v{V_L16}, {WS}, {S_REC} offen offset:{256*i} sc1')
            kslot[0] += 1
        for i in range(4): a(f'v_cndmask_b32 v{AK+i}, v{T+8+i}, v{AQ+4+i}, {S_LO}')
        a(f'{cvt} v{KMH}, v{AK+4}, v{AK+5}\n{cvt} v{KMH+1}, v{AK+6}, v{AK+7}')
        a(f'{cvt} v{KMH+2}, v{T}, v{T+1}\n{cvt} v{KMH+3}, v{T+2}, v{T+3}')
        a(f'{mf32} {vr(T+4,4)}, {vr(KMH,4)}, {vr(AQ,4)}, 0')
        V(2, 0)
        a(f'ds_write_b128 v{V_X0}, {vr(AK,4)} offset:8192')
        a(f'v_cndmask_b32 v{T+4}, v{T+5}, v{T+4}, {S_LO}')
        V(2, 1)
        a(f'ds_write_b32 v{V_SMW}, v{T+4}')
        self.stamp(3)
        B3 = M + 8
        ONES, HALF = B2, B2 + 4
        V(3, 0); KL()
        V(3, 1); RD(B3, 'v', 7, 1, 0); KL()
        V(6, 0, B2); RD(B3, 'v', 7, 1, 1); KL()
        V(6, 1, B0); KL()
        if o.get('vb', 4) > 4: V(7, 0, B1)
        a.wait_lds_writes()
        a('s_barrier')
        SX = [T + 4, T + 8, AQ + 4]
        SR = lambda x: a(f'ds_read_b128 {vr(SX[x-1],4)}, v{V_X0+x} offset:8192')
        SR(1)
        if o.get('vb', 4) <= 4: V(7, 0, B1)
        SR(2); SR(3)
        V(4, 0); a(f'ds_read_b128 {vr(T,4)}, v{V_F} offset:1024'); a(f'v_mov_b64 {vr(ONES,2)}, s[26:27]')
        V(4, 1); KL(); a(f'v_mov_b64 {vr(ONES+2,2)}, s[26:27]')
        V(5, 0); KL(); a(f'v_mov_b64 {vr(HALF,2)}, s[8:9]')
        V(7, 1, B3); KL()
        V(5, 1); KL()
        WOS = lambda i, hh: a(f'ds_read_b128 {vr(WVB+8*i+4*hh,4)}, v{V_X0} offset:{16384+8192*i+1024*hh}')
        zs = list(range(M + 16, M + 32, 2))
        def Z(n):
            for _ in range(n): a(f'v_mov_b64 {vr(zs.pop(0),2)}, 0')
        self.stamp(4)
        pkadd(AK, AK, SX[0]); pkadd(AK + 2, AK + 2, SX[0] + 2)
        PK(SX[1], SX[1], SX[2]); PK(SX[1] + 2, SX[1] + 2, SX[2] + 2)
        PK(T, T, T + 2)
        PK(AK, AK, SX[1]); PK(AK + 2, AK + 2, SX[1] + 2)
        add(T, T, T + 1)
        mx, t2 = T + 2, T + 3
        a(f'v_max3_f32 v{mx}, v{AK}, v{AK+1}, v{AK+2}\nv_max3_f32 v{mx}, v{mx}, v{AK+3}, v{T}')
        PK(AV, AV, AV + 2); PK(AV + 4, AV + 4, AV + 6)
        a(f'v_max_f32_dpp v{t2}, v{mx}, v{mx} {QP}\nv_max_f32_dpp v{mx}, v{mx}, v{mx} {QP}')
        a(f'{cvt} v{AV+2}, v{AV}, v{AV+1}\n{cvt} v{AV+3}, v{AV+4}, v{AV+5}')
        a(f'v_permlane16_swap_b32 v{mx}, v{t2}\nv_max_f32 v{T+1}, v{mx}, v{t2}\nv_max_f32 v{mx}, v{mx}, v{t2}')
        a(f'{mf16} {vr(AV+4,4)}, {vr(SELV,2)}, {vr(AV+2,2)}, 0')
        WOS(0, 0)
        a(f'v_permlane32_swap_b32 v{mx}, v{T+1}\nv_max_f32 v{mx}, v{mx}, v{T+1}\nv_mul_f32 v{mx}, {S_SC}, v{mx}')
        E = [AK, AK + 1, AK + 2, AK + 3, T]
        for e in E: a(f'v_fma_f32 v{e}, v{e}, {S_SC}, -v{mx}')
        for e in E: a(f'v_exp_f32 v{e}, v{e}')
        BX, PM = AQ, T + 6
        a(f'{cvt} v{T+8}, v{AK}, v{AK+1}\n{cvt} v{T+9}, v{AK+2}, v{AK+3}')
        a(f"""
        v_cndmask_b32 v{BX}, 0, v{T+8}, {S_LO}
        v_cndmask_b32 v{BX+1}, 0, v{T+9}, {S_LO}
        v_cndmask_b32 v{BX+2}, v{T+8}, 0, {S_LO}
        v_cndmask_b32 v{BX+3}, v{T+9}, 0, {S_LO}
        v_mov_b32_dpp v{T+1}, v{T} {QP}
        {cvt} v{VMH}, v{AV+4}, v{AV+5}
        """)
        D, D2, DL = AQ + 4, AK + 4, T + 8
        a(f'{mf32} {vr(DL,4)}, {vr(ONES,4)}, {vr(BX,4)}, 0')
        WOS(0, 1)
        a(f'{cvt} v{T+4}, v{T}, v{T+1}\n{cvt} v{T+5}, v{T+1}, v{T}')
        a(f'{mf32} {vr(D2,4)}, {vr(VXC+4,4)}, {vr(BX,4)}, 0')
        WOS(1, 0)
        a(f'v_cndmask_b32 v{PM}, 0, v{T+4}, {S_LO}\nv_cndmask_b32 v{PM+1}, v{T+5}, 0, {S_LO}')
        a(f'{mf32} {vr(D,4)}, {vr(VXC,4)}, {vr(BX,4)}, 0')
        WOS(1, 1)
        a(f'{cvt} v{VMH+1}, v{AV+6}, v{AV+7}')
        a(f'{mf16} {vr(DL,4)}, {vr(HALF,2)}, {vr(PM,2)}, {vr(DL,4)}')
        Z(1)
        a(f'{mf16} {vr(D,4)}, {vr(VMH,2)}, {vr(PM,2)}, {vr(D,4)}')
        Z(o.get('zpv', 5))
        l = DL + 1
        a(f'v_add_f32_dpp v{l}, v{DL}, v{DL} {QP}\nv_rcp_f32 v{l}, v{l}')
        for i in range(4): a(f'v_add_f32_dpp v{D+i}, v{D2+i}, v{D+i} {QP}')
        for i in (0, 2): a(f'v_pk_mul_f32 {vr(D+i,2)}, {vr(D+i,2)}, {vr(l-1,2)} op_sel:[0,1] op_sel_hi:[1,1]')
        a(f'{cvt} v{T}, v{D}, v{D+1}\n{cvt} v{T+1}, v{D+2}, v{D+3}')
        a(f'v_and_or_b32 v{T}, v{T}, -2, {S_OTAG}')
        self.stamp(5)
        a(f'ds_write_b64 v{V_OW}, {vr(T,2)}')
        if not (o.get('lastx', 1) and o.get('split', 1)): a(f's_cmp_eq_u32 {S_S}, 63\ns_cbranch_scc1 L_Rtail_{tg}')
        else: a('s_nop 2')
        OA = AK
        WA = M + 16
        def oread():
            for k in range(4): a(f'ds_read_b128 {vr(OA+4*k,4)}, v{V_OR} offset:{(k//2)*2048 + (k%2)*512}')
        oc = [f'v_bitop3_b32 v{T+2+k}, v{OA+4*k}, v{OA+4*k+2}, {S_NOTAG} bitop3:0x42' for k in range(4)] + \
             [f'v_bitop3_b32 v{T+2}, v{T+2}, v{T+3}, v{T+4} bitop3:0x80', f'v_bitop3_b32 v{T+2}, v{T+2}, v{T+5}, 1 bitop3:0x80', f'v_cmp_eq_u32 vcc, 0, v{T+2}']
        Z(len(zs))
        for _ in range(o.get('z3', 3)): a('s_nop 1')
        oread()
        for _ in range(o.get('z4', 2)): dmf(M)
        self.stamp(6)
        def wo(t, k):
            fr = WVB + 8 * WO_SPILL.index((t, k)) if (t, k) in WO_SPILL else wo_frag(t, k)
            self.smf(WA + 4 * t, OA + 4 * k, vr(fr, 8))
        def fc(t): a(f'{cvt} v{AQ+2*t}, v{WA+4*t}, v{WA+4*t+1}\n{cvt} v{AQ+2*t+1}, v{WA+4*t+2}, v{WA+4*t+3}')
        def tagit(r): a(f'v_and_or_b32 v{r}, v{r}, -2, {S_TAG}')
        hint = o.get('hint', 0) and not cf
        hp_ = o.get('hpos', 6)
        cnt = [0]
        def H():
            if hint and cnt[0] == hp_: a(f'buffer_store_dword v{T+6}, v{V_ONE}, {WS}, {S_HST} offen')
            cnt[0] += 1
        if hint: a(f's_add_u32 {S_S1}, {S_S}, 1\nv_mov_b32 v{T+6}, {S_S1}')
        a(f'L_wo_{tg}:')
        if not o.get('early0', 1):
            for k in range(4):
                wo(0, k); H(); a(oc[k]) if k < 3 else None
                wo(1, k); H()
                if k == 3: a(oc[3])
            wo(2, 0); H(); a(oc[4])
            wo(3, 0); H(); a(oc[5])
            wo(2, 1); H(); a(oc[6])
            wo(3, 1); H(); fc(0)
            wo(2, 2); H(); fc(1)
            a(f's_cbranch_vccnz L_ofix_{tg}')
            wo(3, 2); H(); tagit(AQ)
            wo(2, 3)
            a(f'buffer_store_dwordx4 {vr(AQ,4)}, v{V_IST}, {WS}, {S_IN0} offen {cf}')
            wo(3, 3)
        else:
            for k in range(4):
                wo(0, k); a(oc[2 * k])
                wo(1, k)
                if k < 3: a(oc[2 * k + 1])
            wo(2, 0)
            a(f's_cbranch_vccnz L_ofix_{tg}')
            wo(3, 0); fc(0)
            wo(2, 1); fc(1)
            wo(3, 1); tagit(AQ)
            a(f'buffer_store_dwordx4 {vr(AQ,4)}, v{V_IST}, {WS}, {S_IN0} offen {cf}')
            wo(2, 2); wo(3, 2); wo(2, 3); wo(3, 3)
        fc(2); tagit(AQ + 4); fc(3)
        a(f'buffer_store_dwordx4 {vr(AQ+4,4)}, v{V_IST}, {WS}, {S_IN1} offen {cf}')
        def fix():
            a(f'L_ofix_{tg}:\ns_mov_b32 s23, {SPIN}\nL_ofix2_{tg}:')
            a.forget(vm=False)
            oread(); a.wait(lgkm=0)
            for x in oc: a(x)
            a(f's_cbranch_vccz L_ofix3_{tg}\ns_sub_u32 s23, s23, 1\ns_cbranch_scc0 L_ofix2_{tg}\ns_endpgm\nL_ofix3_{tg}:')
            for r in range(WA, WA + 16, 2): a(f'v_mov_b64 {vr(r,2)}, 0')
            a(f's_branch L_wo_{tg}')
        self.fixups.append(fix)
        self.stamp(7)
        def pack_kvm():
            a(f's_mov_b64 vcc, {S_LO}')
            for i in range(4):
                qp = '[0,0,0,2]' if i < 2 else '[0,0,1,3]'
                a(f'v_cndmask_b32_dpp v{KMH+i}, v{VMH+i%2}, v{KMH+i}, vcc quad_perm:{qp} row_mask:0xf bank_mask:0xf')
        self.pack_kvm = pack_kvm
        def preA():
            a(f"""
            v_mov_b32 v{PA}, {S_NTAG}
            v_mov_b32 v{PA+4}, {S_NTAG}
            """)
            for i in range(o.get('dA', 4) if wv >= 2 else o.get('dA0', o.get('dA', 4))): dmf(R)
        def slackA():
            preload()
            pack_kvm()
            a(f"""
            s_add_u32 {S_S}, {S_S}, 1
            s_xor_b32 {S_IN0}, {S_IN0}, 0x40000
            s_and_b32 {S_T0}, {S_S}, 3
            s_lshl_b32 {S_T0}, {S_T0}, 13
            v_mov_b64 {vr(M,2)}, -1
            s_andn2_b32 {S_PUBB}, {S_PUBB}, 0x6000
            s_andn2_b32 {S_MEMP}, {S_MEMP}, 0x6000
            v_mov_b64 {vr(M+2,2)}, -1
            s_or_b32 {S_MEMP}, {S_MEMP}, {S_T0}
            s_xor_b32 {S_RST}, {S_T0}, 0x4000
            v_mov_b64 {vr(M+4,2)}, -1
            s_or_b32 {S_RST}, {S_RST}, {S_PUBB}
            s_or_b32 {S_PUBB}, {S_PUBB}, {S_T0}
            v_mov_b64 {vr(M+6,2)}, -1
            """)
            if not o.get('zB'):
                for r in range(AQ, AQ + 24, 2): a(f'v_mov_b64 {vr(r,2)}, 0')
            a.wait(lgkm=0)
        def checkA():
            a(f"""
            v_bitop3_b32 v{VXC}, v{PA}, v{PA+4}, {S_NTAG} bitop3:0x42
            v_and_b32 v{VXC}, 1, v{VXC}
            v_cmp_eq_u32 vcc, 0, v{VXC}
            """)
        def shadowA():
            a(f'v_smfmac_f32_16x16x64_bf16 {vr(R,4)}, {vr(SELR,4)}, {vr(PA,8)}, v{V_IDX} abid:1')
        if True:
            pl = [(M + 24, 'q', 0, 0), (M + 16, 'q', 0, 1), (B0, 'q', 1, 0), (B1, 'q', 1, 1), (T, 'k', 0, 0)]
            chA = [(40, pack_kvm)]
            chA += sa(f"""
            s_add_u32 {S_S}, {S_S}, 1
            s_xor_b32 {S_IN0}, {S_IN0}, 0x40000
            s_and_b32 {S_T0}, {S_S}, 3
            s_lshl_b32 {S_T0}, {S_T0}, 13
            s_andn2_b32 {S_PUBB}, {S_PUBB}, 0x6000
            s_andn2_b32 {S_MEMP}, {S_MEMP}, 0x6000
            s_or_b32 {S_MEMP}, {S_MEMP}, {S_T0}
            s_xor_b32 {S_RST}, {S_T0}, 0x4000
            s_or_b32 {S_RST}, {S_RST}, {S_PUBB}
            s_or_b32 {S_PUBB}, {S_PUBB}, {S_T0}
            """)
            zz = [f'v_mov_b64 {vr(r,2)}, 0' for r in range(AQ, AQ + 24, 2)] + [f'v_mov_b32 v{M}, -1']
            for k in range(10):
                chA.append((16, lambda k=k: (RD(*pl[k // 2], k % 2), a(zz[k]))))
            chA += va(zz[10:])
            chA.append((4, lambda: a.wait(lgkm=0)))
            zr = lambda: a(f'v_mov_b64 {vr(R,2)}, 0\nv_mov_b64 {vr(R+2,2)}, 0')
            chA.append((16, zr))
            if hint:
                HV, HD = VXC + 1, VXC + 2
                a(f'v_lshrrev_b32 v{HV}, 2, v{V_L16}\nv_and_b32 v{HV}, 0x7f, v{HV}\nv_mov_b32 v{HD}, 0')
                hl = lambda: a(f'buffer_load_dword v{HD}, v{HV}, {WS}, {S_HLD} offen sc1')
                def spendh(t):
                    while chA and chA[0][0] <= t + 4:
                        c, f = chA.pop(0); f(); t -= c
                    while t >= 12: dmf(VXC + 4); t -= 16
                nh = o.get('hdep', 4)
                for k in range(nh - 1): hl(); spendh(o.get('hq', 48) - 8)
                a(f's_mov_b32 s23, {SPIN}\nL_hp_{tg}:')
                hl()
                a(f'v_cmp_gt_u32 vcc, {S_S1}, v{HD}\ns_sub_u32 s23, s23, 1\ns_cbranch_scc1 L_hk_{tg}\ns_cbranch_vccnz L_hp_{tg}\nL_hk_{tg}:')
            self.poll2('A' + tg, PA, S_INP, chA, o.get('hdel', 0) if hint else (o.get('tA0', 230) if wv >= 2 else o.get('tA00', o.get('tA0', 230))), o.get('tA1', 180) if wv >= 2 else o.get('tA10', o.get('tA1', 180)), o.get('tA2', 40) if wv >= 2 else o.get('tA20', o.get('tA2', 40)), lambda: dmf(VXC + 4), checkA, shadowA, retry=zr,
                       depth=o.get('dpA', 2) if wv >= 2 else o.get('dpA0', o.get('dpA', 2)), nat=o.get('natA', 0))
        self.stamp(8)
        hp = ''
        a(f"""
        {'s_nop 1' + chr(10) + a.dummy + chr(10) + 's_nop 0' if hp else ''}
        v_add_f32_dpp v{R}, v{R}, v{R} row_ror:8 row_mask:0xf bank_mask:0x3 {hp}
        v_add_f32_dpp v{R+1}, v{R+1}, v{R+1} row_ror:8 row_mask:0xf bank_mask:0x3 {hp}
        v_add_f32_dpp v{R}, v{R+2}, v{R+2} row_ror:8 row_mask:0xf bank_mask:0xc {hp}
        v_add_f32_dpp v{R+1}, v{R+3}, v{R+3} row_ror:8 row_mask:0xf bank_mask:0xc {hp}
        v_add_f32_dpp v{R}, v{R}, v{R} row_ror:12 row_mask:0xf bank_mask:0xf
        v_add_f32_dpp v{R+1}, v{R+1}, v{R+1} row_ror:12 row_mask:0xf bank_mask:0xf
        {cvt} v{R+2}, v{R}, v{R+1}
        buffer_store_dword v{R+2}, v{V_PUB}, {WS}, {S_PUBB} offen {cf}
        """)
        self.stamp(9)
        a(f'buffer_store_dword v{M}, v{V_PUB}, {WS}, {S_RST} offen {cf}')
        if o.get('span2') and wv == 0:
            lab = a.newlabel('n8')
            a(f's_cmp_lg_u32 {S_S}, 8\ns_cbranch_scc1 {lab}')
            self.note(5, T + 10)
            a(f'{lab}:')
        if not o.get('rt'): self.dump_stamps(tg)
        a(f's_branch L_Rloop_{tg}')
        a.hot = False
        a(f'{spin}:')
        self.spin_flag(V_FLAG, f'v{V_Z}', S_FKV)
        a(f's_branch {back}')
        for txt, sh in zip(self.late, self.late_sh):
            pre, post = txt.split('@SH@')
            a(pre); a('s_nop 7'); sh(); a('s_nop 7'); a(post)
        for f in self.fixups: f()
        if o.get('lastx', 1) and o.get('split', 1):
            a(f'L_Rlast_{tg}:')
            a.lq = list(lq_last)
            RD2(B0, 'k', 2, 1); S('k', 1, 1); RD2(B1, 'k', 3, 1); V(0, 1); RD2(T, 'k', 4, 1); V(1, 0); V(1, 1)
            a.wait(lgkm=6)
            a('s_barrier')
            for k in range(2, 8): MR(k)
            a('s_waitcnt vmcnt(0)')
            a(f'buffer_store_dwordx4 {vr(KMH,4)}, v{V_L16}, {WS}, {S_T0} offen sc1')
            a(f'buffer_store_dword v{V_F}, v{V_ONE}, {WS}, {S_T1} offen sc1')
            RD2(B2, 'k', 5, 1)
            rest = [('k', 6, 1), ('k', 7, 0), ('k', 7, 1), ('v', 6, 0), ('v', 6, 1), ('v', 7, 0), ('v', 7, 1)]
            ring = [(B0, ('k', 2, 1)), (B1, ('k', 3, 1)), (T, ('k', 4, 1)), (B2, ('k', 5, 1))]
            regf = [('k', k, 0) for k in range(2, 7)] + [('v', k, p) for k in range(2, 6) for p in range(2)]
            while ring:
                if regf: S(*regf.pop(0))
                b, f = ring.pop(0)
                S(*f, b)
                if rest:
                    f = rest.pop(0); RD2(b, *f); ring.append((b, f))
                if f == ('v', 6, 1) and not rest[2:] and False: pass
            for f in regf: S(*f)
            for x, r in ((AK, SELK), (AV, None)):
                pkadd(x, x, x + 2); pkadd(x + 4, x + 4, x + 6)
                a(f'{cvt} v{x+2}, v{x}, v{x+1}\n{cvt} v{x+3}, v{x+4}, v{x+5}')
            a(f'{mf16} {vr(AK+4,4)}, {vr(AK+2,2)}, {vr(SELK,2)}, 0\n{mf16} {vr(T,4)}, {vr(AK+2,2)}, {vr(SELK+2,2)}, 0')
            a(f'{mf16} {vr(AV+4,4)}, {vr(SELV,2)}, {vr(AV+2,2)}, 0')
            a(f'{cvt} v{KMH}, v{AK+4}, v{AK+5}\n{cvt} v{KMH+1}, v{AK+6}, v{AK+7}\n{cvt} v{KMH+2}, v{T}, v{T+1}\n{cvt} v{KMH+3}, v{T+2}, v{T+3}')
            a(f'{cvt} v{VMH}, v{AV+4}, v{AV+5}\n{cvt} v{VMH+1}, v{AV+6}, v{AV+7}')
        a(f'L_Rtail_{tg}:')
        a.forget()
        self.pack_kvm()
        a(f'''
        buffer_store_dwordx4 {vr(KMH,4)}, v{V_L16}, {WS}, {S_KVM} offen sc1
        s_waitcnt vmcnt(0) lgkmcnt(0)
        buffer_store_dword v{V_F}, v{V_ONE}, {WS}, {S_FM} offen sc1
        buffer_store_dword v{V_F}, v{V_ONE}, {WS}, {S_FM} offen offset:2048 sc1
        ''')
        self.tstamp(6, T + 4)
        self.note(6, T + 4)
        if o.get('stamp'):
            set_srd(a, 12, P_DBG, 256)
            a(f'''
            s_memtime s[82:83]
            s_memrealtime s[84:85]
            s_waitcnt lgkmcnt(0)
            s_sub_u32 s82, s82, s80
            s_sub_u32 s84, s84, s30
            s_sub_u32 s28, s28, s30
            v_mov_b32 v{T}, s82
            v_mov_b32 v{T+1}, {S_FAST}
            v_mov_b32 v{T+2}, s28
            v_mov_b32 v{T+3}, s84
            v_mov_b32 v{T+4}, 16
            buffer_store_dwordx4 {vr(T,4)}, v{T+4}, {ST}, 0 offen
            ''')
        a('s_endpgm')
        a.auto_vm = True
```

```python
import layout as L
from gen_common import *
import struct
def f2u(x): return struct.unpack('<I', struct.pack('<f', x))[0]
mf16 = 'v_mfma_f32_16x16x16_bf16'; mf32 = 'v_mfma_f32_16x16x32_bf16'; cvt = 'v_cvt_pk_bf16_f32'

TB = 0
NAMES = list(L.w_table().keys())
def tv(n): return TB + NAMES.index(n)
V_TID = 24
XF = 48
ACC = 64
S_ISB, S_SEG, S_END, S_STEP, S_BASE, S_STR = 's61', 's62', 's63', 's64', 's65', 's66'
S_XB, S_PF, S_PF2, S_A, S_B, S_HEAD = 's67', 's68', 's69', 's70', 's71', 's72'
S_FIRST = 's73'
S_TFAST = 's89'
SX = 's[24:27]'

def wfrag(m, ks, p):
    c = 'qkv'.index(m) * 8 + ks // 2
    r = c * 16 + p * 8 + (ks % 2) * 4
    return ar(r, 4) if r < 256 else vr(128 + r - 256, 4)

class Workers:
    def tables(self):
        return L.table_text('T_R', L.r_table()) + L.table_text('T_W', L.w_table())

    def xlane(self, op, x, t):
        a = self.a
        a(f'v_mov_b32 v{t}, v{x}\nv_permlane16_swap_b32 v{x}, v{t}\n{op} v{x}, v{x}, v{t}')
        a(f'v_mov_b32 v{t}, v{x}\nv_permlane32_swap_b32 v{x}, v{t}\n{op} v{x}, v{x}, v{t}')

    def x_dma(self, piece=None):
        a = self.a
        if piece is not None and piece >= 0:
            a(f'buffer_load_dwordx4 v{tv("xg")}, {SX}, s21 offen lds')
            a('s_add_u32 m0, m0, 1024')
            a(f's_add_u32 s21, s21, {16384 if piece % 2 == 0 else hex((64 - 16384) & 0xFFFFFFFF)}')
            return
        a(f's_lshl_b32 s21, {S_A}, 15\ns_lshl_b32 s22, {S_W}, 8\ns_add_u32 s21, s21, s22')
        a(f's_lshl_b32 s22, {S_W}, 13\ns_add_u32 m0, s22, {S_XB}')
        if piece is not None: return
        for k in range(4):
            for tt in range(2):
                a(f'buffer_load_dwordx4 v{tv("xg")}, {SX}, s21 offen lds')
                a('s_add_u32 m0, m0, 1024')
                a(f's_add_u32 s21, s21, {16384 if tt == 0 else hex((64 - 16384) & 0xFFFFFFFF)}')

    def worker_role(self):
        a = self.a; o = self.o
        a('L_worker:')
        a.vq = list(self.vq_role)
        self.mark(0)
        if o.get('no_workers'):
            self.gate_and_store(); a.wait(vm=0); self.signal_init(); a('s_endpgm'); return
        nb = o.get('nb', 1)
        a(f'''
        s_sub_u32 s21, {S_TEAM}, 1
        {'s_add_u32 s22, s21, 6' + chr(10) + 's_sub_u32 s21, s21, 1' + chr(10) + 's_cselect_b32 s21, s22, s21' if nb else ''}
        s_lshl_b32 s21, s21, 5
        s_add_u32 s21, s21, {S_RANK}
        s_cmp_ge_u32 s21, 192
        s_cselect_b32 {S_ISB}, 1, 0
        s_cbranch_scc1 L_w_B
        s_mul_i32 {S_HEAD}, s21, 43691
        s_lshr_b32 {S_HEAD}, {S_HEAD}, 18
        s_mul_i32 s22, {S_HEAD}, 6
        s_sub_u32 {S_SEG}, s21, s22
        s_mov_b32 {S_END}, 64
        s_mov_b32 {S_STEP}, 6
        s_mov_b32 {S_FIRST}, 0
        s_movk_i32 {S_STR}, 8192
        s_mov_b32 s75, {4<<20}
        s_branch L_w_dec
        L_w_B:
        s_sub_u32 s21, s21, 192
        s_lshr_b32 {S_HEAD}, s21, 3
        s_and_b32 s21, s21, 7
        s_lshl_b32 {S_FIRST}, s21, 3
        s_add_u32 {S_END}, {S_FIRST}, 8
        s_max_u32 {S_SEG}, {S_FIRST}, 1
        s_sub_u32 {S_SEG}, {S_SEG}, 1
        s_mov_b32 {S_STEP}, 1
        s_movk_i32 {S_STR}, 3072
        s_mov_b32 s75, {512*3072}
        L_w_dec:
        v_and_b32 v1, 63, v0
        v_lshrrev_b32 v2, 4, v1
        v_and_b32 v3, 15, v1
        v_lshlrev_b32 v3, 4, v3
        s_lshl_b32 s79, {S_STR}, 4
        v_mul_lo_u32 v2, v2, s79
        v_add_u32 v28, v2, v3
        s_mul_i32 s78, {S_W}, {L.BLK}
        s_lshl_b32 s77, {S_HEAD}, 8
        s_lshl_b32 s79, {S_STR}, 6
        ''')
        nwarm = 0
        if o.get('mall'):
            a(f's_sub_u32 s21, {S_TEAM}, 1\ns_lshl_b32 s21, s21, 5\ns_add_u32 s21, s21, {S_RANK}\ns_lshl_b32 s21, s21, 2\ns_add_u32 s21, s21, {S_W}')
            a('v_lshlrev_b32 v29, 7, v1\ns_mov_b32 s10, 0x400000\ns_mov_b32 s11, 0x20000')
            for i in range(2):
                a(f'''
                s_add_u32 s22, s21, {896 * i}
                s_cmp_ge_u32 s22, 512
                s_cselect_b32 s8, s{P_WV}, s{P_WK}
                s_cselect_b32 s9, s{P_WV+1}, s{P_WK+1}
                s_and_b32 s23, s22, 511
                s_lshl_b32 s23, s23, 13
                s_cmp_ge_u32 s22, 1024
                s_cselect_b32 s23, {hex(L.OOB)}, s23
                buffer_load_dword v{30+i%2}, v29, {SA}, s23 offen
                ''')
        def mallq():
            if o.get('mq', 0) == 0:
                a(f's_sub_u32 s21, {S_TEAM}, 1\ns_lshl_b32 s21, s21, 5\ns_add_u32 s21, s21, {S_RANK}\ns_lshl_b32 s21, s21, 2\ns_add_u32 s21, s21, {S_W}\ns_mul_i32 s21, s21, 5120')
                n = 5; lab = None
            else:
                lo = o.get('mq', 0) + 1; per = 6 - lo; n = -(-1024 // (32 * per))
                lab = a.newlabel('mq')
                a(f's_cmp_eq_u32 {S_ISB}, 1\ns_cbranch_scc1 {lab}\ns_cmp_lt_u32 {S_SEG}, {lo}\ns_cbranch_scc1 {lab}')
                a(f's_mul_i32 s21, {S_HEAD}, {per}\ns_add_u32 s21, s21, {S_SEG}\ns_sub_u32 s21, s21, {lo}\ns_lshl_b32 s21, s21, 2\ns_add_u32 s21, s21, {S_W}\ns_mul_i32 s21, s21, {1024 * n}')
            set_srd(a, 24, P_WQ, 4 << 20)
            a('v_lshlrev_b32 v29, 4, v1')
            vq = list(a.vq)
            if not o.get('mqser', 1): a.auto_vm = False
            for i in range(n): a(f'buffer_load_dwordx4 v[32:35], v29, s[24:27], s21 offen\ns_add_u32 s21, s21, 1024')
            a.auto_vm = True
            if lab: a(f'{lab}:'); a.vq = vq
        groups = [(m, b) for m in 'kvq' for b in range(2)]
        def issue(gi):
            m, b = groups[gi]
            if b == 0:
                ptr = {'q': P_WQ, 'k': P_WK, 'v': P_WV}[m]
                a(f"""
                s_cmp_eq_u32 {S_ISB}, 1
                s_cselect_b32 s8, s{P_WQKV}, s{ptr}
                s_cselect_b32 s9, s{P_WQKV+1}, s{ptr+1}
                s_mov_b32 s10, s75
                s_mov_b32 s11, 0x20000
                s_cselect_b32 s76, {'qkv'.index(m) * 1024}, 0
                s_add_u32 s76, s76, s77
                """)
            a(f's_add_u32 m0, s78, {(gi % 2) * L.GRP}')
            a(f's_add_u32 s21, {S_W}, {4 * b}\ns_mul_i32 s21, s21, s79\ns_add_u32 s21, s21, s76')
            self.dma_block('v28', 's21', S_STR)
        issue(0)
        self.load_table('T_W', 96, 24, 7)
        self.confirm_role()
        ad = o.get('adelay', 0)
        if ad:
            self.gate_and_store()
            a.wait(vm=0)
            self.signal_init(t=40)
        elif o.get('mallq', 1) == 1: mallq()
        issue(1)
        if o.get('mallq') == 2: mallq()
        self.mark(1)
        if not ad: self.gate_and_store()
        a(f'v_mov_b32 v{V_TID}, v0')
        for i in range(24): a(f'v_mov_b32 v{TB+i}, v{96+i}')
        a(f'v_add_u32 v29, {L.GRP}, v{tv("trp")}')
        a(f's_lshl_b32 s74, {S_SEG}, 5\ns_add_u32 s74, s74, {S_HEAD}\ns_lshl_b32 s74, s74, 6\ns_lshl_b32 s21, {S_W}, 2\ns_add_u32 s74, s74, s21\ns_add_u32 s74, s74, {hex(L.F_S)}')
        a(f's_cmp_lt_u32 {S_SEG}, 2\ns_cselect_b32 s74, s74, {hex(L.OOB)}\ns_cmp_eq_u32 {S_ISB}, 1\ns_cselect_b32 s74, {hex(L.OOB)}, s74')
        a(f'buffer_load_dword v30, v{tv("one")}, {WS}, s74 offen sc1')
        set_srd(a, 24, P_X, 2048 * 1024)
        a(f's_mov_b32 {S_XB}, 0\ns_mov_b32 {S_A}, {S_SEG}')
        a.auto_vm = False
        def consume(gi):
            m, b = groups[gi]
            a('s_barrier')
            for x in range(4):
                for p in range(2):
                    for h in range(2):
                        f = wfrag(m, 2 * (4 * b + x) + h, p)
                        kind, base = f[0], int(f[2:f.index(':')])
                        for r in range(2):
                            a(f'ds_read_b64_tr_b16 {kind}[{base+2*r}:{base+2*r+1}], v{tv("trp") if gi % 2 == 0 else 29} offset:{x * L.BLK + 512*h + 4224*r + 32*p}')
            a.wait(lgkm=0)
            a('s_barrier')
        VX = 25
        KP, VP = 112, 116
        acc = lambda m, p, tt: ACC + 16 * 'qkv'.index(m) + 8 * p + 4 * tt
        def xr(ks):
            for tt in range(2):
                a(f'ds_read_b128 {vr(XF + 8*(ks%2) + 4*tt, 4)}, v{VX} offset:{(ks*2+tt)*1024}')
        def loop_head(lab, mats, nst):
            a(f'{lab}:')
            pm = o.get('pmark') and lab == 'L_P_kv'
            if pm: a.raw('    s_memtime s[82:83]')
            a(f's_waitcnt vmcnt({nst + 1})')
            a('s_barrier')
            if pm: a.raw('    s_memtime s[84:85]')
            a(f's_add_u32 {S_A}, {S_SEG}, {S_STEP}\ns_min_u32 {S_A}, {S_A}, 63\ns_xor_b32 {S_XB}, {S_XB}, 32768')
            self.x_dma(-1)
            if pm: a.raw('    s_memtime s[86:87]')
            xr(0)
            for ks in range(16):
                if ks < 15: xr(ks + 1)
                if ks == 9:
                    if pm: a.raw('    s_memtime s[94:95]')
                    a('s_waitcnt vmcnt(8)')
                    if pm: a.raw('    s_memtime s[96:97]')
                    a(f'buffer_store_dword v{tv("oxr")}, v{tv("one")}, {WS}, {S_PF} offen sc1')
                for m in mats:
                    for p in range(2):
                        for tt in range(2):
                            d = vr(acc(m, p, tt), 4)
                            x = vr(XF + 8 * (ks % 2) + 4 * tt, 4); w = wfrag(m, ks, p)
                            A, B = (w, x) if m != 'v' else (x, w)
                            a(f'{mf32} {d}, {A}, {B}, {d if ks else 0}')
                            if ks < 8 and m == mats[0] and p == 0 and tt == 0: self.x_dma(ks)
            if pm: a.raw('    s_memtime s[98:99]')
            a(f'v_xor_b32 v{VX}, 32768, v{VX}')
        def loop_tail(lab):
            a(f's_add_u32 {S_SEG}, {S_SEG}, {S_STEP}\ns_cmp_lt_u32 {S_SEG}, {S_END}\ns_cbranch_scc1 {lab}')
            a('s_waitcnt vmcnt(0)')
            a(f'buffer_store_dword v{tv("oxr")}, v{tv("one")}, {WS}, {S_PF} offen sc1')
            a('s_barrier')
        def start_loop():
            a(f's_mov_b32 {S_PF}, {hex(L.OOB)}\nv_mov_b32 v{VX}, v{tv("l16")}')
        def init_sync(marks=True, t=40, off=60):
            a.forget()
            if marks:
                self.dump_marks(t)
                self.tstamp(1, t)
            lab = a.newlabel('wz')
            a(f'v_mov_b32 v{t+4}, {L.LDS_BYTES - 16}\ns_cmp_lg_u32 {S_W}, 0\ns_cbranch_scc1 {lab}')
            self.wait_init(t0=t, tid=V_TID, off=off, sleep=o.get('isl', 16))
            a(f'v_mov_b32 v{t+5}, s21\nds_write_b32 v{t+4}, v{t+5}')
            a.wait(lgkm=0)
            a(f'{lab}:\ns_waitcnt vmcnt(0)\ns_barrier\nds_read_b32 v{t+5}, v{t+4}')
            a(f'v_readfirstlane_b32 s21, v{t+5}')
            a(f's_cmp_ge_u32 s21, 32\ns_cselect_b32 {S_TFAST}, 1, 0')
            if o.get('force_slow'): a(f's_mov_b32 {S_TFAST}, 0')
            if marks: self.tstamp(2, t)
        def a_epilogue(frs, foff, flagoff):
            a(f"""
            s_lshl_b32 s21, {S_SEG}, 5
            s_add_u32 s21, s21, {S_HEAD}
            s_lshl_b32 {S_PF}, s21, 6
            s_mul_i32 s21, s21, 24576
            s_mul_i32 s22, {S_W}, 6144
            s_add_u32 s21, s21, s22
            s_add_u32 s21, s21, {foff}
            s_lshl_b32 s23, {S_W}, 2
            s_add_u32 {S_PF}, {S_PF}, s23
            s_add_u32 {S_PF}, {S_PF}, {hex(L.F_KV + flagoff)}
            """)
            for f, (t0, t1) in enumerate(frs):
                o4 = 32 + 4 * f
                for i, t in enumerate((t0, t1)):
                    r = acc(*t)
                    a(f'{cvt} v{o4+2*i}, v{r}, v{r+1}\n{cvt} v{o4+2*i+1}, v{r+2}, v{r+3}')
                a(f'buffer_store_dwordx4 {vr(o4,4)}, v{tv("l16")}, {WS}, s21 offen offset:{1024*f} sc1')
        self.mark(2)
        for gi in range(2):
            a.wait(vm=17 if (ad or gi) else 18)
            if gi == 0: self.mark(3)
            consume(gi); issue(gi + 2)
            if gi == 1 and not ad: self.signal_init(tid=V_TID, t=40, barrier=False)
        a.wait(vm=16); self.mark(4)
        consume(2)
        a(f's_cmp_eq_u32 {S_ISB}, 1\ns_cbranch_scc1 L_w_Bload')
        self.x_dma()
        a.wait(vm=8); self.mark(5); self.mark(6)
        consume(3)
        a.forget()
        if not o.get('pmark'): self.dump_marks(40)
        self.tstamp(1, 40); self.note(7, 40)
        a('s_waitcnt vmcnt(0)')
        a(f's_mov_b32 {S_FIRST}, {S_SEG}')
        start_loop()
        loop_head('L_P_kv', 'kv', 4)
        a_epilogue([[('k', 0, 0), ('k', 1, 0)], [('k', 0, 1), ('k', 1, 1)], [('v', 0, 0), ('v', 1, 1)], [('v', 1, 0), ('v', 0, 1)]], 0, 0)
        lab = a.newlabel('nf')
        a(f's_cmp_lg_u32 {S_SEG}, {S_FIRST}\ns_cbranch_scc1 {lab}')
        init_sync(marks=False, t=48)
        self.tstamp(2, 48)
        a(f'v_add_u32 v30, 1, v30\nbuffer_store_dword v30, v{tv("one")}, {WS}, s74 offen sc1')
        a(f'buffer_store_dword v{tv("oxr")}, v{tv("one")}, {WS}, {S_PF} offen sc1')
        if o.get('hold', 0):
            l2 = a.newlabel('hold')
            a(f's_cmp_lg_u32 {S_W}, 0\ns_cbranch_scc1 {l2}\ns_lshl_b32 s21, {S_HEAD}, 6\ns_add_u32 s21, s21, {hex(L.F_RS)}\nv_mov_b32 v48, 0')
            self.spin4('v48', 's21', 49, n=1, sleep=8)
            a(f'{l2}:')
        a(f'{lab}:')
        if o.get('pmark'):
            a.raw('    s_memtime s[100:101]')
            lab = a.newlabel('pm')
            a(f's_cmp_lt_u32 {S_SEG}, 30\ns_cbranch_scc1 {lab}\ns_cmp_ge_u32 {S_SEG}, 36\ns_cbranch_scc1 {lab}')
            self.dump_marks(48)
            a(f's_waitcnt vmcnt(0)\n{lab}:')
        if o.get('slowP'):
            for _ in range(4): a('s_sleep 127')
        loop_tail('L_P_kv')
        issue(4); issue(5)
        a('s_waitcnt vmcnt(16)'); consume(4)
        a(f's_mov_b32 {S_SEG}, {S_FIRST}\ns_mov_b32 {S_XB}, 0\ns_mov_b32 {S_A}, {S_SEG}')
        self.x_dma()
        a('s_waitcnt vmcnt(8)'); consume(5)
        a('s_waitcnt vmcnt(0)')
        start_loop()
        loop_head('L_P_q', 'q', 2)
        a_epilogue([[('q', 0, 0), ('q', 1, 0)], [('q', 0, 1), ('q', 1, 1)]], 4096, 16)
        loop_tail('L_P_q')
        a('s_branch L_P_done')
        a('L_w_Bload:')
        issue(4)
        a('s_waitcnt vmcnt(16)'); consume(3); issue(5)
        a('s_waitcnt vmcnt(16)'); self.mark(5); consume(4)
        self.x_dma()
        a('s_waitcnt vmcnt(8)'); self.mark(6); consume(5)
        init_sync()
        for r in range(KP, KP + 8, 2): a(f'v_mov_b64 {vr(r,2)}, 0')
        start_loop()
        loop_head('L_P_B', 'qkv', 4)
        G1 = 26
        a(f's_lshl_b32 s21, {S_SEG}, 7\ns_add_u32 s21, s21, {hex(L.GATE)}')
        a(f'buffer_load_dword v{G1}, v{tv("c4")}, {WS}, s21 offen sc1\nbuffer_load_dword v{G1+1}, v{tv("c4")}, {WS}, s21 offen offset:64 sc1')
        for m in 'qkv':
            for p in range(2):
                for tt in range(2):
                    r = acc(m, p, tt)
                    a(f'{cvt} v{r}, v{r}, v{r+1}\n{cvt} v{r+1}, v{r+2}, v{r+3}')
        a(f'''
        s_mov_b32 s80, 0xaaaaaaaa
        s_mov_b32 s81, 0xaaaaaaaa
        v_cmp_ne_u32 s[82:83], 0, v{tv("mc0")}
        v_cmp_ne_u32 s[84:85], 0, v{tv("mc1")}
        s_mov_b32 s86, {hex(f2u(0.25 * 1.4426950408889634))}
        s_cmp_eq_u32 {S_SEG}, 0
        s_cselect_b32 s87, 0xf149f2ca, 0
        s_lshl_b32 s21, {S_SEG}, 5
        s_lshl_b32 s22, {S_HEAD}, 3
        s_add_u32 s21, s21, s22
        s_lshl_b32 s22, {S_W}, 1
        s_add_u32 s21, s21, s22
        s_lshl_b32 s21, s21, 10
        s_add_u32 s21, s21, {hex(L.OB)}
        s_cmp_lt_u32 {S_SEG}, {S_FIRST}
        s_cselect_b32 s21, {hex(L.OOB)}, s21
        s_lshl_b32 {S_PF}, {S_SEG}, 2
        s_add_u32 {S_PF}, {S_PF}, {S_HEAD}
        s_lshl_b32 {S_PF}, {S_PF}, 6
        s_lshl_b32 s22, {S_W}, 2
        s_add_u32 {S_PF}, {S_PF}, s22
        s_add_u32 {S_PF}, {S_PF}, {hex(L.F_OB)}
        s_cmp_lt_u32 {S_SEG}, {S_FIRST}
        s_cselect_b32 {S_PF}, {hex(L.OOB)}, {S_PF}
        s_waitcnt vmcnt(0)
        v_sub_f32 v{G1}, 1.0, v{G1}
        v_sub_f32 v{G1+1}, 1.0, v{G1+1}
        ''')
        for p in range(2):
            for tt in range(2):
                q = acc('q', p, tt); kc = acc('k', p, tt); vc = acc('v', p, tt)
                kp = KP + 2 * p if tt == 0 else acc('k', p, 0)
                vp = VP + 2 * p if tt == 0 else acc('v', p, 0)
                SC_, SP_, OD = 28, 32, 36
                a(f'{mf16} {vr(SC_,4)}, {vr(kc,2)}, {vr(q,2)}, 0\n{mf16} {vr(SP_,4)}, {vr(kp,2)}, {vr(q,2)}, 0')
                for j in range(2):
                    a(f'v_cndmask_b32 v{SC_+2*j}, v{SC_+2*j}, v{SC_+2*j+1}, s[80:81]')
                    a(f'v_cndmask_b32 v{SP_+2*j}, v{SP_+2*j}, v{SP_+2*j+1}, s[80:81]')
                    if tt == 0: a(f'v_add_f32 v{SP_+2*j}, s87, v{SP_+2*j}')
                    a(f'v_cndmask_b32 v{40+j}, v{SP_+2*j}, v{SC_+2*j}, s[{82+2*j}:{83+2*j}]')
                a(f'{cvt} v41, v40, v41\nv_lshlrev_b32 v40, 16, v41\nv_and_b32 v41, 0xffff0000, v41')
                a('v_max_f32 v42, v40, v41')
                self.xlane('v_max_f32', 42, 43)
                a('v_mul_f32 v42, s86, v42')
                for j in range(2): a(f'v_fma_f32 v{40+j}, v{40+j}, s86, -v42\nv_exp_f32 v{40+j}, v{40+j}')
                a('v_add_f32 v42, v40, v41')
                self.xlane('v_add_f32', 42, 43)
                a(f'v_rcp_f32 v42, v42')
                for j in range(2):
                    a(f'{cvt} v{40+j}, v{40+j}, v{40+j}')
                    a(f'v_and_b32 v{44+j}, v{40+j}, v{tv(f"mc{j}")}\nv_and_b32 v{46+j}, v{40+j}, v{tv(f"mp{j}")}')
                a(f'v_mul_f32 v42, v42, v{G1+tt}')
                a(f'{mf16} {vr(OD,4)}, {vr(vc,2)}, v[44:45], 0\n{mf16} {vr(OD,4)}, {vr(vp,2)}, v[46:47], {vr(OD,4)}')
                for i in range(4): a(f'v_mul_f32 v{OD+i}, v{OD+i}, v42')
                ob = XF + 2 * (2 * p + tt)
                a(f'{cvt} v{ob}, v{OD}, v{OD+1}\n{cvt} v{ob+1}, v{OD+2}, v{OD+3}')
                a(f'buffer_store_dwordx2 {vr(ob,2)}, v{tv("l8")}, {WS}, s21 offen offset:{1024*p + 512*tt} sc1')
        for p in range(2):
            a(f'v_mov_b64 {vr(KP+2*p,2)}, {vr(acc("k",p,1),2)}\nv_mov_b64 {vr(VP+2*p,2)}, {vr(acc("v",p,1),2)}')
        loop_tail('L_P_B')
        if nb:
            self.tstamp(6, 40)
            a('s_endpgm')
        a('L_P_done:')
        self.tstamp(3, 40)
        self.note(8, 40)
        if o.get('no_F'):
            a('s_endpgm'); a.auto_vm = True; return
        self.f_phase()

    def spin4(self, voff, soff, tmp, n=4, sleep=2):
        a = self.a
        lab = a.newlabel('s4'); ok = a.newlabel('s4ok')
        ld = {1: 'buffer_load_dword', 4: 'buffer_load_dwordx4'}[n]
        a(f's_mov_b32 s23, {SPIN}\n{lab}:')
        a(f'{ld} {vr(tmp,n)}, {voff}, {WS}, {soff} offen sc1\ns_waitcnt vmcnt(0)')
        if n == 4: a(f'v_min_u32 v{tmp}, v{tmp}, v{tmp+1}\nv_min3_u32 v{tmp}, v{tmp}, v{tmp+2}, v{tmp+3}')
        a(f'v_cmp_eq_u32 vcc, 0, v{tmp}\ns_cbranch_vccz {ok}\n{"s_sleep %d" % sleep if sleep else ""}\ns_sub_u32 s23, s23, 1\ns_cbranch_scc0 {lab}\ns_mov_b32 {SPIN}, 0x400\n{ok}:')

    def f_phase(self):
        a = self.a; o = self.o
        set_srd(a, 8, P_WO, 4 << 20)
        a(f's_mul_i32 s78, {S_W}, 36864\ns_mov_b32 m0, s78')
        for kb in range(2):
            for T in range(4):
                a(f's_lshl_b32 s21, {S_RANK}, 17\ns_add_u32 s21, s21, {kb*65536 + T*64}')
                self.dma_chunk(f'v{tv("dma1k")}', 's21', 1024)
        set_srd(a, 8, P_WOB, 512 * 1024)
        for T in range(4):
            a(f's_lshl_b32 s21, {S_RANK}, 14\ns_add_u32 s21, s21, {T*64}')
            self.dma_chunk(f'v{tv("dma1k")}', 's21', 1024, n=1)
        set_srd(a, 12, P_OUT, 2048 * 1024)
        V_Z = 26
        a(f'v_mov_b32 v{V_Z}, 0')
        for kt in range(2):
            for i in range(4):
                a(f'v_cmp_le_i32 s[{64+8*kt+2*i}:{65+8*kt+2*i}], {16*kt+i}, v{tv("qrow")}')
        a('s_waitcnt vmcnt(0)')
        wof = lambda T, p, ks: 4 * ((T * 2 + p) * 4 + ks)
        wob = lambda T, p: 128 + 2 * (T * 2 + p)
        for kb in range(2):
            for T in range(4):
                so = (kb * 4 + T) * 4096
                for p in range(2):
                    for h in range(2):
                        for r in range(2):
                            a(f'ds_read_b64_tr_b16 {ar(wof(T,p,2*kb+h)+2*r,2)}, v{tv("trf")} offset:{so + 2048*h + 1024*r + 8*p}')
        for T in range(4):
            for p in range(2):
                a(f'ds_read_b64_tr_b16 {ar(wob(T,p),2)}, v{tv("trf")} offset:{32768 + 1024*T + 8*p}')
        a.wait(lgkm=0)
        S_FS, S_RB, S_FB = 's61', 's62', 's63'
        a(f's_sub_u32 {S_FS}, {S_TEAM}, {2 if o.get("nb", 1) else 1}\ns_mov_b32 s80, {hex(f2u(128 ** -0.5 * 1.4426950408889634))}\ns_mov_b32 s81, 0xf149f2ca')
        a(f's_lshr_b32 s82, {S_W}, 1\ns_and_b32 s83, {S_W}, 1')
        a(f's_lshl_b32 s86, {S_TEAM}, 21\ns_add_u32 s86, s86, {hex(L.FP)}')
        Q, K0, K1, V, KM, VM, OBF, G, S0, S1, SM, PX, PM, D, OF, AC = 28, 44, 60, 76, 92, 108, 112, 116, 120, 124, 128, 132, 136, 140, 156, 188
        a('L_F_loop:')
        a.forget(); a.auto_vm = True
        a(f'''
        s_lshl_b32 s21, {S_FS}, 5
        s_add_u32 s21, s21, {S_RANK}
        s_lshl_b32 {S_FB}, s21, 6
        s_mul_i32 {S_RB}, s21, 24576
        s_lshl_b32 s84, s21, 12
        s_add_u32 s84, s84, {hex(L.KVM)}
        s_lshl_b32 s85, s21, 10
        s_add_u32 s85, s85, {hex(L.OB)}
        s_add_u32 s21, {S_FB}, {hex(L.F_KV + 16)}
        ''')
        self.spin4(f'v{V_Z}', 's21', Q)
        a(f'''
        s_lshl_b32 s21, {S_FS}, 2
        s_lshr_b32 s22, {S_RANK}, 3
        s_add_u32 s21, s21, s22
        s_lshl_b32 s21, s21, 6
        s_and_b32 s22, {S_RANK}, 6
        s_lshl_b32 s22, s22, 1
        s_add_u32 s21, s21, s22
        s_add_u32 s21, s21, {hex(L.F_OB)}
        ''')
        self.spin4(f'v{V_Z}', 's21', Q, n=1)
        a.forget()
        l16 = f'v{tv("l16")}'
        NEGJ = 252
        a(f's_lshl_b32 s87, {S_FS}, 2\ns_add_u32 s87, s87, {S_W}\ns_lshl_b32 s87, s87, 5\ns_add_u32 s87, s87, {S_RANK}\ns_lshl_b32 s87, s87, 2\ns_add_u32 s87, s87, {hex(L.F_P)}')
        a(f's_cmp_eq_u32 {S_TFAST}, 0\ns_cselect_b32 s21, {hex(L.OOB)}, s87\nbuffer_load_dword v{NEGJ}, v{tv("one")}, {WS}, s21 offen')
        for qt in range(2):
            a(f'buffer_load_dwordx2 {vr(OBF+2*qt,2)}, v{tv("l8")}, {WS}, s85 offen offset:{512*qt} sc1')
        a(f's_lshl_b32 s22, s82, 10\ns_add_u32 s22, s22, 4096\ns_add_u32 s22, s22, {S_RB}\ns_mov_b32 s21, {S_RB}')
        for sl in range(4):
            a(f'buffer_load_dwordx4 {vr(Q+4*sl,4)}, {l16}, {WS}, s22 offen sc1')
            a(f'buffer_load_dwordx4 {vr(K0+4*sl,4)}, {l16}, {WS}, s21 offen sc1')
            a(f'buffer_load_dwordx4 {vr(K1+4*sl,4)}, {l16}, {WS}, s21 offen offset:1024 sc1')
            if sl < 3: a('s_add_u32 s21, s21, 6144\ns_add_u32 s22, s22, 6144')
        a(f's_mul_i32 s21, s83, 12288\ns_add_u32 s21, s21, {S_RB}\ns_add_u32 s22, s21, 6144')
        for sl in range(2):
            for f in range(2):
                a(f'buffer_load_dwordx4 {vr(V+8*sl+4*f,4)}, {l16}, {WS}, {"s21" if sl == 0 else "s22"} offen offset:{2048+1024*f} sc1')
        a(f's_lshl_b32 s21, {S_FS}, 7\ns_lshl_b32 s22, s82, 6\ns_add_u32 s21, s21, s22\ns_add_u32 s21, s21, {hex(L.GATE)}')
        a(f'buffer_load_dword v{G}, v{tv("c4")}, {WS}, s21 offen sc1')
        for qt in range(2):
            for T in range(4):
                for p in range(2):
                    a(f'{mf16} {vr(AC+32*qt+8*T+4*p,4)}, {ar(wob(T,p),2)}, {vr(OBF+2*qt,2)}, 0')
        for sl in range(4):
            a(f'{mf32} {vr(S0,4)}, {vr(K0+4*sl,4)}, {vr(Q+4*sl,4)}, {vr(S0,4) if sl else 0}')
            a(f'{mf32} {vr(S1,4)}, {vr(K1+4*sl,4)}, {vr(Q+4*sl,4)}, {vr(S1,4) if sl else 0}')
        NEG = 27
        a(f'v_mov_b32 v{NEG}, s81')
        for kt, Sx in enumerate((S0, S1)):
            for i in range(4): a(f'v_cndmask_b32 v{Sx+i}, v{NEG}, v{Sx+i}, s[{64+8*kt+2*i}:{65+8*kt+2*i}]')
        MX = 117
        a(f'v_max3_f32 v{MX}, v{S0}, v{S0+1}, v{S0+2}\nv_max3_f32 v{MX}, v{MX}, v{S0+3}, v{S1}\nv_max3_f32 v{MX}, v{MX}, v{S1+1}, v{S1+2}\nv_max_f32 v{MX}, v{MX}, v{S1+3}')
        if o.get('fpt', 1):
            a(f's_xor_b32 s22, s86, {1<<20}\ns_lshl_b32 s21, {S_RANK}, 10\ns_add_u32 s21, s21, s22\ns_lshl_b32 s22, {S_W}, 17\ns_add_u32 s21, s21, s22')
            a(f's_cmp_eq_u32 {S_TFAST}, 0\ns_cselect_b32 s21, {hex(L.OOB)}, s21')
            for k in range(8):
                a(f'buffer_load_dwordx4 {vr(OF,4)}, {l16}, {WS}, s21 offen\ns_add_u32 s21, s21, {32768 if k % 4 < 3 else 13 * 32768}')
        a.wait(vm=0)
        skip = a.newlabel('fw')
        dp = o.get('dpoll', 1)
        if dp:
            a(f"""
            s_cmp_ge_u32 {S_FS}, 62
            s_cselect_b32 s22, {hex((L.KVL - L.KVM - 62 * 131072) & 0xFFFFFFFF)}, 0
            s_add_u32 s84, s84, s22
            s_max_u32 s22, {S_FS}, 61
            s_sub_u32 s22, s22, 61
            s_lshl_b32 s22, s22, 11
            """)
        else: a('s_mov_b32 s22, 0')
        a(f's_cmp_lg_u32 {S_W}, 0\ns_cbranch_scc1 {skip}\ns_add_u32 s21, {S_FB}, {hex(L.F_M)}\ns_sub_u32 s21, s21, s22')
        self.spin4(f'v{V_Z}', 's21', KM)
        self.tstamp(4, 252)
        a(f'{skip}:\ns_barrier')
        fm = (lambda i: a.raw(f'    s_memtime s[{88+2*i}:{89+2*i}]')) if o.get('fmark') else (lambda i: None)
        fm(1)
        a.forget()
        a(f's_lshl_b32 s21, s83, 11\ns_add_u32 s21, s21, s84\ns_mov_b32 s23, 0x8000\nL_F_km:')
        for sl in range(4):
            a(f'buffer_load_dwordx4 {vr(KM+4*sl,4)}, {l16}, {WS}, s84 offen offset:{1024*sl} sc1')
        for sl in range(2):
            a(f'buffer_load_dwordx2 {vr(VM+2*sl,2)}, v{tv("vml")}, {WS}, s21 offen offset:{1024*sl} sc1')
        if dp:
            a(f's_cmp_lt_u32 {S_FS}, 62\ns_cbranch_scc1 L_F_kmok')
            vq = list(a.vq)
            a(f'v_max3_u32 v118, v{KM}, v{KM+1}, v{KM+2}')
            for r in range(KM + 3, KM + 19, 2): a(f'v_max3_u32 v118, v118, v{r}, v{r+1}')
            a(f'v_max_u32 v118, v118, v{VM+3}\nv_cmp_eq_u32 vcc, -1, v118\ns_cbranch_vccz L_F_kmok')
            if o.get('dsl', 0): a(f's_sleep {o.get("dsl")}')
            a(f's_sub_u32 s23, s23, 1\ns_cbranch_scc0 L_F_km\nL_F_kmok:')
            a.vq = vq
        for sl in range(4):
            a(f'{mf32} {vr(SM,4)}, {vr(KM+4*sl,4)}, {vr(Q+4*sl,4)}, {vr(SM,4) if sl else 0}')
        fm(2)
        a(f'v_max3_f32 v{MX}, v{MX}, v{SM}, v{SM+1}')
        self.xlane('v_max_f32', MX, 118)
        a(f'v_mul_f32 v{MX}, s80, v{MX}')
        E = [S0 + i for i in range(4)] + [S1 + i for i in range(4)] + [SM, SM + 1]
        for e in E: a(f'v_fma_f32 v{e}, v{e}, s80, -v{MX}')
        for e in E: a(f'v_exp_f32 v{e}, v{e}')
        a(f'{cvt} v{PX}, v{S0}, v{S0+1}\n{cvt} v{PX+1}, v{S0+2}, v{S0+3}\n{cvt} v{PX+2}, v{S1}, v{S1+1}\n{cvt} v{PX+3}, v{S1+2}, v{S1+3}')
        a(f'{cvt} v{PM}, v{SM}, v{SM+1}\nv_mov_b32 v{PM+1}, 0\nv_mov_b32 v{PM+2}, 0\n{cvt} v{PM+3}, v{SM}, v{SM+1}')
        for sl in range(2):
            f1, f2 = V + 8 * sl, V + 8 * sl + 4
            for p in range(2):
                d = vr(D + 8 * sl + 4 * p, 4)
                X = f1 if p == 0 else f2; Y = f2 + 2 if p == 0 else f1 + 2
                a(f'{mf16} {d}, {vr(X,2)}, {vr(PX,2)}, 0')
                a(f'{mf16} {d}, {vr(Y,2)}, {vr(PX+2,2)}, {d}')
                a(f'{mf16} {d}, {vr(VM+2*sl,2)}, {vr(PM+2*p,2)}, {d}')
        LS = 119
        a(f'v_add_f32 v{LS}, v{E[0]}, v{E[1]}')
        for e in E[2:]: a(f'v_add_f32 v{LS}, v{LS}, v{e}')
        self.xlane('v_add_f32', LS, 118)
        a(f'v_rcp_f32 v{LS}, v{LS}\nv_mul_f32 v{LS}, v{LS}, v{G}')
        for i in range(16): a(f'v_mul_f32 v{D+i}, v{D+i}, v{LS}')
        for i in range(8): a(f'{cvt} v{D+i}, v{D+2*i}, v{D+2*i+1}')
        fm(3)
        for sl in range(2): a(f'ds_write_b128 v{tv("oxw")}, {vr(D+4*sl,4)} offset:{1024*sl}')
        a.wait(lgkm=0)
        a('s_barrier')
        for qt in range(2):
            for sl in range(4):
                a(f'ds_read_b128 {vr(OF+16*qt+4*sl,4)}, v{tv("oxr")} offset:{4096*qt+1024*sl}')
        a(f's_xor_b32 s86, s86, {1<<20}\ns_lshl_b32 s21, {S_RANK}, 10\ns_add_u32 s21, s21, s86\ns_lshl_b32 s22, {S_W}, 17\ns_add_u32 s21, s21, s22')
        a(f's_cmp_eq_u32 {S_TFAST}, 0\ns_cbranch_scc1 L_F_slowst')
        lq0 = list(a.lq)
        for cf in ('', 'sc1'):
            if cf: a('L_F_slowst:'); a.lq = list(lq0)
            df = cf or ('nt' if o.get('fpnt') else '')
            def fin(k):
                qt, T = divmod(k, 4)
                r = AC + 32 * qt + 8 * T
                for i in range(4): a(f'{cvt} v{r+i}, v{r+2*i}, v{r+2*i+1}')
                a(f'buffer_store_dwordx4 {vr(r,4)}, {l16}, {WS}, s21 offen {df}')
                a(f's_add_u32 s21, s21, {32768 if T < 3 else 13 * 32768}')
            for k in range(8):
                qt, T = divmod(k, 4)
                for ks in range(4):
                    for p in range(2):
                        d = vr(AC + 32 * qt + 8 * T + 4 * p, 4)
                        a(f'{mf32} {d}, {ar(wof(T,p,ks),4)}, {vr(OF+16*qt+4*ks,4)}, {d}')
                if k: fin(k - 1)
            fin(7)
            fm(4)
            a.wait(vm=0)
            fm(5)
            a(f'buffer_store_dword v{tv("oxr")}, v{tv("one")}, {WS}, s87 offen {cf}')
            if not cf: a('s_branch L_F_stdone')
        a('L_F_stdone:')
        self.tstamp(5, 252)
        a(f's_lshl_b32 s21, {S_FS}, 9\ns_and_b32 s22, {S_RANK}, 12\ns_lshl_b32 s22, s22, 5\ns_add_u32 s21, s21, s22\ns_add_u32 s21, s21, {hex(L.F_P)}')
        self.spin4(f'v{tv("pfl")}', 's21', Q, n=1, sleep=0)
        fm(6)
        if o.get('fmark'):
            a(f's_lshl_b32 s21, {S_TEAM}, 5\ns_add_u32 s21, s21, {S_RANK}\ns_lshl_b32 s21, s21, 7\ns_add_u32 s21, s21, {hex(L.DBG + 65536)}\ns_waitcnt lgkmcnt(0)')
            for i in range(1, 7): a(f'v_mov_b32 v252, s{88+2*i}\nbuffer_store_dword v252, v{V_Z}, {WS}, s21 offen offset:{4*(15+i)}')
        a.forget()
        a(f's_lshl_b32 s21, {S_RANK}, 15\ns_add_u32 s21, s21, s86')
        for l in range(8):
            a(f'buffer_load_dwordx4 {vr(Q+4*l,4)}, v{tv("fpld")}, {WS}, s21 offen sc1')
            if l < 7: a('s_add_u32 s21, s21, 4096')
        for l in range(8):
            a(f'{mf32} {vr(S0,4)}, {vr(tv("self0"),4)}, {vr(Q+4*l,4)}, {vr(S0,4) if l else 0}')
        a(f's_lshl_b32 s21, {S_FS}, 5\ns_and_b32 s22, {S_RANK}, 16\ns_add_u32 s21, s21, s22\ns_lshl_b32 s21, s21, 10\ns_and_b32 s22, {S_RANK}, 15\ns_lshl_b32 s22, s22, 6\ns_add_u32 s21, s21, s22')
        a(f'{cvt} v{S0}, v{S0}, v{S0+1}\n{cvt} v{S0+1}, v{S0+2}, v{S0+3}')
        a(f'buffer_store_dwordx2 {vr(S0,2)}, v{tv("outst")}, {ST}, s21 offen')
        if o.get('wb'):
            lab = a.newlabel('wb')
            a(f's_cmp_lt_u32 {S_FS}, 52\ns_cbranch_scc1 {lab}\ns_cmp_ge_u32 {S_FS}, {o.get("wbmax", 62)}\ns_cbranch_scc1 {lab}')
            a(f's_or_b32 s21, {S_RANK}, {S_W}\ns_cmp_lg_u32 s21, 0\ns_cbranch_scc1 {lab}\ns_sleep 32\nbuffer_wbl2 sc1\ns_waitcnt vmcnt(0)\n{lab}:')
        a(f's_add_u32 {S_FS}, {S_FS}, {6 if o.get("nb", 1) else 7}\ns_cmp_lt_u32 {S_FS}, 64\ns_cbranch_scc1 L_F_loop')
        a.wait(vm=0)
        self.tstamp(6, 40)
        self.span(40)
        self.note(9, 40)
        a('s_endpgm')
```

```python
import sys, math
from asmlib import Asm
import layout as L

KNAME = 'gated_mix__memory_aug_recurrent_mem_tr__sliding_local_dilated__prompt_kernel'

from gen_common import *

DOC = '''; One persistent launch, one workgroup (4 waves x 512 registers, all LDS) per CU, roles by team (= compute die) and slot:
; All cross-workgroup hand-offs are cleared in-launch (start-up barrier in d_debug); every wait is bounded.
'''

class Gen:
    def __init__(self, opt):
        self.o = opt
        self.a = Asm()

    def prologue(self):
        a = self.a; o = self.o
        a(f'''
        s_cmp_ge_u32 s2, 256
        s_cbranch_scc1 L_exit
        {'s_memrealtime s[30:31]' if (o.get('stamp') or o.get('span') or o.get('span2') or o.get('lite')) else ''}
        s_load_dwordx16 s[32:47], s[0:1], 0
        s_load_dwordx8 s[48:55], s[0:1], 64
        s_load_dwordx4 s[56:59], s[0:1], 96
        s_getreg_b32 s20, hwreg(HW_REG_XCC_ID)
        v_lshrrev_b32 v1, 6, v0
        s_and_b32 s20, s20, 7
        v_readfirstlane_b32 {S_W}, v1
        s_mov_b32 {SPIN}, 0x400000
        ''')
        if o.get('rx', 3): a(f's_xor_b32 s20, s20, {o.get("rx", 3)}')
        if o.get('fake_xcc'):
            a('s_and_b32 s20, s2, 1\ns_add_u32 s20, s20, 1')
        if o.get('fake_perm'):
            a('s_xor_b32 s2, s2, 0x55\ns_lshl_b32 s21, s2, 3\ns_lshr_b32 s2, s2, 5\ns_or_b32 s2, s2, s21\ns_and_b32 s2, s2, 255')
        a.wait(lgkm=0)
        if o.get('touch'):
            MBy = 1 << 20
            touch = [(p, off) for p in (P_WO, P_WQ, P_WK, P_WV) for off in (0, 2 * MBy, 4 * MBy - 128)]
            touch += [(P_X, 2 * MBy - 128), (P_GATE, 0), (P_MEM0, 0), (P_WQKV, 0), (P_WQKV, 512 * 3072 - 128), (P_WOB, 0), (P_DBG, 0)]
            touch += [(P_WS, L.GATE + 16384), (P_WS, L.RIN + MBy), (None, 0)]
            a(f'v_mov_b32 v30, s{P_X}\nv_mov_b32 v31, s{P_X+1}')
            for i, (p, off) in enumerate(touch):
                if p is None: a('s_getpc_b64 s[22:23]\ns_add_u32 s22, s22, 0x8000\ns_addc_u32 s23, s23, 0')
                elif off: a(f's_add_u32 s22, s{p}, {hex(off)}\ns_addc_u32 s23, s{p+1}, 0')
                lo, hi = ('s22', 's23') if (off or p is None) else (f's{p}', f's{p+1}')
                a(f'v_writelane_b32 v30, {lo}, {i+1}\nv_writelane_b32 v31, {hi}, {i+1}')
            a('global_load_dword v29, v[30:31], off')
        set_srd(a, 4, P_WS, L.WS_BYTES)
        set_srd(a, 12, P_DBG, 256)
        a(f'''
        s_mul_i32 s21, s20, 24
        s_add_u32 s21, s21, 40
        s_cmp_eq_u32 s20, 0
        s_cselect_b32 s21, 0, s21
        s_mov_b32 s29, s21
        s_lshr_b32 {S_RANK}, s2, 3
        {'s_xor_b32 %s, %s, %d' % (S_RANK, S_RANK, o.get('hx')) if o.get('hx') else ''}
        s_lshl_b32 s28, 1, {S_RANK}
        s_mov_b32 {S_TEAM}, s20
        s_mov_b32 s19, 0
        v_mov_b32 v2, s21
        v_mov_b32 v63, s28
        v_cmp_ne_u32 vcc, 0, v0
        v_mov_b32 v4, {hex(L.OOB)}
        v_cndmask_b32 v2, v2, v4, vcc
        ''')
        a(f'buffer_atomic_or v63, v2, {ST}, 0 offen sc0')
        set_srd(a, 8, P_X, 2048 * 1024)
        a(f'''
        v_and_b32 v5, 63, v0
        v_lshlrev_b32 v5, 4, v5
        s_lshl_b32 s22, s2, 13
        s_lshl_b32 s23, {S_W}, 11
        s_add_u32 s22, s22, s23
        buffer_load_dwordx4 v[8:11], v5, {SA}, s22 offen
        buffer_load_dwordx4 v[12:15], v5, {SA}, s22 offen offset:1024
        ''')
        set_srd(a, 24, P_GATE, 1024)
        a(f'buffer_load_dwordx4 v[16:19], v5, s[24:27], 0 offen')
        a(f'''
        v_mov_b32 v20, -1
        v_mov_b32 v21, -1
        v_mov_b32 v22, -1
        v_mov_b32 v23, -1
        v_mov_b32 v24, 0
        v_mov_b32 v25, 0
        v_mov_b32 v26, 0
        v_mov_b32 v27, 0
        v_lshlrev_b32 v6, 4, v0
        s_lshl_b32 s22, s2, 12
        s_add_u32 s22, s22, {hex(L.RIN)}
        buffer_store_dwordx4 v[20:23], v6, {WS}, s22 offen sc1
        v_cmp_le_u32 vcc, 0x80, v0
        s_lshl_b32 s22, s2, 11
        s_add_u32 s22, s22, {hex(L.FLG)}
        v_cndmask_b32 v7, v6, v4, vcc
        ''')
        if o.get('keep_kv_flags'):
            a(f's_cmp_lt_u32 s2, 64\ns_cselect_b32 s22, {hex(L.OOB)}, s22')
        a(f'buffer_store_dwordx4 v[24:27], v7, {WS}, s22 offen sc1')
        self.vq_role = list(a.vq)
        a('L_role_ok:')
        a(f's_cmp_eq_u32 {S_TEAM}, 0\ns_cbranch_scc1 L_R')
        a('s_branch L_worker')

    def confirm_role(self):
        a = self.a
        ok = a.newlabel('cf'); sk = a.newlabel('cfs')
        a(f's_cmp_eq_u32 s19, 1\ns_cbranch_scc1 {ok}')
        sv = list(a.vq)
        a(f'v_mov_b32 v62, {L.LDS_BYTES - 32}\ns_cmp_lg_u32 {S_W}, 0\ns_cbranch_scc1 {sk}')
        a('v_readfirstlane_b32 s21, v63\nv_mov_b32 v63, s21\nds_write_b32 v62, v63')
        a.wait(lgkm=0)
        a.vq = sv
        a(f'{sk}:\ns_barrier\nds_read_b32 v61, v62')

        a(f'v_readfirstlane_b32 s21, v61\ns_mov_b32 s19, 1\ns_and_b32 s22, s21, s28\ns_cbranch_scc1 L_reclaim\n{ok}:')

    def reclaim(self):
        a = self.a
        a.auto_vm = False
        set_srd(a, 12, P_DBG, 256)
        a(f"""
        L_reclaim:
        s_waitcnt vmcnt(0)
        s_barrier
        s_mov_b32 s12, s{P_DBG}
        s_mov_b32 s13, s{P_DBG+1}
        s_mov_b32 s14, 256
        s_mov_b32 s15, 0x20000
        v_mov_b32 v4, {hex(L.OOB)}
        v_cmp_ne_u32 vcc, 0, v0
        s_cmp_lg_u32 {S_W}, 0
        s_cbranch_scc1 L_rc_done
        v_mov_b32 v2, s29
        v_cndmask_b32 v2, v2, v4, vcc
        v_mov_b32 v63, 1
        buffer_atomic_add v63, v2, {ST}, 0 offen offset:8 sc0
        v_and_b32 v2, 7, v0
        v_mul_u32_u24 v61, 24, v2
        v_add_u32 v61, 40, v61
        v_cmp_eq_u32 vcc, 0, v2
        v_cndmask_b32 v61, v61, v2, vcc
        s_waitcnt vmcnt(0)
        v_readfirstlane_b32 s28, v63
        s_mov_b32 s21, {SPIN}
        L_ov_poll:
        buffer_load_dword v60, v61, {ST}, 0 offen sc1
        buffer_load_dword v63, v61, {ST}, 0 offen offset:8 sc1
        s_waitcnt vmcnt(0)
        s_mov_b32 s22, 0
        """)
        for x in range(8): a(f'v_readlane_b32 s{64+x}, v60, {x}\nv_readlane_b32 s{72+x}, v63, {x}')
        a('s_nop 1')
        for x in range(8): a(f's_bcnt1_i32_b32 s23, s{64+x}\ns_add_u32 s22, s22, s23\ns_add_u32 s22, s22, s{72+x}')
        a(f"""
        s_cmp_ge_u32 s22, 256
        s_cbranch_scc1 L_ov_have
        s_sub_u32 s21, s21, 1
        s_cbranch_scc1 L_ov_none
        s_sleep 4
        s_branch L_ov_poll
        L_ov_have:
        s_mov_b32 s22, 0
        """)
        for x in range(8):
            a(f"""
            s_bcnt0_i32_b32 s{80+x}, s{64+x}
            s_cmp_eq_u32 s20, {x}
            s_cselect_b32 s21, s{64+x}, s21
            s_cselect_b32 s29, s{80+x}, s29
            s_max_u32 s23, s{72+x}, s{80+x}
            s_sub_u32 s23, s23, s{80+x}
            s_cmp_gt_u32 s20, {x}
            s_cselect_b32 s23, s23, 0
            s_add_u32 s22, s22, s23
            """)
        a(f's_cmp_lt_u32 s28, s29\ns_cbranch_scc1 L_ov_bit\ns_sub_u32 s28, s28, s29\ns_add_u32 s22, s22, s28')
        for x in range(8):
            a(f"""
            s_max_u32 s23, s{80+x}, s{72+x}
            s_sub_u32 s23, s23, s{72+x}
            s_mov_b32 {S_TEAM}, {x}
            s_mov_b32 s21, s{64+x}
            s_add_u32 s28, s{72+x}, s22
            s_cmp_lt_u32 s22, s23
            s_cbranch_scc1 L_ov_bit
            s_sub_u32 s22, s22, s23
            """)
        a(f"""
        L_ov_none:
        s_mov_b32 {S_TEAM}, 8
        s_mov_b32 {S_RANK}, 0
        s_branch L_rc_have
        L_ov_bit:
        s_ff0_i32_b32 {S_RANK}, s21
        s_and_b32 {S_RANK}, {S_RANK}, 31
        s_bitset1_b32 s21, {S_RANK}
        s_sub_u32 s28, s28, 1
        s_cbranch_scc0 L_ov_bit
        L_rc_have:
        s_lshl_b32 s21, {S_TEAM}, 5
        s_add_u32 s21, s21, {S_RANK}
        v_mov_b32 v63, s21
        ds_write_b32 v62, v63
        s_waitcnt lgkmcnt(0)
        L_rc_done:
        s_barrier
        ds_read_b32 v63, v62
        s_waitcnt lgkmcnt(0)
        v_readfirstlane_b32 s21, v63
        s_nop 0
        s_lshr_b32 {S_TEAM}, s21, 5
        s_and_b32 {S_RANK}, s21, 31
        s_cmp_lt_u32 {S_TEAM}, 8
        s_cbranch_scc1 L_role_ok
        """)
        a.forget(); a.auto_vm = True

    def gate_and_store(self, tmp=28):
        a = self.a
        a('v_mov_b32 v20, 0\nv_mov_b32 v21, 0')
        for i in range(4):
            a(f'v_dot2c_f32_bf16 v20, v{8+i}, v{16+i}\nv_dot2c_f32_bf16 v21, v{12+i}, v{16+i}')
        a('s_nop 2')
        a('v_permlane32_swap_b32 v20, v21\nv_add_f32 v20, v20, v21')
        a('v_mov_b32 v21, v20\nv_permlane16_swap_b32 v20, v21\nv_add_f32 v20, v20, v21')
        for sh in (8, 4, 2, 1):
            a(f'v_add_f32_dpp v20, v20, v20 row_ror:{sh} row_mask:0xf bank_mask:0xf')
        a(f'''
        v_mul_f32 v20, 0xbfb8aa3b, v20
        v_exp_f32 v20, v20
        v_add_f32 v20, 1.0, v20
        v_rcp_f32 v20, v20
        v_and_b32 v21, 63, v0
        v_lshrrev_b32 v22, 5, v21
        v_lshlrev_b32 v22, 2, v22
        v_and_b32 v21, 31, v21
        v_cmp_ne_u32 vcc, 0, v21
        v_mov_b32 v23, {hex(L.OOB)}
        v_cndmask_b32 v22, v22, v23, vcc
        s_lshl_b32 s22, s2, 5
        s_lshl_b32 s23, {S_W}, 3
        s_add_u32 s22, s22, s23
        s_add_u32 s22, s22, {hex(L.GATE)}
        buffer_store_dword v20, v22, {WS}, s22 offen sc1
        ''')

    def signal_init(self, tid=0, t=20, barrier=True, off=60):
        a = self.a
        lab = a.newlabel('sig')
        set_srd(a, 12, P_DBG, 256)
        if barrier: a('s_barrier')
        a(f'''
        s_cmp_lg_u32 {S_W}, 0
        s_cbranch_scc1 {lab}
        s_and_b32 s21, s2, 3
        s_lshl_b32 s21, s21, 6
        s_add_u32 s21, s21, {off}
        v_mov_b32 v{t}, s21
        v_mov_b32 v{t+1}, 1
        v_mov_b32 v{t+2}, {hex(L.OOB)}
        v_and_b32 v{t+3}, 63, v{tid}
        v_cmp_ne_u32 vcc, 0, v{t+3}
        v_cndmask_b32 v{t}, v{t}, v{t+2}, vcc
        buffer_atomic_add v{t+1}, v{t}, {ST}, 0 offen
        {lab}:
        ''')

    def wait_init(self, t0=20, tid=0, sleep=16, off=60):
        a = self.a
        lab = a.newlabel('wi'); ok = a.newlabel('wiok')
        set_srd(a, 12, P_DBG, 256)
        sv = a.auto_vm; a.auto_vm = False
        a(f'''
        v_and_b32 v{t0}, 3, v{tid}
        v_lshlrev_b32 v{t0}, 6, v{t0}
        v_add_u32 v{t0}, {off}, v{t0}
        s_mul_i32 s21, {S_TEAM}, 24
        s_add_u32 s21, s21, 40
        s_cmp_eq_u32 {S_TEAM}, 0
        s_cselect_b32 s21, 0, s21
        v_and_b32 v{t0+2}, 1, v{tid}
        v_lshl_add_u32 v{t0+2}, v{t0+2}, 3, s21
        s_mov_b32 s23, {SPIN}
        {lab}:
        buffer_load_dword v{t0+1}, v{t0}, {ST}, 0 offen sc1
        buffer_load_dword v{t0+3}, v{t0+2}, {ST}, 0 offen sc1
        s_waitcnt vmcnt(0)
        v_readlane_b32 s22, v{t0+3}, 1
        v_readlane_b32 s84, v{t0+1}, 0
        v_readlane_b32 s85, v{t0+1}, 1
        v_readlane_b32 s86, v{t0+1}, 2
        v_readlane_b32 s87, v{t0+1}, 3
        v_readlane_b32 s21, v{t0+3}, 0
        s_nop 1
        s_bcnt1_i32_b32 s21, s21
        s_add_u32 s21, s21, s22
        s_add_u32 s84, s84, s85
        s_add_u32 s86, s86, s87
        s_add_u32 s84, s84, s86
        s_cmp_ge_u32 s84, 256
        s_cbranch_scc1 {ok}
        s_sleep {sleep}
        s_sub_u32 s23, s23, 1
        s_cbranch_scc0 {lab}
        {ok}:
        ''')
        a.auto_vm = sv
        a.forget()

    def tstamp(self, i, t):
        if not (self.o.get('stamp') or (self.o.get('lite') and i == 6)): return
        a = self.a
        lab = a.newlabel('ts')
        a(f'''
        s_cmp_lg_u32 {S_W}, 0
        s_cbranch_scc1 {lab}
        s_memrealtime s[90:91]
        s_lshl_b32 s92, {S_TEAM}, 5
        s_add_u32 s92, s92, {S_RANK}
        s_lshl_b32 s92, s92, 7
        s_add_u32 s92, s92, {hex(L.DBG + 65536 + 4 * i)}
        s_waitcnt lgkmcnt(0)
        v_mov_b32 v{t}, s90
        v_mov_b32 v{t+1}, 0
        buffer_store_dword v{t}, v{t+1}, {WS}, s92 offen
        {'v_mov_b32 v%d, s30' % t if i in (1, 6) else ''}
        {'buffer_store_dword v%d, v%d, %s, s92 offen offset:%d' % (t, t+1, WS, 124 if i == 1 else 4) if i in (1, 6) else ''}
        s_waitcnt vmcnt(0)
        {lab}:
        ''')

    def span(self, t):
        if not self.o.get('span'): return
        a = self.a
        set_srd(a, 12, P_DBG, 256)
        a(f'''
        s_waitcnt vmcnt(0)
        s_memrealtime s[90:91]
        s_not_b32 s30, s30
        v_mov_b32 v{t}, 16
        v_mov_b32 v{t+1}, s30
        s_waitcnt lgkmcnt(0)
        v_mov_b32 v{t+2}, s90
        s_mov_b64 exec, 1
        buffer_atomic_umax v{t+1}, v{t}, {ST}, 0 offen
        buffer_atomic_umax v{t+2}, v{t}, {ST}, 0 offen offset:4
        ''')
    def note(self, slot, t, rank=0):
        if not self.o.get('span2'): return
        a = self.a
        lab = a.newlabel('nt')
        a(f's_cmp_lg_u32 {S_W}, 0\ns_cbranch_scc1 {lab}\ns_cmp_lg_u32 {S_RANK}, {rank}\ns_cbranch_scc1 {lab}\ns_cmp_lg_u32 {S_TEAM}, {5 if slot >= 7 else 0}\ns_cbranch_scc1 {lab}')
        set_srd(a, 92, P_DBG, 256)
        a(f'''
        s_memrealtime s[90:91]
        v_mov_b32 v{t}, {4*(slot+2)}
        s_waitcnt lgkmcnt(0)
        s_sub_u32 s90, s90, s30
        v_mov_b32 v{t+1}, s90
        buffer_store_dword v{t+1}, v{t}, s[92:95], 0 offen
        {lab}:
        ''')
    def mark(self, i):
        if self.o.get('stamp'): self.a.raw(f'    s_memrealtime s[{82+2*i if i < 4 else 86+2*i}:{83+2*i if i < 4 else 87+2*i}]')
    def dump_marks(self, t):
        if not self.o.get('stamp'): return
        a = self.a
        a(f's_lshl_b32 s92, {S_TEAM}, 5\ns_add_u32 s92, s92, {S_RANK}\ns_lshl_b32 s92, s92, 7\ns_add_u32 s92, s92, {hex(L.DBG + 65536)}\ns_waitcnt lgkmcnt(0)\nv_mov_b32 v{t+1}, 0')
        for i in range(7):
            a(f'v_mov_b32 v{t}, s{82+2*i if i < 4 else 86+2*i}\nbuffer_store_dword v{t}, v{t+1}, {WS}, s92 offen offset:{4*(8+i)}')

    def dma_chunk(self, voff, soff, stride, n=4):
        a = self.a
        for i in range(n):
            a(f'buffer_load_dwordx4 {voff}, {SA}, {soff} offen lds')
            a(f's_add_u32 m0, m0, 1024')
            if i < n - 1: a(f's_add_u32 {soff}, {soff}, {16*stride}')

    def dma_block(self, voff, soff, stride):
        a = self.a
        for i in range(16):
            a(f'buffer_load_dwordx4 {voff}, {SA}, {soff} offen lds')
            if i < 15: a(f's_add_u32 m0, m0, 1056\ns_add_u32 {soff}, {soff}, {stride}')

    def load_table(self, label, dst, ndw, tmp):
        a = self.a
        pc = a.newlabel('pc')
        a(f'''
        s_getpc_b64 s[12:13]
        {pc}:
        s_add_u32 s12, s12, {label}-{pc}
        s_addc_u32 s13, s13, 0
        s_mov_b32 s14, {256*ndw*4}
        s_mov_b32 s15, 0x20000
        v_mul_u32_u24 v{tmp}, {ndw*4}, v0
        ''')
        for i in range(0, ndw, 4):
            a(f'buffer_load_dwordx4 {vr(dst+i,4)}, v{tmp}, {ST}, 0 offen offset:{i*4}')

from rrole import RRole
from workers import Workers

class Full(Gen, RRole, Workers):
    def build(self):
        a = self.a
        self.prologue()
        self.r_role()
        self.worker_role()
        self.reclaim()
        a('L_exit:\ns_endpgm')
        a.timed = not self.o.get('untimed')
        n = a.pad_hazards()
        a.merge_nops()
        hdr = open('cdna_kernels/' + KNAME[:-7] + '.s.ref').read().split('\n')
        hdr = [h for h in hdr if h.startswith(';') and '@launch' not in h and 'Override' not in h and 'grid=ceil' not in h]
        txt = '\n'.join(hdr) + f'\n; @launch grid=(256,1,1) block=(256,1,1) lds={L.LDS_BYTES}\n'
        txt += DOC
        txt += f'.amdgcn_target "amdgcn-amd-amdhsa--gfx950"\n.text\n.globl {KNAME}\n.p2align 8\n.type {KNAME},@function\n{KNAME}:\n'
        txt += a.text()
        txt += self.tables()
        txt += f'''.section .rodata,"a"
.p2align 6
.amdhsa_kernel {KNAME}
  .amdhsa_next_free_vgpr 512
  .amdhsa_next_free_sgpr 102
  .amdhsa_accum_offset 256
  .amdhsa_group_segment_fixed_size 0
  .amdhsa_kernarg_size 112
  .amdhsa_user_sgpr_count 2
  .amdhsa_user_sgpr_kernarg_segment_ptr 1
  .amdhsa_system_sgpr_workgroup_id_x 1
  .amdhsa_float_denorm_mode_32 3
.end_amdhsa_kernel
'''
        return txt, n

if __name__ == '__main__':
    opt = {}
    out = 'cdna_kernels/' + KNAME[:-7] + '.s'
    for arg in sys.argv[1:]:
        if arg.startswith('-o'): out = arg[2:]
        elif '=' in arg:
            k, v = arg.split('='); opt[k] = int(v)
        else: opt[arg] = 1
    txt, n = Full(opt).build()
    open(out, 'w').write(txt)
    print('written', out, len(txt), 'bytes; hazard pad states', n)
```

```python
import layout as L
from gen_common import *
import struct
def f2u(x): return struct.unpack('<I', struct.pack('<f', x))[0]
mf16 = 'v_mfma_f32_16x16x16_bf16'; mf32 = 'v_mfma_f32_16x16x32_bf16'; cvt = 'v_cvt_pk_bf16_f32'

TB = 0
NAMES = list(L.w_table().keys())
def tv(n): return TB + NAMES.index(n)
V_TID = 24
XF = 48
ACC = 64
S_ISB, S_SEG, S_END, S_STEP, S_BASE, S_STR = 's61', 's62', 's63', 's64', 's65', 's66'
S_XB, S_PF, S_PF2, S_A, S_B, S_HEAD = 's67', 's68', 's69', 's70', 's71', 's72'
S_FIRST = 's73'
S_TFAST = 's89'
SX = 's[24:27]'

def wfrag(m, ks, p):
    c = 'qkv'.index(m) * 8 + ks // 2
    r = c * 16 + p * 8 + (ks % 2) * 4
    return ar(r, 4) if r < 256 else vr(128 + r - 256, 4)

class Workers:
    def tables(self):
        return L.table_text('T_R', L.r_table()) + L.table_text('T_W', L.w_table())

    def xlane(self, op, x, t):
        a = self.a
        a(f'v_mov_b32 v{t}, v{x}\nv_permlane16_swap_b32 v{x}, v{t}\n{op} v{x}, v{x}, v{t}')
        a(f'v_mov_b32 v{t}, v{x}\nv_permlane32_swap_b32 v{x}, v{t}\n{op} v{x}, v{x}, v{t}')

    def x_dma(self, piece=None):
        a = self.a
        if piece is not None and piece >= 0:
            a(f'buffer_load_dwordx4 v{tv("xg")}, {SX}, s21 offen lds')
            a('s_add_u32 m0, m0, 1024')
            a(f's_add_u32 s21, s21, {16384 if piece % 2 == 0 else hex((64 - 16384) & 0xFFFFFFFF)}')
            return
        a(f's_lshl_b32 s21, {S_A}, 15\ns_lshl_b32 s22, {S_W}, 8\ns_add_u32 s21, s21, s22')
        a(f's_lshl_b32 s22, {S_W}, 13\ns_add_u32 m0, s22, {S_XB}')
        if piece is not None: return
        for k in range(4):
            for tt in range(2):
                a(f'buffer_load_dwordx4 v{tv("xg")}, {SX}, s21 offen lds')
                a('s_add_u32 m0, m0, 1024')
                a(f's_add_u32 s21, s21, {16384 if tt == 0 else hex((64 - 16384) & 0xFFFFFFFF)}')

    def worker_role(self):
        a = self.a; o = self.o
        a('L_worker:')
        a.vq = list(self.vq_role)
        self.mark(0)
        if o.get('no_workers'):
            self.gate_and_store(); a.wait(vm=0); self.signal_init(); a('s_endpgm'); return
        nb = o.get('nb', 1)
        a(f'''
        s_sub_u32 s21, {S_TEAM}, 1
        {'s_add_u32 s22, s21, 6' + chr(10) + 's_sub_u32 s21, s21, 1' + chr(10) + 's_cselect_b32 s21, s22, s21' if nb else ''}
        s_lshl_b32 s21, s21, 5
        s_add_u32 s21, s21, {S_RANK}
        s_cmp_ge_u32 s21, 192
        s_cselect_b32 {S_ISB}, 1, 0
        s_cbranch_scc1 L_w_B
        s_mul_i32 {S_HEAD}, s21, 43691
        s_lshr_b32 {S_HEAD}, {S_HEAD}, 18
        s_mul_i32 s22, {S_HEAD}, 6
        s_sub_u32 {S_SEG}, s21, s22
        s_mov_b32 {S_END}, 64
        s_mov_b32 {S_STEP}, 6
        s_mov_b32 {S_FIRST}, 0
        s_movk_i32 {S_STR}, 8192
        s_mov_b32 s75, {4<<20}
        s_branch L_w_dec
        L_w_B:
        s_sub_u32 s21, s21, 192
        s_lshr_b32 {S_HEAD}, s21, 3
        s_and_b32 s21, s21, 7
        s_lshl_b32 {S_FIRST}, s21, 3
        s_add_u32 {S_END}, {S_FIRST}, 8
        s_max_u32 {S_SEG}, {S_FIRST}, 1
        s_sub_u32 {S_SEG}, {S_SEG}, 1
        s_mov_b32 {S_STEP}, 1
        s_movk_i32 {S_STR}, 3072
        s_mov_b32 s75, {512*3072}
        L_w_dec:
        v_and_b32 v1, 63, v0
        v_lshrrev_b32 v2, 4, v1
        v_and_b32 v3, 15, v1
        v_lshlrev_b32 v3, 4, v3
        s_lshl_b32 s79, {S_STR}, 4
        v_mul_lo_u32 v2, v2, s79
        v_add_u32 v28, v2, v3
        s_mul_i32 s78, {S_W}, {L.BLK}
        s_lshl_b32 s77, {S_HEAD}, 8
        s_lshl_b32 s79, {S_STR}, 6
        ''')
        nwarm = 0
        if o.get('mall'):
            a(f's_sub_u32 s21, {S_TEAM}, 1\ns_lshl_b32 s21, s21, 5\ns_add_u32 s21, s21, {S_RANK}\ns_lshl_b32 s21, s21, 2\ns_add_u32 s21, s21, {S_W}')
            a('v_lshlrev_b32 v29, 7, v1\ns_mov_b32 s10, 0x400000\ns_mov_b32 s11, 0x20000')
            for i in range(2):
                a(f'''
                s_add_u32 s22, s21, {896 * i}
                s_cmp_ge_u32 s22, 512
                s_cselect_b32 s8, s{P_WV}, s{P_WK}
                s_cselect_b32 s9, s{P_WV+1}, s{P_WK+1}
                s_and_b32 s23, s22, 511
                s_lshl_b32 s23, s23, 13
                s_cmp_ge_u32 s22, 1024
                s_cselect_b32 s23, {hex(L.OOB)}, s23
                buffer_load_dword v{30+i%2}, v29, {SA}, s23 offen
                ''')
        def mallq():
            if o.get('mq', 0) == 0:
                a(f's_sub_u32 s21, {S_TEAM}, 1\ns_lshl_b32 s21, s21, 5\ns_add_u32 s21, s21, {S_RANK}\ns_lshl_b32 s21, s21, 2\ns_add_u32 s21, s21, {S_W}\ns_mul_i32 s21, s21, 5120')
                n = 5; lab = None
            else:
                lo = o.get('mq', 0) + 1; per = 6 - lo; n = -(-1024 // (32 * per))
                lab = a.newlabel('mq')
                a(f's_cmp_eq_u32 {S_ISB}, 1\ns_cbranch_scc1 {lab}\ns_cmp_lt_u32 {S_SEG}, {lo}\ns_cbranch_scc1 {lab}')
                a(f's_mul_i32 s21, {S_HEAD}, {per}\ns_add_u32 s21, s21, {S_SEG}\ns_sub_u32 s21, s21, {lo}\ns_lshl_b32 s21, s21, 2\ns_add_u32 s21, s21, {S_W}\ns_mul_i32 s21, s21, {1024 * n}')
            set_srd(a, 24, P_WQ, 4 << 20)
            a('v_lshlrev_b32 v29, 4, v1')
            vq = list(a.vq)
            if not o.get('mqser', 1): a.auto_vm = False
            for i in range(n): a(f'buffer_load_dwordx4 v[32:35], v29, s[24:27], s21 offen\ns_add_u32 s21, s21, 1024')
            a.auto_vm = True
            if lab: a(f'{lab}:'); a.vq = vq
        groups = [(m, b) for m in 'kvq' for b in range(2)]
        def issue(gi):
            m, b = groups[gi]
            if b == 0:
                ptr = {'q': P_WQ, 'k': P_WK, 'v': P_WV}[m]
                a(f"""
                s_cmp_eq_u32 {S_ISB}, 1
                s_cselect_b32 s8, s{P_WQKV}, s{ptr}
                s_cselect_b32 s9, s{P_WQKV+1}, s{ptr+1}
                s_mov_b32 s10, s75
                s_mov_b32 s11, 0x20000
                s_cselect_b32 s76, {'qkv'.index(m) * 1024}, 0
                s_add_u32 s76, s76, s77
                """)
            a(f's_add_u32 m0, s78, {(gi % 2) * L.GRP}')
            a(f's_add_u32 s21, {S_W}, {4 * b}\ns_mul_i32 s21, s21, s79\ns_add_u32 s21, s21, s76')
            self.dma_block('v28', 's21', S_STR)
        issue(0)
        self.load_table('T_W', 96, 24, 7)
        self.confirm_role()
        ad = o.get('adelay', 0)
        if ad:
            self.gate_and_store()
            a.wait(vm=0)
            self.signal_init(t=40)
        elif o.get('mallq', 1) == 1: mallq()
        issue(1)
        if o.get('mallq') == 2: mallq()
        self.mark(1)
        if not ad: self.gate_and_store()
        a(f'v_mov_b32 v{V_TID}, v0')
        for i in range(24): a(f'v_mov_b32 v{TB+i}, v{96+i}')
        a(f'v_add_u32 v29, {L.GRP}, v{tv("trp")}')
        a(f's_lshl_b32 s74, {S_SEG}, 5\ns_add_u32 s74, s74, {S_HEAD}\ns_lshl_b32 s74, s74, 6\ns_lshl_b32 s21, {S_W}, 2\ns_add_u32 s74, s74, s21\ns_add_u32 s74, s74, {hex(L.F_S)}')
        a(f's_cmp_lt_u32 {S_SEG}, 2\ns_cselect_b32 s74, s74, {hex(L.OOB)}\ns_cmp_eq_u32 {S_ISB}, 1\ns_cselect_b32 s74, {hex(L.OOB)}, s74')
        a(f'buffer_load_dword v30, v{tv("one")}, {WS}, s74 offen sc1')
        set_srd(a, 24, P_X, 2048 * 1024)
        a(f's_mov_b32 {S_XB}, 0\ns_mov_b32 {S_A}, {S_SEG}')
        a.auto_vm = False
        def consume(gi):
            m, b = groups[gi]
            a('s_barrier')
            for x in range(4):
                for p in range(2):
                    for h in range(2):
                        f = wfrag(m, 2 * (4 * b + x) + h, p)
                        kind, base = f[0], int(f[2:f.index(':')])
                        for r in range(2):
                            a(f'ds_read_b64_tr_b16 {kind}[{base+2*r}:{base+2*r+1}], v{tv("trp") if gi % 2 == 0 else 29} offset:{x * L.BLK + 512*h + 4224*r + 32*p}')
            a.wait(lgkm=0)
            a('s_barrier')
        VX = 25
        KP, VP = 112, 116
        acc = lambda m, p, tt: ACC + 16 * 'qkv'.index(m) + 8 * p + 4 * tt
        def xr(ks):
            for tt in range(2):
                a(f'ds_read_b128 {vr(XF + 8*(ks%2) + 4*tt, 4)}, v{VX} offset:{(ks*2+tt)*1024}')
        def loop_head(lab, mats, nst):
            a(f'{lab}:')
            pm = o.get('pmark') and lab == 'L_P_kv'
            if pm: a.raw('    s_memtime s[82:83]')
            a(f's_waitcnt vmcnt({nst + 1})')
            a('s_barrier')
            if pm: a.raw('    s_memtime s[84:85]')
            a(f's_add_u32 {S_A}, {S_SEG}, {S_STEP}\ns_min_u32 {S_A}, {S_A}, 63\ns_xor_b32 {S_XB}, {S_XB}, 32768')
            self.x_dma(-1)
            if pm: a.raw('    s_memtime s[86:87]')
            xr(0)
            for ks in range(16):
                if ks < 15: xr(ks + 1)
                if ks == 9:
                    if pm: a.raw('    s_memtime s[94:95]')
                    a('s_waitcnt vmcnt(8)')
                    if pm: a.raw('    s_memtime s[96:97]')
                    a(f'buffer_store_dword v{tv("oxr")}, v{tv("one")}, {WS}, {S_PF} offen sc1')
                for m in mats:
                    for p in range(2):
                        for tt in range(2):
                            d = vr(acc(m, p, tt), 4)
                            x = vr(XF + 8 * (ks % 2) + 4 * tt, 4); w = wfrag(m, ks, p)
                            A, B = (w, x) if m != 'v' else (x, w)
                            a(f'{mf32} {d}, {A}, {B}, {d if ks else 0}')
                            if ks < 8 and m == mats[0] and p == 0 and tt == 0: self.x_dma(ks)
            if pm: a.raw('    s_memtime s[98:99]')
            a(f'v_xor_b32 v{VX}, 32768, v{VX}')
        def loop_tail(lab):
            if o.get('pace') and lab != 'L_P_B': a(f's_sleep {o.get("pace")}')
            a(f's_add_u32 {S_SEG}, {S_SEG}, {S_STEP}\ns_cmp_lt_u32 {S_SEG}, {S_END}\ns_cbranch_scc1 {lab}')
            a('s_waitcnt vmcnt(0)')
            a(f'buffer_store_dword v{tv("oxr")}, v{tv("one")}, {WS}, {S_PF} offen sc1')
            a('s_barrier')
        def start_loop():
            a(f's_mov_b32 {S_PF}, {hex(L.OOB)}\nv_mov_b32 v{VX}, v{tv("l16")}')
        def init_sync(marks=True, t=40, off=60):
            a.forget()
            if marks:
                self.dump_marks(t)
                self.tstamp(1, t)
            lab = a.newlabel('wz')
            a(f'v_mov_b32 v{t+4}, {L.LDS_BYTES - 16}\ns_cmp_lg_u32 {S_W}, 0\ns_cbranch_scc1 {lab}')
            self.wait_init(t0=t, tid=V_TID, off=off, sleep=o.get('isl', 16))
            a(f'v_mov_b32 v{t+5}, s21\nds_write_b32 v{t+4}, v{t+5}')
            a.wait(lgkm=0)
            a(f'{lab}:\ns_waitcnt vmcnt(0)\ns_barrier\nds_read_b32 v{t+5}, v{t+4}')
            a(f'v_readfirstlane_b32 s21, v{t+5}')
            a(f's_cmp_ge_u32 s21, 32\ns_cselect_b32 {S_TFAST}, 1, 0')
            if o.get('force_slow'): a(f's_mov_b32 {S_TFAST}, 0')
            if marks: self.tstamp(2, t)
        def a_epilogue(frs, foff, flagoff):
            a(f"""
            s_lshl_b32 s21, {S_SEG}, 5
            s_add_u32 s21, s21, {S_HEAD}
            s_lshl_b32 {S_PF}, s21, 6
            s_mul_i32 s21, s21, 24576
            s_mul_i32 s22, {S_W}, 6144
            s_add_u32 s21, s21, s22
            s_add_u32 s21, s21, {foff}
            s_lshl_b32 s23, {S_W}, 2
            s_add_u32 {S_PF}, {S_PF}, s23
            s_add_u32 {S_PF}, {S_PF}, {hex(L.F_KV + flagoff)}
            """)
            for f, (t0, t1) in enumerate(frs):
                o4 = 32 + 4 * f
                for i, t in enumerate((t0, t1)):
                    r = acc(*t)
                    a(f'{cvt} v{o4+2*i}, v{r}, v{r+1}\n{cvt} v{o4+2*i+1}, v{r+2}, v{r+3}')
                a(f'buffer_store_dwordx4 {vr(o4,4)}, v{tv("l16")}, {WS}, s21 offen offset:{1024*f} sc1')
        self.mark(2)
        for gi in range(2):
            a.wait(vm=17 if (ad or gi) else 18)
            if gi == 0: self.mark(3)
            consume(gi); issue(gi + 2)
            if gi == 1 and not ad: self.signal_init(tid=V_TID, t=40, barrier=False)
        a.wait(vm=16); self.mark(4)
        consume(2)
        a(f's_cmp_eq_u32 {S_ISB}, 1\ns_cbranch_scc1 L_w_Bload')
        self.x_dma()
        a.wait(vm=8); self.mark(5); self.mark(6)
        consume(3)
        a.forget()
        if not o.get('pmark'): self.dump_marks(40)
        self.tstamp(1, 40); self.note(7, 40)
        a('s_waitcnt vmcnt(0)')
        a(f's_mov_b32 {S_FIRST}, {S_SEG}')
        start_loop()
        loop_head('L_P_kv', 'kv', 4)
        a_epilogue([[('k', 0, 0), ('k', 1, 0)], [('k', 0, 1), ('k', 1, 1)], [('v', 0, 0), ('v', 1, 1)], [('v', 1, 0), ('v', 0, 1)]], 0, 0)
        lab = a.newlabel('nf')
        a(f's_cmp_lg_u32 {S_SEG}, {S_FIRST}\ns_cbranch_scc1 {lab}')
        init_sync(marks=False, t=48)
        self.tstamp(2, 48)
        a(f'v_add_u32 v30, 1, v30\nbuffer_store_dword v30, v{tv("one")}, {WS}, s74 offen sc1')
        a(f'buffer_store_dword v{tv("oxr")}, v{tv("one")}, {WS}, {S_PF} offen sc1')
        if o.get('hold', 0):
            l2 = a.newlabel('hold')
            a(f's_cmp_lg_u32 {S_W}, 0\ns_cbranch_scc1 {l2}\ns_lshl_b32 s21, {S_HEAD}, 6\ns_add_u32 s21, s21, {hex(L.F_RS)}\nv_mov_b32 v48, 0')
            self.spin4('v48', 's21', 49, n=1, sleep=8)
            a(f'{l2}:')
        a(f'{lab}:')
        if o.get('pmark'):
            a.raw('    s_memtime s[100:101]')
            lab = a.newlabel('pm')
            a(f's_cmp_lt_u32 {S_SEG}, 30\ns_cbranch_scc1 {lab}\ns_cmp_ge_u32 {S_SEG}, 36\ns_cbranch_scc1 {lab}')
            self.dump_marks(48)
            a(f's_waitcnt vmcnt(0)\n{lab}:')
        if o.get('slowP'):
            for _ in range(4): a('s_sleep 127')
        loop_tail('L_P_kv')
        issue(4); issue(5)
        a('s_waitcnt vmcnt(16)'); consume(4)
        a(f's_mov_b32 {S_SEG}, {S_FIRST}\ns_mov_b32 {S_XB}, 0\ns_mov_b32 {S_A}, {S_SEG}')
        self.x_dma()
        a('s_waitcnt vmcnt(8)'); consume(5)
        a('s_waitcnt vmcnt(0)')
        start_loop()
        loop_head('L_P_q', 'q', 2)
        a_epilogue([[('q', 0, 0), ('q', 1, 0)], [('q', 0, 1), ('q', 1, 1)]], 4096, 16)
        loop_tail('L_P_q')
        a('s_branch L_P_done')
        a('L_w_Bload:')
        if o.get('holdB'):
            l2 = a.newlabel('hb')
            a(f's_cmp_lg_u32 {S_W}, 0\ns_cbranch_scc1 {l2}')
            self.wait_init(t0=40, tid=V_TID)
            a(f's_mov_b32 s21, {hex(L.F_RS + 64 * (o.get("holdB") - 1))}\nv_mov_b32 v48, 0')
            self.spin4('v48', 's21', 49, n=1, sleep=16)
            a(f'{l2}:\ns_barrier')
        issue(4)
        a('s_waitcnt vmcnt(16)'); consume(3); issue(5)
        a('s_waitcnt vmcnt(16)'); self.mark(5); consume(4)
        self.x_dma()
        a('s_waitcnt vmcnt(8)'); self.mark(6); consume(5)
        init_sync()
        for r in range(KP, KP + 8, 2): a(f'v_mov_b64 {vr(r,2)}, 0')
        start_loop()
        loop_head('L_P_B', 'qkv', 4)
        G1 = 26
        a(f's_lshl_b32 s21, {S_SEG}, 7\ns_add_u32 s21, s21, {hex(L.GATE)}')
        a(f'buffer_load_dword v{G1}, v{tv("c4")}, {WS}, s21 offen sc1\nbuffer_load_dword v{G1+1}, v{tv("c4")}, {WS}, s21 offen offset:64 sc1')
        for m in 'qkv':
            for p in range(2):
                for tt in range(2):
                    r = acc(m, p, tt)
                    a(f'{cvt} v{r}, v{r}, v{r+1}\n{cvt} v{r+1}, v{r+2}, v{r+3}')
        a(f'''
        s_mov_b32 s80, 0xaaaaaaaa
        s_mov_b32 s81, 0xaaaaaaaa
        v_cmp_ne_u32 s[82:83], 0, v{tv("mc0")}
        v_cmp_ne_u32 s[84:85], 0, v{tv("mc1")}
        s_mov_b32 s86, {hex(f2u(0.25 * 1.4426950408889634))}
        s_cmp_eq_u32 {S_SEG}, 0
        s_cselect_b32 s87, 0xf149f2ca, 0
        s_lshl_b32 s21, {S_SEG}, 5
        s_lshl_b32 s22, {S_HEAD}, 3
        s_add_u32 s21, s21, s22
        s_lshl_b32 s22, {S_W}, 1
        s_add_u32 s21, s21, s22
        s_lshl_b32 s21, s21, 10
        s_add_u32 s21, s21, {hex(L.OB)}
        s_cmp_lt_u32 {S_SEG}, {S_FIRST}
        s_cselect_b32 s21, {hex(L.OOB)}, s21
        s_lshl_b32 {S_PF}, {S_SEG}, 2
        s_add_u32 {S_PF}, {S_PF}, {S_HEAD}
        s_lshl_b32 {S_PF}, {S_PF}, 6
        s_lshl_b32 s22, {S_W}, 2
        s_add_u32 {S_PF}, {S_PF}, s22
        s_add_u32 {S_PF}, {S_PF}, {hex(L.F_OB)}
        s_cmp_lt_u32 {S_SEG}, {S_FIRST}
        s_cselect_b32 {S_PF}, {hex(L.OOB)}, {S_PF}
        s_waitcnt vmcnt(0)
        v_sub_f32 v{G1}, 1.0, v{G1}
        v_sub_f32 v{G1+1}, 1.0, v{G1+1}
        ''')
        for p in range(2):
            for tt in range(2):
                q = acc('q', p, tt); kc = acc('k', p, tt); vc = acc('v', p, tt)
                kp = KP + 2 * p if tt == 0 else acc('k', p, 0)
                vp = VP + 2 * p if tt == 0 else acc('v', p, 0)
                SC_, SP_, OD = 28, 32, 36
                a(f'{mf16} {vr(SC_,4)}, {vr(kc,2)}, {vr(q,2)}, 0\n{mf16} {vr(SP_,4)}, {vr(kp,2)}, {vr(q,2)}, 0')
                for j in range(2):
                    a(f'v_cndmask_b32 v{SC_+2*j}, v{SC_+2*j}, v{SC_+2*j+1}, s[80:81]')
                    a(f'v_cndmask_b32 v{SP_+2*j}, v{SP_+2*j}, v{SP_+2*j+1}, s[80:81]')
                    if tt == 0: a(f'v_add_f32 v{SP_+2*j}, s87, v{SP_+2*j}')
                    a(f'v_cndmask_b32 v{40+j}, v{SP_+2*j}, v{SC_+2*j}, s[{82+2*j}:{83+2*j}]')
                a(f'{cvt} v41, v40, v41\nv_lshlrev_b32 v40, 16, v41\nv_and_b32 v41, 0xffff0000, v41')
                a('v_max_f32 v42, v40, v41')
                self.xlane('v_max_f32', 42, 43)
                a('v_mul_f32 v42, s86, v42')
                for j in range(2): a(f'v_fma_f32 v{40+j}, v{40+j}, s86, -v42\nv_exp_f32 v{40+j}, v{40+j}')
                a('v_add_f32 v42, v40, v41')
                self.xlane('v_add_f32', 42, 43)
                a(f'v_rcp_f32 v42, v42')
                for j in range(2):
                    a(f'{cvt} v{40+j}, v{40+j}, v{40+j}')
                    a(f'v_and_b32 v{44+j}, v{40+j}, v{tv(f"mc{j}")}\nv_and_b32 v{46+j}, v{40+j}, v{tv(f"mp{j}")}')
                a(f'v_mul_f32 v42, v42, v{G1+tt}')
                a(f'{mf16} {vr(OD,4)}, {vr(vc,2)}, v[44:45], 0\n{mf16} {vr(OD,4)}, {vr(vp,2)}, v[46:47], {vr(OD,4)}')
                for i in range(4): a(f'v_mul_f32 v{OD+i}, v{OD+i}, v42')
                ob = XF + 2 * (2 * p + tt)
                a(f'{cvt} v{ob}, v{OD}, v{OD+1}\n{cvt} v{ob+1}, v{OD+2}, v{OD+3}')
                a(f'buffer_store_dwordx2 {vr(ob,2)}, v{tv("l8")}, {WS}, s21 offen offset:{1024*p + 512*tt} sc1')
        for p in range(2):
            a(f'v_mov_b64 {vr(KP+2*p,2)}, {vr(acc("k",p,1),2)}\nv_mov_b64 {vr(VP+2*p,2)}, {vr(acc("v",p,1),2)}')
        loop_tail('L_P_B')
        if nb:
            self.tstamp(6, 40)
            a('s_endpgm')
        a('L_P_done:')
        self.tstamp(3, 40)
        self.note(8, 40)
        if o.get('no_F'):
            a('s_endpgm'); a.auto_vm = True; return
        self.f_phase()

    def spin4(self, voff, soff, tmp, n=4, sleep=2):
        a = self.a
        lab = a.newlabel('s4'); ok = a.newlabel('s4ok')
        ld = {1: 'buffer_load_dword', 4: 'buffer_load_dwordx4'}[n]
        a(f's_mov_b32 s23, {SPIN}\n{lab}:')
        a(f'{ld} {vr(tmp,n)}, {voff}, {WS}, {soff} offen sc1\ns_waitcnt vmcnt(0)')
        if n == 4: a(f'v_min_u32 v{tmp}, v{tmp}, v{tmp+1}\nv_min3_u32 v{tmp}, v{tmp}, v{tmp+2}, v{tmp+3}')
        a(f'v_cmp_eq_u32 vcc, 0, v{tmp}\ns_cbranch_vccz {ok}\n{"s_sleep %d" % sleep if sleep else ""}\ns_sub_u32 s23, s23, 1\ns_cbranch_scc0 {lab}\ns_mov_b32 {SPIN}, 0x400\n{ok}:')

    def f_phase(self):
        a = self.a; o = self.o
        set_srd(a, 8, P_WO, 4 << 20)
        a(f's_mul_i32 s78, {S_W}, 36864\ns_mov_b32 m0, s78')
        for kb in range(2):
            for T in range(4):
                a(f's_lshl_b32 s21, {S_RANK}, 17\ns_add_u32 s21, s21, {kb*65536 + T*64}')
                self.dma_chunk(f'v{tv("dma1k")}', 's21', 1024)
        set_srd(a, 8, P_WOB, 512 * 1024)
        for T in range(4):
            a(f's_lshl_b32 s21, {S_RANK}, 14\ns_add_u32 s21, s21, {T*64}')
            self.dma_chunk(f'v{tv("dma1k")}', 's21', 1024, n=1)
        set_srd(a, 12, P_OUT, 2048 * 1024)
        V_Z = 26
        a(f'v_mov_b32 v{V_Z}, 0')
        for kt in range(2):
            for i in range(4):
                a(f'v_cmp_le_i32 s[{64+8*kt+2*i}:{65+8*kt+2*i}], {16*kt+i}, v{tv("qrow")}')
        a('s_waitcnt vmcnt(0)')
        wof = lambda T, p, ks: 4 * ((T * 2 + p) * 4 + ks)
        wob = lambda T, p: 128 + 2 * (T * 2 + p)
        for kb in range(2):
            for T in range(4):
                so = (kb * 4 + T) * 4096
                for p in range(2):
                    for h in range(2):
                        for r in range(2):
                            a(f'ds_read_b64_tr_b16 {ar(wof(T,p,2*kb+h)+2*r,2)}, v{tv("trf")} offset:{so + 2048*h + 1024*r + 8*p}')
        for T in range(4):
            for p in range(2):
                a(f'ds_read_b64_tr_b16 {ar(wob(T,p),2)}, v{tv("trf")} offset:{32768 + 1024*T + 8*p}')
        a.wait(lgkm=0)
        S_FS, S_RB, S_FB = 's61', 's62', 's63'
        a(f's_sub_u32 {S_FS}, {S_TEAM}, {2 if o.get("nb", 1) else 1}\ns_mov_b32 s80, {hex(f2u(128 ** -0.5 * 1.4426950408889634))}\ns_mov_b32 s81, 0xf149f2ca')
        a(f's_lshr_b32 s82, {S_W}, 1\ns_and_b32 s83, {S_W}, 1')
        a(f's_lshl_b32 s86, {S_TEAM}, 21\ns_add_u32 s86, s86, {hex(L.FP)}')
        Q, K0, K1, V, KM, VM, OBF, G, S0, S1, SM, PX, PM, D, OF, AC = 28, 44, 60, 76, 92, 108, 112, 116, 120, 124, 128, 132, 136, 140, 156, 188
        a('L_F_loop:')
        a.forget(); a.auto_vm = True
        a(f'''
        s_lshl_b32 s21, {S_FS}, 5
        s_add_u32 s21, s21, {S_RANK}
        s_lshl_b32 {S_FB}, s21, 6
        s_mul_i32 {S_RB}, s21, 24576
        s_lshl_b32 s84, s21, 12
        s_add_u32 s84, s84, {hex(L.KVM)}
        s_lshl_b32 s85, s21, 10
        s_add_u32 s85, s85, {hex(L.OB)}
        s_add_u32 s21, {S_FB}, {hex(L.F_KV + 16)}
        ''')
        self.spin4(f'v{V_Z}', 's21', Q)
        a(f'''
        s_lshl_b32 s21, {S_FS}, 2
        s_lshr_b32 s22, {S_RANK}, 3
        s_add_u32 s21, s21, s22
        s_lshl_b32 s21, s21, 6
        s_and_b32 s22, {S_RANK}, 6
        s_lshl_b32 s22, s22, 1
        s_add_u32 s21, s21, s22
        s_add_u32 s21, s21, {hex(L.F_OB)}
        ''')
        self.spin4(f'v{V_Z}', 's21', Q, n=1)
        a.forget()
        l16 = f'v{tv("l16")}'
        NEGJ = 252
        a(f's_lshl_b32 s87, {S_FS}, 2\ns_add_u32 s87, s87, {S_W}\ns_lshl_b32 s87, s87, 5\ns_add_u32 s87, s87, {S_RANK}\ns_lshl_b32 s87, s87, 2\ns_add_u32 s87, s87, {hex(L.F_P)}')
        a(f's_cmp_eq_u32 {S_TFAST}, 0\ns_cselect_b32 s21, {hex(L.OOB)}, s87\nbuffer_load_dword v{NEGJ}, v{tv("one")}, {WS}, s21 offen')
        for qt in range(2):
            a(f'buffer_load_dwordx2 {vr(OBF+2*qt,2)}, v{tv("l8")}, {WS}, s85 offen offset:{512*qt} sc1')
        a(f's_lshl_b32 s22, s82, 10\ns_add_u32 s22, s22, 4096\ns_add_u32 s22, s22, {S_RB}\ns_mov_b32 s21, {S_RB}')
        for sl in range(4):
            a(f'buffer_load_dwordx4 {vr(Q+4*sl,4)}, {l16}, {WS}, s22 offen sc1')
            a(f'buffer_load_dwordx4 {vr(K0+4*sl,4)}, {l16}, {WS}, s21 offen sc1')
            a(f'buffer_load_dwordx4 {vr(K1+4*sl,4)}, {l16}, {WS}, s21 offen offset:1024 sc1')
            if sl < 3: a('s_add_u32 s21, s21, 6144\ns_add_u32 s22, s22, 6144')
        a(f's_mul_i32 s21, s83, 12288\ns_add_u32 s21, s21, {S_RB}\ns_add_u32 s22, s21, 6144')
        for sl in range(2):
            for f in range(2):
                a(f'buffer_load_dwordx4 {vr(V+8*sl+4*f,4)}, {l16}, {WS}, {"s21" if sl == 0 else "s22"} offen offset:{2048+1024*f} sc1')
        a(f's_lshl_b32 s21, {S_FS}, 7\ns_lshl_b32 s22, s82, 6\ns_add_u32 s21, s21, s22\ns_add_u32 s21, s21, {hex(L.GATE)}')
        a(f'buffer_load_dword v{G}, v{tv("c4")}, {WS}, s21 offen sc1')
        for qt in range(2):
            for T in range(4):
                for p in range(2):
                    a(f'{mf16} {vr(AC+32*qt+8*T+4*p,4)}, {ar(wob(T,p),2)}, {vr(OBF+2*qt,2)}, 0')
        for sl in range(4):
            a(f'{mf32} {vr(S0,4)}, {vr(K0+4*sl,4)}, {vr(Q+4*sl,4)}, {vr(S0,4) if sl else 0}')
            a(f'{mf32} {vr(S1,4)}, {vr(K1+4*sl,4)}, {vr(Q+4*sl,4)}, {vr(S1,4) if sl else 0}')
        NEG = 27
        a(f'v_mov_b32 v{NEG}, s81')
        for kt, Sx in enumerate((S0, S1)):
            for i in range(4): a(f'v_cndmask_b32 v{Sx+i}, v{NEG}, v{Sx+i}, s[{64+8*kt+2*i}:{65+8*kt+2*i}]')
        MX = 117
        a(f'v_max3_f32 v{MX}, v{S0}, v{S0+1}, v{S0+2}\nv_max3_f32 v{MX}, v{MX}, v{S0+3}, v{S1}\nv_max3_f32 v{MX}, v{MX}, v{S1+1}, v{S1+2}\nv_max_f32 v{MX}, v{MX}, v{S1+3}')
        if o.get('fpt', 1):
            a(f's_xor_b32 s22, s86, {1<<20}\ns_lshl_b32 s21, {S_RANK}, 10\ns_add_u32 s21, s21, s22\ns_lshl_b32 s22, {S_W}, 17\ns_add_u32 s21, s21, s22')
            a(f's_cmp_eq_u32 {S_TFAST}, 0\ns_cselect_b32 s21, {hex(L.OOB)}, s21')
            for k in range(8):
                a(f'buffer_load_dwordx4 {vr(OF,4)}, {l16}, {WS}, s21 offen\ns_add_u32 s21, s21, {32768 if k % 4 < 3 else 13 * 32768}')
        a.wait(vm=0)
        skip = a.newlabel('fw')
        dp = o.get('dpoll', 1)
        if dp:
            a(f"""
            s_cmp_ge_u32 {S_FS}, 62
            s_cselect_b32 s22, {hex((L.KVL - L.KVM - 62 * 131072) & 0xFFFFFFFF)}, 0
            s_add_u32 s84, s84, s22
            s_max_u32 s22, {S_FS}, 61
            s_sub_u32 s22, s22, 61
            s_lshl_b32 s22, s22, 11
            """)
        else: a('s_mov_b32 s22, 0')
        a(f's_cmp_lg_u32 {S_W}, 0\ns_cbranch_scc1 {skip}\ns_add_u32 s21, {S_FB}, {hex(L.F_M)}\ns_sub_u32 s21, s21, s22')
        self.spin4(f'v{V_Z}', 's21', KM)
        self.tstamp(4, 252)
        a(f'{skip}:\ns_barrier')
        fm = (lambda i: a.raw(f'    s_memtime s[{88+2*i}:{89+2*i}]')) if o.get('fmark') else (lambda i: None)
        fm(1)
        a.forget()
        a(f's_lshl_b32 s21, s83, 11\ns_add_u32 s21, s21, s84\ns_mov_b32 s23, 0x8000\nL_F_km:')
        for sl in range(4):
            a(f'buffer_load_dwordx4 {vr(KM+4*sl,4)}, {l16}, {WS}, s84 offen offset:{1024*sl} sc1')
        for sl in range(2):
            a(f'buffer_load_dwordx2 {vr(VM+2*sl,2)}, v{tv("vml")}, {WS}, s21 offen offset:{1024*sl} sc1')
        if dp:
            a(f's_cmp_lt_u32 {S_FS}, 62\ns_cbranch_scc1 L_F_kmok')
            vq = list(a.vq)
            a(f'v_max3_u32 v118, v{KM}, v{KM+1}, v{KM+2}')
            for r in range(KM + 3, KM + 19, 2): a(f'v_max3_u32 v118, v118, v{r}, v{r+1}')
            a(f'v_max_u32 v118, v118, v{VM+3}\nv_cmp_eq_u32 vcc, -1, v118\ns_cbranch_vccz L_F_kmok')
            if o.get('dsl', 0): a(f's_sleep {o.get("dsl")}')
            a(f's_sub_u32 s23, s23, 1\ns_cbranch_scc0 L_F_km\nL_F_kmok:')
            a.vq = vq
        for sl in range(4):
            a(f'{mf32} {vr(SM,4)}, {vr(KM+4*sl,4)}, {vr(Q+4*sl,4)}, {vr(SM,4) if sl else 0}')
        fm(2)
        a(f'v_max3_f32 v{MX}, v{MX}, v{SM}, v{SM+1}')
        self.xlane('v_max_f32', MX, 118)
        a(f'v_mul_f32 v{MX}, s80, v{MX}')
        E = [S0 + i for i in range(4)] + [S1 + i for i in range(4)] + [SM, SM + 1]
        for e in E: a(f'v_fma_f32 v{e}, v{e}, s80, -v{MX}')
        for e in E: a(f'v_exp_f32 v{e}, v{e}')
        a(f'{cvt} v{PX}, v{S0}, v{S0+1}\n{cvt} v{PX+1}, v{S0+2}, v{S0+3}\n{cvt} v{PX+2}, v{S1}, v{S1+1}\n{cvt} v{PX+3}, v{S1+2}, v{S1+3}')
        a(f'{cvt} v{PM}, v{SM}, v{SM+1}\nv_mov_b32 v{PM+1}, 0\nv_mov_b32 v{PM+2}, 0\n{cvt} v{PM+3}, v{SM}, v{SM+1}')
        for sl in range(2):
            f1, f2 = V + 8 * sl, V + 8 * sl + 4
            for p in range(2):
                d = vr(D + 8 * sl + 4 * p, 4)
                X = f1 if p == 0 else f2; Y = f2 + 2 if p == 0 else f1 + 2
                a(f'{mf16} {d}, {vr(X,2)}, {vr(PX,2)}, 0')
                a(f'{mf16} {d}, {vr(Y,2)}, {vr(PX+2,2)}, {d}')
                a(f'{mf16} {d}, {vr(VM+2*sl,2)}, {vr(PM+2*p,2)}, {d}')
        LS = 119
        a(f'v_add_f32 v{LS}, v{E[0]}, v{E[1]}')
        for e in E[2:]: a(f'v_add_f32 v{LS}, v{LS}, v{e}')
        self.xlane('v_add_f32', LS, 118)
        a(f'v_rcp_f32 v{LS}, v{LS}\nv_mul_f32 v{LS}, v{LS}, v{G}')
        for i in range(16): a(f'v_mul_f32 v{D+i}, v{D+i}, v{LS}')
        for i in range(8): a(f'{cvt} v{D+i}, v{D+2*i}, v{D+2*i+1}')
        fm(3)
        for sl in range(2): a(f'ds_write_b128 v{tv("oxw")}, {vr(D+4*sl,4)} offset:{1024*sl}')
        a.wait(lgkm=0)
        a('s_barrier')
        for qt in range(2):
            for sl in range(4):
                a(f'ds_read_b128 {vr(OF+16*qt+4*sl,4)}, v{tv("oxr")} offset:{4096*qt+1024*sl}')
        a(f's_xor_b32 s86, s86, {1<<20}\ns_lshl_b32 s21, {S_RANK}, 10\ns_add_u32 s21, s21, s86\ns_lshl_b32 s22, {S_W}, 17\ns_add_u32 s21, s21, s22')
        a(f's_cmp_eq_u32 {S_TFAST}, 0\ns_cbranch_scc1 L_F_slowst')
        lq0 = list(a.lq)
        for cf in ('', 'sc1'):
            if cf: a('L_F_slowst:'); a.lq = list(lq0)
            df = cf or ('nt' if o.get('fpnt') else '')
            def fin(k):
                qt, T = divmod(k, 4)
                r = AC + 32 * qt + 8 * T
                for i in range(4): a(f'{cvt} v{r+i}, v{r+2*i}, v{r+2*i+1}')
                a(f'buffer_store_dwordx4 {vr(r,4)}, {l16}, {WS}, s21 offen {df}')
                a(f's_add_u32 s21, s21, {32768 if T < 3 else 13 * 32768}')
            for k in range(8):
                qt, T = divmod(k, 4)
                for ks in range(4):
                    for p in range(2):
                        d = vr(AC + 32 * qt + 8 * T + 4 * p, 4)
                        a(f'{mf32} {d}, {ar(wof(T,p,ks),4)}, {vr(OF+16*qt+4*ks,4)}, {d}')
                if k: fin(k - 1)
            fin(7)
            fm(4)
            a.wait(vm=0)
            fm(5)
            a(f'buffer_store_dword v{tv("oxr")}, v{tv("one")}, {WS}, s87 offen {cf}')
            if not cf: a('s_branch L_F_stdone')
        a('L_F_stdone:')
        self.tstamp(5, 252)
        a(f's_lshl_b32 s21, {S_FS}, 9\ns_and_b32 s22, {S_RANK}, 12\ns_lshl_b32 s22, s22, 5\ns_add_u32 s21, s21, s22\ns_add_u32 s21, s21, {hex(L.F_P)}')
        self.spin4(f'v{tv("pfl")}', 's21', Q, n=1, sleep=0)
        fm(6)
        if o.get('fmark'):
            a(f's_lshl_b32 s21, {S_TEAM}, 5\ns_add_u32 s21, s21, {S_RANK}\ns_lshl_b32 s21, s21, 7\ns_add_u32 s21, s21, {hex(L.DBG + 65536)}\ns_waitcnt lgkmcnt(0)')
            for i in range(1, 7): a(f'v_mov_b32 v252, s{88+2*i}\nbuffer_store_dword v252, v{V_Z}, {WS}, s21 offen offset:{4*(15+i)}')
        a.forget()
        a(f's_lshl_b32 s21, {S_RANK}, 15\ns_add_u32 s21, s21, s86')
        for l in range(8):
            a(f'buffer_load_dwordx4 {vr(Q+4*l,4)}, v{tv("fpld")}, {WS}, s21 offen sc1')
            if l < 7: a('s_add_u32 s21, s21, 4096')
        for l in range(8):
            a(f'{mf32} {vr(S0,4)}, {vr(tv("self0"),4)}, {vr(Q+4*l,4)}, {vr(S0,4) if l else 0}')
        a(f's_lshl_b32 s21, {S_FS}, 5\ns_and_b32 s22, {S_RANK}, 16\ns_add_u32 s21, s21, s22\ns_lshl_b32 s21, s21, 10\ns_and_b32 s22, {S_RANK}, 15\ns_lshl_b32 s22, s22, 6\ns_add_u32 s21, s21, s22')
        a(f'{cvt} v{S0}, v{S0}, v{S0+1}\n{cvt} v{S0+1}, v{S0+2}, v{S0+3}')
        a(f'buffer_store_dwordx2 {vr(S0,2)}, v{tv("outst")}, {ST}, s21 offen')
        if o.get('wb'):
            lab = a.newlabel('wb')
            a(f's_cmp_lt_u32 {S_FS}, 52\ns_cbranch_scc1 {lab}\ns_cmp_ge_u32 {S_FS}, {o.get("wbmax", 62)}\ns_cbranch_scc1 {lab}')
            a(f's_or_b32 s21, {S_RANK}, {S_W}\ns_cmp_lg_u32 s21, 0\ns_cbranch_scc1 {lab}\ns_sleep 32\nbuffer_wbl2 sc1\ns_waitcnt vmcnt(0)\n{lab}:')
        a(f's_add_u32 {S_FS}, {S_FS}, {6 if o.get("nb", 1) else 7}\ns_cmp_lt_u32 {S_FS}, 64\ns_cbranch_scc1 L_F_loop')
        a.wait(vm=0)
        self.tstamp(6, 40)
        self.span(40)
        self.note(9, 40)
        a('s_endpgm')
```

```python
import layout as L
from gen_common import *

V_L16, V_IST, V_PUB, V_X0, V_F, V_SMW, V_OW, V_WV = 1, 2, 3, 4, 8, 9, 10, 11
KMH, VMH = 12, 16
V_IDX, V_WV2 = 18, 19
SELR, SELV, V_ONE, V_OR, SELQ, SELK = 20, 24, 26, 27, 28, 128
V_Z = 29
VXC, VXN, KX = 32, 40, 48
WVB = 56
AQ, AK, AV = 72, 80, 88
M = 96
T = 132
WO0 = 144
V_FLAG = 0
SC = 128 ** -0.5 * 1.4426950408889634
import struct
def f2u(x): return struct.unpack('<I', struct.pack('<f', x))[0]

WO_SPILL = [(0, 0), (1, 0)]
def wo_frag(t, kb):
    order = [(t_, k_) for t_ in range(4) for k_ in range(4) if (t_, k_) not in WO_SPILL]
    return WO0 + 8 * order.index((t, kb))

LDSF = [('q', 0, 0), ('q', 0, 1), ('q', 1, 0), ('q', 1, 1), ('k', 0, 0)] + [('k', k, 1) for k in range(2, 8)] + [('k', 7, 0)] + [('v', k, p) for k in (6, 7) for p in range(2)]
AGF = [(m, k, p) for m in 'qkv' for k in range(8) for p in range(2) if (m, k, p) not in LDSF]
assert len(LDSF) == 16 and len(AGF) == 32
S_S = 's61'
S_MEMP = 's62'
S_PUBB = 's63'
S_IN0, S_IN1 = 's64', 's65'
S_INP = 's66'
S_REC = 's67'
S_FKV = 's68'
S_KVM, S_FM = 's69', 's70'
S_RST = 's71'
S_LO = 's[72:73]'
S_SC = 's74'
S_T0, S_T1 = 's75', 's76'
S_FAST = 's77'
S_TAG, S_NTAG = 's78', 's79'
S_OTAG, S_NOTAG = 's24', 's25'
S_HST, S_HLD, S_S1 = 's10', 's11', 's19'
S_FS0 = 's47'

class RRole:
    def smf(self, acc, A, B):
        self.a(f'v_smfmac_f32_16x16x64_bf16 {vr(acc,4)}, {vr(A,4)}, {B}, v{V_IDX}')

    def r_role(self):
        a = self.a; o = self.o
        a('L_R:')
        a.vq = list(self.vq_role)
        self.mark(0)
        self.note(2, 40)
        VD8, VD1, VTQ, VTO, VTA = 28, 29, 30, 31, 7
        a(f"""
        v_and_b32 v1, 63, v0
        v_lshrrev_b32 v2, 4, v1
        v_and_b32 v3, 15, v1
        v_lshlrev_b32 v4, 4, v3
        v_lshl_add_u32 v{VD8}, v2, 17, v4
        v_and_b32 v4, 0x70, v4
        v_lshrrev_b32 v3, 3, v3
        v_lshl_add_u32 v4, v3, 9, v4
        v_lshl_add_u32 v{VD1}, v2, 14, v4
        s_lshl_b32 s21, {S_W}, 7
        v_add_u32 v{VD1}, s21, v{VD1}
        s_mul_i32 s78, {S_W}, {L.BLK}
        """)
        groups = [(m, b) for m in 'oqkv' for b in range(2)]
        def issue(gi):
            mat, b = groups[gi]
            if b == 0: set_srd(a, 8, {'q': P_WQ, 'k': P_WK, 'v': P_WV, 'o': P_WO}[mat], 4 << 20)
            a(f's_add_u32 m0, s78, {(gi % 2) * L.GRP}')
            if mat != 'o':
                a(f's_add_u32 s21, {S_W}, {4 * b}\ns_lshl_b32 s21, s21, 19\ns_lshl_b32 s22, {S_RANK}, 8\ns_add_u32 s21, s21, s22')
                self.dma_block(f'v{VD8}', 's21', 8192)
            else:
                a(f's_lshl_b32 s21, {S_RANK}, 17\ns_add_u32 s21, s21, {b * 65536}')
                if o.get('rot', 0):
                    a(f's_mov_b32 s47, m0\ns_mul_i32 s22, {S_RANK}, {o.get("rot")}\ns_and_b32 s22, s22, 15')
                    for i in range(16):
                        a(f's_mul_i32 s23, s22, 1056\ns_add_u32 m0, s47, s23\ns_lshl_b32 s23, s22, 10\ns_add_u32 s23, s23, s21')
                        a(f'buffer_load_dwordx4 v{VD1}, {SA}, s23 offen lds\ns_add_u32 s22, s22, 1\ns_and_b32 s22, s22, 15')
                else: self.dma_block(f'v{VD1}', 's21', 1024)
        issue(0)
        self.load_table('T_R', 96, 28, 7)
        self.confirm_role()
        issue(1)
        self.mark(1)
        self.gate_and_store()
        names = list(L.r_table().keys())
        def tv(n): return 96 + names.index(n)
        a(f'v_mov_b32 v{VTQ}, v{tv("trq")}\nv_mov_b32 v{VTO}, v{tv("tro")}\nv_add_u32 v6, 65536, v{tv("wv")}')
        if o.get('code'):
            pc = a.newlabel('pc')
            a(f's_getpc_b64 s[12:13]\n{pc}:\ns_add_u32 s12, s12, L_R_ready-{pc}\ns_addc_u32 s13, s13, 0\ns_mov_b32 s14, L_R_slow-L_R_ready\ns_mov_b32 s15, 0x20000')
            a(f'v_lshlrev_b32 v1, 7, v0\nbuffer_load_dword v27, v1, {ST}, 0 offen')
        else:
            a(f'buffer_load_dword v27, v{tv("one")}, {WS}, 0 offen')
        a(f'buffer_load_dword v26, v{tv("mm")}, {WS}, 0 offen')
        a.auto_vm = False
        TMP = 56
        park = {}
        parkregs = [32, 64, 72, 80, 88, 124, 132, 8]
        for f in LDSF:
            if f[0] == 'k': park[f] = parkregs.pop(0)
            if f[0] == 'q': park[f] = -8 * AGF.index(('v', 3 + 2 * f[1], f[2])) - 1
        S_RDY = 's76'
        def scalars():
            if o.get('pa2', 0):
                dec = f's_lshr_b32 s84, {S_RANK}, 3\ns_lshl_b32 s84, s84, 1\ns_lshr_b32 s21, {S_W}, 1\ns_add_u32 s84, s84, s21\n' \
                      f's_lshr_b32 s85, {S_RANK}, 1\ns_and_b32 s85, s85, 3\n' \
                      f's_and_b32 s86, {S_RANK}, 1\ns_lshl_b32 s86, s86, 1\ns_and_b32 s21, {S_W}, 1\ns_add_u32 s86, s86, s21'
            else:
                dec = f's_lshr_b32 s84, {S_RANK}, 2\ns_and_b32 s85, {S_RANK}, 3\ns_mov_b32 s86, {S_W}'
            a(f'''
            {dec}
            s_lshl_b32 {S_INP}, s84, 2
            s_add_u32 {S_INP}, {S_INP}, s85
            s_lshl_b32 {S_INP}, {S_INP}, 2
            s_add_u32 {S_INP}, {S_INP}, s86
            s_lshl_b32 {S_INP}, {S_INP}, 11
            s_add_u32 {S_INP}, {S_INP}, {hex(L.RIN)}
            s_lshl_b32 {S_PUBB}, s84, 10
            s_and_b32 s22, s85, 2
            s_lshl_b32 s22, s22, 7
            s_add_u32 {S_PUBB}, {S_PUBB}, s22
            s_and_b32 s22, s85, 1
            s_lshl_b32 s22, s22, 5
            s_add_u32 {S_PUBB}, {S_PUBB}, s22
            s_lshl_b32 s22, s86, 6
            s_add_u32 {S_PUBB}, {S_PUBB}, s22
            s_add_u32 {S_PUBB}, {S_PUBB}, {hex(L.RMEM)}
            s_and_b32 s22, s84, 1
            s_lshl_b32 s22, s22, 9
            s_lshr_b32 s21, s84, 1
            s_lshl_b32 s21, s21, 7
            s_add_u32 s21, s21, s22
            s_lshl_b32 s22, s85, 3
            s_add_u32 s21, s21, s22
            s_lshl_b32 s22, s86, 11
            s_add_u32 s75, s21, s22
            s_mul_i32 {S_REC}, {S_RANK}, 24576
            s_mul_i32 s21, {S_W}, 6144
            s_add_u32 {S_REC}, {S_REC}, s21
            s_lshl_b32 {S_FKV}, {S_RANK}, 6
            s_lshl_b32 s21, {S_W}, 2
            s_add_u32 {S_FKV}, {S_FKV}, s21
            s_add_u32 {S_FM}, {S_FKV}, {hex(L.F_M - 4096)}
            s_add_u32 {S_FKV}, {S_FKV}, {hex(L.F_KV)}
            s_lshl_b32 {S_KVM}, {S_RANK}, 12
            s_lshl_b32 s21, {S_W}, 10
            s_add_u32 {S_KVM}, {S_KVM}, s21
            s_add_u32 {S_KVM}, {S_KVM}, {hex(L.KVM - 131072)}
            s_lshl_b32 s21, {S_W}, 11
            s_add_u32 {S_MEMP}, s21, {hex(L.RMEM)}
            s_lshl_b32 {S_IN0}, {S_RANK}, 6
            s_add_u32 {S_IN0}, {S_IN0}, {hex(L.RIN)}
            s_mov_b32 s72, 0x33333333
            s_mov_b32 s73, 0x33333333
            s_mov_b32 {S_SC}, {hex(f2u(SC))}
            s_mov_b32 {S_S}, 0
            ''')
        def first_records(l16):
            for i in range(2):
                a(f'buffer_load_dwordx4 {vr(KX+4*i,4)}, v{l16}, {WS}, {S_REC} offen offset:{1024*i} sc1')
                a(f'buffer_load_dwordx4 {vr(VXN+4*i,4)}, v{l16}, {WS}, {S_REC} offen offset:{2048+1024*i} sc1')
        nw = 4 if o.get('warm', 0) else 2
        def stage_w():
            set_srd(a, 12, P_DBG, 256)
            a(f"""
            v_and_b32 v5, 1, v0
            v_lshlrev_b32 v5, 3, v5
            buffer_load_dword v3, v5, {ST}, 0 offen sc1
            """)
        def stage_t():
            assert o.get('xearly', 1)
            a(f"""
            v_mov_b64 v[24:25], -1
            v_mov_b64 v[26:27], -1
            {'s_cmp_ge_u32 s85, 32' if own else 's_cmp_eq_u32 %s, 1' % S_RDY}
            s_cselect_b32 s21, {S_INP}, {hex(L.OOB)}
            s_cselect_b32 s22, {S_PUBB}, {hex(L.OOB)}
            """)
            if o.get('touchx', 2) >= 2:
                a(f's_add_u32 s23, s21, 0x40000\ns_lshl_b32 s84, {S_RANK}, 10\ns_add_u32 s84, s84, {hex(L.RMEM)}\ns_cmp_ge_u32 s21, {hex(L.OOB)}\ns_cselect_b32 s84, s21, s84')
                for so in ('s21', 's23'):
                    for i in range(2): a(f'buffer_load_dwordx4 v[24:27], v{tv("l16")}, {WS}, {so} offen offset:{1024*i}')
                a(f'buffer_load_dwordx4 v[24:27], v{tv("l16")}, {WS}, s84 offen')
                if o.get('touchx', 2) == 2: return
                a('s_waitcnt vmcnt(0)\nv_mov_b64 v[24:25], -1\nv_mov_b64 v[26:27], -1')
            for sl in range(2):
                for i in range(2): a(f'buffer_store_dwordx4 v[24:27], v{tv("l16")}, {WS}, s21 offen offset:{1024*i}')
                a('s_add_u32 s21, s21, 0x40000')
            for sl in range(4):
                a(f'buffer_store_dword v24, v{tv("pub")}, {WS}, s22 offen\ns_add_u32 s22, s22, 0x2000')
            a(f'v_mov_b32 v25, 0\ns_lshl_b32 s22, {S_W}, 5\ns_add_u32 s22, s22, {S_RANK}\ns_lshl_b32 s22, s22, 2\ns_add_u32 s22, s22, {hex(L.R_HINT)}')
            a(f's_cmp_ge_u32 s21, {hex(L.OOB)}\ns_cselect_b32 s22, s21, s22\nbuffer_store_dword v25, v{tv("one")}, {WS}, s22 offen')
        def stage_c(dst):
            set_srd(a, 12, P_DBG, 256)
            a(f'v_and_b32 v5, 3, v0\nv_lshlrev_b32 v5, 6, v5\nbuffer_load_dword v{dst}, v5, {ST}, 0 offen offset:60 sc1')
        def stage_x():
            a(f'buffer_load_dword v4, v2, {WS}, {S_FS0} offen sc1')
        def stage_y(second=False):
            lab = 'L_R_notyet2' if second else 'L_R_notyet'
            if second: a(f's_cmp_eq_u32 {S_RDY}, 1\ns_cbranch_scc1 {lab}')
            else: a(f'v_lshl_or_b32 v140, v141, 16, v140\ns_mov_b32 {S_RDY}, 0\ns_mov_b32 {S_FAST}, 1')
            a(f"""
            v_readlane_b32 s21, v3, 0
            v_readlane_b32 s22, v3, 1
            {'v_cmp_ne_u32 vcc, v4, v4' if o.get('keep_kv_flags') else 'v_cmp_eq_u32 vcc, v143, v4'}
            s_bcnt1_i32_b32 s21, s21
            s_add_u32 s85, s21, s22
            s_cbranch_vccnz {lab}
            s_cmp_lt_u32 s85, 32
            s_cbranch_scc1 {lab}
            s_mov_b32 {S_RDY}, 1
            """)
            if o.get('touchx', 2) in (0, 2): a(f'buffer_store_dword v140, v{tv("pub")}, {WS}, {S_PUBB} offen sc1')
            first_records(tv('l16'))
            a(f'{lab}:')
        scalars()
        own = o.get('own', 0) and o.get('touchx', 2) == 2
        if own:
            a(f'v_mov_b64 v[20:21], -1\nv_mov_b64 v[22:23], -1\ns_add_u32 s21, {S_INP}, 0x40000\ns_lshl_b32 s22, {S_RANK}, 10\ns_add_u32 s22, s22, {hex(L.RMEM)}')
            for so in (S_INP, 's21'):
                for i in range(2): a(f'buffer_store_dwordx4 v[20:23], v{tv("l16")}, {WS}, {so} offen offset:{1024*i} sc1')
            a(f'buffer_store_dwordx4 v[20:23], v{tv("l16")}, {WS}, s22 offen sc1')
        a(f'v_and_b32 v2, 1, v0\nv_lshlrev_b32 v2, 11, v2\ns_add_u32 {S_FS0}, {S_FKV}, {hex((L.F_S - L.F_KV) & 0xFFFFFFFF)}')
        a(f'buffer_load_dword v143, v2, {WS}, {S_FS0} offen sc1')
        set_srd(a, 24, P_MEM0, 8192)
        a(f'buffer_load_ushort v140, v{tv("m0a")}, s[24:27], s75 offen\nbuffer_load_ushort v141, v{tv("m0a")}, s[24:27], s75 offen offset:32')
        todo = []
        self.ldsf_off = {}
        def flush(n):
            for _ in range(n):
                f, r = todo.pop(0); off = 8192 * len(self.ldsf_off)
                self.ldsf_off[f] = off
                for hh in range(2):
                    src = vr(r + 4 * hh, 4) if r >= 0 else ar(-r - 1 + 4 * hh, 4)
                    a(f'ds_write_b128 v{tv("wv") if off < 65536 else 6}, {src} offset:{off % 65536 + 1024 * hh}')
                if r >= 0: parkregs.append(r)
        for gi in range(8):
            mat, b = groups[gi]
            if gi == 0: self.mark(2)
            a.wait(vm=[16 + 5, 2 + 16, 16, 16, 16, 16, 16, 0][gi] if o.get('xearly', 1) else [16 + 5, 5 + 16, 16, 16, 16, 16, 16 + 1, 1][gi])
            if gi == 6 and o.get('xearly', 1): stage_y()
            if gi == 7 and not o.get('nox2'): stage_y(second=True)
            if gi == (6 if own else 7) and o.get('touchx', 2): stage_t()
            if gi == 6 and o.get('code2', 1):
                pc = a.newlabel('pc')
                a(f's_getpc_b64 s[12:13]\n{pc}:\ns_add_u32 s12, s12, L_R_ready-{pc}\ns_addc_u32 s13, s13, 0\ns_mov_b32 s14, L_R_slow-L_R_ready\ns_mov_b32 s15, 0x20000')
                a(f'v_lshlrev_b32 v1, 4, v0')
                for k in range(5): a(f'buffer_load_dwordx4 v[24:27], v1, {ST}, 0 offen\nv_add_u32 v1, 4096, v1')
            if gi == 7 and o.get('touchp', 0): a(f'buffer_load_dword v5, v{tv("mm")}, {WS}, 0 offen sc1')
            if gi in (0, 2, 4, 7): self.mark(3 + [0, 2, 4, 7].index(gi))
            a('s_barrier')
            hb = (gi % 2) * L.GRP
            for x in range(4):
                dsts = []
                if mat == 'o':
                    for p in range(2):
                        f = (x, 2 * b + p)
                        dsts.append((vr, (TMP if x == 0 else 40) if f in WO_SPILL else wo_frag(*f)))
                    offs = [0, 2112, 8448, 10560]; xo = 64 * x
                    if x == 0: a(f'v_add_u32 v{VTA}, {hb}, v{VTO}')
                else:
                    offs = [0, 1056, 512, 1568]; xo = 0
                    a(f's_xor_b32 s21, {S_W}, {x}\ns_mul_i32 s21, s21, {L.BLK}\ns_add_u32 s21, s21, {hb}\nv_add_u32 v{VTA}, s21, v{VTQ}')
                    for p in range(2):
                        f = (mat, 2 * x + b, p)
                        if f in AGF: dsts.append((ar, 8 * AGF.index(f)))
                        else:
                            if f not in park: park[f] = TMP if (f[1], f[2]) == (6, 0) else (16 if (f[1], f[2]) == (6, 1) else parkregs.pop(0))
                            if park[f] < 0: dsts.append((ar, -park[f] - 1)); todo.insert(0, (f, park[f]))
                            else: dsts.append((vr, park[f])); todo.append((f, park[f]))
                for p in range(2):
                    rf, d = dsts[p]
                    for r in range(4):
                        a(f'ds_read_b64_tr_b16 {rf(d + 2 * r, 2)}, v{VTA} offset:{xo + offs[r] + (512 if mat == "o" else 32) * p}')
            if gi == 7 and not o.get('xearly', 1):
                a.wait(vm=0); stage_y()
            a.wait(lgkm=0)
            if gi == 0:
                for i in range(2):
                    for hh in range(2):
                        a(f'ds_write_b128 v{tv("x0")}, {vr((TMP if i == 0 else 40) + 4 * hh, 4)} offset:{16384 + 8192 * i + 1024 * hh}')
            a('s_barrier')
            if gi == 1: stage_w()

            if gi == 5 and o.get('xearly', 1): stage_x()
            if gi + 2 < 8: issue(gi + 2)
            if gi == 5 and not o.get('xearly', 1): stage_x()
            if gi == 1: self.signal_init(barrier=False)
            if gi == 6 and not o.get('nox2'): stage_x()
            if gi == 6: flush(8)
            if gi == 7: flush(8)
        assert not todo and len(self.ldsf_off) == 16
        a.wait(lgkm=0, vm=0 if (o.get('touchx', 2) == 2 and not own) else None)
        a.auto_vm = True; a.forget()
        a(f'v_mov_b32 v{V_WV2}, v6')
        for n, d in [('l16', V_L16), ('ist', V_IST), ('pub', V_PUB), ('x0', V_X0), ('x1', V_X0 + 1), ('x2', V_X0 + 2), ('x3', V_X0 + 3),
                     ('f', V_F), ('smw', V_SMW), ('ow', V_OW), ('wv', V_WV), ('idx', V_IDX), ('one', V_ONE), ('or', V_OR)] + \
                    [(f'selr{i}', SELR + i) for i in range(4)] + [(f'selv{i}', SELV + i) for i in range(2)] + \
                    [('selq', SELQ), ('selq', SELQ + 3), ('selk', SELK), ('selk', SELK + 3)]:
            a(f'v_mov_b32 v{d}, v{tv(n)}')
        for d in (SELQ + 1, SELQ + 2, SELK + 1, SELK + 2): a(f'v_mov_b32 v{d}, 0')
        self.dump_marks(T + 4)
        self.tstamp(1, T + 4)
        self.note(3, T + 4)
        a(f's_cmp_eq_u32 {S_RDY}, 1\ns_cbranch_scc1 L_R_ready')
        a(f's_cmp_ge_u32 s85, 32\ns_cbranch_scc1 L_R_mode')
        self.wait_init(t0=T + 4)
        a(f's_cmp_ge_u32 s21, 32\ns_cselect_b32 {S_FAST}, 1, 0\nL_R_mode:')
        a(f'v_and_b32 v{T+4}, 1, v0\nv_lshlrev_b32 v{T+4}, 11, v{T+4}')
        lab = a.newlabel('f2')
        a.auto_vm = False
        a(f's_mov_b32 s23, {SPIN}\n{lab}:\nbuffer_load_dword v{T+5}, v{T+4}, {WS}, {S_FS0} offen sc1\ns_waitcnt vmcnt(0)\nv_cmp_eq_u32 vcc, v143, v{T+5}')
        a(f's_cbranch_vccz {lab}k\ns_sub_u32 s23, s23, 1\ns_cbranch_scc0 {lab}\ns_mov_b32 {SPIN}, 0x400\n{lab}k:')
        a(f'buffer_store_dword v140, v{V_PUB}, {WS}, {S_PUBB} offen sc1')
        first_records(V_L16)
        if not own:
            a(f's_cmp_eq_u32 {S_FAST}, 1\ns_cselect_b32 s21, {S_INP}, {hex(L.OOB)}\ns_lshl_b32 s22, {S_RANK}, 10\ns_add_u32 s22, s22, {hex(L.RMEM)}\ns_cmp_eq_u32 {S_FAST}, 0\ns_cselect_b32 s22, s21, s22\ns_add_u32 s84, s21, 0x40000')
            for so in ('s21', 's84'):
                for i in range(2): a(f'buffer_load_dwordx4 {vr(T+4,4)}, v{V_L16}, {WS}, {so} offen offset:{1024*i}')
            a(f'buffer_load_dwordx4 {vr(T+4,4)}, v{V_L16}, {WS}, s22 offen')
        a.auto_vm = True
        a('L_R_ready:')
        a.wait(vm=0)
        a.forget()
        if o.get('force_slow'): a(f's_mov_b32 {S_FAST}, 0')
        if o.get('touchx', 2) in (1, 3):
            a(f's_cmp_eq_u32 {S_FAST}, 0\ns_cselect_b32 s21, {hex(L.OOB)}, {S_PUBB}\ns_cselect_b32 s22, {S_PUBB}, {hex(L.OOB)}')
            a(f'buffer_store_dword v140, v{V_PUB}, {WS}, s21 offen\nbuffer_store_dword v140, v{V_PUB}, {WS}, s22 offen sc1')
        a(f's_add_u32 {S_FKV}, {S_FKV}, 2048\nv_mov_b32 v{V_FLAG}, 1')
        for r in range(M, M + 8, 2): a(f'v_mov_b64 {vr(r,2)}, -1')
        if o.get('hold') or o.get('holdB'):
            a(f's_lshl_b32 s21, {S_RANK}, 6\ns_add_u32 s21, s21, {hex(L.F_RS)}\ns_cmp_eq_u32 {S_W}, 0\ns_cselect_b32 s21, s21, {hex(L.OOB)}')
            a(f'buffer_store_dword v{V_F}, v{V_ONE}, {WS}, s21 offen sc1')
        if o.get('rdylog'):
            a(f's_lshl_b32 s21, {S_RANK}, 2\ns_add_u32 s21, s21, {S_W}\ns_lshl_b32 s21, s21, 2\ns_add_u32 s21, s21, {hex(L.DBG + 196608)}\nv_mov_b32 v{T+4}, {S_RDY}\nbuffer_store_dword v{T+4}, v{V_ONE}, {WS}, s21 offen')
        self.tstamp(2, T + 4)
        self.tstamp(3, T + 4)
        self.note(4, T + 4)
        if o.get('stamp'):
            a('s_memtime s[80:81]\ns_memrealtime s[28:29]'); a.wait(lgkm=0)
        a(f's_lshl_b32 {S_HST}, {S_W}, 5\ns_add_u32 {S_HST}, {S_HST}, {S_RANK}\ns_lshl_b32 {S_HST}, {S_HST}, 2\ns_add_u32 {S_HST}, {S_HST}, {hex(L.R_HINT)}')
        a(f's_lshr_b32 {S_HLD}, {S_RANK}, 3\ns_lshl_b32 {S_HLD}, {S_HLD}, 7\ns_add_u32 {S_HLD}, {S_HLD}, {hex(L.R_HINT)}')
        a('s_mov_b32 s26, 0x3f803f80\ns_mov_b32 s27, 0x3f803f80\ns_mov_b32 s8, 0x3f003f00\ns_mov_b32 s9, 0x3f003f00')
        a(f'ds_write_b64 v{V_OW}, {vr(M,2)}')
        a.wait(lgkm=0)
        a(f's_cmp_eq_u32 {S_FAST}, 0\ns_cbranch_scc1 L_R_slow')
        if o.get('nostag'):
            self.r_loop('f', '')
        else:
            for w in range(1, 4): a(f's_cmp_eq_u32 {S_W}, {w}\ns_cbranch_scc1 L_R_w{w}')
            for w in range(4):
                if w: a(f'L_R_w{w}:')
                self.r_loop('f' + (str(w) if w else ''), '', wv=w)
        a('L_R_slow:')
        self.r_loop('s', 'sc1')

    def spin_flag(self, dst, voff, soff):
        a = self.a
        lab = a.newlabel('sf'); ok = a.newlabel('sfok')
        sv = a.auto_vm; a.auto_vm = False
        a(f'''
        s_mov_b32 s23, {SPIN}
        {lab}:
        buffer_load_dword v{dst}, {voff}, {WS}, {soff} offen sc1
        s_waitcnt vmcnt(0)
        v_cmp_ne_u32 vcc, 0, v{dst}
        s_cbranch_vccnz {ok}
        s_sleep 2
        s_sub_u32 s23, s23, 1
        s_cbranch_scc0 {lab}
        s_mov_b32 {SPIN}, 0x400
        {ok}:
        ''')
        a.auto_vm = sv; a.vq = []

    def poll(self, tag, dst, voff, soff, pre, check, shadow, nchk, mid=None, nmid=0, blk=None):
        a = self.a
        lab = f'L_poll_{tag}'; ok = f'L_pok_{tag}'
        def issue():
            a(f'buffer_load_dwordx4 {vr(dst,4)}, v{voff}, {WS}, {soff} offen {self.pf}')
            a(f'buffer_load_dwordx4 {vr(dst+4,4)}, v{voff}, {WS}, {soff} offen offset:1024 {self.pf}')
        pre()
        if blk:
            gap, cover, fill = blk
            issue()
            if mid: mid()
            for i in range(gap): fill()
            a(f's_mov_b32 s23, {SPIN}')
            issue()
            for i in range(cover): fill()
            a(f's_branch L_pw_{tag}\n{lab}:')
            a(f's_sub_u32 s23, s23, 1\ns_cbranch_scc1 L_pto_{tag}')
            issue()
            a(f'L_pw_{tag}:\ns_waitcnt vmcnt(2)')
            check(); shadow()
            a(f's_cbranch_vccnz {lab}\n{ok}:')
            self.late.append(f'L_pto_{tag}:\ns_mov_b32 {SPIN}, 0x400\ns_waitcnt vmcnt(0)\n@SH@s_branch {ok}')
            self.late_sh.append(shadow)
            return
        if mid:
            issue(); mid()
            for r in range(nmid):
                check(); shadow()
                a(f's_cbranch_vccz {ok}')
        a(f's_mov_b32 s23, {SPIN}')
        a(f'{lab}:')
        issue()
        for r in range(nchk - 1):
            check(); shadow()
            a(f's_cbranch_vccz {ok}')
        a(f's_sub_u32 s23, s23, 1\ns_cbranch_scc1 L_pto_{tag}')
        check(); shadow()
        a(f's_cbranch_vccnz {lab}\n{ok}:')
        self.late.append(f'L_pto_{tag}:\ns_mov_b32 {SPIN}, 0x400\ns_waitcnt vmcnt(0)\n@SH@s_branch {ok}')
        self.late_sh.append(shadow)

    def poll2(self, tag, dst, soff, chores, t0, t1, t2, fill, check, shadow, retry=None, depth=2, nat=False):
        a = self.a
        lab = f'L_poll_{tag}'; ok = f'L_pok_{tag}'
        def issue():
            a(f'buffer_load_dwordx4 {vr(dst,4)}, v{V_L16}, {WS}, {soff} offen {self.pf}')
            a(f'buffer_load_dwordx4 {vr(dst+4,4)}, v{V_L16}, {WS}, {soff} offen offset:1024 {self.pf}')
        def spend(t, flush=False):
            while chores and (flush or chores[0][0] <= t + 4):
                c, f = chores.pop(0); f(); t -= c
            if t >= 12: a.comment('poll back-off (matrix pipe kept awake for the reduction that follows)')
            while t >= 12: fill(); t -= 16
        def work(t):
            while chores and chores[0][0] <= t + 4:
                c, f = chores.pop(0); f(); t -= c
        if nat:
            work(t0); a('s_waitcnt vmcnt(1)'); issue()
            work(t1); a('s_waitcnt vmcnt(2)'); issue()
        else:
            spend(t0); issue()
        for _ in range(0 if nat else depth - 1):
            spend(t1 - 40); issue()
        spend(t2 - 40, flush=True)
        a(f's_mov_b32 s23, {SPIN}\ns_branch L_pw_{tag}\n{lab}:')
        a(f's_sub_u32 s23, s23, 1\ns_cbranch_scc1 L_pto_{tag}')
        issue()
        if retry: retry()
        a(f'L_pw_{tag}:\ns_waitcnt vmcnt({2 * (depth - 1)})')
        check(); shadow()
        a(f's_cbranch_vccnz {lab}\n{ok}:')
        self.late.append(f'L_pto_{tag}:\ns_mov_b32 {SPIN}, 0x400\ns_waitcnt vmcnt(0)\n@SH@s_branch {ok}')
        self.late_sh.append((lambda: (retry(), shadow())) if retry else shadow)

    def stamp(self, i):
        if self.o.get('stamp') and (self.o.get('smask', 0x3ff) >> i) & 1: self.a.raw(f'    {"s_memrealtime" if self.o.get("rt") else "s_memtime"} s[{82+2*i}:{83+2*i}]')

    def dump_stamps(self, tg):
        a = self.a
        if not self.o.get('stamp'): return
        lab = f'L_nodump_{tg}'
        a(f's_cmp_lg_u32 {S_S}, {self.o.get("dstep", 41)}\ns_cbranch_scc1 {lab}\ns_waitcnt lgkmcnt(0)')
        a(f's_lshl_b32 s21, {S_RANK}, 8\ns_lshl_b32 s22, {S_W}, 6\ns_add_u32 s21, s21, s22\ns_add_u32 s21, s21, {hex(L.DBG)}')
        a(f'v_mov_b32 v{T+10}, 0')
        for i in range(10):
            a(f'v_mov_b32 v{T+11}, s{82+2*i}\nbuffer_store_dword v{T+11}, v{T+10}, {WS}, s21 offen offset:{4*i}')
        a(f's_waitcnt vmcnt(0)\n{lab}:')

    def r_loop(self, tg, cf, wv=0):
        a = self.a; o = self.o
        mf16 = 'v_mfma_f32_16x16x16_bf16'; mf32 = 'v_mfma_f32_16x16x32_bf16'
        cvt = 'v_cvt_pk_bf16_f32'
        QP = 'quad_perm:[2,3,0,1] row_mask:0xf bank_mask:0xf'
        dum = lambda n=1: [a(a.dummy) for _ in range(n)]
        self.late = []; self.late_sh = []; self.fixups = []
        self.pf = 'nt' if (not cf and o.get('pollnt')) else 'sc1'
        a.auto_vm = False
        B0, B1, B2 = WVB, WVB + 8, M
        ACC = {'q': AQ, 'k': AK, 'v': AV}
        def S(m, k, p, buf=None):
            f = (m, k, p)
            self.smf(ACC[m] + 4 * p, M + 4 * k, ar(8 * AGF.index(f), 8) if buf is None else vr(buf, 8))
        def V(k, p, buf=None): S('v', k, p, buf)
        def RD(buf, m, k, p, hh):
            off = self.ldsf_off[(m, k, p)]
            a(f'ds_read_b128 {vr(buf + 4*hh, 4)}, v{V_WV if off < 65536 else V_WV2} offset:{off % 65536 + hh*1024}')
        def RD2(buf, m, k, p): RD(buf, m, k, p, 0); RD(buf, m, k, p, 1)
        def pkadd(d, x, y): a(f'v_add_f32 v{d}, v{x}, v{y}\nv_add_f32 v{d+1}, v{x+1}, v{y+1}')
        def PK(d, x, y): a(f'v_pk_add_f32 {vr(d,2)}, {vr(x,2)}, {vr(y,2)}')
        def add(d, x, y): a(f'v_add_f32 v{d}, v{x}, v{y}')
        def dmf(r):
            m = o.get('fillm', 2)
            if m == 1 or (m == 2 and r == M + 8): a('s_nop 3')
            elif m == 3: a(f's_nop 2\n{a.dummy}')
            elif m == 4: a(f'{mf16} {vr(r,4)}, s[26:27], s[26:27], 0' if False else f'{mf16} {vr(r,4)}, {vr(SELQ+2,2)}, {vr(SELQ,2)}, 0')
            else: a(f'{mf16} {vr(r,4)}, {vr(SELQ,2)}, {vr(SELQ,2)}, {vr(r,4)}')
        def filt(line):
            st = 'buffer_store' in line and ('s75' in line or 's76' in line) and 'sc1' in line
            ld = 'buffer_load' in line and ('s67' in line or 's68' in line)
            if o.get('nost') and st: return None
            if o.get('nofst') and st and 's76' in line: return None
            if o.get('nold') and ld: return None
            if o.get('nofld') and ld and 's68' in line: return None
            if o.get('ldplain') and ld and 's67' in line: return line.replace(' sc1', '')
            if o.get('ldnt') and ld and 's67' in line: return line.replace(' sc1', ' nt')
            if o.get('stplain') and st: return line.replace(' sc1', '')
            if o.get('novm') and 'vmcnt' in line: return None
            if o.get('nowarm') and 'buffer_load_dword v27' in line: return 's_nop 0'
            if o.get('novmh') and 'buffer_store_dwordx2' in line: return None
            return line
        PA = M + 8; R = T + 8
        spin = f'L_kvspin_{tg}'; back = f'L_kvback_{tg}'
        def preload():
            RD2(M + 24, 'q', 0, 0); RD2(M + 16, 'q', 0, 1); RD2(B0, 'q', 1, 0); RD2(B1, 'q', 1, 1); RD2(T, 'k', 0, 0)
        def slackB():
            a(f'v_cmp_eq_u32 vcc, 0, v{V_FLAG}')
            for r in range(0, 8, 2): a(f'v_mov_b64 {vr(VXC+r,2)}, {vr(VXN+r,2)}')
            a(f's_xor_b32 {S_INP}, {S_INP}, 0x40000')
            a(f's_cbranch_vccnz {spin}\n{back}:')
            a(f"""
            s_cmp_lt_u32 {S_S}, 63
            s_cselect_b32 {S_T0}, {0 if o.get("nopf") else 32*24576}, 0
            s_add_u32 {S_REC}, {S_REC}, {S_T0}
            s_cmp_lt_u32 {S_S}, 62
            s_cselect_b32 {S_T0}, 2048, 0
            s_add_u32 {S_FKV}, {S_FKV}, {S_T0}
            s_cmp_ge_u32 {S_S}, 2
            s_cselect_b32 {S_T1}, {S_FM}, {hex(L.OOB)}
            s_cmp_ge_u32 {S_S}, 1
            s_cselect_b32 {S_T0}, {S_KVM}, {hex(L.OOB)}
            s_add_u32 {S_FM}, {S_FM}, 2048
            s_cmp_eq_u32 {S_S}, 61
            s_cselect_b32 {S_TAG}, {hex((L.KVL - L.KVM - 61 * 131072) & 0xFFFFFFFF) if o.get('dpoll', 1) else 0}, 0
            s_add_u32 {S_KVM}, {S_KVM}, {S_TAG}
            s_add_u32 {S_KVM}, {S_KVM}, 131072
            s_lshr_b32 {S_TAG}, {S_S}, 1
            s_and_b32 {S_TAG}, {S_TAG}, 1
            s_sub_u32 {S_NTAG}, {S_TAG}, 1
            s_add_u32 {S_IN1}, {S_IN0}, 32768
            s_and_b32 {S_OTAG}, {S_S}, 1
            s_sub_u32 {S_NOTAG}, {S_OTAG}, 1
            """)
            if o.get('steplog') and wv == 0 and tg != 's':
                a(f's_memrealtime s[82:83]\ns_lshl_b32 s84, {S_S}, 2\ns_lshl_b32 s85, {S_RANK}, 8\ns_add_u32 s84, s84, s85\ns_add_u32 s84, s84, {hex(L.DBG + 131072)}')
                a(f's_waitcnt lgkmcnt(0)\nv_mov_b32 v{T+10}, s82\nbuffer_store_dword v{T+10}, v{V_ONE}, {WS}, s84 offen')
            if o.get('zB'):
                for r in range(AQ, AQ + 24, 2): a(f'v_mov_b64 {vr(r,2)}, 0')
            if o.get('barB'): dmf(PA); a('s_barrier')
            for i in range(o.get('dB', 8) if wv >= 2 else o.get('dB0', o.get('dB', 8))): dmf(PA + 4 * (i % 2))
        def checkB():
            if not o.get('shortchk'):
                a(f"""
                v_max3_u32 v{R}, v{M}, v{M+1}, v{M+2}
                v_max3_u32 v{R+1}, v{M+3}, v{M+4}, v{M+5}
                v_max3_u32 v{R}, v{R}, v{M+6}, v{M+7}
                v_max_u32 v{R}, v{R}, v{R+1}
                """)
            else:
                a(f'v_max_u32 v{R}, v{M}, v{M+7}')
            a(f'v_cmp_eq_u32 vcc, -1, v{R}')
        def shadowB():
            if o.get('specw', 1): a(f'ds_write_b128 v{V_X0}, {vr(M,4)}')
            else: dmf(PA); a('s_nop 2')
        preload()
        for r in range(AQ, AQ + 24, 2): a(f'v_mov_b64 {vr(r,2)}, 0')
        a(f's_xor_b32 {S_INP}, {S_INP}, 0x40000')
        a.wait(lgkm=0)
        a(f'L_Rloop_{tg}:')
        a.forget()
        a.hot = True
        a.filt = filt
        sa = lambda txt: [(4, lambda l=l: a(l)) for l in txt.strip().split('\n')]
        va = lambda lines: [(8, lambda l=l: a(l)) for l in lines]
        if True:
            chB = [(44, lambda: a(f'v_cmp_eq_u32 vcc, 0, v{V_FLAG}\ns_cbranch_vccnz {spin}\n{back}:'))]
            chB += va([f'v_mov_b64 {vr(VXC+r,2)}, {vr(VXN+r,2)}' for r in range(0, 8, 2)])
            chB += sa(f"""
            s_xor_b32 {S_INP}, {S_INP}, 0x40000
            s_cmp_lt_u32 {S_S}, 63
            s_cselect_b32 {S_T0}, {0 if o.get("nopf") else 32*24576}, 0
            s_add_u32 {S_REC}, {S_REC}, {S_T0}
            s_cmp_lt_u32 {S_S}, 62
            s_cselect_b32 {S_T0}, 2048, 0
            s_add_u32 {S_FKV}, {S_FKV}, {S_T0}
            s_cmp_ge_u32 {S_S}, 2
            s_cselect_b32 {S_T1}, {S_FM}, {hex(L.OOB)}
            s_cmp_ge_u32 {S_S}, 1
            s_cselect_b32 {S_T0}, {S_KVM}, {hex(L.OOB)}
            s_add_u32 {S_FM}, {S_FM}, 2048
            s_cmp_eq_u32 {S_S}, 61
            s_cselect_b32 {S_TAG}, {hex((L.KVL - L.KVM - 61 * 131072) & 0xFFFFFFFF) if o.get('dpoll', 1) else 0}, 0
            s_add_u32 {S_KVM}, {S_KVM}, {S_TAG}
            s_add_u32 {S_KVM}, {S_KVM}, 131072
            s_lshr_b32 {S_TAG}, {S_S}, 1
            s_and_b32 {S_TAG}, {S_TAG}, 1
            s_sub_u32 {S_NTAG}, {S_TAG}, 1
            s_add_u32 {S_IN1}, {S_IN0}, 32768
            s_and_b32 {S_OTAG}, {S_S}, 1
            s_sub_u32 {S_NOTAG}, {S_OTAG}, 1
            """)
            if o.get('steplog') and wv == 0 and tg != 's':
                chB.insert(0, (70, lambda: (a(f's_memrealtime s[82:83]\ns_lshl_b32 s84, {S_S}, 2\ns_lshl_b32 s85, {S_RANK}, 8\ns_add_u32 s84, s84, s85\ns_add_u32 s84, s84, {hex(L.DBG + 131072)}'),
                    a(f's_waitcnt lgkmcnt(0)\nv_mov_b32 v{R}, s82\nbuffer_store_dword v{R}, v{V_ONE}, {WS}, s84 offen'))))
            if not o.get('split', 1):
                self.poll2('B' + tg, M, S_MEMP, chB, o.get('tB0', 200), o.get('tB1', 180), o.get('tB2', 40), lambda: dmf(PA), checkB, shadowB)
            else:
                ld = lambda i: a(f'buffer_load_dwordx4 {vr(M+4*i,4)}, v{V_L16}, {WS}, {S_MEMP} offen offset:{1024*i} {self.pf}')
                def spend(t, flush=False):
                    while chB and (flush or chB[0][0] <= t + 4):
                        c, f = chB.pop(0); f(); t -= c
                    if t >= 12: a.comment('poll back-off: a look issued earlier only queues in front of the one that will succeed')
                    while t >= 12: dmf(PA); t -= 16
                def chk(i):
                    a(f'v_max3_u32 v{R}, v{M+4*i}, v{M+4*i+1}, v{M+4*i+2}\nv_max_u32 v{R}, v{R}, v{M+4*i+3}\nv_cmp_eq_u32 vcc, -1, v{R}')
                g = o.get('tBg', 32)
                if o.get('natB', 0) == 1:
                    spend(o.get('tB0', 140)); ld(0); spend(1000 if False else 30); ld(1); spend(0, flush=True)
                    a('s_waitcnt vmcnt(2)'); ld(0); ld(1)
                elif o.get('natB', 0) == 3:
                    c, f = chB.pop(0); f()
                    a('s_waitcnt vmcnt(1)'); ld(0); a('s_waitcnt vmcnt(1)'); ld(1)
                    n = len(chB) - o.get('nBg', 6)
                    for c, f in chB[:n]: f()
                    ld(0)
                    for c, f in chB[n:]: f()
                    ld(1)
                elif o.get('natB', 0) == 4:
                    n = o.get('nB0', 13)
                    for c, f in chB[:n]: f()
                    ld(0)
                    for c, f in chB[n:n + 6]: f()
                    ld(1)
                    for c, f in chB[n + 6:]: f()
                    a('s_waitcnt vmcnt(2)'); ld(0); ld(1)
                elif o.get('natB', 0) == 2:
                    spend(0, flush=True); a('s_waitcnt vmcnt(1)'); ld(0); a('s_waitcnt vmcnt(1)'); ld(1)
                    spend(o.get('tB1', 180) - 40 - g); ld(0); spend(g); ld(1)
                else:
                    spend(o.get('tB0', 150) if wv >= 2 else o.get('tB00', o.get('tB0', 150))); ld(0); spend(g); ld(1)
                    spend(o.get('tB1', 180) - 40 - g); ld(0); spend(g); ld(1)
                    spend(o.get('tB2', 40) - 40 - g, flush=True)
                a(f's_mov_b32 s23, {SPIN}\nL_pw_B{tg}:\ns_waitcnt vmcnt(3)')
                chk(0)
                a(f'ds_write_b128 v{V_X0}, {vr(M,4)}')
                S('q', 0, 0, M + 24)
                a(f's_cbranch_vccnz L_poll_B{tg}\nL_pok_B{tg}:')
                def fixB():
                    a(f'L_poll_B{tg}:\ns_sub_u32 s23, s23, 1\ns_cbranch_scc1 L_pto_B{tg}')
                    ld(0); ld(1)
                    a(f'v_mov_b64 {vr(AQ,2)}, 0\nv_mov_b64 {vr(AQ+2,2)}, 0\ns_branch L_pw_B{tg}')
                    a(f'L_pto_B{tg}:\ns_mov_b32 {SPIN}, 0x400\ns_branch L_pok_B{tg}')
                    a(f'L_pol1_B{tg}:\ns_waitcnt vmcnt(0)')
                    chk(1)
                    a(f's_cbranch_vccz L_pk1_B{tg}\ns_sub_u32 s23, s23, 1\ns_cbranch_scc1 L_pt1_B{tg}')
                    ld(1)
                    a(f's_branch L_pol1_B{tg}\nL_pt1_B{tg}:\ns_mov_b32 {SPIN}, 0x400\ns_branch L_pk1_B{tg}')
                self.fixups.append(fixB)
        if o.get('rt'): a('s_mov_b32 s84, s82')
        self.stamp(0)
        if o.get('rt'): self.dump_stamps(tg)
        wp = o.get('wpat', 5)
        ws = {0: (0, 1), 1: (1 + wv, 5 + wv), 2: (1 + 2 * (wv % 2), 2 + 2 * (wv % 2)), 3: (1 + wv % 2, 3 + wv % 2), 4: (1 + wv // 2, 3 + wv // 2),
              5: (1, 2), 6: (wv, 4 + wv), 7: (wv % 2, 2 + wv % 2), 8: (wv // 2, 2 + wv // 2)}[wp]
        wslot = [0]
        def MW():
            for i in range(2):
                if ws[i] == wslot[0] and not (i == 0 and o.get('specw', 1)): a(f'ds_write_b128 v{V_X0}, {vr(M+4*i,4)} offset:{1024*i}')
            wslot[0] += 1
        if not o.get('split', 1):
            MW()
            S('q', 0, 0, M + 24); MW()
            S('q', 0, 1, M + 16); MW()
            S('q', 1, 0, B0); MW()
            S('q', 1, 1, B1); MW()
            S('k', 0, 0, T); MW()
            S('k', 0, 1); MW()
            S('k', 1, 0); MW()
            S('k', 1, 1); MW()
        else:
            S('q', 0, 1, M + 16)
            a('s_waitcnt vmcnt(2)')
            a(f'v_max3_u32 v{R}, v{M+4}, v{M+5}, v{M+6}')
            S('k', 0, 0, T); a(f'v_max_u32 v{R}, v{R}, v{M+7}')
            S('k', 0, 1); a(f'v_cmp_eq_u32 vcc, -1, v{R}')
            V(0, 0)
            a(f's_cbranch_vccnz L_pol1_B{tg}\nL_pk1_B{tg}:')
            a(f'ds_write_b128 v{V_X0}, {vr(M+4,4)} offset:1024')
            if o.get('lastx', 1): a(f's_cmp_eq_u32 {S_S}, 63')
            S('k', 1, 0)
            if o.get('lastx', 1): a(f's_cbranch_scc1 L_Rlast_{tg}')
            lq_last = list(a.lq)
            S('q', 1, 0, B0); S('q', 1, 1, B1); S('k', 1, 1)
        a.wait_lds_writes()
        a('s_barrier')
        def MR(k): a(f'ds_read_b128 {vr(M+4*k,4)}, v{V_X0 + k//2} offset:{1024*(k%2)}')
        MR(2); MR(3)
        if not o.get('split', 1): V(0, 0)
        MR(4)
        V(0, 1); MR(5)
        V(1, 0); MR(6)
        V(1, 1); MR(7)
        VXL = lambda i: a(f'buffer_load_dwordx4 {vr(VXN+4*i,4)}, v{V_L16}, {WS}, {S_REC} offen offset:{2048+1024*i} sc1')
        self.stamp(1)
        vm_ops = [
            lambda: a(f'buffer_store_dwordx4 {vr(KMH,4)}, v{V_L16}, {WS}, {S_T0} offen sc1'),
            lambda: VXL(0),
            lambda: VXL(1),
            lambda: (a(f'buffer_store_dword v{V_F}, v{V_ONE}, {WS}, {S_T1} offen sc1'),
                     a(f'buffer_load_dword v{V_FLAG}, v{V_Z}, {WS}, {S_FKV} offen sc1')),
        ]
        slot = [0]
        first = o.get('vm0', 5)
        def X():
            i = slot[0] - first - wv
            if i == 0: a('s_waitcnt vmcnt(0)')
            if i >= 0 and i % 4 == 0 and i // 4 < len(vm_ops): vm_ops[i // 4]()
            slot[0] += 1
        S('q', 2, 0); RD(B0, 'k', 2, 1, 0); X()
        S('q', 3, 0); RD(B0, 'k', 2, 1, 1); X()
        S('q', 4, 0); RD(B1, 'k', 3, 1, 0); X()
        S('q', 5, 0); RD(B1, 'k', 3, 1, 1); X()
        S('q', 6, 0); RD(T, 'k', 4, 1, 0); X()
        S('q', 7, 0); RD(T, 'k', 4, 1, 1); X()
        S('q', 2, 1); X()
        S('q', 3, 1); X()
        S('q', 4, 1); X()
        assert slot[0] > first + wv
        S('q', 5, 1); RD(B2, 'k', 5, 1, 0); X(); add(AQ, AQ, AQ + 2)
        S('q', 6, 1); RD(B2, 'k', 5, 1, 1); X(); add(AQ + 1, AQ + 1, AQ + 3)
        S('q', 7, 1); X(); a(f'{cvt} v{AQ+2}, v{AQ}, v{AQ+1}')
        S('k', 2, 0); X()
        S('k', 2, 1, B0); RD(B0, 'k', 6, 1, 0); X()
        S('k', 3, 0); RD(B0, 'k', 6, 1, 1); X()
        S('k', 3, 1, B1); RD(B1, 'k', 7, 0, 0); X(); add(AQ + 4, AQ + 4, AQ + 6)
        S('k', 4, 0); RD(B1, 'k', 7, 0, 1); X(); add(AQ + 5, AQ + 5, AQ + 7)
        S('k', 4, 1, T); RD(T, 'k', 7, 1, 0); X(); a(f'{cvt} v{AQ+3}, v{AQ+4}, v{AQ+5}')
        S('k', 5, 0); RD(T, 'k', 7, 1, 1); X()
        a(f'{mf16} {vr(AQ+4,4)}, {vr(AQ+2,2)}, {vr(SELQ,2)}, 0'); X()
        a(f'{mf16} {vr(T+8,4)}, {vr(AQ+2,2)}, {vr(SELQ+2,2)}, 0'); X()
        S('k', 5, 1, B2); RD(B2, 'v', 6, 0, 0); X()
        S('k', 6, 0); RD(B2, 'v', 6, 0, 1)
        S('k', 7, 0, B1); RD(B1, 'v', 7, 0, 0); a(f'{cvt} v{AQ}, v{AQ+4}, v{AQ+5}')
        S('k', 6, 1, B0); RD(B1, 'v', 7, 0, 1); a(f'{cvt} v{AQ+1}, v{AQ+6}, v{AQ+7}\n{cvt} v{AQ+2}, v{T+8}, v{T+9}')
        S('k', 7, 1, T); RD(B0, 'v', 6, 1, 0); a(f'{cvt} v{AQ+3}, v{T+10}, v{T+11}')
        assert slot[0] > first + wv + 4 * (len(vm_ops) - 1)
        self.stamp(2)
        RD(B0, 'v', 6, 1, 1)
        add(AK, AK, AK + 2)
        a(f'{mf32} {vr(AQ+4,4)}, {vr(KX,4)}, {vr(AQ,4)}, 0')
        add(AK + 1, AK + 1, AK + 3)
        a(f'{cvt} v{AK+2}, v{AK}, v{AK+1}')
        a(f'{mf32} {vr(T+8,4)}, {vr(KX+4,4)}, {vr(AQ,4)}, 0')
        pkadd(AK + 4, AK + 4, AK + 6)
        a(f'{cvt} v{AK+3}, v{AK+4}, v{AK+5}')
        a(f'{mf16} {vr(AK+4,4)}, {vr(AK+2,2)}, {vr(SELK,2)}, 0')
        a(f'{mf16} {vr(T,4)}, {vr(AK+2,2)}, {vr(SELK+2,2)}, 0')
        kslot = [0]
        def KL():
            i = kslot[0] - wv
            if i in (0, 4): a(f'buffer_load_dwordx4 {vr(KX+i,4)}, v{V_L16}, {WS}, {S_REC} offen offset:{256*i} sc1')
            kslot[0] += 1
        for i in range(4): a(f'v_cndmask_b32 v{AK+i}, v{T+8+i}, v{AQ+4+i}, {S_LO}')
        a(f'{cvt} v{KMH}, v{AK+4}, v{AK+5}\n{cvt} v{KMH+1}, v{AK+6}, v{AK+7}')
        a(f'{cvt} v{KMH+2}, v{T}, v{T+1}\n{cvt} v{KMH+3}, v{T+2}, v{T+3}')
        a(f'{mf32} {vr(T+4,4)}, {vr(KMH,4)}, {vr(AQ,4)}, 0')
        V(2, 0)
        a(f'ds_write_b128 v{V_X0}, {vr(AK,4)} offset:8192')
        a(f'v_cndmask_b32 v{T+4}, v{T+5}, v{T+4}, {S_LO}')
        V(2, 1)
        a(f'ds_write_b32 v{V_SMW}, v{T+4}')
        self.stamp(3)
        B3 = M + 8
        ONES, HALF = B2, B2 + 4
        V(3, 0); KL()
        V(3, 1); RD(B3, 'v', 7, 1, 0); KL()
        V(6, 0, B2); RD(B3, 'v', 7, 1, 1); KL()
        V(6, 1, B0); KL()
        if o.get('vb', 4) > 4: V(7, 0, B1)
        a.wait_lds_writes()
        a('s_barrier')
        SX = [T + 4, T + 8, AQ + 4]
        SR = lambda x: a(f'ds_read_b128 {vr(SX[x-1],4)}, v{V_X0+x} offset:8192')
        SR(1)
        if o.get('vb', 4) <= 4: V(7, 0, B1)
        SR(2); SR(3)
        V(4, 0); a(f'ds_read_b128 {vr(T,4)}, v{V_F} offset:1024'); a(f'v_mov_b64 {vr(ONES,2)}, s[26:27]')
        V(4, 1); KL(); a(f'v_mov_b64 {vr(ONES+2,2)}, s[26:27]')
        V(5, 0); KL(); a(f'v_mov_b64 {vr(HALF,2)}, s[8:9]')
        V(7, 1, B3); KL()
        V(5, 1); KL()
        WOS = lambda i, hh: a(f'ds_read_b128 {vr(WVB+8*i+4*hh,4)}, v{V_X0} offset:{16384+8192*i+1024*hh}')
        zs = list(range(M + 16, M + 32, 2))
        def Z(n):
            for _ in range(n): a(f'v_mov_b64 {vr(zs.pop(0),2)}, 0')
        self.stamp(4)
        pkadd(AK, AK, SX[0]); pkadd(AK + 2, AK + 2, SX[0] + 2)
        PK(SX[1], SX[1], SX[2]); PK(SX[1] + 2, SX[1] + 2, SX[2] + 2)
        PK(T, T, T + 2)
        PK(AK, AK, SX[1]); PK(AK + 2, AK + 2, SX[1] + 2)
        add(T, T, T + 1)
        mx, t2 = T + 2, T + 3
        a(f'v_max3_f32 v{mx}, v{AK}, v{AK+1}, v{AK+2}\nv_max3_f32 v{mx}, v{mx}, v{AK+3}, v{T}')
        PK(AV, AV, AV + 2); PK(AV + 4, AV + 4, AV + 6)
        a(f'v_max_f32_dpp v{t2}, v{mx}, v{mx} {QP}\nv_max_f32_dpp v{mx}, v{mx}, v{mx} {QP}')
        a(f'{cvt} v{AV+2}, v{AV}, v{AV+1}\n{cvt} v{AV+3}, v{AV+4}, v{AV+5}')
        a(f'v_permlane16_swap_b32 v{mx}, v{t2}\nv_max_f32 v{T+1}, v{mx}, v{t2}\nv_max_f32 v{mx}, v{mx}, v{t2}')
        a(f'{mf16} {vr(AV+4,4)}, {vr(SELV,2)}, {vr(AV+2,2)}, 0')
        WOS(0, 0)
        a(f'v_permlane32_swap_b32 v{mx}, v{T+1}\nv_max_f32 v{mx}, v{mx}, v{T+1}\nv_mul_f32 v{mx}, {S_SC}, v{mx}')
        E = [AK, AK + 1, AK + 2, AK + 3, T]
        for e in E: a(f'v_fma_f32 v{e}, v{e}, {S_SC}, -v{mx}')
        for e in E: a(f'v_exp_f32 v{e}, v{e}')
        BX, PM = AQ, T + 6
        a(f'{cvt} v{T+8}, v{AK}, v{AK+1}\n{cvt} v{T+9}, v{AK+2}, v{AK+3}')
        a(f"""
        v_cndmask_b32 v{BX}, 0, v{T+8}, {S_LO}
        v_cndmask_b32 v{BX+1}, 0, v{T+9}, {S_LO}
        v_cndmask_b32 v{BX+2}, v{T+8}, 0, {S_LO}
        v_cndmask_b32 v{BX+3}, v{T+9}, 0, {S_LO}
        v_mov_b32_dpp v{T+1}, v{T} {QP}
        {cvt} v{VMH}, v{AV+4}, v{AV+5}
        """)
        D, D2, DL = AQ + 4, AK + 4, T + 8
        a(f'{mf32} {vr(DL,4)}, {vr(ONES,4)}, {vr(BX,4)}, 0')
        WOS(0, 1)
        a(f'{cvt} v{T+4}, v{T}, v{T+1}\n{cvt} v{T+5}, v{T+1}, v{T}')
        a(f'{mf32} {vr(D2,4)}, {vr(VXC+4,4)}, {vr(BX,4)}, 0')
        WOS(1, 0)
        a(f'v_cndmask_b32 v{PM}, 0, v{T+4}, {S_LO}\nv_cndmask_b32 v{PM+1}, v{T+5}, 0, {S_LO}')
        a(f'{mf32} {vr(D,4)}, {vr(VXC,4)}, {vr(BX,4)}, 0')
        WOS(1, 1)
        a(f'{cvt} v{VMH+1}, v{AV+6}, v{AV+7}')
        a(f'{mf16} {vr(DL,4)}, {vr(HALF,2)}, {vr(PM,2)}, {vr(DL,4)}')
        Z(1)
        a(f'{mf16} {vr(D,4)}, {vr(VMH,2)}, {vr(PM,2)}, {vr(D,4)}')
        Z(o.get('zpv', 5))
        l = DL + 1
        a(f'v_add_f32_dpp v{l}, v{DL}, v{DL} {QP}\nv_rcp_f32 v{l}, v{l}')
        for i in range(4): a(f'v_add_f32_dpp v{D+i}, v{D2+i}, v{D+i} {QP}')
        for i in (0, 2): a(f'v_pk_mul_f32 {vr(D+i,2)}, {vr(D+i,2)}, {vr(l-1,2)} op_sel:[0,1] op_sel_hi:[1,1]')
        a(f'{cvt} v{T}, v{D}, v{D+1}\n{cvt} v{T+1}, v{D+2}, v{D+3}')
        a(f'v_and_or_b32 v{T}, v{T}, -2, {S_OTAG}')
        self.stamp(5)
        a(f'ds_write_b64 v{V_OW}, {vr(T,2)}')
        if not (o.get('lastx', 1) and o.get('split', 1)): a(f's_cmp_eq_u32 {S_S}, 63\ns_cbranch_scc1 L_Rtail_{tg}')
        else: a('s_nop 2')
        OA = AK
        WA = M + 16
        def oread():
            for k in range(4): a(f'ds_read_b128 {vr(OA+4*k,4)}, v{V_OR} offset:{(k//2)*2048 + (k%2)*512}')
        oc = [f'v_bitop3_b32 v{T+2+k}, v{OA+4*k}, v{OA+4*k+2}, {S_NOTAG} bitop3:0x42' for k in range(4)] + \
             [f'v_bitop3_b32 v{T+2}, v{T+2}, v{T+3}, v{T+4} bitop3:0x80', f'v_bitop3_b32 v{T+2}, v{T+2}, v{T+5}, 1 bitop3:0x80', f'v_cmp_eq_u32 vcc, 0, v{T+2}']
        Z(len(zs))
        for _ in range(o.get('z3', 3)): a('s_nop 1')
        oread()
        for _ in range(o.get('z4', 2)): dmf(M)
        self.stamp(6)
        def wo(t, k):
            fr = WVB + 8 * WO_SPILL.index((t, k)) if (t, k) in WO_SPILL else wo_frag(t, k)
            self.smf(WA + 4 * t, OA + 4 * k, vr(fr, 8))
        def fc(t): a(f'{cvt} v{AQ+2*t}, v{WA+4*t}, v{WA+4*t+1}\n{cvt} v{AQ+2*t+1}, v{WA+4*t+2}, v{WA+4*t+3}')
        def tagit(r): a(f'v_and_or_b32 v{r}, v{r}, -2, {S_TAG}')
        hint = o.get('hint', 0) and not cf
        hp_ = o.get('hpos', 6)
        cnt = [0]
        def H():
            if hint and cnt[0] == hp_: a(f'buffer_store_dword v{T+6}, v{V_ONE}, {WS}, {S_HST} offen')
            cnt[0] += 1
        if hint: a(f's_add_u32 {S_S1}, {S_S}, 1\nv_mov_b32 v{T+6}, {S_S1}')
        a(f'L_wo_{tg}:')
        if not o.get('early0', 1):
            for k in range(4):
                wo(0, k); H(); a(oc[k]) if k < 3 else None
                wo(1, k); H()
                if k == 3: a(oc[3])
            wo(2, 0); H(); a(oc[4])
            wo(3, 0); H(); a(oc[5])
            wo(2, 1); H(); a(oc[6])
            wo(3, 1); H(); fc(0)
            wo(2, 2); H(); fc(1)
            a(f's_cbranch_vccnz L_ofix_{tg}')
            wo(3, 2); H(); tagit(AQ)
            wo(2, 3)
            a(f'buffer_store_dwordx4 {vr(AQ,4)}, v{V_IST}, {WS}, {S_IN0} offen {cf}')
            wo(3, 3)
        else:
            for k in range(4):
                wo(0, k); a(oc[2 * k])
                wo(1, k)
                if k < 3: a(oc[2 * k + 1])
            wo(2, 0)
            a(f's_cbranch_vccnz L_ofix_{tg}')
            wo(3, 0); fc(0)
            wo(2, 1); fc(1)
            wo(3, 1); tagit(AQ)
            a(f'buffer_store_dwordx4 {vr(AQ,4)}, v{V_IST}, {WS}, {S_IN0} offen {cf}')
            wo(2, 2); wo(3, 2); wo(2, 3); wo(3, 3)
        fc(2); tagit(AQ + 4); fc(3)
        a(f'buffer_store_dwordx4 {vr(AQ+4,4)}, v{V_IST}, {WS}, {S_IN1} offen {cf}')
        def fix():
            a(f'L_ofix_{tg}:\ns_mov_b32 s23, {SPIN}\nL_ofix2_{tg}:')
            a.forget(vm=False)
            oread(); a.wait(lgkm=0)
            for x in oc: a(x)
            a(f's_cbranch_vccz L_ofix3_{tg}\ns_sub_u32 s23, s23, 1\ns_cbranch_scc0 L_ofix2_{tg}\ns_endpgm\nL_ofix3_{tg}:')
            for r in range(WA, WA + 16, 2): a(f'v_mov_b64 {vr(r,2)}, 0')
            a(f's_branch L_wo_{tg}')
        self.fixups.append(fix)
        self.stamp(7)
        def pack_kvm():
            a(f's_mov_b64 vcc, {S_LO}')
            for i in range(4):
                qp = '[0,0,0,2]' if i < 2 else '[0,0,1,3]'
                a(f'v_cndmask_b32_dpp v{KMH+i}, v{VMH+i%2}, v{KMH+i}, vcc quad_perm:{qp} row_mask:0xf bank_mask:0xf')
        self.pack_kvm = pack_kvm
        def preA():
            a(f"""
            v_mov_b32 v{PA}, {S_NTAG}
            v_mov_b32 v{PA+4}, {S_NTAG}
            """)
            for i in range(o.get('dA', 4) if wv >= 2 else o.get('dA0', o.get('dA', 4))): dmf(R)
        def slackA():
            preload()
            pack_kvm()
            a(f"""
            s_add_u32 {S_S}, {S_S}, 1
            s_xor_b32 {S_IN0}, {S_IN0}, 0x40000
            s_and_b32 {S_T0}, {S_S}, 3
            s_lshl_b32 {S_T0}, {S_T0}, 13
            v_mov_b64 {vr(M,2)}, -1
            s_andn2_b32 {S_PUBB}, {S_PUBB}, 0x6000
            s_andn2_b32 {S_MEMP}, {S_MEMP}, 0x6000
            v_mov_b64 {vr(M+2,2)}, -1
            s_or_b32 {S_MEMP}, {S_MEMP}, {S_T0}
            s_xor_b32 {S_RST}, {S_T0}, 0x4000
            v_mov_b64 {vr(M+4,2)}, -1
            s_or_b32 {S_RST}, {S_RST}, {S_PUBB}
            s_or_b32 {S_PUBB}, {S_PUBB}, {S_T0}
            v_mov_b64 {vr(M+6,2)}, -1
            """)
            if not o.get('zB'):
                for r in range(AQ, AQ + 24, 2): a(f'v_mov_b64 {vr(r,2)}, 0')
            a.wait(lgkm=0)
        def checkA():
            a(f"""
            v_bitop3_b32 v{VXC}, v{PA}, v{PA+4}, {S_NTAG} bitop3:0x42
            v_and_b32 v{VXC}, 1, v{VXC}
            v_cmp_eq_u32 vcc, 0, v{VXC}
            """)
        def shadowA():
            a(f'v_smfmac_f32_16x16x64_bf16 {vr(R,4)}, {vr(SELR,4)}, {vr(PA,8)}, v{V_IDX} abid:1')
        if True:
            pl = [(M + 24, 'q', 0, 0), (M + 16, 'q', 0, 1), (B0, 'q', 1, 0), (B1, 'q', 1, 1), (T, 'k', 0, 0)]
            chA = [(40, pack_kvm)]
            chA += sa(f"""
            s_add_u32 {S_S}, {S_S}, 1
            s_xor_b32 {S_IN0}, {S_IN0}, 0x40000
            s_and_b32 {S_T0}, {S_S}, 3
            s_lshl_b32 {S_T0}, {S_T0}, 13
            s_andn2_b32 {S_PUBB}, {S_PUBB}, 0x6000
            s_andn2_b32 {S_MEMP}, {S_MEMP}, 0x6000
            s_or_b32 {S_MEMP}, {S_MEMP}, {S_T0}
            s_xor_b32 {S_RST}, {S_T0}, 0x4000
            s_or_b32 {S_RST}, {S_RST}, {S_PUBB}
            s_or_b32 {S_PUBB}, {S_PUBB}, {S_T0}
            """)
            zz = [f'v_mov_b64 {vr(r,2)}, 0' for r in range(AQ, AQ + 24, 2)] + [f'v_mov_b32 v{M}, -1']
            for k in range(10):
                chA.append((16, lambda k=k: (RD(*pl[k // 2], k % 2), a(zz[k]))))
            chA += va(zz[10:])
            chA.append((4, lambda: a.wait(lgkm=0)))
            zr = lambda: a(f'v_mov_b64 {vr(R,2)}, 0\nv_mov_b64 {vr(R+2,2)}, 0')
            chA.append((16, zr))
            if hint:
                HV, HD = VXC + 1, VXC + 2
                a(f'v_lshrrev_b32 v{HV}, 2, v{V_L16}\nv_and_b32 v{HV}, 0x7f, v{HV}\nv_mov_b32 v{HD}, 0')
                hl = lambda: a(f'buffer_load_dword v{HD}, v{HV}, {WS}, {S_HLD} offen sc1')
                def spendh(t):
                    while chA and chA[0][0] <= t + 4:
                        c, f = chA.pop(0); f(); t -= c
                    while t >= 12: dmf(VXC + 4); t -= 16
                nh = o.get('hdep', 4)
                for k in range(nh - 1): hl(); spendh(o.get('hq', 48) - 8)
                a(f's_mov_b32 s23, {SPIN}\nL_hp_{tg}:')
                hl()
                a(f'v_cmp_gt_u32 vcc, {S_S1}, v{HD}\ns_sub_u32 s23, s23, 1\ns_cbranch_scc1 L_hk_{tg}\ns_cbranch_vccnz L_hp_{tg}\nL_hk_{tg}:')
            self.poll2('A' + tg, PA, S_INP, chA, o.get('hdel', 0) if hint else (o.get('tA0', 230) if wv >= 2 else o.get('tA00', o.get('tA0', 230))), o.get('tA1', 180) if wv >= 2 else o.get('tA10', o.get('tA1', 180)), o.get('tA2', 40) if wv >= 2 else o.get('tA20', o.get('tA2', 40)), lambda: dmf(VXC + 4), checkA, shadowA, retry=zr,
                       depth=o.get('dpA', 2) if wv >= 2 else o.get('dpA0', o.get('dpA', 2)), nat=o.get('natA', 0))
        self.stamp(8)
        hp = ''
        a(f"""
        {'s_nop 1' + chr(10) + a.dummy + chr(10) + 's_nop 0' if hp else ''}
        v_add_f32_dpp v{R}, v{R}, v{R} row_ror:8 row_mask:0xf bank_mask:0x3 {hp}
        v_add_f32_dpp v{R+1}, v{R+1}, v{R+1} row_ror:8 row_mask:0xf bank_mask:0x3 {hp}
        v_add_f32_dpp v{R}, v{R+2}, v{R+2} row_ror:8 row_mask:0xf bank_mask:0xc {hp}
        v_add_f32_dpp v{R+1}, v{R+3}, v{R+3} row_ror:8 row_mask:0xf bank_mask:0xc {hp}
        v_add_f32_dpp v{R}, v{R}, v{R} row_ror:12 row_mask:0xf bank_mask:0xf
        v_add_f32_dpp v{R+1}, v{R+1}, v{R+1} row_ror:12 row_mask:0xf bank_mask:0xf
        {cvt} v{R+2}, v{R}, v{R+1}
        buffer_store_dword v{R+2}, v{V_PUB}, {WS}, {S_PUBB} offen {cf}
        """)
        self.stamp(9)
        a(f'buffer_store_dword v{M}, v{V_PUB}, {WS}, {S_RST} offen {cf}')
        if o.get('span2') and wv == 0:
            lab = a.newlabel('n8')
            a(f's_cmp_lg_u32 {S_S}, 8\ns_cbranch_scc1 {lab}')
            self.note(5, T + 10)
            a(f'{lab}:')
        if not o.get('rt'): self.dump_stamps(tg)
        a(f's_branch L_Rloop_{tg}')
        a.hot = False
        a(f'{spin}:')
        self.spin_flag(V_FLAG, f'v{V_Z}', S_FKV)
        a(f's_branch {back}')
        for txt, sh in zip(self.late, self.late_sh):
            pre, post = txt.split('@SH@')
            a(pre); a('s_nop 7'); sh(); a('s_nop 7'); a(post)
        for f in self.fixups: f()
        if o.get('lastx', 1) and o.get('split', 1):
            a(f'L_Rlast_{tg}:')
            a.lq = list(lq_last)
            RD2(B0, 'k', 2, 1); S('k', 1, 1); RD2(B1, 'k', 3, 1); V(0, 1); RD2(T, 'k', 4, 1); V(1, 0); V(1, 1)
            a.wait(lgkm=6)
            a('s_barrier')
            for k in range(2, 8): MR(k)
            a('s_waitcnt vmcnt(0)')
            a(f'buffer_store_dwordx4 {vr(KMH,4)}, v{V_L16}, {WS}, {S_T0} offen sc1')
            a(f'buffer_store_dword v{V_F}, v{V_ONE}, {WS}, {S_T1} offen sc1')
            RD2(B2, 'k', 5, 1)
            rest = [('k', 6, 1), ('k', 7, 0), ('k', 7, 1), ('v', 6, 0), ('v', 6, 1), ('v', 7, 0), ('v', 7, 1)]
            ring = [(B0, ('k', 2, 1)), (B1, ('k', 3, 1)), (T, ('k', 4, 1)), (B2, ('k', 5, 1))]
            regf = [('k', k, 0) for k in range(2, 7)] + [('v', k, p) for k in range(2, 6) for p in range(2)]
            while ring:
                if regf: S(*regf.pop(0))
                b, f = ring.pop(0)
                S(*f, b)
                if rest:
                    f = rest.pop(0); RD2(b, *f); ring.append((b, f))
                if f == ('v', 6, 1) and not rest[2:] and False: pass
            for f in regf: S(*f)
            for x, r in ((AK, SELK), (AV, None)):
                pkadd(x, x, x + 2); pkadd(x + 4, x + 4, x + 6)
                a(f'{cvt} v{x+2}, v{x}, v{x+1}\n{cvt} v{x+3}, v{x+4}, v{x+5}')
            a(f'{mf16} {vr(AK+4,4)}, {vr(AK+2,2)}, {vr(SELK,2)}, 0\n{mf16} {vr(T,4)}, {vr(AK+2,2)}, {vr(SELK+2,2)}, 0')
            a(f'{mf16} {vr(AV+4,4)}, {vr(SELV,2)}, {vr(AV+2,2)}, 0')
            a(f'{cvt} v{KMH}, v{AK+4}, v{AK+5}\n{cvt} v{KMH+1}, v{AK+6}, v{AK+7}\n{cvt} v{KMH+2}, v{T}, v{T+1}\n{cvt} v{KMH+3}, v{T+2}, v{T+3}')
            a(f'{cvt} v{VMH}, v{AV+4}, v{AV+5}\n{cvt} v{VMH+1}, v{AV+6}, v{AV+7}')
        a(f'L_Rtail_{tg}:')
        a.forget()
        self.pack_kvm()
        a(f'''
        buffer_store_dwordx4 {vr(KMH,4)}, v{V_L16}, {WS}, {S_KVM} offen sc1
        s_waitcnt vmcnt(0) lgkmcnt(0)
        buffer_store_dword v{V_F}, v{V_ONE}, {WS}, {S_FM} offen sc1
        buffer_store_dword v{V_F}, v{V_ONE}, {WS}, {S_FM} offen offset:2048 sc1
        ''')
        self.tstamp(6, T + 4)
        self.note(6, T + 4)
        if o.get('stamp'):
            set_srd(a, 12, P_DBG, 256)
            a(f'''
            s_memtime s[82:83]
            s_memrealtime s[84:85]
            s_waitcnt lgkmcnt(0)
            s_sub_u32 s82, s82, s80
            s_sub_u32 s84, s84, s30
            s_sub_u32 s28, s28, s30
            v_mov_b32 v{T}, s82
            v_mov_b32 v{T+1}, {S_FAST}
            v_mov_b32 v{T+2}, s28
            v_mov_b32 v{T+3}, s84
            v_mov_b32 v{T+4}, 16
            buffer_store_dwordx4 {vr(T,4)}, v{T+4}, {ST}, 0 offen
            ''')
        a('s_endpgm')
        a.auto_vm = True
```

```python
import layout as L
from gen_common import *
import struct
def f2u(x): return struct.unpack('<I', struct.pack('<f', x))[0]
mf16 = 'v_mfma_f32_16x16x16_bf16'; mf32 = 'v_mfma_f32_16x16x32_bf16'; cvt = 'v_cvt_pk_bf16_f32'

TB = 0
NAMES = list(L.w_table().keys())
def tv(n): return TB + NAMES.index(n)
V_TID = 24
XF = 48
ACC = 64
S_ISB, S_SEG, S_END, S_STEP, S_BASE, S_STR = 's61', 's62', 's63', 's64', 's65', 's66'
S_XB, S_PF, S_PF2, S_A, S_B, S_HEAD = 's67', 's68', 's69', 's70', 's71', 's72'
S_FIRST = 's73'
S_TFAST = 's89'
SX = 's[24:27]'

def wfrag(m, ks, p):
    c = 'qkv'.index(m) * 8 + ks // 2
    r = c * 16 + p * 8 + (ks % 2) * 4
    return ar(r, 4) if r < 256 else vr(128 + r - 256, 4)

class Workers:
    def tables(self):
        return L.table_text('T_R', L.r_table()) + L.table_text('T_W', L.w_table())

    def xlane(self, op, x, t):
        a = self.a
        a(f'v_mov_b32 v{t}, v{x}\nv_permlane16_swap_b32 v{x}, v{t}\n{op} v{x}, v{x}, v{t}')
        a(f'v_mov_b32 v{t}, v{x}\nv_permlane32_swap_b32 v{x}, v{t}\n{op} v{x}, v{x}, v{t}')

    def x_dma(self, piece=None):
        a = self.a
        if piece is not None and piece >= 0:
            a(f'buffer_load_dwordx4 v{tv("xg")}, {SX}, s21 offen lds')
            a('s_add_u32 m0, m0, 1024')
            a(f's_add_u32 s21, s21, {16384 if piece % 2 == 0 else hex((64 - 16384) & 0xFFFFFFFF)}')
            return
        a(f's_lshl_b32 s21, {S_A}, 15\ns_lshl_b32 s22, {S_W}, 8\ns_add_u32 s21, s21, s22')
        a(f's_lshl_b32 s22, {S_W}, 13\ns_add_u32 m0, s22, {S_XB}')
        if piece is not None: return
        for k in range(4):
            for tt in range(2):
                a(f'buffer_load_dwordx4 v{tv("xg")}, {SX}, s21 offen lds')
                a('s_add_u32 m0, m0, 1024')
                a(f's_add_u32 s21, s21, {16384 if tt == 0 else hex((64 - 16384) & 0xFFFFFFFF)}')

    def worker_role(self):
        a = self.a; o = self.o
        a('L_worker:')
        a.vq = list(self.vq_role)
        self.mark(0)
        if o.get('no_workers'):
            self.gate_and_store(); a.wait(vm=0); self.signal_init(); a('s_endpgm'); return
        nb = o.get('nb', 1)
        quiet = o.get('quiet', 1)
        NA = 5 if quiet else 6
        if quiet:
            a(f's_cmp_lg_u32 {S_TEAM}, 1\ns_cbranch_scc1 L_w_go')
            vq = list(a.vq)
            self.confirm_role()
            self.gate_and_store(); a.wait(vm=0); self.signal_init()
            self.tstamp(6, 40)
            a('s_endpgm\nL_w_go:')
            a.vq = vq
        a(f"""
        s_sub_u32 s21, {S_TEAM}, {2 if quiet else 1}
        {'s_add_u32 s22, s21, 6' + chr(10) + 's_sub_u32 s21, s21, 1' + chr(10) + 's_cselect_b32 s21, s22, s21' if (nb and not quiet) else ''}
        s_lshl_b32 s21, s21, 5
        s_add_u32 s21, s21, {S_RANK}
        s_cmp_ge_u32 s21, {32 * NA}
        s_cselect_b32 {S_ISB}, 1, 0
        s_cbranch_scc1 L_w_B
        s_mul_i32 {S_HEAD}, s21, {52429 if quiet else 43691}
        s_lshr_b32 {S_HEAD}, {S_HEAD}, 18
        s_mul_i32 s22, {S_HEAD}, {NA}
        s_sub_u32 {S_SEG}, s21, s22
        s_mov_b32 {S_END}, 64
        s_mov_b32 {S_STEP}, {NA}
        """)
        a(f'''
        s_mov_b32 {S_FIRST}, 0
        s_movk_i32 {S_STR}, 8192
        s_mov_b32 s75, {4<<20}
        s_branch L_w_dec
        L_w_B:
        s_sub_u32 s21, s21, {32 * NA}
        s_lshr_b32 {S_HEAD}, s21, 3
        s_and_b32 s21, s21, 7
        s_lshl_b32 {S_FIRST}, s21, 3
        s_add_u32 {S_END}, {S_FIRST}, 8
        s_max_u32 {S_SEG}, {S_FIRST}, 1
        s_sub_u32 {S_SEG}, {S_SEG}, 1
        s_mov_b32 {S_STEP}, 1
        s_movk_i32 {S_STR}, 3072
        s_mov_b32 s75, {512*3072}
        L_w_dec:
        v_and_b32 v1, 63, v0
        v_lshrrev_b32 v2, 4, v1
        v_and_b32 v3, 15, v1
        v_lshlrev_b32 v3, 4, v3
        s_lshl_b32 s79, {S_STR}, 4
        v_mul_lo_u32 v2, v2, s79
        v_add_u32 v28, v2, v3
        s_mul_i32 s78, {S_W}, {L.BLK}
        s_lshl_b32 s77, {S_HEAD}, 8
        s_lshl_b32 s79, {S_STR}, 6
        ''')
        nwarm = 0
        if o.get('mall'):
            a(f's_sub_u32 s21, {S_TEAM}, 1\ns_lshl_b32 s21, s21, 5\ns_add_u32 s21, s21, {S_RANK}\ns_lshl_b32 s21, s21, 2\ns_add_u32 s21, s21, {S_W}')
            a('v_lshlrev_b32 v29, 7, v1\ns_mov_b32 s10, 0x400000\ns_mov_b32 s11, 0x20000')
            for i in range(2):
                a(f'''
                s_add_u32 s22, s21, {896 * i}
                s_cmp_ge_u32 s22, 512
                s_cselect_b32 s8, s{P_WV}, s{P_WK}
                s_cselect_b32 s9, s{P_WV+1}, s{P_WK+1}
                s_and_b32 s23, s22, 511
                s_lshl_b32 s23, s23, 13
                s_cmp_ge_u32 s22, 1024
                s_cselect_b32 s23, {hex(L.OOB)}, s23
                buffer_load_dword v{30+i%2}, v29, {SA}, s23 offen
                ''')
        def mallq():
            if o.get('mq', 0) == 0:
                n = 6 if quiet else 5; lab = None
                a(f's_sub_u32 s21, {S_TEAM}, {2 if quiet else 1}\ns_lshl_b32 s21, s21, 5\ns_add_u32 s21, s21, {S_RANK}\ns_lshl_b32 s21, s21, 2\ns_add_u32 s21, s21, {S_W}\ns_mul_i32 s21, s21, {1024 * n}')
            else:
                lo = o.get('mq', 0) + 1; per = 6 - lo; n = -(-1024 // (32 * per))
                lab = a.newlabel('mq')
                a(f's_cmp_eq_u32 {S_ISB}, 1\ns_cbranch_scc1 {lab}\ns_cmp_lt_u32 {S_SEG}, {lo}\ns_cbranch_scc1 {lab}')
                a(f's_mul_i32 s21, {S_HEAD}, {per}\ns_add_u32 s21, s21, {S_SEG}\ns_sub_u32 s21, s21, {lo}\ns_lshl_b32 s21, s21, 2\ns_add_u32 s21, s21, {S_W}\ns_mul_i32 s21, s21, {1024 * n}')
            set_srd(a, 24, P_WQ, 4 << 20)
            a('v_lshlrev_b32 v29, 4, v1')
            vq = list(a.vq)
            if not o.get('mqser', 1): a.auto_vm = False
            for i in range(n): a(f'buffer_load_dwordx4 v[32:35], v29, s[24:27], s21 offen\ns_add_u32 s21, s21, 1024')
            a.auto_vm = True
            if lab: a(f'{lab}:'); a.vq = vq
        groups = [(m, b) for m in 'kvq' for b in range(2)]
        def issue(gi):
            m, b = groups[gi]
            if b == 0:
                ptr = {'q': P_WQ, 'k': P_WK, 'v': P_WV}[m]
                a(f"""
                s_cmp_eq_u32 {S_ISB}, 1
                s_cselect_b32 s8, s{P_WQKV}, s{ptr}
                s_cselect_b32 s9, s{P_WQKV+1}, s{ptr+1}
                s_mov_b32 s10, s75
                s_mov_b32 s11, 0x20000
                s_cselect_b32 s76, {'qkv'.index(m) * 1024}, 0
                s_add_u32 s76, s76, s77
                """)
            a(f's_add_u32 m0, s78, {(gi % 2) * L.GRP}')
            a(f's_add_u32 s21, {S_W}, {4 * b}\ns_mul_i32 s21, s21, s79\ns_add_u32 s21, s21, s76')
            self.dma_block('v28', 's21', S_STR)
        issue(0)
        self.load_table('T_W', 96, 24, 7)
        self.confirm_role()
        ad = o.get('adelay', 0)
        if ad:
            self.gate_and_store()
            a.wait(vm=0)
            self.signal_init(t=40)
        elif o.get('mallq', 1) == 1: mallq()
        issue(1)
        if o.get('mallq') == 2: mallq()
        self.mark(1)
        if not ad: self.gate_and_store()
        a(f'v_mov_b32 v{V_TID}, v0')
        for i in range(24): a(f'v_mov_b32 v{TB+i}, v{96+i}')
        a(f'v_add_u32 v29, {L.GRP}, v{tv("trp")}')
        a(f's_lshl_b32 s74, {S_SEG}, 5\ns_add_u32 s74, s74, {S_HEAD}\ns_lshl_b32 s74, s74, 6\ns_lshl_b32 s21, {S_W}, 2\ns_add_u32 s74, s74, s21\ns_add_u32 s74, s74, {hex(L.F_S)}')
        a(f's_cmp_lt_u32 {S_SEG}, 2\ns_cselect_b32 s74, s74, {hex(L.OOB)}\ns_cmp_eq_u32 {S_ISB}, 1\ns_cselect_b32 s74, {hex(L.OOB)}, s74')
        a(f'buffer_load_dword v30, v{tv("one")}, {WS}, s74 offen sc1')
        set_srd(a, 24, P_X, 2048 * 1024)
        a(f's_mov_b32 {S_XB}, 0\ns_mov_b32 {S_A}, {S_SEG}')
        a.auto_vm = False
        def consume(gi):
            m, b = groups[gi]
            a('s_barrier')
            for x in range(4):
                for p in range(2):
                    for h in range(2):
                        f = wfrag(m, 2 * (4 * b + x) + h, p)
                        kind, base = f[0], int(f[2:f.index(':')])
                        for r in range(2):
                            a(f'ds_read_b64_tr_b16 {kind}[{base+2*r}:{base+2*r+1}], v{tv("trp") if gi % 2 == 0 else 29} offset:{x * L.BLK + 512*h + 4224*r + 32*p}')
            a.wait(lgkm=0)
            a('s_barrier')
        VX = 25
        KP, VP = 112, 116
        acc = lambda m, p, tt: ACC + 16 * 'qkv'.index(m) + 8 * p + 4 * tt
        def xr(ks):
            for tt in range(2):
                a(f'ds_read_b128 {vr(XF + 8*(ks%2) + 4*tt, 4)}, v{VX} offset:{(ks*2+tt)*1024}')
        def loop_head(lab, mats, nst):
            a(f'{lab}:')
            pm = o.get('pmark') and lab == 'L_P_kv'
            if pm: a.raw('    s_memtime s[82:83]')
            a(f's_waitcnt vmcnt({nst + 1})')
            a('s_barrier')
            if pm: a.raw('    s_memtime s[84:85]')
            a(f's_add_u32 {S_A}, {S_SEG}, {S_STEP}\ns_min_u32 {S_A}, {S_A}, 63\ns_xor_b32 {S_XB}, {S_XB}, 32768')
            self.x_dma(-1)
            if pm: a.raw('    s_memtime s[86:87]')
            xr(0)
            for ks in range(16):
                if ks < 15: xr(ks + 1)
                if ks == 9:
                    if pm: a.raw('    s_memtime s[94:95]')
                    a('s_waitcnt vmcnt(8)')
                    if pm: a.raw('    s_memtime s[96:97]')
                    a(f'buffer_store_dword v{tv("oxr")}, v{tv("one")}, {WS}, {S_PF} offen sc1')
                for m in mats:
                    for p in range(2):
                        for tt in range(2):
                            d = vr(acc(m, p, tt), 4)
                            x = vr(XF + 8 * (ks % 2) + 4 * tt, 4); w = wfrag(m, ks, p)
                            A, B = (w, x) if m != 'v' else (x, w)
                            a(f'{mf32} {d}, {A}, {B}, {d if ks else 0}')
                            if ks < 8 and m == mats[0] and p == 0 and tt == 0: self.x_dma(ks)
            if pm: a.raw('    s_memtime s[98:99]')
            a(f'v_xor_b32 v{VX}, 32768, v{VX}')
        def loop_tail(lab):
            if o.get('pace') and lab != 'L_P_B': a(f's_sleep {o.get("pace")}')
            a(f's_add_u32 {S_SEG}, {S_SEG}, {S_STEP}\ns_cmp_lt_u32 {S_SEG}, {S_END}\ns_cbranch_scc1 {lab}')
            a('s_waitcnt vmcnt(0)')
            a(f'buffer_store_dword v{tv("oxr")}, v{tv("one")}, {WS}, {S_PF} offen sc1')
            a('s_barrier')
        def start_loop():
            a(f's_mov_b32 {S_PF}, {hex(L.OOB)}\nv_mov_b32 v{VX}, v{tv("xr")}')
        def init_sync(marks=True, t=40, off=60):
            a.forget()
            if marks:
                self.dump_marks(t)
                self.tstamp(1, t)
            lab = a.newlabel('wz')
            a(f'v_mov_b32 v{t+4}, {L.LDS_BYTES - 16}\ns_cmp_lg_u32 {S_W}, 0\ns_cbranch_scc1 {lab}')
            self.wait_init(t0=t, tid=V_TID, off=off, sleep=o.get('isl', 16))
            a(f'v_mov_b32 v{t+5}, s21\nds_write_b32 v{t+4}, v{t+5}')
            a.wait(lgkm=0)
            a(f'{lab}:\ns_waitcnt vmcnt(0)\ns_barrier\nds_read_b32 v{t+5}, v{t+4}')
            a(f'v_readfirstlane_b32 s21, v{t+5}')
            a(f's_cmp_ge_u32 s21, 32\ns_cselect_b32 {S_TFAST}, 1, 0')
            if o.get('force_slow'): a(f's_mov_b32 {S_TFAST}, 0')
            if marks: self.tstamp(2, t)
        def a_epilogue(frs, foff, flagoff):
            a(f"""
            s_lshl_b32 s21, {S_SEG}, 5
            s_add_u32 s21, s21, {S_HEAD}
            s_lshl_b32 {S_PF}, s21, 6
            s_mul_i32 s21, s21, 24576
            s_mul_i32 s22, {S_W}, 6144
            s_add_u32 s21, s21, s22
            s_add_u32 s21, s21, {foff}
            s_lshl_b32 s23, {S_W}, 2
            s_add_u32 {S_PF}, {S_PF}, s23
            s_add_u32 {S_PF}, {S_PF}, {hex(L.F_KV + flagoff)}
            """)
            for f, (t0, t1) in enumerate(frs):
                o4 = 32 + 4 * f
                for i, t in enumerate((t0, t1)):
                    r = acc(*t)
                    a(f'{cvt} v{o4+2*i}, v{r}, v{r+1}\n{cvt} v{o4+2*i+1}, v{r+2}, v{r+3}')
                a(f'buffer_store_dwordx4 {vr(o4,4)}, v{tv("l16")}, {WS}, s21 offen offset:{1024*f} sc1')
        self.mark(2)
        for gi in range(2):
            a.wait(vm=17 if (ad or gi) else 18)
            if gi == 0: self.mark(3)
            consume(gi); issue(gi + 2)
            if gi == 1 and not ad: self.signal_init(tid=V_TID, t=40, barrier=False)
        a.wait(vm=16); self.mark(4)
        consume(2)
        a(f's_cmp_eq_u32 {S_ISB}, 1\ns_cbranch_scc1 L_w_Bload')
        self.x_dma()
        a.wait(vm=8); self.mark(5); self.mark(6)
        consume(3)
        a.forget()
        if not o.get('pmark'): self.dump_marks(40)
        self.tstamp(1, 40); self.note(7, 40)
        a('s_waitcnt vmcnt(0)')
        a(f's_mov_b32 {S_FIRST}, {S_SEG}')
        start_loop()
        loop_head('L_P_kv', 'kv', 4)
        a_epilogue([[('k', 0, 0), ('k', 1, 0)], [('k', 0, 1), ('k', 1, 1)], [('v', 0, 0), ('v', 1, 1)], [('v', 1, 0), ('v', 0, 1)]], 0, 0)
        lab = a.newlabel('nf')
        a(f's_cmp_lg_u32 {S_SEG}, {S_FIRST}\ns_cbranch_scc1 {lab}')
        init_sync(marks=False, t=48)
        self.tstamp(2, 48)
        a(f'v_add_u32 v30, 1, v30\nbuffer_store_dword v30, v{tv("one")}, {WS}, s74 offen sc1')
        a(f'buffer_store_dword v{tv("oxr")}, v{tv("one")}, {WS}, {S_PF} offen sc1')
        if o.get('hold', 0):
            l2 = a.newlabel('hold')
            a(f's_cmp_lg_u32 {S_W}, 0\ns_cbranch_scc1 {l2}\ns_lshl_b32 s21, {S_HEAD}, 6\ns_add_u32 s21, s21, {hex(L.F_RS)}\nv_mov_b32 v48, 0')
            self.spin4('v48', 's21', 49, n=1, sleep=8)
            a(f'{l2}:')
        a(f'{lab}:')
        if o.get('pmark'):
            a.raw('    s_memtime s[100:101]')
            lab = a.newlabel('pm')
            a(f's_cmp_lt_u32 {S_SEG}, 30\ns_cbranch_scc1 {lab}\ns_cmp_ge_u32 {S_SEG}, 36\ns_cbranch_scc1 {lab}')
            self.dump_marks(48)
            a(f's_waitcnt vmcnt(0)\n{lab}:')
        if o.get('slowP'):
            for _ in range(4): a('s_sleep 127')
        loop_tail('L_P_kv')
        issue(4); issue(5)
        a('s_waitcnt vmcnt(16)'); consume(4)
        a(f's_mov_b32 {S_SEG}, {S_FIRST}\ns_mov_b32 {S_XB}, 0\ns_mov_b32 {S_A}, {S_SEG}')
        self.x_dma()
        a('s_waitcnt vmcnt(8)'); consume(5)
        a('s_waitcnt vmcnt(0)')
        start_loop()
        loop_head('L_P_q', 'q', 2)
        a_epilogue([[('q', 0, 0), ('q', 1, 0)], [('q', 0, 1), ('q', 1, 1)]], 4096, 16)
        loop_tail('L_P_q')
        a('s_branch L_P_done')
        a('L_w_Bload:')
        if o.get('holdB'):
            l2 = a.newlabel('hb')
            a(f's_cmp_lg_u32 {S_W}, 0\ns_cbranch_scc1 {l2}')
            self.wait_init(t0=40, tid=V_TID)
            a(f's_mov_b32 s21, {hex(L.F_RS + 64 * (o.get("holdB") - 1))}\nv_mov_b32 v48, 0')
            self.spin4('v48', 's21', 49, n=1, sleep=16)
            a(f'{l2}:\ns_barrier')
        issue(4)
        a('s_waitcnt vmcnt(16)'); consume(3); issue(5)
        a('s_waitcnt vmcnt(16)'); self.mark(5); consume(4)
        self.x_dma()
        a('s_waitcnt vmcnt(8)'); self.mark(6); consume(5)
        init_sync()
        for r in range(KP, KP + 8, 2): a(f'v_mov_b64 {vr(r,2)}, 0')
        start_loop()
        loop_head('L_P_B', 'qkv', 4)
        G1 = 26
        a(f's_lshl_b32 s21, {S_SEG}, 7\ns_add_u32 s21, s21, {hex(L.GATE)}')
        a(f'buffer_load_dword v{G1}, v{tv("c4")}, {WS}, s21 offen sc1\nbuffer_load_dword v{G1+1}, v{tv("c4")}, {WS}, s21 offen offset:64 sc1')
        for m in 'qkv':
            for p in range(2):
                for tt in range(2):
                    r = acc(m, p, tt)
                    a(f'{cvt} v{r}, v{r}, v{r+1}\n{cvt} v{r+1}, v{r+2}, v{r+3}')
        a(f'''
        s_mov_b32 s80, 0xaaaaaaaa
        s_mov_b32 s81, 0xaaaaaaaa
        v_cmp_ne_u32 s[82:83], 0, v{tv("mc0")}
        v_cmp_ne_u32 s[84:85], 0, v{tv("mc1")}
        s_mov_b32 s86, {hex(f2u(0.25 * 1.4426950408889634))}
        s_cmp_eq_u32 {S_SEG}, 0
        s_cselect_b32 s87, 0xf149f2ca, 0
        s_lshl_b32 s21, {S_SEG}, 5
        s_lshl_b32 s22, {S_HEAD}, 3
        s_add_u32 s21, s21, s22
        s_lshl_b32 s22, {S_W}, 1
        s_add_u32 s21, s21, s22
        s_lshl_b32 s21, s21, 10
        s_add_u32 s21, s21, {hex(L.OB)}
        s_cmp_lt_u32 {S_SEG}, {S_FIRST}
        s_cselect_b32 s21, {hex(L.OOB)}, s21
        s_lshl_b32 {S_PF}, {S_SEG}, 2
        s_add_u32 {S_PF}, {S_PF}, {S_HEAD}
        s_lshl_b32 {S_PF}, {S_PF}, 6
        s_lshl_b32 s22, {S_W}, 2
        s_add_u32 {S_PF}, {S_PF}, s22
        s_add_u32 {S_PF}, {S_PF}, {hex(L.F_OB)}
        s_cmp_lt_u32 {S_SEG}, {S_FIRST}
        s_cselect_b32 {S_PF}, {hex(L.OOB)}, {S_PF}
        s_waitcnt vmcnt(0)
        v_sub_f32 v{G1}, 1.0, v{G1}
        v_sub_f32 v{G1+1}, 1.0, v{G1+1}
        ''')
        for p in range(2):
            for tt in range(2):
                q = acc('q', p, tt); kc = acc('k', p, tt); vc = acc('v', p, tt)
                kp = KP + 2 * p if tt == 0 else acc('k', p, 0)
                vp = VP + 2 * p if tt == 0 else acc('v', p, 0)
                SC_, SP_, OD = 28, 32, 36
                a(f'{mf16} {vr(SC_,4)}, {vr(kc,2)}, {vr(q,2)}, 0\n{mf16} {vr(SP_,4)}, {vr(kp,2)}, {vr(q,2)}, 0')
                for j in range(2):
                    a(f'v_cndmask_b32 v{SC_+2*j}, v{SC_+2*j}, v{SC_+2*j+1}, s[80:81]')
                    a(f'v_cndmask_b32 v{SP_+2*j}, v{SP_+2*j}, v{SP_+2*j+1}, s[80:81]')
                    if tt == 0: a(f'v_add_f32 v{SP_+2*j}, s87, v{SP_+2*j}')
                    a(f'v_cndmask_b32 v{40+j}, v{SP_+2*j}, v{SC_+2*j}, s[{82+2*j}:{83+2*j}]')
                a(f'{cvt} v41, v40, v41\nv_lshlrev_b32 v40, 16, v41\nv_and_b32 v41, 0xffff0000, v41')
                a('v_max_f32 v42, v40, v41')
                self.xlane('v_max_f32', 42, 43)
                a('v_mul_f32 v42, s86, v42')
                for j in range(2): a(f'v_fma_f32 v{40+j}, v{40+j}, s86, -v42\nv_exp_f32 v{40+j}, v{40+j}')
                a('v_add_f32 v42, v40, v41')
                self.xlane('v_add_f32', 42, 43)
                a(f'v_rcp_f32 v42, v42')
                for j in range(2):
                    a(f'{cvt} v{40+j}, v{40+j}, v{40+j}')
                    a(f'v_and_b32 v{44+j}, v{40+j}, v{tv(f"mc{j}")}\nv_and_b32 v{46+j}, v{40+j}, v{tv(f"mp{j}")}')
                a(f'v_mul_f32 v42, v42, v{G1+tt}')
                a(f'{mf16} {vr(OD,4)}, {vr(vc,2)}, v[44:45], 0\n{mf16} {vr(OD,4)}, {vr(vp,2)}, v[46:47], {vr(OD,4)}')
                for i in range(4): a(f'v_mul_f32 v{OD+i}, v{OD+i}, v42')
                ob = XF + 2 * (2 * p + tt)
                a(f'{cvt} v{ob}, v{OD}, v{OD+1}\n{cvt} v{ob+1}, v{OD+2}, v{OD+3}')
                a(f'buffer_store_dwordx2 {vr(ob,2)}, v{tv("l8")}, {WS}, s21 offen offset:{1024*p + 512*tt} sc1')
        for p in range(2):
            a(f'v_mov_b64 {vr(KP+2*p,2)}, {vr(acc("k",p,1),2)}\nv_mov_b64 {vr(VP+2*p,2)}, {vr(acc("v",p,1),2)}')
        loop_tail('L_P_B')
        if nb and not quiet:
            self.tstamp(6, 40)
            a('s_endpgm')
        a('L_P_done:')
        self.tstamp(3, 40)
        self.note(8, 40)
        if o.get('no_F'):
            a('s_endpgm'); a.auto_vm = True; return
        self.f_phase()

    def spin4(self, voff, soff, tmp, n=4, sleep=2):
        a = self.a
        lab = a.newlabel('s4'); ok = a.newlabel('s4ok')
        ld = {1: 'buffer_load_dword', 4: 'buffer_load_dwordx4'}[n]
        a(f's_mov_b32 s23, {SPIN}\n{lab}:')
        a(f'{ld} {vr(tmp,n)}, {voff}, {WS}, {soff} offen sc1\ns_waitcnt vmcnt(0)')
        if n == 4: a(f'v_min_u32 v{tmp}, v{tmp}, v{tmp+1}\nv_min3_u32 v{tmp}, v{tmp}, v{tmp+2}, v{tmp+3}')
        a(f'v_cmp_eq_u32 vcc, 0, v{tmp}\ns_cbranch_vccz {ok}\n{"s_sleep %d" % sleep if sleep else ""}\ns_sub_u32 s23, s23, 1\ns_cbranch_scc0 {lab}\ns_mov_b32 {SPIN}, 0x400\n{ok}:')

    def f_phase(self):
        a = self.a; o = self.o
        set_srd(a, 8, P_WO, 4 << 20)
        a(f's_mul_i32 s78, {S_W}, 36864\ns_mov_b32 m0, s78')
        for kb in range(2):
            for T in range(4):
                a(f's_lshl_b32 s21, {S_RANK}, 17\ns_add_u32 s21, s21, {kb*65536 + T*64}')
                self.dma_chunk(f'v{tv("dma1k")}', 's21', 1024)
        set_srd(a, 8, P_WOB, 512 * 1024)
        for T in range(4):
            a(f's_lshl_b32 s21, {S_RANK}, 14\ns_add_u32 s21, s21, {T*64}')
            self.dma_chunk(f'v{tv("dma1k")}', 's21', 1024, n=1)
        set_srd(a, 12, P_OUT, 2048 * 1024)
        V_Z = 26
        a(f'v_mov_b32 v{V_Z}, 0')
        for kt in range(2):
            for i in range(4):
                a(f'v_cmp_le_i32 s[{64+8*kt+2*i}:{65+8*kt+2*i}], {16*kt+i}, v{tv("qrow")}')
        a('s_waitcnt vmcnt(0)')
        wof = lambda T, p, ks: 4 * ((T * 2 + p) * 4 + ks)
        wob = lambda T, p: 128 + 2 * (T * 2 + p)
        for kb in range(2):
            for T in range(4):
                so = (kb * 4 + T) * 4096
                for p in range(2):
                    for h in range(2):
                        for r in range(2):
                            a(f'ds_read_b64_tr_b16 {ar(wof(T,p,2*kb+h)+2*r,2)}, v{tv("trf")} offset:{so + 2048*h + 1024*r + 8*p}')
        for T in range(4):
            for p in range(2):
                a(f'ds_read_b64_tr_b16 {ar(wob(T,p),2)}, v{tv("trf")} offset:{32768 + 1024*T + 8*p}')
        a.wait(lgkm=0)
        S_FS, S_RB, S_FB = 's61', 's62', 's63'
        a(f's_sub_u32 {S_FS}, {S_TEAM}, {2 if o.get("nb", 1) else 1}\ns_mov_b32 s80, {hex(f2u(128 ** -0.5 * 1.4426950408889634))}\ns_mov_b32 s81, 0xf149f2ca')
        a(f's_lshr_b32 s82, {S_W}, 1\ns_and_b32 s83, {S_W}, 1')
        a(f's_lshl_b32 s86, {S_TEAM}, 21\ns_add_u32 s86, s86, {hex(L.FP)}')
        Q, K0, K1, V, KM, VM, OBF, G, S0, S1, SM, PX, PM, D, OF, AC = 28, 44, 60, 76, 92, 108, 112, 116, 120, 124, 128, 132, 136, 140, 156, 188
        a('L_F_loop:')
        a.forget(); a.auto_vm = True
        a(f'''
        s_lshl_b32 s21, {S_FS}, 5
        s_add_u32 s21, s21, {S_RANK}
        s_lshl_b32 {S_FB}, s21, 6
        s_mul_i32 {S_RB}, s21, 24576
        s_lshl_b32 s84, s21, 12
        s_add_u32 s84, s84, {hex(L.KVM)}
        s_lshl_b32 s85, s21, 10
        s_add_u32 s85, s85, {hex(L.OB)}
        s_add_u32 s88, {S_FB}, {hex(L.F_KV + 16)}
        s_lshl_b32 s21, {S_FS}, 2
        s_lshr_b32 s22, {S_RANK}, 3
        s_add_u32 s21, s21, s22
        s_lshl_b32 s21, s21, 6
        s_and_b32 s22, {S_RANK}, 6
        s_lshl_b32 s22, s22, 1
        s_add_u32 s21, s21, s22
        s_add_u32 s47, s21, {hex(L.F_OB)}
        s_add_u32 s21, {S_FB}, {hex(L.F_M)}
        s_barrier
        buffer_load_dwordx4 {vr(Q,4)}, v{V_Z}, {WS}, s88 offen sc1
        buffer_load_dword v{Q+4}, v{V_Z}, {WS}, s47 offen sc1
        buffer_load_dwordx4 {vr(Q+8,4)}, v{V_Z}, {WS}, s21 offen sc1
        v_min3_u32 v{Q}, v{Q}, v{Q+1}, v{Q+2}
        v_min3_u32 v{Q}, v{Q}, v{Q+3}, v{Q+4}
        v_min_u32 v{Q+8}, v{Q+8}, v{Q+9}
        v_min3_u32 v{Q+8}, v{Q+8}, v{Q+10}, v{Q+11}
        v_readfirstlane_b32 s46, v{Q+8}
        v_cmp_eq_u32 vcc, 0, v{Q}
        s_cmp_ge_u32 {S_FS}, 61
        s_cselect_b32 s46, 0, s46
        s_cbranch_vccz L_F_have
        ''')
        self.spin4(f'v{V_Z}', 's88', Q)
        self.spin4(f'v{V_Z}', 's47', Q, n=1)
        a('L_F_have:')
        a.forget()
        l16 = f'v{tv("l16")}'
        NEGJ = 252
        a(f's_lshl_b32 s87, {S_FS}, 2\ns_add_u32 s87, s87, {S_W}\ns_lshl_b32 s87, s87, 5\ns_add_u32 s87, s87, {S_RANK}\ns_lshl_b32 s87, s87, 2\ns_add_u32 s87, s87, {hex(L.F_P)}')
        a(f's_cmp_eq_u32 {S_TFAST}, 0\ns_cselect_b32 s21, {hex(L.OOB)}, s87\nbuffer_load_dword v{NEGJ}, v{tv("one")}, {WS}, s21 offen')
        for qt in range(2):
            a(f'buffer_load_dwordx2 {vr(OBF+2*qt,2)}, v{tv("l8")}, {WS}, s85 offen offset:{512*qt} sc1')
        a(f's_lshl_b32 s22, s82, 10\ns_add_u32 s22, s22, 4096\ns_add_u32 s22, s22, {S_RB}\ns_mov_b32 s21, {S_RB}')
        for sl in range(4):
            a(f'buffer_load_dwordx4 {vr(Q+4*sl,4)}, {l16}, {WS}, s22 offen sc1')
            a(f'buffer_load_dwordx4 {vr(K0+4*sl,4)}, {l16}, {WS}, s21 offen sc1')
            a(f'buffer_load_dwordx4 {vr(K1+4*sl,4)}, {l16}, {WS}, s21 offen offset:1024 sc1')
            if sl < 3: a('s_add_u32 s21, s21, 6144\ns_add_u32 s22, s22, 6144')
        a(f's_mul_i32 s21, s83, 12288\ns_add_u32 s21, s21, {S_RB}\ns_add_u32 s22, s21, 6144')
        for sl in range(2):
            for f in range(2):
                a(f'buffer_load_dwordx4 {vr(V+8*sl+4*f,4)}, {l16}, {WS}, {"s21" if sl == 0 else "s22"} offen offset:{2048+1024*f} sc1')
        a(f's_lshl_b32 s21, {S_FS}, 7\ns_lshl_b32 s22, s82, 6\ns_add_u32 s21, s21, s22\ns_add_u32 s21, s21, {hex(L.GATE)}')
        a(f'buffer_load_dword v{G}, v{tv("c4")}, {WS}, s21 offen sc1')
        def kmload():
            for sl in range(4):
                a(f'buffer_load_dwordx4 {vr(KM+4*sl,4)}, {l16}, {WS}, s84 offen offset:{1024*sl} sc1')
            for sl in range(2):
                a(f'buffer_load_dwordx2 {vr(VM+2*sl,2)}, v{tv("vml")}, {WS}, s85 offen offset:{1024*sl} sc1')
        a(f"""
        s_cmp_ge_u32 {S_FS}, 61
        s_cselect_b32 s22, {hex((L.KVL - L.KVM - 61 * 131072) & 0xFFFFFFFF)}, 0
        s_add_u32 s84, s84, s22
        s_lshl_b32 s85, s83, 11
        s_add_u32 s85, s85, s84
        s_cmp_eq_u32 s46, 0
        s_cbranch_scc1 L_F_nokm
        """)
        vq = list(a.vq)
        kmload()
        a('L_F_nokm:')
        a.vq = vq
        for qt in range(2):
            for T in range(4):
                for p in range(2):
                    a(f'{mf16} {vr(AC+32*qt+8*T+4*p,4)}, {ar(wob(T,p),2)}, {vr(OBF+2*qt,2)}, 0')
        for sl in range(4):
            a(f'{mf32} {vr(S0,4)}, {vr(K0+4*sl,4)}, {vr(Q+4*sl,4)}, {vr(S0,4) if sl else 0}')
            a(f'{mf32} {vr(S1,4)}, {vr(K1+4*sl,4)}, {vr(Q+4*sl,4)}, {vr(S1,4) if sl else 0}')
        NEG = 27
        a(f'v_mov_b32 v{NEG}, s81')
        for kt, Sx in enumerate((S0, S1)):
            for i in range(4): a(f'v_cndmask_b32 v{Sx+i}, v{NEG}, v{Sx+i}, s[{64+8*kt+2*i}:{65+8*kt+2*i}]')
        MX = 117
        a(f'v_max3_f32 v{MX}, v{S0}, v{S0+1}, v{S0+2}\nv_max3_f32 v{MX}, v{MX}, v{S0+3}, v{S1}\nv_max3_f32 v{MX}, v{MX}, v{S1+1}, v{S1+2}\nv_max_f32 v{MX}, v{MX}, v{S1+3}')
        a(f's_cmp_lg_u32 s46, 0\ns_cbranch_scc1 L_F_kmw')
        a.auto_vm = False
        if o.get('fpt', 1):
            a(f's_xor_b32 s22, s86, {1<<20}\ns_lshl_b32 s21, {S_RANK}, 10\ns_add_u32 s21, s21, s22\ns_lshl_b32 s22, {S_W}, 17\ns_add_u32 s21, s21, s22')
            a(f's_cmp_eq_u32 {S_TFAST}, 0\ns_cselect_b32 s21, {hex(L.OOB)}, s21')
            for k in range(8):
                a(f'buffer_load_dwordx4 {vr(OF,4)}, {l16}, {WS}, s21 offen\ns_add_u32 s21, s21, {32768 if k % 4 < 3 else 13 * 32768}')
        a(f"""
        s_max_u32 s22, {S_FS}, 60
        s_sub_u32 s22, s22, 60
        s_lshr_b32 s21, s22, 1
        s_sub_u32 s22, s22, s21
        s_lshl_b32 s22, s22, 11
        s_add_u32 s21, {S_FB}, {hex(L.F_M)}
        s_sub_u32 s21, s21, s22
        """)
        self.spin4(f'v{V_Z}', 's21', KM, sleep=o.get('fsl', 4))
        self.tstamp(4, 252)
        fm = (lambda i: a.raw(f'    s_memtime s[{88+2*i}:{89+2*i}]')) if o.get('fmark') else (lambda i: None)
        fm(1)
        a('s_mov_b32 s23, 0x8000\nL_F_km:')
        kmload()
        a(f's_cmp_lt_u32 {S_FS}, 61\ns_cbranch_scc1 L_F_kmw\ns_waitcnt vmcnt(0)')
        a(f'v_max3_u32 v118, v{KM}, v{KM+1}, v{KM+2}')
        for r in range(KM + 3, KM + 19, 2): a(f'v_max3_u32 v118, v118, v{r}, v{r+1}')
        a(f'v_max_u32 v118, v118, v{VM+3}\nv_cmp_eq_u32 vcc, -1, v118\ns_cbranch_vccz L_F_kmw')
        a(f's_sub_u32 s23, s23, 1\ns_cbranch_scc0 L_F_km\nL_F_kmw:\ns_waitcnt vmcnt(0)')
        a.forget(); a.auto_vm = True
        for sl in range(4):
            a(f'{mf32} {vr(SM,4)}, {vr(KM+4*sl,4)}, {vr(Q+4*sl,4)}, {vr(SM,4) if sl else 0}')
        fm(2)
        a(f'v_max3_f32 v{MX}, v{MX}, v{SM}, v{SM+1}')
        self.xlane('v_max_f32', MX, 118)
        a(f'v_mul_f32 v{MX}, s80, v{MX}')
        E = [S0 + i for i in range(4)] + [S1 + i for i in range(4)] + [SM, SM + 1]
        for e in E: a(f'v_fma_f32 v{e}, v{e}, s80, -v{MX}')
        for e in E: a(f'v_exp_f32 v{e}, v{e}')
        a(f'{cvt} v{PX}, v{S0}, v{S0+1}\n{cvt} v{PX+1}, v{S0+2}, v{S0+3}\n{cvt} v{PX+2}, v{S1}, v{S1+1}\n{cvt} v{PX+3}, v{S1+2}, v{S1+3}')
        a(f'{cvt} v{PM}, v{SM}, v{SM+1}\nv_mov_b32 v{PM+1}, 0\nv_mov_b32 v{PM+2}, 0\n{cvt} v{PM+3}, v{SM}, v{SM+1}')
        for sl in range(2):
            f1, f2 = V + 8 * sl, V + 8 * sl + 4
            for p in range(2):
                d = vr(D + 8 * sl + 4 * p, 4)
                X = f1 if p == 0 else f2; Y = f2 + 2 if p == 0 else f1 + 2
                a(f'{mf16} {d}, {vr(X,2)}, {vr(PX,2)}, 0')
                a(f'{mf16} {d}, {vr(Y,2)}, {vr(PX+2,2)}, {d}')
                a(f'{mf16} {d}, {vr(VM+2*sl,2)}, {vr(PM+2*p,2)}, {d}')
        LS = 119
        a(f'v_add_f32 v{LS}, v{E[0]}, v{E[1]}')
        for e in E[2:]: a(f'v_add_f32 v{LS}, v{LS}, v{e}')
        self.xlane('v_add_f32', LS, 118)
        a(f'v_rcp_f32 v{LS}, v{LS}\nv_mul_f32 v{LS}, v{LS}, v{G}')
        for i in range(16): a(f'v_mul_f32 v{D+i}, v{D+i}, v{LS}')
        for i in range(8): a(f'{cvt} v{D+i}, v{D+2*i}, v{D+2*i+1}')
        fm(3)
        for sl in range(2): a(f'ds_write_b128 v{tv("oxw")}, {vr(D+4*sl,4)} offset:{1024*sl}')
        a.wait(lgkm=0)
        a('s_barrier')
        for qt in range(2):
            for sl in range(4):
                a(f'ds_read_b128 {vr(OF+16*qt+4*sl,4)}, v{tv("oxr")} offset:{4096*qt+1024*sl}')
        a(f's_xor_b32 s86, s86, {1<<20}\ns_lshl_b32 s21, {S_RANK}, 10\ns_add_u32 s21, s21, s86\ns_lshl_b32 s22, {S_W}, 17\ns_add_u32 s21, s21, s22')
        a(f's_cmp_eq_u32 {S_TFAST}, 0\ns_cbranch_scc1 L_F_slowst')
        lq0 = list(a.lq)
        for cf in ('', 'sc1'):
            if cf: a('L_F_slowst:'); a.lq = list(lq0)
            df = cf or ('nt' if o.get('fpnt') else '')
            def fin(k):
                qt, T = divmod(k, 4)
                r = AC + 32 * qt + 8 * T
                for i in range(4): a(f'{cvt} v{r+i}, v{r+2*i}, v{r+2*i+1}')
                a(f'buffer_store_dwordx4 {vr(r,4)}, {l16}, {WS}, s21 offen {df}')
                a(f's_add_u32 s21, s21, {32768 if T < 3 else 13 * 32768}')
            for k in range(8):
                qt, T = divmod(k, 4)
                for ks in range(4):
                    for p in range(2):
                        d = vr(AC + 32 * qt + 8 * T + 4 * p, 4)
                        a(f'{mf32} {d}, {ar(wof(T,p,ks),4)}, {vr(OF+16*qt+4*ks,4)}, {d}')
                if k: fin(k - 1)
            fin(7)
            fm(4)
            a.wait(vm=0)
            fm(5)
            a(f'buffer_store_dword v{tv("oxr")}, v{tv("one")}, {WS}, s87 offen {cf}')
            if not cf: a('s_branch L_F_stdone')
        a('L_F_stdone:')
        self.tstamp(5, 252)
        a(f's_lshl_b32 s21, {S_FS}, 9\ns_and_b32 s22, {S_RANK}, 12\ns_lshl_b32 s22, s22, 5\ns_add_u32 s21, s21, s22\ns_add_u32 s21, s21, {hex(L.F_P)}')
        self.spin4(f'v{tv("pfl")}', 's21', Q, n=1, sleep=0)
        fm(6)
        if o.get('fmark'):
            a(f's_lshl_b32 s21, {S_TEAM}, 5\ns_add_u32 s21, s21, {S_RANK}\ns_lshl_b32 s21, s21, 7\ns_add_u32 s21, s21, {hex(L.DBG + 65536)}\ns_waitcnt lgkmcnt(0)')
            for i in range(1, 7): a(f'v_mov_b32 v252, s{88+2*i}\nbuffer_store_dword v252, v{V_Z}, {WS}, s21 offen offset:{4*(15+i)}')
        a.forget()
        a(f's_lshl_b32 s21, {S_RANK}, 15\ns_add_u32 s21, s21, s86')
        for l in range(8):
            a(f'buffer_load_dwordx4 {vr(Q+4*l,4)}, v{tv("fpld")}, {WS}, s21 offen sc1')
            if l < 7: a('s_add_u32 s21, s21, 4096')
        for l in range(8):
            a(f'{mf32} {vr(S0,4)}, {vr(tv("self0"),4)}, {vr(Q+4*l,4)}, {vr(S0,4) if l else 0}')
        a(f's_lshl_b32 s21, {S_FS}, 5\ns_and_b32 s22, {S_RANK}, 16\ns_add_u32 s21, s21, s22\ns_lshl_b32 s21, s21, 10\ns_and_b32 s22, {S_RANK}, 15\ns_lshl_b32 s22, s22, 6\ns_add_u32 s21, s21, s22')
        a(f'{cvt} v{S0}, v{S0}, v{S0+1}\n{cvt} v{S0+1}, v{S0+2}, v{S0+3}')
        a(f'buffer_store_dwordx2 {vr(S0,2)}, v{tv("outst")}, {ST}, s21 offen')
        if o.get('wb'):
            lab = a.newlabel('wb')
            a(f's_cmp_lt_u32 {S_FS}, 52\ns_cbranch_scc1 {lab}\ns_cmp_ge_u32 {S_FS}, {o.get("wbmax", 62)}\ns_cbranch_scc1 {lab}')
            a(f's_or_b32 s21, {S_RANK}, {S_W}\ns_cmp_lg_u32 s21, 0\ns_cbranch_scc1 {lab}\ns_sleep 32\nbuffer_wbl2 sc1\ns_waitcnt vmcnt(0)\n{lab}:')
        a(f's_add_u32 {S_FS}, {S_FS}, {6 if o.get("nb", 1) else 7}\ns_cmp_lt_u32 {S_FS}, 64\ns_cbranch_scc1 L_F_loop')
        a.wait(vm=0)
        self.tstamp(6, 40)
        self.span(40)
        self.note(9, 40)
        a('s_endpgm')
```
